```python
import torch

def _softmax(x, axis=-1):
    return torch.softmax(x, dim=axis)

def _gelu(x):
    return torch.nn.functional.gelu(x, approximate='tanh')

def _silu(x):
    return torch.nn.functional.silu(x)

def _sigmoid(x):
    return torch.sigmoid(x)

def _layernorm(x, axis=-1, eps=1e-05):
    m = x.mean(dim=axis, keepdim=True)
    v = x.var(dim=axis, keepdim=True, unbiased=False)
    return (x - m) / torch.sqrt(v + eps)

def _scatter_add(tgt, idx, src, axis=0):
    return tgt.clone().index_add_(axis, idx, src)

def _segment_sum(src, seg, n):
    out = torch.zeros((n,) + src.shape[1:], dtype=src.dtype)
    return out.index_add_(0, seg, src)

def _pad(x, pw):
    flat = tuple((v for pair in reversed(pw) for v in pair))
    return torch.nn.functional.pad(x, flat)
kernel_name = 'interleave_layers__memory_aug_recurrent_mem_tr__spectral_gfnet__prompt'

def setup_inputs():

    _w = lambda a: (lambda t: t.to(torch.bfloat16) if t.is_floating_point() else t)(torch.as_tensor(a))

    def _A_setup():
        B, S, Dm = (1, 2048, 640)
        H, Dh = (32, 128)
        M, seg = (8, 32)
        seg = min(seg, S)
        S = S // seg * seg
        return {'x': _w((lambda *s: torch.randn(*s, dtype=torch.bfloat16) * 0.05)(B, S, Dm)), 'mem0': _w((lambda *s: torch.randn(*s, dtype=torch.bfloat16) * 0.2)(B, M, Dm)), 'Wq': _w((lambda *s: torch.randn(*s, dtype=torch.bfloat16) * 1.6)(Dm, H, Dh) * Dm ** (-0.5)), 'Wk': _w((lambda *s: torch.randn(*s, dtype=torch.bfloat16) * 1.6)(Dm, H, Dh) * Dm ** (-0.5)), 'Wv': _w((lambda *s: torch.randn(*s, dtype=torch.bfloat16) * 0.2)(Dm, H, Dh) * Dm ** (-0.5)), 'Wo': _w((lambda *s: torch.randn(*s, dtype=torch.bfloat16) * 0.2)(H, Dh, Dm) * (H * Dh) ** (-0.5)), 'seg_len': seg}
    _A_in = _A_setup()

    def _B_setup():
        B, S, D = (1, 2048, 640)
        Df = D // 2 + 1
        return {'x': _w((lambda *s: torch.randn(*s, dtype=torch.bfloat16) * 0.05)(B, S, D)), 'w_r': _w((lambda *s: torch.randn(*s, dtype=torch.bfloat16) * 0.4)(S, Df) * 0.02), 'w_i': _w((lambda *s: torch.randn(*s, dtype=torch.bfloat16) * 0.4)(S, Df) * 0.02)}
    _B_in = _B_setup()
    return {'A_x': _A_in['x'], 'A_mem0': _A_in['mem0'], 'A_Wq': _A_in['Wq'], 'A_Wk': _A_in['Wk'], 'A_Wv': _A_in['Wv'], 'A_Wo': _A_in['Wo'], 'A_seg_len': _A_in['seg_len'], 'B_x': _B_in['x'], 'B_w_r': _B_in['w_r'], 'B_w_i': _B_in['w_i']}

def reference(A_x, A_mem0, A_Wq, A_Wk, A_Wv, A_Wo, A_seg_len, B_x, B_w_r, B_w_i):

    def _A_ref(x, mem0, Wq, Wk, Wv, Wo, seg_len):
        B, S, Dm = x.shape
        H, Dh = (Wq.shape[1], Wq.shape[2])
        M = mem0.shape[1]
        scale = Dh ** (-0.5)
        n_seg = S // seg_len
        L = M + seg_len
        idx = torch.arange(L)
        mask = (idx[:, None] < M) | (idx[:, None] >= idx[None, :])
        mem = mem0
        outs = []
        for s in range(n_seg):
            xs = x[:, s * seg_len:(s + 1) * seg_len, :].clone()
            h = torch.concatenate([mem, xs], axis=1)
            q = torch.einsum('btd,dhe->bhte', h, Wq)
            k = torch.einsum('btd,dhe->bhte', h, Wk)
            v = torch.einsum('btd,dhe->bhte', h, Wv)
            scores = torch.einsum('bhqe,bhke->bhqk', q, k) * scale
            scores = torch.where(mask[None, None], scores, -1000000000.0)
            p = _softmax(scores, axis=-1)
            o = torch.einsum('bhqk,bhke->bhqe', p, v)
            o = torch.einsum('bhte,hed->btd', o, Wo)
            mem = o[:, :M, :].clone()
            outs.append(o[:, M:, :])
        return torch.concatenate(outs, axis=1)

    def _B_ref(x, w_r, w_i):
        B, S, D = x.shape
        X = (lambda x, axes=(-2, -1): torch.fft.rfft2(x.float(), dim=axes))(x, axes=(-2, -1))
        W = w_r + 1j * w_i
        X = X * W
        y = (lambda x, s, axes=(-2, -1): torch.fft.irfft2(x, s=s, dim=axes).to(torch.bfloat16))(X, (S, D), axes=(-2, -1))
        return y
    x = A_x
    x = x + _A_ref(_layernorm(x, axis=-1), A_mem0, A_Wq, A_Wk, A_Wv, A_Wo, A_seg_len)
    x = x + _B_ref(_layernorm(x, axis=-1), B_w_r, B_w_i)
    x = x + _A_ref(_layernorm(x, axis=-1), A_mem0, A_Wq, A_Wk, A_Wv, A_Wo, A_seg_len)
    x = x + _B_ref(_layernorm(x, axis=-1), B_w_r, B_w_i)
    return x
```

```python
class Asm:
    def __init__(self):
        self.lines = []
        self._uid = 0

    def __call__(self, s, comment=None):
        for part in s.split("\n"):
            part = part.strip()
            if not part:
                continue
            if comment:
                self.lines.append("    %-70s ; %s" % (part, comment))
                comment = None
            else:
                self.lines.append("    " + part)

    def label(self, l):
        self.lines.append(l + ":")

    def newlabel(self, base="L"):
        self._uid += 1
        return "%s_%d" % (base, self._uid)

    def c(self, text):
        self.lines.append("    ; " + text)

    def raw(self, text):
        self.lines.append(text)

    def nop(self, n):
        while n > 0:
            k = min(n, 16)
            self("s_nop %d" % (k - 1))
            n -= k

    def text(self):
        return "\n".join(self.lines) + "\n"


def v(i, n=1):
    return "v%d" % i if n == 1 else "v[%d:%d]" % (i, i + n - 1)


def a(i, n=1):
    return "a%d" % i if n == 1 else "a[%d:%d]" % (i, i + n - 1)


def s(i, n=1):
    return "s%d" % i if n == 1 else "s[%d:%d]" % (i, i + n - 1)


def ureg(i, n=1):
    if i < 256:
        assert i + n <= 256
        return v(i, n)
    return a(i - 256, n)


class Kernel:
    def __init__(self, name, grid, block, lds, vgpr, agpr=0, sgpr=96):
        self.name = name
        self.grid = grid
        self.block = block
        self.lds = lds
        self.vgpr = vgpr
        self.agpr = agpr
        self.sgpr = sgpr
        self.asm = Asm()

    def code(self):
        out = []
        out.append(".globl %s" % self.name)
        out.append(".p2align 8")
        out.append(".type %s,@function" % self.name)
        out.append("%s:" % self.name)
        out.append(self.asm.text().rstrip("\n"))
        return "\n".join(out) + "\n"

    def descriptor(self):
        acc = (self.vgpr + 3) // 4 * 4
        nfv = acc + self.agpr if self.agpr else self.vgpr
        return (
            ".p2align 6\n"
            ".amdhsa_kernel %s\n"
            "  .amdhsa_next_free_vgpr %d\n"
            "  .amdhsa_next_free_sgpr %d\n"
            "  .amdhsa_accum_offset %d\n"
            "  .amdhsa_group_segment_fixed_size 0\n"
            "  .amdhsa_kernarg_size 104\n"
            "  .amdhsa_user_sgpr_count 2\n"
            "  .amdhsa_user_sgpr_kernarg_segment_ptr 1\n"
            "  .amdhsa_system_sgpr_workgroup_id_x 1\n"
            "  .amdhsa_float_denorm_mode_32 3\n"
            "  .amdhsa_float_denorm_mode_16_64 3\n"
            ".end_amdhsa_kernel\n" % (self.name, nfv, self.sgpr, acc)
        )


HEADER = """; Kernarg layout for this problem (104 bytes, ptrs only, base s[0:1]):
"""


def assemble_file(kernels, launches):
    byname = {k.name: k for k in kernels}
    out = [HEADER.rstrip("\n")]
    for n in launches:
        k = byname[n]
        out.append("; @launch kernel=%s grid=(%d,1,1) block=(%d,1,1) lds=%d" % (k.name, k.grid, k.block, k.lds))
    out.append('.amdgcn_target "amdgcn-amd-amdhsa--gfx950"')
    out.append(".text")
    for k in kernels:
        out.append(k.code())
    out.append('.section .rodata,"a"')
    for k in kernels:
        out.append(k.descriptor())
    return "\n".join(out)


KA_X, KA_MEM0, KA_WQ, KA_WK, KA_WV, KA_WO, KA_SEG, KA_BX, KA_WR, KA_WI, KA_OUT, KA_DBG, KA_WS = [8 * i for i in range(13)]
SZ_X = 2048 * 640 * 2
SZ_MEM0 = 8 * 640 * 2
SZ_W = 640 * 4096 * 2
SZ_WF = 2048 * 321 * 2
SZ_WS = 268435456


def load_srd(A, sdst, ka_off, size):
    A("s_load_dwordx2 %s, s[0:1], %d" % (s(sdst, 2), ka_off))


def fin_srd(A, sdst, size):
    A("s_and_b32 %s, %s, 0xffff" % (s(sdst + 1), s(sdst + 1)))
    A("s_mov_b32 %s, %d" % (s(sdst + 2), size))
    A("s_mov_b32 %s, 0x00020000" % s(sdst + 3))
```

```python
import struct
from asmlib import *
from layout import *


def f2u(x):
    return struct.unpack('<I', struct.pack('<f', x))[0]


class Pool:
    def __init__(self, base, n):
        self.free = [base + 2 * i for i in range(n)]
    def get(self):
        return self.free.pop(0)
    def put(self, *rs):
        for r in rs:
            assert r not in self.free
            self.free.append(r)


def pr(r):
    return "v[%d:%d]" % (r, r + 1)


def fft_kernel(name):
    k = Kernel(name, 321, 256, 18432, 112)
    A = k.asm
    A("s_cmp_ge_u32 s2, 321"); A("s_cbranch_scc1 %s_end" % name)
    load_srd(A, 8, KA_WS, SZ_WS)
    fft_body(A, name)
    A("s_endpgm")
    return k


def fft_body(A, L, fused=False, lds_base=0):
    sc = " sc1" if fused else ""
    pool = Pool(8, 20)
    TW1, TW2, TW3 = 48, 62, 76
    WV = 92
    SC = "s[26:27]"

    def cadd(a, b):
        d = pool.get(); A("v_pk_add_f32 %s, %s, %s" % (pr(d), pr(a), pr(b))); return d
    def csub(a, b):
        d = pool.get(); A("v_pk_add_f32 %s, %s, %s neg_lo:[0,1] neg_hi:[0,1]" % (pr(d), pr(a), pr(b))); return d
    def cadd_rot(a, b, rot, nega=False):
        d = pool.get()
        na = 1 if nega else 0
        if rot > 0: mods = "neg_lo:[%d,1] neg_hi:[%d,0]" % (na, na)
        else: mods = "neg_lo:[%d,0] neg_hi:[%d,1]" % (na, na)
        A("v_pk_add_f32 %s, %s, %s op_sel:[0,1] op_sel_hi:[1,0] %s" % (pr(d), pr(a), pr(b), mods)); return d
    def cfma(x, sign, a):
        d = pool.get()
        n = 1 if sign < 0 else 0
        A("v_pk_fma_f32 %s, %s, %s, %s neg_lo:[%d,0,0] neg_hi:[%d,0,0]" % (pr(d), pr(x), SC, pr(a), n, n)); return d
    def cfma_rot(x, rot, a):
        d = pool.get()
        if rot > 0: mods = "neg_lo:[1,0,0] neg_hi:[0,0,0]"
        else: mods = "neg_lo:[0,0,0] neg_hi:[1,0,0]"
        A("v_pk_fma_f32 %s, %s, %s, %s op_sel:[1,0,0] op_sel_hi:[0,1,1] %s" % (pr(d), pr(x), SC, pr(a), mods)); return d
    def cmul(x, w, conj):
        t = pool.get()
        A("v_pk_mul_f32 %s, %s, %s op_sel:[0,0] op_sel_hi:[1,0]" % (pr(t), pr(x), pr(w)))
        mods = "neg_lo:[0,0,0] neg_hi:[1,0,0]" if conj else "neg_lo:[1,0,0] neg_hi:[0,0,0]"
        A("v_pk_fma_f32 %s, %s, %s, %s op_sel:[1,1,0] op_sel_hi:[0,1,1] %s" % (pr(t), pr(x), pr(w), pr(t), mods))
        pool.put(x); return t
    def radix4(p, sgn):
        s0 = cadd(p[0], p[2]); s1 = csub(p[0], p[2]); s2 = cadd(p[1], p[3]); t = csub(p[1], p[3])
        pool.put(*p)
        r0 = cadd(s0, s2); r2 = csub(s0, s2); r1 = cadd_rot(s1, t, sgn); r3 = cadd_rot(s1, t, -sgn)
        pool.put(s0, s1, s2, t)
        return [r0, r1, r2, r3]
    def radix8(a, sgn):
        u = []; vv = []
        for j in range(4):
            u.append(cadd(a[j], a[j + 4])); vv.append(csub(a[j], a[j + 4])); pool.put(a[j], a[j + 4])
        ev = radix4(u, sgn)
        x1 = cadd_rot(vv[1], vv[1], sgn)
        x3 = cadd_rot(vv[3], vv[3], sgn, nega=True)
        s0 = cadd_rot(vv[0], vv[2], sgn); s1 = cadd_rot(vv[0], vv[2], -sgn)
        pool.put(*vv)
        s2 = cadd(x1, x3); t = csub(x1, x3); pool.put(x1, x3)
        r0 = cfma(s2, 1, s0); r2 = cfma(s2, -1, s0); r1 = cfma_rot(t, sgn, s1); r3 = cfma_rot(t, -sgn, s1)
        pool.put(s0, s1, s2, t)
        od = [r0, r1, r2, r3]
        return [ev[0], od[0], ev[1], od[1], ev[2], od[2], ev[3], od[3]]
    def twid(x, TW, conj):
        return [x[0]] + [cmul(x[q], TW + 2 * (q - 1), conj) for q in range(1, 8)]
    def lds_write(x, addr, offs):
        for r, o in zip(x, offs): A("ds_write_b64 v%d, %s offset:%d" % (addr, pr(r), o))
        pool.put(*x)
    def lds_read(addr, offs):
        x = [pool.get() for _ in offs]
        for r, o in zip(x, offs): A("ds_read_b64 %s, v%d offset:%d" % (pr(r), addr, o))
        return x

    def setup():
        A("s_mov_b32 s26, 0x%08x" % f2u(0.7071067811865476)); A("s_mov_b32 s27, s26")
        for TW, maskbits, N in ((TW1, 255, 2048), (TW2, 31, 256), (TW3, 3, 32)):
            A("v_and_b32 v3, %d, v0" % maskbits); A("v_cvt_f32_u32 v3, v3")
            for q in range(1, 8):
                A("v_mul_f32 v4, 0x%08x, v3" % f2u(-q / N))
                A("v_cos_f32 v%d, v4" % (TW + 2 * (q - 1))); A("v_sin_f32 v%d, v4" % (TW + 2 * (q - 1) + 1))
        A("v_lshlrev_b32 v3, 3, v0")
        A("v_lshrrev_b32 v4, 5, v0"); A("v_mul_u32_u24 v4, 2304, v4")
        if lds_base: A("v_add_u32 v3, %d, v3" % lds_base); A("v_add_u32 v4, %d, v4" % lds_base)
        A("v_and_b32 v5, 31, v0"); A("v_lshl_add_u32 v5, v5, 3, v4")
        A("v_bfe_u32 v6, v0, 2, 3"); A("v_mul_u32_u24 v6, 288, v6"); A("v_add_u32 v6, v6, v4")
        A("v_and_b32 v7, 3, v0"); A("v_lshl_add_u32 v100, v7, 6, v6")
        A("v_lshl_add_u32 v6, v7, 3, v6")
        A("v_lshrrev_b32 v101, 4, v0"); A("v_mul_u32_u24 v101, 20480, v101"); A("v_and_b32 v2, 15, v0"); A("v_lshl_add_u32 v101, v2, 4, v101")
    def load_w(col, wv):
        A("v_lshlrev_b32 v2, 5, v0"); A("s_lshl_b32 s24, %s, 13" % col); A("s_add_u32 s24, s24, %d" % WS_WT)
        A("buffer_load_dwordx4 v[%d:%d], v2, s[8:11], s24 offen" % (wv, wv + 3))
        A("buffer_load_dwordx4 v[%d:%d], v2, s[8:11], s24 offen offset:16" % (wv + 4, wv + 7))
    def load_x(col, x):
        A("v_lshlrev_b32 v1, 2, v0")
        A("s_lshl_b32 s20, %s, 13" % col); A("s_add_u32 s20, s20, %d" % WS_XD)
        A("s_add_u32 s21, s20, %d" % (320 * 8192))
        A("s_cmp_eq_u32 %s, 0" % col); A("s_cselect_b32 s21, 0x10000000, s21")
        A("s_cmp_ge_u32 %s, 320" % col); A("s_cselect_b32 s21, 0x10000000, s21")
        A("s_cmp_ge_u32 %s, 321" % col); A("s_cselect_b32 s20, 0x10000000, s20")
        A("s_add_u32 s22, s20, 4096"); A("s_add_u32 s23, s21, 4096")
        for j in range(8):
            A("buffer_load_dword v%d, v1, s[8:11], %s offen offset:%d%s" % (x[j], "s22" if j >= 4 else "s20", (j % 4) * 1024, sc))
            A("buffer_load_dword v%d, v1, s[8:11], %s offen offset:%d%s" % (x[j] + 1, "s23" if j >= 4 else "s21", (j % 4) * 1024, sc))
    def process(col, x, wv, tag, wwait):
        b = twid(radix8(x, -1), TW1, False)
        lds_write(b, 3, [q * 2304 for q in range(8)])
        A("s_waitcnt lgkmcnt(0)"); A("s_barrier")
        x = lds_read(5, [j * 256 for j in range(8)]); A("s_waitcnt lgkmcnt(0)")
        b = twid(radix8(x, -1), TW2, False)
        lds_write(b, 5, [q * 288 for q in range(8)])
        x = lds_read(6, [j * 32 for j in range(8)]); A("s_waitcnt lgkmcnt(0)")
        b = twid(radix8(x, -1), TW3, False)
        lds_write(b, 6, [q * 32 for q in range(8)])
        x = lds_read(100, [e * 8 for e in range(8)]); A("s_waitcnt lgkmcnt(0)")
        y = radix4(x[0:4], -1) + radix4(x[4:8], -1)
        if wwait is not None: A("s_waitcnt vmcnt(%d)" % wwait)
        z = []
        for e in range(8):
            w = pool.get()
            A("v_lshlrev_b32 v%d, 16, v%d" % (w, wv + e)); A("v_and_b32 v%d, 0xffff0000, v%d" % (w + 1, wv + e))
            z.append(cmul(y[e], w, False)); pool.put(w)
        y = radix4(z[0:4], 1) + radix4(z[4:8], 1)
        lds_write(y, 100, [e * 8 for e in range(8)])
        x = lds_read(6, [q * 32 for q in range(8)]); A("s_waitcnt lgkmcnt(0)")
        b = radix8(twid(x, TW3, True), 1)
        lds_write(b, 6, [j * 32 for j in range(8)])
        x = lds_read(5, [q * 288 for q in range(8)]); A("s_waitcnt lgkmcnt(0)")
        b = radix8(twid(x, TW2, True), 1)
        lds_write(b, 5, [j * 256 for j in range(8)])
        A("s_waitcnt lgkmcnt(0)"); A("s_barrier")
        x = lds_read(3, [q * 2304 for q in range(8)]); A("s_waitcnt lgkmcnt(0)")
        b = radix8(twid(x, TW1, True), 1)
        A("s_cmp_eq_u32 %s, 320" % col); A("s_cselect_b32 s20, 0, %s" % col); A("s_cselect_b32 s25, 2, 0")
        A("s_lshr_b32 s21, s20, 4"); A("s_lshl_b32 s21, s21, 10"); A("s_bfe_u32 s22, s20, 0x20002"); A("s_lshl_b32 s22, s22, 8"); A("s_add_u32 s21, s21, s22")
        A("s_and_b32 s22, s20, 3"); A("s_lshl_b32 s22, s22, 2"); A("s_add_u32 s21, s21, s22"); A("s_add_u32 s21, s21, s25"); A("s_add_u32 s21, s21, %d" % WS_ZF)
        for j in range(8): A("v_cvt_pk_bf16_f32 v%d, v%d, v%d" % (b[j], b[j], b[j] + 1))
        A("s_cmp_eq_u32 s20, 0"); A("s_cbranch_scc1 %s_short%s" % (L, tag))
        for j in range(8):
            A("buffer_store_dword v%d, v101, s[8:11], s21 offen%s" % (b[j], sc)); A("s_add_u32 s21, s21, 327680")
        A("s_branch %s_done%s" % (L, tag))
        A.label("%s_short%s" % (L, tag))
        for j in range(8):
            A("buffer_store_short v%d, v101, s[8:11], s21 offen%s" % (b[j], sc)); A("s_add_u32 s21, s21, 327680")
        A.label("%s_done%s" % (L, tag))
        pool.put(*b)

    if not fused:
        A("s_waitcnt lgkmcnt(0)"); fin_srd(A, 8, SZ_WS)
        x = [pool.get() for _ in range(8)]
        load_x("s2", x); load_w("s2", WV); setup()
        A("s_waitcnt vmcnt(2)")
        process("s2", x, WV, "", 0)
        A.label("%s_end" % L)
    else:
        def pre():
            A("s_add_u32 s29, s2, 256"); A("s_min_u32 s29, s29, 320")
            load_w("s2", WV); load_w("s29", 104); setup()
        def main():
            A("s_mov_b32 s26, 0x%08x" % f2u(0.7071067811865476)); A("s_mov_b32 s27, s26"); A("s_add_u32 s29, s2, 256")
            x = [pool.get() for _ in range(8)]
            x2 = [112 + 2 * i for i in range(8)]
            load_x("s2", x); load_x("s29", x2)
            A("s_waitcnt vmcnt(16)")
            process("s2", x, WV, "a", None)
            A("s_cmp_ge_u32 s29, 321"); A("s_cbranch_scc1 %s_end" % L)
            A("s_waitcnt vmcnt(8)"); A("s_barrier")
            process("s29", x2, 104, "b", None)
            A.label("%s_end" % L)
        return pre, main


N_T1 = 200; N_T2 = 200; N_WT = 384
N_EXTRA = N_T1 + N_T2 + N_WT


def prep_extra(A, sl):
    A("s_cmp_ge_u32 s%d, %d" % (sl, N_T1 + N_T2)); A("s_cbranch_scc1 Lp_wt")
    A("s_cmp_ge_u32 s%d, %d" % (sl, N_T1)); A("s_cselect_b32 s35, 1, 0")
    A("s_mul_i32 s36, s35, %d" % N_T1); A("s_sub_u32 s36, s%d, s36" % sl); A("s_lshl_b32 s36, s36, 2"); A("s_add_u32 s36, s36, s33")
    A("s_mul_hi_u32 s37, s36, 0x%x" % ((2 ** 32 + 19) // 20))
    A("s_mul_i32 s38, s37, 20"); A("s_sub_u32 s38, s36, s38")
    A("s_lshl_b32 s37, s37, 4"); A("v_add_u32 v6, s37, v4")
    A("s_lshl_b32 s38, s38, 5"); A("v_lshlrev_b32 v7, 3, v3"); A("v_add_u32 v7, s38, v7")
    A("s_mov_b32 s39, 0x%x" % ((2 ** 32 + 639) // 640)); A("s_movk_i32 s40, 640")
    A("s_cmp_eq_u32 s35, 1"); A("s_cbranch_scc1 Lp_t2")
    A("v_cmp_lt_u32 vcc, 320, v6"); A("v_subrev_u32 v8, 320, v6"); A("s_nop 1"); A("v_cndmask_b32 v8, v6, v8, vcc")
    A("v_mov_b32 v9, 0"); A("v_mov_b32 v10, 0x3e800000"); A("v_cndmask_b32 v9, v9, v10, vcc")
    for j in range(8):
        A("v_add_u32 v11, %d, v7" % j); A("v_mul_u32_u24 v11, v11, v8")
        A("v_mul_hi_u32 v12, v11, s39"); A("v_mul_lo_u32 v12, v12, s40"); A("v_sub_u32 v11, v11, v12")
        A("v_cvt_f32_u32 v11, v11"); A("v_mov_b32 v12, v9"); A("v_fmac_f32 v12, 0x%08x, v11" % f2u(1 / 640))
        A("v_cos_f32 v%d, v12" % (16 + j))
    A("s_nop 0")
    for q in range(4): A("v_cvt_pk_f16_f32 v%d, v%d, v%d" % (24 + q, 16 + 2 * q, 17 + 2 * q))
    A("s_lshl_b32 s36, s36, 10"); A("s_add_u32 s36, s36, %d" % WS_FT1)
    A("buffer_store_dwordx4 v[24:27], v5, s[8:11], s36 offen")
    A("s_branch Lp_end")
    A.label("Lp_t2")
    c = 2.0 / (640 * 2048)
    A("v_lshrrev_b32 v8, 1, v7")
    A("v_cmp_eq_u32 vcc, 0, v7")
    for j in range(8):
        A("v_add_u32 v11, %d, v8" % (j // 2))
        ph = 0.25 if j & 1 else 0.0
        A("v_mov_b32 v13, 0x%08x" % f2u(ph)); A("v_mov_b32 v14, 0x%08x" % f2u(c))
        if j < 2:
            A("v_mov_b32 v15, 0x%08x" % f2u(c / 2)); A("v_cndmask_b32 v14, v14, v15, vcc")
        if j == 1:
            A("v_mov_b32 v15, 320"); A("v_cndmask_b32 v11, v11, v15, vcc"); A("v_mov_b32 v15, 0"); A("v_cndmask_b32 v13, v13, v15, vcc")
        A("v_mul_u32_u24 v11, v11, v6")
        A("v_mul_hi_u32 v12, v11, s39"); A("v_mul_lo_u32 v12, v12, s40"); A("v_sub_u32 v11, v11, v12")
        A("v_cvt_f32_u32 v11, v11"); A("v_fmac_f32 v13, 0x%08x, v11" % f2u(1 / 640))
        A("v_cos_f32 v13, v13"); A("s_nop 0"); A("v_mul_f32 v%d, v13, v14" % (16 + j))
    for q in range(4): A("v_cvt_pk_bf16_f32 v%d, v%d, v%d" % (24 + q, 16 + 2 * q, 17 + 2 * q))
    A("s_lshl_b32 s36, s36, 10"); A("s_add_u32 s36, s36, %d" % WS_GT2)
    A("buffer_store_dwordx4 v[24:27], v5, s[8:11], s36 offen")
    A("s_branch Lp_end")
    A.label("Lp_wt")
    load_srd(A, 44, KA_WR, SZ_WF); load_srd(A, 48, KA_WI, SZ_WF)
    A("s_sub_u32 s35, s%d, %d" % (sl, N_T1 + N_T2)); A("s_lshl_b32 s35, s35, 2"); A("s_add_u32 s35, s35, s33")
    A("s_lshr_b32 s36, s35, 8"); A("s_and_b32 s37, s35, 255")
    A("s_lshl_b32 s36, s36, 6"); A("v_add_u32 v6, s36, v1")
    A("s_lshr_b32 s38, s37, 5"); A("s_bfe_u32 s39, s37, 0x30002"); A("s_lshl_b32 s39, s39, 3"); A("s_add_u32 s38, s38, s39")
    A("s_and_b32 s39, s37, 3"); A("s_lshl_b32 s39, s39, 7"); A("s_add_u32 s38, s38, s39"); A("s_mul_i32 s38, s38, 642")
    A("v_lshlrev_b32 v7, 1, v6")
    A("s_waitcnt lgkmcnt(0)"); fin_srd(A, 44, SZ_WF); fin_srd(A, 48, SZ_WF)
    A("v_cmp_gt_u32 vcc, 321, v6"); A("s_and_saveexec_b64 s[52:53], vcc"); A("s_cbranch_execz Lp_end")
    for e in range(8):
        f = 64 * (e // 4) + 512 * (e % 4)
        A("s_add_u32 s39, s38, %d" % (f * 642))
        A("buffer_load_ushort v%d, v7, s[44:47], s39 offen" % (8 + e))
        A("buffer_load_ushort v%d, v7, s[48:51], s39 offen" % (16 + e))
    A("v_lshlrev_b32 v7, 13, v6"); A("s_lshl_b32 s37, s37, 5"); A("s_add_u32 s37, s37, %d" % WS_WT)
    A("s_waitcnt vmcnt(0)")
    for e in range(8): A("v_lshl_or_b32 v%d, v%d, 16, v%d" % (8 + e, 16 + e, 8 + e))
    A("buffer_store_dwordx4 v[8:11], v7, s[8:11], s37 offen")
    A("buffer_store_dwordx4 v[12:15], v7, s[8:11], s37 offen offset:16")
```

```python
from asmlib import *
from layout import *


def ln_body(A, wg, srd, src_off, dst_off, f16, sc='', store_fn=None, lds_base=0):
    A("v_mul_u32_u24 v6, 1280, v4"); A("v_lshl_add_u32 v6, v3, 4, v6")
    A("s_mul_i32 s36, %s, %d" % (wg, 16 * 1280)); A("s_mul_i32 s35, s33, 320"); A("s_add_u32 s36, s36, s35")
    if src_off: A("s_add_u32 s36, s36, %s" % src_off)
    for i in range(5):
        A("buffer_load_dwordx4 v[%d:%d], v6, s[%d:%d], s36 offen offset:%d%s" % (8 + 4 * i, 11 + 4 * i, srd, srd + 3, 64 * i, sc))
    for i in range(5):
        A("s_waitcnt vmcnt(%d)" % (4 - i))
        for q in range(4):
            src = 8 + 4 * i + q
            A("v_lshlrev_b32 v%d, 16, v%d" % (32 + 8 * i + 2 * q, src))
            A("v_and_b32 v%d, 0xffff0000, v%d" % (33 + 8 * i + 2 * q, src))
    A("v_add_f32 v72, v32, v33")
    for i in range(34, 72): A("v_add_f32 v72, v72, v%d" % i)

    def xreduce(reg, tmp, ldsoff):
        A("v_mov_b32 v%d, v%d" % (tmp, reg)); A("s_nop 1")
        A("v_permlane16_swap_b32 v%d, v%d" % (reg, tmp)); A("v_add_f32 v%d, v%d, v%d" % (reg, reg, tmp))
        A("v_mov_b32 v%d, v%d" % (tmp, reg)); A("s_nop 1")
        A("v_permlane32_swap_b32 v%d, v%d" % (reg, tmp)); A("v_add_f32 v%d, v%d, v%d" % (reg, reg, tmp))
        A("ds_write_b32 v76, v%d offset:%d" % (reg, ldsoff))
        A("s_waitcnt lgkmcnt(0)"); A("s_barrier")
        A("ds_read_b128 v[80:83], v77 offset:%d" % ldsoff)
        A("s_waitcnt lgkmcnt(0)")
        A("v_add_f32 v80, v80, v81"); A("v_add_f32 v82, v82, v83"); A("v_add_f32 v%d, v80, v82" % reg)

    A("v_lshlrev_b32 v77, 4, v4")
    if lds_base: A("v_add_u32 v77, %d, v77" % lds_base)
    A("s_lshl_b32 s35, s33, 2"); A("v_add_u32 v76, s35, v77")
    xreduce(72, 73, 0)
    A("v_mul_f32 v72, 0x%08x, v72" % 0x3acccccd)
    for i in range(32, 72): A("v_sub_f32 v%d, v%d, v72" % (i, i))
    A("v_mul_f32 v74, v32, v32")
    for i in range(33, 72): A("v_fmac_f32 v74, v%d, v%d" % (i, i))
    xreduce(74, 73, 512)
    A("v_mov_b32 v75, 0x%08x" % 0x3727c5ac)
    A("v_fmac_f32 v75, 0x%08x, v74" % 0x3acccccd)
    A("v_rsq_f32 v75, v75"); A("s_nop 0")
    for i in range(32, 72): A("v_mul_f32 v%d, v%d, v75" % (i, i))
    cv = "v_cvt_pk_f16_f32" if f16 else "v_cvt_pk_bf16_f32"
    for i in range(20): A("%s v%d, v%d, v%d" % (cv, 8 + i, 32 + 2 * i, 33 + 2 * i))
    A("s_mul_i32 s36, %s, 20480" % wg); A("s_mul_i32 s35, s33, 5120"); A("s_add_u32 s36, s36, s35"); A("s_add_u32 s36, s36, %d" % dst_off)
    A("s_add_u32 s35, s36, 4096")
    st = ["buffer_store_dwordx4 v[%d:%d], v5, s[8:11], %s offen offset:%d" % (8 + 4 * i, 11 + 4 * i, "s35" if i == 4 else "s36", (1024 * i) % 4096) for i in range(5)]
    if store_fn: store_fn(st)
    else:
        for t_ in st: A(t_ + sc)


def ln_kernel(name, src_ka, src_ws_off, dst_off, f16=False):
    k = Kernel(name, 128, 256, 2048, 96)
    A = k.asm
    L = name
    A("s_cmp_ge_u32 s2, 128"); A("s_cbranch_scc1 %s_end" % L)
    load_srd(A, 8, KA_WS, SZ_WS)
    if src_ka is not None:
        load_srd(A, 12, src_ka, SZ_X)
    A("v_and_b32 v1, 63, v0"); A("v_lshrrev_b32 v2, 6, v0"); A("v_lshrrev_b32 v3, 4, v1"); A("v_readfirstlane_b32 s33, v2")
    A("v_and_b32 v4, 15, v1"); A("v_lshlrev_b32 v5, 4, v1")
    A("s_waitcnt lgkmcnt(0)")
    fin_srd(A, 8, SZ_WS)
    if src_ka is not None:
        fin_srd(A, 12, SZ_X); ln_body(A, "s2", 12, 0, dst_off, f16)
    else:
        ln_body(A, "s2", 8, src_ws_off, dst_off, f16)
    A.label("%s_end" % L)
    A("s_endpgm")
    return k
```

```python
MB = 1 << 20
WS_WQKP = 0
WQKP_H = 491520
WQKP_W = 122880
WS_BP = 16 * MB
WS_XNF = 48 * MB
WS_QXF = 64 * MB
WS_KXF = 80 * MB
WS_M0 = 96 * MB
WS_FILL = 172 * MB
WS_MBUF = WS_FILL
MBUF_X = 64 * 10240
MBUF_LAYER = MBUF_X
WS_PART = WS_MBUF + 2 * MBUF_LAYER
PART_SLOT = 10 * 8192
PART_XCD = 2 * PART_SLOT
WS_CAN = WS_PART + 8 * PART_XCD
WS_FILL_END = WS_CAN + 131072
WS_PARTX = 100 * MB
PARTX_SLOT = 10 * 32 * 512
PARTX_XCD = 4 * PARTX_SLOT
FILL_BYTES = WS_FILL_END - WS_FILL
assert FILL_BYTES % 65536 == 0, FILL_BYTES
WS_X1 = 112 * MB
WS_X2 = 116 * MB
WS_X3 = 120 * MB
WS_NEXT = 124 * MB
WS_FT1 = 124 * MB
WS_GT2 = 125 * MB
WS_WT = 126 * MB
WS_XNH = 130 * MB
WS_XD = 134 * MB
WS_ZF = 140 * MB
WS_WOP = 144 * MB
WS_VXF = 152 * MB
WS_BAR = WS_M0 + 65536
WS_BAR2 = WS_BAR + 20480
WS_PG = 184 * MB
```

```python
import struct, copy
from asmlib import *
from layout import *
from seq import *


def f2u(x):
    return struct.unpack('<I', struct.pack('<f', x))[0]


C1 = (128 ** -0.5) * 1.4426950408889634
SPIN_MAX = 60000
OOB = 0x10000000

L_K = 0
L_VT = 8192
L_MR = 16384
L_EV = L_MR
L_ML = L_MR + 5120
L_EQ = L_ML + 5120
L_EK = L_EQ + 2304
L_JUNK = L_EK + 2304
L_FL = L_JUNK + 256
L_W = 32768
NLW = 16
LW_WAVE = NLW * 2048
assert L_FL + 64 <= L_W and L_W + 4 * LW_WAVE <= 163840

L16, IDX, EW, ER, ERQ, VW, MRA, PSB, PA8, RL, T0, T1 = range(12)
AV, AQ, AK = 12, 20, 28
M = [36 + 4 * t for t in range(5)]
LB = [56, 64]
X0, X1 = 72, 76
WR0 = 80

MATS = {'q': 0, 'k': 1, 'v': 2}
ACC = {'q': AQ, 'k': AK, 'v': AV}
import sys
NV = max([int(a_[3:]) for a_ in sys.argv if a_.startswith("NV=")] + [0])
SEQ = [(m, tl, 0, t) for t in range(5) for m in ('qkv' if t < NV else 'qk') for tl in range(2)] + [(m, tl, 1, t) for m in 'qkv' for t in range(5) for tl in range(2)] + \
      [('v', tl, 0, t) for t in range(NV, 5) for tl in range(2)]
NLOC = 20 + 2 * NV
LDSI = [i for i in range(60) if i % 3 == 0 and i <= 45]
assert len(LDSI) == NLW
_regs = [WR0 + 8 * i for i in range(22)] + [256 + 8 * i for i in range(32)]
WREG = {}
for i in range(60):
    if i not in LDSI: WREG[i] = _regs.pop()
WO = {(T, tp): _regs.pop() for T in range(5) for tp in range(2)}
assert not _regs

FL_ = {0: [], 1: [], 2: [0, 1, 2], 3: [3, 4]}
FR_ = {0: [0, 1], 1: [2], 2: [3], 3: [4]}


def chain_load(A):
    A("s_mul_i32 s29, s22, %d" % WQKP_H); A("s_mul_i32 s28, s21, %d" % WQKP_W); A("s_add_u32 s29, s29, s28")
    A("s_mul_i32 s28, s20, 10240"); A("s_add_u32 s30, s29, s28"); A("s_sub_u32 s31, s29, s28"); A("s_add_u32 s31, s31, 10240")
    A("s_mul_i32 s26, s21, %d" % LW_WAVE); A("s_add_u32 s26, s26, %d" % L_W)
    for i, (m, tl, rem, t) in enumerate(SEQ):
        off = WS_WQKP + MATS[m] * 40960 + tl * 20480 + t * 2048
        A("s_add_u32 s27, s%d, %d" % (31 if rem else 30, off))
        if i in LDSI:
            A("s_add_u32 m0, s26, %d" % (LDSI.index(i) * 2048)); A("s_nop 0")
            for hf in range(2): A("buffer_load_dwordx4 v%d, s[8:11], s27 offen offset:%d lds" % (L16, hf * 1024))
        else:
            for hf in range(2): A("buffer_load_dwordx4 %s, v%d, s[8:11], s27 offen offset:%d" % (ureg(WREG[i] + 4 * hf, 4), L16, hf * 1024))
    A("s_lshl_b32 s28, s20, 2"); A("s_add_u32 s28, s28, s21"); A("s_mul_i32 s28, s28, 20480"); A("s_mul_i32 s29, s22, 163840"); A("s_add_u32 s29, s29, s28")
    for T in range(5):
        A("s_add_u32 s27, s29, %d" % (WS_WOC + T * 4096))
        for u in range(4): A("buffer_load_dwordx4 %s, v%d, s[8:11], s27 offen offset:%d" % (ureg(WO[T, u // 2] + 4 * (u % 2), 4), L16, u * 1024))


def chain_body(A, P, L, ht):
    g, r, i_, p, a, b = range(36, 42)
    A("v_lshrrev_b32 v%d, 8, v0" % g); A("v_bfe_u32 v%d, v0, 4, 4" % r); A("v_bfe_u32 v%d, v0, 4, 3" % i_); A("v_bfe_u32 v%d, v0, 7, 1" % p)
    A("s_mov_b32 s36, 0x00ff00ff"); A("s_mov_b32 s37, 0x00ff00ff"); A("s_not_b64 s[18:19], s[36:37]")
    A("v_mov_b32 v%d, 0x4444" % IDX); A("v_mov_b32 v%d, 0xeeee" % a); A("v_cndmask_b32_e64 v%d, v%d, v%d, s[18:19]" % (IDX, IDX, a))
    A("v_and_b32 v%d, 1, v%d" % (a, g)); A("v_lshlrev_b32 v%d, 2, v%d" % (a, a)); A("v_lshrrev_b32 v%d, 1, v%d" % (b, g)); A("v_add_u32 v%d, v%d, v%d" % (a, a, b))
    A("v_mul_u32_u24 v%d, 288, v%d" % (a, a)); A("v_lshl_add_u32 v%d, v%d, 2, v%d" % (a, r, a)); A("s_lshl_b32 s27, s21, 6"); A("v_add_u32 v%d, s27, v%d" % (EW, a))
    A("v_mul_u32_u24 v%d, 288, v%d" % (a, i_)); A("v_lshl_add_u32 v%d, v%d, 4, v%d" % (ER, g, a))
    A("v_cndmask_b32_e64 v%d, v%d, 2.0, s[18:19]" % (ERQ, ER))
    A("s_mul_i32 s27, s21, %d" % LW_WAVE); A("s_add_u32 s27, s27, %d" % L_W); A("v_add_u32 v%d, s27, v0" % VW)
    A("v_and_b32 v%d, 0x200, v0" % MRA)
    for src, dst in ((6, 8), (4, 7), (5, 6), (8, 5), (7, 4)):
        A("v_bfe_u32 v%d, v0, %d, 1" % (a, src)); A("v_lshl_or_b32 v%d, v%d, %d, v%d" % (MRA, a, dst, MRA))
    A("s_lshl_b32 s27, s21, 13"); A("s_lshl_b32 s28, s22, 5"); A("s_add_u32 s27, s27, s28"); A("s_add_u32 s27, s27, %d" % PART_T4)
    A("v_lshrrev_b32 v%d, 7, v0" % a); A("v_lshlrev_b32 v%d, 10, v%d" % (a, a)); A("v_lshl_add_u32 v%d, v%d, 2, v%d" % (a, i_, a)); A("v_add_u32 v%d, s27, v%d" % (PSB, a))
    A("v_lshlrev_b32 v%d, 3, v0" % PA8)
    A("v_lshrrev_b32 v%d, 7, v0" % a); A("v_mul_u32_u24 v%d, %d, v%d" % (a, PART_H, a)); A("v_lshl_add_u32 v%d, v%d, 4, v%d" % (RL, i_, a))
    A("s_mul_i32 s34, s20, %d" % PART_X); A("s_add_u32 s34, s34, %d" % WS_PART)
    A("s_lshl_b32 s35, s21, 10"); A("s_mul_i32 s27, s22, %d" % PART_H); A("s_add_u32 s35, s35, s27")
    A("s_and_b32 s27, s22, 1"); A("s_bfe_u32 s28, s22, 0x10001"); A("s_bfe_u32 s29, s22, 0x10002")
    A("s_lshl_b32 s30, s27, 2"); A("s_lshl_b32 s31, s28, 1"); A("s_or_b32 s30, s30, s31"); A("s_or_b32 s30, s30, s29"); A("s_and_b32 s31, s22, 0x18"); A("s_or_b32 s30, s30, s31")
    A("s_lshl_b32 s33, s30, 7"); A("s_lshl_b32 s32, s22, 7")
    A("s_cmp_eq_u32 s21, 0"); A("s_cbranch_scc1 %s" % L("c_r0"))
    A("s_lshl_b32 s32, s22, 10"); A("s_add_u32 s32, s32, %d" % PART_T4)
    A("s_lshl_b32 s33, s27, 4"); A("s_lshl_b32 s28, s28, 8"); A("s_or_b32 s33, s33, s28"); A("s_lshl_b32 s29, s29, 7"); A("s_or_b32 s33, s33, s29")
    A("s_bfe_u32 s28, s22, 0x10003"); A("s_lshl_b32 s28, s28, 5"); A("s_or_b32 s33, s33, s28"); A("s_bfe_u32 s28, s22, 0x10004"); A("s_lshl_b32 s28, s28, 9"); A("s_or_b32 s33, s33, s28")
    A("s_add_u32 s33, s33, 4096")
    A.label(L("c_r0"))
    A("s_mul_i32 s41, s20, 20480"); A("s_add_u32 s41, s41, %d" % (WS_ML + 640))
    A("s_lshl_b32 s46, s20, 17"); A("s_add_u32 s46, s46, %d" % WS_MR); A("s_add_u32 s46, s46, s25"); A("s_xor_b32 s47, s46, 0x20000")
    A("s_mov_b32 s38, 0x00ff00ff"); A("s_mov_b32 s39, 0"); A("s_mov_b32 s62, 0x00030003"); A("s_mov_b32 s63, 0x00030003")
    A("s_mov_b32 s40, 0x%08x" % f2u(C1)); A("s_movk_i32 s45, 0x3f80")
    A("s_mov_b32 s68, 0x%08x" % f2u(2.0 ** -24)); A("s_mov_b32 s69, 0x%08x" % (f2u(2.0 ** 24) - f2u(2.0 ** -24)))
    A("s_lshl_b32 s51, s22, 7"); A("s_add_u32 s52, s51, %d" % WS_CHFL); A("s_lshl_b32 s51, s22, 8"); A("s_add_u32 s51, s51, %d" % WS_KVFL)
    A("s_mov_b32 s24, 0x3f803f80"); A("s_mov_b32 s25, 0x3f803f80"); A("s_mov_b32 s16, 0x3f003f00"); A("s_mov_b32 s17, 0x3f003f00")
    A("s_lshl_b32 s53, s22, 13"); A("s_add_u32 s53, s53, %d" % WS_KM)
    A("s_lshl_b32 s27, s20, 12"); A("s_add_u32 s53, s53, s27"); A("s_lshl_b32 s27, s20, 2"); A("s_add_u32 s52, s52, s27")
    A("s_cmp_eq_u32 s20, 0"); A("s_cselect_b64 s[42:43], -1, 0")
    A("s_mov_b32 s44, 0"); A("s_mov_b32 s54, 0"); A("s_mov_b32 s71, 0"); A("s_mov_b32 s4, 0x%x" % OOB); A("s_mov_b32 s60, 0x%x" % OOB); A("s_mov_b32 s64, 0x%x" % OOB); A("s_mov_b32 s65, 0x%x" % OOB)
    A("s_waitcnt vmcnt(0) lgkmcnt(0)"); A("s_barrier")
    ht(1)
    A("s_cmp_lg_u32 s23, 0"); A("s_cbranch_scc1 %s" % L("c_slow"))
    for md in (0, 1):
        if md: A.label(L("c_slow"))
        for w in range(1, 4):
            A("s_cmp_eq_u32 s21, %d" % w); A("s_cbranch_scc1 %s" % L("c%d_%d_layer" % (md, w)))
        for w in range(4): chain_wave(A, P, L, ht, w, md)


def chain_wave(A, P, L0, ht, w, md):
    L = lambda x: L0("c%d_%d_%s" % (md, w, x))
    sc = " sc1" if md else ""
    ool = []
    ST = P.get("STAMP") and not md
    TR = ST and "TS" in P
    SOLO = P.get("SOLO")

    def stamp(S, i):
        if ST and not TR: S("%s s[%d:%d]" % ("s_memrealtime" if P.get("RAW") else "s_memtime", 72 + 2 * i, 73 + 2 * i))
    def hook(n, t):
        k_, r_ = divmod(n - P["TS"], P.get("TD", 16))
        if r_ == 0 and 0 <= k_ <= 8: A("s_memtime s[%d:%d]" % (72 + 2 * k_, 73 + 2 * k_)); S.tailv = 0
        if P.get("LIST") == w + 1: print(n, estimate(A.lines[top0:]), t)
    def br(t): return "s_nop 0" if SOLO else t

    def smf(S, acc, a_, b_): S("v_smfmac_f32_16x16x64_bf16 %s, %s, %s, v%d" % (r4(acc), r4(a_), ureg(b_, 8), IDX))
    def mf32(S, acc, a_, b_, c): S("v_mfma_f32_16x16x32_bf16 %s, %s, %s, %s" % (r4(acc), ureg(a_, 4), ureg(b_, 4), c if isinstance(c, str) else r4(c)))
    def mf16(S, acc, a_, b_, c): S("v_mfma_f32_16x16x16_bf16 %s, %s, %s, %s" % (r4(acc), r2(a_), r2(b_), c if isinstance(c, str) else r4(c)))
    def rd(S, dst, areg, off): return S("ds_read_b128 %s, v%d offset:%d" % (r4(dst), areg, off))
    def zero(S, q): S("v_mov_b64 %s, 0" % r2(q)); S("v_mov_b64 %s, 0" % r2(q + 2))
    def zitems(S, q): return [lambda r=r: S("v_mov_b64 %s, 0" % r2(r)) for r in (q, q + 2)]
    def cvt(d, a_, b_): return "v_cvt_pk_bf16_f32 v%d, v%d, v%d" % (d, a_, b_)
    def ror(d, s_): return "v_mov_b32_dpp v%d, v%d row_ror:8 row_mask:0xf bank_mask:0xf" % (d, s_)
    def newseq():
        S = Seq(A); S.warm = VW; S.mst = P.get("MST", 3); S.hoist = True; return S
    def idle(S, n):
        while n > 0:
            S("v_mov_b32 v%d, v%d" % (VW, VW)); n -= 1
            if n >= 2: S("s_nop 1"); n -= 2

    PQ = [X0, X1]
    def pub_read(S):
        for i in range(2):
            u = 2 * (w - 2) + i
            S("v_add_u32 v%d, %d, v%d" % (T0, L_EV + 1024 * u, L16)); S("v_add_u32 v%d, %d, v%d" % (T1, L_EK + 64 * u, ER))
            S("v_cndmask_b32_e64 v%d, v%d, v%d, s[42:43]" % (T0, T0, T1)); rd(S, PQ[i], T0, 0)
        S("s_lshl_b32 s4, s44, 18"); S("s_add_u32 s4, s4, s53")
    def pub_store(S):
        for i in range(2): S("buffer_store_dwordx4 %s, v%d, s[8:11], s4 offen offset:%d sc1" % (r4(PQ[i]), L16, 2048 * (w - 2) + 1024 * i))
        S("s_mov_b32 s4, 0x%x" % OOB)

    def dma(S, fr, sa, lds, fl=" sc1"):
        tok = None
        for i, f in enumerate(fr):
            blk = f // 4
            if i == 0 or f % 4 == 0:
                S("s_mov_b32 m0, %d" % (lds + blk * 4096))
                if blk: S("s_add_u32 s59, %s, %d" % (sa, blk * 4096))
            tok = S("buffer_load_dwordx4 v%d, s[8:11], %s offen offset:%d%s lds" % (L16, "s59" if blk else sa, 1024 * (f % 4), fl))
        return tok

    def lw_read(S, n):
        b = LB[n % 2]
        return [lambda: rd(S, b, VW, n * 2048), lambda: rd(S, b + 4, VW, n * 2048 + 1024)]

    def drain(fl):
        while fl: fl.pop(0)()

    def kv_addr(S, dst, ds, extra=0):
        S("s_and_b32 %s, s44, 63" % dst)
        if ds: S("s_add_u32 %s, %s, %d" % (dst, dst, ds)); S("s_min_u32 %s, %s, 63" % (dst, dst))
        S("s_lshl_b32 %s, %s, 18" % (dst, dst)); S("s_add_u32 %s, %s, s50" % (dst, dst))
        if extra: S("s_add_u32 %s, %s, %d" % (dst, dst, extra))

    KVF = {0: [(0, [0, 1])], 1: [(0, [2, 3])], 2: [(0, [4, 5, 6, 7]), (1, [0, 1])], 3: [(1, [2, 3, 4, 5, 6, 7])]}[w]
    def kv_fetch(S):
        for mat, fr in KVF:
            if mat: S("s_add_u32 s27, s26, %d" % KV_MAT)
            dma(S, fr, "s27" if mat else "s26", L_K + 8192 * mat)

    def touch_addr(S, d):
        TA = P.get("TA", 1)
        kv_addr(S, "s2", d + TA)
        S("s_add_u32 s27, s44, %d" % (d + TA + 1)); S("s_cmp_ge_u32 s54, s27"); S("s_cselect_b32 s2, s2, 0x%x" % OOB); S("s_add_u32 s3, s2, %d" % KV_MAT)

    def post(S, acc, off, scale=False):
        it = []
        for tl in range(2):
            b = acc + 4 * tl
            it += ["v_permlane32_swap_b32 v%d, v%d" % (b, b + 1), "v_permlane32_swap_b32 v%d, v%d" % (b + 2, b + 3)]
        for tl in range(2):
            b = acc + 4 * tl
            it += ["v_add_f32 v%d, v%d, v%d" % (b, b, b + 1), "v_add_f32 v%d, v%d, v%d" % (b + 2, b + 2, b + 3)]
        if scale: it += ["v_mul_f32 v%d, s40, v%d" % (r, r) for r in (acc, acc + 4, acc + 2, acc + 6)]
        it += [cvt(acc, acc, acc + 4), cvt(acc + 1, acc + 2, acc + 6)]
        wr = ["ds_write_b32 v%d, v%d offset:%d" % (EW, acc, off), "ds_write_b32 v%d, v%d offset:%d" % (EW, acc + 1, off + 576)]
        return [lambda t=t: S(t) for t in it], [lambda t=t: S(t) for t in wr]

    def spin_count(S_, lim=SPIN_MAX):
        S_("s_add_u32 s30, s30, 1"); S_("s_cmp_ge_u32 s30, %d" % lim); S_("s_cbranch_scc1 %s" % L0("fail"))

    def kv_wait(S, lab, need):
        S("s_add_u32 s27, s44, %d" % need); S("s_or_b32 s28, s44, 63"); S("s_add_u32 s28, s28, 1"); S("s_min_u32 s27, s27, s28")
        S("s_cmp_lt_u32 s54, s27"); S("s_cbranch_scc1 %s" % L(lab))
        S.label(L(lab + "_r"))
        def blk():
            A.label(L(lab))
            A("s_mov_b32 s30, 0")
            A.label(L(lab + "_l"))
            A("s_waitcnt lgkmcnt(0)"); A("s_mov_b64 exec, 3")
            A("buffer_load_dword v%d, v%d, s[8:11], s51 offen sc1" % (T1, PA8)); A("s_waitcnt vmcnt(0)"); A("s_mov_b64 exec, -1")
            A("v_readlane_b32 s54, v%d, 0" % T1); A("v_readlane_b32 s28, v%d, 1" % T1); A("s_nop 3"); A("s_min_u32 s54, s54, s28")
            A("s_cmp_ge_u32 s54, s27"); A("s_cbranch_scc1 %s" % L(lab + "_r"))
            A("s_sleep 1"); spin_count(A); A("s_branch %s" % L(lab + "_l"))
        ool.append(blk)

    def ready(S):
        for n in range(2): drain(lw_read(S, n))
        for q in (AV, AV + 4, AQ, AQ + 4, AK, AK + 4): zero(S, q)

    Q = X0
    def clear_prep(S):
        S("v_mov_b64 %s, -1" % r2(Q)); S("v_mov_b64 %s, -1" % r2(Q + 2))
        S("s_add_u32 s28, s44, 3"); S("s_and_b32 s29, s28, 3"); S("s_mul_i32 s31, s22, 160")
        S("s_mul_i32 s28, s29, %d" % PART_SLOT); S("s_add_u32 s28, s28, s34"); S("s_add_u32 s64, s28, s35")
        if w == 0: S("s_mul_i32 s60, s29, 5120"); S("s_add_u32 s60, s60, s41")
        else:
            S("s_add_u32 s65, s28, s32"); S("s_lshl_b32 s60, s29, 15"); S("s_add_u32 s60, s60, s47")
        S("s_add_u32 s60, s60, s31")
    def clears(S):
        if w == 0:
            for j in range(2): S("buffer_store_dwordx4 %s, v%d, s[8:11], s64 offen offset:%d%s" % (r4(Q), L16, j * 1024, sc))
            m_clear(S)
        else:
            for j in range(1, 3): S("buffer_store_dwordx4 %s, v%d, s[8:11], s64 offen offset:%d%s" % (r4(Q), L16, j * 1024, sc))
            S("buffer_store_dwordx4 %s, v%d, s[8:11], s65 offen%s" % (r4(Q), L16, sc))
            S("s_mov_b32 s65, 0x%x" % OOB)
        S("s_mov_b32 s64, 0x%x" % OOB)
    def m_clear(S):
        S("s_mov_b64 exec, 0x3ff")
        S("buffer_store_dwordx4 %s, v%d, s[8:11], s60 offen%s" % (r4(Q), L16, sc if w == 0 else " sc1"))
        S("s_mov_b64 exec, -1"); S("s_mov_b32 s60, 0x%x" % OOB)

    def window(S):
        p0 = pw0; red = w < 2; tag = "w"
        FLn, RG, U1, LD, PG, KD, CD = P.get("FL", 32), P.get("RG", 24), P.get("U1", 8), P.get("LD", 52), P.get("PG2", 26), P.get("KD", 84), P.get("CD", 0)
        NS, NA, CP = P.get("NS", 2), P.get("NA", 3), P.get("CP", 0)
        nxt = ["s_add_u32 s27, s44, 1", "s_and_b32 s27, s27, 3", "s_mul_i32 s48, s27, 5120", "s_add_u32 s48, s48, s41", "s_lshl_b32 s27, s27, 15", "s_add_u32 s49, s27, s47"]
        if not red:
            for t_ in nxt: S(t_)
        if red:
            NL = 4 if w == 0 else 1
            SETS = [[M[1], M[2], M[3], M[4]], [AV, AV + 4, AQ, AQ + 4], [LB[0], LB[0] + 4, LB[1], LB[1] + 4]][:NS] if w == 0 else [[M[1 + i]] for i in range(NS)]
            SEL, D, X = X0, X1, AK + 4
            su = []
            if w == 0:
                su += ["v_and_b32 v%d, 16, v%d" % (X, L16), "v_bfe_u32 v%d, v%d, 5, 2" % (X + 1, L16)]
            else:
                su += ["v_bfe_u32 v%d, v%d, 4, 1" % (X + 2, L16), "v_bfe_u32 v%d, v%d, 7, 1" % (X + 1, L16), "v_lshl_add_u32 v%d, v%d, 1, v%d" % (X + 1, X + 1, X + 2),
                       "v_bfe_u32 v%d, v%d, 6, 1" % (X, L16), "v_lshlrev_b32 v%d, 4, v%d" % (X, X)]
            su += ["v_lshlrev_b32_e64 v%d, v%d, s45" % (X, X)]
            su += ["v_cmp_eq_u32_e64 s[%d:%d], %d, v%d" % (64 + 2 * (q & 1), 65 + 2 * (q & 1), q, X + 1) for q in range(2)] + nxt[:2]
            su += ["v_cndmask_b32_e64 v%d, 0, v%d, s[%d:%d]" % (SEL + q, X, 64 + 2 * (q & 1), 65 + 2 * (q & 1)) for q in range(2)]
            su += ["v_cmp_eq_u32_e64 s[%d:%d], %d, v%d" % (64 + 2 * (q & 1), 65 + 2 * (q & 1), q, X + 1) for q in range(2, 4)] + nxt[2:4]
            su += ["v_cndmask_b32_e64 v%d, 0, v%d, s[%d:%d]" % (SEL + q, X, 64 + 2 * (q & 1), 65 + 2 * (q & 1)) for q in range(2, 4)] + nxt[4:]
            if w == 0:
                su += ["v_bfe_u32 v%d, v%d, 4, 3" % (T1, L16), "v_lshlrev_b32 v%d, 3, v%d" % (T1, T1), "v_lshrrev_b32 v%d, 8, v%d" % (X, L16), "v_lshl_add_u32 v%d, v%d, 6, v%d" % (T1, X, T1)]
            else:
                su += ["v_bfe_u32 v%d, v%d, 8, 1" % (X, L16), "v_lshlrev_b32 v%d, 6, v%d" % (T1, X), "v_lshl_add_u32 v%d, v%d, 3, v%d" % (T1, X + 2, T1),
                       "v_lshrrev_b32 v%d, 9, v%d" % (X + 1, L16), "v_lshl_add_u32 v%d, v%d, 2, v%d" % (T1, X + 1, T1)]
            su += ["s_add_u32 s56, s27, s46", "s_add_u32 s56, s56, s33", "s_add_u32 s58, s48, s33"]
            def gap(n):
                while n > 0 and su: S(su.pop(0)); n -= 1
                idle(S, n)
            def issue(E, B):
                for j in range(NL): E("buffer_load_dwordx4 %s, v%d, s[8:11], %s offen sc1" % (r4(B[j]), RL if w == 0 else L16, ("s43", "s61", "s100", "s101")[j]))
            gap(FLn + (P.get("F1", 4) if w else 0) - (S.pos - p0))
            for k_, B in enumerate(SETS):
                if k_: gap(RG + (P.get("R1", 14) if w else 0))
                issue(S, B)
            gap(max(U1, len(su)))
            def hint(E, B):
                if w == 0: E("v_max3_u32 v%d, v%d, v%d, v%d" % (X, B[0], B[1], B[2])); E("v_max_u32 v%d, v%d, v%d" % (X, X, B[3])); E("v_cmp_eq_u32 vcc, -1, v%d" % X)
                else: E("v_cmp_eq_u32 vcc, -1, v%d" % B[0])
            def fold(E):
                if w == 0:
                    for q in range(4): E("v_add_f32_dpp v%d, v%d, v%d row_ror:8 row_mask:0xf bank_mask:0xf" % (D + q, D + q, D + q))
                    E("v_cmp_u_f32 vcc, v%d, v%d" % (D, D))
                    E(cvt(D, D, D + 1)); E(cvt(D + 1, D + 2, D + 3))
                else:
                    for sh in (8, 4, 2):
                        for q in range(2): E("v_add_f32_dpp v%d, v%d, v%d row_ror:%d row_mask:0xf bank_mask:0xf" % (D + q, D + q, D + q, sh))
                    E("v_cmp_u_f32 vcc, v%d, v%d" % (D, D))
                    E(cvt(D, D, D + 1))
            op = "buffer_store_dwordx2 %s" % r2(D) if w == 0 else "buffer_store_dword v%d" % D
            def publish(E):
                E("s_mov_b64 exec, %s" % ("s[38:39]" if w == 0 else "s[62:63]"))
                E("%s, v%d, s[8:11], s58 offen%s" % (op, T1, sc))
            for j in range(NL): mf32(S, D, SEL, SETS[0][j], "0" if j == 0 else D)
            hint(S, SETS[0]); S(br("s_cbranch_vccnz %s" % L(tag + "rb_i0")))
            fold(S); S(br("s_cbranch_vccnz %s" % L(tag + "rb_e0")))
            publish(S)
            def blk():
                A.label(L(tag + "rb_l"))
                for k_, B in enumerate(SETS):
                    E = Seq(A)
                    E("s_waitcnt vmcnt(%d)" % (NL * NS - NL))
                    for j in range(NL): mf32(E, D, SEL, B[j], "0" if j == 0 else D)
                    hint(E, B); E("s_cbranch_vccz %s" % L(tag + "rb_x%d" % k_))
                    A.label(L(tag + "rb_i%d" % k_))
                    issue(A, B)
                    if ST: A("s_add_u32 s99, s99, 1")
                A("s_add_u32 s71, s71, 1"); A("s_cmp_lt_u32 s71, %d" % (4 * SPIN_MAX)); A("s_cbranch_scc1 %s" % L(tag + "rb_l")); A("s_branch %s" % L0("fail"))
                for k_, B in enumerate(SETS):
                    A.label(L(tag + "rb_x%d" % k_))
                    E = Seq(A); E("s_nop %d" % (3 if w == 0 else 5)); fold(E); A("s_cbranch_vccz %s" % L(tag + "rb_n"))
                    A.label(L(tag + "rb_e%d" % k_))
                    allr = [b + i for b in B for i in range(4)]
                    A("v_max3_u32 v%d, v%d, v%d, v%d" % (X, allr[0], allr[1], allr[2]))
                    for i in range(3, len(allr) - 1, 2): A("v_max3_u32 v%d, v%d, v%d, v%d" % (X, X, allr[i], allr[i + 1]))
                    A("v_max_u32 v%d, v%d, v%d" % (X, X, allr[-1])); A("v_cmp_eq_u32 vcc, -1, v%d" % X)
                    A("s_cbranch_vccnz %s" % L(tag + "rb_i%d" % k_))
                    A("v_min_u32 v%d, -2, v%d" % (D, D)); A("v_min_u32 v%d, -2, v%d" % (D + 1, D + 1))
                    if k_ < NS - 1: A("s_branch %s" % L(tag + "rb_n"))
                A.label(L(tag + "rb_n"))
                publish(A)
                A("s_branch %s" % L(tag + "rb_d"))
            ool.append(blk)
            S.label(L(tag + "rb_d"))
        else:
            pub_read(S)
            ready(S)
        stamp(S, 7)
        S("s_barrier")
        p0 = S.pos
        if red:
            S("%s, v%d, s[8:11], s56 offen sc1" % (op, T1)); S("s_mov_b64 exec, -1")
            S("s_waitcnt vmcnt(2)")
        stamp_acc(S)
        if red: ready(S)
        if w == 0:
            S("ds_read_b64 %s, v%d offset:%d" % (r2(X0), L16, L_FL))
            S("v_min_u32 v%d, v%d, v%d" % (X0, X0, X0 + 1)); S("v_readfirstlane_b32 s28, v%d" % X0); S("s_nop 0"); S("s_max_u32 s54, s54, s28")
            kv_wait(S, tag + "kw", 2)
            touch_addr(S, 1)
        if red: clear_prep(S)
        kv_addr(S, "s26", 1)
        fr = FL_[w]
        f1 = None
        if fr:
            S.nop(LD - (S.pos - p0))
            f1 = dma(S, fr, "s48", L_ML)
        elif NA > 2 - w:
            S.nop(LD + PG * (2 - w) - (S.pos - p0))
            dma(S, range(5), "s48", L_ML)
        S("s_add_u32 s44, s44, 1"); S("s_mov_b32 s70, 0")
        S.wait(lds=S.nl, vm=f1)
        S("s_branch %s" % L("top"))

    def stamp_acc(S):
        if not ST: return
        S("s_waitcnt lgkmcnt(0)")
        if P.get("RAW") and w == P["RAW"] - 1:
            for i in range(9): S("v_writelane_b32 v%d, s%d, %d" % (T0, 72 + 2 * i, i))
            S("v_writelane_b32 v%d, s98, 9" % T0); S("v_writelane_b32 v%d, s99, 10" % T0)
            S("s_lshl_b32 s27, s20, 5"); S("s_add_u32 s27, s27, s22"); S("s_lshl_b32 s27, s27, 7"); S("s_add_u32 s27, s27, s44"); S("s_lshl_b32 s27, s27, 8"); S("s_add_u32 s27, s27, %d" % (WS_DBG + (5 << 20)))
            S("s_mov_b64 exec, 0x7ff"); S("buffer_store_dword v%d, v%d, s[8:11], s27 offen" % (T0, L16)); S("s_mov_b64 exec, -1")
        if TR:
            for i in range(8): S("s_sub_u32 s27, s%d, s%d" % (74 + 2 * i, 72 + 2 * i)); S("s_add_u32 s%d, s%d, s27" % (90 + i, 90 + i))
        else:
            for i in range(7): S("s_sub_u32 s27, s%d, s%d" % (74 + 2 * i, 72 + 2 * i)); S("s_add_u32 s%d, s%d, s27" % (90 + i, 90 + i))
            S("s_sub_u32 s27, s72, s88"); S("s_add_u32 s97, s97, s27"); S("s_mov_b32 s88, s86")

    A.label(L("layer"))
    S = Seq(A)
    S("s_lshr_b32 s27, s44, 6"); S("s_mul_i32 s50, s27, %d" % KV_LAYER); S("s_lshl_b32 s27, s22, 13"); S("s_add_u32 s50, s50, s27"); S("s_add_u32 s50, s50, %d" % WS_KXF)
    if w == 0: kv_wait(S, "p1", 1)
    S("s_barrier")
    kv_addr(S, "s26", 0)
    S("s_mul_i32 s27, s20, 5120"); S("s_add_u32 s48, s27, %d" % WS_M0); S("s_sub_u32 s49, %d, s27" % (WS_M0 + 5120))
    dma(S, FL_[w], "s48", L_ML)
    if w == 0: touch_addr(S, 0)
    ready(S); S("s_mov_b32 s70, 0"); S.wait(lds=S.nl, vm=S.nv)
    if ST:
        for i in range(10): S("s_mov_b32 s%d, 0" % (90 + i))
        S("%s s[72:73]" % ("s_memrealtime" if P.get("RAW") else "s_memtime")); S("s_waitcnt lgkmcnt(0)")
        for i in range(1, 9): S("s_mov_b32 s%d, s72" % (72 + 2 * i))
    ht(2)

    A.label(L("top"))
    S = newseq(); top0 = len(A.lines)
    if TR: S.hook = hook
    stamp(S, 0)
    S("s_barrier")
    stamp(S, 1)
    for t in range(5): rd(S, M[t], MRA, L_ML + 1024 * t)
    R0 = P.get("R0", 0)
    if not R0: rtok = dma(S, FR_[w], "s49", L_MR)
    S.label(L("lr_r"))
    fl = []
    fv = []

    def step(i):
        m, tl, rem, t = SEQ[i]
        if i in LDSI:
            n = LDSI.index(i); smf(S, ACC[m] + 4 * tl, M[t], LB[n % 2])
            if n + 2 < NLW: fl[0:0] = lw_read(S, n + 2)
        else: smf(S, ACC[m] + 4 * tl, M[t], WREG[i])

    def fill(nl, nv):
        for _ in range(nl):
            if fl: fl.pop(0)()
        for _ in range(nv):
            if fv: fv.pop(0)()

    def steps(lo, hi, nl=1, nv=1):
        for i in range(lo, hi):
            step(i); fill(nl, nv)

    def I(t): return lambda: S(t)
    def R(dst, areg, off): return lambda: rd(S, dst, areg, off)
    def reread(lab, fr, sa, lds, quads, peek, cnt, redo):
        def blk():
            A.label(L(lab))
            A("s_mov_b32 s30, 0")
            A.label(L(lab + "_l"))
            E = Seq(A); E("s_waitcnt lgkmcnt(0)")
            if ST: E("s_add_u32 s98, s98, %d" % cnt)
            if fr:
                E("s_and_b32 s27, s30, 1"); E("s_cbranch_scc%d %s" % (0 if redo else 1, L(lab + "_n"))); E("s_waitcnt vmcnt(%d)" % len(fr)); dma(E, fr, sa, lds)
                A.label(L(lab + "_n"))
            for t in quads: rd(E, M[t], MRA, lds + 1024 * t)
            if peek: E("ds_read_b32 v%d, v%d offset:%d" % (T1, MRA, lds + 4096))
            E("v_max3_u32 v%d, v%d, v%d, v%d" % (T0, M[0], M[1], M[2])); E("v_max3_u32 v%d, v%d, v%d, v%d" % (T0, T0, M[3], T1 if peek else M[4]))
            E("v_cmp_eq_u32 vcc, -1, v%d" % T0); E("s_cbranch_vccz %s" % L(lab + "_d"))
            spin_count(E, 8 * SPIN_MAX); E("s_branch %s" % L(lab + "_l"))
            A.label(L(lab + "_d"))
            if redo:
                ready(E); E("s_waitcnt lgkmcnt(0)")
                if fr: E("s_waitcnt vmcnt(0)") if False else None
            E("s_branch %s" % L(lab + "_r"))
        ool.append(blk)
    HP = P.get("HP", 4)
    steps(0, HP)
    fv += [I("v_max3_u32 v%d, v%d, v%d, v%d" % (T0, M[0], M[1], M[2])), I("v_max3_u32 v%d, v%d, v%d, v%d" % (T0, T0, M[3], M[4])), I("v_cmp_eq_u32 vcc, -1, v%d" % T0), I(br("s_cbranch_vccnz %s" % L("lr")))]
    reread("lr", FL_[w], "s48", L_ML, range(5), False, 0x10000, True)
    fv += [I("s_and_b32 s55, s44, 3\ns_mul_i32 s55, s55, %d" % PART_SLOT), I("s_add_u32 s55, s55, s34\ns_add_u32 s56, s55, s35"), I("s_and_b32 s57, s44, 63")]
    if w < 2: fv += [I("s_add_u32 s43, s55, s32")]
    if w == 0: fv += [I("s_add_u32 s61, s43, %d\ns_add_u32 s100, s43, %d" % (8 * PART_H, 16 * PART_H)), I("s_add_u32 s101, s43, %d" % (24 * PART_H))]
    if w == 1: fv += [I("s_sub_u32 s27, s57, 1\ns_max_i32 s27, s27, 0"), I("s_lshl_b64 s[28:29], 1, s27\ns_lshl_b32 s27, s27, 7\ns_sub_u32 s31, s52, s27")]
    NLA = NLOC - 4
    if R0:
        steps(HP, R0); rtok = dma(S, FR_[w], "s49", L_MR); steps(R0, NLA)
    else: steps(HP, NLA)
    drain(fl); drain(fv)
    def slow_ops():
        if w >= 2: pub_store(S)
        if w == 0:
            S("s_mov_b32 m0, %d" % L_FL)
            S("s_mov_b64 exec, 3"); S("buffer_load_dword v%d, s[8:11], s51 offen sc1 lds" % PA8); S("s_mov_b64 exec, -1")
            S("s_mov_b32 m0, %d" % L_JUNK)
            S("buffer_load_dword v%d, s[8:11], s2 offen sc1 lds" % PA8); S("buffer_load_dword v%d, s[8:11], s3 offen sc1 lds" % PA8)
        if w == 1:
            S("s_mov_b64 exec, s[28:29]"); S("buffer_store_dword v%d, v%d, s[8:11], s31 offen sc1" % (PA8, PA8))
            m_clear(S)
    kv_fetch(S)
    if w < 2: clears(S)
    ftok = S.nv
    stamp(S, 2)
    S.wait(vm=rtok); S("s_barrier")
    stamp(S, 3)
    for t in range(4): rd(S, M[t], MRA, L_MR + 1024 * t)
    S("ds_read_b32 v%d, v%d offset:%d" % (T1, MRA, L_MR + 4096))
    steps(NLA, NLOC - 1)
    S("v_max3_u32 v%d, v%d, v%d, v%d" % (T0, M[0], M[1], M[2]))
    step(NLOC - 1)
    S("v_max3_u32 v%d, v%d, v%d, v%d" % (T0, T0, M[3], T1)); S("v_cmp_eq_u32 vcc, -1, v%d" % T0); S(br("s_cbranch_vccnz %s" % L("rr")))
    S.label(L("rr_r"))
    reread("rr", FR_[w], "s49", L_MR, range(4), True, 1, False)
    rd(S, M[4], MRA, L_MR + 4096)
    SP = P.get("SP", 4)
    steps(NLOC, NLOC + SP); slow_ops(); steps(NLOC + SP, NLOC + 11)
    B0 = NLOC - 20
    pv, pw = post(S, AQ, L_EQ, True); fv += pv
    steps(B0 + 31, B0 + 35); steps(B0 + 35, B0 + 40, 1, 2); drain(fv)
    step(B0 + 40); drain(pw)
    pv, pw = post(S, AK, L_EK); fv += pv
    QO = [AQ, AQ + 4, X0, X1]; KA = [LB[0], LB[0] + 4, LB[1], LB[1] + 4]; KB = M[0:4]; SXa, SXb = AK, AK + 4
    for i in range(41, 50):
        step(B0 + i)
        if i % 2 == 1 and (i - 41) // 2 >= NV: fl.append(R(M[(i - 41) // 2], MRA, L_ML + 1024 * ((i - 41) // 2)))
        if i == 48: drain(pw); kwt = S.nl
        else: fill(1, 1 if i < 45 else 2)
    assert not fv
    steps(B0 + 50, B0 + 51)
    step(B0 + 51); S.wait(lds=kwt, vm=ftok); S("s_barrier")
    stamp(S, 4)
    for u in range(4): fl += [R(KA[u], L16, L_K + 1024 * u), R(QO[u], ERQ, L_EQ + 64 * u)]
    fl += [R(KB[u], L16, L_K + 4096 + 1024 * u) for u in range(4)]
    fill(1 + NV, 0)
    steps(B0 + 52, 60, 1 + (NV > 0), 1)
    KM = KA; SM = M[4]; PA, PB = SXa, SXb
    def ex(r): S("s_mov_b64 exec, s[36:37]"); S("v_exp_f32 v%d, v%d" % (r, r)); S("s_mov_b64 exec, -1")
    def ex2(r): S("s_mov_b64 exec, s[36:37]"); S("v_exp_f32 v%d, v%d" % (r, r)); S("v_exp_f32 v%d, v%d" % (r + 1, r + 1)); S("s_mov_b64 exec, -1")
    mf32(S, SXa, KA[0], QO[0], "0"); fill(1, 0)
    mf32(S, SXa, KA[1], QO[1], SXa); fill(1, 0); S(cvt(AV, AV, AV + 1)); S(cvt(AV + 1, AV + 2, AV + 3))
    mf32(S, SXa, KA[2], QO[2], SXa); drain(fl); S(cvt(AV + 2, AV + 4, AV + 5)); S(cvt(AV + 3, AV + 6, AV + 7))
    mf32(S, SXa, KA[3], QO[3], SXa); vwt = S("ds_write_b128 v%d, %s offset:%d" % (L16, r4(AV), L_EV + 1024 * w))
    mf32(S, SXb, KB[0], QO[0], "0"); rd(S, KM[0], ER, L_EK); rd(S, KM[1], ER, L_EK + 64)
    mf32(S, SXb, KB[1], QO[1], SXb); rd(S, KM[2], ER, L_EK + 128); rd(S, KM[3], ER, L_EK + 192)
    mf32(S, SXb, KB[2], QO[2], SXb); ex2(SXa)
    VTa = M[0:4]; VTb = KM; VX = M[0:4]; OA = QO; Z = AV; ONE = AV + 4; HALF = T0
    mf32(S, SXb, KB[3], QO[3], SXb); ex2(SXa + 2)
    S.wait(lds=vwt); S("s_barrier")
    stamp(S, 5)
    mf32(S, SM, KM[0], QO[0], "0"); rd(S, VTa[0], L16, L_VT); S(cvt(PA, SXa, SXa + 1)); S(cvt(PA + 1, SXa + 2, SXa + 3))
    mf32(S, SM, KM[1], QO[1], SM); rd(S, VTa[1], L16, L_VT + 2048); ex2(SXb)
    mf32(S, SM, KM[2], QO[2], SM); rd(S, VTa[2], L16, L_VT + 4096); ex2(SXb + 2)
    mf32(S, SM, KM[3], QO[3], SM); rd(S, VTa[3], L16, L_VT + 6144); S(cvt(PA + 2, SXb, SXb + 1)); S(cvt(PA + 3, SXb + 2, SXb + 3))
    S("s_cmp_eq_u32 s57, 63"); S("s_cbranch_scc1 %s" % L("last"))
    MA, MB = SM, SM + 2
    mf32(S, OA[0], VTa[0], PA, "0"); rd(S, VTb[0], L16, L_VT + 1024); S(ror(PB, PA)); S(ror(PB + 1, PA + 1))
    mf32(S, OA[1], VTa[1], PA, "0"); rd(S, VTb[1], L16, L_VT + 3072); S(ror(PB + 2, PA + 2)); S(ror(PB + 3, PA + 3))
    mf32(S, OA[2], VTa[2], PA, "0"); rd(S, VTb[2], L16, L_VT + 5120); S("v_mov_b64 %s, s[24:25]" % r2(ONE)); S("v_mov_b64 %s, s[24:25]" % r2(ONE + 2))
    mf32(S, OA[3], VTa[3], PA, "0"); rd(S, VTb[3], L16, L_VT + 7168); ex(SM)
    mf32(S, Z, ONE, PA, "0"); rd(S, VX[0], L16, L_EV); ex(SM + 1)
    mf32(S, OA[0], VTb[0], PB, OA[0]); rd(S, VX[1], L16, L_EV + 1024); ex(SM + 2)
    mf32(S, OA[1], VTb[1], PB, OA[1]); rd(S, VX[2], L16, L_EV + 2048); ex(SM + 3)
    mf32(S, OA[2], VTb[2], PB, OA[2]); rd(S, VX[3], L16, L_EV + 3072); S(cvt(MA, SM, SM + 1)); S(cvt(MA + 1, SM + 2, SM + 3))
    mf32(S, OA[3], VTb[3], PB, OA[3]); S("v_mov_b64 %s, s[16:17]" % r2(HALF)); S(ror(MB, MA))
    OUT = [KM[0], KM[1], KM[2], KM[3], PA]
    S.label(L("fin"))
    for q in OUT: fv += zitems(S, q)
    mf16(S, OA[0], VX[0], MA, OA[0]); S(ror(MB + 1, MA + 1)); fill(0, 1)
    mf16(S, Z, HALF, MA, Z); fill(0, 2)
    mf16(S, OA[1], VX[1], MA, OA[1]); fill(0, 2)
    mf16(S, OA[0], VX[0] + 2, MB, OA[0]); fill(0, 2)
    mf16(S, OA[1], VX[1] + 2, MB, OA[1]); S("v_add_f32_dpp v%d, v%d, v%d row_ror:8 row_mask:0xf bank_mask:0xf" % (Z, Z, Z)); fill(0, 1)
    RZ = Z + 2
    mf16(S, OA[2], VX[2], MA, OA[2]); S("v_rcp_f32 v%d, v%d" % (RZ, Z))
    mf16(S, OA[3], VX[3], MA, OA[3]); S("v_subrev_u32 v%d, s68, v%d" % (Z + 1, Z)); S("v_cmp_lt_u32 vcc, s69, v%d" % (Z + 1))
    def mul(r): return I("v_mul_f32 v%d, v%d, v%d" % (r, r, RZ))
    O0, O1 = OA[0], OA[2]
    assert OA[1] == O0 + 4 and OA[3] == O1 + 4
    mf16(S, OA[2], VX[2] + 2, MB, OA[2]); S(br("s_cbranch_vccnz %s" % L("zbad")))
    S.label(L("zok"))
    fv += [mul(O0 + i) for i in range(8)] + [I(cvt(O0 + q, O0 + 2 * q, O0 + 2 * q + 1)) for q in range(4)]
    fill(0, 2)
    mf16(S, OA[3], VX[3] + 2, MB, OA[3]); drain(fv)
    fv += [mul(O1 + i) for i in range(8)] + [I(cvt(O1 + q, O1 + 2 * q, O1 + 2 * q + 1)) for q in range(4)]
    fill(0, 2)
    for T in range(5):
        smf(S, OUT[T], O0, WO[T, 0]); fill(0, 3 if T < 3 else 1)
    assert not fv
    def opost(T):
        b = OUT[T]
        return [I("v_permlane32_swap_b32 v%d, v%d" % (b, b + 1)), I("v_permlane32_swap_b32 v%d, v%d" % (b + 2, b + 3)),
                I("v_add_f32 v%d, v%d, v%d" % (b, b, b + 1)), I("v_add_f32 v%d, v%d, v%d" % (b + 2, b + 2, b + 3))]
    for T in range(5):
        smf(S, OUT[T], O1, WO[T, 1])
        if T == 0 and w == 1: S.wait(vm=S.nv)
        if T == 2: fv += opost(0) + opost(1)
        if T >= 2: fill(0, 1)
    SD = M[0]
    fv += [I(cvt(SD, OUT[0], OUT[1])), I(cvt(SD + 2, OUT[0] + 2, OUT[1] + 2))] + opost(2) + opost(3) + [I(cvt(SD + 1, OUT[2], OUT[3])), I(cvt(SD + 3, OUT[2] + 2, OUT[3] + 2))]
    drain(fv)
    if P.get("SO", 1): S("buffer_store_dwordx4 %s, v%d, s[8:11], s56 offen%s" % (r4(SD), L16, sc))
    drain(opost(4)); S(cvt(OUT[4], OUT[4], OUT[4] + 2))
    if not P.get("SO", 1): S("buffer_store_dwordx4 %s, v%d, s[8:11], s56 offen%s" % (r4(SD), L16, sc))
    S("buffer_store_dword v%d, v%d, s[8:11], s55 offen%s" % (OUT[4], PSB, sc))
    stamp(S, 6)
    if w == 0 and md == 0: print("chain on-path estimate %d, nops %d" % (estimate(A.lines[top0:], P.get("EST")), S.nops))
    def fork(S):
        S2 = copy.copy(S)
        for k_ in ("vw", "tw", "mw", "mc", "sd", "sw", "lp", "vp"): setattr(S2, k_, dict(getattr(S, k_)))
        return S2
    pw0 = S.pos
    window(S)

    A.label(L("restart"))
    E = Seq(A)
    E("s_waitcnt vmcnt(0) lgkmcnt(0)"); E.nop(8); E("s_barrier")
    dma(E, FL_[w], "s48", L_ML); ready(E); E("s_waitcnt vmcnt(0) lgkmcnt(0)"); E("s_branch %s" % L("top"))
    A.label(L("zbad"))
    E = Seq(A)
    E("s_cmp_eq_u32 s70, 2"); E("s_cbranch_scc1 %s" % L("zok"))
    E("v_cmp_u_f32 vcc, v%d, v%d" % (Z, Z)); E("s_cbranch_vccz %s" % L("exact"))
    E("s_cmp_eq_u32 s70, 1"); E("s_cbranch_scc1 %s" % L("exact"))
    A.label(L("vfy0"))
    E("s_mov_b32 s70, 1"); E("s_mov_b32 s30, 0"); E("s_waitcnt vmcnt(0) lgkmcnt(0)"); E.nop(8)
    A.label(L("vfy"))
    E("v_mov_b32 v%d, 0" % T0)
    for sa in ("s48", "s49"):
        E("s_add_u32 s59, %s, 4096" % sa)
        for t in range(5): E("buffer_load_dwordx4 %s, v%d, s[8:11], %s offen offset:%d sc1" % (r4(M[t]), L16, "s59" if t == 4 else sa, 1024 * (t % 4)))
        for r in range(M[0], M[0] + 20, 2): E("v_max3_u32 v%d, v%d, v%d, v%d" % (T0, T0, r, r + 1))
    E("v_cmp_eq_u32 vcc, -1, v%d" % T0); E("s_cbranch_vccz %s" % L("restart"))
    spin_count(E); E("s_branch %s" % L("vfy"))
    A.label(L("exact"))
    E = Seq(A); E.nop(8)
    E("s_mov_b32 s70, 2")
    KT = [KM[0], KM[1]]; S3 = [PA, PB, SM]
    for u in range(4): rd(E, QO[u], ER, L_EQ + 64 * u)
    n = 0
    for tl in range(3):
        for u in range(4):
            kq = KT[n % 2]; n += 1
            if tl < 2: rd(E, kq, L16, L_K + 4096 * tl + 1024 * u)
            else: rd(E, kq, ER, L_EK + 64 * u)
            mf32(E, S3[tl], kq, QO[u], "0" if u == 0 else S3[tl])
            E.nop(4)
    S12 = [q + i for q in S3 for i in range(4)]
    MX, TM = KM[2], KM[2] + 1
    E("v_max3_f32 v%d, v%d, v%d, v%d" % (MX, S12[0], S12[1], S12[2]))
    for i in range(3, 11, 2): E("v_max3_f32 v%d, v%d, v%d, v%d" % (MX, MX, S12[i], S12[i + 1]))
    E("v_max_f32 v%d, v%d, v%d" % (MX, MX, S12[11]))
    for op in ("v_permlane16_swap_b32", "v_permlane32_swap_b32"):
        E("v_mov_b32 v%d, v%d" % (TM, MX)); E("%s v%d, v%d" % (op, MX, TM)); E("v_max_f32 v%d, v%d, v%d" % (MX, MX, TM))
    for r in S12: E("v_sub_f32 v%d, v%d, v%d" % (r, r, MX)); E("v_exp_f32 v%d, v%d" % (r, r)); E("v_cndmask_b32_e64 v%d, 0, v%d, s[36:37]" % (r, r))
    for i in range(4): E(cvt(PA + i, S12[2 * i], S12[2 * i + 1]))
    for i in range(4): E(ror(PB + i, PA + i))
    E(cvt(MA, SM, SM + 1)); E(cvt(MA + 1, SM + 2, SM + 3)); E(ror(MB, MA))
    mf32(E, Z, ONE, PA, "0")
    for u in range(4):
        for tj in range(2):
            rd(E, KT[tj], L16, L_VT + 2048 * u + 1024 * tj); mf32(E, OA[u], KT[tj], (PA, PB)[tj], OA[u] if tj else "0"); E.nop(4)
    E.nop(8); E("s_branch %s" % L("fin"))
    A.label(L("last"))
    A("s_cmp_lg_u32 s70, 0"); A("s_cbranch_scc1 %s" % L("last2"))
    A("v_cmp_u_f32 vcc, v%d, v%d" % (SXb, SXb)); A(br("s_cbranch_vccnz %s" % L("vfy0")))
    A.label(L("last2"))
    A("s_waitcnt vmcnt(0) lgkmcnt(0)")
    if w >= 2:
        E = Seq(A); E.nop(8); pub_read(E); pub_store(E); E("s_waitcnt vmcnt(0)")
    A("s_barrier")
    if w == 1:
        A("v_mov_b32 v%d, 8192" % T1); A("s_mov_b64 exec, 1"); A("buffer_store_dword v%d, v%d, s[8:11], s52 offen sc1" % (T1, L16)); A("s_mov_b64 exec, -1"); A("s_add_u32 s52, s52, 4096")
    if w < 2:
        E = Seq(A); E.nop(8); clear_prep(E); clears(E)
        if w == 1: m_clear(E)
        A("s_waitcnt vmcnt(0)")
    A("s_add_u32 s44, s44, 1")
    ht(3)
    if ST:
        A("s_lshl_b32 s27, s20, 5"); A("s_add_u32 s27, s27, s22"); A("s_lshl_b32 s27, s27, 2"); A("s_add_u32 s27, s27, s21"); A("s_lshl_b32 s27, s27, 6"); A("s_add_u32 s27, s27, %d" % WS_DBG)
        A("s_lshl_b32 s28, s44, 8"); A("s_add_u32 s27, s27, s28"); A("s_mov_b64 exec, 1")
        for i in range(10): A("v_mov_b32 v%d, s%d" % (T1, 90 + i)); A("buffer_store_dword v%d, v%d, s[8:11], s27 offen offset:%d" % (T1, L16, 4 * i)); A("s_nop 1")
        A("s_mov_b64 exec, -1")
    A("s_cmp_eq_u32 s44, 128"); A("s_cbranch_scc1 %s" % L0("end"))
    A("s_branch %s" % L("layer"))
    for b in ool: b()
```

```python
from asmlib import *
from layout import *


def table_dma(A, inverse):
    A("s_mul_i32 s27, s21, 25600"); A("s_mul_i32 s28, s22, 102400"); A("s_add_u32 s28, s28, s27"); A("s_add_u32 s28, s28, %d" % (WS_GT2 if inverse else WS_FT1))
    for f in range(25):
        if f % 4 == 0:
            if f: A("s_add_u32 s27, s27, 4096"); A("s_add_u32 s28, s28, 4096")
            A("s_mov_b32 m0, s27"); A("s_nop 0")
        A("buffer_load_dwordx4 v1, s[8:11], s28 offen offset:%d lds" % ((f % 4) * 1024))


def dft_body(A, inverse, res_ws, out_ws, src_ws, fused=False, own_table=False, pre_ln=False):
    sc = " sc1" if fused else ""
    A("v_lshrrev_b32 v2, 6, v0"); A("v_and_b32 v0, 63, v0"); A("v_readfirstlane_b32 s21, v2")
    A("v_lshlrev_b32 v1, 4, v0"); A("v_lshrrev_b32 v3, 4, v0"); A("v_and_b32 v4, 15, v0")
    A("s_and_b32 s22, s2, 7")
    A("s_lshr_b32 s23, s2, 3")
    A("s_lshl_b32 s24, s23, 2"); A("s_add_u32 s24, s24, s21")
    if not fused:
        A("s_waitcnt lgkmcnt(0)")
        fin_srd(A, 8, SZ_WS)
        if inverse and out_ws is None: fin_srd(A, 12, SZ_X)
    if not inverse and not pre_ln:
        A("v_mul_u32_u24 v7, 1280, v4"); A("v_lshl_add_u32 v7, v3, 4, v7")
        A("s_mul_i32 s29, s24, %d" % (16 * 1280)); A("s_add_u32 s29, s29, %s" % src_ws)
        for f in range(20):
            A("buffer_load_dwordx4 v[%d:%d], v7, s[8:11], s29 offen offset:%d%s" % (16 + 4 * f, 19 + 4 * f, 64 * f, sc))
    tb = (not fused) or own_table
    if tb: table_dma(A, inverse)
    if inverse or pre_ln:
        A("s_mul_i32 s29, s24, 20480"); A("s_add_u32 s29, s29, %d" % (WS_ZF if inverse else WS_XNH))
        for f in range(20):
            A("buffer_load_dwordx4 v[%d:%d], v1, s[8:11], s29 offen offset:%d%s" % (16 + 4 * f, 19 + 4 * f, (f % 4) * 1024, sc))
            if f % 4 == 3: A("s_add_u32 s29, s29, 4096")
    if inverse:
        A("v_mul_u32_u24 v5, 1280, v4"); A("v_lshl_add_u32 v5, v3, 3, v5")
        A("s_mul_i32 s30, s24, %d" % (16 * 1280)); A("s_mul_i32 s31, s22, 160"); A("s_add_u32 s30, s30, s31")
        A("s_add_u32 s31, s30, %s" % res_ws)
        for T in range(5):
            A("buffer_load_dwordx2 v[%d:%d], v5, s[8:11], s31 offen offset:%d%s" % (116 + 2 * T, 117 + 2 * T, 32 * T, sc))
        A("s_waitcnt vmcnt(25)")
    else:
        A("v_lshlrev_b32 v5, 13, v4"); A("v_lshl_add_u32 v5, v3, 4, v5")
        A("s_mul_i32 s30, s22, %d" % (80 * 8192)); A("s_lshl_b32 s31, s24, 6"); A("s_add_u32 s30, s30, s31"); A("s_add_u32 s30, s30, %d" % WS_XD)
        if not pre_ln:
            def xl(reg, tmp):
                for op in ("v_permlane16_swap_b32", "v_permlane32_swap_b32"):
                    A("v_mov_b32 v%d, v%d" % (tmp, reg)); A("s_nop 1"); A("%s v%d, v%d" % (op, reg, tmp)); A("v_add_f32 v%d, v%d, v%d" % (reg, reg, tmp))
            for a_ in range(2): A("v_mov_b32 v%d, 0" % (128 + a_))
            A("s_mov_b32 s32, 0x3f803f80")
            for f in range(20):
                A("s_waitcnt vmcnt(%d)" % ((25 if tb else 0) + 19 - f))
                for q in range(4):
                    A("v_dot2_f32_bf16 v%d, v%d, s32, v%d" % (128 + (q & 1), 16 + 4 * f + q, 128 + (q & 1)))
            A("s_nop 3"); A("v_add_f32 v128, v128, v129")
            xl(128, 129)
            A("v_mul_f32 v128, 0x3acccccd, v128"); A("v_mov_b32 v129, v128")
            for a_ in range(4): A("v_mov_b32 v%d, 0" % (132 + a_))
            for r in range(16, 96):
                A("v_lshlrev_b32 v8, 16, v%d" % r); A("v_and_b32 v9, 0xffff0000, v%d" % r)
                A("v_pk_add_f32 v[8:9], v[8:9], v[128:129] neg_lo:[0,1] neg_hi:[0,1]")
                a_ = 132 + 2 * (r & 1)
                A("v_pk_fma_f32 v[%d:%d], v[8:9], v[8:9], v[%d:%d]" % (a_, a_ + 1, a_, a_ + 1))
            A("v_pk_add_f32 v[132:133], v[132:133], v[134:135]"); A("v_add_f32 v132, v132, v133")
            xl(132, 133)
            A("v_mov_b32 v134, 0x3727c5ac"); A("v_fmac_f32 v134, 0x3acccccd, v132"); A("v_rsq_f32 v134, v134"); A("s_nop 0")
            A("v_mov_b32 v135, v134"); A("v_mul_f32 v136, v128, v134"); A("v_mov_b32 v137, v136")
            for r in range(16, 96):
                A("v_lshlrev_b32 v8, 16, v%d" % r); A("v_and_b32 v9, 0xffff0000, v%d" % r)
                A("v_pk_fma_f32 v[8:9], v[8:9], v[134:135], v[136:137] neg_lo:[0,0,1] neg_hi:[0,0,1]")
                A("v_cvt_pk_f16_f32 v%d, v8, v9" % r)
            A("s_waitcnt vmcnt(0)")
    A("s_barrier")
    A("v_add_u32 v6, 61440, v1")
    seq = [(ks, T) for ks in range(20) for T in range(5)]
    NB = 8
    bufs = [128 + 4 * i for i in range(NB)]
    def rd(i):
        if i >= len(seq): return
        ks, T = seq[i]
        off = (T * 20 + ks) * 1024
        b = bufs[i % NB]
        if off < 61440: A("ds_read_b128 v[%d:%d], v1 offset:%d" % (b, b + 3, off))
        else: A("ds_read_b128 v[%d:%d], v6 offset:%d" % (b, b + 3, off - 61440))
    op = "v_mfma_f32_16x16x32_bf16" if inverse else "v_mfma_f32_16x16x32_f16"
    for i in range(NB - 1): rd(i)
    for i, (ks, T) in enumerate(seq):
        rd(i + NB - 1)
        lg = min(NB - 1, len(seq) - 1 - i)
        if T == 0 and (inverse or pre_ln): A("s_waitcnt vmcnt(%d) lgkmcnt(%d)" % (19 - ks + (5 if inverse else 0), lg))
        else: A("s_waitcnt lgkmcnt(%d)" % lg)
        acc = 96 + 4 * T; b = bufs[i % NB]; x = 16 + 4 * ks
        c = "0" if ks == 0 else "v[%d:%d]" % (acc, acc + 3)
        if inverse: A("%s v[%d:%d], v[%d:%d], v[%d:%d], %s" % (op, acc, acc + 3, b, b + 3, x, x + 3, c))
        else: A("%s v[%d:%d], v[%d:%d], v[%d:%d], %s" % (op, acc, acc + 3, x, x + 3, b, b + 3, c))
    A("s_waitcnt vmcnt(0)")
    A.nop(8)
    if inverse:
        for T in range(5):
            acc = 96 + 4 * T; r = 116 + 2 * T
            for q in range(2):
                A("v_lshlrev_b32 v8, 16, v%d" % (r + q)); A("v_and_b32 v9, 0xffff0000, v%d" % (r + q))
                A("v_add_f32 v8, v8, v%d" % (acc + 2 * q)); A("v_add_f32 v9, v9, v%d" % (acc + 2 * q + 1))
                A("v_cvt_pk_bf16_f32 v%d, v8, v9" % (r + q))
        if fused: srd = 16
        elif out_ws is None: srd = 12
        else:
            srd = 8; A("s_add_u32 s30, s30, %d" % out_ws)
        for T in range(5):
            A("buffer_store_dwordx2 v[%d:%d], v5, s[%d:%d], s30 offen offset:%d%s" % (116 + 2 * T, 117 + 2 * T, srd, srd + 3, 32 * T, sc))
    else:
        for T in range(5):
            A("buffer_store_dwordx4 v[%d:%d], v5, s[8:11], s30 offen%s" % (96 + 4 * T, 99 + 4 * T, sc))
            A("s_add_u32 s30, s30, %d" % (16 * 8192))


def dft_kernel(name, inverse, res_ws=None, out_ws=None, src_ws=None):
    k = Kernel(name, 256, 256, 102400, 168)
    A = k.asm
    L = name
    A("s_cmp_ge_u32 s2, 256"); A("s_cbranch_scc1 %s_end" % L)
    load_srd(A, 8, KA_WS, SZ_WS)
    if inverse and out_ws is None: load_srd(A, 12, KA_OUT, SZ_X)
    dft_body(A, inverse, res_ws, out_ws, src_ws)
    A.label("%s_end" % L)
    A("s_endpgm")
    return k
```

```python
import struct
from asmlib import *
from layout import *


def f2u(x):
    return struct.unpack('<I', struct.pack('<f', x))[0]


class Pool:
    def __init__(self, base, n):
        self.free = [base + 2 * i for i in range(n)]
    def get(self):
        return self.free.pop(0)
    def put(self, *rs):
        for r in rs:
            assert r not in self.free
            self.free.append(r)


def pr(r):
    return "v[%d:%d]" % (r, r + 1)


def fft_kernel(name):
    k = Kernel(name, 321, 256, 18432, 112)
    A = k.asm
    A("s_cmp_ge_u32 s2, 321"); A("s_cbranch_scc1 %s_end" % name)
    load_srd(A, 8, KA_WS, SZ_WS)
    fft_body(A, name)
    A("s_endpgm")
    return k


def fft_body(A, L, fused=False, lds_base=0, stride=256):
    sc = " sc1" if fused else ""
    pool = Pool(8, 20)
    TW1, TW2, TW3 = 48, 62, 76
    WV = 92
    SC = "s[26:27]"

    def cadd(a, b):
        d = pool.get(); A("v_pk_add_f32 %s, %s, %s" % (pr(d), pr(a), pr(b))); return d
    def csub(a, b):
        d = pool.get(); A("v_pk_add_f32 %s, %s, %s neg_lo:[0,1] neg_hi:[0,1]" % (pr(d), pr(a), pr(b))); return d
    def cadd_rot(a, b, rot, nega=False):
        d = pool.get()
        na = 1 if nega else 0
        if rot > 0: mods = "neg_lo:[%d,1] neg_hi:[%d,0]" % (na, na)
        else: mods = "neg_lo:[%d,0] neg_hi:[%d,1]" % (na, na)
        A("v_pk_add_f32 %s, %s, %s op_sel:[0,1] op_sel_hi:[1,0] %s" % (pr(d), pr(a), pr(b), mods)); return d
    def cfma(x, sign, a):
        d = pool.get()
        n = 1 if sign < 0 else 0
        A("v_pk_fma_f32 %s, %s, %s, %s neg_lo:[%d,0,0] neg_hi:[%d,0,0]" % (pr(d), pr(x), SC, pr(a), n, n)); return d
    def cfma_rot(x, rot, a):
        d = pool.get()
        if rot > 0: mods = "neg_lo:[1,0,0] neg_hi:[0,0,0]"
        else: mods = "neg_lo:[0,0,0] neg_hi:[1,0,0]"
        A("v_pk_fma_f32 %s, %s, %s, %s op_sel:[1,0,0] op_sel_hi:[0,1,1] %s" % (pr(d), pr(x), SC, pr(a), mods)); return d
    def cmul(x, w, conj):
        t = pool.get()
        A("v_pk_mul_f32 %s, %s, %s op_sel:[0,0] op_sel_hi:[1,0]" % (pr(t), pr(x), pr(w)))
        mods = "neg_lo:[0,0,0] neg_hi:[1,0,0]" if conj else "neg_lo:[1,0,0] neg_hi:[0,0,0]"
        A("v_pk_fma_f32 %s, %s, %s, %s op_sel:[1,1,0] op_sel_hi:[0,1,1] %s" % (pr(t), pr(x), pr(w), pr(t), mods))
        pool.put(x); return t
    def radix4(p, sgn):
        s0 = cadd(p[0], p[2]); s1 = csub(p[0], p[2]); s2 = cadd(p[1], p[3]); t = csub(p[1], p[3])
        pool.put(*p)
        r0 = cadd(s0, s2); r2 = csub(s0, s2); r1 = cadd_rot(s1, t, sgn); r3 = cadd_rot(s1, t, -sgn)
        pool.put(s0, s1, s2, t)
        return [r0, r1, r2, r3]
    def radix8(a, sgn):
        u = []; vv = []
        for j in range(4):
            u.append(cadd(a[j], a[j + 4])); vv.append(csub(a[j], a[j + 4])); pool.put(a[j], a[j + 4])
        ev = radix4(u, sgn)
        x1 = cadd_rot(vv[1], vv[1], sgn)
        x3 = cadd_rot(vv[3], vv[3], sgn, nega=True)
        s0 = cadd_rot(vv[0], vv[2], sgn); s1 = cadd_rot(vv[0], vv[2], -sgn)
        pool.put(*vv)
        s2 = cadd(x1, x3); t = csub(x1, x3); pool.put(x1, x3)
        r0 = cfma(s2, 1, s0); r2 = cfma(s2, -1, s0); r1 = cfma_rot(t, sgn, s1); r3 = cfma_rot(t, -sgn, s1)
        pool.put(s0, s1, s2, t)
        od = [r0, r1, r2, r3]
        return [ev[0], od[0], ev[1], od[1], ev[2], od[2], ev[3], od[3]]
    def twid(x, TW, conj):
        return [x[0]] + [cmul(x[q], TW + 2 * (q - 1), conj) for q in range(1, 8)]
    def lds_write(x, addr, offs):
        for r, o in zip(x, offs): A("ds_write_b64 v%d, %s offset:%d" % (addr, pr(r), o))
        pool.put(*x)
    def lds_read(addr, offs):
        x = [pool.get() for _ in offs]
        for r, o in zip(x, offs): A("ds_read_b64 %s, v%d offset:%d" % (pr(r), addr, o))
        return x

    def setup():
        A("s_mov_b32 s26, 0x%08x" % f2u(0.7071067811865476)); A("s_mov_b32 s27, s26")
        for TW, maskbits, N in ((TW1, 255, 2048), (TW2, 31, 256), (TW3, 3, 32)):
            A("v_and_b32 v3, %d, v0" % maskbits); A("v_cvt_f32_u32 v3, v3")
            for q in range(1, 8):
                A("v_mul_f32 v4, 0x%08x, v3" % f2u(-q / N))
                A("v_cos_f32 v%d, v4" % (TW + 2 * (q - 1))); A("v_sin_f32 v%d, v4" % (TW + 2 * (q - 1) + 1))
        A("v_lshlrev_b32 v3, 3, v0")
        A("v_lshrrev_b32 v4, 5, v0"); A("v_mul_u32_u24 v4, 2304, v4")
        if lds_base: A("v_add_u32 v3, %d, v3" % lds_base); A("v_add_u32 v4, %d, v4" % lds_base)
        A("v_and_b32 v5, 31, v0"); A("v_lshl_add_u32 v5, v5, 3, v4")
        A("v_bfe_u32 v6, v0, 2, 3"); A("v_mul_u32_u24 v6, 288, v6"); A("v_add_u32 v6, v6, v4")
        A("v_and_b32 v7, 3, v0"); A("v_lshl_add_u32 v100, v7, 6, v6")
        A("v_lshl_add_u32 v6, v7, 3, v6")
        A("v_lshrrev_b32 v101, 4, v0"); A("v_mul_u32_u24 v101, 20480, v101"); A("v_and_b32 v2, 15, v0"); A("v_lshl_add_u32 v101, v2, 4, v101")
    def load_w(col, wv):
        A("v_lshlrev_b32 v2, 5, v0"); A("s_lshl_b32 s24, %s, 13" % col); A("s_add_u32 s24, s24, %d" % WS_WT)
        A("buffer_load_dwordx4 v[%d:%d], v2, s[8:11], s24 offen" % (wv, wv + 3))
        A("buffer_load_dwordx4 v[%d:%d], v2, s[8:11], s24 offen offset:16" % (wv + 4, wv + 7))
    def load_x(col, x):
        A("v_lshlrev_b32 v1, 2, v0")
        A("s_lshl_b32 s20, %s, 13" % col); A("s_add_u32 s20, s20, %d" % WS_XD)
        A("s_add_u32 s21, s20, %d" % (320 * 8192))
        A("s_cmp_eq_u32 %s, 0" % col); A("s_cselect_b32 s21, 0x10000000, s21")
        A("s_cmp_ge_u32 %s, 320" % col); A("s_cselect_b32 s21, 0x10000000, s21")
        A("s_cmp_ge_u32 %s, 321" % col); A("s_cselect_b32 s20, 0x10000000, s20")
        A("s_add_u32 s22, s20, 4096"); A("s_add_u32 s23, s21, 4096")
        for j in range(8):
            A("buffer_load_dword v%d, v1, s[8:11], %s offen offset:%d%s" % (x[j], "s22" if j >= 4 else "s20", (j % 4) * 1024, sc))
            A("buffer_load_dword v%d, v1, s[8:11], %s offen offset:%d%s" % (x[j] + 1, "s23" if j >= 4 else "s21", (j % 4) * 1024, sc))
    def process(col, x, wv, tag, wwait):
        b = twid(radix8(x, -1), TW1, False)
        lds_write(b, 3, [q * 2304 for q in range(8)])
        A("s_waitcnt lgkmcnt(0)"); A("s_barrier")
        x = lds_read(5, [j * 256 for j in range(8)]); A("s_waitcnt lgkmcnt(0)")
        b = twid(radix8(x, -1), TW2, False)
        lds_write(b, 5, [q * 288 for q in range(8)])
        x = lds_read(6, [j * 32 for j in range(8)]); A("s_waitcnt lgkmcnt(0)")
        b = twid(radix8(x, -1), TW3, False)
        lds_write(b, 6, [q * 32 for q in range(8)])
        x = lds_read(100, [e * 8 for e in range(8)]); A("s_waitcnt lgkmcnt(0)")
        y = radix4(x[0:4], -1) + radix4(x[4:8], -1)
        if wwait is not None: A("s_waitcnt vmcnt(%d)" % wwait)
        z = []
        for e in range(8):
            w = pool.get()
            A("v_lshlrev_b32 v%d, 16, v%d" % (w, wv + e)); A("v_and_b32 v%d, 0xffff0000, v%d" % (w + 1, wv + e))
            z.append(cmul(y[e], w, False)); pool.put(w)
        y = radix4(z[0:4], 1) + radix4(z[4:8], 1)
        lds_write(y, 100, [e * 8 for e in range(8)])
        x = lds_read(6, [q * 32 for q in range(8)]); A("s_waitcnt lgkmcnt(0)")
        b = radix8(twid(x, TW3, True), 1)
        lds_write(b, 6, [j * 32 for j in range(8)])
        x = lds_read(5, [q * 288 for q in range(8)]); A("s_waitcnt lgkmcnt(0)")
        b = radix8(twid(x, TW2, True), 1)
        lds_write(b, 5, [j * 256 for j in range(8)])
        A("s_waitcnt lgkmcnt(0)"); A("s_barrier")
        x = lds_read(3, [q * 2304 for q in range(8)]); A("s_waitcnt lgkmcnt(0)")
        b = radix8(twid(x, TW1, True), 1)
        A("s_cmp_eq_u32 %s, 320" % col); A("s_cselect_b32 s20, 0, %s" % col); A("s_cselect_b32 s25, 2, 0")
        A("s_lshr_b32 s21, s20, 4"); A("s_lshl_b32 s21, s21, 10"); A("s_bfe_u32 s22, s20, 0x20002"); A("s_lshl_b32 s22, s22, 8"); A("s_add_u32 s21, s21, s22")
        A("s_and_b32 s22, s20, 3"); A("s_lshl_b32 s22, s22, 2"); A("s_add_u32 s21, s21, s22"); A("s_add_u32 s21, s21, s25"); A("s_add_u32 s21, s21, %d" % WS_ZF)
        for j in range(8): A("v_cvt_pk_bf16_f32 v%d, v%d, v%d" % (b[j], b[j], b[j] + 1))
        A("s_cmp_eq_u32 s20, 0"); A("s_cbranch_scc1 %s_short%s" % (L, tag))
        for j in range(8):
            A("buffer_store_dword v%d, v101, s[8:11], s21 offen%s" % (b[j], sc)); A("s_add_u32 s21, s21, 327680")
        A("s_branch %s_done%s" % (L, tag))
        A.label("%s_short%s" % (L, tag))
        for j in range(8):
            A("buffer_store_short v%d, v101, s[8:11], s21 offen%s" % (b[j], sc)); A("s_add_u32 s21, s21, 327680")
        A.label("%s_done%s" % (L, tag))
        pool.put(*b)

    if not fused:
        A("s_waitcnt lgkmcnt(0)"); fin_srd(A, 8, SZ_WS)
        x = [pool.get() for _ in range(8)]
        load_x("s2", x); load_w("s2", WV); setup()
        A("s_waitcnt vmcnt(2)")
        process("s2", x, WV, "", 0)
        A.label("%s_end" % L)
    else:
        def pre():
            A("s_add_u32 s29, s2, %d" % stride); A("s_min_u32 s29, s29, 320")
            load_w("s2", WV); load_w("s29", 104); setup()
        def main():
            A("s_mov_b32 s26, 0x%08x" % f2u(0.7071067811865476)); A("s_mov_b32 s27, s26"); A("s_add_u32 s29, s2, %d" % stride)
            x = [pool.get() for _ in range(8)]
            x2 = [112 + 2 * i for i in range(8)]
            load_x("s2", x); load_x("s29", x2)
            A("s_waitcnt vmcnt(16)")
            process("s2", x, WV, "a", None)
            A("s_cmp_ge_u32 s29, 321"); A("s_cbranch_scc1 %s_end" % L)
            A("s_waitcnt vmcnt(8)"); A("s_barrier")
            process("s29", x2, 104, "b", None)
            A.label("%s_end" % L)
        return pre, main


N_T1 = 200; N_T2 = 200; N_WT = 384
N_EXTRA = N_T1 + N_T2 + N_WT


def prep_extra(A, sl):
    A("s_cmp_ge_u32 s%d, %d" % (sl, N_T1 + N_T2)); A("s_cbranch_scc1 Lp_wt")
    A("s_cmp_ge_u32 s%d, %d" % (sl, N_T1)); A("s_cselect_b32 s35, 1, 0")
    A("s_mul_i32 s36, s35, %d" % N_T1); A("s_sub_u32 s36, s%d, s36" % sl); A("s_lshl_b32 s36, s36, 2"); A("s_add_u32 s36, s36, s33")
    A("s_mul_hi_u32 s37, s36, 0x%x" % ((2 ** 32 + 19) // 20))
    A("s_mul_i32 s38, s37, 20"); A("s_sub_u32 s38, s36, s38")
    A("s_lshl_b32 s37, s37, 4"); A("v_add_u32 v6, s37, v4")
    A("s_lshl_b32 s38, s38, 5"); A("v_lshlrev_b32 v7, 3, v3"); A("v_add_u32 v7, s38, v7")
    A("s_mov_b32 s39, 0x%x" % ((2 ** 32 + 639) // 640)); A("s_movk_i32 s40, 640")
    A("s_cmp_eq_u32 s35, 1"); A("s_cbranch_scc1 Lp_t2")
    A("v_cmp_lt_u32 vcc, 320, v6"); A("v_subrev_u32 v8, 320, v6"); A("s_nop 1"); A("v_cndmask_b32 v8, v6, v8, vcc")
    A("v_mov_b32 v9, 0"); A("v_mov_b32 v10, 0x3e800000"); A("v_cndmask_b32 v9, v9, v10, vcc")
    for j in range(8):
        A("v_add_u32 v11, %d, v7" % j); A("v_mul_u32_u24 v11, v11, v8")
        A("v_mul_hi_u32 v12, v11, s39"); A("v_mul_lo_u32 v12, v12, s40"); A("v_sub_u32 v11, v11, v12")
        A("v_cvt_f32_u32 v11, v11"); A("v_mov_b32 v12, v9"); A("v_fmac_f32 v12, 0x%08x, v11" % f2u(1 / 640))
        A("v_cos_f32 v%d, v12" % (16 + j))
    A("s_nop 0")
    for q in range(4): A("v_cvt_pk_f16_f32 v%d, v%d, v%d" % (24 + q, 16 + 2 * q, 17 + 2 * q))
    A("s_lshl_b32 s36, s36, 10"); A("s_add_u32 s36, s36, %d" % WS_FT1)
    A("buffer_store_dwordx4 v[24:27], v5, s[8:11], s36 offen")
    A("s_branch Lp_end")
    A.label("Lp_t2")
    A("s_and_b32 s41, s37, 16"); A("s_sub_u32 s37, s37, s41"); A("s_lshr_b32 s41, s41, 2"); A("s_add_u32 s37, s37, s41")
    A("v_and_b32 v6, 12, v4"); A("v_add_u32 v6, v6, v4"); A("v_add_u32 v6, s37, v6")
    c = 2.0 / (640 * 2048)
    A("v_lshrrev_b32 v8, 1, v7")
    A("v_cmp_eq_u32 vcc, 0, v7")
    for j in range(8):
        A("v_add_u32 v11, %d, v8" % (j // 2))
        ph = 0.25 if j & 1 else 0.0
        A("v_mov_b32 v13, 0x%08x" % f2u(ph)); A("v_mov_b32 v14, 0x%08x" % f2u(c))
        if j < 2:
            A("v_mov_b32 v15, 0x%08x" % f2u(c / 2)); A("v_cndmask_b32 v14, v14, v15, vcc")
        if j == 1:
            A("v_mov_b32 v15, 320"); A("v_cndmask_b32 v11, v11, v15, vcc"); A("v_mov_b32 v15, 0"); A("v_cndmask_b32 v13, v13, v15, vcc")
        A("v_mul_u32_u24 v11, v11, v6")
        A("v_mul_hi_u32 v12, v11, s39"); A("v_mul_lo_u32 v12, v12, s40"); A("v_sub_u32 v11, v11, v12")
        A("v_cvt_f32_u32 v11, v11"); A("v_fmac_f32 v13, 0x%08x, v11" % f2u(1 / 640))
        A("v_cos_f32 v13, v13"); A("s_nop 0"); A("v_mul_f32 v%d, v13, v14" % (16 + j))
    for q in range(4): A("v_cvt_pk_bf16_f32 v%d, v%d, v%d" % (24 + q, 16 + 2 * q, 17 + 2 * q))
    A("s_lshl_b32 s36, s36, 10"); A("s_add_u32 s36, s36, %d" % WS_GT2)
    A("buffer_store_dwordx4 v[24:27], v5, s[8:11], s36 offen")
    A("s_branch Lp_end")
    A.label("Lp_wt")
    load_srd(A, 44, KA_WR, SZ_WF); load_srd(A, 48, KA_WI, SZ_WF)
    A("s_sub_u32 s35, s%d, %d" % (sl, N_T1 + N_T2)); A("s_lshl_b32 s35, s35, 2"); A("s_add_u32 s35, s35, s33")
    A("s_lshr_b32 s36, s35, 8"); A("s_and_b32 s37, s35, 255")
    A("s_lshl_b32 s36, s36, 6"); A("v_add_u32 v6, s36, v1")
    A("s_lshr_b32 s38, s37, 5"); A("s_bfe_u32 s39, s37, 0x30002"); A("s_lshl_b32 s39, s39, 3"); A("s_add_u32 s38, s38, s39")
    A("s_and_b32 s39, s37, 3"); A("s_lshl_b32 s39, s39, 7"); A("s_add_u32 s38, s38, s39"); A("s_mul_i32 s38, s38, 642")
    A("v_lshlrev_b32 v7, 1, v6")
    A("s_waitcnt lgkmcnt(0)"); fin_srd(A, 44, SZ_WF); fin_srd(A, 48, SZ_WF)
    A("v_cmp_gt_u32 vcc, 321, v6"); A("s_and_saveexec_b64 s[52:53], vcc"); A("s_cbranch_execz Lp_end")
    for e in range(8):
        f = 64 * (e // 4) + 512 * (e % 4)
        A("s_add_u32 s39, s38, %d" % (f * 642))
        A("buffer_load_ushort v%d, v7, s[44:47], s39 offen" % (8 + e))
        A("buffer_load_ushort v%d, v7, s[48:51], s39 offen" % (16 + e))
    A("v_lshlrev_b32 v7, 13, v6"); A("s_lshl_b32 s37, s37, 5"); A("s_add_u32 s37, s37, %d" % WS_WT)
    A("s_waitcnt vmcnt(0)")
    for e in range(8): A("v_lshl_or_b32 v%d, v%d, 16, v%d" % (8 + e, 16 + e, 8 + e))
    A("buffer_store_dwordx4 v[8:11], v7, s[8:11], s37 offen")
    A("buffer_store_dwordx4 v[12:15], v7, s[8:11], s37 offen offset:16")
```

```python
from asmlib import *
from layout import *
from seq import *
from k_chain import chain_load, chain_body, f2u, C1, SPIN_MAX, OOB, L_FL
from k_dft import dft_body, table_dma
from k_fft import fft_body
from k_ln import ln_body

GMAP = 0x76325140


def breg(i):
    return 256 + 4 * i if i < 64 else 192 + 4 * (i - 64)


def main_kernel(P):
    name = "main_kernel"
    k = Kernel(name, 256, 256, 163840, 256, 256, sgpr=102)
    A = k.asm
    L = lambda x: "%s_%s" % (name, x)

    def ht(i):
        if not P.get("HT"): return
        lab = A.newlabel(L("ht"))
        A("s_or_b32 s6, s21, s22"); A("s_cmp_lg_u32 s6, 0"); A("s_cbranch_scc1 %s" % lab)
        A("s_memrealtime s[6:7]"); A("s_waitcnt lgkmcnt(0)")
        A("s_lshl_b32 s7, s20, 8"); A("s_add_u32 s7, s7, s5"); A("s_add_u32 s5, s5, 4"); A("s_add_u32 s7, s7, %d" % (WS_DBG + (4 << 20)))
        A("s_lshl_b32 s6, s6, 4"); A("s_or_b32 s6, s6, %d" % i)
        A("s_mov_b64 exec, 1"); A("v_mov_b32 v10, s6"); A("v_mov_b32 v11, 0"); A("buffer_store_dword v10, v11, s[8:11], s7 offen"); A("s_waitcnt vmcnt(0)"); A("s_mov_b64 exec, -1")
        A.label(lab)

    ool = []
    def flush_ool():
        for lab, grp in ool:
            A.label(lab)
            for t_ in grp: A(t_)
            A("s_branch %s_r" % lab)
        del ool[:]

    def lst(op, E=None):
        E = E or A
        l1 = A.newlabel(L("ls"))
        E("s_cmp_lg_u32 s23, 0"); E("s_cbranch_scc1 %s" % l1)
        for o in op: E(o)
        A.label(l1 + "_r")
        ool.append((l1, ["s_nop 7"] + [o + " sc1" if o.startswith("buffer_store") else o for o in op]))

    A("s_cmp_ge_u32 s2, 256"); A("s_cbranch_scc1 %s" % L("end"))
    load_srd(A, 16, KA_X, SZ_X); load_srd(A, 8, KA_WS, SZ_WS); load_srd(A, 12, KA_DBG, 256)
    A("s_getreg_b32 s24, hwreg(HW_REG_XCC_ID)"); A("s_and_b32 s24, s24, 7")
    if P.get("CPF", 1):
        A("s_getpc_b64 s[26:27]")
        A.label(L("cpf"))
        A("s_lshr_b32 s28, s2, 3"); A("s_lshl_b32 s28, s28, 8"); A("v_add_u32 v13, s28, v0"); A("v_lshlrev_b32 v13, 6, v13")
        A("v_cmp_gt_u32 vcc, %s - %s, v13" % (L("end"), L("cpf"))); A("s_and_saveexec_b64 s[28:29], vcc"); A("s_cbranch_execz %s" % L("cpfd"))
        A("global_load_dword v14, v13, s[26:27]")
        A.label(L("cpfd"))
        A("s_mov_b64 exec, s[28:29]")
    A("v_lshrrev_b32 v12, 6, v0"); A("v_and_b32 v0, 63, v0"); A("v_readfirstlane_b32 s21, v12")
    A("v_lshlrev_b32 v0, 4, v0")
    A("s_waitcnt lgkmcnt(0)")
    fin_srd(A, 8, SZ_WS); fin_srd(A, 12, 256); fin_srd(A, 16, SZ_X)
    A("s_mov_b32 s5, 0"); A("s_mov_b32 s101, 0")
    A("s_cmp_lg_u32 s21, 0"); A("s_cbranch_scc1 %s" % L("notick"))
    A("s_and_b32 s25, s24, 5"); A("s_cmp_lg_u32 s25, 1"); A("s_cbranch_scc1 %s" % L("nocal"))
    A("s_bfe_u32 s25, s2, 0x20003"); A("s_lshl_b32 s26, s25, 13"); A("s_lshr_b32 s27, s2, 5"); A("s_lshl_b32 s27, s27, 15"); A("s_add_u32 s26, s26, s27")
    A("s_lshl_b32 s27, s24, 8"); A("s_add_u32 s26, s26, s27"); A("s_add_u32 s26, s26, %d" % WS_MR)
    for q in range(4): A("v_mov_b32 v%d, -1" % (28 + q))
    A("s_mov_b64 exec, 0xff"); A("s_mov_b32 s27, -1"); A("s_waitcnt vmcnt(0)")
    for rep in range(3):
        A("s_memtime s[28:29]"); A("buffer_store_dwordx4 v[28:31], v0, s[8:11], s26 offen sc1"); A("s_waitcnt vmcnt(0)"); A("s_memtime s[30:31]")
        A("s_waitcnt lgkmcnt(0)"); A("s_sub_u32 s28, s30, s28"); A("s_min_u32 s27, s27, s28")
    A("s_mov_b64 exec, 1"); A("v_mov_b32 v28, s27"); A("s_lshl_b32 s25, s25, 2"); A("s_add_u32 s25, s25, %d" % WS_CAL); A("v_mov_b32 v29, s25")
    A("buffer_atomic_umin v28, v29, s[8:11], 0 offen")
    A.label(L("nocal"))
    A("s_mov_b64 exec, 1")
    A("v_mov_b32 v28, 1"); A("s_lshl_b32 s25, s24, 2"); A("v_mov_b32 v29, s25")
    A("buffer_atomic_add v28, v29, s[12:15], 0 offen sc0"); A("s_waitcnt vmcnt(0)")
    A("v_mov_b32 v30, 1"); A("v_mov_b32 v29, 32")
    A("buffer_atomic_add v30, v29, s[12:15], 0 offen")
    A("v_mov_b32 v29, %d" % L_FL); A("ds_write_b32 v29, v28"); A("s_waitcnt lgkmcnt(0)")
    A("s_mov_b64 exec, -1")
    A.label(L("notick"))
    A("s_barrier")
    A("v_mov_b32 v29, %d" % L_FL); A("ds_read_b32 v28, v29"); A("s_waitcnt lgkmcnt(0)"); A("v_readfirstlane_b32 s25, v28")
    A("s_lshl_b32 s20, s24, 2"); A("s_lshr_b32 s20, 0x%x, s20" % GMAP); A("s_and_b32 s20, s20, 7"); A("s_and_b32 s22, s25, 31")
    A("s_mov_b32 s23, 0"); A("s_mov_b32 s32, 0")
    ht(0)
    A.label(L("loadw"))
    A("s_cmp_lt_u32 s20, 2"); A("s_cbranch_scc1 %s" % L("lw_chain"))
    A("s_sub_u32 s26, s20, 1"); A("s_cmp_ge_u32 s20, 4"); A("s_cselect_b32 s26, 0, s26"); A("s_mul_i32 s26, s26, 40960")
    A("s_mul_i32 s29, s22, %d" % WQKP_H); A("s_mul_i32 s28, s21, %d" % WQKP_W); A("s_add_u32 s29, s29, s28"); A("s_add_u32 s29, s29, s26")
    if WS_WQKP: A("s_add_u32 s29, s29, %d" % WS_WQKP)
    for f in range(40):
        A("buffer_load_dwordx4 %s, v0, s[8:11], s29 offen offset:%d" % (ureg(breg(f), 4), (f % 4) * 1024))
        if f % 4 == 3: A("s_add_u32 s29, s29, 4096")
    A("s_cmp_lt_u32 s20, 4"); A("s_cbranch_scc1 %s" % L("lw_done"))
    A("s_mul_i32 s29, s22, 163840"); A("s_mul_i32 s28, s21, 40960"); A("s_add_u32 s29, s29, s28"); A("s_add_u32 s29, s29, %d" % WS_WOX)
    for f in range(40):
        A("buffer_load_dwordx4 %s, v0, s[8:11], s29 offen offset:%d" % (ureg(breg(40 + f), 4), (f % 4) * 1024))
        if f % 4 == 3: A("s_add_u32 s29, s29, 4096")
    A("s_branch %s" % L("lw_done"))
    A.label(L("lw_chain"))
    chain_load(A)
    A.label(L("lw_done"))
    A("s_cmp_lg_u32 s32, 0"); A("s_cbranch_scc1 %s" % L("role_ok"))
    A("s_mov_b32 s32, 1"); A("s_mov_b32 s30, 0")
    A("v_bfe_u32 v12, v0, 4, 4"); A("v_lshlrev_b32 v12, 2, v12")
    A.label(L("modepoll"))
    A("buffer_load_dword v13, v12, s[12:15], 0 offen sc1"); A("s_waitcnt vmcnt(0)")
    A("v_readlane_b32 s31, v13, 8")
    A("s_cmp_eq_u32 s31, 256"); A("s_cbranch_scc1 %s" % L("modegot"))
    A("s_sleep 2")
    A("s_add_u32 s30, s30, 1"); A("s_cmp_lt_u32 s30, %d" % SPIN_MAX); A("s_cbranch_scc1 %s" % L("modepoll"))
    A("s_branch %s" % L("fail"))
    A.label(L("modegot"))
    A("s_mov_b32 s27, %d" % WS_CAL)
    A("buffer_load_dword v13, v12, s[12:15], 0 offen sc1"); A("buffer_load_dword v14, v12, s[8:11], s27 offen sc1"); A("s_waitcnt vmcnt(0)")
    A("v_readlane_b32 s26, v14, 0"); A("s_mov_b32 s33, 0")
    for q in range(1, 4):
        A("v_readlane_b32 s27, v14, %d" % q); A("s_nop 0"); A("s_cmp_lt_u32 s27, s26"); A("s_cselect_b32 s33, %d, s33" % (q << 13)); A("s_min_u32 s26, s26, s27")
    A("s_xor_b32 s33, s33, %d" % (0x4000 ^ (P.get("PG", 0) << 13)))
    A("v_cmp_ne_u32 vcc, 32, v13"); A("s_and_b32 s31, vcc_lo, 0xff")
    if P.get("FORCE_SLOW"): A("s_mov_b32 s31, 1")
    A("s_cmp_eq_u32 s31, 0"); A("s_cbranch_scc1 %s" % L("role_ok"))
    A("s_mov_b32 s23, 1"); A("s_mov_b32 s31, s25")
    for x in range(7):
        A("v_readlane_b32 s30, v13, %d" % x); A("s_cmp_gt_u32 s24, %d" % x); A("s_cselect_b32 s30, s30, 0"); A("s_add_u32 s31, s31, s30")
    if P.get("FORCE_SLOW"):
        A("s_and_b32 s20, s31, 7"); A("s_lshr_b32 s22, s31, 3")
    else:
        A("s_lshr_b32 s20, s31, 5"); A("s_and_b32 s22, s31, 31")
    A("s_and_b32 s20, s20, 7"); A("s_and_b32 s22, s22, 31")
    A("s_branch %s" % L("loadw"))
    A.label(L("role_ok"))
    A("s_mov_b32 s25, s33")
    A("s_cmp_ge_u32 s20, 2"); A("s_cbranch_scc1 %s" % L("bulk"))
    chain_body(A, P, L, ht)

    def mf32(S, acc, a_, b_, c): S("v_mfma_f32_16x16x32_bf16 %s, %s, %s, %s" % (r4(acc), ureg(a_, 4), ureg(b_, 4), c if isinstance(c, str) else r4(c)))
    def mf16(S, acc, a_, b_, c): S("v_mfma_f32_16x16x16_bf16 %s, %s, %s, %s" % (r4(acc), r2(a_), r2(b_), c if isinstance(c, str) else r4(c)))
    def rd(S, dst, areg, off): return S("ds_read_b128 %s, v%d offset:%d" % (r4(dst), areg, off))

    def x_dma(S, seg_s, slot_s):
        S("s_min_u32 s27, %s, 63" % seg_s); S("s_mul_i32 s27, s27, 40960"); S("s_add_u32 s27, s27, s47"); S("s_add_u32 s28, %s, s42" % slot_s)
        for f in range(10):
            if f % 4 == 0:
                if f: S("s_add_u32 s27, s27, 4096"); S("s_add_u32 s28, s28, 4096")
                S("s_mov_b32 m0, s28")
            S("buffer_load_dwordx4 v0, s[8:11], s27 offen offset:%d sc1 lds" % ((f % 4) * 1024))

    def proj(S, areg, acc, XB, tr=False):
        NB = len(XB)
        seq = [(mt, ks) for mt in range(2) for ks in range(20)]
        for i in range(NB - 1): rd(S, XB[i], areg, i * 1024)
        for i, (mt, ks) in enumerate(seq):
            if i + NB - 1 < 40: rd(S, XB[(i + NB - 1) % NB], areg, (i + NB - 1) * 1024)
            for tl in range(2):
                a = acc + 8 * mt + 4 * tl
                if tr: mf32(S, a, XB[i % NB], breg(tl * 20 + ks), "0" if ks == 0 else a)
                else: mf32(S, a, breg(tl * 20 + ks), XB[i % NB], "0" if ks == 0 else a)

    def poll(S, addr_s, lanes, cmp_ins, tag, sleep=1):
        ld = A.newlabel(L(tag)); lp = A.newlabel(L(tag))
        S("s_cmp_lg_u32 s21, 0"); S("s_cbranch_scc1 %s" % ld)
        A("s_mov_b64 exec, 0x%x" % lanes); A("s_mov_b32 s30, 0"); A("v_lshrrev_b32 v190, 2, v0")
        A.label(lp)
        A("buffer_load_dword v191, v190, s[8:11], %s offen sc1" % addr_s)
        A("s_add_u32 s30, s30, 1"); A("s_cmp_ge_u32 s30, %d" % SPIN_MAX); A("s_cbranch_scc1 %s" % L("fail"))
        A("s_waitcnt vmcnt(0)"); A(cmp_ins); A("s_cbranch_vccz %s" % (lp + "d"))
        if sleep: A("s_sleep %d" % sleep)
        A("s_branch %s" % lp)
        A.label(lp + "d")
        A("s_mov_b64 exec, -1")
        A.label(ld)
        S("s_barrier")

    A.label(L("bulk"))
    A("s_waitcnt vmcnt(0)")
    ht(1)
    A("s_mul_i32 s42, s21, 10240"); A("s_mul_i32 s47, s101, %d" % XNF_LAYER); A("s_add_u32 s47, s47, s42"); A("s_add_u32 s47, s47, %d" % WS_XNF)
    A("s_mul_i32 s50, s101, %d" % KV_LAYER); A("s_lshl_b32 s27, s22, 13"); A("s_add_u32 s50, s50, s27"); A("s_add_u32 s50, s50, %d" % WS_KXF)
    A("s_lshl_b32 s43, s101, 6")
    A("s_cmp_ge_u32 s20, 4"); A("s_cbranch_scc1 %s" % L("qao"))
    S = Seq(A)
    S("s_sub_u32 s27, s20, 2"); S("s_mul_i32 s28, s27, %d" % KV_MAT); S("s_add_u32 s50, s50, s28"); S("s_add_u32 s28, s27, 10"); S("s_lshl_b32 s28, s21, s28"); S("s_add_u32 s50, s50, s28")
    S("s_lshl_b32 s51, s27, 7"); S("s_lshl_b32 s28, s22, 8"); S("s_add_u32 s51, s51, s28"); S("s_add_u32 s51, s51, %d" % WS_KVFL)
    S("s_mov_b32 s44, 0"); S("s_mov_b32 s45, 0")
    x_dma(S, "s44", "s45"); S.wait_vm_all(); S("s_barrier")
    A.label(L("kv_top"))
    S = Seq(A)
    S("v_add_u32 v1, s45, v0"); S("s_sub_u32 s45, 40960, s45"); S("s_add_u32 s44, s44, 1")
    x_dma(S, "s44", "s45")
    S("s_cmp_eq_u32 s20, 3"); S("s_cbranch_scc1 %s" % L("kv_v"))
    nv0 = S.nv
    proj(S, 1, 8, [32 + 4 * i for i in range(6)])
    S("s_add_u32 s27, s50, 4096")
    for mt in range(2):
        for i in range(4): S("v_cvt_pk_bf16_f32 v%d, v%d, v%d" % (24 + 4 * mt + i, 8 + 8 * mt + i, 12 + 8 * mt + i))
        S("buffer_store_dwordx4 %s, v0, s[8:11], %s offen sc1" % (r4(24 + 4 * mt), "s27" if mt else "s50"))
    S("s_branch %s" % L("kv_c"))
    A.label(L("kv_v"))
    S = Seq(A)
    proj(S, 1, 8, [32 + 4 * i for i in range(6)], True)
    for tl in range(2):
        for q in range(4): S("v_cvt_pk_bf16_f32 v%d, v%d, v%d" % (24 + 4 * tl + q, 8 + 8 * (q // 2) + 4 * tl + 2 * (q % 2), 9 + 8 * (q // 2) + 4 * tl + 2 * (q % 2)))
        S("buffer_store_dwordx4 %s, v0, s[8:11], s50 offen offset:%d sc1" % (r4(24 + 4 * tl), 1024 * tl))
    A.label(L("kv_c"))
    S("s_add_u32 s50, s50, 262144"); S("s_add_u32 s27, s44, s43"); S("v_mov_b32 v2, s27")
    S.wait_vm_all(); S("s_barrier")
    S("s_cmp_lg_u32 s21, 0"); S("s_cbranch_scc1 %s" % L("kv_nf"))
    S("s_mov_b64 exec, 1"); S("buffer_store_dword v2, v0, s[8:11], s51 offen sc1"); S("s_mov_b64 exec, -1")
    A.label(L("kv_nf"))
    S("s_cmp_lt_u32 s44, 64"); S("s_cbranch_scc1 %s" % L("kv_top"))
    A("s_branch %s" % L("bphase"))

    LQ_EQ, LQ_EO, LQ_K = 81920, 90112, 98304
    A.label(L("qao"))
    S = Seq(A)
    G, R_, VH, KMA, VMA, PSX, RLA, XOA, THR = 1, 2, 3, 4, 5, 6, 7, 8, 9
    SELT, SELR = 12, 20
    S("v_lshrrev_b32 v%d, 8, v0" % G); S("v_bfe_u32 v%d, v0, 4, 4" % R_)
    S("v_add_u32 v%d, %d, v0" % (VH, LQ_EQ))
    S("v_mul_u32_u24 v10, 40960, v%d" % R_); S("v_lshl_add_u32 v10, v%d, 4, v10" % G); S("s_mul_i32 s27, s22, 1280"); S("s_mul_i32 s28, s21, 320"); S("s_add_u32 s27, s27, s28"); S("v_add_u32 v%d, s27, v10" % PSX)
    S("v_mul_u32_u24 v10, 1280, v%d" % G); S("v_lshl_add_u32 v10, v%d, 4, v10" % R_); S("s_mul_i32 s27, s22, 40960"); S("s_lshl_b32 s28, s21, 8"); S("s_add_u32 s27, s27, s28"); S("v_add_u32 v%d, s27, v10" % RLA)
    S("v_lshlrev_b32 v10, 4, v%d" % R_); S("v_lshl_add_u32 v10, v%d, 3, v10" % G); S("s_mul_i32 s27, s22, 1280"); S("s_add_u32 s27, s27, s28"); S("v_add_u32 v%d, s27, v10" % XOA)
    S("v_lshlrev_b32 v10, 2, v%d" % G); S("v_sub_u32 v%d, v%d, v10" % (THR, R_))
    S("v_and_b32 v10, 16, v0"); S("s_movk_i32 s27, 0x3f80"); S("v_lshlrev_b32_e64 v10, v10, s27"); S("v_bfe_u32 v11, v0, 5, 2")
    for q in range(4):
        S("v_cmp_eq_u32 vcc, %d, v11" % q); S("v_cndmask_b32 v%d, 0, v10, vcc" % (SELR + q))
    S("s_mov_b32 s40, 0x%08x" % f2u(C1)); S("s_mov_b32 s36, 0x00ff00ff"); S("s_mov_b32 s37, 0x00ff00ff")
    S("s_sub_u32 s44, s20, 4"); S("s_mov_b32 s45, 0")
    S("s_mul_i32 s48, s44, %d" % (2 * PARTX_SLOT)); S("s_add_u32 s48, s48, %d" % WS_PARTX); S("s_mov_b32 s49, %d" % PARTX_SLOT)
    S("s_lshl_b32 s51, s44, 12"); S("s_lshl_b32 s27, s101, 11"); S("s_add_u32 s51, s51, s27"); S("s_add_u32 s51, s51, %d" % WS_ARR)
    S("s_lshl_b32 s52, s22, 7"); S("s_lshl_b32 s27, s101, 12"); S("s_add_u32 s52, s52, s27"); S("s_add_u32 s52, s52, %d" % WS_CHFL)
    S("s_lshl_b32 s53, s22, 13"); S("s_add_u32 s53, s53, %d" % WS_KM)
    S("s_mul_i32 s54, s101, %d" % (WS_X3 - WS_X1)); S("s_add_u32 s54, s54, %d" % WS_X1)
    x_dma(S, "s44", "s45"); S.wait_vm_all(); S("s_barrier")
    A.label(L("q_top"))
    S = Seq(A)
    S("v_add_u32 v10, s45, v0"); S("s_sub_u32 s45, 40960, s45"); S("s_add_u32 s46, s44, 4")
    x_dma(S, "s46", "s45")
    QA = 24
    proj(S, 10, QA, [48 + 4 * i for i in range(6)])
    for r in range(QA, QA + 16): S("v_mul_f32 v%d, s40, v%d" % (r, r))
    S("s_lshl_b32 s27, s21, 10"); S("v_add_u32 v10, s27, v%d" % VH)
    for mt in range(2):
        for i in range(4): S("v_cvt_pk_bf16_f32 v%d, v%d, v%d" % (40 + 4 * mt + i, QA + 8 * mt + i, QA + 4 + 8 * mt + i))
        S("ds_write_b128 v10, %s offset:%d" % (r4(40 + 4 * mt), mt * 4096))
    RES = 184
    S("s_mul_i32 s55, s44, 40960")
    S("s_mov_b32 exec_hi, 0")
    S("buffer_load_dwordx2 %s, v%d, s[16:19], s55 offen sc1" % (r2(RES), XOA)); S("buffer_load_dwordx2 %s, v%d, s[16:19], s55 offen offset:1024 sc1" % (r2(RES + 2), XOA))
    S("s_mov_b64 exec, -1")
    S("s_add_u32 s56, s44, s43"); S("s_lshl_b32 s57, s44, 7")
    S.wait_lds_all()
    poll(S, "s52", 3, "v_cmp_ge_u32 vcc, s57, v191", "cf")
    S = Seq(A)
    QF = [24 + 4 * i for i in range(8)]; KF = [56 + 4 * i for i in range(8)]; KMF = [88 + 4 * i for i in range(4)]; VF = [104, 108]; VM = 112
    S("s_lshl_b32 s27, s56, 18"); S("s_add_u32 s27, s27, s53")
    for u in range(4): S("buffer_load_dwordx4 %s, v0, s[8:11], s27 offen offset:%d sc1" % (r4(KMF[u]), 1024 * u))
    S("s_lshl_b32 s28, s21, 10"); S("s_add_u32 s27, s27, s28"); S("s_add_u32 s27, s27, 4096")
    S("buffer_load_dwordx4 %s, v0, s[8:11], s27 offen sc1" % r4(VM))
    S("s_lshl_b32 s27, s44, 18"); S("s_add_u32 s27, s27, s50"); S("s_lshl_b32 s28, s21, 11"); S("s_add_u32 s29, s27, s28"); S("s_add_u32 m0, s28, %d" % LQ_K)
    for j in range(2): kt = S("buffer_load_dwordx4 v0, s[8:11], s29 offen offset:%d sc1 lds" % (1024 * j))
    S("s_add_u32 s27, s29, %d" % KV_MAT)
    for tj in range(2): S("buffer_load_dwordx4 %s, v0, s[8:11], s27 offen offset:%d sc1" % (r4(VF[tj]), 1024 * tj))
    for i in range(8): rd(S, QF[i], VH, 1024 * i)
    SS = [[116, 120, None], [124, 128, 132]]
    S("v_mov_b32 v10, 0x%08x" % f2u(-1e30))
    for i in range(4):
        S("v_cmp_gt_i32 vcc, %d, v%d" % (i, THR)); S("v_cndmask_b32 v%d, 0, v10, vcc" % (SS[0][1] + i)); S("v_mov_b32 v%d, v%d" % (SS[1][2] + i, SS[0][1] + i))
    S.wait(vm=kt); S("s_barrier")
    for i in range(8): rd(S, KF[i], VH, LQ_K - LQ_EQ + 1024 * i)
    for u in range(4):
        for qt in range(2): mf32(S, SS[qt][0], KMF[u], QF[4 * qt + u], "0" if u == 0 else SS[qt][0])
    for u in range(4):
        mf32(S, SS[0][1], KF[u], QF[u], SS[0][1]); mf32(S, SS[1][1], KF[u], QF[4 + u], "0" if u == 0 else SS[1][1]); mf32(S, SS[1][2], KF[4 + u], QF[4 + u], SS[1][2])
    PB = [[24, 28], [32, 36]]
    for qt in range(2):
        rs = [b + i for b in SS[qt] if b is not None for i in range(4)]
        MX, TM, Z = 160 + 4 * qt, 161 + 4 * qt, 162 + 4 * qt
        S("v_max3_f32 v%d, v%d, v%d, v%d" % (MX, rs[0], rs[1], rs[2]))
        for i in range(3, len(rs) - 1, 2): S("v_max3_f32 v%d, v%d, v%d, v%d" % (MX, MX, rs[i], rs[i + 1]))
        S("v_max_f32 v%d, v%d, v%d" % (MX, MX, rs[-1]))
        for op in ("v_permlane16_swap_b32", "v_permlane32_swap_b32"):
            S("v_mov_b32 v%d, v%d" % (TM, MX)); S("%s v%d, v%d" % (op, MX, TM)); S("v_max_f32 v%d, v%d, v%d" % (MX, MX, TM))
        for r in rs: S("v_sub_f32 v%d, v%d, v%d" % (r, r, MX))
        for r in rs: S("v_exp_f32 v%d, v%d" % (r, r))
        S("v_add_f32 v%d, v%d, v%d" % (Z, rs[0], rs[1])); S("v_add_f32 v%d, v%d, v%d" % (TM, rs[2], rs[3])); S("v_add_f32 v%d, v%d, v%d" % (Z, Z, TM))
        S("v_fma_f32 v%d, v%d, 0.5, v%d" % (Z, Z, rs[4]))
        for r in rs[5:]: S("v_add_f32 v%d, v%d, v%d" % (Z, Z, r))
        for op in ("v_permlane16_swap_b32", "v_permlane32_swap_b32"):
            S("v_mov_b32 v%d, v%d" % (TM, Z)); S("%s v%d, v%d" % (op, Z, TM)); S("v_add_f32 v%d, v%d, v%d" % (Z, Z, TM))
        S("v_rcp_f32 v%d, v%d" % (Z, Z))
        for r in rs: S("v_mul_f32 v%d, v%d, v%d" % (r, r, Z))
        for q in range(2): S("v_cvt_pk_bf16_f32 v%d, v%d, v%d" % (PB[qt][1] + q, rs[2 * q], rs[2 * q + 1]))
        for q in range(4):
            if 4 + 2 * q < len(rs): S("v_cvt_pk_bf16_f32 v%d, v%d, v%d" % (PB[qt][0] + q, rs[4 + 2 * q], rs[5 + 2 * q]))
            else: S("v_mov_b32 v%d, 0" % (PB[qt][0] + q))
    OO = [[40 + 8 * qt + 4 * tj for tj in range(2)] for qt in range(2)]
    for qt in range(2):
        for tj in range(2): mf32(S, OO[qt][tj], VF[tj], PB[qt][0], "0")
    for qt in range(2):
        for tj in range(2): mf16(S, OO[qt][tj], VM + 2 * tj, PB[qt][1], OO[qt][tj])
    S("s_lshl_b32 s27, s21, 10"); S("v_add_u32 v10, s27, v%d" % VH)
    for qt in range(2):
        for i in range(4): S("v_cvt_pk_bf16_f32 v%d, v%d, v%d" % (56 + 4 * qt + i, OO[qt][0] + i, OO[qt][1] + i))
        S("ds_write_b128 v10, %s offset:%d" % (r4(56 + 4 * qt), LQ_EO - LQ_EQ + qt * 4096))
    S.wait_lds_all(); S("s_barrier")
    OF = [24 + 4 * i for i in range(8)]
    for i in range(8): rd(S, OF[i], VH, LQ_EO - LQ_EQ + 1024 * i)
    S("s_add_u32 s27, s48, %d" % (16 * 40960))
    XA = lambda pr, qt, tb: 64 + 16 * pr + 8 * qt + 4 * tb
    for pr in range(5):
        for u in range(4):
            for qt in range(2):
                for tb in range(2): mf32(S, XA(pr, qt, tb), breg(40 + (2 * pr + tb) * 4 + u), OF[4 * qt + u], "0" if u == 0 else XA(pr, qt, tb))
    st = []
    for pr in range(5):
        for qt in range(2):
            b = XA(pr, qt, 0)
            for q in range(4): S("v_cvt_pk_bf16_f32 v%d, v%d, v%d" % (b + q, b + 2 * q, b + 2 * q + 1))
            st.append("buffer_store_dwordx4 %s, v%d, s[8:11], %s offen offset:%d" % (r4(b), PSX, "s27" if qt else "s48", 64 * pr))
    lst(st, S)
    S.wait_vm_all(); S("s_barrier")
    S("s_cmp_lg_u32 s21, 0"); S("s_cbranch_scc1 %s" % L("q_na"))
    S("s_mov_b64 exec, 1"); S("v_mov_b32 v10, s22"); S("v_mov_b32 v11, 1")
    lst(["buffer_store_byte v11, v10, s[8:11], s51 offen"], S)
    S("s_mov_b64 exec, -1")
    A.label(L("q_na"))
    poll(S, "s51", 0xff, "v_cmp_ne_u32 vcc, 0x01010101, v191", "ar", sleep=0)
    S = Seq(A)
    S("s_add_u32 s55, s55, s54")
    def red(S, grp, B, D, res):
        for j in range(8):
            if j: S("s_add_u32 s27, s48, %d" % (j * 5120))
            S("buffer_load_dwordx4 %s, v%d, s[8:11], %s offen offset:%d sc1" % (r4(B + 4 * j), RLA, "s27" if j else "s48", 1024 * grp))
    def fin(S, grp, B, D, res):
        for j in range(8): mf32(S, D, SELR, B + 4 * j, "0" if j == 0 else D)
        for q in range(2):
            S("v_lshlrev_b32 v10, 16, v%d" % (res + q)); S("v_and_b32 v11, 0xffff0000, v%d" % (res + q))
            S("v_add_f32 v10, v10, v%d" % (D + 2 * q)); S("v_add_f32 v11, v11, v%d" % (D + 2 * q + 1)); S("v_cvt_pk_bf16_f32 v%d, v10, v11" % (res + q))
        S("s_mov_b32 exec_hi, 0"); S("buffer_store_dwordx2 %s, v%d, s[8:11], s55 offen offset:%d sc1" % (r2(res), XOA, 1024 * grp)); S("s_mov_b64 exec, -1")
    red(S, 0, 24, 88, RES)
    S("s_cmp_lg_u32 s21, 0"); S("s_cbranch_scc1 %s" % L("q_r1"))
    S2 = Seq(A); red(S2, 1, 56, 92, RES + 2); fin(S2, 1, 56, 92, RES + 2)
    A.label(L("q_r1"))
    S("s_waitcnt vmcnt(1)") if False else None
    S.dv = 0; S.nv += 0
    A("s_waitcnt vmcnt(0)"); S.dv = S.nv
    fin(S, 0, 24, 88, RES)
    S("s_add_u32 s48, s48, s49"); S("s_sub_u32 s49, 0, s49"); S("s_add_u32 s51, s51, 128")
    S("s_add_u32 s44, s44, 4"); S("s_cmp_lt_u32 s44, 64"); S("s_cbranch_scc1 %s" % L("q_top"))

    A.label(L("bphase"))
    ht(3)
    def gbar(ph):
        base = WS_BAR2 + ph * 4096
        lw = A.newlabel(L("gb")); ld = A.newlabel(L("gb"))
        def spin(addr_setup, lanes, want):
            lp = A.newlabel(L("gs"))
            A("s_mov_b64 exec, 0x%x" % lanes); addr_setup(); A("s_mov_b32 s30, 0")
            A.label(lp)
            A("buffer_load_dword v191, v190, s[8:11], s28 offen sc1")
            A("s_add_u32 s30, s30, 1"); A("s_cmp_ge_u32 s30, %d" % (SPIN_MAX * 4)); A("s_cbranch_scc1 %s" % L("fail"))
            A("s_waitcnt vmcnt(0)"); A("v_cmp_ne_u32 vcc, 0x%x, v191" % want); A("s_cbranch_vccnz %s" % lp)
        A("s_waitcnt vmcnt(0) lgkmcnt(0)"); A("s_barrier")
        A("s_cmp_lg_u32 s83, 0"); A("s_cbranch_scc1 %s" % ld)
        A("s_mov_b32 s23, s85"); A("s_add_u32 s28, s86, %d" % base); A("s_lshl_b32 s27, s82, 7")
        A("v_mbcnt_lo_u32_b32 v189, -1, 0")
        A("s_mov_b64 exec, 1"); A("s_add_u32 s31, s27, s84"); A("v_mov_b32 v190, s31"); A("v_mov_b32 v191, 1")
        lst(["buffer_store_byte v191, v190, s[8:11], s28 offen"])
        A("s_cmp_lg_u32 s84, 0"); A("s_cbranch_scc1 %s" % lw)
        spin(lambda: A("v_lshl_add_u32 v190, v189, 2, s27"), 0xff, 0x01010101)
        A("s_mov_b64 exec, 1"); A("v_mov_b32 v190, s27"); A("v_mov_b32 v191, 1"); A("buffer_store_dword v191, v190, s[8:11], s28 offen offset:1024 sc1")
        spin(lambda: A("v_lshlrev_b32 v190, 7, v189\nv_add_u32 v190, 1024, v190"), 0x3f, 1)
        A("s_mov_b64 exec, 1"); A("v_mov_b32 v190, s27"); A("v_mov_b32 v191, 1")
        lst(["buffer_store_dword v191, v190, s[8:11], s28 offen offset:2048"])
        A.label(lw)
        spin(lambda: A("s_add_u32 s31, s27, 2048\nv_mov_b32 v190, s31"), 1, 1)
        A("s_mov_b64 exec, -1")
        A.label(ld)
        A("s_barrier")
    A("s_sub_u32 s82, s20, 2"); A("s_mov_b32 s83, s21"); A("s_mov_b32 s84, s22"); A("s_mov_b32 s85, s23")
    A("s_lshl_b32 s87, s82, 5"); A("s_add_u32 s87, s87, s22")
    A("s_mul_i32 s86, s101, %d" % (6 * 4096))
    A("s_mul_i32 s80, s101, %d" % (WS_X3 - WS_X1)); A("s_add_u32 s80, s80, %d" % WS_X1)
    A("s_load_dwordx2 s[16:17], s[0:1], %d" % KA_OUT); A("s_waitcnt lgkmcnt(0)"); A("s_and_b32 s17, s17, 0xffff")
    A("s_cmp_eq_u32 s101, 1"); A("s_cbranch_scc1 %s" % L("osrd"))
    A("s_add_u32 s16, s8, %d" % WS_X2); A("s_addc_u32 s17, s9, 0")
    A.label(L("osrd"))
    def restore():
        A("s_add_u32 s20, s82, 2"); A("s_mov_b32 s21, s83"); A("s_mov_b32 s22, s84"); A("s_mov_b32 s23, s85")
    def tid():
        A("v_mbcnt_lo_u32_b32 v0, -1, 0"); A("v_mbcnt_hi_u32_b32 v0, -1, v0"); A("s_lshl_b32 s27, s83, 6"); A("v_add_u32 v0, s27, v0"); A("s_mov_b32 s2, s81")
    def rsync(ph, n):
        base = WS_BAR2 + ph * 4096 + 3072
        ld = A.newlabel(L("rs")); lp = A.newlabel(L("rs"))
        A("s_waitcnt vmcnt(0) lgkmcnt(0)"); A("s_barrier")
        A("s_cmp_lg_u32 s83, 0"); A("s_cbranch_scc1 %s" % ld)
        A("s_mov_b32 s23, s85"); A("s_add_u32 s28, s86, %d" % base)
        A("s_lshl_b32 s27, s82, 7"); A("s_add_u32 s31, s27, s84")
        A("s_mov_b64 exec, 1"); A("v_mov_b32 v190, s31"); A("v_mov_b32 v191, 1")
        lst(["buffer_store_byte v191, v190, s[8:11], s28 offen"])
        A("s_and_b32 s31, s31, 0xfffffff8"); A("v_mov_b32 v190, s31"); A("s_mov_b32 s30, 0")
        A.label(lp)
        A("buffer_load_dwordx2 v[188:189], v190, s[8:11], s28 offen sc1")
        A("s_add_u32 s30, s30, 1"); A("s_cmp_ge_u32 s30, %d" % SPIN_MAX); A("s_cbranch_scc1 %s" % L("fail"))
        A("s_waitcnt vmcnt(0)")
        A("v_and_b32 v188, v188, v189")
        A("v_cmp_ne_u32 vcc, 0x01010101, v188"); A("s_cbranch_vccnz %s" % lp)
        A("s_mov_b64 exec, -1")
        A.label(ld)
        A("s_barrier")
    def rg_ln(src, dst, f16, store_fn, tag):
        A("s_lshr_b32 s34, s87, 3"); A("s_bitcmp1_b32 s87, 2"); A("s_cselect_b32 s27, 24, 0"); A("s_add_u32 s34, s34, s27")
        A("s_cmp_ge_u32 s34, 32"); A("s_cbranch_scc1 %s" % L("noln%s" % tag))
        A("s_lshl_b32 s34, s34, 2"); A("s_and_b32 s27, s87, 3"); A("s_add_u32 s34, s34, s27"); A("s_mov_b32 s23, s85")
        A("v_mbcnt_lo_u32_b32 v1, -1, 0"); A("v_mbcnt_hi_u32_b32 v1, -1, v1"); A("v_lshrrev_b32 v3, 4, v1"); A("v_and_b32 v4, 15, v1"); A("v_lshlrev_b32 v5, 4, v1"); A("s_mov_b32 s33, s83")
        ln_body(A, "s34", 8, src, dst, f16, " sc1", store_fn, lds_base=102400)
        A.label(L("noln%s" % tag))
    def tdma(inv):
        A("s_barrier"); A("s_mov_b32 s21, s83"); A("s_and_b32 s22, s87, 7")
        A("v_mbcnt_lo_u32_b32 v1, -1, 0"); A("v_mbcnt_hi_u32_b32 v1, -1, v1"); A("v_lshlrev_b32 v1, 4, v1")
        table_dma(A, inv)
    def two_rounds(body, tag):
        A("s_mov_b32 s81, s87")
        A.label(L("tr" + tag))
        tid(); body()
        A("s_add_u32 s81, s81, 192"); A("s_cmp_lt_u32 s81, 256"); A("s_cbranch_scc1 %s" % L("tr" + tag))
    tdma(False)
    gbar(0)
    restore(); ht(4)
    rg_ln("s80", WS_XNH, True, lst, "f"); rsync(0, 8)
    two_rounds(lambda: dft_body(A, False, None, None, "s80", fused=True, pre_ln=True), "f")
    tdma(True)
    fpre, fmain = fft_body(A, L("fft"), fused=True, lds_base=102400, stride=192)
    A("s_mov_b32 s81, s87"); tid(); fpre()
    gbar(1)
    fmain()
    gbar(2)
    two_rounds(lambda: dft_body(A, True, "s80", None, None, fused=True), "i")
    restore(); ht(5)
    A("s_cmp_eq_u32 s101, 1"); A("s_cbranch_scc1 %s" % L("end"))
    rsync(3, 8); rg_ln(WS_X2, WS_XNF + XNF_LAYER, False, None, "a")
    gbar(4)
    restore()
    A("s_mov_b32 s101, 1")
    A("v_mbcnt_lo_u32_b32 v0, -1, 0"); A("v_mbcnt_hi_u32_b32 v0, -1, v0"); A("v_lshlrev_b32 v0, 4, v0")
    A("s_branch %s" % L("bulk"))
    flush_ool()
    A.label(L("fail"))
    A("s_mov_b64 exec, 1"); A("v_mov_b32 v12, 1"); A("v_mov_b32 v13, 48"); A("buffer_atomic_add v12, v13, s[12:15], 0 offen")
    A.label(L("end"))
    A("s_endpgm")
    return k
```

```python
from asmlib import *
from layout import *

N_P1 = 480
N_P5 = 128
N_P2 = 320
N_P3 = FILL_BYTES // 65536
N_P4 = 1


def prep_kernel(extra=None, n_extra=0, skip=0):
    total = N_P2 + N_P1 + N_P3 + N_P4 + N_P5 + n_extra
    k = Kernel("prep_kernel", total, 256, 2048, 96)
    A = k.asm
    A("s_cmp_ge_u32 s2, %d" % total); A("s_cbranch_scc1 Lp_end")
    load_srd(A, 8, KA_WS, SZ_WS); load_srd(A, 12, KA_WQ, SZ_W); load_srd(A, 16, KA_WK, SZ_W)
    load_srd(A, 20, KA_WV, SZ_W); load_srd(A, 24, KA_WO, SZ_W); load_srd(A, 28, KA_MEM0, SZ_MEM0)
    A("v_and_b32 v1, 63, v0")
    A("v_lshrrev_b32 v2, 6, v0")
    A("v_lshrrev_b32 v3, 4, v1")
    A("v_readfirstlane_b32 s33, v2")
    A("v_and_b32 v4, 15, v1")
    A("v_lshlrev_b32 v5, 4, v1")
    A("s_waitcnt lgkmcnt(0)")
    for b, sz in ((8, SZ_WS), (12, SZ_W), (16, SZ_W), (20, SZ_W), (24, SZ_W), (28, SZ_MEM0)):
        fin_srd(A, b, sz)
    A("s_cmp_lt_u32 s2, %d" % N_P2); A("s_cbranch_scc1 Lp_b")
    A("s_sub_u32 s34, s2, %d" % N_P2)
    A("s_cmp_lt_u32 s34, %d" % N_P1); A("s_cbranch_scc1 Lp_pack")
    A("s_sub_u32 s34, s34, %d" % N_P1)
    A("s_cmp_lt_u32 s34, %d" % N_P3); A("s_cbranch_scc1 Lp_fill")
    A("s_sub_u32 s34, s34, %d" % N_P3)
    A("s_cmp_lt_u32 s34, %d" % N_P4); A("s_cbranch_scc1 Lp_m0")
    A("s_sub_u32 s34, s34, %d" % N_P4)
    A("s_cmp_lt_u32 s34, %d" % N_P5); A("s_cbranch_scc1 Lp_wo")
    A("s_sub_u32 s34, s34, %d" % N_P5)
    if extra and not (skip & 16):
        extra(A, 34)
    A("s_branch Lp_end")

    A.label("Lp_m0")
    for r_ in range(4): A("v_mov_b32 v%d, 0" % (8 + r_))
    A("v_lshlrev_b32 v6, 4, v0")
    for i_ in range(ZERO_BYTES // 4096):
        A("s_mov_b32 s37, %d" % (WS_ZERO + i_ * 4096)); A("buffer_store_dwordx4 v[8:11], v6, s[8:11], s37 offen")
    A("s_waitcnt vmcnt(0)")
    A("v_and_b32 v6, 7, v1"); A("v_mul_u32_u24 v6, 1280, v6")
    A("v_lshlrev_b32 v7, 5, v3"); A("v_add_u32 v6, v6, v7")
    A("v_bfe_u32 v7, v1, 3, 1"); A("v_lshlrev_b32 v7, 2, v7"); A("v_add_u32 v6, v6, v7")
    A("s_lshl_b32 s35, s33, 7"); A("v_add_u32 v6, s35, v6")
    A("v_and_b32 v7, 0x200, v5")
    for src, dst in ((6, 8), (4, 7), (5, 6), (8, 5), (7, 4)):
        A("v_bfe_u32 v12, v5, %d, 1" % src); A("v_lshl_or_b32 v7, v12, %d, v7" % dst)
    A("s_lshl_b32 s36, s33, 10"); A("v_add_u32 v7, s36, v7")
    for it in range(3):
        if it == 2:
            A("s_cmp_ge_u32 s33, 2"); A("s_cbranch_scc1 Lp_end")
        for n in range(4):
            A("buffer_load_dword v%d, v6, s[28:31], 0 offen offset:%d" % (8 + n, it * 512 + n * 8))
        A("s_waitcnt vmcnt(0)")
        for n in range(4):
            A("v_min_u32 v%d, -2, v%d" % (8 + n, 8 + n))
        A("s_mov_b32 s37, %d" % (WS_M0 + it * 4096))
        A("buffer_store_dwordx4 v[8:11], v7, s[8:11], s37 offen")
        A("s_waitcnt vmcnt(0)")
    A("s_branch Lp_end")

    A.label("Lp_fill")
    if skip & 4: A("s_branch Lp_end")
    for r in range(4): A("v_mov_b32 v%d, -1" % (8 + r))
    A("v_lshlrev_b32 v6, 4, v0")
    A("s_lshl_b32 s35, s34, 16"); A("s_add_u32 s35, s35, %d" % WS_FILL)
    for i in range(16):
        A("buffer_store_dwordx4 v[8:11], v6, s[8:11], s35 offen")
        A("s_add_u32 s35, s35, 4096")
    A("s_branch Lp_end")

    A.label("Lp_pack")
    if skip & 2: A("s_branch Lp_end")
    A("s_lshl_b32 s35, s34, 2"); A("s_add_u32 s35, s35, s33")
    A("s_and_b32 s37, s35, 31"); A("s_lshr_b32 s35, s35, 5")
    A("s_mul_hi_u32 s38, s35, 0x%x" % ((2 ** 32 + 19) // 20)); A("s_mul_i32 s41, s38, 20"); A("s_sub_u32 s35, s35, s41")
    A("v_lshlrev_b32 v6, 16, v3"); A("v_lshl_add_u32 v6, v4, 4, v6")
    A("s_lshl_b32 s40, s35, 18"); A("s_lshl_b32 s41, s37, 8"); A("s_add_u32 s40, s40, s41")
    A("s_mul_i32 s42, s37, %d" % WQKP_H); A("s_mul_i32 s41, s38, 40960"); A("s_add_u32 s42, s42, s41"); A("s_lshl_b32 s41, s35, 10"); A("s_add_u32 s42, s42, s41"); A("s_add_u32 s42, s42, %d" % WS_WQKP)
    A("s_cmp_eq_u32 s38, 1"); A("s_cbranch_scc1 Lp_packk")
    A("s_cmp_eq_u32 s38, 2"); A("s_cbranch_scc1 Lp_packv")
    for srd, lbl in ((12, None), (16, "Lp_packk"), (20, "Lp_packv")):
        if lbl: A.label(lbl)
        for j in range(8):
            A("s_add_u32 s43, s40, %d" % (j * 8192))
            A("buffer_load_dwordx4 v[%d:%d], v6, s[%d:%d], s43 offen" % (16 + 4 * j, 19 + 4 * j, srd, srd + 3))
        if lbl != "Lp_packv": A("s_branch Lp_pack2")
    A.label("Lp_pack2")
    A("s_mov_b32 s44, 0x05040100"); A("s_mov_b32 s45, 0x07060302")
    A("s_waitcnt vmcnt(0)")
    for t in range(8):
        for r in range(4):
            lo = 16 + 4 * (2 * r) + t // 2; hi = 16 + 4 * (2 * r + 1) + t // 2
            A("v_perm_b32 v%d, v%d, v%d, s%d" % (48 + 4 * t + r, hi, lo, 45 if t & 1 else 44))
    for t in range(8):
        A("s_add_u32 s43, s42, %d" % ((t // 2) * WQKP_W + (t % 2) * 20480))
        A("buffer_store_dwordx4 v[%d:%d], v5, s[8:11], s43 offen" % (48 + 4 * t, 51 + 4 * t))
    A("s_branch Lp_end")

    A.label("Lp_wo")
    if skip & 8: A("s_branch Lp_end")
    from k_ln import ln_body
    load_srd(A, 44, KA_X, SZ_X); A("s_waitcnt lgkmcnt(0)"); fin_srd(A, 44, SZ_X)
    ln_body(A, "s34", 44, 0, WS_XNF, False)
    A("s_branch Lp_end")

    A.label("Lp_b")
    A("s_cmp_ge_u32 s2, 160"); A("s_cselect_b32 s49, 160, 0"); A("s_sub_u32 s35, s2, s49")
    A("s_lshl_b32 s35, s35, 2"); A("s_add_u32 s35, s35, s33")
    A("s_mul_hi_u32 s36, s35, 0x%x" % ((2 ** 32 + 4) // 5)); A("s_mul_i32 s37, s36, 5"); A("s_sub_u32 s37, s35, s37")
    A("s_lshr_b32 s38, s36, 2"); A("s_and_b32 s39, s36, 3")
    A("s_lshl_b32 s41, s37, 4"); A("v_add_u32 v7, s41, v4")
    A("v_lshlrev_b32 v8, 8, v3")
    A("s_mul_i32 s42, s38, 163840"); A("s_lshl_b32 s41, s39, 10"); A("s_add_u32 s42, s42, s41")
    A("s_mov_b32 s44, 0x05040100"); A("s_mov_b32 s45, 0x07060302")
    def perms():
        A("s_waitcnt vmcnt(0)")
        for t in range(8):
            for r in range(4):
                lo = 16 + 4 * (2 * r) + t // 2; hi = 16 + 4 * (2 * r + 1) + t // 2
                A("v_perm_b32 v%d, v%d, v%d, s%d" % (48 + 4 * t + r, hi, lo, 45 if t & 1 else 44))
    A("s_cmp_lg_u32 s49, 0"); A("s_cbranch_scc1 Lp_bc")
    A("v_mul_u32_u24 v6, %d, v3" % (32 * 1280)); A("v_lshl_add_u32 v6, v4, 4, v6")
    A("s_lshl_b32 s40, s38, 6"); A("s_add_u32 s40, s40, s39"); A("s_mul_i32 s40, s40, 2560"); A("s_lshl_b32 s41, s37, 8"); A("s_add_u32 s40, s40, s41")
    for jj in range(8):
        A("s_add_u32 s43, s40, %d" % ((8 * (jj >> 1) + (jj & 1)) * 1280))
        A("buffer_load_dwordx4 v[%d:%d], v6, s[24:27], s43 offen" % (16 + 4 * jj, 19 + 4 * jj))
    A("v_lshrrev_b32 v9, 2, v7"); A("v_lshl_add_u32 v9, v9, 13, v8"); A("v_and_b32 v10, 3, v7"); A("v_lshl_add_u32 v9, v10, 6, v9")
    A("s_add_u32 s47, s42, %d" % WS_WOX); A("s_add_u32 s48, s47, 4096")
    perms()
    for x in range(8):
        A("buffer_store_dwordx4 v[%d:%d], v9, s[8:11], %s offen offset:%d" % (48 + 4 * x, 51 + 4 * x, "s48" if x >= 4 else "s47", (x & 3) * 16))
    A("s_branch Lp_end")
    A.label("Lp_bc")
    A("v_lshrrev_b32 v6, 1, v3"); A("v_lshlrev_b32 v6, 4, v6"); A("v_and_b32 v9, 1, v3"); A("v_add_u32 v6, v6, v9")
    A("v_mul_u32_u24 v6, 2560, v6"); A("v_lshl_add_u32 v6, v4, 4, v6")
    A("s_and_b32 s40, s39, 1"); A("s_lshl_b32 s40, s40, 6"); A("s_lshr_b32 s41, s39, 1"); A("s_lshl_b32 s41, s41, 2"); A("s_add_u32 s40, s40, s41")
    A("s_lshl_b32 s41, s38, 7"); A("s_add_u32 s40, s40, s41"); A("s_mul_i32 s40, s40, 1280"); A("s_lshl_b32 s41, s37, 8"); A("s_add_u32 s40, s40, s41")
    for jj in range(8):
        A("s_add_u32 s43, s40, %d" % ((16 * (jj >> 2) + 8 * (jj & 1) + ((jj >> 1) & 1)) * 1280))
        A("buffer_load_dwordx4 v[%d:%d], v6, s[24:27], s43 offen" % (16 + 4 * jj, 19 + 4 * jj))
    A("v_cmp_le_u32 vcc, 40, v7"); A("v_subrev_u32 v9, 40, v7"); A("v_mov_b32 v11, 0"); A("v_mov_b32 v12, %d" % (20 * 4096))
    A("v_cndmask_b32 v9, v7, v9, vcc"); A("v_cndmask_b32 v11, v11, v12, vcc"); A("v_add_u32 v8, v8, v11")
    A("v_and_b32 v10, 1, v9")
    A("v_lshrrev_b32 v11, 3, v9"); A("v_mul_u32_u24 v11, 20480, v11"); A("v_bfe_u32 v12, v9, 1, 2"); A("v_lshl_add_u32 v11, v12, 6, v11"); A("v_lshl_add_u32 v11, v10, 4, v11")
    A("v_mul_u32_u24 v12, 20480, v12"); A("v_lshl_add_u32 v12, v10, 6, v12"); A("v_add_u32 v12, 16384, v12")
    A("v_cmp_le_u32 vcc, 32, v9"); A("s_nop 1"); A("v_cndmask_b32 v11, v11, v12, vcc"); A("v_add_u32 v8, v8, v11")
    for reg, sa, sb in ((13, 8192, 32), (14, 32, 128), (15, 4096, 16)):
        A("v_mov_b32 v%d, %d" % (reg, sa)); A("v_mov_b32 v12, %d" % sb); A("v_cndmask_b32 v%d, v%d, v12, vcc" % (reg, reg))
    A("s_add_u32 s46, s42, %d" % WS_WOC)
    perms()
    for x in range(8):
        A("v_mov_b32 v%d, v8" % (80 + x))
        for bit, reg in ((4, 13), (2, 14), (1, 15)):
            if x & bit: A("v_add_u32 v%d, v%d, v%d" % (80 + x, 80 + x, reg))
        A("buffer_store_dwordx4 v[%d:%d], v%d, s[8:11], s46 offen" % (48 + 4 * x, 51 + 4 * x, 80 + x))
    A.label("Lp_end")
    A("s_endpgm")
    return k
```

```python
MB = 1 << 20
WS_WQKP = 0
WQKP_H = 491520
WQKP_W = 122880
WS_WOC = 16 * MB
WS_WOX = 22 * MB
WS_XNF = 28 * MB
XNF_LAYER = 3 * MB
WS_KXF = 36 * MB
KV_MAT = 16 * MB
KV_LAYER = 32 * MB
WS_KM = 208 * MB
WS_PARTX = 116 * MB
PARTX_SLOT = 32 * 32 * 1280
WS_X1 = 128 * MB
WS_X2 = 132 * MB
WS_X3 = 136 * MB
WS_FT1 = 140 * MB
WS_GT2 = 141 * MB
WS_WT = 142 * MB
WS_XNH = 146 * MB
WS_XD = 150 * MB
WS_ZF = 156 * MB
WS_M0 = 160 * MB
WS_ZERO = WS_M0 + 65536
WS_BAR2 = WS_ZERO
WS_KVFL = WS_BAR2 + 12 * 4096
WS_CHFL = WS_KVFL + 8192
WS_ARR = WS_CHFL + 8192
ZERO_BYTES = 12 * 4096 + 8192 + 8192 + 16384
assert ZERO_BYTES % 4096 == 0
WS_FILL = 164 * MB
WS_MR = WS_FILL
WS_PART = WS_MR + 262144
PART_H = 4224
PART_T4 = 32 * PART_H
PART_SLOT = PART_T4 + 32768
PART_X = 4 * PART_SLOT
WS_ML = WS_PART + 2 * PART_X
WS_CAL = WS_ML + 49152
WS_FILL_END = (WS_ML + 49152 + 4096 + 65535) // 65536 * 65536
FILL_BYTES = WS_FILL_END - WS_FILL
assert FILL_BYTES % 65536 == 0, FILL_BYTES
WS_DBG = 200 * MB
```

```python
import re

_R = re.compile(r'\b([vas])(\d+)\b|\b([vas])\[(\d+):(\d+)\]|\b(vcc|exec|m0|vcc_lo|vcc_hi|exec_lo|exec_hi|scc)\b')
TRANS = ("v_exp_f32", "v_log_f32", "v_rcp_f32", "v_rsq_f32", "v_sqrt_f32", "v_sin_f32", "v_cos_f32")


def regs_of(op):
    out = []
    for m in _R.finditer(op):
        if m.group(1): k, lo, hi = m.group(1), int(m.group(2)), int(m.group(2))
        elif m.group(3): k, lo, hi = m.group(3), int(m.group(4)), int(m.group(5))
        else:
            out.append(m.group(6).split("_")[0]); continue
        for i in range(lo, hi + 1): out.append(k + str(i))
    return out


class Seq:
    def __init__(self, A):
        self.A = A
        self.pos = 0
        self.cyc = 0
        self.vw = {}
        self.tw = {}
        self.mw = {}
        self.mc = {}
        self.sd = {}
        self.sw = {}
        self.m0 = -99
        self.lp = {}
        self.vp = {}
        self.nl = self.dl = self.nv = self.dv = 0
        self.nops = 0
        self.warm = None
        self.mst = 1
        self.lastm = False
        self.cnt = 0
        self.hoist = False
        self.tailv = 0
        self.hook = None

    def _raw(self, t, cost=4):
        self.A(t); self.pos += 1; self.cyc += cost
        self.tailv = self.tailv + 1 if (t.startswith("v_") and not t.startswith(("v_mfma", "v_smfmac"))) else 0
        if t.startswith("s_waitcnt"): self.lastm = False

    def wait(self, lds=None, vm=None, hoist=False):
        parts = []
        if vm is not None and vm > self.dv:
            n = self.nv - vm; assert n <= 63, n
            parts.append("vmcnt(%d)" % n); self.dv = vm
        if lds is not None and lds > self.dl:
            n = self.nl - lds
            n = min(n, 15)
            assert self.nl - lds <= 15, "too many LDS ops in flight"
            parts.append("lgkmcnt(%d)" % n); self.dl = lds
        if parts:
            t = "s_waitcnt " + " ".join(parts)
            k = self.tailv if (self.hoist and hoist) else 0
            if 0 < k <= 4:
                self.A.lines.insert(len(self.A.lines) - k, "    " + t)
                p0 = self.pos - k
                for d in (self.vw, self.tw, self.sw):
                    for x in d:
                        if d[x] >= p0: d[x] += 1
                self.pos += 1
            else: self._raw(t)

    def wait_lds_all(self): self.wait(lds=self.nl)
    def wait_vm_all(self): self.wait(vm=self.nv)

    def nop(self, n):
        while n > 0:
            k = min(n, 16); self.A("s_nop %d" % (k - 1)); self.pos += k; self.cyc += 4 * k; n -= k; self.tailv = 0

    def label(self, l): self.A.label(l); self.tailv = 0

    def settle(self):
        self._raw("s_waitcnt vmcnt(0) lgkmcnt(0)"); self.dl = self.nl; self.dv = self.nv; self.nop(8)

    def __call__(self, text):
        tok = None
        for t in text.split("\n"):
            t = t.strip()
            if t: tok = self.ins(t)
        return tok

    def ins(self, t):
        if self.hook: self.hook(self.cnt, t)
        self.cnt += 1
        opc, _, rest = t.partition(" ")
        ops = [o.strip() for o in rest.split(",")]
        R = [regs_of(o) for o in ops]
        mfma = opc.startswith("v_mfma") or opc.startswith("v_smfmac")
        valu = opc.startswith("v_") and not mfma
        ds = opc.startswith("ds_")
        vm = opc.startswith("buffer_") or opc.startswith("global_")
        islds = vm and re.search(r'\blds\b', t) is not None
        rd, wr = [], []
        if mfma:
            wr = R[0]; ab = R[1] + R[2]; c = R[3] if opc.startswith("v_mfma") else R[0]
            if opc.startswith("v_smfmac"): ab = ab + R[3]
            rd = ab + c
        elif valu:
            if "swap" in opc: wr = R[0] + R[1]; rd = R[0] + R[1]
            else:
                wr = R[0]; rd = [x for r in R[1:] for x in r]
                if opc.startswith(("v_fmac", "v_writelane")) or "dpp" in opc: rd = rd + R[0]
        elif ds:
            if opc.startswith("ds_read"): wr = R[0]; rd = R[1]
            else: rd = [x for r in R for x in r]
        elif vm:
            if "load" in opc and not islds: wr = R[0]; rd = [x for r in R[1:] for x in r]
            else: rd = [x for r in R for x in r]
        else:
            if opc.startswith(("s_cmp", "s_cbranch", "s_branch", "s_barrier", "s_nop", "s_waitcnt", "s_bitcmp", "s_setprio", "s_sleep")): rd = [x for r in R for x in r]
            else: wr = R[0] if R else []; rd = [x for r in R[1:] for x in r]
        lt = max([self.lp.get(x, 0) for x in rd + wr] + [0]); vt = max([self.vp.get(x, 0) for x in rd + wr] + [0])
        if ds and opc.startswith("ds_read"): lt = max([self.lp.get(x, 0) for x in rd] + [0])
        self.wait(lds=lt or None, vm=vt or None, hoist=mfma)
        need = 0
        def req(p, n):
            nonlocal need
            need = max(need, n - (self.pos - p - 1))
        if mfma:
            for x in rd:
                if x in self.vw: req(self.vw[x], 2)
            for x in ab:
                if x in self.mw: req(self.mw[x][0], 8)
            for x in c:
                if x in self.mw:
                    p, o, d = self.mw[x]
                    if not (o == opc and d == tuple(c)): req(p, 6)
            for x in wr:
                if x in self.mw and x not in c: req(self.mw[x][0], 6)
            if "exec" in self.sw: req(self.sw["exec"], 4)
        if valu or ds or vm:
            for x in rd + wr:
                if x in self.mw: req(self.mw[x][0], 8)
        if valu:
            for x in wr:
                if x in self.mc: req(self.mc[x], 3)
                if x in self.sd: req(self.sd[x], 2)
            if "permlane" in opc or "dpp" in opc:
                for x in (rd if "permlane" in opc else R[1]):
                    if x in self.vw: req(self.vw[x], 2)
            if "readfirstlane" in opc or "readlane" in opc:
                for x in rd:
                    if x in self.vw: req(self.vw[x], 1)
            if opc.replace("_e32", "").replace("_e64", "") not in TRANS:
                for x in rd:
                    if x in self.tw: req(self.tw[x], 1)
            for x in rd:
                if x in self.sw: req(self.sw[x], 4 if "lane" in opc and "perm" not in opc else 2)
        if ds or vm:
            for x in wr:
                if x in self.sd: req(self.sd[x], 1)
            for x in rd:
                if x in self.tw: req(self.tw[x], 1)
        if vm:
            for x in rd:
                if x in self.sw: req(self.sw[x], 5)
            if islds: req(self.m0, 1)
        if need > 0:
            self.nops += need
            if self.warm is not None and need >= 2:
                for _ in range(need): self._raw("v_mov_b32 v%d, v%d" % (self.warm, self.warm))
            else: self.nop(need)
            self.lastm = False
        cost = 4
        if opc.startswith("v_smfmac"): cost = 12
        elif mfma: cost = 8
        elif opc in TRANS or "permlane" in opc: cost = 8
        if mfma and self.lastm: self.pos += self.mst - 1
        self.lastm = mfma
        p = self.pos
        if opc == "s_nop":
            self.A(t); k = int(rest) + 1; self.pos += k; self.cyc += 4 * k; self.tailv = 0; return None
        self._raw(t, cost)
        tok = None
        if mfma:
            for x in wr: self.mw[x] = (p, opc, tuple(wr)); self.vw.pop(x, None); self.tw.pop(x, None)
            for x in c: self.mc[x] = p
        elif valu:
            for x in wr:
                if x[0] in "va" and x != "vcc":
                    self.vw[x] = p; self.mw.pop(x, None)
                    if opc in TRANS: self.tw[x] = p
                    else: self.tw.pop(x, None)
                else: self.sw[x] = p
        elif ds:
            self.nl += 1; tok = self.nl
            for x in wr: self.lp[x] = tok; self.vw.pop(x, None); self.mw.pop(x, None)
        elif vm:
            self.nv += 1; tok = self.nv
            for x in wr: self.vp[x] = tok; self.vw.pop(x, None); self.mw.pop(x, None)
            if "store" in opc and ("x4" in opc or "x3" in opc):
                for x in R[0]: self.sd[x] = p
        else:
            if opc == "s_waitcnt":
                m = re.search(r'vmcnt\((\d+)\)', t)
                if m: self.dv = max(self.dv, self.nv - int(m.group(1)))
                m = re.search(r'lgkmcnt\((\d+)\)', t)
                if m: self.dl = max(self.dl, self.nl - int(m.group(1)))
            for x in wr:
                if x == "m0": self.m0 = p
                self.sw.pop(x, None)
            assert not opc.startswith(("s_load", "s_memtime", "s_memrealtime", "s_buffer")) or True
        return tok


def r4(r): return "v[%d:%d]" % (r, r + 3)
def r2(r): return "v[%d:%d]" % (r, r + 1)


def estimate(lines, show=False):
    t = -4; vf = 0; mf = 0
    for ln in lines:
        ln = ln.strip()
        if not ln or ln.endswith(":") or ln.startswith(";"): continue
        opc = ln.split()[0]
        t += 4
        if opc.startswith(("v_mfma", "v_smfmac")):
            t = max(t, vf, mf); mf = t + 16; vf = t + (12 if opc.startswith("v_smf") else 8)
        elif opc.startswith("v_"):
            t = max(t, vf)
            if opc.startswith("v_pk"): t = max(t, mf)
            vf = t + (8 if (opc in TRANS or "permlane" in opc) else 4)
        elif opc.startswith("buffer_"): t = max(t, mf) + 26
        elif opc == "s_nop": t += 4 * int(ln.split()[1])
        if show: print(t, ln)
    return t + 4
```

```python
import sys
from asmlib import *
from layout import *
from k_prep import prep_kernel
from k_main import main_kernel
from k_fft import prep_extra, N_EXTRA

out = sys.argv[1] if len(sys.argv) > 1 else "dev.s"
P = {}
for kv in sys.argv[2:]:
    kk, val = kv.split("="); P[kk] = int(val)
ks = [prep_kernel(prep_extra, N_EXTRA, 0), main_kernel(P)]
open(out, "w").write(assemble_file(ks, ["prep_kernel", "main_kernel"]))
print("wrote", out)
```

```python
import struct
from asmlib import *
from layout import *
from seq import *
from k_fft import Pool, pr, f2u

OOB = 0x10000000


def fft2(A, L, lds_base, hb):
    TW1, TW2, TW3 = 48, 62, 76
    WV = [92, 104]
    SC = "s[26:27]"
    XR = {}

    def setup():
        for TW, maskbits, N in ((TW1, 255, 2048), (TW2, 31, 256), (TW3, 3, 32)):
            A("v_and_b32 v3, %d, v0" % maskbits); A("v_cvt_f32_u32 v3, v3")
            for q in range(1, 8):
                A("v_mul_f32 v4, 0x%08x, v3" % f2u(-q / N))
                A("v_cos_f32 v%d, v4" % (TW + 2 * (q - 1))); A("v_sin_f32 v%d, v4" % (TW + 2 * (q - 1) + 1))
        A("v_lshlrev_b32 v3, 3, v0")
        A("v_lshrrev_b32 v4, 5, v0"); A("v_mul_u32_u24 v4, 2304, v4")
        A("v_add_u32 v3, %d, v3" % lds_base); A("v_add_u32 v4, %d, v4" % lds_base)
        A("v_and_b32 v5, 31, v0"); A("v_lshl_add_u32 v5, v5, 3, v4")
        A("v_bfe_u32 v6, v0, 2, 3"); A("v_mul_u32_u24 v6, 288, v6"); A("v_add_u32 v6, v6, v4")
        A("v_and_b32 v7, 3, v0"); A("v_lshl_add_u32 v100, v7, 6, v6")
        A("v_lshl_add_u32 v6, v7, 3, v6")
        A("v_and_b32 v101, 0xe0, v0"); A("v_and_b32 v2, 15, v0"); A("v_lshl_add_u32 v101, v2, 1, v101"); A("v_bfe_u32 v2, v0, 4, 1"); A("v_add_u32 v101, v101, v2"); A("v_lshlrev_b32 v101, 3, v101")
        A("v_lshlrev_b32 v1, 2, v0")

    def pre():
        setup()
        A("v_and_b32 v102, 63, v0"); A("v_lshlrev_b32 v102, 4, v102"); A("v_lshlrev_b32 v2, 5, v0")

    def wload(S):
        S("s_lshl_b32 s24, s34, 13"); S("s_add_u32 s24, s24, %d" % WS_WT); S("s_lshl_b32 s25, s35, 13"); S("s_add_u32 s25, s25, %d" % WS_WT)
        for c in range(2):
            S("buffer_load_dwordx4 v[%d:%d], v2, s[8:11], s%d offen sc1" % (WV[c], WV[c] + 3, 24 + c))
            S("buffer_load_dwordx4 v[%d:%d], v2, s[8:11], s%d offen offset:16 sc1" % (WV[c] + 4, WV[c] + 7, 24 + c))

    def column(S, c):
        pool = Pool((8, 112)[c], 20)
        lo = 18432 * c
        def cadd(a, b):
            d = pool.get(); S("v_pk_add_f32 %s, %s, %s" % (pr(d), pr(a), pr(b))); return d
        def csub(a, b):
            d = pool.get(); S("v_pk_add_f32 %s, %s, %s neg_lo:[0,1] neg_hi:[0,1]" % (pr(d), pr(a), pr(b))); return d
        def cadd_rot(a, b, rot, nega=False):
            d = pool.get(); na = 1 if nega else 0
            mods = "neg_lo:[%d,1] neg_hi:[%d,0]" % (na, na) if rot > 0 else "neg_lo:[%d,0] neg_hi:[%d,1]" % (na, na)
            S("v_pk_add_f32 %s, %s, %s op_sel:[0,1] op_sel_hi:[1,0] %s" % (pr(d), pr(a), pr(b), mods)); return d
        def cfma(x, sign, a):
            d = pool.get(); n = 1 if sign < 0 else 0
            S("v_pk_fma_f32 %s, %s, %s, %s neg_lo:[%d,0,0] neg_hi:[%d,0,0]" % (pr(d), pr(x), SC, pr(a), n, n)); return d
        def cfma_rot(x, rot, a):
            d = pool.get()
            mods = "neg_lo:[1,0,0] neg_hi:[0,0,0]" if rot > 0 else "neg_lo:[0,0,0] neg_hi:[1,0,0]"
            S("v_pk_fma_f32 %s, %s, %s, %s op_sel:[1,0,0] op_sel_hi:[0,1,1] %s" % (pr(d), pr(x), SC, pr(a), mods)); return d
        def cmuls(xs, ws, conj):
            ts = []
            for x, w_ in zip(xs, ws):
                t = pool.get(); ts.append(t); S("v_pk_mul_f32 %s, %s, %s op_sel:[0,0] op_sel_hi:[1,0]" % (pr(t), pr(x), pr(w_)))
            mods = "neg_lo:[0,0,0] neg_hi:[1,0,0]" if conj else "neg_lo:[1,0,0] neg_hi:[0,0,0]"
            for x, w_, t in zip(xs, ws, ts):
                S("v_pk_fma_f32 %s, %s, %s, %s op_sel:[1,1,0] op_sel_hi:[0,1,1] %s" % (pr(t), pr(x), pr(w_), pr(t), mods)); pool.put(x)
            return ts
        def radix4(p, sgn):
            s0 = cadd(p[0], p[2]); s1 = csub(p[0], p[2]); s2 = cadd(p[1], p[3]); t = csub(p[1], p[3])
            pool.put(*p)
            r0 = cadd(s0, s2); r2 = csub(s0, s2); r1 = cadd_rot(s1, t, sgn); r3 = cadd_rot(s1, t, -sgn)
            pool.put(s0, s1, s2, t)
            return [r0, r1, r2, r3]
        def radix8(a, sgn):
            u = []; vv = []
            for j in range(4):
                u.append(cadd(a[j], a[j + 4])); vv.append(csub(a[j], a[j + 4])); pool.put(a[j], a[j + 4])
            ev = radix4(u, sgn)
            x1 = cadd_rot(vv[1], vv[1], sgn); x3 = cadd_rot(vv[3], vv[3], sgn, nega=True)
            s0 = cadd_rot(vv[0], vv[2], sgn); s1 = cadd_rot(vv[0], vv[2], -sgn)
            pool.put(*vv)
            s2 = cadd(x1, x3); t = csub(x1, x3); pool.put(x1, x3)
            r0 = cfma(s2, 1, s0); r2 = cfma(s2, -1, s0); r1 = cfma_rot(t, sgn, s1); r3 = cfma_rot(t, -sgn, s1)
            pool.put(s0, s1, s2, t)
            return [ev[0], r0, ev[1], r1, ev[2], r2, ev[3], r3]
        def twid(x, TW, conj): return [x[0]] + cmuls(x[1:], [TW + 2 * q for q in range(7)], conj)
        def wr(x, addr, offs):
            for r, o in zip(x, offs): S("ds_write_b64 v%d, %s offset:%d" % (addr, pr(r), o + lo))
            pool.put(*x)
        def rd(addr, offs):
            x = [pool.get() for _ in offs]
            for r, o in zip(x, offs): S("ds_read_b64 %s, v%d offset:%d" % (pr(r), addr, o + lo))
            return x
        x = [pool.get() for _ in range(8)]
        b0 = 20 + 16 * c
        for j in range(8):
            if j == 7: yield 0
            S("buffer_load_dword v%d, v1, s[8:11], s%d offen offset:%d sc1" % (x[j], b0 + (2 if j >= 4 else 0), (j % 4) * 1024))
            S("buffer_load_dword v%d, v1, s[8:11], s%d offen offset:%d sc1" % (x[j] + 1, b0 + (3 if j >= 4 else 1), (j % 4) * 1024))
        yield 0
        wr(twid(radix8(x, -1), TW1, False), 3, [q * 2304 for q in range(8)])
        yield 1
        x = rd(5, [j * 256 for j in range(8)])
        yield 0
        wr(twid(radix8(x, -1), TW2, False), 5, [q * 288 for q in range(8)]); x = rd(6, [j * 32 for j in range(8)])
        yield 0
        wr(twid(radix8(x, -1), TW3, False), 6, [q * 32 for q in range(8)]); x = rd(100, [e * 8 for e in range(8)])
        yield 0
        y = radix4(x[0:4], -1) + radix4(x[4:8], -1)
        z = []
        for hh in range(2):
            ws = [pool.get() for _ in range(4)]
            for e in range(4):
                S("v_lshlrev_b32 v%d, 16, v%d" % (ws[e], WV[c] + 4 * hh + e)); S("v_and_b32 v%d, 0xffff0000, v%d" % (ws[e] + 1, WV[c] + 4 * hh + e))
            z += cmuls(y[4 * hh:4 * hh + 4], ws, False); pool.put(*ws)
        wr(radix4(z[0:4], 1) + radix4(z[4:8], 1), 100, [e * 8 for e in range(8)]); x = rd(6, [q * 32 for q in range(8)])
        yield 0
        wr(radix8(twid(x, TW3, True), 1), 6, [j * 32 for j in range(8)]); x = rd(5, [q * 288 for q in range(8)])
        yield 0
        wr(radix8(twid(x, TW2, True), 1), 5, [j * 256 for j in range(8)])
        yield 1
        x = rd(3, [q * 2304 for q in range(8)])
        yield 0
        XR[c] = radix8(twid(x, TW1, True), 1)
        yield 0

    def main(dpoll, early, dry=0):
        A("s_cmp_lt_u32 s2, 161"); A("s_cbranch_scc1 %s_go" % L)
        early(); A("s_branch %s_end" % L)
        A.label("%s_go" % L)
        S = Seq(A)
        S("s_mov_b32 s26, 0x%08x" % f2u(0.7071067811865476)); S("s_mov_b32 s27, s26")
        S("s_lshl_b32 s34, s2, 1"); S("s_add_u32 s35, s34, 1")
        S("s_cmp_eq_u32 s2, 0"); S("s_cselect_b32 s35, 320, s35"); S("s_cmp_eq_u32 s2, 160"); S("s_cselect_b32 s34, 1, s34"); S("s_cselect_b32 s35, 1, s35")
        S("s_mul_i32 s21, s101, %d" % XD_LAYER); S("s_add_u32 s21, s21, %d" % WS_XD)
        S("s_lshl_b32 s20, s34, 13"); S("s_add_u32 s20, s20, s21"); S("s_lshl_b32 s36, s35, 13"); S("s_add_u32 s36, s36, s21")
        S("s_add_u32 s21, s20, %d" % (320 * 8192)); S("s_add_u32 s37, s36, %d" % (320 * 8192))
        S("s_cmp_eq_u32 s2, 0"); S("s_cselect_b32 s21, 0x%x, s21" % OOB); S("s_cselect_b32 s37, 0x%x, s37" % OOB)
        S("s_add_u32 s22, s20, 4096"); S("s_add_u32 s23, s21, 4096"); S("s_add_u32 s38, s36, 4096"); S("s_add_u32 s39, s37, 4096")
        if dry:
            S("s_mov_b32 s33, 0"); S("s_cmp_lt_u32 s82, %d" % dry); S("s_cbranch_scc1 %s_body" % L)
            A.label("%s_real" % L)
            S("s_mov_b32 s33, 1")
        wload(S); dpoll(1)
        st = []
        for c in range(2):
            rec = []; cur = []
            for f in column(cur.append, c):
                rec.append((list(cur), f)); del cur[:]
            st.append(rec)
        def mix(comp, mem, gap):
            comp = list(comp)
            while comp or mem:
                if mem: S(mem.pop(0))
                for _ in range(gap if (mem and mem[0].startswith("ds_write")) else 2 if mem else len(comp)):
                    if comp: S(comp.pop(0))
        carry = []
        for n_ in range(len(st[0])):
            (ia, fa), (ib, fb) = st[0][n_], st[1][n_]
            ca = [t for t in ia if t.startswith("v_")]; ma = [t for t in ia if not t.startswith("v_")]
            cb = [t for t in ib if t.startswith("v_")]; mb = [t for t in ib if not t.startswith("v_")]
            mix(ca, carry, 3); mix(cb, ma, 3); carry = mb
            if fa or not ca: mix([], carry, 1)
            if n_ == 0: early(); S("s_waitcnt vmcnt(0)"); dpoll(2)
            hb(n_)
            if n_ == 1 and dry: A.label("%s_body" % L)
            if fa: S.wait_lds_all(); S("s_barrier")
        if dry: S("s_cmp_eq_u32 s33, 0"); S("s_cbranch_scc1 %s_real" % L)
        S("s_mul_i32 s22, s101, %d" % XNF_LAYER); S("s_add_u32 s22, s22, %d" % WS_ZF); S("s_lshl_b32 s21, s2, 14"); S("s_add_u32 s21, s21, s22")
        a, b = XR[0], XR[1]
        S("s_cmp_eq_u32 s2, 0"); S("s_cbranch_scc1 %s_c0" % L)
        for j in range(8):
            S("v_cvt_pk_bf16_f32 v%d, v%d, v%d" % (a[j], a[j], a[j] + 1)); S("v_cvt_pk_bf16_f32 v%d, v%d, v%d" % (a[j] + 1, b[j], b[j] + 1))
        S("s_cmp_eq_u32 s2, 160"); S("s_cbranch_scc1 %s_c1" % L)
        for j in range(8):
            A("buffer_store_dwordx2 %s, v101, s[8:11], s21 offen offset:%d sc1" % (pr(a[j]), 2048 * (j % 2)))
            if j % 2: A("s_add_u32 s21, s21, 4096")
        A("s_branch %s_end" % L)
        A.label("%s_c0" % L)
        for j in range(8): A("v_cvt_pk_bf16_f32 v%d, v%d, v%d" % (a[j], a[j], b[j]))
        A("s_sub_u32 s22, s22, 4")
        A.label("%s_c1" % L)
        for j in range(8):
            A("buffer_store_dword v%d, v101, s[8:11], s22 offen offset:%d sc1" % (a[j], 4 + 2048 * (j % 2)))
            if j % 2: A("s_add_u32 s22, s22, 4096")
        A.label("%s_end" % L)
    return pre, main


def idft_table(S, half, lane, wave):
    S("s_mul_i32 s29, %s, 10240" % wave); S("s_mul_i32 s28, s88, 81920"); S("s_add_u32 s28, s28, s29"); S("s_add_u32 s28, s28, %d" % (WS_GT2 + 40960 * half))
    if half: S("s_add_u32 s29, s29, 40960")
    for f in range(10):
        if f % 4 == 0:
            if f: S("s_add_u32 s29, s29, 4096"); S("s_add_u32 s28, s28, 4096")
            S("s_mov_b32 m0, s29")
        S("buffer_load_dwordx4 %s, s[8:11], s28 offen offset:%d sc1 lds" % (lane, (f % 4) * 1024))


def idft(A, L, lst, fail, spin_max, hb):
    S = Seq(A)
    S("v_lshlrev_b32 v1, 4, v0"); S("v_lshrrev_b32 v3, 4, v0"); S("v_and_b32 v4, 15, v0")
    S("v_lshlrev_b32 v2, 15, v3"); S("v_lshl_add_u32 v2, v4, 4, v2")
    S("s_mul_i32 s24, s101, %d" % XNF_LAYER); S("s_lshl_b32 s25, s89, 8"); S("s_add_u32 s24, s24, s25"); S("s_add_u32 s24, s24, %d" % WS_ZF)
    NZ = 15
    ZR = lambda ks: 64 + 8 * (ks % NZ)
    def zload(ks):
        for hf in range(2):
            S("s_add_u32 s25, s24, %d" % ((8 * ks + hf) * 16384))
            S("buffer_load_dwordx4 %s, v2, s[8:11], s25 offen sc1" % r4(ZR(ks) + 4 * hf))
    N0 = 8
    for ks in range(N0): zload(ks)
    S("s_mul_i32 s29, s89, 40960")
    S("v_mul_u32_u24 v5, 1280, v4"); S("v_lshl_add_u32 v5, v3, 4, v5"); S("v_add_u32 v6, 40960, v1")
    S("s_lshl_b32 s31, s88, 7"); S("s_add_u32 s30, s29, s31"); S("s_add_u32 s31, s30, s80"); S("s_add_u32 s32, s31, 20480"); S("s_add_u32 s33, s30, 20480")
    BUF = [44, 48, 52, 56, 60]; ACC = [[12 + 4 * T for T in range(4)], [28 + 4 * T for T in range(4)]]
    RS = [[ZR(5), ZR(5) + 4], [ZR(6), ZR(6) + 4]]
    seq = [(ks, T) for ks in range(20) for T in range(4)]
    def trd(i):
        if i >= len(seq): return
        ks, T = seq[i]; off = (T * 20 + ks) * 1024
        S("ds_read_b128 %s, v%d offset:%d" % (r4(BUF[i % 5]), 1 if off < 40960 else 6, off % 40960))
    def fix(ks):
        for q in range(2): S("v_swap_b32 v%d, v%d" % (ZR(ks) + 2 + q, ZR(ks) + 4 + q))
    for i in range(4): trd(i)
    hb(13)
    fix(0)
    nxt = N0
    for i, (ks, T) in enumerate(seq):
        if i in (4, 40): hb({4: 14, 40: 15}[i])
        if T == 0 and ks % 2 == 1:
            for _ in range(4):
                if nxt < 20 and nxt - NZ < ks: zload(nxt); nxt += 1
        if i == 40:
            for mm in range(2):
                for pz in range(2): S("buffer_load_dwordx4 %s, v5, s[8:11], %s offen offset:%d sc1" % (r4(RS[mm][pz]), ("s31", "s32")[mm], 64 * pz))
        for m in range(2):
            a = ACC[m][T]
            S("v_mfma_f32_16x16x32_bf16 %s, %s, %s, %s" % (r4(a), r4(BUF[i % 5]), r4(ZR(ks) + 4 * m), "0" if ks == 0 else r4(a)))
            if m == 0: trd(i + 4)
            elif T == 2 and ks < 19: fix(ks + 1)
    assert nxt == 20
    for m in range(2):
        for pz in range(2):
            for q in range(4):
                r = RS[m][pz] + q; a = ACC[m][2 * pz] + 2 * q
                S("v_lshlrev_b32 v8, 16, v%d" % r); S("v_and_b32 v9, 0xffff0000, v%d" % r)
                S("v_pk_add_f32 %s, %s, v[8:9]" % (r2(a), r2(a))); S("v_cvt_pk_bf16_f32 v%d, v%d, v%d" % (r, a, a + 1))
    hb(16)
    A("s_cmp_eq_u32 s101, 1"); A("s_cbranch_scc1 %s" % L("id_out"))
    xs = [[ACC[m][0] + i for i in range(16)] for m in range(2)]
    ST = [124, 128]; TM = [132, 133]
    def xl(regs):
        for op in ("v_permlane16_swap_b32", "v_permlane32_swap_b32"):
            for r, t in zip(regs, TM): S("v_mov_b32 v%d, v%d" % (t, r))
            for r, t in zip(regs, TM): S("%s v%d, v%d" % (op, r, t))
            for r, t in zip(regs, TM): S("v_add_f32 v%d, v%d, v%d" % (r, r, t))
    for m in range(2):
        for pz in range(2):
            for q in range(4):
                r = RS[m][pz] + q; a = ACC[m][2 * pz] + 2 * q
                S("v_lshlrev_b32 v%d, 16, v%d" % (a, r)); S("v_and_b32 v%d, 0xffff0000, v%d" % (a + 1, r))
    for m in range(2):
        S("v_pk_add_f32 %s, %s, %s" % (r2(ST[m]), r2(xs[m][0]), r2(xs[m][2])))
    for i in range(4, 16, 2):
        for m in range(2): S("v_pk_add_f32 %s, %s, %s" % (r2(ST[m]), r2(ST[m]), r2(xs[m][i])))
    for m in range(2): S("v_add_f32 v%d, v%d, v%d" % (ST[m], ST[m], ST[m] + 1))
    xl(ST)
    for m in range(2): S("v_mul_f32 v%d, 0x%08x, v%d" % (ST[m], f2u(1 / 64), ST[m])); S("v_mov_b64 %s, 0" % r2(ST[m] + 2))
    for i in range(0, 16, 2):
        for m in range(2):
            S("v_pk_add_f32 %s, %s, %s op_sel_hi:[1,0] neg_lo:[0,1] neg_hi:[0,1]" % (r2(8 + 2 * m), r2(xs[m][i]), r2(ST[m])))
        for m in range(2):
            S("v_pk_fma_f32 %s, %s, %s, %s" % (r2(ST[m] + 2), r2(8 + 2 * m), r2(8 + 2 * m), r2(ST[m] + 2)))
    for m in range(2): S("v_add_f32 v%d, v%d, v%d" % (ST[m] + 1, ST[m] + 2, ST[m] + 3))
    xl([ST[0] + 1, ST[1] + 1])
    for m in range(2): S("v_min_u32 v%d, -2, v%d" % (ST[m], ST[m])); S("v_min_u32 v%d, -2, v%d" % (ST[m] + 1, ST[m] + 1))
    S("s_lshl_b32 s24, s89, 12"); S("s_add_u32 s24, s24, %d" % WS_STAT); S("s_lshl_b32 s25, s88, 3"); S("s_add_u32 s25, s25, s24")
    S("v_lshlrev_b32 v7, 7, v4"); S("v_lshl_add_u32 v2, v3, 5, v7")
    S("s_mov_b64 exec, 0xffff")
    lst(["buffer_store_dwordx2 %s, v7, s[8:11], s25 offen offset:%d" % (r2(ST[m]), 2048 * m) for m in range(2)], S)
    S("s_mov_b64 exec, -1")
    G = [136, 144]
    S("v_cmp_gt_u32_e64 s[36:37], 3, v3"); S("v_cmp_gt_u32_e64 s[38:39], 2, v3"); S("s_mov_b32 s34, 0")
    hb(17)
    A.label(L("id_poll"))
    S = Seq(A)
    for m in range(2):
        for hf in range(2): S("buffer_load_dwordx4 %s, v2, s[8:11], s24 offen offset:%d sc1" % (r4(G[m] + 4 * hf), 2048 * m + 16 * hf))
    S("s_add_u32 s34, s34, 1"); S("s_cmp_ge_u32 s34, %d" % spin_max); S("s_cbranch_scc1 %s" % fail)
    for m in range(2):
        for i in range(8): S("v_cndmask_b32_e64 v%d, 0, v%d, s[%d:%d]" % (G[m] + i, G[m] + i, 36 + 2 * (i // 4), 37 + 2 * (i // 4)))
    S("v_max3_u32 v8, v%d, v%d, v%d" % (G[0], G[0] + 1, G[0] + 2))
    for i in range(3, 15, 2): S("v_max3_u32 v8, v8, v%d, v%d" % (G[0] + i, G[0] + i + 1))
    S("v_max_u32 v8, v8, v%d" % (G[0] + 15)); S("v_cmp_eq_u32 vcc, -1, v8"); S("s_cbranch_vccnz %s" % L("id_poll"))
    hb(18)
    for m in range(2):
        S("v_add_f32 v%d, v%d, v%d" % (ST[m], G[m], G[m] + 2)); S("v_add_f32 v%d, v%d, v%d" % (ST[m] + 1, G[m] + 4, G[m] + 6)); S("v_add_f32 v%d, v%d, v%d" % (ST[m], ST[m], ST[m] + 1))
    xl(ST)
    for m in range(2):
        S("v_mul_f32 v%d, 0x%08x, v%d" % (ST[m], f2u(0.1), ST[m]))
        S("v_add_f32 v%d, v%d, v%d" % (ST[m] + 1, G[m] + 1, G[m] + 3)); S("v_add_f32 v%d, v%d, v%d" % (ST[m] + 2, G[m] + 5, G[m] + 7)); S("v_add_f32 v%d, v%d, v%d" % (ST[m] + 1, ST[m] + 1, ST[m] + 2))
        for e in range(4):
            S("v_sub_f32 v8, v%d, v%d" % (G[m] + 2 * e, ST[m])); S("v_cndmask_b32_e64 v8, 0, v8, s[%d:%d]" % (36 + 2 * (e // 2), 37 + 2 * (e // 2)))
            S("v_mul_f32 v9, 0x42800000, v8"); S("v_fmac_f32 v%d, v8, v9" % (ST[m] + 1))
    xl([ST[0] + 1, ST[1] + 1])
    for m in range(2):
        S("v_mov_b32 v%d, 0x3727c5ac" % (ST[m] + 2)); S("v_fmac_f32 v%d, 0x3acccccd, v%d" % (ST[m] + 2, ST[m] + 1)); S("v_rsq_f32 v%d, v%d" % (ST[m] + 2, ST[m] + 2))
    S("s_lshl_b32 s25, s88, 11"); S("s_add_u32 s25, s25, s29"); S("s_add_u32 s25, s25, %d" % (WS_XNF + XNF_LAYER)); S("s_add_u32 s24, s25, 20480")
    for m in range(2):
        for i in range(0, 16, 2):
            S("v_pk_add_f32 %s, %s, %s op_sel_hi:[1,0] neg_lo:[0,1] neg_hi:[0,1]" % (r2(xs[m][i]), r2(xs[m][i]), r2(ST[m])))
        for i in range(0, 16, 2):
            S("v_pk_mul_f32 %s, %s, %s op_sel_hi:[1,0]" % (r2(xs[m][i]), r2(xs[m][i]), r2(ST[m] + 2)))
        for i in range(8): S("v_cvt_pk_bf16_f32 v%d, v%d, v%d" % (xs[m][i], xs[m][2 * i], xs[m][2 * i + 1]))
        for pz in range(2): S("buffer_store_dwordx4 %s, v1, s[8:11], %s offen offset:%d sc1" % (r4(xs[m][4 * pz]), ("s25", "s24")[m], 1024 * pz))
    hb(19)
    A.label(L("id_out"))
    for m in range(2):
        for pz in range(2): A("buffer_store_dwordx4 %s, v5, s[16:19], %s offen offset:%d sc1" % (r4(RS[m][pz]), ("s30", "s33")[m], 64 * pz))
    A("s_cmp_eq_u32 s101, 1"); A("s_cbranch_scc1 %s" % L("end"))
    A("s_lshl_b32 s24, s89, 7"); A("s_lshl_b32 s25, s88, 2"); A("s_add_u32 s24, s24, s25"); A("s_add_u32 s24, s24, %d" % (WS_XFL + 8192)); A("v_mov_b32 v8, 1")
    A("s_waitcnt vmcnt(0)"); A("s_mov_b64 exec, 1"); A("buffer_store_dword v8, v1, s[8:11], s24 offen sc1"); A("s_mov_b64 exec, -1")
    hb(20, True)
```

```python
import struct, copy
from asmlib import *
from layout import *
from seq import *


def f2u(x):
    return struct.unpack('<I', struct.pack('<f', x))[0]


C1 = (128 ** -0.5) * 1.4426950408889634
SPIN_MAX = 60000
OOB = 0x10000000

L_K = 0
L_MR = 8192
L_EV = L_MR
L_ML = L_MR + 5120
L_EQ = L_ML + 5120
L_EK = L_EQ + 2304
L_EO = L_ML
L_JUNK = L_EK + 2304
L_FL = L_JUNK + 256
L_W = 24576
NLW = 17
LW_WAVE = NLW * 2048
assert L_FL + 64 <= L_W and L_W + 4 * LW_WAVE <= 163840

L16, IDX, EW, ER, OWA, VW, MRA, PSB, RL, PA8, T0, T1 = range(12)
KRA = L16
AV, AQ, AK = 12, 20, 28
M = [36 + 4 * t for t in range(5)]
LB = [56, 64]
X0, X1 = 72, 76
VT = [80, 84]
WR0 = 88

MATS = {'q': 0, 'k': 1, 'v': 2}
ACC = {'q': AQ, 'k': AK, 'v': AV}
import sys
NV = max([int(a_[3:]) for a_ in sys.argv if a_.startswith("NV=")] + [0])
SEQ = [(m, tl, 0, t) for t in range(5) for m in ('qkv' if t < NV else 'qk') for tl in range(2)] + [(m, tl, 1, t) for m in 'qkv' for t in range(5) for tl in range(2)] + \
      [('v', tl, 0, t) for t in range(NV, 5) for tl in range(2)]
NLOC = 20 + 2 * NV
LDSI = [0, 1] + [i for i in range(60) if i % 3 == 2 and 5 <= i <= 47]
assert len(LDSI) == NLW
_regs = [WR0 + 8 * i for i in range(21)] + [256 + 8 * i for i in range(32)]
WREG = {}
for i in range(60):
    if i not in LDSI: WREG[i] = _regs.pop()
WO = {(T, tp): _regs.pop() for T in range(5) for tp in range(2)}
assert not _regs

FL_ = {0: [], 1: [], 2: [0, 1, 2], 3: [3, 4]}
FR_ = {0: [0, 1], 1: [2], 2: [3], 3: [4]}


def chain_load(A):
    A("s_mul_i32 s29, s22, %d" % WQKP_H); A("s_mul_i32 s28, s21, %d" % WQKP_W); A("s_add_u32 s29, s29, s28")
    A("s_mul_i32 s28, s20, 10240"); A("s_add_u32 s30, s29, s28"); A("s_sub_u32 s31, s29, s28"); A("s_add_u32 s31, s31, 10240")
    A("s_mul_i32 s26, s21, %d" % LW_WAVE); A("s_add_u32 s26, s26, %d" % L_W)
    for i, (m, tl, rem, t) in enumerate(SEQ):
        off = WS_WQKP + MATS[m] * 40960 + tl * 20480 + t * 2048
        A("s_add_u32 s27, s%d, %d" % (31 if rem else 30, off))
        if i in LDSI:
            A("s_add_u32 m0, s26, %d" % (LDSI.index(i) * 2048)); A("s_nop 0")
            for hf in range(2): A("buffer_load_dwordx4 v%d, s[8:11], s27 offen offset:%d lds" % (L16, hf * 1024))
        else:
            for hf in range(2): A("buffer_load_dwordx4 %s, v%d, s[8:11], s27 offen offset:%d" % (ureg(WREG[i] + 4 * hf, 4), L16, hf * 1024))
    A("s_lshl_b32 s28, s20, 2"); A("s_add_u32 s28, s28, s21"); A("s_mul_i32 s28, s28, 20480"); A("s_mul_i32 s29, s22, 163840"); A("s_add_u32 s29, s29, s28")
    for T in range(5):
        A("s_add_u32 s27, s29, %d" % (WS_WOC + T * 4096))
        for u in range(4): A("buffer_load_dwordx4 %s, v%d, s[8:11], s27 offen offset:%d" % (ureg(WO[T, u // 2] + 4 * (u % 2), 4), L16, u * 1024))


def chain_body(A, P, L, ht):
    g, r, i_, p, a, b = range(36, 42)
    A("v_lshrrev_b32 v%d, 8, v0" % g); A("v_bfe_u32 v%d, v0, 4, 4" % r); A("v_bfe_u32 v%d, v0, 4, 3" % i_); A("v_bfe_u32 v%d, v0, 7, 1" % p)
    A("s_mov_b32 s36, 0x00ff00ff"); A("s_mov_b32 s37, 0x00ff00ff"); A("s_not_b64 s[18:19], s[36:37]")
    A("v_mov_b32 v%d, 0x4444" % IDX); A("v_mov_b32 v%d, 0xeeee" % a); A("v_cndmask_b32_e64 v%d, v%d, v%d, s[18:19]" % (IDX, IDX, a))
    A("v_and_b32 v%d, 1, v%d" % (a, g)); A("v_lshlrev_b32 v%d, 2, v%d" % (a, a)); A("v_lshrrev_b32 v%d, 1, v%d" % (b, g)); A("v_add_u32 v%d, v%d, v%d" % (a, a, b))
    A("v_mul_u32_u24 v%d, 288, v%d" % (a, a)); A("v_lshl_add_u32 v%d, v%d, 2, v%d" % (a, r, a)); A("s_lshl_b32 s27, s21, 6"); A("v_add_u32 v%d, s27, v%d" % (EW, a))
    A("v_mul_u32_u24 v%d, 288, v%d" % (a, i_)); A("v_lshl_add_u32 v%d, v%d, 4, v%d" % (ER, g, a))
    A("s_lshr_b32 s27, s21, 1"); A("s_lshl_b32 s27, s27, 10"); A("s_and_b32 s28, s21, 1"); A("s_lshl_b32 s28, s28, 3"); A("s_add_u32 s27, s27, s28"); A("s_add_u32 s27, s27, %d" % L_EO)
    A("v_and_b32 v%d, 0x37f, v0" % a); A("v_add_u32 v%d, s27, v%d" % (OWA, a))
    A("s_mul_i32 s27, s21, %d" % LW_WAVE); A("s_add_u32 s27, s27, %d" % L_W); A("v_add_u32 v%d, s27, v0" % VW)
    A("v_and_b32 v%d, 0x200, v0" % MRA)
    for src, dst in ((6, 8), (4, 7), (5, 6), (8, 5), (7, 4)):
        A("v_bfe_u32 v%d, v0, %d, 1" % (a, src)); A("v_lshl_or_b32 v%d, v%d, %d, v%d" % (MRA, a, dst, MRA))
    A("s_lshl_b32 s27, s21, 13"); A("s_lshl_b32 s28, s22, 5"); A("s_add_u32 s27, s27, s28"); A("s_add_u32 s27, s27, %d" % PART_T4)
    A("v_lshrrev_b32 v%d, 7, v0" % a); A("v_lshlrev_b32 v%d, 10, v%d" % (a, a)); A("v_lshl_add_u32 v%d, v%d, 2, v%d" % (a, i_, a)); A("v_add_u32 v%d, s27, v%d" % (PSB, a))
    A("v_lshrrev_b32 v%d, 7, v0" % a); A("v_mul_u32_u24 v%d, %d, v%d" % (a, PART_H, a)); A("v_lshl_add_u32 v%d, v%d, 4, v%d" % (RL, i_, a))
    A("v_lshlrev_b32 v%d, 3, v0" % PA8)
    A("s_mul_i32 s34, s20, %d" % PART_X); A("s_add_u32 s34, s34, %d" % WS_PART)
    A("s_lshl_b32 s35, s21, 10"); A("s_mul_i32 s27, s22, %d" % PART_H); A("s_add_u32 s35, s35, s27")
    A("s_and_b32 s27, s22, 1"); A("s_bfe_u32 s28, s22, 0x10001"); A("s_bfe_u32 s29, s22, 0x10002")
    A("s_lshl_b32 s30, s27, 2"); A("s_lshl_b32 s31, s28, 1"); A("s_or_b32 s30, s30, s31"); A("s_or_b32 s30, s30, s29"); A("s_and_b32 s31, s22, 0x18"); A("s_or_b32 s30, s30, s31")
    A("s_lshl_b32 s33, s30, 7"); A("s_lshl_b32 s32, s22, 7")
    A("s_cmp_eq_u32 s21, 0"); A("s_cbranch_scc1 %s" % L("c_r0"))
    A("s_lshl_b32 s32, s22, 10"); A("s_add_u32 s32, s32, %d" % PART_T4)
    A("s_lshl_b32 s33, s27, 4"); A("s_lshl_b32 s28, s28, 8"); A("s_or_b32 s33, s33, s28"); A("s_lshl_b32 s29, s29, 7"); A("s_or_b32 s33, s33, s29")
    A("s_bfe_u32 s28, s22, 0x10003"); A("s_lshl_b32 s28, s28, 5"); A("s_or_b32 s33, s33, s28"); A("s_bfe_u32 s28, s22, 0x10004"); A("s_lshl_b32 s28, s28, 9"); A("s_or_b32 s33, s33, s28")
    A("s_add_u32 s33, s33, 4096")
    A.label(L("c_r0"))
    A("s_mul_i32 s41, s20, %d" % (4 * ML_S)); A("s_add_u32 s41, s41, %d" % (WS_ML + ML_O))
    A("s_lshl_b32 s46, s20, 17"); A("s_add_u32 s46, s46, %d" % WS_MR); A("s_add_u32 s46, s46, s25"); A("s_xor_b32 s47, s46, 0x20000")
    A("s_mov_b32 s38, 0x00ff00ff"); A("s_mov_b32 s39, 0"); A("s_mov_b32 s62, 0x00030003"); A("s_mov_b32 s63, 0x00030003")
    A("s_mov_b32 s40, 0x%08x" % f2u(C1)); A("s_movk_i32 s45, 0x3f80")
    A("s_mov_b32 s68, 0x%08x" % f2u(2.0 ** -24)); A("s_mov_b32 s69, 0x%08x" % (f2u(2.0 ** 24) - f2u(2.0 ** -24)))
    A("s_lshl_b32 s51, s22, 7"); A("s_add_u32 s52, s51, %d" % WS_CHFL); A("s_lshl_b32 s51, s22, 8"); A("s_add_u32 s51, s51, %d" % WS_KVFL)
    A("s_mov_b32 s24, 0x3f803f80"); A("s_mov_b32 s25, 0x3f803f80"); A("s_mov_b32 s16, 0x3f003f00"); A("s_mov_b32 s17, 0x3f003f00")
    A("s_lshl_b32 s53, s22, 13"); A("s_add_u32 s53, s53, %d" % WS_KM)
    A("s_lshl_b32 s27, s20, 12"); A("s_add_u32 s53, s53, s27"); A("s_lshl_b32 s27, s20, 2"); A("s_add_u32 s52, s52, s27")
    A("s_cmp_eq_u32 s20, 0"); A("s_cselect_b64 s[42:43], -1, 0"); A("s_cselect_b64 s[66:67], -1, 0")
    A("s_mov_b32 s44, 0"); A("s_mov_b32 s54, 0"); A("s_mov_b32 s71, 0"); A("s_mov_b32 s4, 0x%x" % OOB); A("s_mov_b32 s60, 0x%x" % OOB); A("s_mov_b32 s64, 0x%x" % OOB); A("s_mov_b32 s65, 0x%x" % OOB)
    if P.get("PT", 1):
        A("s_mul_i32 s27, s21, %d" % PART_SLOT); A("s_add_u32 s27, s27, s34"); A("s_mul_i32 s28, s22, %d" % PART_H); A("s_add_u32 s28, s28, s27")
        A("s_mov_b32 exec_hi, 0"); A("buffer_load_dword v%d, v%d, s[8:11], s28 offen sc1" % (T0, PA8))
        A("s_lshl_b32 s28, s22, 10"); A("s_add_u32 s28, s28, s27"); A("s_add_u32 s28, s28, %d" % PART_T4); A("s_mov_b64 exec, 0xff"); A("buffer_load_dword v%d, v%d, s[8:11], s28 offen sc1" % (T0, PA8))
        A("s_mul_i32 s27, s21, %d" % ML_S); A("s_add_u32 s27, s27, s41"); A("s_mul_i32 s28, s22, 160"); A("s_add_u32 s28, s28, s27"); A("s_mov_b64 exec, 3"); A("buffer_load_dword v%d, v%d, s[8:11], s28 offen sc1" % (T0, PA8))
        A("s_mov_b64 exec, -1")
    A("s_waitcnt vmcnt(0) lgkmcnt(0)"); A("s_barrier")
    ht(1)
    A("s_cmp_lg_u32 s23, 0"); A("s_cbranch_scc1 %s" % L("c_slow"))
    for md in (0, 1):
        if md: A.label(L("c_slow"))
        for w in range(1, 4):
            A("s_cmp_eq_u32 s21, %d" % w); A("s_cbranch_scc1 %s" % L("c%d_%d_layer" % (md, w)))
        for w in range(4): chain_wave(A, P, L, ht, w, md)


def chain_wave(A, P, L0, ht, w, md):
    L = lambda x: L0("c%d_%d_%s" % (md, w, x))
    sc = " sc1" if md else ""
    ool = []
    ST = P.get("STAMP") and not md
    TR = ST and "TS" in P
    SOLO = P.get("SOLO")

    def stamp(S, i):
        if ST and not TR: S("%s s[%d:%d]" % ("s_memrealtime" if P.get("RAW") else "s_memtime", 72 + 2 * i, 73 + 2 * i))
    def hook(n, t):
        k_, r_ = divmod(n - P["TS"], P.get("TD", 16))
        if r_ == 0 and 0 <= k_ <= 8: A("s_memtime s[%d:%d]" % (72 + 2 * k_, 73 + 2 * k_)); S.tailv = 0
        if P.get("LIST") == w + 1: print(n, estimate(A.lines[top0:]), t)
    def br(t): return "s_nop 0" if SOLO else t

    def smf(S, acc, a_, b_): S("v_smfmac_f32_16x16x64_bf16 %s, %s, %s, v%d" % (r4(acc), r4(a_), ureg(b_, 8), IDX))
    def mf32(S, acc, a_, b_, c): S("v_mfma_f32_16x16x32_bf16 %s, %s, %s, %s" % (r4(acc), ureg(a_, 4), ureg(b_, 4), c if isinstance(c, str) else r4(c)))
    def mf16(S, acc, a_, b_, c): S("v_mfma_f32_16x16x16_bf16 %s, %s, %s, %s" % (r4(acc), r2(a_), r2(b_), c if isinstance(c, str) else r4(c)))
    def rd(S, dst, areg, off): return S("ds_read_b128 %s, v%d offset:%d" % (r4(dst), areg, off))
    def zero(S, q): S("v_mov_b64 %s, 0" % r2(q)); S("v_mov_b64 %s, 0" % r2(q + 2))
    def zitems(S, q): return [lambda r=r: S("v_mov_b64 %s, 0" % r2(r)) for r in (q, q + 2)]
    def cvt(d, a_, b_): return "v_cvt_pk_bf16_f32 v%d, v%d, v%d" % (d, a_, b_)
    def ror(d, s_): return "v_mov_b32_dpp v%d, v%d row_ror:8 row_mask:0xf bank_mask:0xf" % (d, s_)
    def newseq():
        S = Seq(A); S.warm = VW; S.mst = P.get("MST", 3); S.hoist = True; return S
    def idle(S, n):
        while n > 0:
            S("v_mov_b32 v%d, v%d" % (VW, VW)); n -= 1
            if n >= 2: S("s_nop 1"); n -= 2

    def pub_st(E):
        E("buffer_store_dwordx4 %s, v%d, s[8:11], s4 offen offset:%d sc1" % (r4(X1), L16, 1024 * w)); E("s_mov_b32 s4, 0x%x" % OOB)
    def pub_addr(E): E("s_lshl_b32 s4, s44, 18"); E("s_add_u32 s4, s4, s53")

    def dma(S, fr, sa, lds, fl=" sc1"):
        tok = None
        for i, f in enumerate(fr):
            blk = f // 4
            if i == 0 or f % 4 == 0:
                S("s_mov_b32 m0, %d" % (lds + blk * 4096))
                if blk: S("s_add_u32 s59, %s, %d" % (sa, blk * 4096))
            tok = S("buffer_load_dwordx4 v%d, s[8:11], %s offen offset:%d%s lds" % (L16, "s59" if blk else sa, 1024 * (f % 4), fl))
        return tok

    def lw_read(S, n):
        b = LB[n % 2]
        return [lambda: rd(S, b, VW, n * 2048), lambda: rd(S, b + 4, VW, n * 2048 + 1024)]

    def drain(fl):
        while fl: fl.pop(0)()

    def kv_addr(S, dst, ds, extra=0):
        S("s_and_b32 %s, s44, 63" % dst)
        if ds: S("s_add_u32 %s, %s, %d" % (dst, dst, ds)); S("s_min_u32 %s, %s, 63" % (dst, dst))
        S("s_lshl_b32 %s, %s, 18" % (dst, dst)); S("s_add_u32 %s, %s, s50" % (dst, dst))
        if extra: S("s_add_u32 %s, %s, %d" % (dst, dst, extra))

    def kv_prep(S, d):
        kv_addr(S, "s26", d, 2048 * w); S("s_add_u32 s3, s26, %d" % KV_MAT)
    def k_fetch(S):
        S("s_mov_b32 m0, %d" % (L_K + 2048 * w))
        for j in range(2): S("buffer_load_dwordx4 v%d, s[8:11], s26 offen offset:%d sc1 lds" % (L16, 1024 * j))
    def vt_fetch(S):
        for j in range(2): S("buffer_load_dwordx4 %s, v%d, s[8:11], s3 offen offset:%d sc1" % (r4(VT[j]), L16, 1024 * j))

    def post(S, acc, off, scale=False):
        it = []
        for tl in range(2):
            b = acc + 4 * tl
            it += ["v_permlane32_swap_b32 v%d, v%d" % (b, b + 1), "v_permlane32_swap_b32 v%d, v%d" % (b + 2, b + 3)]
        for tl in range(2):
            b = acc + 4 * tl
            it += ["v_add_f32 v%d, v%d, v%d" % (b, b, b + 1), "v_add_f32 v%d, v%d, v%d" % (b + 2, b + 2, b + 3)]
        if scale: it += ["v_mul_f32 v%d, s40, v%d" % (r, r) for r in (acc, acc + 4, acc + 2, acc + 6)]
        it += [cvt(acc, acc, acc + 4), cvt(acc + 1, acc + 2, acc + 6)]
        wr = ["ds_write_b32 v%d, v%d offset:%d" % (EW, acc, off), "ds_write_b32 v%d, v%d offset:%d" % (EW, acc + 1, off + 576)]
        return [lambda t=t: S(t) for t in it], [lambda t=t: S(t) for t in wr]

    def spin_count(S_, lim=SPIN_MAX):
        S_("s_add_u32 s30, s30, 1"); S_("s_cmp_ge_u32 s30, %d" % lim); S_("s_cbranch_scc1 %s" % L0("fail"))

    def kv_wait(S, lab, need):
        S("s_add_u32 s27, s44, %d" % need); S("s_or_b32 s28, s44, 63"); S("s_add_u32 s28, s28, 1"); S("s_min_u32 s27, s27, s28")
        S("s_cmp_lt_u32 s54, s27"); S("s_cbranch_scc1 %s" % L(lab))
        S.label(L(lab + "_r"))
        def blk():
            A.label(L(lab))
            A("s_mov_b32 s30, 0")
            A.label(L(lab + "_l"))
            A("s_waitcnt lgkmcnt(0)"); A("s_mov_b64 exec, 3")
            A("buffer_load_dword v%d, v%d, s[8:11], s51 offen sc1" % (T1, PA8)); A("s_waitcnt vmcnt(0)"); A("s_mov_b64 exec, -1")
            A("v_readlane_b32 s54, v%d, 0" % T1); A("v_readlane_b32 s28, v%d, 1" % T1); A("s_nop 3"); A("s_min_u32 s54, s54, s28")
            A("s_cmp_ge_u32 s54, s27"); A("s_cbranch_scc1 %s" % L(lab + "_r"))
            A("s_sleep 1"); spin_count(A); A("s_branch %s" % L(lab + "_l"))
        ool.append(blk)

    def ready(S):
        for n in range(2): drain(lw_read(S, n))
        for q in (AV, AV + 4, AQ, AQ + 4, AK, AK + 4): zero(S, q)

    CL3 = P.get("CLP", 3) == 3
    CLP = 0 if CL3 else P.get("CLP", 3)
    cw = w - 2 if CLP else w
    Q = M[4] if (CLP and w >= 2) else X0
    def clear_prep(S):
        S("v_mov_b64 %s, -1" % r2(Q)); S("v_mov_b64 %s, -1" % r2(Q + 2))
        S("s_add_u32 s28, s44, 3"); S("s_and_b32 s29, s28, 3"); S("s_mul_i32 s31, s22, 160")
        if cw in (0, 1):
            S("s_mul_i32 s28, s29, %d" % PART_SLOT); S("s_add_u32 s28, s28, s34"); S("s_add_u32 s64, s28, s35")
            if CLP: S("s_sub_u32 s64, s64, 2048")
        if cw == 0: S("s_mul_i32 s65, s29, %d" % ML_S); S("s_add_u32 s65, s65, s41"); S("s_add_u32 s65, s65, s31")
        if cw == 1: S("s_lshl_b32 s65, s22, 10"); S("s_add_u32 s65, s65, s28"); S("s_add_u32 s65, s65, %d" % PART_T4)
        if w == 0: S("s_lshl_b32 s60, s29, 15"); S("s_add_u32 s60, s60, s47"); S("s_add_u32 s60, s60, s31")
    def clears(S):
        for j in range(cw, cw + 2): S("buffer_store_dwordx4 %s, v%d, s[8:11], s64 offen offset:%d%s" % (r4(Q), L16, j * 1024, sc))
        if cw == 0: S("s_mov_b64 exec, 0x3ff")
        S("buffer_store_dwordx4 %s, v%d, s[8:11], s65 offen%s" % (r4(Q), L16, sc))
        if cw == 0: S("s_mov_b64 exec, -1")
        S("s_mov_b32 s65, 0x%x" % OOB); S("s_mov_b32 s64, 0x%x" % OOB)
    def m_clear(S):
        S("s_mov_b64 exec, 0x3ff")
        S("buffer_store_dwordx4 %s, v%d, s[8:11], s60 offen sc1" % (r4(Q), L16))
        S("s_mov_b64 exec, -1"); S("s_mov_b32 s60, 0x%x" % OOB)

    def window(S):
        p0 = pw0; red = w < 2; tag = "w"
        FLn, RG, U1, LD, PG, KD, CD = P.get("FL", 44), P.get("RG", 24), P.get("U1", 8), P.get("LD", 56), P.get("PG2", 12), P.get("KD", 84), P.get("CD", 0)
        NS, NA, CP = P.get("NS", 2), P.get("NA", 3), P.get("CP", 0)
        nxt = ["s_add_u32 s27, s44, 1", "s_and_b32 s27, s27, 3", "s_mul_i32 s48, s27, %d" % ML_S, "s_add_u32 s48, s48, s41", "s_lshl_b32 s27, s27, 15", "s_add_u32 s49, s27, s47"]
        if not red:
            for t_ in nxt: S(t_)
        if red:
            NL = 4 if w == 0 else 1
            SETS = [[M[1], M[2], M[3], M[4]], [AV, AV + 4, AQ, AQ + 4], [LB[0], LB[0] + 4, LB[1], LB[1] + 4]][:NS] if w == 0 else [[M[1 + i]] for i in range(NS)]
            SEL, D, X = X0, AK, AK + 4
            su = []
            if w == 0:
                su += ["v_and_b32 v%d, 16, v%d" % (X, L16), "v_bfe_u32 v%d, v%d, 5, 2" % (X + 1, L16)]
            else:
                su += ["v_bfe_u32 v%d, v%d, 4, 1" % (X + 2, L16), "v_bfe_u32 v%d, v%d, 7, 1" % (X + 1, L16), "v_lshl_add_u32 v%d, v%d, 1, v%d" % (X + 1, X + 1, X + 2),
                       "v_bfe_u32 v%d, v%d, 6, 1" % (X, L16), "v_lshlrev_b32 v%d, 4, v%d" % (X, X)]
            su += ["v_lshlrev_b32_e64 v%d, v%d, s45" % (X, X)]
            MK = ("s[64:65]", "vcc")
            su += ["v_cmp_eq_u32_e64 %s, %d, v%d" % (MK[q & 1], q, X + 1) for q in range(2)] + nxt[:2]
            su += ["v_cndmask_b32_e64 v%d, 0, v%d, %s" % (SEL + q, X, MK[q & 1]) for q in range(2)]
            su += ["v_cmp_eq_u32_e64 %s, %d, v%d" % (MK[q & 1], q, X + 1) for q in range(2, 4)] + nxt[2:4]
            su += ["v_cndmask_b32_e64 v%d, 0, v%d, %s" % (SEL + q, X, MK[q & 1]) for q in range(2, 4)] + nxt[4:]
            if w == 0:
                su += ["v_bfe_u32 v%d, v%d, 4, 3" % (T1, L16), "v_lshlrev_b32 v%d, 3, v%d" % (T1, T1), "v_lshrrev_b32 v%d, 8, v%d" % (X, L16), "v_lshl_add_u32 v%d, v%d, 6, v%d" % (T1, X, T1)]
            else:
                su += ["v_bfe_u32 v%d, v%d, 8, 1" % (X, L16), "v_lshlrev_b32 v%d, 6, v%d" % (T1, X), "v_lshl_add_u32 v%d, v%d, 3, v%d" % (T1, X + 2, T1),
                       "v_lshrrev_b32 v%d, 9, v%d" % (X + 1, L16), "v_lshl_add_u32 v%d, v%d, 2, v%d" % (T1, X + 1, T1)]
            su += ["s_add_u32 s56, s27, s46", "s_add_u32 s56, s56, s33", "s_add_u32 s58, s48, s33"]
            def gap(n):
                while n > 0 and su: S(su.pop(0)); n -= 1
                idle(S, n)
            def issue(E, B):
                for j in range(NL): E("buffer_load_dwordx4 %s, v%d, s[8:11], %s offen sc1" % (r4(B[j]), RL if w == 0 else L16, ("s43", "s61", "s100", "s101")[j]))
            gap(FLn + (P.get("F1", 4) if w else 0) - (S.pos - p0))
            for k_, B in enumerate(SETS):
                if k_: gap(RG + (P.get("R1", 14) if w else 0))
                issue(S, B)
            gap(max(U1, len(su)))
            def hint(E, B):
                if w == 0: E("v_max3_u32 v%d, v%d, v%d, v%d" % (X, B[0], B[1], B[2])); E("v_max_u32 v%d, v%d, v%d" % (X, X, B[3])); E("v_cmp_eq_u32 vcc, -1, v%d" % X)
                else: E("v_cmp_eq_u32 vcc, -1, v%d" % B[0])
            def fold(E):
                if w == 0:
                    for q in range(4): E("v_add_f32_dpp v%d, v%d, v%d row_ror:8 row_mask:0xf bank_mask:0xf" % (D + q, D + q, D + q))
                    E("v_cmp_u_f32 vcc, v%d, v%d" % (D, D))
                    E(cvt(D, D, D + 1)); E(cvt(D + 1, D + 2, D + 3))
                else:
                    for sh in (8, 4, 2):
                        for q in range(2): E("v_add_f32_dpp v%d, v%d, v%d row_ror:%d row_mask:0xf bank_mask:0xf" % (D + q, D + q, D + q, sh))
                    E("v_cmp_u_f32 vcc, v%d, v%d" % (D, D))
                    E(cvt(D, D, D + 1))
            op = "buffer_store_dwordx2 %s" % r2(D) if w == 0 else "buffer_store_dword v%d" % D
            def publish(E):
                E("s_mov_b64 exec, %s" % ("s[38:39]" if w == 0 else "s[62:63]"))
                E("%s, v%d, s[8:11], s58 offen%s" % (op, T1, sc))
            for j in range(NL): mf32(S, D, SEL, SETS[0][j], "0" if j == 0 else D)
            hint(S, SETS[0]); S(br("s_cbranch_vccnz %s" % L(tag + "rb_i0")))
            fold(S); S(br("s_cbranch_vccnz %s" % L(tag + "rb_e0")))
            publish(S)
            def blk():
                A.label(L(tag + "rb_l"))
                for k_, B in enumerate(SETS):
                    E = Seq(A)
                    E("s_waitcnt vmcnt(%d)" % (NL * NS - NL))
                    for j in range(NL): mf32(E, D, SEL, B[j], "0" if j == 0 else D)
                    hint(E, B); E("s_cbranch_vccz %s" % L(tag + "rb_x%d" % k_))
                    A.label(L(tag + "rb_i%d" % k_))
                    issue(A, B)
                    if ST: A("s_add_u32 s99, s99, 1")
                A("s_add_u32 s71, s71, 1"); A("s_cmp_lt_u32 s71, %d" % (4 * SPIN_MAX)); A("s_cbranch_scc1 %s" % L(tag + "rb_l")); A("s_branch %s" % L0("fail"))
                for k_, B in enumerate(SETS):
                    A.label(L(tag + "rb_x%d" % k_))
                    E = Seq(A); E("s_nop %d" % (3 if w == 0 else 5)); fold(E); A("s_cbranch_vccz %s" % L(tag + "rb_n"))
                    A.label(L(tag + "rb_e%d" % k_))
                    allr = [b + i for b in B for i in range(4)]
                    A("v_max3_u32 v%d, v%d, v%d, v%d" % (X, allr[0], allr[1], allr[2]))
                    for i in range(3, len(allr) - 1, 2): A("v_max3_u32 v%d, v%d, v%d, v%d" % (X, X, allr[i], allr[i + 1]))
                    A("v_max_u32 v%d, v%d, v%d" % (X, X, allr[-1])); A("v_cmp_eq_u32 vcc, -1, v%d" % X)
                    A("s_cbranch_vccnz %s" % L(tag + "rb_i%d" % k_))
                    A("v_min_u32 v%d, -2, v%d" % (D, D)); A("v_min_u32 v%d, -2, v%d" % (D + 1, D + 1))
                    if k_ < NS - 1: A("s_branch %s" % L(tag + "rb_n"))
                A.label(L(tag + "rb_n"))
                publish(A)
                A("s_branch %s" % L(tag + "rb_d"))
            ool.append(blk)
            S.label(L(tag + "rb_d"))
        else:
            ready(S)
            if CLP: clear_prep(S)
        stamp(S, 7)
        S("s_barrier")
        p0 = S.pos
        if CLP == 1 and w >= 2: clears(S)
        if red:
            SCD = P.get("SCD", 0)
            if not SCD and not (P.get("NOS1") == w + 1): S("%s, v%d, s[8:11], s56 offen sc1" % (op, T1))
            S("s_mov_b64 exec, -1")
            if P.get("ACK") and ST:
                S("s_memtime s[28:29]"); S("s_waitcnt vmcnt(0)"); S("s_memtime s[30:31]"); S("s_waitcnt lgkmcnt(0)"); S("s_sub_u32 s28, s30, s28"); S("s_add_u32 s99, s99, s28")
            S("s_waitcnt vmcnt(%d)" % (1 if SCD else 2))
        stamp_acc(S)
        if red: ready(S)
        kv_prep(S, 2); pub_addr(S)
        if w == 0 or (w == 1 and not CLP): clear_prep(S)
        def kvcheck():
            S("ds_read_b64 %s, v%d offset:%d" % (r2(M[0]), L16, L_FL))
            S("v_min_u32 v%d, v%d, v%d" % (M[0], M[0], M[0] + 1)); S("v_readfirstlane_b32 s28, v%d" % M[0]); S("s_nop 0"); S("s_max_u32 s54, s54, s28")
            kv_wait(S, tag + "kw", 3)
        fr = FL_[w]
        f1 = None
        if fr:
            S.nop(LD - (S.pos - p0))
            f1 = dma(S, fr, "s48", L_ML)
            for _ in range(NA - 1):
                S.nop(PG); dma(S, fr, "s48", L_ML)
        if red and SCD:
            S.nop(SCD - (S.pos - p0))
            S("s_mov_b64 exec, %s" % ("s[38:39]" if w == 0 else "s[62:63]")); S("%s, v%d, s[8:11], s56 offen sc1" % (op, T1)); S("s_mov_b64 exec, -1")
        if w == 1: kvcheck()
        if CLP == 2 and w >= 2: clears(S)
        if CL3 and w < 2:
            S.nop(P.get("CD", 96) - (S.pos - p0)); clears(S)
        S("s_add_u32 s44, s44, 1"); S("s_mov_b32 s70, 0")
        S.wait(lds=S.nl)
        if f1: A.lines[topw] = "    s_waitcnt vmcnt(%d)" % (S.nv - f1)
        S("s_branch %s" % L("top"))

    def stamp_acc(S):
        if not ST: return
        S("s_waitcnt lgkmcnt(0)")
        if P.get("RAW") and w == P["RAW"] - 1:
            for i in range(9): S("v_writelane_b32 v%d, s%d, %d" % (T0, 72 + 2 * i, i))
            S("v_writelane_b32 v%d, s98, 9" % T0); S("v_writelane_b32 v%d, s99, 10" % T0)
            S("s_lshl_b32 s27, s20, 5"); S("s_add_u32 s27, s27, s22"); S("s_lshl_b32 s27, s27, 7"); S("s_add_u32 s27, s27, s44"); S("s_lshl_b32 s27, s27, 8"); S("s_add_u32 s27, s27, %d" % (WS_DBG + (5 << 20)))
            S("s_mov_b64 exec, 0x7ff"); S("buffer_store_dword v%d, v%d, s[8:11], s27 offen" % (T0, L16)); S("s_mov_b64 exec, -1")
        if TR:
            for i in range(8): S("s_sub_u32 s27, s%d, s%d" % (74 + 2 * i, 72 + 2 * i)); S("s_add_u32 s%d, s%d, s27" % (90 + i, 90 + i))
        else:
            for i in range(7): S("s_sub_u32 s27, s%d, s%d" % (74 + 2 * i, 72 + 2 * i)); S("s_add_u32 s%d, s%d, s27" % (90 + i, 90 + i))
            S("s_sub_u32 s27, s72, s88"); S("s_add_u32 s97, s97, s27"); S("s_mov_b32 s88, s86")

    A.label(L("layer"))
    S = Seq(A)
    S("s_lshr_b32 s27, s44, 6"); S("s_mul_i32 s50, s27, %d" % KV_LAYER); S("s_lshl_b32 s27, s22, 13"); S("s_add_u32 s50, s50, s27"); S("s_add_u32 s50, s50, %d" % WS_KXF)
    S("s_barrier")
    S("s_mov_b32 s26, 0x%x" % (OOB + 65536)); S("s_mov_b32 s3, s26")
    S("s_mul_i32 s27, s20, 5120"); S("s_add_u32 s48, s27, %d" % WS_M0); S("s_sub_u32 s49, %d, s27" % (WS_M0 + 5120))
    dma(S, FL_[w], "s48", L_ML)
    pass
    ready(S); S("s_mov_b32 s70, 0"); S.wait(lds=S.nl, vm=S.nv)
    if ST:
        for i in range(10): S("s_mov_b32 s%d, 0" % (90 + i))
        S("%s s[72:73]" % ("s_memrealtime" if P.get("RAW") else "s_memtime")); S("s_waitcnt lgkmcnt(0)")
        for i in range(1, 9): S("s_mov_b32 s%d, s72" % (72 + 2 * i))

    A.label(L("top"))
    S = newseq(); top0 = len(A.lines)
    if TR: S.hook = hook
    topw = len(A.lines); A("s_nop 0")
    stamp(S, 0)
    S("s_barrier")
    stamp(S, 1)
    for t in range(5): rd(S, M[t], MRA, L_ML + 1024 * t)
    R0 = P.get("R0", 0)
    if not R0: rtok = dma(S, FR_[w], "s49", L_MR)
    S.label(L("lr_r"))
    fl = []
    fv = []

    def step(i):
        m, tl, rem, t = SEQ[i]
        if i in LDSI:
            n = LDSI.index(i); smf(S, ACC[m] + 4 * tl, M[t], LB[n % 2])
            if n + 2 < NLW: fl[0:0] = lw_read(S, n + 2)
        else: smf(S, ACC[m] + 4 * tl, M[t], WREG[i])

    def fill(nl, nv):
        for _ in range(nl):
            if fl: fl.pop(0)()
        for _ in range(nv):
            if fv: fv.pop(0)()

    def steps(lo, hi, nl=1, nv=1):
        for i in range(lo, hi):
            step(i); fill(nl, nv)

    def I(t): return lambda: S(t)
    def R(dst, areg, off): return lambda: rd(S, dst, areg, off)
    def reread(lab, fr, sa, lds, quads, peek, cnt, redo):
        def blk():
            A.label(L(lab))
            A("s_mov_b32 s30, 0")
            A.label(L(lab + "_l"))
            E = Seq(A); E("s_waitcnt lgkmcnt(0)")
            if ST: E("s_add_u32 s98, s98, %d" % cnt)
            if fr:
                E("s_and_b32 s27, s30, 1"); E("s_cbranch_scc%d %s" % (0 if redo else 1, L(lab + "_n"))); E("s_waitcnt vmcnt(%d)" % len(fr)); dma(E, fr, sa, lds)
                A.label(L(lab + "_n"))
            for t in quads: rd(E, M[t], MRA, lds + 1024 * t)
            if peek: E("ds_read_b32 v%d, v%d offset:%d" % (T1, MRA, lds + 4096))
            E("v_max3_u32 v%d, v%d, v%d, v%d" % (T0, M[0], M[1], M[2])); E("v_max3_u32 v%d, v%d, v%d, v%d" % (T0, T0, M[3], T1 if peek else M[4]))
            E("v_cmp_eq_u32 vcc, -1, v%d" % T0); E("s_cbranch_vccz %s" % L(lab + "_d"))
            spin_count(E, 8 * SPIN_MAX); E("s_branch %s" % L(lab + "_l"))
            A.label(L(lab + "_d"))
            if redo:
                ready(E); E("s_waitcnt lgkmcnt(0)")
                if fr: E("s_waitcnt vmcnt(0)") if False else None
            E("s_branch %s" % L(lab + "_r"))
        ool.append(blk)
    HP = P.get("HP", 8)
    fv += [I("s_and_b32 s55, s44, 3\ns_mul_i32 s55, s55, %d" % PART_SLOT), I("s_add_u32 s55, s55, s34\ns_add_u32 s56, s55, s35"), I("s_and_b32 s57, s44, 63")]
    if w < 2: fv += [I("s_add_u32 s43, s55, s32")]
    if w == 0: fv += [I("s_add_u32 s61, s43, %d\ns_add_u32 s100, s43, %d" % (8 * PART_H, 16 * PART_H)), I("s_add_u32 s101, s43, %d" % (24 * PART_H))]
    if w == 1: fv += [I("s_sub_u32 s27, s57, %d\ns_max_i32 s27, s27, 0" % 1), I("s_lshl_b64 s[28:29], 1, s27\ns_lshl_b32 s27, s27, 7"), I("s_sub_u32 s31, s52, s27")]
    steps(0, HP); drain(fv)
    late = [I("s_sub_u32 s27, %s, %d\ns_mov_b32 m0, %d" % ("s3" if w == 2 else "s26", 2048 * w, L_JUNK))] if w >= 2 else []
    fv += [I("v_max3_u32 v%d, v%d, v%d, v%d" % (T0, M[0], M[1], M[2])), I("v_max3_u32 v%d, v%d, v%d, v%d" % (T0, T0, M[3], M[4])), I("v_cmp_eq_u32 vcc, -1, v%d" % T0), I(br("s_cbranch_vccnz %s" % L("lr")))]
    reread("lr", FL_[w], "s48", L_ML, range(5), False, 0x10000, True)
    NLA = NLOC - P.get("RA", 4)
    assert NLOC - NLA in (4, 8)
    if R0:
        steps(HP, R0); rtok = dma(S, FR_[w], "s49", L_MR); steps(R0, NLA)
    else: steps(HP, NLA)
    drain(fl); drain(fv)
    def slow_ops():
        pub_st(S)
        if w < 2 and not CLP and not CL3: clears(S)
        if w == 0: m_clear(S)
        if w >= 2:
            S("buffer_load_dword v%d, s[8:11], s27 offen sc1 lds" % PA8)
        if w == 1:
            S("s_mov_b32 m0, %d" % L_FL)
            S("s_mov_b64 exec, 3"); S("buffer_load_dword v%d, s[8:11], s51 offen sc1 lds" % PA8)
            S("s_mov_b64 exec, s[28:29]"); S("buffer_store_dword v%d, v%d, s[8:11], s31 offen sc1" % (PA8, PA8)); S("s_mov_b64 exec, -1")
    stamp(S, 2)
    S.wait(vm=rtok); S("s_barrier")
    stamp(S, 3)
    if NLOC - NLA == 4:
        for t in range(4): rd(S, M[t], MRA, L_MR + 1024 * t)
        S("ds_read_b32 v%d, v%d offset:%d" % (T1, MRA, L_MR + 4096))
        steps(NLA, NLOC - 1)
        S("v_max3_u32 v%d, v%d, v%d, v%d" % (T0, M[0], M[1], M[2]))
        step(NLOC - 1)
        S("v_max3_u32 v%d, v%d, v%d, v%d" % (T0, T0, M[3], T1)); S("v_cmp_eq_u32 vcc, -1, v%d" % T0)
    else:
        S("ds_read2st64_b32 %s, v%d offset0:%d offset1:%d" % (r2(T0), MRA, (L_MR + 3072) // 256, (L_MR + 4096) // 256))
        for t in range(2): rd(S, M[t], MRA, L_MR + 1024 * t)
        fl += [R(M[2], MRA, L_MR + 2048)]
        fl.insert(0, fl.pop())
        step(NLA); rd(S, M[2], MRA, L_MR + 2048); fl.remove(fl[-1])
        steps(NLA + 1, NLA + 4)
        fl.insert(0, R(M[3], MRA, L_MR + 3072)); drain(fv)
        step(NLA + 4); fill(1, 0)
        fv += [I("v_max3_u32 v%d, v%d, v%d, v%d" % (T0, T0, T1, M[0])), I("v_max3_u32 v%d, v%d, v%d, v%d" % (T0, T0, M[1], M[2])), I("v_cmp_eq_u32 vcc, -1, v%d" % T0)]
        steps(NLA + 5, NLOC)
    drain(fv)
    S("s_nop 0" if P.get("NOS1") else br("s_cbranch_vccnz %s" % L("rr")))
    S.label(L("rr_r"))
    reread("rr", FR_[w], "s49", L_MR, range(4), True, 1, False)
    drain(late)
    rd(S, M[4], MRA, L_MR + 4096)
    ftok = S.nv
    SP = P.get("SP", 0)
    steps(NLOC, NLOC + SP); slow_ops(); steps(NLOC + SP, NLOC + 11)
    B0 = NLOC - 20
    pv, pw = post(S, AQ, L_EQ, True); fv += pv
    steps(B0 + 31, B0 + 35); steps(B0 + 35, B0 + 40, 1, 2); drain(fv)
    fl += pw
    step(B0 + 40); S("s_cmp_eq_u32 s57, 0"); S("s_cbranch_scc1 %s" % L("first")); S.label(L("first_r")); fill(1, 0)
    def blk():
        A.label(L("first"))
        E = Seq(A)
        if w == 1: kv_wait(E, "p1", 1)
        E("s_barrier"); kv_prep(E, 0); k_fetch(E); vt_fetch(E); kv_prep(E, 1); E("s_waitcnt vmcnt(0) lgkmcnt(0)"); ht(2); E("s_barrier")
        E("s_branch %s" % L("first_r"))
        A.label(L("first2"))
        E = Seq(A)
        if w == 1: kv_wait(E, "p2", 2)
        E("s_barrier"); E("s_branch %s" % L("first2_r"))
    ool.append(blk)
    pv, pw = post(S, AK, L_EK); fv += pv
    assert NV <= 1
    QO = [AQ, AQ + 4, AK, AK + 4]; KA = [LB[0], LB[0] + 4, LB[1], LB[1] + 4]; SXa, SXb, SM = M[0], M[1], M[3]; ONE = X0; HALF = T0
    for i in range(41, 52):
        step(B0 + i)
        if i % 2 == 1 and NV <= (i - 41) // 2 < 5: fl.append(R(M[(i - 41) // 2], MRA, L_ML + 1024 * ((i - 41) // 2)))
        if B0 + i == 45: fl.extend([R(KA[u], KRA, L_K + 1024 * u) for u in (2, 3)])
        if B0 + i == 47: fl.extend([R(KA[u], KRA, L_K + 1024 * u) for u in (0, 1)])
        if i in (48, 49): pw.pop(0)(); kwt = S.nl; fill(1, 0)
        elif i >= 50: fill(2 if i == 50 else 1, 0)
        else: fill(1, 1 if i < 45 else 2)
    assert not fv and not pw
    step(B0 + 52); S.dv = min(S.dv, ftok - 1); S.wait(lds=kwt, vm=ftok); S("s_barrier")
    stamp(S, 4)
    fl[0:0] = [R(QO[u], ER, L_EQ + 64 * u) for u in range(4)]
    fill(1, 0)
    fv += [I("v_mov_b64 %s, s[24:25]" % r2(ONE)), I("v_mov_b64 %s, s[24:25]" % r2(ONE + 2)), I("v_mov_b64 %s, s[16:17]" % r2(HALF))]
    E1 = P.get("E1", 58)
    steps(B0 + 53, B0 + 55, 2, 0); steps(B0 + 55, E1, 1, 1)
    drain(fl); drain(fv)
    def ex(r): return I("v_exp_f32 v%d, v%d" % (r, r))
    S.wait(lds=S.nl)
    KM = [M[2], KA[0], KA[1], KA[2]] if E1 < 58 else [M[2], M[3], KA[0], KA[1]]
    SM = M[4] if E1 >= 58 else M[3]
    for u in range(4): mf32(S, SXa, KA[u], QO[u], "0" if u == 0 else SXa); kbt = rd(S, KA[u], KRA, L_K + 4096 + 1024 * u)
    PX = SXa
    if E1 >= 58:
        step(58); rd(S, KM[0], ER, L_EK); step(59); rd(S, KM[1], ER, L_EK + 64); S.wait(lds=kbt - 2)
        mf32(S, SXb, KA[0], QO[0], "0"); ex(SXa)()
        mf32(S, SXb, KA[1], QO[1], SXb); S.wait(lds=kbt); ex(SXa + 1)(); rd(S, KM[2], ER, L_EK + 128)
        mf32(S, SXb, KA[2], QO[2], SXb); ex(SXa + 2)(); rd(S, KM[3], ER, L_EK + 192)
        mf32(S, SXb, KA[3], QO[3], SXb); ex(SXa + 3)()
        stamp(S, 5)
        mf32(S, SM, KM[0], QO[0], "0"); S(cvt(PX, SXa, SXa + 1)); S(cvt(PX + 1, SXa + 2, SXa + 3))
        mf32(S, SM, KM[1], QO[1], SM); S(cvt(AV, AV, AV + 1)); S(cvt(AV + 1, AV + 2, AV + 3))
        mf32(S, SM, KM[2], QO[2], SM); ex(SXb)()
        mf32(S, SM, KM[3], QO[3], SM); ex(SXb + 1)(); ex(SXb + 2)(); ex(SXb + 3)()
        S(cvt(PX + 2, SXb, SXb + 1)); S(cvt(PX + 3, SXb + 2, SXb + 3)); S(cvt(AV + 2, AV + 4, AV + 5)); S(cvt(AV + 3, AV + 6, AV + 7))
    OA = [AQ, AQ + 4]; Z = AK; PM = SM
    mf32(S, Z, ONE, PX, "0"); ex(SM)()
    mf32(S, OA[0], VT[0], PX, "0"); ex(SM + 1)()
    mf32(S, OA[1], VT[1], PX, "0"); ex(SM + 2)(); ex(SM + 3)()
    S(cvt(PM, SM, SM + 1)); S(cvt(PM + 1, SM + 2, SM + 3))
    OUT = [KA[0], KA[1], KA[2], KA[3], AK + 4]
    def pubsel(): return [I("v_cndmask_b32_e64 v%d, v%d, v%d, s[66:67]" % (X1 + i, AV + i, KM[w] + i)) for i in range(4)]
    fv += pubsel()
    fill(0, 2)
    S.label(L("fin"))
    mf16(S, Z, HALF, PM, Z); fill(0, 2)
    for q in OUT[::-1]: fv += zitems(S, q)
    mf16(S, OA[0], AV, PM, OA[0]); S("s_cmp_eq_u32 s57, 63"); fill(0, 2)
    mf16(S, OA[1], AV + 2, PM, OA[1]); S("s_cbranch_scc1 %s" % L("last")); fill(0, 1)
    RZ = Z + 2
    S("v_rcp_f32 v%d, v%d" % (RZ, Z)); S("v_subrev_u32 v%d, s68, v%d" % (Z + 1, Z)); S("v_cmp_lt_u32 vcc, s69, v%d" % (Z + 1)); fill(0, 1)
    for i in range(4): S("v_cndmask_b32_e64 v%d, v%d, v%d, s[18:19]" % (AQ + i, AQ + i, AQ + 4 + i))
    for q in (0, 2): S("v_pk_mul_f32 %s, %s, %s op_sel_hi:[1,0]" % (r2(AQ + q), r2(AQ + q), r2(RZ)))
    S(cvt(AQ, AQ, AQ + 1)); S(cvt(AQ + 1, AQ + 2, AQ + 3))
    S("ds_write_b64 v%d, %s offset:%d" % (L16, r2(AQ), L_EO + 1024 * (w >> 1) + 8 * (w & 1)))
    S("s_nop 0" if P.get("NOS1") else br("s_cbranch_vccnz %s" % L("zbad")))
    S.label(L("zok"))
    ctok = S.nv - (2 if w == 1 else 0)
    S("s_cmp_eq_u32 s57, 0"); S("s_cbranch_scc1 %s" % L("first2")); S.label(L("first2_r"))
    vt_fetch(S)
    S.wait(lds=S.nl, vm=ctok if w < 2 else None); S("s_barrier")
    O0, O1 = M[1], M[3]
    rd(S, O0, L16, L_EO); rd(S, O1, L16, L_EO + 1024)
    k_fetch(S)
    drain(fv)
    def opost(T):
        b = OUT[T]
        return [I("v_permlane32_swap_b32 v%d, v%d" % (b, b + 1)), I("v_permlane32_swap_b32 v%d, v%d" % (b + 2, b + 3)),
                I("v_add_f32 v%d, v%d, v%d" % (b, b, b + 1)), I("v_add_f32 v%d, v%d, v%d" % (b + 2, b + 2, b + 3))]
    SD = M[0]
    def wo(T, tp): smf(S, OUT[T], (O0, O1)[tp], WO[T, tp])
    S.hoist = False
    wo(0, 0); wo(1, 0); wo(0, 1); wo(1, 1); wo(2, 0); wo(3, 0)
    fv += opost(0) + opost(1) + [I(cvt(SD, OUT[0], OUT[1])), I(cvt(SD + 2, OUT[0] + 2, OUT[1] + 2))]
    fill(0, 1); wo(2, 1); fill(0, 1); wo(3, 1); fill(0, 2); wo(4, 0); fill(0, 1); wo(4, 1)
    fv += opost(2) + opost(3) + [I(cvt(SD + 1, OUT[2], OUT[3])), I(cvt(SD + 3, OUT[2] + 2, OUT[3] + 2))]
    drain(fv)
    if P.get("SO", 1): S("buffer_store_dwordx4 %s, v%d, s[8:11], s56 offen%s" % (r4(SD), L16, sc))
    drain(opost(4)); S(cvt(OUT[4], OUT[4], OUT[4] + 2))
    if not P.get("SO", 1): S("buffer_store_dwordx4 %s, v%d, s[8:11], s56 offen%s" % (r4(SD), L16, sc))
    S("buffer_store_dword v%d, v%d, s[8:11], s55 offen%s" % (OUT[4], PSB, sc))
    stamp(S, 6)
    if w == 0 and md == 0: print("chain on-path estimate %d, nops %d" % (estimate(A.lines[top0:], P.get("EST")), S.nops))
    def fork(S):
        S2 = copy.copy(S)
        for k_ in ("vw", "tw", "mw", "mc", "sd", "sw", "lp", "vp"): setattr(S2, k_, dict(getattr(S, k_)))
        return S2
    pw0 = S.pos
    window(S)

    A.label(L("restart"))
    E = Seq(A)
    E("s_waitcnt vmcnt(0) lgkmcnt(0)"); E.nop(8); E("s_barrier")
    dma(E, FL_[w], "s48", L_ML); ready(E); E("s_waitcnt vmcnt(0) lgkmcnt(0)"); E("s_branch %s" % L("top"))
    A.label(L("zbad"))
    E = Seq(A)
    E("s_cmp_eq_u32 s70, 2"); E("s_cbranch_scc1 %s" % L("zok"))
    E("v_cmp_u_f32 vcc, v%d, v%d" % (Z, Z)); E("s_cbranch_vccz %s" % L("exact"))
    E("s_cmp_eq_u32 s70, 1"); E("s_cbranch_scc1 %s" % L("exact"))
    A.label(L("vfy0"))
    E("s_mov_b32 s70, 1"); E("s_mov_b32 s30, 0"); E("s_waitcnt vmcnt(0) lgkmcnt(0)"); E.nop(8)
    A.label(L("vfy"))
    E("v_mov_b32 v%d, 0" % T0)
    for sa in ("s48", "s49"):
        E("s_add_u32 s59, %s, 4096" % sa)
        for t in range(5): E("buffer_load_dwordx4 %s, v%d, s[8:11], %s offen offset:%d sc1" % (r4(M[t]), L16, "s59" if t == 4 else sa, 1024 * (t % 4)))
        for r in range(M[0], M[0] + 20, 2): E("v_max3_u32 v%d, v%d, v%d, v%d" % (T0, T0, r, r + 1))
    E("v_cmp_eq_u32 vcc, -1, v%d" % T0); E("s_cbranch_vccz %s" % L("restart"))
    spin_count(E); E("s_branch %s" % L("vfy"))
    A.label(L("exact"))
    E = Seq(A); E.nop(8)
    E("s_mov_b32 s70, 2")
    KT = [KA[0], KA[1]]; S3 = [SXa, SXb, SM]
    E("s_waitcnt lgkmcnt(0)")
    for u in range(4): rd(E, QO[u], ER, L_EQ + 64 * u)
    n = 0
    for tl in range(3):
        for u in range(4):
            kq = KT[n % 2]; n += 1
            if tl < 2: rd(E, kq, KRA, L_K + 4096 * tl + 1024 * u)
            else: rd(E, kq, ER, L_EK + 64 * u)
            mf32(E, S3[tl], kq, QO[u], "0" if u == 0 else S3[tl])
            E.nop(4)
    S12 = [q + i for q in S3 for i in range(4)]
    MX, TM = KA[2], KA[2] + 1
    E("v_max3_f32 v%d, v%d, v%d, v%d" % (MX, S12[0], S12[1], S12[2]))
    for i in range(3, 11, 2): E("v_max3_f32 v%d, v%d, v%d, v%d" % (MX, MX, S12[i], S12[i + 1]))
    E("v_max_f32 v%d, v%d, v%d" % (MX, MX, S12[11]))
    for op in ("v_permlane16_swap_b32", "v_permlane32_swap_b32"):
        E("v_mov_b32 v%d, v%d" % (TM, MX)); E("%s v%d, v%d" % (op, MX, TM)); E("v_max_f32 v%d, v%d, v%d" % (MX, MX, TM))
    for r in S12: E("v_sub_f32 v%d, v%d, v%d" % (r, r, MX)); E("v_exp_f32 v%d, v%d" % (r, r))
    for i in range(4): E(cvt(PX + i, S12[2 * i], S12[2 * i + 1]))
    E(cvt(PM, SM, SM + 1)); E(cvt(PM + 1, SM + 2, SM + 3))
    mf32(E, OA[0], VT[0], PX, "0"); mf32(E, OA[1], VT[1], PX, "0"); mf32(E, Z, ONE, PX, "0")
    rd(E, KM[w], ER, L_EK + 64 * w); E.wait_lds_all()
    E.nop(8); E("s_branch %s" % L("fin"))
    A.label(L("last"))
    A("s_cmp_lg_u32 s70, 0"); A("s_cbranch_scc1 %s" % L("last2"))
    A("v_cmp_u_f32 vcc, v%d, v%d" % (SXb, SXb)); A("s_nop 0" if P.get("NOS1") else br("s_cbranch_vccnz %s" % L("vfy0")))
    A.label(L("last2"))
    E = Seq(A); pub_addr(E); pub_st(E); E("s_waitcnt vmcnt(0) lgkmcnt(0)")
    A("s_barrier")
    if w == 1:
        A("v_mov_b32 v%d, 8192" % T1); A("s_mov_b64 exec, 1"); A("buffer_store_dword v%d, v%d, s[8:11], s52 offen sc1" % (T1, L16)); A("s_mov_b64 exec, -1"); A("s_add_u32 s52, s52, 4096")
    if True:
        E = Seq(A); E.nop(8); clear_prep(E)
        if cw in (0, 1): clears(E)
        if w == 0: m_clear(E)
        A("s_waitcnt vmcnt(0)")
    A("s_add_u32 s44, s44, 1")
    ht(3)
    if ST:
        A("s_lshl_b32 s27, s20, 5"); A("s_add_u32 s27, s27, s22"); A("s_lshl_b32 s27, s27, 2"); A("s_add_u32 s27, s27, s21"); A("s_lshl_b32 s27, s27, 6"); A("s_add_u32 s27, s27, %d" % WS_DBG)
        A("s_lshl_b32 s28, s44, 8"); A("s_add_u32 s27, s27, s28"); A("s_mov_b64 exec, 1")
        for i in range(10): A("v_mov_b32 v%d, s%d" % (T1, 90 + i)); A("buffer_store_dword v%d, v%d, s[8:11], s27 offen offset:%d" % (T1, L16, 4 * i)); A("s_nop 1")
        A("s_mov_b64 exec, -1")
    A("s_cmp_eq_u32 s44, 128"); A("s_cbranch_scc1 %s" % L0("end"))
    A("s_branch %s" % L("layer"))
    while ool: ool.pop(0)()
```

```python
from asmlib import *
from layout import *
from seq import *

SETS = [16, 48]
PO = [80, 84]
AD, WA, TA = 12, 13, 14
SRD = {0: 72, 1: 76, 2: 80, 'o': 84}


def perm(S, st, x, o):
    for r in range(4):
        lo = st + 4 * (2 * r) + x // 2; hi = st + 4 * (2 * r + 1) + x // 2
        S("v_perm_b32 v%d, v%d, v%d, s%d" % (o + r, hi, lo, 45 if x & 1 else 44))


def run(S, rounds):
    S("s_mov_b32 s44, 0x05040100"); S("s_mov_b32 s45, 0x07060302")
    for r in range(min(2, len(rounds))): rounds[r]["issue"](SETS[r % 2])
    for r, R in enumerate(rounds):
        if R.get("pre"): S.wait_lds_all(); S("s_barrier")
        R["write"](SETS[r % 2])
        if r + 2 < len(rounds): rounds[r + 2]["issue"](SETS[r % 2])
        if R.get("reads"):
            S.wait_lds_all(); S("s_barrier")
            for dst, areg, off in R["reads"]: S("ds_read_b128 %s, v%d offset:%d" % (ureg(dst, 4), areg, off))
    S.wait_lds_all()


def qkv_setup(S):
    S("v_lshrrev_b32 v%d, 8, v0" % AD); S("v_lshlrev_b32 v%d, 16, v%d" % (AD, AD)); S("v_and_b32 v%d, 0xf0, v0" % TA); S("v_add_u32 v%d, v%d, v%d" % (AD, AD, TA))
    S("s_lshl_b32 s46, s22, 8")


def qkv_issue(S, st, srd, ks_s):
    S("s_lshl_b32 s27, %s, 18" % ks_s); S("s_add_u32 s27, s27, s46")
    for j in range(8):
        if j: S("s_add_u32 s27, s27, 8192")
        S("buffer_load_dwordx4 %s, v%d, %s, s27 offen" % (r4(st + 4 * j), AD, srd))


def plain_rounds(S, srd, dst, bufs, RA):
    out = []
    for r in range(5):
        def issue(st, r=r):
            S("s_add_u32 s26, s21, %d" % (4 * r)); qkv_issue(S, st, srd, "s26")
        def write(st, r=r):
            S("s_lshl_b32 s27, s21, 11"); S("s_add_u32 s27, s27, %d" % bufs[r % 2]); S("v_add_u32 v%d, s27, v0" % WA)
            for x in range(8):
                perm(S, st, x, PO[x % 2]); S("ds_write_b128 v%d, %s offset:%d" % (WA, r4(PO[x % 2]), (x // 2) * 8192 + (x % 2) * 1024))
        out.append(dict(issue=issue, write=write, reads=[(dst(tl, 4 * r + tk), RA[r % 2], tk * 2048 + tl * 1024) for tk in range(4) for tl in range(2)]))
    return out


def wo_rounds(S, chain, base, reads):
    A2, B2 = 8, 9
    ST = [10, 11, 15]
    if chain:
        S("v_lshrrev_b32 v%d, 9, v0" % A2); S("v_lshlrev_b32 v%d, 4, v%d" % (A2, A2)); S("v_bfe_u32 v%d, v0, 8, 1" % TA); S("v_add_u32 v%d, v%d, v%d" % (A2, A2, TA)); S("v_mul_u32_u24 v%d, 2560, v%d" % (A2, A2))
        S("s_and_b32 s47, s21, 1"); S("s_lshl_b32 s47, s47, 6"); S("s_lshr_b32 s27, s21, 1"); S("s_lshl_b32 s27, s27, 2"); S("s_add_u32 s47, s47, s27")
        S("s_lshl_b32 s27, s22, 7"); S("s_add_u32 s47, s47, s27"); S("s_mul_i32 s47, s47, 1280"); S("s_mul_i32 s27, s20, 640"); S("s_add_u32 s47, s47, s27")
        rows = [16 * (jj >> 2) + 8 * (jj & 1) + ((jj >> 1) & 1) for jj in range(8)]
    else:
        S("v_lshrrev_b32 v%d, 8, v0" % A2); S("v_mul_u32_u24 v%d, %d, v%d" % (A2, 32 * 1280, A2))
        S("s_lshl_b32 s47, s22, 6"); S("s_add_u32 s47, s47, s21"); S("s_mul_i32 s47, s47, 2560")
        rows = [8 * (jj >> 1) + (jj & 1) for jj in range(8)]
    S("v_and_b32 v%d, 0xf0, v0" % TA); S("v_add_u32 v%d, v%d, v%d" % (A2, A2, TA))
    out = []
    n = 3 if chain else 5
    for it in range(n):
        half = chain and it == 2
        def issue(st, it=it, half=half):
            if half: S("s_mov_b32 exec_lo, 0x00ff00ff"); S("s_mov_b32 exec_hi, 0x00ff00ff")
            for jj in range(8):
                S("s_add_u32 s27, s47, %d" % (rows[jj] * 1280 + it * 256))
                S("buffer_load_dwordx4 %s, v%d, s[84:87], s27 offen" % (r4(st + 4 * jj), A2))
            if half: S("s_mov_b64 exec, -1")
        def write(st, it=it, half=half):
            S("v_and_b32 v%d, 0x300, v0" % WA); S("s_lshl_b32 s27, s21, 10")
            if not chain:
                S("s_add_u32 s27, s27, %d" % (base + it * 32768)); S("v_add_u32 v%d, s27, v%d" % (WA, WA))
                S("v_bfe_u32 v%d, v0, 6, 2" % TA); S("v_lshl_add_u32 v%d, v%d, 13, v%d" % (WA, TA, WA)); S("v_bfe_u32 v%d, v0, 4, 2" % TA); S("v_lshl_add_u32 v%d, v%d, 6, v%d" % (WA, TA, WA))
                off = [(x >> 2) * 4096 + (x & 3) * 16 for x in range(8)]
            elif not half:
                S("s_add_u32 s27, s27, %d" % (base + it * 40960)); S("v_add_u32 v%d, s27, v%d" % (WA, WA))
                S("v_bfe_u32 v%d, v0, 7, 1" % TA); S("v_mul_u32_u24 v%d, 20480, v%d" % (TA, TA)); S("v_add_u32 v%d, v%d, v%d" % (WA, WA, TA))
                S("v_bfe_u32 v%d, v0, 5, 2" % TA); S("v_lshl_add_u32 v%d, v%d, 6, v%d" % (WA, TA, WA)); S("v_and_b32 v%d, 16, v0" % TA); S("v_add_u32 v%d, v%d, v%d" % (WA, WA, TA))
                off = [(x >> 2) * 8192 + ((x >> 1) & 1) * 32 + (x & 1) * 4096 for x in range(8)]
            else:
                S("s_add_u32 s27, s27, %d" % (base + 16384)); S("v_add_u32 v%d, s27, v%d" % (WA, WA))
                S("v_bfe_u32 v%d, v0, 5, 2" % TA); S("v_mul_u32_u24 v%d, 20480, v%d" % (TA, TA)); S("v_add_u32 v%d, v%d, v%d" % (WA, WA, TA))
                S("v_bfe_u32 v%d, v0, 4, 1" % TA); S("v_lshl_add_u32 v%d, v%d, 6, v%d" % (WA, TA, WA))
                off = [(x >> 2) * 32 + ((x >> 1) & 1) * 128 + (x & 1) * 16 for x in range(8)]
                S("s_mov_b32 exec_lo, 0x00ff00ff"); S("s_mov_b32 exec_hi, 0x00ff00ff")
            for x in range(8):
                perm(S, st, x, PO[x % 2]); S("ds_write_b128 v%d, %s offset:%d" % (WA, r4(PO[x % 2]), off[x]))
            if half: S("s_mov_b64 exec, -1")
        out.append(dict(issue=issue, write=write, reads=reads if it == n - 1 else None))
    return out


def chain_load(A, K):
    S = Seq(A)
    qkv_setup(S)
    R0, R1, R2, RW = 4, 5, 6, 7
    B0, B1 = K.L_W + 81920, K.L_W
    S("s_lshl_b32 s27, s21, 13"); S("s_add_u32 s28, s27, %d" % B0); S("v_add_u32 v%d, s28, v0" % R0); S("s_add_u32 s28, s27, %d" % B1); S("v_add_u32 v%d, s28, v0" % R1)
    S("s_lshl_b32 s27, s21, 12"); S("v_add_u32 v%d, s27, v0" % R2)
    S("s_mul_i32 s27, s21, 20480"); S("s_add_u32 s27, s27, %d" % K.L_W); S("v_add_u32 v%d, s27, v0" % RW)
    S("s_mul_i32 s48, s20, 10"); S("s_and_b32 s27, s21, 1"); S("s_add_u32 s49, s27, 10"); S("s_sub_u32 s49, s49, s48"); S("s_add_u32 s48, s48, s27")
    rounds = wo_rounds(S, True, K.L_W, [(K.WO[T, u // 2] + 4 * (u % 2), RW, T * 4096 + u * 1024) for T in range(5) for u in range(4)])
    units = {}
    for i, (m, tl, rem, t) in enumerate(K.SEQ): units.setdefault((m, rem, t), {})[tl] = i
    pure = [u for u, d in units.items() if not any(i in K.LDSI for i in d.values())]
    mixed = [u for u in units if u not in pure]
    if len(pure) % 2: mixed.insert(0, pure.pop())
    assert len(mixed) % 2 == 0
    def issue_pair(st, ua, ub):
        S("s_cmp_lt_u32 s21, 2")
        S("s_cselect_b32 s26, s%d, s%d" % (48 + ua[1], 48 + ub[1])); S("s_cselect_b32 s27, %d, %d" % (2 * ua[2], 2 * ub[2]));
        S("s_cselect_b64 s[88:89], s[%d:%d], s[%d:%d]" % (SRD[K.MATS[ua[0]]], SRD[K.MATS[ua[0]]] + 1, SRD[K.MATS[ub[0]]], SRD[K.MATS[ub[0]]] + 1))
        S("s_add_u32 s26, s26, s27"); qkv_issue(S, st, "s[88:91]", "s26")
    S("s_mov_b32 s90, %d" % SZ_W); S("s_mov_b32 s91, 0x00020000")
    for r in range(len(pure) // 2):
        ua, ub = pure[2 * r], pure[2 * r + 1]
        def write(st, r=r):
            S("s_lshl_b32 s27, s21, 11"); S("s_add_u32 s27, s27, %d" % (B0, B1)[r % 2]); S("v_add_u32 v%d, s27, v0" % WA)
            for x in range(8):
                perm(S, st, x, PO[x % 2]); S("ds_write_b128 v%d, %s offset:%d" % (WA, r4(PO[x % 2]), (x // 2) * 8192 + (x % 2) * 1024))
        rounds.append(dict(issue=lambda st, ua=ua, ub=ub: issue_pair(st, ua, ub), write=write,
                           reads=[(K.WREG[units[(ua, ub)[tk // 2]][tl]] + 4 * (tk % 2), (R0, R1)[r % 2], tk * 2048 + tl * 1024) for tk in range(4) for tl in range(2)]))
    for r in range(len(mixed) // 2):
        ua, ub = mixed[2 * r], mixed[2 * r + 1]
        assert all(sum(i not in K.LDSI for i in units[u].values()) <= 1 for u in (ua, ub))
        def write(st, ua=ua, ub=ub):
            S("s_and_b32 s28, s21, 1"); S("s_lshl_b32 s28, s28, 10")
            for tl in range(2):
                pr = []
                for k_, u in enumerate((ua, ub)):
                    i = units[u][tl]
                    pr.append((K.L_W + K.LDSI.index(i) * 2048, K.LW_WAVE) if i in K.LDSI else (k_ * 2048, 4096))
                S("s_mov_b32 s29, %d" % pr[1][0]); S("s_mov_b32 s30, %d" % pr[1][1])
                S("s_cmp_lt_u32 s21, 2"); S("s_cselect_b32 s29, %d, s29" % pr[0][0]); S("s_cselect_b32 s30, %d, s30" % pr[0][1]); S("s_add_u32 s29, s29, s28")
                for dw in range(4):
                    x = 2 * dw + tl
                    S("v_add_u32 v%d, s29, v0" % (WA + dw % 2)); S("s_add_u32 s29, s29, s30")
                    perm(S, st, x, PO[dw % 2]); S("ds_write_b128 v%d, %s" % (WA + dw % 2, r4(PO[dw % 2])))
        rd = []
        for k_, u in enumerate((ua, ub)):
            for tl in range(2):
                i = units[u][tl]
                if i not in K.LDSI: rd += [(K.WREG[i] + 4 * hf, R2, k_ * 2048 + hf * 1024) for hf in range(2)]
        rounds.append(dict(issue=lambda st, ua=ua, ub=ub: issue_pair(st, ua, ub), write=write, reads=rd, pre=True))
    run(S, rounds)


def bulk_load(A, L, breg):
    S = Seq(A)
    qkv_setup(S)
    R0, R1, RW = 4, 5, 7
    S("s_lshl_b32 s27, s21, 13"); S("v_add_u32 v%d, s27, v0" % R0); S("v_add_u32 v%d, 32768, v%d" % (R1, R0))
    S("s_mov_b32 s90, %d" % SZ_W); S("s_mov_b32 s91, 0x00020000")
    S("s_cmp_eq_u32 s20, 2"); S("s_cselect_b64 s[88:89], s[76:77], s[72:73]"); S("s_cmp_eq_u32 s20, 3"); S("s_cselect_b64 s[88:89], s[80:81], s[88:89]")
    S("s_cmp_lt_u32 s20, 4"); S("s_cbranch_scc1 %s" % L("bl_m"))
    S("s_mul_i32 s27, s21, 40960"); S("v_add_u32 v%d, s27, v0" % RW)
    run(S, wo_rounds(S, False, 0, [(breg(40 + f), RW, f * 1024) for f in range(40)]))
    S("s_barrier")
    A.label(L("bl_m"))
    S = Seq(A)
    run(S, plain_rounds(S, "s[88:91]", lambda tl, ks: breg(tl * 20 + ks), [0, 32768], [R0, R1]))
```

```python
from asmlib import *
from layout import *
from seq import *
import k_chain
from k_chain import chain_body, f2u, C1, SPIN_MAX, OOB, L_FL
from k_load import chain_load, bulk_load
from k_tab import lane_setup, t1_frag, t2_frag, wt_task
from k_ln import ln_body
from k_b import fft2, idft, idft_table

GMAP = 0x76325140


def breg(i):
    return 256 + 4 * i if i < 64 else 192 + 4 * (i - 64)


def main_kernel(P):
    name = "interleave_layers__memory_aug_recurrent_mem_tr__spectral_gfnet__prompt_kernel"
    k = Kernel(name, 256, 256, 163840, 256, 256, sgpr=102)
    A = k.asm
    L = lambda x: "M_%s" % x

    def ht2(i):
        if P.get("HT", 0) >= 2: ht(i, True)
    def hb(i, flush=False):
        if P.get("HT", 0) != 4: return
        lab = A.newlabel(L("hb"))
        A("s_xor_b32 s6, s84, 1"); A("s_or_b32 s6, s6, s83"); A("s_cmp_lg_u32 s6, 0"); A("s_cbranch_scc1 %s" % lab)
        A("s_memrealtime s[6:7]"); A("s_waitcnt lgkmcnt(0)"); A("s_lshl_b32 s6, s6, 4"); A("s_or_b32 s6, s6, %d" % (i & 15))
        A("v_writelane_b32 v188, s6, %d" % i)
        if flush:
            A("s_add_u32 s7, s82, 2"); A("s_lshl_b32 s7, s7, 8"); A("s_add_u32 s7, s7, %d" % (WS_DBG + (4 << 20) + 128)); A("v_mbcnt_lo_u32_b32 v189, -1, 0"); A("v_lshlrev_b32 v189, 2, v189")
            A("s_mov_b64 exec, 0x%x" % ((1 << (i + 1)) - 1)); A("buffer_store_dword v188, v189, s[8:11], s7 offen"); A("s_mov_b64 exec, -1")
        A.label(lab)
    def hq(i):
        if P.get("HT", 0) != 3: return
        lab = A.newlabel(L("hq"))
        A("s_or_b32 s6, s21, s22"); A("s_cmp_lg_u32 s6, 0"); A("s_cbranch_scc1 %s" % lab); A("s_cmp_lt_u32 s44, 60"); A("s_cbranch_scc1 %s" % lab)
        A("s_memrealtime s[6:7]"); A("s_waitcnt lgkmcnt(0)")
        A("s_lshl_b32 s7, s20, 8"); A("s_add_u32 s7, s7, s5"); A("s_add_u32 s5, s5, 4"); A("s_add_u32 s7, s7, %d" % (WS_DBG + (4 << 20)))
        A("s_lshl_b32 s6, s6, 4"); A("s_or_b32 s6, s6, %d" % i)
        A("v_writelane_b32 v188, s6, %d" % i); A("v_writelane_b32 v189, s7, %d" % i)
        if i == 15: A("s_mov_b64 exec, 0xffe1"); A("buffer_store_dword v188, v189, s[8:11], 0 offen"); A("s_mov_b64 exec, -1")
        A.label(lab)
    def ht(i, saved=False):
        if not P.get("HT"): return
        lab = A.newlabel(L("ht"))
        if saved:
            A("s_or_b32 s6, s83, s84"); A("s_cmp_lg_u32 s6, 0"); A("s_cbranch_scc1 %s" % lab)
            A("s_memrealtime s[6:7]"); A("s_waitcnt lgkmcnt(0)")
            A("s_add_u32 s7, s82, 2"); A("s_lshl_b32 s7, s7, 8"); A("s_add_u32 s7, s7, s5"); A("s_add_u32 s5, s5, 4"); A("s_add_u32 s7, s7, %d" % (WS_DBG + (4 << 20)))
            A("s_lshl_b32 s6, s6, 4"); A("s_or_b32 s6, s6, %d" % i)
            A("s_mov_b64 exec, 1"); A("v_mov_b32 v190, s6"); A("v_mov_b32 v191, 0"); A("buffer_store_dword v190, v191, s[8:11], s7 offen"); A("s_mov_b64 exec, -1")
            A.label(lab); return
        A("s_or_b32 s6, s21, s22"); A("s_cmp_lg_u32 s6, 0"); A("s_cbranch_scc1 %s" % lab)
        A("s_memrealtime s[6:7]"); A("s_waitcnt lgkmcnt(0)")
        A("s_lshl_b32 s7, s20, 8"); A("s_add_u32 s7, s7, s5"); A("s_add_u32 s5, s5, 4"); A("s_add_u32 s7, s7, %d" % (WS_DBG + (4 << 20)))
        A("s_lshl_b32 s6, s6, 4"); A("s_or_b32 s6, s6, %d" % i)
        A("s_mov_b64 exec, 1"); A("v_mov_b32 v10, s6"); A("v_mov_b32 v11, 0"); A("buffer_store_dword v10, v11, s[8:11], s7 offen"); A("s_waitcnt vmcnt(0)"); A("s_mov_b64 exec, -1")
        A.label(lab)

    ool = []
    def flush_ool():
        for lab, grp in ool:
            A.label(lab)
            for t_ in grp: A(t_)
            A("s_branch %s_r" % lab)
        del ool[:]

    def lst(op, E=None):
        E = E or A
        l1 = A.newlabel(L("ls"))
        E("s_cmp_lg_u32 s23, 0"); E("s_cbranch_scc1 %s" % l1)
        for o in op: E(o)
        A.label(l1 + "_r")
        ool.append((l1, ["s_nop 7"] + [o + " sc1" if o.startswith("buffer_store") else o for o in op]))

    A("s_cmp_ge_u32 s2, 256"); A("s_cbranch_scc1 %s" % L("end"))
    load_srd(A, 16, KA_X, SZ_X); load_srd(A, 8, KA_WS, SZ_WS); load_srd(A, 12, KA_DBG, 256)
    for b_, ka in ((72, KA_WQ), (76, KA_WK), (80, KA_WV), (84, KA_WO), (68, KA_MEM0)): load_srd(A, b_, ka, 0)
    A("s_getreg_b32 s24, hwreg(HW_REG_XCC_ID)"); A("s_and_b32 s24, s24, 7")
    if P.get("CPF", 1):
        A("s_getpc_b64 s[26:27]")
        A.label(L("cpf"))
        A("s_lshr_b32 s28, s2, 3"); A("s_lshl_b32 s28, s28, 8"); A("v_add_u32 v13, s28, v0"); A("v_lshlrev_b32 v13, 6, v13")
        A("v_cmp_gt_u32 vcc, %s - %s, v13" % (L("end"), L("cpf"))); A("s_and_saveexec_b64 s[28:29], vcc"); A("s_cbranch_execz %s" % L("cpfd"))
        A("global_load_dword v14, v13, s[26:27]")
        A.label(L("cpfd"))
        A("s_mov_b64 exec, s[28:29]")
    A("v_lshrrev_b32 v12, 6, v0"); A("v_and_b32 v0, 63, v0"); A("v_readfirstlane_b32 s21, v12")
    A("v_lshlrev_b32 v0, 4, v0")
    A("s_waitcnt lgkmcnt(0)")
    fin_srd(A, 8, SZ_WS); fin_srd(A, 12, 256); fin_srd(A, 16, SZ_X)
    for b_, sz in ((72, SZ_W), (76, SZ_W), (80, SZ_W), (84, SZ_W), (68, SZ_MEM0)): fin_srd(A, b_, sz)
    A("s_mov_b32 s5, 0"); A("s_mov_b32 s101, 0")
    A("s_cmp_eq_u32 s21, 0"); A("s_cbranch_scc1 %s" % L("tick"))
    A("s_cmp_eq_u32 s21, 3"); A("s_cbranch_scc1 %s" % L("zero"))
    for q in range(4): A("v_mov_b32 v%d, -1" % (28 + q))
    A("s_lshl_b32 s26, s2, 1"); A("s_add_u32 s26, s26, s21"); A("s_lshl_b32 s26, s26, 12"); A("s_add_u32 s26, s26, %d" % (WS_FILL - 4096))
    for q in range(4): A("buffer_store_dwordx4 v[28:31], v0, s[8:11], s26 offen offset:%d sc1" % (1024 * q))
    A("s_branch %s" % L("notick"))
    A.label(L("zero"))
    for q in range(4): A("v_mov_b32 v%d, 0" % (28 + q))
    A("s_lshl_b32 s26, s2, 9"); A("s_add_u32 s26, s26, %d" % WS_ZERO)
    A("s_mov_b32 exec_hi, 0"); A("buffer_store_dwordx4 v[28:31], v0, s[8:11], s26 offen sc1"); A("s_mov_b64 exec, -1")
    A("s_cmp_ge_u32 s2, 10"); A("s_cbranch_scc1 %s" % L("notick"))
    A("v_bfe_u32 v6, v0, 4, 3"); A("v_mul_u32_u24 v6, 1280, v6"); A("v_lshrrev_b32 v7, 8, v0"); A("v_lshl_add_u32 v6, v7, 5, v6"); A("v_bfe_u32 v7, v0, 7, 1"); A("v_lshl_add_u32 v6, v7, 2, v6")
    A("s_lshl_b32 s26, s2, 7")
    for n in range(4): A("buffer_load_dword v%d, v6, s[68:71], s26 offen offset:%d" % (32 + n, 8 * n))
    A("v_and_b32 v7, 0x200, v0")
    for src, dst in ((6, 8), (4, 7), (5, 6), (8, 5), (7, 4)):
        A("v_bfe_u32 v12, v0, %d, 1" % src); A("v_lshl_or_b32 v7, v12, %d, v7" % dst)
    A("s_lshl_b32 s26, s2, 10"); A("s_add_u32 s26, s26, %d" % WS_M0); A("s_waitcnt vmcnt(0)")
    for n in range(4): A("v_min_u32 v%d, -2, v%d" % (32 + n, 32 + n))
    A("buffer_store_dwordx4 v[32:35], v7, s[8:11], s26 offen sc1")
    A("s_branch %s" % L("notick"))
    A.label(L("tick"))
    A("s_and_b32 s25, s24, 5"); A("s_cmp_lg_u32 s25, 1"); A("s_cbranch_scc1 %s" % L("nocal"))
    A("s_bfe_u32 s25, s2, 0x20003"); A("s_lshl_b32 s26, s25, 13"); A("s_lshr_b32 s27, s2, 5"); A("s_lshl_b32 s27, s27, 15"); A("s_add_u32 s26, s26, s27")
    A("s_lshl_b32 s27, s24, 8"); A("s_add_u32 s26, s26, s27"); A("s_add_u32 s26, s26, %d" % WS_MR)
    for q in range(4): A("v_mov_b32 v%d, -1" % (28 + q))
    A("s_mov_b64 exec, 0xff"); A("s_mov_b32 s27, -1"); A("s_waitcnt vmcnt(0)")
    for rep in range(4):
        A("s_memtime s[28:29]"); A("buffer_store_dwordx4 v[28:31], v0, s[8:11], s26 offen sc1"); A("s_waitcnt vmcnt(0)"); A("s_memtime s[30:31]")
        A("s_waitcnt lgkmcnt(0)"); A("s_sub_u32 s28, s30, s28"); A("s_min_u32 s27, s27, s28")
    A("s_mov_b64 exec, 1"); A("s_not_b32 s27, s27"); A("v_mov_b32 v28, s27"); A("s_lshl_b32 s25, s25, 2"); A("s_add_u32 s25, s25, 128"); A("v_mov_b32 v29, s25")
    A("buffer_atomic_umax v28, v29, s[12:15], 0 offen")
    A.label(L("nocal"))
    A("s_mov_b64 exec, 1")
    A("v_mov_b32 v28, 1"); A("s_lshl_b32 s25, s24, 2"); A("v_mov_b32 v29, s25")
    A("buffer_atomic_add v28, v29, s[12:15], 0 offen sc0"); A("s_waitcnt vmcnt(0)")
    A("v_mov_b32 v29, %d" % L_FL); A("ds_write_b32 v29, v28"); A("s_waitcnt lgkmcnt(0)")
    A("s_mov_b64 exec, -1")
    A.label(L("notick"))
    A("s_waitcnt vmcnt(0)"); A("s_barrier")
    A("s_cmp_lg_u32 s21, 0"); A("s_cbranch_scc1 %s" % L("noarr"))
    A("s_mov_b64 exec, 1"); A("v_mov_b32 v30, 1"); A("v_mov_b32 v29, 32"); A("buffer_atomic_add v30, v29, s[12:15], 0 offen"); A("s_mov_b64 exec, -1")
    A.label(L("noarr"))
    A("v_mov_b32 v29, %d" % L_FL); A("ds_read_b32 v28, v29"); A("s_waitcnt lgkmcnt(0)"); A("v_readfirstlane_b32 s25, v28")
    A("s_lshl_b32 s20, s24, 2"); A("s_lshr_b32 s20, 0x%x, s20" % GMAP); A("s_and_b32 s20, s20, 7"); A("s_and_b32 s22, s25, 31")
    A("s_mov_b32 s23, 0"); A("s_mov_b32 s32, 0")
    ht(0)
    A("s_cmp_ge_u32 s20, 4"); A("s_cbranch_scc1 %s" % L("lw_done"))
    A.label(L("loadw"))
    A("s_barrier")
    A("s_cmp_lt_u32 s20, 2"); A("s_cbranch_scc1 %s" % L("lw_chain"))
    A("s_cmp_lt_u32 s20, 4"); A("s_cbranch_scc1 %s" % L("lw_bulk"))
    A("s_lshl_b32 s34, s22, 2"); A("s_add_u32 s34, s34, s20"); A("s_sub_u32 s34, s34, 4"); A("s_mov_b32 s92, s33"); A("s_mov_b32 s33, s21")
    lane_setup(A); ln_body(A, "s34", 16, 0, WS_XNF, False, "", lambda st: [A(t_ + " sc1") for t_ in st])
    A("s_mov_b32 s33, s92"); A("s_waitcnt vmcnt(0)"); A("s_barrier")
    A("s_cmp_lg_u32 s21, 0"); A("s_cbranch_scc1 %s" % L("lw_bulk"))
    A("s_lshr_b32 s27, s34, 1"); A("s_lshl_b32 s27, s27, 7"); A("s_and_b32 s28, s34, 1"); A("s_mul_i32 s28, s28, 20"); A("s_add_u32 s27, s27, s28"); A("s_add_u32 s27, s27, %d" % WS_XFL)
    A("v_lshrrev_b32 v12, 2, v0"); A("v_mov_b32 v13, 1"); A("s_mov_b64 exec, 31"); A("buffer_store_dword v13, v12, s[8:11], s27 offen sc1"); A("s_mov_b64 exec, -1")
    A.label(L("lw_bulk"))
    bulk_load(A, L, breg)
    A("s_branch %s" % L("lw_done"))
    A.label(L("lw_chain"))
    chain_load(A, k_chain)
    A.label(L("lw_done"))
    A("s_cmp_lg_u32 s32, 0"); A("s_cbranch_scc1 %s" % L("role_ok"))
    A("s_mov_b32 s32, 1"); A("s_mov_b32 s30, 0")
    A("v_bfe_u32 v12, v0, 4, 4"); A("v_lshlrev_b32 v12, 2, v12")
    A.label(L("modepoll"))
    A("buffer_load_dword v13, v12, s[12:15], 0 offen sc1"); A("s_waitcnt vmcnt(0)")
    A("v_readlane_b32 s31, v13, 8")
    A("s_cmp_eq_u32 s31, 256"); A("s_cbranch_scc1 %s" % L("modegot"))
    A("s_sleep 2")
    A("s_add_u32 s30, s30, 1"); A("s_cmp_lt_u32 s30, %d" % SPIN_MAX); A("s_cbranch_scc1 %s" % L("modepoll"))
    A("s_branch %s" % L("fail"))
    A.label(L("modegot"))
    A("buffer_load_dword v13, v12, s[12:15], 0 offen sc1"); A("buffer_load_dword v14, v12, s[12:15], 0 offen offset:128 sc1"); A("s_waitcnt vmcnt(0)")
    A("v_readlane_b32 s26, v14, 0"); A("s_mov_b32 s33, 0")
    for q in range(1, 4):
        A("v_readlane_b32 s27, v14, %d" % q); A("s_nop 0"); A("s_cmp_gt_u32 s27, s26"); A("s_cselect_b32 s33, %d, s33" % (q << 13)); A("s_max_u32 s26, s26, s27")
    A("s_xor_b32 s33, s33, %d" % (0x4000 ^ (P.get("PG", 0) << 13)))
    A("v_cmp_ne_u32 vcc, 32, v13"); A("s_and_b32 s31, vcc_lo, 0xff")
    if P.get("FORCE_SLOW"): A("s_mov_b32 s31, 1")
    A("s_cmp_lg_u32 s31, 0"); A("s_cbranch_scc1 %s" % L("slowm"))
    A("s_cmp_ge_u32 s20, 4"); A("s_cbranch_scc1 %s" % L("loadw")); A("s_branch %s" % L("role_ok"))
    A.label(L("slowm"))
    A("s_mov_b32 s23, 1"); A("s_mov_b32 s31, s25")
    for x in range(7):
        A("v_readlane_b32 s30, v13, %d" % x); A("s_cmp_gt_u32 s24, %d" % x); A("s_cselect_b32 s30, s30, 0"); A("s_add_u32 s31, s31, s30")
    if P.get("FORCE_SLOW"):
        A("s_and_b32 s20, s31, 7"); A("s_lshr_b32 s22, s31, 3")
    else:
        A("s_lshr_b32 s20, s31, 5"); A("s_and_b32 s22, s31, 31")
    A("s_and_b32 s20, s20, 7"); A("s_and_b32 s22, s22, 31")
    A("s_branch %s" % L("loadw"))
    A.label(L("role_ok"))
    A("s_mov_b32 s25, s33")
    A("s_cmp_ge_u32 s20, 2"); A("s_cbranch_scc1 %s" % L("bulk"))
    chain_body(A, P, L, ht)

    def mf32(S, acc, a_, b_, c): S("v_mfma_f32_16x16x32_bf16 %s, %s, %s, %s" % (r4(acc), ureg(a_, 4), ureg(b_, 4), c if isinstance(c, str) else r4(c)))
    def mf16(S, acc, a_, b_, c): S("v_mfma_f32_16x16x16_bf16 %s, %s, %s, %s" % (r4(acc), r2(a_), r2(b_), c if isinstance(c, str) else r4(c)))
    def rd(S, dst, areg, off): return S("ds_read_b128 %s, v%d offset:%d" % (r4(dst), areg, off))

    def x_dma(S, seg_s, slot_s):
        S("s_min_u32 s27, %s, 63" % seg_s); S("s_mul_i32 s27, s27, 40960"); S("s_add_u32 s27, s27, s47"); S("s_add_u32 s28, %s, s42" % slot_s)
        for f in range(10):
            if f % 4 == 0:
                if f: S("s_add_u32 s27, s27, 4096"); S("s_add_u32 s28, s28, 4096")
                S("s_mov_b32 m0, s28")
            S("buffer_load_dwordx4 v0, s[8:11], s27 offen offset:%d sc1 lds" % ((f % 4) * 1024))

    def proj(S, areg, acc, XB, tr=False):
        NB = len(XB)
        seq = [(mt, ks) for mt in range(2) for ks in range(20)]
        for i in range(NB - 1): rd(S, XB[i], areg, i * 1024)
        for i, (mt, ks) in enumerate(seq):
            if i + NB - 1 < 40: rd(S, XB[(i + NB - 1) % NB], areg, (i + NB - 1) * 1024)
            for tl in range(2):
                a = acc + 8 * mt + 4 * tl
                if tr: mf32(S, a, XB[i % NB], breg(tl * 20 + ks), "0" if ks == 0 else a)
                else: mf32(S, a, breg(tl * 20 + ks), XB[i % NB], "0" if ks == 0 else a)

    def xpoll(S, mask, tag):
        ld = A.newlabel(L(tag)); lp = A.newlabel(L(tag)); le = A.newlabel(L(tag))
        A("s_cmp_lg_u32 s21, 0"); A("s_cbranch_scc1 %s" % ld)
        A("v_lshlrev_b32 v190, 3, v0"); A("s_mov_b64 exec, %s" % mask); A("s_mov_b32 s30, 0"); A("s_lshl_b32 s27, %s, 13" % ("0" if P.get("NOQAO") else "s101")); A("s_add_u32 s27, s27, %d" % WS_XFL)
        A.label(lp)
        A("buffer_load_dwordx4 v[176:179], v190, s[8:11], s27 offen sc1"); A("buffer_load_dwordx4 v[180:183], v190, s[8:11], s27 offen offset:16 sc1"); A("buffer_load_dwordx2 v[184:185], v190, s[8:11], s27 offen offset:32 sc1")
        A("s_add_u32 s30, s30, 1"); A("s_cmp_ge_u32 s30, %d" % SPIN_MAX); A("s_cbranch_scc1 %s" % L("fail"))
        A("s_waitcnt vmcnt(0)")
        for i in range(177, 185, 2): A("v_min3_u32 v176, v176, v%d, v%d" % (i, i + 1))
        A("v_min_u32 v176, v176, v185"); A("v_cmp_eq_u32 vcc, 0, v176"); A("s_cbranch_vccnz %s" % lp)
        A("s_mov_b64 exec, -1")
        A.label(ld)
        A("s_barrier")
        A.label(le)

    def poll(S, addr_s, lanes, cmp_ins, tag, sleep=1, sh="v_lshrrev_b32 v190, 2, v0"):
        ld = A.newlabel(L(tag)); lp = A.newlabel(L(tag))
        S("s_cmp_lg_u32 s21, 0"); S("s_cbranch_scc1 %s" % ld)
        A("s_mov_b64 exec, 0x%x" % lanes); A("s_mov_b32 s30, 0"); A(sh)
        A.label(lp)
        A("buffer_load_dword v191, v190, s[8:11], %s offen sc1" % addr_s)
        A("s_add_u32 s30, s30, 1"); A("s_cmp_ge_u32 s30, %d" % SPIN_MAX); A("s_cbranch_scc1 %s" % L("fail"))
        A("s_waitcnt vmcnt(0)"); A(cmp_ins); A("s_cbranch_vccz %s" % (lp + "d"))
        if sleep: A("s_sleep %d" % sleep)
        A("s_branch %s" % lp)
        A.label(lp + "d")
        A("s_mov_b64 exec, -1")
        A.label(ld)
        S("s_barrier")

    A.label(L("bulk"))
    A("s_waitcnt vmcnt(0)"); A("s_barrier")
    ht(1)
    A("s_mul_i32 s42, s21, 10240"); A("s_mul_i32 s47, s101, %d" % XNF_LAYER); A("s_add_u32 s47, s47, s42"); A("s_add_u32 s47, s47, %d" % WS_XNF)
    A("s_mul_i32 s50, s101, %d" % KV_LAYER); A("s_lshl_b32 s27, s22, 13"); A("s_add_u32 s50, s50, s27"); A("s_add_u32 s50, s50, %d" % WS_KXF)
    A("s_lshl_b32 s43, s101, 6")
    A("s_mul_i32 s27, s22, 26"); A("s_lshr_b32 s27, s27, 8"); A("s_mul_i32 s28, s27, 10"); A("s_sub_u32 s88, s22, s28")
    A("s_mul_i32 s28, s20, 3"); A("s_sub_u32 s28, s28, 12"); A("s_lshl_b32 s29, s20, 1"); A("s_add_u32 s29, s29, 8")
    A("s_cmp_lt_u32 s20, 4"); A("s_cselect_b32 s28, s29, s28"); A("s_cselect_b32 s29, 2, 3"); A("s_add_u32 s28, s28, s27")
    A("s_lshl_b32 s89, s28, 2"); A("s_add_u32 s89, s89, s21"); A("s_cmp_lt_u32 s27, s29"); A("s_cselect_b32 s89, s89, 64")
    A("s_cmp_ge_u32 s20, 4"); A("s_cbranch_scc1 %s" % L("qao"))
    S = Seq(A)
    S("s_sub_u32 s27, s20, 2"); S("s_mul_i32 s28, s27, %d" % KV_MAT); S("s_add_u32 s50, s50, s28"); S("s_add_u32 s28, s27, 10"); S("s_lshl_b32 s28, s21, s28"); S("s_add_u32 s50, s50, s28")
    S("s_lshl_b32 s51, s27, 7"); S("s_lshl_b32 s28, s22, 8"); S("s_add_u32 s51, s51, s28"); S("s_add_u32 s51, s51, %d" % WS_KVFL)
    S("s_mov_b32 s44, 0"); S("s_mov_b32 s45, 0")
    load_srd(A, 72, KA_WR, 0); load_srd(A, 76, KA_WI, 0)
    A("s_lshl_b32 s27, s27, 5"); A("s_add_u32 s27, s27, s22"); A("s_lshl_b32 s27, s27, 2"); A("s_add_u32 s94, s27, s21"); A("s_mov_b32 s95, 0")
    A("s_and_b32 s93, s22, 3"); A("s_add_u32 s93, s93, 10"); A("s_cmp_lg_u32 s101, 0"); A("s_cselect_b32 s93, 1000, s93")
    A("s_waitcnt lgkmcnt(0)"); fin_srd(A, 72, SZ_WF); fin_srd(A, 76, SZ_WF)
    xpoll(S, "7", "kx")
    x_dma(S, "s44", "s45"); S.wait_vm_all(); S("s_barrier")
    A.label(L("kv_top"))
    S = Seq(A)
    S("v_add_u32 v1, s45, v0"); S("s_sub_u32 s45, 40960, s45"); S("s_add_u32 s44, s44, 1")
    x_dma(S, "s44", "s45")
    S("s_cmp_eq_u32 s20, 3"); S("s_cbranch_scc1 %s" % L("kv_v"))
    nv0 = S.nv
    proj(S, 1, 8, [32 + 4 * i for i in range(6)])
    S("s_add_u32 s27, s50, 4096")
    for mt in range(2):
        for i in range(4): S("v_cvt_pk_bf16_f32 v%d, v%d, v%d" % (24 + 4 * mt + i, 8 + 8 * mt + i, 12 + 8 * mt + i))
        S("buffer_store_dwordx4 %s, v0, s[8:11], %s offen sc1" % (r4(24 + 4 * mt), "s27" if mt else "s50"))
    S("s_branch %s" % L("kv_c"))
    A.label(L("kv_v"))
    S = Seq(A)
    proj(S, 1, 8, [32 + 4 * i for i in range(6)], True)
    for tl in range(2):
        for q in range(4): S("v_cvt_pk_bf16_f32 v%d, v%d, v%d" % (24 + 4 * tl + q, 8 + 8 * (q // 2) + 4 * tl + 2 * (q % 2), 9 + 8 * (q // 2) + 4 * tl + 2 * (q % 2)))
        S("buffer_store_dwordx4 %s, v0, s[8:11], s50 offen offset:%d sc1" % (r4(24 + 4 * tl), 1024 * tl))
    A.label(L("kv_c"))
    S("s_add_u32 s50, s50, 262144"); S("s_add_u32 s27, s44, s43"); S("v_mov_b32 v2, s27")
    S.wait_vm_all(); S("s_barrier")
    S("s_cmp_lg_u32 s21, 0"); S("s_cbranch_scc1 %s" % L("kv_nf"))
    S("s_mov_b64 exec, 1"); S("buffer_store_dword v2, v0, s[8:11], s51 offen sc1"); S("s_mov_b64 exec, -1")
    A.label(L("kv_nf"))
    S("s_cmp_lg_u32 s44, 2"); S("s_cbranch_scc1 %s" % L("kv_np"))
    xpoll(S, "-1", "kx")
    A.label(L("kv_np"))
    A("s_cmp_lg_u32 s44, s93"); A("s_cbranch_scc1 %s" % L("kv_nt"))
    A("s_add_u32 s93, s93, 5"); lane_setup(A)
    A("s_cmp_ge_u32 s94, 800"); A("s_cbranch_scc1 %s" % L("kv_wt"))
    A("s_mov_b32 s36, s94"); t2_frag(A); A("s_add_u32 s94, s94, 256"); A("s_branch %s" % L("kv_nt"))
    A.label(L("kv_wt"))
    A("s_cmp_ge_u32 s95, 6"); A("s_cbranch_scc1 %s" % L("kv_nt"))
    A("s_mov_b32 s36, s95"); A("s_and_b32 s37, s94, 255"); wt_task(A, L("kv_ws")); A("s_add_u32 s95, s95, 1")
    A.label(L("kv_nt"))
    S("s_cmp_lt_u32 s44, 64"); S("s_cbranch_scc1 %s" % L("kv_top"))
    if P.get("NOQAO"):
        A("s_cmp_lg_u32 s101, 0"); A("s_cbranch_scc1 %s" % L("end")); A("s_mov_b32 s101, 1"); A("s_branch %s" % L("bulk"))
    A("s_branch %s" % L("bphase"))

    LQ_EQ, LQ_EO, LQ_ST, LQ_FT = 81920, 90112, 98304, 122880
    A.label(L("qao"))
    if P.get("NOQAO"): A("s_branch %s" % L("end"))
    A("s_cmp_lg_u32 s101, 0"); A("s_cbranch_scc1 %s" % L("q_ft"))
    lane_setup(A); A("s_min_u32 s36, s22, 19"); A("s_mul_i32 s36, s36, 40"); A("s_mul_i32 s27, s21, 10"); A("s_add_u32 s36, s36, s27"); A("s_add_u32 s35, s36, 10")
    A("s_add_u32 s27, s42, %d" % LQ_FT); A("v_add_u32 v2, s27, v0")
    A.label(L("q_ftl"))
    t1_frag(A); A("ds_write_b128 v2, v[24:27]"); A("v_add_u32 v2, 1024, v2")
    A("s_add_u32 s36, s36, 1"); A("s_cmp_lt_u32 s36, s35"); A("s_cbranch_scc1 %s" % L("q_ftl"))
    A("s_waitcnt lgkmcnt(0)")
    A.label(L("q_ft"))
    S = Seq(A)
    G, R_, VH, PSX, RLA, RLB, XOA, XOB, THR, XHA, XDA, FTA = 1, 2, 3, 4, 5, 6, 7, 8, 9, 12, 13, 14
    SELR = 16
    def cvt(d, a_, b_, op="v_cvt_pk_bf16_f32"): S("%s v%d, v%d, v%d" % (op, d, a_, b_))
    S("v_lshrrev_b32 v%d, 8, v0" % G); S("v_bfe_u32 v%d, v0, 4, 4" % R_)
    S("v_add_u32 v%d, %d, v0" % (VH, LQ_EQ)); S("v_add_u32 v%d, %d, v0" % (FTA, LQ_FT))
    S("s_mul_i32 s28, s21, 320")
    S("v_mul_u32_u24 v10, 40960, v%d" % R_); S("v_lshl_add_u32 v10, v%d, 4, v10" % G); S("s_mul_i32 s27, s22, 1280"); S("s_add_u32 s29, s27, s28"); S("v_add_u32 v%d, s29, v10" % PSX)
    S("v_mul_u32_u24 v10, 1280, v%d" % G); S("s_mul_i32 s27, s22, 40960"); S("s_add_u32 s27, s27, s28"); S("v_add_u32 v10, s27, v10"); S("v_lshl_add_u32 v%d, v%d, 4, v10" % (RLA, R_))
    S("v_lshrrev_b32 v11, 2, v%d" % R_); S("v_mul_u32_u24 v15, 5120, v11"); S("v_add_u32 v10, v10, v15"); S("v_and_b32 v15, 0x30, v0"); S("v_add_u32 v%d, v10, v15" % RLB)
    S("v_and_b32 v10, 1, v%d" % G); S("v_lshlrev_b32 v10, 3, v10"); S("v_add_u32 v%d, s29, v10" % XOB); S("v_lshl_add_u32 v%d, v%d, 4, v%d" % (XOA, R_, XOB)); S("v_add_u32 v%d, v%d, v15" % (XOB, XOB))
    S("v_lshl_add_u32 v10, v11, 10, v10"); S("v_lshl_add_u32 v10, v15, 4, v10"); S("s_mul_i32 s27, s21, 5120"); S("s_and_b32 s28, s22, 15"); S("s_lshl_b32 s28, s28, 4"); S("s_add_u32 s27, s27, s28")
    S("s_lshr_b32 s28, s22, 4"); S("s_mul_i32 s28, s28, 20480"); S("s_add_u32 s27, s27, s28"); S("v_add_u32 v%d, s27, v10" % XHA)
    S("v_lshlrev_b32 v10, 13, v%d" % R_); S("v_lshl_add_u32 v10, v%d, 4, v10" % G); S("s_lshl_b32 s27, s22, 18"); S("s_lshl_b32 s28, s21, 6"); S("s_add_u32 s27, s27, s28"); S("v_add_u32 v%d, s27, v10" % XDA)
    S("s_and_b32 s58, s21, 1"); S("s_lshr_b32 s59, s21, 1")
    S("v_lshlrev_b32 v10, 2, v%d" % G); S("v_sub_u32 v10, v%d, v10" % R_); S("s_lshl_b32 s27, s58, 4"); S("v_add_u32 v%d, s27, v10" % THR)
    S("v_and_b32 v10, 16, v0"); S("s_movk_i32 s27, 0x3f80"); S("v_lshlrev_b32_e64 v10, v10, s27"); S("v_bfe_u32 v11, v0, 5, 2")
    for q in range(4):
        S("v_cmp_eq_u32 vcc, %d, v11" % q); S("v_cndmask_b32 v%d, 0, v10, vcc" % (SELR + q))
    S("s_mov_b32 s40, 0x%08x" % f2u(C1)); S("s_mov_b32 s41, s40")
    S("s_sub_u32 s44, s20, 4"); S("s_mov_b32 s45, 0")
    S("s_mul_i32 s48, s44, %d" % (2 * PARTX_SLOT)); S("s_add_u32 s48, s48, %d" % WS_PARTX); S("s_mov_b32 s49, %d" % PARTX_SLOT)
    S("s_lshl_b32 s51, s44, 12"); S("s_lshl_b32 s27, s101, 11"); S("s_add_u32 s51, s51, s27"); S("s_add_u32 s51, s51, %d" % WS_ARR)
    S("s_lshl_b32 s52, s22, 7"); S("s_lshl_b32 s27, s101, 12"); S("s_add_u32 s52, s52, s27"); S("s_add_u32 s52, s52, %d" % WS_CHFL)
    S("s_lshl_b32 s53, s22, 13"); S("s_add_u32 s53, s53, %d" % WS_KM)
    S("s_mul_i32 s54, s101, %d" % (WS_X3 - WS_X1)); S("s_add_u32 s54, s54, %d" % WS_X1)
    S("s_lshl_b32 s60, s22, 8"); S("s_add_u32 s60, s60, %d" % WS_KVFL)
    S("s_mul_i32 s63, s44, 65536"); S("s_add_u32 s63, s63, %d" % WS_XNH); S("s_add_u32 s64, s63, 4096")
    xpoll(S, "-1", "qx")
    x_dma(S, "s44", "0"); S("s_add_u32 s46, s44, 4"); x_dma(S, "s46", "40960"); S("s_waitcnt vmcnt(0)"); S("s_barrier")
    A("s_mov_b32 s65, 0"); A("s_mov_b32 s66, s44"); A("s_mov_b32 s62, 0x%x" % OOB); A("s_mov_b32 s67, 0x%x" % OOB); A("s_mov_b32 s68, 0x%x" % OOB)
    QF = [160 + 4 * i for i in range(4)]; OO = [144 + 4 * i for i in range(4)]; MX, ZX, TM, M2, AL = 176, 177, 178, 179, 180; RESN = 184; RES = 20
    KF = [72 + 4 * i for i in range(8)]; VF = [104 + 4 * i for i in range(4)]; SA, SB, PB, SM = 120, 124, 128, 48; FLG = 15
    def flag_load(E): E("v_lshlrev_b32 v10, 3, v0"); E("s_mov_b64 exec, 3"); E("buffer_load_dword v%d, v10, s[8:11], s60 offen sc1" % FLG); E("s_mov_b64 exec, -1")
    def flag_get(E): E("v_readlane_b32 s65, v%d, 0" % FLG); E("v_readlane_b32 s27, v%d, 1" % FLG); E("s_nop 3"); E("s_min_u32 s65, s65, s27")
    def xl(reg, op, both=True):
        for sw in ("v_permlane16_swap_b32", "v_permlane32_swap_b32")[:2 if both else 1]:
            S("v_mov_b32 v%d, v%d" % (TM, reg)); S("%s v%d, v%d" % (sw, reg, TM)); S("%s v%d, v%d, v%d" % (op, reg, reg, TM))
    A.label(L("q_front"))
    A("s_add_u32 s56, s66, s43"); A("s_mov_b32 s30, 0")
    A.label(L("q_kf"))
    A("s_cmp_gt_u32 s65, s56"); A("s_cbranch_scc1 %s" % L("q_kg"))
    flag_load(A); A("s_waitcnt vmcnt(0)"); flag_get(A); A("s_sleep 1")
    A("s_add_u32 s30, s30, 1"); A("s_cmp_lt_u32 s30, %d" % SPIN_MAX); A("s_cbranch_scc1 %s" % L("q_kf")); A("s_branch %s" % L("fail"))
    A.label(L("q_kg"))
    S = Seq(A); S("s_nop 1")
    S("s_lshl_b32 s27, s66, 18"); S("s_add_u32 s27, s27, s50"); S("s_add_u32 s28, s27, 4096")
    for i in range(8): S("buffer_load_dwordx4 %s, v0, s[8:11], %s offen offset:%d sc1" % (r4(KF[i]), "s28" if i >= 4 else "s27", 1024 * (i % 4)))
    S("s_lshl_b32 s28, s59, 12"); S("s_add_u32 s27, s27, s28"); S("s_add_u32 s27, s27, %d" % KV_MAT)
    for i in range(4): S("buffer_load_dwordx4 %s, v0, s[8:11], s27 offen offset:%d sc1" % (r4(VF[i]), 1024 * i))
    S("s_mul_i32 s27, s66, 40960")
    S("buffer_load_dwordx2 %s, v%d, s[16:19], s27 offen sc1" % (r2(RESN), XOA)); S("buffer_load_dwordx2 %s, v%d, s[16:19], s27 offen offset:256 sc1" % (r2(RESN + 2), XOB))
    flag_load(S)
    QA = 24
    S("v_add_u32 v11, s45, v0"); S("s_sub_u32 s45, 40960, s45")
    proj(S, 11, QA, [40 + 4 * i for i in range(6)])
    for r in range(QA, QA + 16, 2): S("v_pk_mul_f32 %s, %s, s[40:41]" % (r2(r), r2(r)))
    S("s_lshl_b32 s27, s21, 10"); S("v_add_u32 v10, s27, v%d" % VH)
    for mt in range(2):
        for i in range(4): cvt(40 + 4 * mt + i, QA + 8 * mt + i, QA + 4 + 8 * mt + i)
        S("ds_write_b128 v10, %s offset:%d" % (r4(40 + 4 * mt), mt * 4096))
    S("s_lshl_b32 s27, s58, 12"); S("v_add_u32 v10, s27, v%d" % VH)
    S("s_waitcnt vmcnt(15) lgkmcnt(0)"); S("s_barrier")
    for u in range(4): rd(S, QF[u], 10, 1024 * u)
    def arr_store(tag):
        S("s_cmp_lg_u32 s21, 0"); S("s_cbranch_scc1 %s" % L(tag))
        S("s_mov_b64 exec, 1"); S("v_mov_b32 v10, s22"); S("v_mov_b32 v11, 1")
        lst(["buffer_store_byte v11, v10, s[8:11], s62 offen"])
        S("s_mov_b64 exec, -1")
        A.label(L(tag))
    S("s_waitcnt vmcnt(0)")
    arr_store("q_fa")
    S("v_mov_b32 v11, 0x%08x" % f2u(-1e30))
    for i in range(8):
        S("v_cmp_gt_i32 vcc, %d, v%d" % (16 * (i // 4) + i % 4, THR)); S("v_cndmask_b32 v%d, 0, v11, vcc" % (SA + i))
    for u in range(4): mf32(S, SA, KF[u], QF[u], SA); mf32(S, SB, KF[4 + u], QF[u], SB)
    flag_get(S)
    S("v_max3_f32 v%d, v%d, v%d, v%d" % (MX, SA, SA + 1, SA + 2))
    for i in (3, 5): S("v_max3_f32 v%d, v%d, v%d, v%d" % (MX, MX, SA + i, SA + i + 1))
    S("v_max_f32 v%d, v%d, v%d" % (MX, MX, SA + 7)); xl(MX, "v_max_f32")
    for r in range(SA, SA + 8): S("v_sub_f32 v%d, v%d, v%d" % (r, r, MX))
    for r in range(SA, SA + 8): S("v_exp_f32 v%d, v%d" % (r, r))
    for q in range(4): cvt(PB + q, SA + 2 * q, SA + 2 * q + 1)
    S("v_add_f32 v%d, v%d, v%d" % (ZX, SA, SA + 1))
    for r in range(SA + 2, SA + 8): S("v_add_f32 v%d, v%d, v%d" % (ZX, ZX, r))
    for i in range(4): mf32(S, OO[i], VF[i], PB, "0")
    xl(ZX, "v_add_f32")
    S("s_cmp_lg_u32 s66, s44"); S("s_cbranch_scc1 %s" % L("q_back2"))
    A.label(L("q_top"))
    hq(0)
    S = Seq(A)
    S("s_add_u32 s56, s44, s43"); S("s_lshl_b32 s57, s44, 7"); S("s_mul_i32 s55, s44, 40960")
    S("s_lshl_b32 s26, s56, 18"); S("s_add_u32 s26, s26, s53"); S("s_lshl_b32 s28, s59, 11"); S("s_add_u32 s29, s26, s28"); S("s_add_u32 s29, s29, 4096")
    S("s_lshl_b32 s27, s58, 12"); S("s_add_u32 s27, s27, s28"); S("v_add_u32 v10, s27, v%d" % VH)
    poll(S, "s52", 3, "v_cmp_ge_u32 vcc, s57, v191", "cf", sleep=P.get("QS", 1))
    S = Seq(A)
    KMF = [24 + 4 * i for i in range(4)]; VM = [40, 44]
    hq(5)
    def dflag(stage):
        A("s_lshl_b32 s27, s20, 12"); A("s_lshl_b32 s28, s22, 7"); A("s_add_u32 s27, s27, s28"); A("s_add_u32 s27, s27, %d" % (WS_DFL - 4 * 4096))
        A("s_lshl_b32 s28, s101, 1"); A("s_add_u32 s28, s28, %d" % stage); A("v_mov_b32 v11, s28")
        A("s_mov_b64 exec, 1"); A("buffer_store_dword v11, v0, s[8:11], s27 offen sc1"); A("s_mov_b64 exec, -1")
    for u in range(4): S("buffer_load_dwordx4 %s, v0, s[8:11], s26 offen offset:%d sc1" % (r4(KMF[u]), 1024 * u))
    for i in range(2): S("buffer_load_dwordx4 %s, v0, s[8:11], s29 offen offset:%d sc1" % (r4(VM[i]), 1024 * i))
    def late_stores(E):
        E("s_add_u32 s28, s68, %d" % (16 * 8192))
        for T in range(2): E("buffer_store_dwordx4 %s, v%d, s[8:11], %s offen sc1" % (r4(104 + 4 * T), XDA, "s28" if T else "s68"))
        E("s_mov_b32 exec_hi, 0"); E("buffer_store_dwordx2 %s, v%d, s[8:11], s67 offen sc1" % (r2(RES), XOA))
        E("s_mov_b32 exec_lo, 0x000f000f"); E("buffer_store_dwordx2 %s, v%d, s[8:11], s67 offen offset:256 sc1" % (r2(RES + 2), XOA)); E("s_mov_b64 exec, -1")
    for u in range(4): mf32(S, SM, KMF[u], QF[u], "0" if u == 0 else SM)
    hq(6)
    S("v_max3_f32 v%d, v%d, v%d, v%d" % (M2, MX, SM, SM + 1)); S("v_max3_f32 v%d, v%d, v%d, v%d" % (M2, M2, SM + 2, SM + 3)); xl(M2, "v_max_f32", False)
    S("v_sub_f32 v%d, v%d, v%d" % (AL, MX, M2))
    for r in range(SM, SM + 4): S("v_sub_f32 v%d, v%d, v%d" % (r, r, M2))
    S("v_exp_f32 v%d, v%d" % (AL, AL))
    for r in range(SM, SM + 4): S("v_exp_f32 v%d, v%d" % (r, r))
    S("v_add_f32 v%d, v%d, v%d" % (M2, SM, SM + 1)); S("v_add_f32 v%d, v%d, v%d" % (MX, SM + 2, SM + 3)); S("v_add_f32 v%d, v%d, v%d" % (M2, M2, MX)); xl(M2, "v_add_f32", False)
    S("v_fmac_f32 v%d, v%d, v%d" % (M2, AL, ZX)); S("v_rcp_f32 v%d, v%d" % (M2, M2))
    S("v_mul_f32 v%d, v%d, v%d" % (AL, AL, M2))
    for r in range(SM, SM + 4): S("v_mul_f32 v%d, v%d, v%d" % (r, r, M2))
    cvt(SM, SM, SM + 1); cvt(SM + 1, SM + 2, SM + 3)
    for r in range(OO[0], OO[0] + 16, 2): S("v_pk_mul_f32 %s, %s, %s op_sel_hi:[1,0]" % (r2(r), r2(r), r2(AL)))
    for i in range(4): mf16(S, OO[i], VM[i // 2] + 2 * (i % 2), SM, OO[i])
    for j in range(2):
        for i in range(4): cvt(56 + 4 * j + i, OO[2 * j] + i, OO[2 * j + 1] + i)
        S("ds_write_b128 v10, %s offset:%d" % (r4(56 + 4 * j), LQ_EO - LQ_EQ + j * 1024))
    S.wait_lds_all(); S("s_barrier")
    OF = [24 + 4 * i for i in range(8)]
    hq(7)
    for u in range(4):
        for qt in range(2): rd(S, OF[4 * qt + u], VH, LQ_EO - LQ_EQ + 4096 * qt + 1024 * u)
    late_stores(S)
    S("v_mov_b64 %s, %s" % (r2(RES), r2(RESN))); S("v_mov_b64 %s, %s" % (r2(RES + 2), r2(RESN + 2)))
    A("s_add_u32 s46, s44, 8"); A("s_cmp_ge_u32 s46, 64"); A("s_cbranch_scc1 %s" % L("q_tb"))
    A("s_sub_u32 s29, 40960, s45"); x_dma(Seq(A), "s46", "s29")
    A.label(L("q_nx"))
    S("s_mov_b32 s62, s51")
    S("s_add_u32 s27, s48, %d" % (16 * 40960))
    XA = lambda pr, qt, tb: 64 + 16 * pr + 8 * qt + 4 * tb
    pend = []
    st = lambda pr: ["buffer_store_dwordx4 %s, v%d, s[8:11], %s offen offset:%d" % (r4(XA(pr, qt, 0)), PSX, "s27" if qt else "s48", 64 * pr) for qt in range(2)]
    for pr in range(5):
        for u in range(4):
            for qt in range(2):
                for tb in range(2):
                    mf32(S, XA(pr, qt, tb), breg(40 + (2 * pr + tb) * 4 + u), OF[4 * qt + u], "0" if u == 0 else XA(pr, qt, tb))
                    if u >= 1 and pend: cvt(*pend.pop(0)); cvt(*pend.pop(0))
            if u == 1 and pr: lst(st(pr - 1), S)
        pend = [(XA(pr, qt, 0) + q, XA(pr, qt, 0) + 2 * q, XA(pr, qt, 0) + 2 * q + 1) for qt in range(2) for q in range(4)]
    while pend: cvt(*pend.pop(0))
    lst(st(4), S)
    hq(8)
    S("s_add_u32 s66, s44, 4"); S("s_cmp_lt_u32 s66, 64"); S("s_cbranch_scc1 %s" % L("q_front"))
    S = Seq(A)
    def arrive(tag):
        S("s_waitcnt vmcnt(0)"); S("s_barrier"); arr_store(tag)
    arrive("q_na")
    A.label(L("q_back2"))
    A("s_lshr_b32 s27, s44, 2"); A("s_lshl_b32 s28, s21, 8"); A("s_or_b32 s27, s27, s28"); A("s_cmp_lg_u32 s27, %d" % (14 + 256 * 3)); A("s_cbranch_scc1 %s" % L("q_nf1"))
    dflag(1)
    A.label(L("q_nf1"))
    hq(9)
    poll(S, "s62", 0xff, "v_cmp_ne_u32 vcc, 0x01010101, v191", "ar", sleep=0)
    S = Seq(A)
    B0, D0 = 24, 64
    hq(10)
    for j in range(8):
        if j: S("s_add_u32 s27, s48, %d" % (j * 5120))
        S("buffer_load_dwordx4 %s, v%d, s[8:11], %s offen sc1" % (r4(B0 + 4 * j), RLA, "s27" if j else "s48"))
        if j % 4 == 0: S("buffer_load_dwordx4 %s, v%d, s[8:11], %s offen offset:256 sc1" % (r4(B0 + 32 + j), RLB, "s27" if j else "s48"))
    XV = 72
    for q in range(4): S("v_lshlrev_b32 v%d, 16, v%d" % (XV + 2 * q, RES + q)); S("v_and_b32 v%d, 0xffff0000, v%d" % (XV + 2 * q + 1, RES + q))
    S("s_add_u32 s67, s55, s54")
    for j in range(8):
        mf32(S, D0, SELR, B0 + 4 * j, "0" if j == 0 else D0)
        if j % 4 == 0: mf32(S, D0 + 4, SELR, B0 + 32 + j, "0" if j == 0 else D0 + 4)
    hq(11)
    for sh in (8, 4):
        for q in range(4): S("v_add_f32_dpp v%d, v%d, v%d row_ror:%d row_mask:0xf bank_mask:0xf" % (D0 + 4 + q, D0 + 4 + q, D0 + 4 + q, sh))
    for q in range(4): S("v_pk_add_f32 %s, %s, %s" % (r2(XV + 2 * q), r2(XV + 2 * q), r2(D0 + 2 * q)))
    for q in range(4): cvt(RES + q, XV + 2 * q, XV + 2 * q + 1)
    for q in range(4): S("v_lshlrev_b32 v%d, 16, v%d" % (XV + 2 * q, RES + q)); S("v_and_b32 v%d, 0xffff0000, v%d" % (XV + 2 * q + 1, RES + q))
    ME, DV = 80, 84
    def wsum(dst, src):
        S("v_pk_add_f32 %s, %s, %s" % (r2(92), r2(src), r2(src + 2))); S("v_pk_add_f32 %s, %s, %s" % (r2(94), r2(src + 4), r2(src + 6)))
        S("v_add_f32 v92, v92, v93"); S("v_add_f32 v94, v94, v95"); S("v_fma_f32 v%d, v94, 0.5, v92" % dst) if False else None
        S("v_mul_f32 v94, 0x3e800000, v94"); S("v_add_f32 v%d, v92, v94" % dst)
        for sh in (8, 4, 2, 1): S("v_add_f32_dpp v%d, v%d, v%d row_ror:%d row_mask:0xf bank_mask:0xf" % (dst, dst, dst, sh))
        xl(dst, "v_add_f32", False)
    wsum(ME, XV); S("v_mul_f32 v%d, 0x%08x, v%d" % (ME, f2u(1 / 160), ME))
    for q in range(4): S("v_pk_add_f32 %s, %s, %s op_sel_hi:[1,0] neg_lo:[0,1] neg_hi:[0,1]" % (r2(DV + 2 * q), r2(XV + 2 * q), r2(ME)))
    for q in range(4): S("v_pk_mul_f32 %s, %s, %s" % (r2(DV + 2 * q), r2(DV + 2 * q), r2(DV + 2 * q)))
    wsum(ME + 1, DV)
    S("s_lshl_b32 s27, s21, 3"); S("s_add_u32 s27, s27, %d" % LQ_ST); S("v_mov_b32 v10, s27"); S("v_mov_b32 v11, %d" % LQ_ST)
    S("ds_write_b64 v10, %s" % r2(ME)); S.wait_lds_all(); S("s_barrier")
    rd(S, DV, 11, 0); rd(S, DV + 4, 11, 16)
    S("v_pk_add_f32 %s, %s, %s" % (r2(ME), r2(DV), r2(DV + 2))); S("v_pk_add_f32 %s, %s, %s" % (r2(92), r2(DV + 4), r2(DV + 6))); S("v_pk_add_f32 %s, %s, %s" % (r2(ME), r2(ME), r2(92)))
    S("v_mul_f32 v%d, 0x3e800000, v%d" % (ME, ME))
    for e in range(4): S("v_sub_f32 v%d, v%d, v%d" % (DV + 2 * e, DV + 2 * e, ME))
    for e in range(4): S("v_mul_f32 v%d, 0x43200000, v%d" % (DV + 2 * e + 1, DV + 2 * e))
    for e in range(4): S("v_fmac_f32 v%d, v%d, v%d" % (ME + 1, DV + 2 * e, DV + 2 * e + 1))
    S("v_mov_b32 v%d, 0x3727c5ac" % (ME + 2)); S("v_fmac_f32 v%d, 0x3acccccd, v%d" % (ME + 2, ME + 1)); S("v_rsq_f32 v%d, v%d" % (ME + 2, ME + 2))
    for q in range(4): S("v_pk_add_f32 %s, %s, %s op_sel_hi:[1,0] neg_lo:[0,1] neg_hi:[0,1]" % (r2(XV + 2 * q), r2(XV + 2 * q), r2(ME)))
    for q in range(4): S("v_pk_mul_f32 %s, %s, %s op_sel_hi:[1,0]" % (r2(XV + 2 * q), r2(XV + 2 * q), r2(ME + 2)))
    for q in range(4): cvt(XV + q, XV + 2 * q, XV + 2 * q + 1, "v_cvt_pk_f16_f32")
    lst(["s_mov_b32 exec_hi, 0", "buffer_store_dwordx2 %s, v%d, s[8:11], s63 offen" % (r2(XV), XHA), "s_mov_b32 exec_lo, 0x000f000f", "buffer_store_dwordx2 %s, v%d, s[8:11], s64 offen" % (r2(XV + 2), XHA), "s_mov_b64 exec, -1"], S)
    hq(12)
    S("s_add_u32 s62, s51, 16384"); arrive("q_nb")
    hq(13)
    A("s_cmp_ge_u32 s22, 20"); A("s_cbranch_scc1 %s" % L("q_nd"))
    poll(S, "s62", 0xff, "v_cmp_ne_u32 vcc, 0x01010101, v191", "ar", sleep=0)
    hq(14)
    A("s_cmp_ge_u32 s21, 2"); A("s_cbranch_scc1 %s" % L("q_nd"))
    S = Seq(A)
    S("s_mul_i32 s27, s21, 20480"); S("s_add_u32 s27, s27, s63")
    for f in range(20):
        S("buffer_load_dwordx4 %s, v0, s[8:11], s27 offen offset:%d sc1" % (r4(24 + 4 * f), (f % 4) * 1024))
        if f % 4 == 3: S("s_add_u32 s27, s27, 4096")
    TB = [112 + 4 * i for i in range(8)]
    sq = [(ks, T) for ks in range(20) for T in range(2)]
    def trd(i):
        if i < 40: rd(S, TB[i % 8], FTA, (sq[i][1] * 20 + sq[i][0]) * 1024)
    for i in range(7): trd(i)
    S("s_lshl_b32 s27, s44, 7"); S("s_mul_i32 s68, s101, %d" % XD_LAYER); S("s_add_u32 s68, s68, s27"); S("s_add_u32 s68, s68, %d" % WS_XD)
    for i, (ks, T) in enumerate(sq):
        S("v_mfma_f32_16x16x32_f16 %s, %s, %s, %s" % (r4(104 + 4 * T), r4(24 + 4 * ks), r4(TB[i % 8]), "0" if ks == 0 else r4(104 + 4 * T)))
        trd(i + 7)
    S("s_nop 7")
    A.label(L("q_nd"))
    hq(15)
    A("s_lshr_b32 s27, s44, 2"); A("s_cmp_lg_u32 s27, 14"); A("s_cbranch_scc1 %s" % L("q_nt"))
    idft_table(Seq(A), 1, "v0", "s21")
    A.label(L("q_nt"))
    A("s_add_u32 s48, s48, s49"); A("s_sub_u32 s49, 0, s49"); A("s_add_u32 s51, s51, 128")
    A("s_add_u32 s44, s44, 4"); A("s_cmp_lt_u32 s44, 64"); A("s_cbranch_scc1 %s" % L("q_top"))
    A("s_cmp_ge_u32 s21, 2"); A("s_cbranch_scc1 %s" % L("q_e1"))
    late_stores(A); A("s_waitcnt vmcnt(2)"); A("s_barrier"); A("s_cmp_lg_u32 s21, 0"); A("s_cbranch_scc1 %s" % L("bphase"))
    dflag(2); A("s_branch %s" % L("bphase"))
    A.label(L("q_tb"))
    A("s_cmp_ge_u32 s44, 60"); A("s_cbranch_scc1 %s" % L("q_nx"))
    A("s_cmp_lg_u32 s101, 0"); A("s_cbranch_scc1 %s" % L("q_tb2"))
    A("v_lshlrev_b32 v190, 3, v0"); A("s_mov_b64 exec, 3"); A("s_mov_b32 s28, %d" % (WS_BAR2 + 1024)); A("s_mov_b32 s30, 0")
    A.label(L("q_tbl"))
    A("buffer_load_dword v191, v190, s[8:11], s28 offen sc1")
    A("s_add_u32 s30, s30, 1"); A("s_cmp_ge_u32 s30, %d" % SPIN_MAX); A("s_cbranch_scc1 %s" % L("fail"))
    A("s_waitcnt vmcnt(0)"); A("v_cmp_ne_u32 vcc, 1, v191"); A("s_cbranch_vccnz %s" % L("q_tbl"))
    A("s_mov_b64 exec, -1")
    A.label(L("q_tb2"))
    idft_table(Seq(A), 0, "v0", "s21"); A("s_branch %s" % L("q_nx"))
    A.label(L("q_e1"))
    A("s_barrier"); late_stores(A)

    A.label(L("bphase"))
    ht(3)
    def gbar(ph, between=None, ng=6):
        base = WS_BAR2 + ph * 4096
        lw = A.newlabel(L("gb")); ld = A.newlabel(L("gb")); la = A.newlabel(L("gb"))
        def spin(addr_setup, lanes, want):
            lp = A.newlabel(L("gs"))
            A("s_mov_b64 exec, 0x%x" % lanes); addr_setup(); A("s_mov_b32 s30, 0")
            A.label(lp)
            A("buffer_load_dword v191, v190, s[8:11], s28 offen sc1")
            A("s_add_u32 s30, s30, 1"); A("s_cmp_ge_u32 s30, %d" % (SPIN_MAX * 4)); A("s_cbranch_scc1 %s" % L("fail"))
            A("s_waitcnt vmcnt(0)"); A("v_cmp_ne_u32 vcc, 0x%x, v191" % want); A("s_cbranch_vccnz %s" % lp)
        if ng < 6: A("s_cmp_ge_u32 s82, %d" % ng); A("s_cbranch_scc1 %s" % la)
        A("s_waitcnt vmcnt(0) lgkmcnt(0)"); A("s_barrier")
        A("s_cmp_lg_u32 s83, 0"); A("s_cbranch_scc1 %s" % la)
        A("s_mov_b32 s23, s85"); A("s_add_u32 s28, s86, %d" % base); A("s_lshl_b32 s27, s82, 7")
        A("s_mov_b64 exec, 1"); A("s_add_u32 s31, s27, s84"); A("v_mov_b32 v190, s31"); A("v_mov_b32 v191, 1")
        lst(["buffer_store_byte v191, v190, s[8:11], s28 offen"])
        A("s_cmp_lg_u32 s84, 31"); A("s_cbranch_scc1 %s" % lw)
        A("s_mov_b64 exec, -1"); A("v_mbcnt_lo_u32_b32 v189, -1, 0")
        spin(lambda: A("v_lshl_add_u32 v190, v189, 2, s27"), 0xff, 0x01010101)
        A("s_mov_b64 exec, 1"); A("v_mov_b32 v190, s27"); A("v_mov_b32 v191, 1"); A("buffer_store_dword v191, v190, s[8:11], s28 offen offset:1024 sc1")
        A.label(lw)
        A("s_mov_b64 exec, -1")
        A.label(la)
        if between: between()
        A("s_cmp_lg_u32 s83, 0"); A("s_cbranch_scc1 %s" % ld)
        A("s_add_u32 s28, s86, %d" % base); A("v_mbcnt_lo_u32_b32 v189, -1, 0")
        spin(lambda: A("v_lshlrev_b32 v190, 7, v189\nv_add_u32 v190, 1024, v190"), (1 << ng) - 1, 1)
        A("s_mov_b64 exec, -1")
        A.label(ld)
        A("s_barrier")
    A("s_sub_u32 s82, s20, 2"); A("s_mov_b32 s83, s21"); A("s_mov_b32 s84, s22"); A("s_mov_b32 s85, s23")
    A("s_lshl_b32 s87, s82, 5"); A("s_add_u32 s87, s87, s22")
    A("s_mul_i32 s86, s101, %d" % (6 * 4096))
    A("s_mul_i32 s80, s101, %d" % (WS_X3 - WS_X1)); A("s_add_u32 s80, s80, %d" % WS_X1)
    A("s_load_dwordx2 s[16:17], s[0:1], %d" % KA_OUT); A("s_waitcnt lgkmcnt(0)"); A("s_and_b32 s17, s17, 0xffff")
    A("s_cmp_eq_u32 s101, 1"); A("s_cbranch_scc1 %s" % L("osrd"))
    A("s_add_u32 s16, s8, %d" % WS_X2); A("s_addc_u32 s17, s9, 0")
    A.label(L("osrd"))
    def restore():
        A("s_add_u32 s20, s82, 2"); A("s_mov_b32 s21, s83"); A("s_mov_b32 s22, s84"); A("s_mov_b32 s23, s85")
    def tid():
        A("v_mbcnt_lo_u32_b32 v0, -1, 0"); A("v_mbcnt_hi_u32_b32 v0, -1, v0"); A("s_lshl_b32 s27, s83, 6"); A("v_add_u32 v0, s27, v0"); A("s_mov_b32 s2, s81")
    fpre, fmain = fft2(A, L("fft"), 81920, hb)
    A("s_cmp_eq_u32 s87, 160"); A("s_cselect_b32 s81, 191, s87"); A("s_cmp_eq_u32 s87, 191"); A("s_cselect_b32 s81, 160, s81")
    def dpoll(stage):
        ld = A.newlabel(L("dp")); lp = A.newlabel(L("dp"))
        A("s_cmp_lg_u32 s83, 0"); A("s_cbranch_scc1 %s" % ld)
        A("v_and_b32 v190, 3, v0"); A("v_lshlrev_b32 v190, 12, v190"); A("v_bfe_u32 v191, v0, 2, 1"); A("v_mul_u32_u24 v191, 1280, v191"); A("v_add_u32 v190, v190, v191")
        A("s_mov_b64 exec, 0xff")
        A("s_lshr_b32 s31, s34, 5"); A("s_lshl_b32 s31, s31, 7"); A("s_add_u32 s31, s31, %d" % WS_DFL); A("s_lshl_b32 s32, s101, 1"); A("s_add_u32 s32, s32, %d" % stage); A("s_mov_b32 s30, 0")
        A.label(lp)
        A("buffer_load_dword v191, v190, s[8:11], s31 offen sc1")
        A("s_add_u32 s30, s30, 1"); A("s_cmp_ge_u32 s30, %d" % (SPIN_MAX * 4)); A("s_cbranch_scc1 %s" % L("fail"))
        if stage == 1: A("s_sleep 4")
        A("s_waitcnt vmcnt(0)"); A("v_cmp_gt_u32 vcc, s32, v191"); A("s_cbranch_vccnz %s" % lp)
        A("s_mov_b64 exec, -1")
        A.label(ld)
        A("s_barrier")
        if stage == 2: ht2(8)
    A("s_cmp_ge_u32 s82, 2"); A("s_cbranch_scc1 %s" % L("tabok2"))
    A("s_cmp_lg_u32 s101, 0"); A("s_cbranch_scc1 %s" % L("tabok"))
    gbar(0, None, 2)
    A.label(L("tabok"))
    A("s_waitcnt vmcnt(0)"); A("s_barrier")
    for hf in range(2): idft_table(Seq(A), hf, "v0", "s83")
    A.label(L("tabok2"))
    def early():
        A("s_min_u32 s28, s89, 63"); A("s_lshl_b32 s29, s28, 12"); A("s_add_u32 s29, s29, %d" % WS_STAT); A("v_lshlrev_b32 v190, 3, v102")
        A("s_mov_b32 exec_hi, 0"); A("buffer_load_dword v191, v190, s[8:11], s29 offen sc1"); A("s_mov_b64 exec, 1")
        A("s_mul_i32 s28, s28, 40960"); A("s_lshl_b32 s29, s88, 7"); A("s_add_u32 s29, s29, s28"); A("buffer_load_dword v191, v190, s[16:19], s29 offen sc1")
        A("s_lshl_b32 s29, s88, 11"); A("s_add_u32 s29, s29, s28"); A("s_add_u32 s29, s29, %d" % (WS_XNF + XNF_LAYER)); A("buffer_load_dword v191, v190, s[8:11], s29 offen sc1")
        A("s_mul_i32 s28, s101, %d" % XNF_LAYER); A("s_min_u32 s29, s2, 159"); A("s_lshl_b32 s29, s29, 14"); A("s_add_u32 s28, s28, s29"); A("s_lshl_b32 s29, s83, 9"); A("s_add_u32 s28, s28, s29"); A("s_add_u32 s28, s28, %d" % WS_ZF)
        A("s_cmp_lt_u32 s2, 160"); A("s_cselect_b32 s28, s28, 0x%x" % OOB); A("buffer_load_dword v191, v190, s[8:11], s28 offen sc1")
        A("s_mov_b64 exec, -1")
    tid(); fpre()
    fmain(dpoll, early, P.get('DRY', 0)); ht2(9)
    hb(11); gbar(1); ht2(10); hb(12)
    A("s_cmp_ge_u32 s89, 64"); A("s_cbranch_scc1 %s" % L("noid"))
    A("v_mbcnt_lo_u32_b32 v0, -1, 0"); A("v_mbcnt_hi_u32_b32 v0, -1, v0"); A("s_mov_b32 s23, s85")
    idft(A, lambda x: L("idend") if (x == "end" and P.get("HT")) else L(x), lst, L("fail"), SPIN_MAX, hb)
    A.label(L("noid"))
    if P.get("HT"): A.label(L("idend"))
    restore(); ht(5)
    A("s_cmp_eq_u32 s101, 1"); A("s_cbranch_scc1 %s" % L("end"))
    A("s_mov_b32 s101, 1")
    A("v_mbcnt_lo_u32_b32 v0, -1, 0"); A("v_mbcnt_hi_u32_b32 v0, -1, v0"); A("v_lshlrev_b32 v0, 4, v0")
    A("s_waitcnt lgkmcnt(0)"); A("s_barrier")
    A("s_branch %s" % L("bulk"))
    flush_ool()
    A.label(L("fail"))
    A("s_mov_b64 exec, 1"); A("v_mov_b32 v12, 1"); A("v_mov_b32 v13, 48"); A("buffer_atomic_add v12, v13, s[12:15], 0 offen")
    A.label(L("end"))
    A("s_endpgm")
    return k
```

```python
import struct
from asmlib import *
from layout import *


def f2u(x):
    return struct.unpack('<I', struct.pack('<f', x))[0]


def lane_setup(A):
    A("v_lshrrev_b32 v1, 4, v0"); A("v_lshrrev_b32 v3, 8, v0"); A("v_and_b32 v4, 15, v1"); A("v_mov_b32 v5, v0")


def frag_idx(A):
    A("s_mul_hi_u32 s37, s36, 0x%x" % ((2 ** 32 + 19) // 20)); A("s_mul_i32 s38, s37, 20"); A("s_sub_u32 s38, s36, s38")
    A("s_lshl_b32 s37, s37, 4"); A("s_lshl_b32 s38, s38, 5"); A("v_lshlrev_b32 v7, 3, v3"); A("v_add_u32 v7, s38, v7")
    A("s_mov_b32 s39, 0x%x" % ((2 ** 32 + 639) // 640)); A("s_movk_i32 s40, 640")


def t1_frag(A):
    frag_idx(A); A("v_add_u32 v6, s37, v4")
    A("v_cmp_lt_u32 vcc, 320, v6"); A("v_subrev_u32 v8, 320, v6"); A("s_nop 1"); A("v_cndmask_b32 v8, v6, v8, vcc")
    A("v_mov_b32 v9, 0"); A("v_mov_b32 v10, 0x3e800000"); A("v_cndmask_b32 v9, v9, v10, vcc")
    for j in range(8):
        A("v_add_u32 v11, %d, v7" % j); A("v_mul_u32_u24 v11, v11, v8")
        A("v_mul_hi_u32 v12, v11, s39"); A("v_mul_lo_u32 v12, v12, s40"); A("v_sub_u32 v11, v11, v12")
        A("v_cvt_f32_u32 v11, v11"); A("v_mov_b32 v12, v9"); A("v_fmac_f32 v12, 0x%08x, v11" % f2u(1 / 640))
        A("v_cos_f32 v%d, v12" % (16 + j))
    A("s_nop 0")
    for q in range(4): A("v_cvt_pk_f16_f32 v%d, v%d, v%d" % (24 + q, 16 + 2 * q, 17 + 2 * q))


def t2_frag(A):
    frag_idx(A)
    A("s_and_b32 s41, s37, 16"); A("s_sub_u32 s37, s37, s41"); A("s_lshr_b32 s41, s41, 2"); A("s_add_u32 s37, s37, s41")
    A("v_and_b32 v6, 12, v4"); A("v_add_u32 v6, v6, v4"); A("v_add_u32 v6, s37, v6")
    c = 2.0 / (640 * 2048)
    A("v_lshrrev_b32 v8, 1, v7"); A("v_cmp_eq_u32 vcc, 0, v7")
    for j in range(8):
        A("v_add_u32 v11, %d, v8" % (j // 2))
        ph = 0.25 if j & 1 else 0.0
        A("v_mov_b32 v13, 0x%08x" % f2u(ph)); A("v_mov_b32 v14, 0x%08x" % f2u(c))
        if j < 2:
            A("v_mov_b32 v15, 0x%08x" % f2u(c / 2)); A("v_cndmask_b32 v14, v14, v15, vcc")
        if j == 1:
            A("v_mov_b32 v15, 320"); A("v_cndmask_b32 v11, v11, v15, vcc"); A("v_mov_b32 v15, 0"); A("v_cndmask_b32 v13, v13, v15, vcc")
        A("v_mul_u32_u24 v11, v11, v6")
        A("v_mul_hi_u32 v12, v11, s39"); A("v_mul_lo_u32 v12, v12, s40"); A("v_sub_u32 v11, v11, v12")
        A("v_cvt_f32_u32 v11, v11"); A("v_fmac_f32 v13, 0x%08x, v11" % f2u(1 / 640))
        A("v_cos_f32 v13, v13"); A("s_nop 0"); A("v_mul_f32 v%d, v13, v14" % (16 + j))
    for q in range(4): A("v_cvt_pk_bf16_f32 v%d, v%d, v%d" % (24 + q, 16 + 2 * q, 17 + 2 * q))
    A("s_lshl_b32 s37, s36, 10"); A("s_add_u32 s37, s37, %d" % WS_GT2)
    A("buffer_store_dwordx4 v[24:27], v5, s[8:11], s37 offen sc1")


def wt_task(A, skip):
    A("s_lshl_b32 s38, s36, 6"); A("v_add_u32 v6, s38, v1")
    A("s_lshr_b32 s38, s37, 5"); A("s_bfe_u32 s39, s37, 0x30002"); A("s_lshl_b32 s39, s39, 3"); A("s_add_u32 s38, s38, s39")
    A("s_and_b32 s39, s37, 3"); A("s_lshl_b32 s39, s39, 7"); A("s_add_u32 s38, s38, s39"); A("s_mul_i32 s38, s38, 642")
    A("v_lshlrev_b32 v7, 1, v6"); A("v_lshlrev_b32 v2, 13, v6")
    A("v_cmp_gt_u32 vcc, 321, v6"); A("s_and_saveexec_b64 s[52:53], vcc"); A("s_cbranch_execz %s" % skip)
    for e in range(8):
        f = 64 * (e // 4) + 512 * (e % 4)
        A("s_add_u32 s39, s38, %d" % (f * 642))
        A("buffer_load_ushort v%d, v7, s[72:75], s39 offen" % (8 + e))
        A("buffer_load_ushort v%d, v7, s[76:79], s39 offen" % (16 + e))
    A("s_lshl_b32 s39, s37, 5"); A("s_add_u32 s39, s39, %d" % WS_WT)
    A("s_waitcnt vmcnt(0)")
    for e in range(8): A("v_lshl_or_b32 v%d, v%d, 16, v%d" % (8 + e, 16 + e, 8 + e))
    A("buffer_store_dwordx4 v[8:11], v2, s[8:11], s39 offen sc1")
    A("buffer_store_dwordx4 v[12:15], v2, s[8:11], s39 offen offset:16 sc1")
    A.label(skip)
    A("s_mov_b64 exec, s[52:53]")
```

```python
import sys
def _arg(k, d): return ([int(a[len(k) + 1:]) for a in sys.argv if a.startswith(k + '=') and ' ' not in a and sys.argv[0].endswith('build.py')] + [d])[0]
MB = 1 << 20
WS_WQKP = 0
WQKP_H = 491520
WQKP_W = 122880
WS_WOC = 16 * MB
WS_WOX = 22 * MB
WS_XNF = 28 * MB
XNF_LAYER = 3 * MB
WS_KXF = 36 * MB
KV_MAT = 16 * MB
KV_LAYER = 32 * MB
WS_KM = 208 * MB
WS_PARTX = 116 * MB
PARTX_SLOT = 32 * 32 * 1280
WS_X1 = 128 * MB
WS_X2 = 132 * MB
WS_X3 = 136 * MB
WS_FT1 = 140 * MB
WS_GT2 = 141 * MB
WS_WT = 142 * MB
WS_XNH = 100 * MB
WS_XD = 168 * MB
XD_LAYER = 6 * MB
WS_ZF = 150 * MB
WS_M0 = 160 * MB
WS_ZERO = WS_M0 + 65536
WS_BAR2 = WS_ZERO
WS_KVFL = WS_BAR2 + 12 * 4096
WS_CHFL = WS_KVFL + 8192
WS_ARR = WS_CHFL + 8192
WS_XFL = WS_ARR + 32768
WS_DFL = WS_XFL + 16384
ZERO_BYTES = 131072
assert WS_DFL + 16384 <= WS_ZERO + ZERO_BYTES
assert ZERO_BYTES % 4096 == 0
WS_FILL = 164 * MB
WS_MR = WS_FILL
WS_PART = WS_MR + 262144
PART_H = _arg('PH', 4224)
PART_T4 = 32 * PART_H
PART_SLOT = _arg('PS', PART_T4 + 32768)
ML_S = _arg('MLS', 5120)
ML_O = _arg('LO', 640)
PART_X = 4 * PART_SLOT
WS_ML = (WS_PART + 2 * PART_X + 65535) // 65536 * 65536
WS_CAL = WS_ML + 8 * ML_S + 8192
WS_STAT = (WS_CAL + 4095) // 4096 * 4096
WS_FILL_END = WS_FILL + 2 * MB
assert WS_STAT + 262144 <= WS_FILL_END
FILL_BYTES = WS_FILL_END - WS_FILL
assert FILL_BYTES % 65536 == 0, FILL_BYTES
WS_DBG = 200 * MB
```

```python
import re

_R = re.compile(r'\b([vas])(\d+)\b|\b([vas])\[(\d+):(\d+)\]|\b(vcc|exec|m0|vcc_lo|vcc_hi|exec_lo|exec_hi|scc)\b')
TRANS = ("v_exp_f32", "v_log_f32", "v_rcp_f32", "v_rsq_f32", "v_sqrt_f32", "v_sin_f32", "v_cos_f32")


def regs_of(op):
    out = []
    for m in _R.finditer(op):
        if m.group(1): k, lo, hi = m.group(1), int(m.group(2)), int(m.group(2))
        elif m.group(3): k, lo, hi = m.group(3), int(m.group(4)), int(m.group(5))
        else:
            out.append(m.group(6).split("_")[0]); continue
        for i in range(lo, hi + 1): out.append(k + str(i))
    return out


class Seq:
    def __init__(self, A):
        self.A = A
        self.pos = 0
        self.cyc = 0
        self.vw = {}
        self.tw = {}
        self.mw = {}
        self.mc = {}
        self.sd = {}
        self.sw = {}
        self.m0 = -99
        self.lp = {}
        self.vp = {}
        self.nl = self.dl = self.nv = self.dv = 0
        self.nops = 0
        self.warm = None
        self.mst = 1
        self.lastm = False
        self.cnt = 0
        self.hoist = False
        self.tailv = 0
        self.hook = None

    def _raw(self, t, cost=4):
        self.A(t); self.pos += 1; self.cyc += cost
        self.tailv = self.tailv + 1 if (t.startswith("v_") and not t.startswith(("v_mfma", "v_smfmac"))) else 0
        if t.startswith("s_waitcnt"): self.lastm = False

    def wait(self, lds=None, vm=None, hoist=False):
        parts = []
        if vm is not None and vm > self.dv:
            n = min(self.nv - vm, 62)
            parts.append("vmcnt(%d)" % n); self.dv = self.nv - n
        if lds is not None and lds > self.dl:
            n = self.nl - lds
            n = min(n, 14)
            parts.append("lgkmcnt(%d)" % n); self.dl = self.nl - n
        if parts:
            t = "s_waitcnt " + " ".join(parts)
            k = self.tailv if (self.hoist and hoist) else 0
            if 0 < k <= 4:
                self.A.lines.insert(len(self.A.lines) - k, "    " + t)
                p0 = self.pos - k
                for d in (self.vw, self.tw, self.sw):
                    for x in d:
                        if d[x] >= p0: d[x] += 1
                self.pos += 1
            else: self._raw(t)

    def wait_lds_all(self): self.wait(lds=self.nl)
    def wait_vm_all(self): self.wait(vm=self.nv)

    def nop(self, n):
        while n > 0:
            k = min(n, 16); self.A("s_nop %d" % (k - 1)); self.pos += k; self.cyc += 4 * k; n -= k; self.tailv = 0

    def label(self, l): self.A.label(l); self.tailv = 0

    def settle(self):
        self._raw("s_waitcnt vmcnt(0) lgkmcnt(0)"); self.dl = self.nl; self.dv = self.nv; self.nop(8)

    def __call__(self, text):
        tok = None
        for t in text.split("\n"):
            t = t.strip()
            if t: tok = self.ins(t)
        return tok

    def ins(self, t):
        if self.hook: self.hook(self.cnt, t)
        self.cnt += 1
        opc, _, rest = t.partition(" ")
        ops = [o.strip() for o in rest.split(",")]
        R = [regs_of(o) for o in ops]
        mfma = opc.startswith("v_mfma") or opc.startswith("v_smfmac")
        valu = opc.startswith("v_") and not mfma
        ds = opc.startswith("ds_")
        vm = opc.startswith("buffer_") or opc.startswith("global_")
        islds = vm and re.search(r'\blds\b', t) is not None
        rd, wr = [], []
        if mfma:
            wr = R[0]; ab = R[1] + R[2]; c = R[3] if opc.startswith("v_mfma") else R[0]
            if opc.startswith("v_smfmac"): ab = ab + R[3]
            rd = ab + c
        elif valu:
            if "swap" in opc: wr = R[0] + R[1]; rd = R[0] + R[1]
            else:
                wr = R[0]; rd = [x for r in R[1:] for x in r]
                if opc.startswith(("v_fmac", "v_writelane")) or "dpp" in opc: rd = rd + R[0]
        elif ds:
            if opc.startswith("ds_read"): wr = R[0]; rd = R[1]
            else: rd = [x for r in R for x in r]
        elif vm:
            if "load" in opc and not islds: wr = R[0]; rd = [x for r in R[1:] for x in r]
            else: rd = [x for r in R for x in r]
        else:
            if opc.startswith(("s_cmp", "s_cbranch", "s_branch", "s_barrier", "s_nop", "s_waitcnt", "s_bitcmp", "s_setprio", "s_sleep")): rd = [x for r in R for x in r]
            else: wr = R[0] if R else []; rd = [x for r in R[1:] for x in r]
        lt = max([self.lp.get(x, 0) for x in rd + wr] + [0]); vt = max([self.vp.get(x, 0) for x in rd + wr] + [0])
        if ds and opc.startswith("ds_read"): lt = max([self.lp.get(x, 0) for x in rd] + [0])
        self.wait(lds=lt or None, vm=vt or None, hoist=mfma)
        need = 0
        def req(p, n):
            nonlocal need
            need = max(need, n - (self.pos - p - 1))
        if mfma:
            for x in rd:
                if x in self.vw: req(self.vw[x], 2)
            for x in ab:
                if x in self.mw: req(self.mw[x][0], 8)
            for x in c:
                if x in self.mw:
                    p, o, d = self.mw[x]
                    if not (o == opc and d == tuple(c)): req(p, 6)
            for x in wr:
                if x in self.mw and x not in c: req(self.mw[x][0], 6)
            if "exec" in self.sw: req(self.sw["exec"], 4)
        if valu or ds or vm:
            for x in rd + wr:
                if x in self.mw: req(self.mw[x][0], 8)
        if valu:
            for x in wr:
                if x in self.mc: req(self.mc[x], 3)
                if x in self.sd: req(self.sd[x], 2)
            if "permlane" in opc or "dpp" in opc:
                for x in (rd if "permlane" in opc else R[1]):
                    if x in self.vw: req(self.vw[x], 2)
            if "readfirstlane" in opc or "readlane" in opc:
                for x in rd:
                    if x in self.vw: req(self.vw[x], 1)
            if opc.replace("_e32", "").replace("_e64", "") not in TRANS:
                for x in rd:
                    if x in self.tw: req(self.tw[x], 1)
            for x in rd:
                if x in self.sw: req(self.sw[x], 4 if "lane" in opc and "perm" not in opc else 2)
        if ds or vm:
            for x in wr:
                if x in self.sd: req(self.sd[x], 1)
            for x in rd:
                if x in self.tw: req(self.tw[x], 1)
        if vm:
            for x in rd:
                if x in self.sw: req(self.sw[x], 5)
            if islds: req(self.m0, 1)
        if need > 0:
            self.nops += need
            if self.warm is not None and need >= 2:
                for _ in range(need): self._raw("v_mov_b32 v%d, v%d" % (self.warm, self.warm))
            else: self.nop(need)
            self.lastm = False
        cost = 4
        if opc.startswith("v_smfmac"): cost = 12
        elif mfma: cost = 8
        elif opc in TRANS or "permlane" in opc: cost = 8
        if mfma and self.lastm: self.pos += self.mst - 1
        self.lastm = mfma
        p = self.pos
        if opc == "s_nop":
            self.A(t); k = int(rest) + 1; self.pos += k; self.cyc += 4 * k; self.tailv = 0; return None
        self._raw(t, cost)
        tok = None
        if mfma:
            for x in wr: self.mw[x] = (p, opc, tuple(wr)); self.vw.pop(x, None); self.tw.pop(x, None)
            for x in c: self.mc[x] = p
        elif valu:
            for x in wr:
                if x[0] in "va" and x != "vcc":
                    self.vw[x] = p; self.mw.pop(x, None)
                    if opc in TRANS: self.tw[x] = p
                    else: self.tw.pop(x, None)
                else: self.sw[x] = p
        elif ds:
            self.nl += 1; tok = self.nl
            for x in wr: self.lp[x] = tok; self.vw.pop(x, None); self.mw.pop(x, None)
        elif vm:
            self.nv += 1; tok = self.nv
            for x in wr: self.vp[x] = tok; self.vw.pop(x, None); self.mw.pop(x, None)
            if "store" in opc and ("x4" in opc or "x3" in opc):
                for x in R[0]: self.sd[x] = p
        else:
            if opc == "s_waitcnt":
                m = re.search(r'vmcnt\((\d+)\)', t)
                if m: self.dv = max(self.dv, self.nv - int(m.group(1)))
                m = re.search(r'lgkmcnt\((\d+)\)', t)
                if m: self.dl = max(self.dl, self.nl - int(m.group(1)))
            for x in wr:
                if x == "m0": self.m0 = p
                self.sw.pop(x, None)
            assert not opc.startswith(("s_load", "s_memtime", "s_memrealtime", "s_buffer")) or True
        return tok


def r4(r): return "v[%d:%d]" % (r, r + 3)
def r2(r): return "v[%d:%d]" % (r, r + 1)


def estimate(lines, show=False):
    t = -4; vf = 0; mf = 0; lf = 0; lb = 0; last = None
    for ln in lines:
        ln = ln.strip()
        if not ln or ln.endswith(":") or ln.startswith(";"): continue
        opc = ln.split()[0]
        t += 4
        if opc.startswith(("v_mfma", "v_smfmac")):
            t = max(t, vf, mf + (4 if last and last != opc else 0)); mf = t + 16; vf = t + (12 if opc.startswith("v_smf") else 8); lf = t + 8; last = opc
        elif opc.startswith("v_"):
            t = max(t, vf)
            if opc.startswith("v_pk"): t = max(t, mf)
            vf = t + (8 if (opc in TRANS or "permlane" in opc) else 4)
        elif opc.startswith("ds_"):
            occ = {"ds_read_b128": 16, "ds_write_b32": 16, "ds_write_b64": 24, "ds_write_b128": 52, "ds_write2_b64": 62}.get(opc, 8)
            t = max(t, lf, lb - 32); lb = max(lb, t) + occ
        elif opc.startswith("buffer_"): t = max(t, mf) + 12
        elif opc.startswith("s_cbranch"): t += 2
        elif opc == "s_nop": t += 4 * int(ln.split()[1])
        if show: print(t, ln)
    return t + 4
```

```python
import sys
from asmlib import *
from layout import *
from k_main import main_kernel

out = sys.argv[1] if len(sys.argv) > 1 else "dev.s"
P = {}
for kv in sys.argv[2:]:
    kk, val = kv.split("="); P[kk] = int(val)
ks = [main_kernel(P)]
open(out, "w").write(assemble_file(ks, [ks[0].name]))
print("wrote", out)
```

```python
import struct
from asmlib import *
from layout import *
from seq import *
from k_fft import Pool, pr, f2u

OOB = 0x10000000


def fft2(A, L, lds_base):
    TW1, TW2, TW3 = 48, 62, 76
    WV = [92, 104]
    SC = "s[26:27]"
    XR = {}

    def setup():
        for TW, maskbits, N in ((TW1, 255, 2048), (TW2, 31, 256), (TW3, 3, 32)):
            A("v_and_b32 v3, %d, v0" % maskbits); A("v_cvt_f32_u32 v3, v3")
            for q in range(1, 8):
                A("v_mul_f32 v4, 0x%08x, v3" % f2u(-q / N))
                A("v_cos_f32 v%d, v4" % (TW + 2 * (q - 1))); A("v_sin_f32 v%d, v4" % (TW + 2 * (q - 1) + 1))
        A("v_lshlrev_b32 v3, 3, v0")
        A("v_lshrrev_b32 v4, 5, v0"); A("v_mul_u32_u24 v4, 2304, v4")
        A("v_add_u32 v3, %d, v3" % lds_base); A("v_add_u32 v4, %d, v4" % lds_base)
        A("v_and_b32 v5, 31, v0"); A("v_lshl_add_u32 v5, v5, 3, v4")
        A("v_bfe_u32 v6, v0, 2, 3"); A("v_mul_u32_u24 v6, 288, v6"); A("v_add_u32 v6, v6, v4")
        A("v_and_b32 v7, 3, v0"); A("v_lshl_add_u32 v100, v7, 6, v6")
        A("v_lshl_add_u32 v6, v7, 3, v6")
        A("v_lshrrev_b32 v101, 4, v0"); A("v_mul_u32_u24 v101, 20480, v101"); A("v_and_b32 v2, 15, v0"); A("v_lshl_add_u32 v101, v2, 4, v101")
        A("v_lshlrev_b32 v1, 2, v0")

    def pre():
        setup()
        A("v_and_b32 v102, 63, v0"); A("v_lshlrev_b32 v102, 4, v102"); A("v_lshlrev_b32 v2, 5, v0")

    def wload(S):
        S("s_lshl_b32 s24, s2, 14"); S("s_add_u32 s24, s24, %d" % WS_WT); S("s_add_u32 s25, s24, 8192")
        for c in range(2):
            S("buffer_load_dwordx4 v[%d:%d], v2, s[8:11], s%d offen sc1" % (WV[c], WV[c] + 3, 24 + c))
            S("buffer_load_dwordx4 v[%d:%d], v2, s[8:11], s%d offen offset:16 sc1" % (WV[c] + 4, WV[c] + 7, 24 + c))

    def column(S, c):
        pool = Pool((8, 112)[c], 20)
        lo = 18432 * c
        def cadd(a, b):
            d = pool.get(); S("v_pk_add_f32 %s, %s, %s" % (pr(d), pr(a), pr(b))); return d
        def csub(a, b):
            d = pool.get(); S("v_pk_add_f32 %s, %s, %s neg_lo:[0,1] neg_hi:[0,1]" % (pr(d), pr(a), pr(b))); return d
        def cadd_rot(a, b, rot, nega=False):
            d = pool.get(); na = 1 if nega else 0
            mods = "neg_lo:[%d,1] neg_hi:[%d,0]" % (na, na) if rot > 0 else "neg_lo:[%d,0] neg_hi:[%d,1]" % (na, na)
            S("v_pk_add_f32 %s, %s, %s op_sel:[0,1] op_sel_hi:[1,0] %s" % (pr(d), pr(a), pr(b), mods)); return d
        def cfma(x, sign, a):
            d = pool.get(); n = 1 if sign < 0 else 0
            S("v_pk_fma_f32 %s, %s, %s, %s neg_lo:[%d,0,0] neg_hi:[%d,0,0]" % (pr(d), pr(x), SC, pr(a), n, n)); return d
        def cfma_rot(x, rot, a):
            d = pool.get()
            mods = "neg_lo:[1,0,0] neg_hi:[0,0,0]" if rot > 0 else "neg_lo:[0,0,0] neg_hi:[1,0,0]"
            S("v_pk_fma_f32 %s, %s, %s, %s op_sel:[1,0,0] op_sel_hi:[0,1,1] %s" % (pr(d), pr(x), SC, pr(a), mods)); return d
        def cmuls(xs, ws, conj):
            ts = []
            for x, w_ in zip(xs, ws):
                t = pool.get(); ts.append(t); S("v_pk_mul_f32 %s, %s, %s op_sel:[0,0] op_sel_hi:[1,0]" % (pr(t), pr(x), pr(w_)))
            mods = "neg_lo:[0,0,0] neg_hi:[1,0,0]" if conj else "neg_lo:[1,0,0] neg_hi:[0,0,0]"
            for x, w_, t in zip(xs, ws, ts):
                S("v_pk_fma_f32 %s, %s, %s, %s op_sel:[1,1,0] op_sel_hi:[0,1,1] %s" % (pr(t), pr(x), pr(w_), pr(t), mods)); pool.put(x)
            return ts
        def radix4(p, sgn):
            s0 = cadd(p[0], p[2]); s1 = csub(p[0], p[2]); s2 = cadd(p[1], p[3]); t = csub(p[1], p[3])
            pool.put(*p)
            r0 = cadd(s0, s2); r2 = csub(s0, s2); r1 = cadd_rot(s1, t, sgn); r3 = cadd_rot(s1, t, -sgn)
            pool.put(s0, s1, s2, t)
            return [r0, r1, r2, r3]
        def radix8(a, sgn):
            u = []; vv = []
            for j in range(4):
                u.append(cadd(a[j], a[j + 4])); vv.append(csub(a[j], a[j + 4])); pool.put(a[j], a[j + 4])
            ev = radix4(u, sgn)
            x1 = cadd_rot(vv[1], vv[1], sgn); x3 = cadd_rot(vv[3], vv[3], sgn, nega=True)
            s0 = cadd_rot(vv[0], vv[2], sgn); s1 = cadd_rot(vv[0], vv[2], -sgn)
            pool.put(*vv)
            s2 = cadd(x1, x3); t = csub(x1, x3); pool.put(x1, x3)
            r0 = cfma(s2, 1, s0); r2 = cfma(s2, -1, s0); r1 = cfma_rot(t, sgn, s1); r3 = cfma_rot(t, -sgn, s1)
            pool.put(s0, s1, s2, t)
            return [ev[0], r0, ev[1], r1, ev[2], r2, ev[3], r3]
        def twid(x, TW, conj): return [x[0]] + cmuls(x[1:], [TW + 2 * q for q in range(7)], conj)
        def wr(x, addr, offs):
            for r, o in zip(x, offs): S("ds_write_b64 v%d, %s offset:%d" % (addr, pr(r), o + lo))
            pool.put(*x)
        def rd(addr, offs):
            x = [pool.get() for _ in offs]
            for r, o in zip(x, offs): S("ds_read_b64 %s, v%d offset:%d" % (pr(r), addr, o + lo))
            return x
        x = [pool.get() for _ in range(8)]
        b0 = 20 + 16 * c
        for j in range(8):
            if j == 7: yield 0
            S("buffer_load_dword v%d, v1, s[8:11], s%d offen offset:%d sc1" % (x[j], b0 + (2 if j >= 4 else 0), (j % 4) * 1024))
            S("buffer_load_dword v%d, v1, s[8:11], s%d offen offset:%d sc1" % (x[j] + 1, b0 + (3 if j >= 4 else 1), (j % 4) * 1024))
        yield 0
        wr(twid(radix8(x, -1), TW1, False), 3, [q * 2304 for q in range(8)])
        yield 1
        x = rd(5, [j * 256 for j in range(8)])
        yield 0
        wr(twid(radix8(x, -1), TW2, False), 5, [q * 288 for q in range(8)]); x = rd(6, [j * 32 for j in range(8)])
        yield 0
        wr(twid(radix8(x, -1), TW3, False), 6, [q * 32 for q in range(8)]); x = rd(100, [e * 8 for e in range(8)])
        yield 0
        y = radix4(x[0:4], -1) + radix4(x[4:8], -1)
        z = []
        for hh in range(2):
            ws = [pool.get() for _ in range(4)]
            for e in range(4):
                S("v_lshlrev_b32 v%d, 16, v%d" % (ws[e], WV[c] + 4 * hh + e)); S("v_and_b32 v%d, 0xffff0000, v%d" % (ws[e] + 1, WV[c] + 4 * hh + e))
            z += cmuls(y[4 * hh:4 * hh + 4], ws, False); pool.put(*ws)
        wr(radix4(z[0:4], 1) + radix4(z[4:8], 1), 100, [e * 8 for e in range(8)]); x = rd(6, [q * 32 for q in range(8)])
        yield 0
        wr(radix8(twid(x, TW3, True), 1), 6, [j * 32 for j in range(8)]); x = rd(5, [q * 288 for q in range(8)])
        yield 0
        wr(radix8(twid(x, TW2, True), 1), 5, [j * 256 for j in range(8)])
        yield 1
        x = rd(3, [q * 2304 for q in range(8)])
        yield 0
        XR[c] = radix8(twid(x, TW1, True), 1)
        yield 0

    def main(dpoll):
        A("s_cmp_lt_u32 s2, 161"); A("s_cbranch_scc1 %s_go" % L)
        A("s_barrier"); idft_table(Seq(A)); A("s_branch %s_end" % L)
        A.label("%s_go" % L)
        S = Seq(A)
        S("s_mov_b32 s26, 0x%08x" % f2u(0.7071067811865476)); S("s_mov_b32 s27, s26")
        S("s_lshl_b32 s20, s2, 14"); S("s_mul_i32 s21, s101, %d" % XD_LAYER); S("s_add_u32 s20, s20, s21"); S("s_add_u32 s20, s20, %d" % WS_XD); S("s_add_u32 s21, s20, %d" % (320 * 8192))
        S("s_add_u32 s36, s20, 8192"); S("s_add_u32 s37, s21, 8192")
        S("s_cmp_eq_u32 s2, 0"); S("s_cselect_b32 s21, 0x%x, s21" % OOB)
        S("s_cmp_eq_u32 s2, 160"); S("s_cselect_b32 s21, 0x%x, s21" % OOB); S("s_cselect_b32 s36, 0x%x, s36" % OOB); S("s_cselect_b32 s37, 0x%x, s37" % OOB)
        S("s_add_u32 s22, s20, 4096"); S("s_add_u32 s23, s21, 4096"); S("s_add_u32 s38, s36, 4096"); S("s_add_u32 s39, s37, 4096")
        wload(S); dpoll(1)
        for n_, (fa, fb) in enumerate(zip(column(S, 0), column(S, 1))):
            if n_ == 0: dpoll(2)
            if 2 <= n_ <= 6: idft_table(S, n_ - 2)
            if fa: S.wait_lds_all(); S("s_barrier")
        S("s_lshr_b32 s21, s2, 3"); S("s_lshl_b32 s21, s21, 10"); S("s_bfe_u32 s22, s2, 0x20001"); S("s_lshl_b32 s22, s22, 8"); S("s_add_u32 s21, s21, s22")
        S("s_and_b32 s22, s2, 1"); S("s_lshl_b32 s22, s22, 3"); S("s_add_u32 s21, s21, s22"); S("s_mul_i32 s22, s101, %d" % XNF_LAYER); S("s_add_u32 s22, s22, %d" % WS_ZF); S("s_add_u32 s21, s21, s22")
        a, b = XR[0], XR[1]
        for j in range(8):
            S("v_cvt_pk_bf16_f32 v%d, v%d, v%d" % (a[j], a[j], a[j] + 1)); S("v_cvt_pk_bf16_f32 v%d, v%d, v%d" % (a[j] + 1, b[j], b[j] + 1))
        S("s_cmp_eq_u32 s2, 0"); S("s_cbranch_scc1 %s_c0" % L); S("s_cmp_eq_u32 s2, 160"); S("s_cbranch_scc1 %s_c320" % L)
        for j in range(8):
            A("buffer_store_dwordx2 %s, v101, s[8:11], s21 offen sc1" % pr(a[j])); A("s_add_u32 s21, s21, 327680")
        A("s_branch %s_end" % L)
        A.label("%s_c0" % L)
        for j in range(8):
            A("buffer_store_short v%d, v101, s[8:11], s21 offen sc1" % a[j]); A("buffer_store_dword v%d, v101, s[8:11], s21 offen offset:4 sc1" % (a[j] + 1)); A("s_add_u32 s21, s21, 327680")
        A("s_branch %s_end" % L)
        A.label("%s_c320" % L)
        A("s_add_u32 s21, s22, 2")
        for j in range(8):
            A("buffer_store_short v%d, v101, s[8:11], s21 offen sc1" % a[j]); A("s_add_u32 s21, s21, 327680")
        A.label("%s_end" % L)
    return pre, main


def idft_table(S, part=None):
    if not part: S("s_mul_i32 s29, s83, 20480"); S("s_mul_i32 s28, s88, 81920"); S("s_add_u32 s28, s28, s29"); S("s_add_u32 s28, s28, %d" % WS_GT2)
    for f in (range(20) if part is None else range(4 * part, 4 * part + 4)):
        if f % 4 == 0:
            if f: S("s_add_u32 s29, s29, 4096"); S("s_add_u32 s28, s28, 4096")
            S("s_mov_b32 m0, s29")
        S("buffer_load_dwordx4 v102, s[8:11], s28 offen offset:%d sc1 lds" % ((f % 4) * 1024))


def idft(A, L, lst, fail, spin_max):
    S = Seq(A)
    S("v_lshlrev_b32 v1, 4, v0"); S("v_lshrrev_b32 v3, 4, v0"); S("v_and_b32 v4, 15, v0")
    S("s_mul_i32 s29, s89, 40960"); S("s_mul_i32 s24, s101, %d" % XNF_LAYER); S("s_add_u32 s24, s24, s29"); S("s_add_u32 s24, s24, %d" % WS_ZF)
    ZR = lambda i: 44 + 4 * i if i < 36 else 44 + 4 * (i - 36)
    def zload(i):
        if i % 4 == 0: S("s_add_u32 s25, s24, %d" % (i * 1024))
        S("buffer_load_dwordx4 %s, v1, s[8:11], s25 offen offset:%d sc1" % (r4(ZR(i)), (i % 4) * 1024))
    for i in range(36): zload(i)
    S("v_mul_u32_u24 v5, 1280, v4"); S("v_lshl_add_u32 v5, v3, 4, v5"); S("v_add_u32 v6, 40960, v1")
    S("s_lshl_b32 s31, s88, 7"); S("s_add_u32 s30, s29, s31"); S("s_add_u32 s31, s30, s80"); S("s_add_u32 s32, s31, 20480"); S("s_add_u32 s33, s30, 20480")
    BUF = [28, 32, 36, 40]; ACC = [[12 + 4 * T for T in range(4)], [60 + 4 * T for T in range(4)]]
    RS = [[108, 112], [116, 120]]
    seq = [(m, ks, T) for m in range(2) for ks in range(20) for T in range(4)]
    def trd(i):
        if i >= len(seq): return
        m, ks, T = seq[i]; off = (T * 20 + ks) * 1024
        S("ds_read_b128 %s, v%d offset:%d" % (r4(BUF[i % 4]), 1 if off < 40960 else 6, off % 40960))
    for i in range(3): trd(i)
    for i, (m, ks, T) in enumerate(seq):
        if i == 16:
            for q in range(36, 40): zload(q)
        if i == 80:
            for mm in range(2):
                for pz in range(2): S("buffer_load_dwordx4 %s, v5, s[8:11], %s offen offset:%d sc1" % (r4(RS[mm][pz]), ("s31", "s32")[mm], 64 * pz))
        a = ACC[m][T]
        S("v_mfma_f32_16x16x32_bf16 %s, %s, %s, %s" % (r4(a), r4(BUF[i % 4]), r4(ZR(20 * m + ks)), "0" if ks == 0 else r4(a)))
        trd(i + 3)
    for m in range(2):
        for pz in range(2):
            for q in range(4):
                r = RS[m][pz] + q; a = ACC[m][2 * pz] + 2 * q
                S("v_lshlrev_b32 v8, 16, v%d" % r); S("v_and_b32 v9, 0xffff0000, v%d" % r)
                S("v_pk_add_f32 %s, %s, v[8:9]" % (r2(a), r2(a))); S("v_cvt_pk_bf16_f32 v%d, v%d, v%d" % (r, a, a + 1))
    A("s_cmp_eq_u32 s101, 1"); A("s_cbranch_scc1 %s" % L("id_out"))
    xs = [[ACC[m][0] + i for i in range(16)] for m in range(2)]
    ST = [124, 128]; TM = [132, 133]
    def xl(regs):
        for op in ("v_permlane16_swap_b32", "v_permlane32_swap_b32"):
            for r, t in zip(regs, TM): S("v_mov_b32 v%d, v%d" % (t, r))
            for r, t in zip(regs, TM): S("%s v%d, v%d" % (op, r, t))
            for r, t in zip(regs, TM): S("v_add_f32 v%d, v%d, v%d" % (r, r, t))
    for m in range(2):
        for pz in range(2):
            for q in range(4):
                r = RS[m][pz] + q; a = ACC[m][2 * pz] + 2 * q
                S("v_lshlrev_b32 v%d, 16, v%d" % (a, r)); S("v_and_b32 v%d, 0xffff0000, v%d" % (a + 1, r))
    for m in range(2):
        S("v_pk_add_f32 %s, %s, %s" % (r2(ST[m]), r2(xs[m][0]), r2(xs[m][2])))
    for i in range(4, 16, 2):
        for m in range(2): S("v_pk_add_f32 %s, %s, %s" % (r2(ST[m]), r2(ST[m]), r2(xs[m][i])))
    for m in range(2): S("v_add_f32 v%d, v%d, v%d" % (ST[m], ST[m], ST[m] + 1))
    xl(ST)
    for m in range(2): S("v_mul_f32 v%d, 0x%08x, v%d" % (ST[m], f2u(1 / 64), ST[m])); S("v_mov_b64 %s, 0" % r2(ST[m] + 2))
    for i in range(0, 16, 2):
        for m in range(2):
            S("v_pk_add_f32 %s, %s, %s op_sel_hi:[1,0] neg_lo:[0,1] neg_hi:[0,1]" % (r2(8 + 2 * m), r2(xs[m][i]), r2(ST[m])))
        for m in range(2):
            S("v_pk_fma_f32 %s, %s, %s, %s" % (r2(ST[m] + 2), r2(8 + 2 * m), r2(8 + 2 * m), r2(ST[m] + 2)))
    for m in range(2): S("v_add_f32 v%d, v%d, v%d" % (ST[m] + 1, ST[m] + 2, ST[m] + 3))
    xl([ST[0] + 1, ST[1] + 1])
    for m in range(2): S("v_min_u32 v%d, -2, v%d" % (ST[m], ST[m])); S("v_min_u32 v%d, -2, v%d" % (ST[m] + 1, ST[m] + 1))
    S("s_lshl_b32 s24, s89, 12"); S("s_add_u32 s24, s24, %d" % WS_STAT); S("s_lshl_b32 s25, s88, 3"); S("s_add_u32 s25, s25, s24")
    S("v_lshlrev_b32 v7, 7, v4"); S("v_lshl_add_u32 v2, v3, 5, v7")
    S("s_mov_b64 exec, 0xffff")
    lst(["buffer_store_dwordx2 %s, v7, s[8:11], s25 offen offset:%d" % (r2(ST[m]), 2048 * m) for m in range(2)], S)
    S("s_mov_b64 exec, -1")
    G = [136, 144]
    S("v_cmp_gt_u32_e64 s[36:37], 3, v3"); S("v_cmp_gt_u32_e64 s[38:39], 2, v3"); S("s_mov_b32 s34, 0")
    A.label(L("id_poll"))
    S = Seq(A)
    for m in range(2):
        for hf in range(2): S("buffer_load_dwordx4 %s, v2, s[8:11], s24 offen offset:%d sc1" % (r4(G[m] + 4 * hf), 2048 * m + 16 * hf))
    S("s_add_u32 s34, s34, 1"); S("s_cmp_ge_u32 s34, %d" % spin_max); S("s_cbranch_scc1 %s" % fail)
    for m in range(2):
        for i in range(8): S("v_cndmask_b32_e64 v%d, 0, v%d, s[%d:%d]" % (G[m] + i, G[m] + i, 36 + 2 * (i // 4), 37 + 2 * (i // 4)))
    S("v_max3_u32 v8, v%d, v%d, v%d" % (G[0], G[0] + 1, G[0] + 2))
    for i in range(3, 15, 2): S("v_max3_u32 v8, v8, v%d, v%d" % (G[0] + i, G[0] + i + 1))
    S("v_max_u32 v8, v8, v%d" % (G[0] + 15)); S("v_cmp_eq_u32 vcc, -1, v8"); S("s_cbranch_vccnz %s" % L("id_poll"))
    for m in range(2):
        S("v_add_f32 v%d, v%d, v%d" % (ST[m], G[m], G[m] + 2)); S("v_add_f32 v%d, v%d, v%d" % (ST[m] + 1, G[m] + 4, G[m] + 6)); S("v_add_f32 v%d, v%d, v%d" % (ST[m], ST[m], ST[m] + 1))
    xl(ST)
    for m in range(2):
        S("v_mul_f32 v%d, 0x%08x, v%d" % (ST[m], f2u(0.1), ST[m]))
        S("v_add_f32 v%d, v%d, v%d" % (ST[m] + 1, G[m] + 1, G[m] + 3)); S("v_add_f32 v%d, v%d, v%d" % (ST[m] + 2, G[m] + 5, G[m] + 7)); S("v_add_f32 v%d, v%d, v%d" % (ST[m] + 1, ST[m] + 1, ST[m] + 2))
        for e in range(4):
            S("v_sub_f32 v8, v%d, v%d" % (G[m] + 2 * e, ST[m])); S("v_cndmask_b32_e64 v8, 0, v8, s[%d:%d]" % (36 + 2 * (e // 2), 37 + 2 * (e // 2)))
            S("v_mul_f32 v9, 0x42800000, v8"); S("v_fmac_f32 v%d, v8, v9" % (ST[m] + 1))
    xl([ST[0] + 1, ST[1] + 1])
    for m in range(2):
        S("v_mov_b32 v%d, 0x3727c5ac" % (ST[m] + 2)); S("v_fmac_f32 v%d, 0x3acccccd, v%d" % (ST[m] + 2, ST[m] + 1)); S("v_rsq_f32 v%d, v%d" % (ST[m] + 2, ST[m] + 2))
    S("s_lshl_b32 s25, s88, 11"); S("s_add_u32 s25, s25, s29"); S("s_add_u32 s25, s25, %d" % (WS_XNF + XNF_LAYER)); S("s_add_u32 s24, s25, 20480")
    for m in range(2):
        for i in range(0, 16, 2):
            S("v_pk_add_f32 %s, %s, %s op_sel_hi:[1,0] neg_lo:[0,1] neg_hi:[0,1]" % (r2(xs[m][i]), r2(xs[m][i]), r2(ST[m])))
        for i in range(0, 16, 2):
            S("v_pk_mul_f32 %s, %s, %s op_sel_hi:[1,0]" % (r2(xs[m][i]), r2(xs[m][i]), r2(ST[m] + 2)))
        for i in range(8): S("v_cvt_pk_bf16_f32 v%d, v%d, v%d" % (xs[m][i], xs[m][2 * i], xs[m][2 * i + 1]))
        for pz in range(2): S("buffer_store_dwordx4 %s, v1, s[8:11], %s offen offset:%d sc1" % (r4(xs[m][4 * pz]), ("s25", "s24")[m], 1024 * pz))
    A.label(L("id_out"))
    for m in range(2):
        for pz in range(2): A("buffer_store_dwordx4 %s, v5, s[16:19], %s offen offset:%d sc1" % (r4(RS[m][pz]), ("s30", "s33")[m], 64 * pz))
    A("s_cmp_eq_u32 s101, 1"); A("s_cbranch_scc1 %s" % L("end"))
    A("s_lshl_b32 s24, s89, 7"); A("s_lshl_b32 s25, s88, 2"); A("s_add_u32 s24, s24, s25"); A("s_add_u32 s24, s24, %d" % (WS_XFL + 8192)); A("v_mov_b32 v8, 1")
    A("s_waitcnt vmcnt(0)"); A("s_mov_b64 exec, 1"); A("buffer_store_dword v8, v1, s[8:11], s24 offen sc1"); A("s_mov_b64 exec, -1")
```

```python
import struct, copy
from asmlib import *
from layout import *
from seq import *


def f2u(x):
    return struct.unpack('<I', struct.pack('<f', x))[0]


C1 = (128 ** -0.5) * 1.4426950408889634
SPIN_MAX = 60000
OOB = 0x10000000

L_K = 0
L_MR = 8192
L_EV = L_MR
L_ML = L_MR + 5120
L_EQ = L_ML + 5120
L_EK = L_EQ + 2304
L_EO = L_ML
L_JUNK = L_EK + 2304
L_FL = L_JUNK + 256
L_W = 24576
NLW = 17
LW_WAVE = NLW * 2048
assert L_FL + 64 <= L_W and L_W + 4 * LW_WAVE <= 163840

L16, IDX, EW, ER, OWA, VW, MRA, PSB, RL, PA8, T0, T1 = range(12)
KRA = L16
AV, AQ, AK = 12, 20, 28
M = [36 + 4 * t for t in range(5)]
LB = [56, 64]
X0, X1 = 72, 76
VT = [80, 84]
WR0 = 88

MATS = {'q': 0, 'k': 1, 'v': 2}
ACC = {'q': AQ, 'k': AK, 'v': AV}
import sys
NV = max([int(a_[3:]) for a_ in sys.argv if a_.startswith("NV=")] + [0])
SEQ = [(m, tl, 0, t) for t in range(5) for m in ('qkv' if t < NV else 'qk') for tl in range(2)] + [(m, tl, 1, t) for m in 'qkv' for t in range(5) for tl in range(2)] + \
      [('v', tl, 0, t) for t in range(NV, 5) for tl in range(2)]
NLOC = 20 + 2 * NV
LDSI = [0, 1] + [i for i in range(60) if i % 3 == 2 and 5 <= i <= 47]
assert len(LDSI) == NLW
_regs = [WR0 + 8 * i for i in range(21)] + [256 + 8 * i for i in range(32)]
WREG = {}
for i in range(60):
    if i not in LDSI: WREG[i] = _regs.pop()
WO = {(T, tp): _regs.pop() for T in range(5) for tp in range(2)}
assert not _regs

FL_ = {0: [], 1: [], 2: [0, 1, 2], 3: [3, 4]}
FR_ = {0: [0, 1], 1: [2], 2: [3], 3: [4]}


def chain_load(A):
    A("s_mul_i32 s29, s22, %d" % WQKP_H); A("s_mul_i32 s28, s21, %d" % WQKP_W); A("s_add_u32 s29, s29, s28")
    A("s_mul_i32 s28, s20, 10240"); A("s_add_u32 s30, s29, s28"); A("s_sub_u32 s31, s29, s28"); A("s_add_u32 s31, s31, 10240")
    A("s_mul_i32 s26, s21, %d" % LW_WAVE); A("s_add_u32 s26, s26, %d" % L_W)
    for i, (m, tl, rem, t) in enumerate(SEQ):
        off = WS_WQKP + MATS[m] * 40960 + tl * 20480 + t * 2048
        A("s_add_u32 s27, s%d, %d" % (31 if rem else 30, off))
        if i in LDSI:
            A("s_add_u32 m0, s26, %d" % (LDSI.index(i) * 2048)); A("s_nop 0")
            for hf in range(2): A("buffer_load_dwordx4 v%d, s[8:11], s27 offen offset:%d lds" % (L16, hf * 1024))
        else:
            for hf in range(2): A("buffer_load_dwordx4 %s, v%d, s[8:11], s27 offen offset:%d" % (ureg(WREG[i] + 4 * hf, 4), L16, hf * 1024))
    A("s_lshl_b32 s28, s20, 2"); A("s_add_u32 s28, s28, s21"); A("s_mul_i32 s28, s28, 20480"); A("s_mul_i32 s29, s22, 163840"); A("s_add_u32 s29, s29, s28")
    for T in range(5):
        A("s_add_u32 s27, s29, %d" % (WS_WOC + T * 4096))
        for u in range(4): A("buffer_load_dwordx4 %s, v%d, s[8:11], s27 offen offset:%d" % (ureg(WO[T, u // 2] + 4 * (u % 2), 4), L16, u * 1024))


def chain_body(A, P, L, ht):
    g, r, i_, p, a, b = range(36, 42)
    A("v_lshrrev_b32 v%d, 8, v0" % g); A("v_bfe_u32 v%d, v0, 4, 4" % r); A("v_bfe_u32 v%d, v0, 4, 3" % i_); A("v_bfe_u32 v%d, v0, 7, 1" % p)
    A("s_mov_b32 s36, 0x00ff00ff"); A("s_mov_b32 s37, 0x00ff00ff"); A("s_not_b64 s[18:19], s[36:37]")
    A("v_mov_b32 v%d, 0x4444" % IDX); A("v_mov_b32 v%d, 0xeeee" % a); A("v_cndmask_b32_e64 v%d, v%d, v%d, s[18:19]" % (IDX, IDX, a))
    A("v_and_b32 v%d, 1, v%d" % (a, g)); A("v_lshlrev_b32 v%d, 2, v%d" % (a, a)); A("v_lshrrev_b32 v%d, 1, v%d" % (b, g)); A("v_add_u32 v%d, v%d, v%d" % (a, a, b))
    A("v_mul_u32_u24 v%d, 288, v%d" % (a, a)); A("v_lshl_add_u32 v%d, v%d, 2, v%d" % (a, r, a)); A("s_lshl_b32 s27, s21, 6"); A("v_add_u32 v%d, s27, v%d" % (EW, a))
    A("v_mul_u32_u24 v%d, 288, v%d" % (a, i_)); A("v_lshl_add_u32 v%d, v%d, 4, v%d" % (ER, g, a))
    A("s_lshr_b32 s27, s21, 1"); A("s_lshl_b32 s27, s27, 10"); A("s_and_b32 s28, s21, 1"); A("s_lshl_b32 s28, s28, 3"); A("s_add_u32 s27, s27, s28"); A("s_add_u32 s27, s27, %d" % L_EO)
    A("v_and_b32 v%d, 0x37f, v0" % a); A("v_add_u32 v%d, s27, v%d" % (OWA, a))
    A("s_mul_i32 s27, s21, %d" % LW_WAVE); A("s_add_u32 s27, s27, %d" % L_W); A("v_add_u32 v%d, s27, v0" % VW)
    A("v_and_b32 v%d, 0x200, v0" % MRA)
    for src, dst in ((6, 8), (4, 7), (5, 6), (8, 5), (7, 4)):
        A("v_bfe_u32 v%d, v0, %d, 1" % (a, src)); A("v_lshl_or_b32 v%d, v%d, %d, v%d" % (MRA, a, dst, MRA))
    A("s_lshl_b32 s27, s21, 13"); A("s_lshl_b32 s28, s22, 5"); A("s_add_u32 s27, s27, s28"); A("s_add_u32 s27, s27, %d" % PART_T4)
    A("v_lshrrev_b32 v%d, 7, v0" % a); A("v_lshlrev_b32 v%d, 10, v%d" % (a, a)); A("v_lshl_add_u32 v%d, v%d, 2, v%d" % (a, i_, a)); A("v_add_u32 v%d, s27, v%d" % (PSB, a))
    A("v_lshrrev_b32 v%d, 7, v0" % a); A("v_mul_u32_u24 v%d, %d, v%d" % (a, PART_H, a)); A("v_lshl_add_u32 v%d, v%d, 4, v%d" % (RL, i_, a))
    A("v_lshlrev_b32 v%d, 3, v0" % PA8)
    A("s_mul_i32 s34, s20, %d" % PART_X); A("s_add_u32 s34, s34, %d" % WS_PART)
    A("s_lshl_b32 s35, s21, 10"); A("s_mul_i32 s27, s22, %d" % PART_H); A("s_add_u32 s35, s35, s27")
    A("s_and_b32 s27, s22, 1"); A("s_bfe_u32 s28, s22, 0x10001"); A("s_bfe_u32 s29, s22, 0x10002")
    A("s_lshl_b32 s30, s27, 2"); A("s_lshl_b32 s31, s28, 1"); A("s_or_b32 s30, s30, s31"); A("s_or_b32 s30, s30, s29"); A("s_and_b32 s31, s22, 0x18"); A("s_or_b32 s30, s30, s31")
    A("s_lshl_b32 s33, s30, 7"); A("s_lshl_b32 s32, s22, 7")
    A("s_cmp_eq_u32 s21, 0"); A("s_cbranch_scc1 %s" % L("c_r0"))
    A("s_lshl_b32 s32, s22, 10"); A("s_add_u32 s32, s32, %d" % PART_T4)
    A("s_lshl_b32 s33, s27, 4"); A("s_lshl_b32 s28, s28, 8"); A("s_or_b32 s33, s33, s28"); A("s_lshl_b32 s29, s29, 7"); A("s_or_b32 s33, s33, s29")
    A("s_bfe_u32 s28, s22, 0x10003"); A("s_lshl_b32 s28, s28, 5"); A("s_or_b32 s33, s33, s28"); A("s_bfe_u32 s28, s22, 0x10004"); A("s_lshl_b32 s28, s28, 9"); A("s_or_b32 s33, s33, s28")
    A("s_add_u32 s33, s33, 4096")
    A.label(L("c_r0"))
    A("s_mul_i32 s41, s20, 20480"); A("s_add_u32 s41, s41, %d" % (WS_ML + 640))
    A("s_lshl_b32 s46, s20, 17"); A("s_add_u32 s46, s46, %d" % WS_MR); A("s_add_u32 s46, s46, s25"); A("s_xor_b32 s47, s46, 0x20000")
    A("s_mov_b32 s38, 0x00ff00ff"); A("s_mov_b32 s39, 0"); A("s_mov_b32 s62, 0x00030003"); A("s_mov_b32 s63, 0x00030003")
    A("s_mov_b32 s40, 0x%08x" % f2u(C1)); A("s_movk_i32 s45, 0x3f80")
    A("s_mov_b32 s68, 0x%08x" % f2u(2.0 ** -24)); A("s_mov_b32 s69, 0x%08x" % (f2u(2.0 ** 24) - f2u(2.0 ** -24)))
    A("s_lshl_b32 s51, s22, 7"); A("s_add_u32 s52, s51, %d" % WS_CHFL); A("s_lshl_b32 s51, s22, 8"); A("s_add_u32 s51, s51, %d" % WS_KVFL)
    A("s_mov_b32 s24, 0x3f803f80"); A("s_mov_b32 s25, 0x3f803f80"); A("s_mov_b32 s16, 0x3f003f00"); A("s_mov_b32 s17, 0x3f003f00")
    A("s_lshl_b32 s53, s22, 13"); A("s_add_u32 s53, s53, %d" % WS_KM)
    A("s_lshl_b32 s27, s20, 12"); A("s_add_u32 s53, s53, s27"); A("s_lshl_b32 s27, s20, 2"); A("s_add_u32 s52, s52, s27")
    A("s_cmp_eq_u32 s20, 0"); A("s_cselect_b64 s[42:43], -1, 0"); A("s_cselect_b64 s[66:67], -1, 0")
    A("s_mov_b32 s44, 0"); A("s_mov_b32 s54, 0"); A("s_mov_b32 s71, 0"); A("s_mov_b32 s4, 0x%x" % OOB); A("s_mov_b32 s60, 0x%x" % OOB); A("s_mov_b32 s64, 0x%x" % OOB); A("s_mov_b32 s65, 0x%x" % OOB)
    A("s_waitcnt vmcnt(0) lgkmcnt(0)"); A("s_barrier")
    ht(1)
    A("s_cmp_lg_u32 s23, 0"); A("s_cbranch_scc1 %s" % L("c_slow"))
    for md in (0, 1):
        if md: A.label(L("c_slow"))
        for w in range(1, 4):
            A("s_cmp_eq_u32 s21, %d" % w); A("s_cbranch_scc1 %s" % L("c%d_%d_layer" % (md, w)))
        for w in range(4): chain_wave(A, P, L, ht, w, md)


def chain_wave(A, P, L0, ht, w, md):
    L = lambda x: L0("c%d_%d_%s" % (md, w, x))
    sc = " sc1" if md else ""
    ool = []
    ST = P.get("STAMP") and not md
    TR = ST and "TS" in P
    SOLO = P.get("SOLO")

    def stamp(S, i):
        if ST and not TR: S("%s s[%d:%d]" % ("s_memrealtime" if P.get("RAW") else "s_memtime", 72 + 2 * i, 73 + 2 * i))
    def hook(n, t):
        k_, r_ = divmod(n - P["TS"], P.get("TD", 16))
        if r_ == 0 and 0 <= k_ <= 8: A("s_memtime s[%d:%d]" % (72 + 2 * k_, 73 + 2 * k_)); S.tailv = 0
        if P.get("LIST") == w + 1: print(n, estimate(A.lines[top0:]), t)
    def br(t): return "s_nop 0" if SOLO else t

    def smf(S, acc, a_, b_): S("v_smfmac_f32_16x16x64_bf16 %s, %s, %s, v%d" % (r4(acc), r4(a_), ureg(b_, 8), IDX))
    def mf32(S, acc, a_, b_, c): S("v_mfma_f32_16x16x32_bf16 %s, %s, %s, %s" % (r4(acc), ureg(a_, 4), ureg(b_, 4), c if isinstance(c, str) else r4(c)))
    def mf16(S, acc, a_, b_, c): S("v_mfma_f32_16x16x16_bf16 %s, %s, %s, %s" % (r4(acc), r2(a_), r2(b_), c if isinstance(c, str) else r4(c)))
    def rd(S, dst, areg, off): return S("ds_read_b128 %s, v%d offset:%d" % (r4(dst), areg, off))
    def zero(S, q): S("v_mov_b64 %s, 0" % r2(q)); S("v_mov_b64 %s, 0" % r2(q + 2))
    def zitems(S, q): return [lambda r=r: S("v_mov_b64 %s, 0" % r2(r)) for r in (q, q + 2)]
    def cvt(d, a_, b_): return "v_cvt_pk_bf16_f32 v%d, v%d, v%d" % (d, a_, b_)
    def ror(d, s_): return "v_mov_b32_dpp v%d, v%d row_ror:8 row_mask:0xf bank_mask:0xf" % (d, s_)
    def newseq():
        S = Seq(A); S.warm = VW; S.mst = P.get("MST", 3); S.hoist = True; return S
    def idle(S, n):
        while n > 0:
            S("v_mov_b32 v%d, v%d" % (VW, VW)); n -= 1
            if n >= 2: S("s_nop 1"); n -= 2

    PB_ = P.get("PB", 0)
    PQ = [X0, X1]
    def pub_read(S):
        for i in range(2):
            u = 2 * (w - 2) + i
            S("v_add_u32 v%d, %d, v%d" % (T0, L_EV + 1024 * u, L16)); S("v_add_u32 v%d, %d, v%d" % (T1, L_EK + 64 * u, ER))
            S("v_cndmask_b32_e64 v%d, v%d, v%d, s[42:43]" % (T0, T0, T1)); rd(S, PQ[i], T0, 0)
        S("s_lshl_b32 s4, s44, 18"); S("s_add_u32 s4, s4, s53")
    def pub_store(S):
        for i in range(2): S("buffer_store_dwordx4 %s, v%d, s[8:11], s4 offen offset:%d sc1" % (r4(PQ[i]), L16, 2048 * (w - 2) + 1024 * i))
        S("s_mov_b32 s4, 0x%x" % OOB)

    def dma(S, fr, sa, lds, fl=" sc1"):
        tok = None
        for i, f in enumerate(fr):
            blk = f // 4
            if i == 0 or f % 4 == 0:
                S("s_mov_b32 m0, %d" % (lds + blk * 4096))
                if blk: S("s_add_u32 s59, %s, %d" % (sa, blk * 4096))
            tok = S("buffer_load_dwordx4 v%d, s[8:11], %s offen offset:%d%s lds" % (L16, "s59" if blk else sa, 1024 * (f % 4), fl))
        return tok

    def lw_read(S, n):
        b = LB[n % 2]
        return [lambda: rd(S, b, VW, n * 2048), lambda: rd(S, b + 4, VW, n * 2048 + 1024)]

    def drain(fl):
        while fl: fl.pop(0)()

    def kv_addr(S, dst, ds, extra=0):
        S("s_and_b32 %s, s44, 63" % dst)
        if ds: S("s_add_u32 %s, %s, %d" % (dst, dst, ds)); S("s_min_u32 %s, %s, 63" % (dst, dst))
        S("s_lshl_b32 %s, %s, 18" % (dst, dst)); S("s_add_u32 %s, %s, s50" % (dst, dst))
        if extra: S("s_add_u32 %s, %s, %d" % (dst, dst, extra))

    def kv_prep(S, d):
        kv_addr(S, "s26", d, 2048 * w); S("s_add_u32 s3, s26, %d" % KV_MAT)
    def k_fetch(S):
        S("s_mov_b32 m0, %d" % (L_K + 2048 * w))
        for j in range(2): S("buffer_load_dwordx4 v%d, s[8:11], s26 offen offset:%d sc1 lds" % (L16, 1024 * j))
    def vt_fetch(S):
        for j in range(2): S("buffer_load_dwordx4 %s, v%d, s[8:11], s3 offen offset:%d sc1" % (r4(VT[j]), L16, 1024 * j))

    def post(S, acc, off, scale=False):
        it = []
        for tl in range(2):
            b = acc + 4 * tl
            it += ["v_permlane32_swap_b32 v%d, v%d" % (b, b + 1), "v_permlane32_swap_b32 v%d, v%d" % (b + 2, b + 3)]
        for tl in range(2):
            b = acc + 4 * tl
            it += ["v_add_f32 v%d, v%d, v%d" % (b, b, b + 1), "v_add_f32 v%d, v%d, v%d" % (b + 2, b + 2, b + 3)]
        if scale: it += ["v_mul_f32 v%d, s40, v%d" % (r, r) for r in (acc, acc + 4, acc + 2, acc + 6)]
        it += [cvt(acc, acc, acc + 4), cvt(acc + 1, acc + 2, acc + 6)]
        wr = ["ds_write_b32 v%d, v%d offset:%d" % (EW, acc, off), "ds_write_b32 v%d, v%d offset:%d" % (EW, acc + 1, off + 576)]
        return [lambda t=t: S(t) for t in it], [lambda t=t: S(t) for t in wr]

    def spin_count(S_, lim=SPIN_MAX):
        S_("s_add_u32 s30, s30, 1"); S_("s_cmp_ge_u32 s30, %d" % lim); S_("s_cbranch_scc1 %s" % L0("fail"))

    def kv_wait(S, lab, need):
        S("s_add_u32 s27, s44, %d" % need); S("s_or_b32 s28, s44, 63"); S("s_add_u32 s28, s28, 1"); S("s_min_u32 s27, s27, s28")
        S("s_cmp_lt_u32 s54, s27"); S("s_cbranch_scc1 %s" % L(lab))
        S.label(L(lab + "_r"))
        def blk():
            A.label(L(lab))
            A("s_mov_b32 s30, 0")
            A.label(L(lab + "_l"))
            A("s_waitcnt lgkmcnt(0)"); A("s_mov_b64 exec, 3")
            A("buffer_load_dword v%d, v%d, s[8:11], s51 offen sc1" % (T1, PA8)); A("s_waitcnt vmcnt(0)"); A("s_mov_b64 exec, -1")
            A("v_readlane_b32 s54, v%d, 0" % T1); A("v_readlane_b32 s28, v%d, 1" % T1); A("s_nop 3"); A("s_min_u32 s54, s54, s28")
            A("s_cmp_ge_u32 s54, s27"); A("s_cbranch_scc1 %s" % L(lab + "_r"))
            A("s_sleep 1"); spin_count(A); A("s_branch %s" % L(lab + "_l"))
        ool.append(blk)

    def ready(S):
        for n in range(2): drain(lw_read(S, n))
        for q in (AV, AV + 4, AQ, AQ + 4, AK, AK + 4): zero(S, q)

    CL3 = P.get("CLP", 3) == 3
    CLP = 0 if CL3 else P.get("CLP", 3)
    cw = w - 2 if CLP else w
    Q = M[4] if (CLP and w >= 2) else X0
    def clear_prep(S):
        S("v_mov_b64 %s, -1" % r2(Q)); S("v_mov_b64 %s, -1" % r2(Q + 2))
        S("s_add_u32 s28, s44, 3"); S("s_and_b32 s29, s28, 3"); S("s_mul_i32 s31, s22, 160")
        if cw in (0, 1):
            S("s_mul_i32 s28, s29, %d" % PART_SLOT); S("s_add_u32 s28, s28, s34"); S("s_add_u32 s64, s28, s35")
            if CLP: S("s_sub_u32 s64, s64, 2048")
        if cw == 0: S("s_mul_i32 s65, s29, 5120"); S("s_add_u32 s65, s65, s41"); S("s_add_u32 s65, s65, s31")
        if cw == 1: S("s_lshl_b32 s65, s22, 10"); S("s_add_u32 s65, s65, s28"); S("s_add_u32 s65, s65, %d" % PART_T4)
        if w == 0: S("s_lshl_b32 s60, s29, 15"); S("s_add_u32 s60, s60, s47"); S("s_add_u32 s60, s60, s31")
    def clears(S):
        for j in range(cw, cw + 2): S("buffer_store_dwordx4 %s, v%d, s[8:11], s64 offen offset:%d%s" % (r4(Q), L16, j * 1024, sc))
        if cw == 0: S("s_mov_b64 exec, 0x3ff")
        S("buffer_store_dwordx4 %s, v%d, s[8:11], s65 offen%s" % (r4(Q), L16, sc))
        if cw == 0: S("s_mov_b64 exec, -1")
        S("s_mov_b32 s65, 0x%x" % OOB); S("s_mov_b32 s64, 0x%x" % OOB)
    def m_clear(S):
        S("s_mov_b64 exec, 0x3ff")
        S("buffer_store_dwordx4 %s, v%d, s[8:11], s60 offen sc1" % (r4(Q), L16))
        S("s_mov_b64 exec, -1"); S("s_mov_b32 s60, 0x%x" % OOB)

    def window(S):
        p0 = pw0; red = w < 2; tag = "w"
        FLn, RG, U1, LD, PG, KD, CD = P.get("FL", 44), P.get("RG", 24), P.get("U1", 8), P.get("LD", 56), P.get("PG2", 12), P.get("KD", 84), P.get("CD", 0)
        NS, NA, CP = P.get("NS", 2), P.get("NA", 3), P.get("CP", 0)
        nxt = ["s_add_u32 s27, s44, 1", "s_and_b32 s27, s27, 3", "s_mul_i32 s48, s27, 5120", "s_add_u32 s48, s48, s41", "s_lshl_b32 s27, s27, 15", "s_add_u32 s49, s27, s47"]
        if not red:
            for t_ in nxt: S(t_)
        if red:
            NL = 4 if w == 0 else 1
            SETS = [[M[1], M[2], M[3], M[4]], [AV, AV + 4, AQ, AQ + 4], [LB[0], LB[0] + 4, LB[1], LB[1] + 4]][:NS] if w == 0 else [[M[1 + i]] for i in range(NS)]
            SEL, D, X = X0, X1, AK + 4
            su = []
            if w == 0:
                su += ["v_and_b32 v%d, 16, v%d" % (X, L16), "v_bfe_u32 v%d, v%d, 5, 2" % (X + 1, L16)]
            else:
                su += ["v_bfe_u32 v%d, v%d, 4, 1" % (X + 2, L16), "v_bfe_u32 v%d, v%d, 7, 1" % (X + 1, L16), "v_lshl_add_u32 v%d, v%d, 1, v%d" % (X + 1, X + 1, X + 2),
                       "v_bfe_u32 v%d, v%d, 6, 1" % (X, L16), "v_lshlrev_b32 v%d, 4, v%d" % (X, X)]
            su += ["v_lshlrev_b32_e64 v%d, v%d, s45" % (X, X)]
            MK = ("s[64:65]", "vcc")
            su += ["v_cmp_eq_u32_e64 %s, %d, v%d" % (MK[q & 1], q, X + 1) for q in range(2)] + nxt[:2]
            su += ["v_cndmask_b32_e64 v%d, 0, v%d, %s" % (SEL + q, X, MK[q & 1]) for q in range(2)]
            su += ["v_cmp_eq_u32_e64 %s, %d, v%d" % (MK[q & 1], q, X + 1) for q in range(2, 4)] + nxt[2:4]
            su += ["v_cndmask_b32_e64 v%d, 0, v%d, %s" % (SEL + q, X, MK[q & 1]) for q in range(2, 4)] + nxt[4:]
            if w == 0:
                su += ["v_bfe_u32 v%d, v%d, 4, 3" % (T1, L16), "v_lshlrev_b32 v%d, 3, v%d" % (T1, T1), "v_lshrrev_b32 v%d, 8, v%d" % (X, L16), "v_lshl_add_u32 v%d, v%d, 6, v%d" % (T1, X, T1)]
            else:
                su += ["v_bfe_u32 v%d, v%d, 8, 1" % (X, L16), "v_lshlrev_b32 v%d, 6, v%d" % (T1, X), "v_lshl_add_u32 v%d, v%d, 3, v%d" % (T1, X + 2, T1),
                       "v_lshrrev_b32 v%d, 9, v%d" % (X + 1, L16), "v_lshl_add_u32 v%d, v%d, 2, v%d" % (T1, X + 1, T1)]
            su += ["s_add_u32 s56, s27, s46", "s_add_u32 s56, s56, s33", "s_add_u32 s58, s48, s33"]
            def gap(n):
                while n > 0 and su: S(su.pop(0)); n -= 1
                idle(S, n)
            def issue(E, B):
                for j in range(NL): E("buffer_load_dwordx4 %s, v%d, s[8:11], %s offen sc1" % (r4(B[j]), RL if w == 0 else L16, ("s43", "s61", "s100", "s101")[j]))
            gap(FLn + (P.get("F1", 4) if w else 0) - (S.pos - p0))
            for k_, B in enumerate(SETS):
                if k_: gap(RG + (P.get("R1", 14) if w else 0))
                issue(S, B)
            gap(max(U1, len(su)))
            def hint(E, B):
                if w == 0: E("v_max3_u32 v%d, v%d, v%d, v%d" % (X, B[0], B[1], B[2])); E("v_max_u32 v%d, v%d, v%d" % (X, X, B[3])); E("v_cmp_eq_u32 vcc, -1, v%d" % X)
                else: E("v_cmp_eq_u32 vcc, -1, v%d" % B[0])
            def fold(E):
                if w == 0:
                    for q in range(4): E("v_add_f32_dpp v%d, v%d, v%d row_ror:8 row_mask:0xf bank_mask:0xf" % (D + q, D + q, D + q))
                    E("v_cmp_u_f32 vcc, v%d, v%d" % (D, D))
                    E(cvt(D, D, D + 1)); E(cvt(D + 1, D + 2, D + 3))
                else:
                    for sh in (8, 4, 2):
                        for q in range(2): E("v_add_f32_dpp v%d, v%d, v%d row_ror:%d row_mask:0xf bank_mask:0xf" % (D + q, D + q, D + q, sh))
                    E("v_cmp_u_f32 vcc, v%d, v%d" % (D, D))
                    E(cvt(D, D, D + 1))
            op = "buffer_store_dwordx2 %s" % r2(D) if w == 0 else "buffer_store_dword v%d" % D
            def publish(E):
                E("s_mov_b64 exec, %s" % ("s[38:39]" if w == 0 else "s[62:63]"))
                E("%s, v%d, s[8:11], s58 offen%s" % (op, T1, sc))
            for j in range(NL): mf32(S, D, SEL, SETS[0][j], "0" if j == 0 else D)
            hint(S, SETS[0]); S(br("s_cbranch_vccnz %s" % L(tag + "rb_i0")))
            fold(S); S(br("s_cbranch_vccnz %s" % L(tag + "rb_e0")))
            publish(S)
            def blk():
                A.label(L(tag + "rb_l"))
                for k_, B in enumerate(SETS):
                    E = Seq(A)
                    E("s_waitcnt vmcnt(%d)" % (NL * NS - NL))
                    for j in range(NL): mf32(E, D, SEL, B[j], "0" if j == 0 else D)
                    hint(E, B); E("s_cbranch_vccz %s" % L(tag + "rb_x%d" % k_))
                    A.label(L(tag + "rb_i%d" % k_))
                    issue(A, B)
                    if ST: A("s_add_u32 s99, s99, 1")
                A("s_add_u32 s71, s71, 1"); A("s_cmp_lt_u32 s71, %d" % (4 * SPIN_MAX)); A("s_cbranch_scc1 %s" % L(tag + "rb_l")); A("s_branch %s" % L0("fail"))
                for k_, B in enumerate(SETS):
                    A.label(L(tag + "rb_x%d" % k_))
                    E = Seq(A); E("s_nop %d" % (3 if w == 0 else 5)); fold(E); A("s_cbranch_vccz %s" % L(tag + "rb_n"))
                    A.label(L(tag + "rb_e%d" % k_))
                    allr = [b + i for b in B for i in range(4)]
                    A("v_max3_u32 v%d, v%d, v%d, v%d" % (X, allr[0], allr[1], allr[2]))
                    for i in range(3, len(allr) - 1, 2): A("v_max3_u32 v%d, v%d, v%d, v%d" % (X, X, allr[i], allr[i + 1]))
                    A("v_max_u32 v%d, v%d, v%d" % (X, X, allr[-1])); A("v_cmp_eq_u32 vcc, -1, v%d" % X)
                    A("s_cbranch_vccnz %s" % L(tag + "rb_i%d" % k_))
                    A("v_min_u32 v%d, -2, v%d" % (D, D)); A("v_min_u32 v%d, -2, v%d" % (D + 1, D + 1))
                    if k_ < NS - 1: A("s_branch %s" % L(tag + "rb_n"))
                A.label(L(tag + "rb_n"))
                publish(A)
                A("s_branch %s" % L(tag + "rb_d"))
            ool.append(blk)
            S.label(L(tag + "rb_d"))
        else:
            if not PB_: pub_read(S)
            ready(S)
            if CLP: clear_prep(S)
        stamp(S, 7)
        S("s_barrier")
        p0 = S.pos
        if CLP == 1 and w >= 2: clears(S)
        if red:
            SCD = P.get("SCD", 0)
            if not SCD and not (P.get("NOS1") == w + 1): S("%s, v%d, s[8:11], s56 offen sc1" % (op, T1))
            S("s_mov_b64 exec, -1")
            S("s_waitcnt vmcnt(%d)" % (1 if SCD else 2))
        stamp_acc(S)
        if red: ready(S)
        kv_prep(S, 2)
        if w == 0 or (w == 1 and not CLP): clear_prep(S)
        def kvcheck():
            S("ds_read_b64 %s, v%d offset:%d" % (r2(X1 + 2), L16, L_FL))
            S("v_min_u32 v%d, v%d, v%d" % (X1 + 2, X1 + 2, X1 + 3)); S("v_readfirstlane_b32 s28, v%d" % (X1 + 2)); S("s_nop 0"); S("s_max_u32 s54, s54, s28")
            kv_wait(S, tag + "kw", 3)
        fr = FL_[w]
        f1 = None
        if fr:
            S.nop(LD - (S.pos - p0))
            f1 = dma(S, fr, "s48", L_ML)
            for _ in range(NA - 1):
                S.nop(PG); dma(S, fr, "s48", L_ML)
        if red and SCD:
            S.nop(SCD - (S.pos - p0))
            S("s_mov_b64 exec, %s" % ("s[38:39]" if w == 0 else "s[62:63]")); S("%s, v%d, s[8:11], s56 offen sc1" % (op, T1)); S("s_mov_b64 exec, -1")
        if w == 1: kvcheck()
        if CLP == 2 and w >= 2: clears(S)
        if CL3 and w < 2:
            S.nop(P.get("CD", 96) - (S.pos - p0)); clears(S)
        S("s_add_u32 s44, s44, 1"); S("s_mov_b32 s70, 0")
        S.wait(lds=S.nl)
        if f1: A.lines[topw] = "    s_waitcnt vmcnt(%d)" % (S.nv - f1)
        S("s_branch %s" % L("top"))

    def stamp_acc(S):
        if not ST: return
        S("s_waitcnt lgkmcnt(0)")
        if P.get("RAW") and w == P["RAW"] - 1:
            for i in range(9): S("v_writelane_b32 v%d, s%d, %d" % (T0, 72 + 2 * i, i))
            S("v_writelane_b32 v%d, s98, 9" % T0); S("v_writelane_b32 v%d, s99, 10" % T0)
            S("s_lshl_b32 s27, s20, 5"); S("s_add_u32 s27, s27, s22"); S("s_lshl_b32 s27, s27, 7"); S("s_add_u32 s27, s27, s44"); S("s_lshl_b32 s27, s27, 8"); S("s_add_u32 s27, s27, %d" % (WS_DBG + (5 << 20)))
            S("s_mov_b64 exec, 0x7ff"); S("buffer_store_dword v%d, v%d, s[8:11], s27 offen" % (T0, L16)); S("s_mov_b64 exec, -1")
        if TR:
            for i in range(8): S("s_sub_u32 s27, s%d, s%d" % (74 + 2 * i, 72 + 2 * i)); S("s_add_u32 s%d, s%d, s27" % (90 + i, 90 + i))
        else:
            for i in range(7): S("s_sub_u32 s27, s%d, s%d" % (74 + 2 * i, 72 + 2 * i)); S("s_add_u32 s%d, s%d, s27" % (90 + i, 90 + i))
            S("s_sub_u32 s27, s72, s88"); S("s_add_u32 s97, s97, s27"); S("s_mov_b32 s88, s86")

    A.label(L("layer"))
    S = Seq(A)
    S("s_lshr_b32 s27, s44, 6"); S("s_mul_i32 s50, s27, %d" % KV_LAYER); S("s_lshl_b32 s27, s22, 13"); S("s_add_u32 s50, s50, s27"); S("s_add_u32 s50, s50, %d" % WS_KXF)
    if w == 1: kv_wait(S, "p1", 1)
    S("s_barrier")
    kv_prep(S, 0); k_fetch(S); vt_fetch(S); kv_prep(S, 1)
    S("s_mul_i32 s27, s20, 5120"); S("s_add_u32 s48, s27, %d" % WS_M0); S("s_sub_u32 s49, %d, s27" % (WS_M0 + 5120))
    dma(S, FL_[w], "s48", L_ML)
    if w == 1: kv_wait(S, "p2", 2)
    ready(S); S("s_mov_b32 s70, 0"); S.wait(lds=S.nl, vm=S.nv)
    if ST:
        for i in range(10): S("s_mov_b32 s%d, 0" % (90 + i))
        S("%s s[72:73]" % ("s_memrealtime" if P.get("RAW") else "s_memtime")); S("s_waitcnt lgkmcnt(0)")
        for i in range(1, 9): S("s_mov_b32 s%d, s72" % (72 + 2 * i))
    ht(2)

    A.label(L("top"))
    S = newseq(); top0 = len(A.lines)
    if TR: S.hook = hook
    topw = len(A.lines); A("s_nop 0")
    stamp(S, 0)
    S("s_barrier")
    stamp(S, 1)
    for t in range(5): rd(S, M[t], MRA, L_ML + 1024 * t)
    R0 = P.get("R0", 0)
    if not R0: rtok = dma(S, FR_[w], "s49", L_MR)
    S.label(L("lr_r"))
    fl = []
    fv = []

    def step(i):
        m, tl, rem, t = SEQ[i]
        if i in LDSI:
            n = LDSI.index(i); smf(S, ACC[m] + 4 * tl, M[t], LB[n % 2])
            if n + 2 < NLW: fl[0:0] = lw_read(S, n + 2)
        else: smf(S, ACC[m] + 4 * tl, M[t], WREG[i])

    def fill(nl, nv):
        for _ in range(nl):
            if fl: fl.pop(0)()
        for _ in range(nv):
            if fv: fv.pop(0)()

    def steps(lo, hi, nl=1, nv=1):
        for i in range(lo, hi):
            step(i); fill(nl, nv)

    def I(t): return lambda: S(t)
    def R(dst, areg, off): return lambda: rd(S, dst, areg, off)
    def reread(lab, fr, sa, lds, quads, peek, cnt, redo):
        def blk():
            A.label(L(lab))
            A("s_mov_b32 s30, 0")
            A.label(L(lab + "_l"))
            E = Seq(A); E("s_waitcnt lgkmcnt(0)")
            if ST: E("s_add_u32 s98, s98, %d" % cnt)
            if fr:
                E("s_and_b32 s27, s30, 1"); E("s_cbranch_scc%d %s" % (0 if redo else 1, L(lab + "_n"))); E("s_waitcnt vmcnt(%d)" % len(fr)); dma(E, fr, sa, lds)
                A.label(L(lab + "_n"))
            for t in quads: rd(E, M[t], MRA, lds + 1024 * t)
            if peek: E("ds_read_b32 v%d, v%d offset:%d" % (T1, MRA, lds + 4096))
            E("v_max3_u32 v%d, v%d, v%d, v%d" % (T0, M[0], M[1], M[2])); E("v_max3_u32 v%d, v%d, v%d, v%d" % (T0, T0, M[3], T1 if peek else M[4]))
            E("v_cmp_eq_u32 vcc, -1, v%d" % T0); E("s_cbranch_vccz %s" % L(lab + "_d"))
            spin_count(E, 8 * SPIN_MAX); E("s_branch %s" % L(lab + "_l"))
            A.label(L(lab + "_d"))
            if redo:
                ready(E); E("s_waitcnt lgkmcnt(0)")
                if fr: E("s_waitcnt vmcnt(0)") if False else None
            E("s_branch %s" % L(lab + "_r"))
        ool.append(blk)
    HP = P.get("HP", 8)
    fv += [I("s_and_b32 s55, s44, 3\ns_mul_i32 s55, s55, %d" % PART_SLOT), I("s_add_u32 s55, s55, s34\ns_add_u32 s56, s55, s35"), I("s_and_b32 s57, s44, 63")]
    if w < 2: fv += [I("s_add_u32 s43, s55, s32")]
    if w == 0: fv += [I("s_add_u32 s61, s43, %d\ns_add_u32 s100, s43, %d" % (8 * PART_H, 16 * PART_H)), I("s_add_u32 s101, s43, %d" % (24 * PART_H))]
    if PB_: fv += [I("s_lshl_b32 s4, s44, 18\ns_add_u32 s4, s4, s53")]
    if w == 1: fv += [I("s_sub_u32 s27, s57, %d\ns_max_i32 s27, s27, 0" % (0 if PB_ else 1)), I("s_lshl_b64 s[28:29], 1, s27\ns_lshl_b32 s27, s27, 7"), I("s_sub_u32 s31, s52, s27")]
    steps(0, HP); drain(fv)
    fv += [I("v_max3_u32 v%d, v%d, v%d, v%d" % (T0, M[0], M[1], M[2])), I("v_max3_u32 v%d, v%d, v%d, v%d" % (T0, T0, M[3], M[4])), I("v_cmp_eq_u32 vcc, -1, v%d" % T0), I(br("s_cbranch_vccnz %s" % L("lr")))]
    reread("lr", FL_[w], "s48", L_ML, range(5), False, 0x10000, True)
    NLA = NLOC - P.get("RA", 4)
    assert NLOC - NLA in (4, 8)
    if R0:
        steps(HP, R0); rtok = dma(S, FR_[w], "s49", L_MR); steps(R0, NLA)
    else: steps(HP, NLA)
    drain(fl); drain(fv)
    def slow_ops():
        if w >= 2 and not PB_: pub_store(S)
        if w < 2 and not CLP and not CL3: clears(S)
        if w == 0: m_clear(S)
        if w == 0:
            S("s_mov_b32 m0, %d" % L_JUNK)
            S("buffer_load_dword v%d, s[8:11], s3 offen sc1 lds" % PA8); S("buffer_load_dword v%d, s[8:11], s26 offen sc1 lds" % PA8)
        if w == 1:
            S("s_mov_b32 m0, %d" % L_FL)
            S("s_mov_b64 exec, 3"); S("buffer_load_dword v%d, s[8:11], s51 offen sc1 lds" % PA8)
            S("s_mov_b64 exec, s[28:29]"); S("buffer_store_dword v%d, v%d, s[8:11], s31 offen sc1" % (PA8, PA8)); S("s_mov_b64 exec, -1")
    stamp(S, 2)
    S.wait(vm=rtok); S("s_barrier")
    stamp(S, 3)
    if NLOC - NLA == 4:
        for t in range(4): rd(S, M[t], MRA, L_MR + 1024 * t)
        S("ds_read_b32 v%d, v%d offset:%d" % (T1, MRA, L_MR + 4096))
        steps(NLA, NLOC - 1)
        S("v_max3_u32 v%d, v%d, v%d, v%d" % (T0, M[0], M[1], M[2]))
        step(NLOC - 1)
        S("v_max3_u32 v%d, v%d, v%d, v%d" % (T0, T0, M[3], T1)); S("v_cmp_eq_u32 vcc, -1, v%d" % T0)
    else:
        S("ds_read2st64_b32 %s, v%d offset0:%d offset1:%d" % (r2(T0), MRA, (L_MR + 3072) // 256, (L_MR + 4096) // 256))
        for t in range(2): rd(S, M[t], MRA, L_MR + 1024 * t)
        fl += [R(M[2], MRA, L_MR + 2048)]
        fl.insert(0, fl.pop())
        step(NLA); rd(S, M[2], MRA, L_MR + 2048); fl.remove(fl[-1])
        steps(NLA + 1, NLA + 4)
        fl.insert(0, R(M[3], MRA, L_MR + 3072)); drain(fv)
        step(NLA + 4); fill(1, 0)
        fv += [I("v_max3_u32 v%d, v%d, v%d, v%d" % (T0, T0, T1, M[0])), I("v_max3_u32 v%d, v%d, v%d, v%d" % (T0, T0, M[1], M[2])), I("v_cmp_eq_u32 vcc, -1, v%d" % T0)]
        steps(NLA + 5, NLOC)
    drain(fv)
    S("s_nop 0" if P.get("NOS1") else br("s_cbranch_vccnz %s" % L("rr")))
    S.label(L("rr_r"))
    reread("rr", FR_[w], "s49", L_MR, range(4), True, 1, False)
    rd(S, M[4], MRA, L_MR + 4096)
    ftok = S.nv
    SP = P.get("SP", 0)
    steps(NLOC, NLOC + SP); slow_ops(); steps(NLOC + SP, NLOC + 11)
    B0 = NLOC - 20
    pv, pw = post(S, AQ, L_EQ, True); fv += pv
    steps(B0 + 31, B0 + 35); steps(B0 + 35, B0 + 40, 1, 2); drain(fv)
    step(B0 + 40); drain(pw)
    pv, pw = post(S, AK, L_EK); fv += pv
    assert NV <= 1
    QO = [AQ, AQ + 4, AK, AK + 4]; KA = [LB[0], LB[0] + 4, LB[1], LB[1] + 4]; SXa, SXb, SM = M[0], M[1], M[3]; ONE = X0; HALF = T0
    for i in range(41, 50):
        step(B0 + i)
        if i % 2 == 1 and (i - 41) // 2 >= NV: fl.append(R(M[(i - 41) // 2], MRA, L_ML + 1024 * ((i - 41) // 2)))
        if B0 + i in (45, 47): fl.extend([R(KA[u], KRA, L_K + 1024 * u) for u in ((2, 3) if B0 + i == 45 else (0, 1))])
        if i == 48: drain(pw); kwt = S.nl
        else: fill(1, 1 if i < 45 else 2)
    assert not fv
    steps(B0 + 50, B0 + 51)
    step(B0 + 51); S.dv = min(S.dv, ftok - 1); S.wait(lds=kwt, vm=ftok); S("s_barrier")
    stamp(S, 4)
    fl[0:0] = [R(QO[u], ER, L_EQ + 64 * u) for u in range(4)]
    fill(2, 0)
    E1 = 56 if NV == 0 else 57
    steps(B0 + 52, E1)
    drain(fl)
    def ex(r): return I("v_exp_f32 v%d, v%d" % (r, r))
    for u in range(4): mf32(S, SXa, KA[u], QO[u], "0" if u == 0 else SXa); rd(S, KA[u], KRA, L_K + 4096 + 1024 * u)
    fv += [I("v_mov_b64 %s, s[24:25]" % r2(ONE)), I("v_mov_b64 %s, s[24:25]" % r2(ONE + 2)), I("v_mov_b64 %s, s[16:17]" % r2(HALF))]
    fill(0, 1); steps(E1, 58); drain(fv)
    for u in range(4): mf32(S, SXb, KA[u], QO[u], "0" if u == 0 else SXb); rd(S, KA[u], ER, L_EK + 64 * u); ex(SXa + u)()
    PX = SXa
    step(58); S(cvt(PX, SXa, SXa + 1)); step(59); S(cvt(PX + 1, SXa + 2, SXa + 3))
    stamp(S, 5)
    for u in range(4): mf32(S, SM, KA[u], QO[u], "0" if u == 0 else SM); ex(SXb + u)()
    S(cvt(PX + 2, SXb, SXb + 1)); S(cvt(PX + 3, SXb + 2, SXb + 3)); S(cvt(AV, AV, AV + 1)); S(cvt(AV + 1, AV + 2, AV + 3))
    OA = [AQ, AQ + 4]; Z = AK; PM = SM
    mf32(S, Z, ONE, PX, "0"); S(cvt(AV + 2, AV + 4, AV + 5)); ex(SM)()
    mf32(S, OA[0], VT[0], PX, "0"); ex(SM + 1)(); ex(SM + 2)()
    mf32(S, OA[1], VT[1], PX, "0"); ex(SM + 3)()
    S(cvt(PM, SM, SM + 1)); S(cvt(PM + 1, SM + 2, SM + 3)); S(cvt(AV + 3, AV + 6, AV + 7))
    OUT = [KA[0], KA[1], KA[2], KA[3], M[4]]
    S.label(L("fin"))
    for q in OUT: fv += zitems(S, q)
    mf16(S, Z, HALF, PM, Z); S("s_cmp_eq_u32 s57, 63")
    mf16(S, OA[0], AV, PM, OA[0])
    if not PB_: S("ds_write_b128 v%d, %s offset:%d" % (L16, r4(AV), L_EV + 1024 * w))
    else: fv.insert(0, fv.pop()); fv.insert(0, fv.pop())
    mf16(S, OA[1], AV + 2, PM, OA[1]); S("s_cbranch_scc1 %s" % L("last")); fill(0, 2)
    def pub_now(E):
        for i in range(4): E("v_cndmask_b32_e64 v%d, v%d, v%d, s[66:67]" % (X1 + i, AV + i, KA[w] + i))
    def pub_st(E): E("buffer_store_dwordx4 %s, v%d, s[8:11], s4 offen offset:%d sc1" % (r4(X1), L16, 1024 * w))
    RZ = Z + 2
    S("v_rcp_f32 v%d, v%d" % (RZ, Z)); S("v_subrev_u32 v%d, s68, v%d" % (Z + 1, Z))
    for q in (0, 2): S("v_pk_mul_f32 %s, %s, %s op_sel_hi:[1,0]" % (r2(AQ + q), r2(AQ + q), r2(RZ)))
    S(cvt(AQ, AQ, AQ + 1)); S(cvt(AQ + 1, AQ + 2, AQ + 3))
    for q in (4, 6): S("v_pk_mul_f32 %s, %s, %s op_sel_hi:[1,0]" % (r2(AQ + q), r2(AQ + q), r2(RZ)))
    S(cvt(AQ + 2, AQ + 4, AQ + 5)); S(cvt(AQ + 3, AQ + 6, AQ + 7))
    S("ds_write2_b64 v%d, %s, %s offset0:0 offset1:16" % (OWA, r2(AQ), r2(AQ + 2)))
    S("v_cmp_lt_u32 vcc, s69, v%d" % (Z + 1)); S("s_nop 0" if P.get("NOS1") else br("s_cbranch_vccnz %s" % L("zbad")))
    S.label(L("zok"))
    ctok = S.nv - (2 if w < 2 else 0)
    if PB_: pub_now(S)
    vt_fetch(S)
    S.wait(lds=S.nl, vm=ctok if w < 2 else None); S("s_barrier")
    O0, O1 = M[1], M[3]
    rd(S, O0, L16, L_EO); rd(S, O1, L16, L_EO + 1024)
    k_fetch(S)
    if PB_: pub_st(S)
    drain(fv)
    def opost(T):
        b = OUT[T]
        return [I("v_permlane32_swap_b32 v%d, v%d" % (b, b + 1)), I("v_permlane32_swap_b32 v%d, v%d" % (b + 2, b + 3)),
                I("v_add_f32 v%d, v%d, v%d" % (b, b, b + 1)), I("v_add_f32 v%d, v%d, v%d" % (b + 2, b + 2, b + 3))]
    SD = M[0]
    def wo(T, tp): smf(S, OUT[T], (O0, O1)[tp], WO[T, tp])
    S.hoist = False
    wo(0, 0); wo(1, 0); wo(0, 1); wo(1, 1); wo(2, 0); wo(3, 0)
    fv += opost(0) + opost(1) + [I(cvt(SD, OUT[0], OUT[1])), I(cvt(SD + 2, OUT[0] + 2, OUT[1] + 2))]
    fill(0, 1); wo(2, 1); fill(0, 1); wo(3, 1); fill(0, 2); wo(4, 0); fill(0, 1); wo(4, 1)
    fv += opost(2) + opost(3) + [I(cvt(SD + 1, OUT[2], OUT[3])), I(cvt(SD + 3, OUT[2] + 2, OUT[3] + 2))]
    drain(fv)
    if P.get("SO", 1): S("buffer_store_dwordx4 %s, v%d, s[8:11], s56 offen%s" % (r4(SD), L16, sc))
    drain(opost(4)); S(cvt(OUT[4], OUT[4], OUT[4] + 2))
    if not P.get("SO", 1): S("buffer_store_dwordx4 %s, v%d, s[8:11], s56 offen%s" % (r4(SD), L16, sc))
    S("buffer_store_dword v%d, v%d, s[8:11], s55 offen%s" % (OUT[4], PSB, sc))
    stamp(S, 6)
    if w == 0 and md == 0: print("chain on-path estimate %d, nops %d" % (estimate(A.lines[top0:], P.get("EST")), S.nops))
    def fork(S):
        S2 = copy.copy(S)
        for k_ in ("vw", "tw", "mw", "mc", "sd", "sw", "lp", "vp"): setattr(S2, k_, dict(getattr(S, k_)))
        return S2
    pw0 = S.pos
    window(S)

    A.label(L("restart"))
    E = Seq(A)
    E("s_waitcnt vmcnt(0) lgkmcnt(0)"); E.nop(8); E("s_barrier")
    dma(E, FL_[w], "s48", L_ML); ready(E); E("s_waitcnt vmcnt(0) lgkmcnt(0)"); E("s_branch %s" % L("top"))
    A.label(L("zbad"))
    E = Seq(A)
    E("s_cmp_eq_u32 s70, 2"); E("s_cbranch_scc1 %s" % L("zok"))
    E("v_cmp_u_f32 vcc, v%d, v%d" % (Z, Z)); E("s_cbranch_vccz %s" % L("exact"))
    E("s_cmp_eq_u32 s70, 1"); E("s_cbranch_scc1 %s" % L("exact"))
    A.label(L("vfy0"))
    E("s_mov_b32 s70, 1"); E("s_mov_b32 s30, 0"); E("s_waitcnt vmcnt(0) lgkmcnt(0)"); E.nop(8)
    A.label(L("vfy"))
    E("v_mov_b32 v%d, 0" % T0)
    for sa in ("s48", "s49"):
        E("s_add_u32 s59, %s, 4096" % sa)
        for t in range(5): E("buffer_load_dwordx4 %s, v%d, s[8:11], %s offen offset:%d sc1" % (r4(M[t]), L16, "s59" if t == 4 else sa, 1024 * (t % 4)))
        for r in range(M[0], M[0] + 20, 2): E("v_max3_u32 v%d, v%d, v%d, v%d" % (T0, T0, r, r + 1))
    E("v_cmp_eq_u32 vcc, -1, v%d" % T0); E("s_cbranch_vccz %s" % L("restart"))
    spin_count(E); E("s_branch %s" % L("vfy"))
    A.label(L("exact"))
    E = Seq(A); E.nop(8)
    E("s_mov_b32 s70, 2")
    KT = [KA[0], KA[1]]; S3 = [SXa, SXb, SM]
    E("s_waitcnt lgkmcnt(0)")
    for u in range(4): rd(E, QO[u], ER, L_EQ + 64 * u)
    n = 0
    for tl in range(3):
        for u in range(4):
            kq = KT[n % 2]; n += 1
            if tl < 2: rd(E, kq, KRA, L_K + 4096 * tl + 1024 * u)
            else: rd(E, kq, ER, L_EK + 64 * u)
            mf32(E, S3[tl], kq, QO[u], "0" if u == 0 else S3[tl])
            E.nop(4)
    S12 = [q + i for q in S3 for i in range(4)]
    MX, TM = KA[2], KA[2] + 1
    E("v_max3_f32 v%d, v%d, v%d, v%d" % (MX, S12[0], S12[1], S12[2]))
    for i in range(3, 11, 2): E("v_max3_f32 v%d, v%d, v%d, v%d" % (MX, MX, S12[i], S12[i + 1]))
    E("v_max_f32 v%d, v%d, v%d" % (MX, MX, S12[11]))
    for op in ("v_permlane16_swap_b32", "v_permlane32_swap_b32"):
        E("v_mov_b32 v%d, v%d" % (TM, MX)); E("%s v%d, v%d" % (op, MX, TM)); E("v_max_f32 v%d, v%d, v%d" % (MX, MX, TM))
    for r in S12: E("v_sub_f32 v%d, v%d, v%d" % (r, r, MX)); E("v_exp_f32 v%d, v%d" % (r, r))
    for i in range(4): E(cvt(PX + i, S12[2 * i], S12[2 * i + 1]))
    E(cvt(PM, SM, SM + 1)); E(cvt(PM + 1, SM + 2, SM + 3))
    mf32(E, OA[0], VT[0], PX, "0"); mf32(E, OA[1], VT[1], PX, "0"); mf32(E, Z, ONE, PX, "0")
    rd(E, KA[w], ER, L_EK + 64 * w); E.wait_lds_all()
    E.nop(8); E("s_branch %s" % L("fin"))
    A.label(L("last"))
    A("s_cmp_lg_u32 s70, 0"); A("s_cbranch_scc1 %s" % L("last2"))
    A("v_cmp_u_f32 vcc, v%d, v%d" % (SXb, SXb)); A("s_nop 0" if P.get("NOS1") else br("s_cbranch_vccnz %s" % L("vfy0")))
    A.label(L("last2"))
    if PB_:
        E = Seq(A); pub_now(E); pub_st(E); E("s_waitcnt vmcnt(0) lgkmcnt(0)")
    else: A("s_waitcnt vmcnt(0) lgkmcnt(0)"); A("s_barrier")
    if w >= 2 and not PB_:
        E = Seq(A); E.nop(8); pub_read(E); pub_store(E); E("s_waitcnt vmcnt(0)")
    A("s_barrier")
    if w == 1:
        A("v_mov_b32 v%d, 8192" % T1); A("s_mov_b64 exec, 1"); A("buffer_store_dword v%d, v%d, s[8:11], s52 offen sc1" % (T1, L16)); A("s_mov_b64 exec, -1"); A("s_add_u32 s52, s52, 4096")
    if True:
        E = Seq(A); E.nop(8); clear_prep(E)
        if cw in (0, 1): clears(E)
        if w == 0: m_clear(E)
        A("s_waitcnt vmcnt(0)")
    A("s_add_u32 s44, s44, 1")
    ht(3)
    if ST:
        A("s_lshl_b32 s27, s20, 5"); A("s_add_u32 s27, s27, s22"); A("s_lshl_b32 s27, s27, 2"); A("s_add_u32 s27, s27, s21"); A("s_lshl_b32 s27, s27, 6"); A("s_add_u32 s27, s27, %d" % WS_DBG)
        A("s_lshl_b32 s28, s44, 8"); A("s_add_u32 s27, s27, s28"); A("s_mov_b64 exec, 1")
        for i in range(10): A("v_mov_b32 v%d, s%d" % (T1, 90 + i)); A("buffer_store_dword v%d, v%d, s[8:11], s27 offen offset:%d" % (T1, L16, 4 * i)); A("s_nop 1")
        A("s_mov_b64 exec, -1")
    A("s_cmp_eq_u32 s44, 128"); A("s_cbranch_scc1 %s" % L0("end"))
    A("s_branch %s" % L("layer"))
    for b in ool: b()
```

```python
from asmlib import *
from layout import *
from seq import *
import k_chain
from k_chain import chain_body, f2u, C1, SPIN_MAX, OOB, L_FL
from k_load import chain_load, bulk_load
from k_tab import lane_setup, t1_frag, t2_frag, wt_task
from k_ln import ln_body
from k_b import fft2, idft, idft_table

GMAP = 0x76325140


def breg(i):
    return 256 + 4 * i if i < 64 else 192 + 4 * (i - 64)


def main_kernel(P):
    name = "interleave_layers__memory_aug_recurrent_mem_tr__spectral_gfnet__prompt_kernel"
    k = Kernel(name, 256, 256, 163840, 256, 256, sgpr=102)
    A = k.asm
    L = lambda x: "M_%s" % x

    def ht2(i):
        if P.get("HT", 0) >= 2: ht(i, True)
    def hq(i):
        if P.get("HT", 0) < 3: return
        lab = A.newlabel(L("hq"))
        A("s_or_b32 s6, s21, s22"); A("s_cmp_lg_u32 s6, 0"); A("s_cbranch_scc1 %s" % lab); A("s_cmp_lt_u32 s44, 60"); A("s_cbranch_scc1 %s" % lab)
        A("s_memrealtime s[6:7]"); A("s_waitcnt lgkmcnt(0)")
        A("s_lshl_b32 s7, s20, 8"); A("s_add_u32 s7, s7, s5"); A("s_add_u32 s5, s5, 4"); A("s_add_u32 s7, s7, %d" % (WS_DBG + (4 << 20)))
        A("s_lshl_b32 s6, s6, 4"); A("s_or_b32 s6, s6, %d" % i)
        A("v_writelane_b32 v188, s6, %d" % i); A("v_writelane_b32 v189, s7, %d" % i)
        if i == 15: A("s_mov_b64 exec, 0xffe1"); A("buffer_store_dword v188, v189, s[8:11], 0 offen"); A("s_mov_b64 exec, -1")
        A.label(lab)
    def ht(i, saved=False):
        if not P.get("HT"): return
        lab = A.newlabel(L("ht"))
        if saved:
            A("s_or_b32 s6, s83, s84"); A("s_cmp_lg_u32 s6, 0"); A("s_cbranch_scc1 %s" % lab)
            A("s_memrealtime s[6:7]"); A("s_waitcnt lgkmcnt(0)")
            A("s_add_u32 s7, s82, 2"); A("s_lshl_b32 s7, s7, 8"); A("s_add_u32 s7, s7, s5"); A("s_add_u32 s5, s5, 4"); A("s_add_u32 s7, s7, %d" % (WS_DBG + (4 << 20)))
            A("s_lshl_b32 s6, s6, 4"); A("s_or_b32 s6, s6, %d" % i)
            A("s_mov_b64 exec, 1"); A("v_mov_b32 v190, s6"); A("v_mov_b32 v191, 0"); A("buffer_store_dword v190, v191, s[8:11], s7 offen"); A("s_mov_b64 exec, -1")
            A.label(lab); return
        A("s_or_b32 s6, s21, s22"); A("s_cmp_lg_u32 s6, 0"); A("s_cbranch_scc1 %s" % lab)
        A("s_memrealtime s[6:7]"); A("s_waitcnt lgkmcnt(0)")
        A("s_lshl_b32 s7, s20, 8"); A("s_add_u32 s7, s7, s5"); A("s_add_u32 s5, s5, 4"); A("s_add_u32 s7, s7, %d" % (WS_DBG + (4 << 20)))
        A("s_lshl_b32 s6, s6, 4"); A("s_or_b32 s6, s6, %d" % i)
        A("s_mov_b64 exec, 1"); A("v_mov_b32 v10, s6"); A("v_mov_b32 v11, 0"); A("buffer_store_dword v10, v11, s[8:11], s7 offen"); A("s_waitcnt vmcnt(0)"); A("s_mov_b64 exec, -1")
        A.label(lab)

    ool = []
    def flush_ool():
        for lab, grp in ool:
            A.label(lab)
            for t_ in grp: A(t_)
            A("s_branch %s_r" % lab)
        del ool[:]

    def lst(op, E=None):
        E = E or A
        l1 = A.newlabel(L("ls"))
        E("s_cmp_lg_u32 s23, 0"); E("s_cbranch_scc1 %s" % l1)
        for o in op: E(o)
        A.label(l1 + "_r")
        ool.append((l1, ["s_nop 7"] + [o + " sc1" if o.startswith("buffer_store") else o for o in op]))

    A("s_cmp_ge_u32 s2, 256"); A("s_cbranch_scc1 %s" % L("end"))
    load_srd(A, 16, KA_X, SZ_X); load_srd(A, 8, KA_WS, SZ_WS); load_srd(A, 12, KA_DBG, 256)
    for b_, ka in ((72, KA_WQ), (76, KA_WK), (80, KA_WV), (84, KA_WO), (68, KA_MEM0)): load_srd(A, b_, ka, 0)
    A("s_getreg_b32 s24, hwreg(HW_REG_XCC_ID)"); A("s_and_b32 s24, s24, 7")
    if P.get("CPF", 1):
        A("s_getpc_b64 s[26:27]")
        A.label(L("cpf"))
        A("s_lshr_b32 s28, s2, 3"); A("s_lshl_b32 s28, s28, 8"); A("v_add_u32 v13, s28, v0"); A("v_lshlrev_b32 v13, 6, v13")
        A("v_cmp_gt_u32 vcc, %s - %s, v13" % (L("end"), L("cpf"))); A("s_and_saveexec_b64 s[28:29], vcc"); A("s_cbranch_execz %s" % L("cpfd"))
        A("global_load_dword v14, v13, s[26:27]")
        A.label(L("cpfd"))
        A("s_mov_b64 exec, s[28:29]")
    A("v_lshrrev_b32 v12, 6, v0"); A("v_and_b32 v0, 63, v0"); A("v_readfirstlane_b32 s21, v12")
    A("v_lshlrev_b32 v0, 4, v0")
    A("s_waitcnt lgkmcnt(0)")
    fin_srd(A, 8, SZ_WS); fin_srd(A, 12, 256); fin_srd(A, 16, SZ_X)
    for b_, sz in ((72, SZ_W), (76, SZ_W), (80, SZ_W), (84, SZ_W), (68, SZ_MEM0)): fin_srd(A, b_, sz)
    A("s_mov_b32 s5, 0"); A("s_mov_b32 s101, 0")
    A("s_cmp_eq_u32 s21, 0"); A("s_cbranch_scc1 %s" % L("tick"))
    A("s_cmp_eq_u32 s21, 3"); A("s_cbranch_scc1 %s" % L("zero"))
    for q in range(4): A("v_mov_b32 v%d, -1" % (28 + q))
    A("s_lshl_b32 s26, s2, 1"); A("s_add_u32 s26, s26, s21"); A("s_lshl_b32 s26, s26, 12"); A("s_add_u32 s26, s26, %d" % (WS_FILL - 4096))
    for q in range(4): A("buffer_store_dwordx4 v[28:31], v0, s[8:11], s26 offen offset:%d sc1" % (1024 * q))
    A("s_branch %s" % L("notick"))
    A.label(L("zero"))
    for q in range(4): A("v_mov_b32 v%d, 0" % (28 + q))
    A("s_lshl_b32 s26, s2, 9"); A("s_add_u32 s26, s26, %d" % WS_ZERO)
    A("s_mov_b32 exec_hi, 0"); A("buffer_store_dwordx4 v[28:31], v0, s[8:11], s26 offen sc1"); A("s_mov_b64 exec, -1")
    A("s_cmp_ge_u32 s2, 10"); A("s_cbranch_scc1 %s" % L("notick"))
    A("v_bfe_u32 v6, v0, 4, 3"); A("v_mul_u32_u24 v6, 1280, v6"); A("v_lshrrev_b32 v7, 8, v0"); A("v_lshl_add_u32 v6, v7, 5, v6"); A("v_bfe_u32 v7, v0, 7, 1"); A("v_lshl_add_u32 v6, v7, 2, v6")
    A("s_lshl_b32 s26, s2, 7")
    for n in range(4): A("buffer_load_dword v%d, v6, s[68:71], s26 offen offset:%d" % (32 + n, 8 * n))
    A("v_and_b32 v7, 0x200, v0")
    for src, dst in ((6, 8), (4, 7), (5, 6), (8, 5), (7, 4)):
        A("v_bfe_u32 v12, v0, %d, 1" % src); A("v_lshl_or_b32 v7, v12, %d, v7" % dst)
    A("s_lshl_b32 s26, s2, 10"); A("s_add_u32 s26, s26, %d" % WS_M0); A("s_waitcnt vmcnt(0)")
    for n in range(4): A("v_min_u32 v%d, -2, v%d" % (32 + n, 32 + n))
    A("buffer_store_dwordx4 v[32:35], v7, s[8:11], s26 offen sc1")
    A("s_branch %s" % L("notick"))
    A.label(L("tick"))
    A("s_and_b32 s25, s24, 5"); A("s_cmp_lg_u32 s25, 1"); A("s_cbranch_scc1 %s" % L("nocal"))
    A("s_bfe_u32 s25, s2, 0x20003"); A("s_lshl_b32 s26, s25, 13"); A("s_lshr_b32 s27, s2, 5"); A("s_lshl_b32 s27, s27, 15"); A("s_add_u32 s26, s26, s27")
    A("s_lshl_b32 s27, s24, 8"); A("s_add_u32 s26, s26, s27"); A("s_add_u32 s26, s26, %d" % WS_MR)
    for q in range(4): A("v_mov_b32 v%d, -1" % (28 + q))
    A("s_mov_b64 exec, 0xff"); A("s_mov_b32 s27, -1"); A("s_waitcnt vmcnt(0)")
    for rep in range(4):
        A("s_memtime s[28:29]"); A("buffer_store_dwordx4 v[28:31], v0, s[8:11], s26 offen sc1"); A("s_waitcnt vmcnt(0)"); A("s_memtime s[30:31]")
        A("s_waitcnt lgkmcnt(0)"); A("s_sub_u32 s28, s30, s28"); A("s_min_u32 s27, s27, s28")
    A("s_mov_b64 exec, 1"); A("s_not_b32 s27, s27"); A("v_mov_b32 v28, s27"); A("s_lshl_b32 s25, s25, 2"); A("s_add_u32 s25, s25, 128"); A("v_mov_b32 v29, s25")
    A("buffer_atomic_umax v28, v29, s[12:15], 0 offen")
    A.label(L("nocal"))
    A("s_mov_b64 exec, 1")
    A("v_mov_b32 v28, 1"); A("s_lshl_b32 s25, s24, 2"); A("v_mov_b32 v29, s25")
    A("buffer_atomic_add v28, v29, s[12:15], 0 offen sc0"); A("s_waitcnt vmcnt(0)")
    A("v_mov_b32 v29, %d" % L_FL); A("ds_write_b32 v29, v28"); A("s_waitcnt lgkmcnt(0)")
    A("s_mov_b64 exec, -1")
    A.label(L("notick"))
    A("s_waitcnt vmcnt(0)"); A("s_barrier")
    A("s_cmp_lg_u32 s21, 0"); A("s_cbranch_scc1 %s" % L("noarr"))
    A("s_mov_b64 exec, 1"); A("v_mov_b32 v30, 1"); A("v_mov_b32 v29, 32"); A("buffer_atomic_add v30, v29, s[12:15], 0 offen"); A("s_mov_b64 exec, -1")
    A.label(L("noarr"))
    A("v_mov_b32 v29, %d" % L_FL); A("ds_read_b32 v28, v29"); A("s_waitcnt lgkmcnt(0)"); A("v_readfirstlane_b32 s25, v28")
    A("s_lshl_b32 s20, s24, 2"); A("s_lshr_b32 s20, 0x%x, s20" % GMAP); A("s_and_b32 s20, s20, 7"); A("s_and_b32 s22, s25, 31")
    A("s_mov_b32 s23, 0"); A("s_mov_b32 s32, 0")
    ht(0)
    A("s_cmp_ge_u32 s20, 4"); A("s_cbranch_scc1 %s" % L("lw_done"))
    A.label(L("loadw"))
    A("s_barrier")
    A("s_cmp_lt_u32 s20, 2"); A("s_cbranch_scc1 %s" % L("lw_chain"))
    A("s_cmp_lt_u32 s20, 4"); A("s_cbranch_scc1 %s" % L("lw_bulk"))
    A("s_lshl_b32 s34, s22, 2"); A("s_add_u32 s34, s34, s20"); A("s_sub_u32 s34, s34, 4"); A("s_mov_b32 s92, s33"); A("s_mov_b32 s33, s21")
    lane_setup(A); ln_body(A, "s34", 16, 0, WS_XNF, False, "", lambda st: [A(t_ + " sc1") for t_ in st])
    A("s_mov_b32 s33, s92"); A("s_waitcnt vmcnt(0)"); A("s_barrier")
    A("s_cmp_lg_u32 s21, 0"); A("s_cbranch_scc1 %s" % L("lw_bulk"))
    A("s_lshr_b32 s27, s34, 1"); A("s_lshl_b32 s27, s27, 7"); A("s_and_b32 s28, s34, 1"); A("s_mul_i32 s28, s28, 20"); A("s_add_u32 s27, s27, s28"); A("s_add_u32 s27, s27, %d" % WS_XFL)
    A("v_lshrrev_b32 v12, 2, v0"); A("v_mov_b32 v13, 1"); A("s_mov_b64 exec, 31"); A("buffer_store_dword v13, v12, s[8:11], s27 offen sc1"); A("s_mov_b64 exec, -1")
    A.label(L("lw_bulk"))
    bulk_load(A, L, breg)
    A("s_branch %s" % L("lw_done"))
    A.label(L("lw_chain"))
    chain_load(A, k_chain)
    A.label(L("lw_done"))
    A("s_cmp_lg_u32 s32, 0"); A("s_cbranch_scc1 %s" % L("role_ok"))
    A("s_mov_b32 s32, 1"); A("s_mov_b32 s30, 0")
    A("v_bfe_u32 v12, v0, 4, 4"); A("v_lshlrev_b32 v12, 2, v12")
    A.label(L("modepoll"))
    A("buffer_load_dword v13, v12, s[12:15], 0 offen sc1"); A("s_waitcnt vmcnt(0)")
    A("v_readlane_b32 s31, v13, 8")
    A("s_cmp_eq_u32 s31, 256"); A("s_cbranch_scc1 %s" % L("modegot"))
    A("s_sleep 2")
    A("s_add_u32 s30, s30, 1"); A("s_cmp_lt_u32 s30, %d" % SPIN_MAX); A("s_cbranch_scc1 %s" % L("modepoll"))
    A("s_branch %s" % L("fail"))
    A.label(L("modegot"))
    A("buffer_load_dword v13, v12, s[12:15], 0 offen sc1"); A("buffer_load_dword v14, v12, s[12:15], 0 offen offset:128 sc1"); A("s_waitcnt vmcnt(0)")
    A("v_readlane_b32 s26, v14, 0"); A("s_mov_b32 s33, 0")
    for q in range(1, 4):
        A("v_readlane_b32 s27, v14, %d" % q); A("s_nop 0"); A("s_cmp_gt_u32 s27, s26"); A("s_cselect_b32 s33, %d, s33" % (q << 13)); A("s_max_u32 s26, s26, s27")
    A("s_xor_b32 s33, s33, %d" % (0x4000 ^ (P.get("PG", 0) << 13)))
    A("v_cmp_ne_u32 vcc, 32, v13"); A("s_and_b32 s31, vcc_lo, 0xff")
    if P.get("FORCE_SLOW"): A("s_mov_b32 s31, 1")
    A("s_cmp_lg_u32 s31, 0"); A("s_cbranch_scc1 %s" % L("slowm"))
    A("s_cmp_ge_u32 s20, 4"); A("s_cbranch_scc1 %s" % L("loadw")); A("s_branch %s" % L("role_ok"))
    A.label(L("slowm"))
    A("s_mov_b32 s23, 1"); A("s_mov_b32 s31, s25")
    for x in range(7):
        A("v_readlane_b32 s30, v13, %d" % x); A("s_cmp_gt_u32 s24, %d" % x); A("s_cselect_b32 s30, s30, 0"); A("s_add_u32 s31, s31, s30")
    if P.get("FORCE_SLOW"):
        A("s_and_b32 s20, s31, 7"); A("s_lshr_b32 s22, s31, 3")
    else:
        A("s_lshr_b32 s20, s31, 5"); A("s_and_b32 s22, s31, 31")
    A("s_and_b32 s20, s20, 7"); A("s_and_b32 s22, s22, 31")
    A("s_branch %s" % L("loadw"))
    A.label(L("role_ok"))
    A("s_mov_b32 s25, s33")
    A("s_cmp_ge_u32 s20, 2"); A("s_cbranch_scc1 %s" % L("bulk"))
    chain_body(A, P, L, ht)

    def mf32(S, acc, a_, b_, c): S("v_mfma_f32_16x16x32_bf16 %s, %s, %s, %s" % (r4(acc), ureg(a_, 4), ureg(b_, 4), c if isinstance(c, str) else r4(c)))
    def mf16(S, acc, a_, b_, c): S("v_mfma_f32_16x16x16_bf16 %s, %s, %s, %s" % (r4(acc), r2(a_), r2(b_), c if isinstance(c, str) else r4(c)))
    def rd(S, dst, areg, off): return S("ds_read_b128 %s, v%d offset:%d" % (r4(dst), areg, off))

    def x_dma(S, seg_s, slot_s):
        S("s_min_u32 s27, %s, 63" % seg_s); S("s_mul_i32 s27, s27, 40960"); S("s_add_u32 s27, s27, s47"); S("s_add_u32 s28, %s, s42" % slot_s)
        for f in range(10):
            if f % 4 == 0:
                if f: S("s_add_u32 s27, s27, 4096"); S("s_add_u32 s28, s28, 4096")
                S("s_mov_b32 m0, s28")
            S("buffer_load_dwordx4 v0, s[8:11], s27 offen offset:%d sc1 lds" % ((f % 4) * 1024))

    def proj(S, areg, acc, XB, tr=False):
        NB = len(XB)
        seq = [(mt, ks) for mt in range(2) for ks in range(20)]
        for i in range(NB - 1): rd(S, XB[i], areg, i * 1024)
        for i, (mt, ks) in enumerate(seq):
            if i + NB - 1 < 40: rd(S, XB[(i + NB - 1) % NB], areg, (i + NB - 1) * 1024)
            for tl in range(2):
                a = acc + 8 * mt + 4 * tl
                if tr: mf32(S, a, XB[i % NB], breg(tl * 20 + ks), "0" if ks == 0 else a)
                else: mf32(S, a, breg(tl * 20 + ks), XB[i % NB], "0" if ks == 0 else a)

    def xpoll(S, mask, tag):
        ld = A.newlabel(L(tag)); lp = A.newlabel(L(tag)); le = A.newlabel(L(tag))
        A("s_cmp_lg_u32 s21, 0"); A("s_cbranch_scc1 %s" % ld)
        A("v_lshlrev_b32 v190, 3, v0"); A("s_mov_b64 exec, %s" % mask); A("s_mov_b32 s30, 0"); A("s_lshl_b32 s27, s101, 13"); A("s_add_u32 s27, s27, %d" % WS_XFL)
        A.label(lp)
        A("buffer_load_dwordx4 v[176:179], v190, s[8:11], s27 offen sc1"); A("buffer_load_dwordx4 v[180:183], v190, s[8:11], s27 offen offset:16 sc1"); A("buffer_load_dwordx2 v[184:185], v190, s[8:11], s27 offen offset:32 sc1")
        A("s_add_u32 s30, s30, 1"); A("s_cmp_ge_u32 s30, %d" % SPIN_MAX); A("s_cbranch_scc1 %s" % L("fail"))
        A("s_waitcnt vmcnt(0)")
        for i in range(177, 185, 2): A("v_min3_u32 v176, v176, v%d, v%d" % (i, i + 1))
        A("v_min_u32 v176, v176, v185"); A("v_cmp_eq_u32 vcc, 0, v176"); A("s_cbranch_vccnz %s" % lp)
        A("s_mov_b64 exec, -1")
        A.label(ld)
        A("s_barrier")
        A.label(le)

    def poll(S, addr_s, lanes, cmp_ins, tag, sleep=1, sh="v_lshrrev_b32 v190, 2, v0"):
        ld = A.newlabel(L(tag)); lp = A.newlabel(L(tag))
        S("s_cmp_lg_u32 s21, 0"); S("s_cbranch_scc1 %s" % ld)
        A("s_mov_b64 exec, 0x%x" % lanes); A("s_mov_b32 s30, 0"); A(sh)
        A.label(lp)
        A("buffer_load_dword v191, v190, s[8:11], %s offen sc1" % addr_s)
        A("s_add_u32 s30, s30, 1"); A("s_cmp_ge_u32 s30, %d" % SPIN_MAX); A("s_cbranch_scc1 %s" % L("fail"))
        A("s_waitcnt vmcnt(0)"); A(cmp_ins); A("s_cbranch_vccz %s" % (lp + "d"))
        if sleep: A("s_sleep %d" % sleep)
        A("s_branch %s" % lp)
        A.label(lp + "d")
        A("s_mov_b64 exec, -1")
        A.label(ld)
        S("s_barrier")

    A.label(L("bulk"))
    A("s_waitcnt vmcnt(0)"); A("s_barrier")
    ht(1)
    A("s_mul_i32 s42, s21, 10240"); A("s_mul_i32 s47, s101, %d" % XNF_LAYER); A("s_add_u32 s47, s47, s42"); A("s_add_u32 s47, s47, %d" % WS_XNF)
    A("s_mul_i32 s50, s101, %d" % KV_LAYER); A("s_lshl_b32 s27, s22, 13"); A("s_add_u32 s50, s50, s27"); A("s_add_u32 s50, s50, %d" % WS_KXF)
    A("s_lshl_b32 s43, s101, 6")
    A("s_cmp_ge_u32 s20, 4"); A("s_cbranch_scc1 %s" % L("qao"))
    S = Seq(A)
    S("s_sub_u32 s27, s20, 2"); S("s_mul_i32 s28, s27, %d" % KV_MAT); S("s_add_u32 s50, s50, s28"); S("s_add_u32 s28, s27, 10"); S("s_lshl_b32 s28, s21, s28"); S("s_add_u32 s50, s50, s28")
    S("s_lshl_b32 s51, s27, 7"); S("s_lshl_b32 s28, s22, 8"); S("s_add_u32 s51, s51, s28"); S("s_add_u32 s51, s51, %d" % WS_KVFL)
    S("s_mov_b32 s44, 0"); S("s_mov_b32 s45, 0")
    xpoll(S, "3", "kx")
    x_dma(S, "s44", "s45"); S.wait_vm_all(); S("s_barrier")
    A.label(L("kv_top"))
    S = Seq(A)
    S("v_add_u32 v1, s45, v0"); S("s_sub_u32 s45, 40960, s45"); S("s_add_u32 s44, s44, 1")
    x_dma(S, "s44", "s45")
    S("s_cmp_eq_u32 s20, 3"); S("s_cbranch_scc1 %s" % L("kv_v"))
    nv0 = S.nv
    proj(S, 1, 8, [32 + 4 * i for i in range(6)])
    S("s_add_u32 s27, s50, 4096")
    for mt in range(2):
        for i in range(4): S("v_cvt_pk_bf16_f32 v%d, v%d, v%d" % (24 + 4 * mt + i, 8 + 8 * mt + i, 12 + 8 * mt + i))
        S("buffer_store_dwordx4 %s, v0, s[8:11], %s offen sc1" % (r4(24 + 4 * mt), "s27" if mt else "s50"))
    S("s_branch %s" % L("kv_c"))
    A.label(L("kv_v"))
    S = Seq(A)
    proj(S, 1, 8, [32 + 4 * i for i in range(6)], True)
    for tl in range(2):
        for q in range(4): S("v_cvt_pk_bf16_f32 v%d, v%d, v%d" % (24 + 4 * tl + q, 8 + 8 * (q // 2) + 4 * tl + 2 * (q % 2), 9 + 8 * (q // 2) + 4 * tl + 2 * (q % 2)))
        S("buffer_store_dwordx4 %s, v0, s[8:11], s50 offen offset:%d sc1" % (r4(24 + 4 * tl), 1024 * tl))
    A.label(L("kv_c"))
    S("s_add_u32 s50, s50, 262144"); S("s_add_u32 s27, s44, s43"); S("v_mov_b32 v2, s27")
    S.wait_vm_all(); S("s_barrier")
    S("s_cmp_lg_u32 s21, 0"); S("s_cbranch_scc1 %s" % L("kv_nf"))
    S("s_mov_b64 exec, 1"); S("buffer_store_dword v2, v0, s[8:11], s51 offen sc1"); S("s_mov_b64 exec, -1")
    A.label(L("kv_nf"))
    S("s_cmp_lg_u32 s44, 1"); S("s_cbranch_scc1 %s" % L("kv_np"))
    xpoll(S, "-1", "kx")
    A.label(L("kv_np"))
    S("s_cmp_lt_u32 s44, 64"); S("s_cbranch_scc1 %s" % L("kv_top"))
    A("s_cmp_lg_u32 s101, 0"); A("s_cbranch_scc1 %s" % L("bphase"))
    load_srd(A, 72, KA_WR, 0); load_srd(A, 76, KA_WI, 0)
    lane_setup(A); A("s_sub_u32 s27, s20, 2"); A("s_lshl_b32 s27, s27, 5"); A("s_add_u32 s27, s27, s22"); A("s_lshl_b32 s27, s27, 2"); A("s_add_u32 s35, s27, s21"); A("s_mov_b32 s36, s35")
    A("s_waitcnt lgkmcnt(0)"); fin_srd(A, 72, SZ_WF); fin_srd(A, 76, SZ_WF)
    A.label(L("kv_t2"))
    t2_frag(A); A("s_add_u32 s36, s36, 256"); A("s_cmp_lt_u32 s36, 800"); A("s_cbranch_scc1 %s" % L("kv_t2"))
    A("s_mov_b32 s36, 0"); A("s_mov_b32 s37, s35")
    A.label(L("kv_wt"))
    wt_task(A, L("kv_ws")); A("s_add_u32 s36, s36, 1"); A("s_cmp_lt_u32 s36, 6"); A("s_cbranch_scc1 %s" % L("kv_wt"))
    A("s_branch %s" % L("bphase"))

    LQ_EQ, LQ_EO, LQ_ST, LQ_FT = 81920, 90112, 98304, 122880
    A.label(L("qao"))
    A("s_cmp_lg_u32 s101, 0"); A("s_cbranch_scc1 %s" % L("q_ft"))
    lane_setup(A); A("s_min_u32 s36, s22, 19"); A("s_mul_i32 s36, s36, 40"); A("s_mul_i32 s27, s21, 10"); A("s_add_u32 s36, s36, s27"); A("s_add_u32 s35, s36, 10")
    A("s_add_u32 s27, s42, %d" % LQ_FT); A("v_add_u32 v2, s27, v0")
    A.label(L("q_ftl"))
    t1_frag(A); A("ds_write_b128 v2, v[24:27]"); A("v_add_u32 v2, 1024, v2")
    A("s_add_u32 s36, s36, 1"); A("s_cmp_lt_u32 s36, s35"); A("s_cbranch_scc1 %s" % L("q_ftl"))
    A("s_waitcnt lgkmcnt(0)")
    A.label(L("q_ft"))
    S = Seq(A)
    G, R_, VH, PSX, RLA, RLB, XOA, XOB, THR, XHA, XDA, FTA = 1, 2, 3, 4, 5, 6, 7, 8, 9, 12, 13, 14
    SELR = 16
    def cvt(d, a_, b_, op="v_cvt_pk_bf16_f32"): S("%s v%d, v%d, v%d" % (op, d, a_, b_))
    S("v_lshrrev_b32 v%d, 8, v0" % G); S("v_bfe_u32 v%d, v0, 4, 4" % R_)
    S("v_add_u32 v%d, %d, v0" % (VH, LQ_EQ)); S("v_add_u32 v%d, %d, v0" % (FTA, LQ_FT))
    S("s_mul_i32 s28, s21, 320")
    S("v_mul_u32_u24 v10, 40960, v%d" % R_); S("v_lshl_add_u32 v10, v%d, 4, v10" % G); S("s_mul_i32 s27, s22, 1280"); S("s_add_u32 s29, s27, s28"); S("v_add_u32 v%d, s29, v10" % PSX)
    S("v_mul_u32_u24 v10, 1280, v%d" % G); S("s_mul_i32 s27, s22, 40960"); S("s_add_u32 s27, s27, s28"); S("v_add_u32 v10, s27, v10"); S("v_lshl_add_u32 v%d, v%d, 4, v10" % (RLA, R_))
    S("v_lshrrev_b32 v11, 2, v%d" % R_); S("v_mul_u32_u24 v15, 5120, v11"); S("v_add_u32 v10, v10, v15"); S("v_and_b32 v15, 0x30, v0"); S("v_add_u32 v%d, v10, v15" % RLB)
    S("v_and_b32 v10, 1, v%d" % G); S("v_lshlrev_b32 v10, 3, v10"); S("v_add_u32 v%d, s29, v10" % XOB); S("v_lshl_add_u32 v%d, v%d, 4, v%d" % (XOA, R_, XOB)); S("v_add_u32 v%d, v%d, v15" % (XOB, XOB))
    S("v_lshl_add_u32 v10, v11, 10, v10"); S("v_lshl_add_u32 v10, v15, 4, v10"); S("s_mul_i32 s27, s21, 5120"); S("s_and_b32 s28, s22, 15"); S("s_lshl_b32 s28, s28, 4"); S("s_add_u32 s27, s27, s28")
    S("s_lshr_b32 s28, s22, 4"); S("s_mul_i32 s28, s28, 20480"); S("s_add_u32 s27, s27, s28"); S("v_add_u32 v%d, s27, v10" % XHA)
    S("v_lshlrev_b32 v10, 13, v%d" % R_); S("v_lshl_add_u32 v10, v%d, 4, v10" % G); S("s_lshl_b32 s27, s22, 18"); S("s_lshl_b32 s28, s21, 6"); S("s_add_u32 s27, s27, s28"); S("v_add_u32 v%d, s27, v10" % XDA)
    S("s_and_b32 s58, s21, 1"); S("s_lshr_b32 s59, s21, 1")
    S("v_lshlrev_b32 v10, 2, v%d" % G); S("v_sub_u32 v10, v%d, v10" % R_); S("s_lshl_b32 s27, s58, 4"); S("v_add_u32 v%d, s27, v10" % THR)
    S("v_and_b32 v10, 16, v0"); S("s_movk_i32 s27, 0x3f80"); S("v_lshlrev_b32_e64 v10, v10, s27"); S("v_bfe_u32 v11, v0, 5, 2")
    for q in range(4):
        S("v_cmp_eq_u32 vcc, %d, v11" % q); S("v_cndmask_b32 v%d, 0, v10, vcc" % (SELR + q))
    S("s_mov_b32 s40, 0x%08x" % f2u(C1)); S("s_mov_b32 s41, s40")
    S("s_sub_u32 s44, s20, 4"); S("s_mov_b32 s45, 0")
    S("s_mul_i32 s48, s44, %d" % (2 * PARTX_SLOT)); S("s_add_u32 s48, s48, %d" % WS_PARTX); S("s_mov_b32 s49, %d" % PARTX_SLOT)
    S("s_lshl_b32 s51, s44, 12"); S("s_lshl_b32 s27, s101, 11"); S("s_add_u32 s51, s51, s27"); S("s_add_u32 s51, s51, %d" % WS_ARR)
    S("s_lshl_b32 s52, s22, 7"); S("s_lshl_b32 s27, s101, 12"); S("s_add_u32 s52, s52, s27"); S("s_add_u32 s52, s52, %d" % WS_CHFL)
    S("s_lshl_b32 s53, s22, 13"); S("s_add_u32 s53, s53, %d" % WS_KM)
    S("s_mul_i32 s54, s101, %d" % (WS_X3 - WS_X1)); S("s_add_u32 s54, s54, %d" % WS_X1)
    S("s_lshl_b32 s60, s22, 8"); S("s_add_u32 s60, s60, %d" % WS_KVFL)
    S("s_mul_i32 s63, s44, 65536"); S("s_add_u32 s63, s63, %d" % WS_XNH); S("s_add_u32 s64, s63, 4096")
    xpoll(S, "-1", "qx")
    x_dma(S, "s44", "0"); S("s_add_u32 s46, s44, 4"); x_dma(S, "s46", "40960"); S("s_waitcnt vmcnt(0)"); S("s_barrier")
    A("s_mov_b32 s65, 0"); A("s_mov_b32 s66, s44"); A("s_mov_b32 s62, 0x%x" % OOB); A("s_mov_b32 s67, 0x%x" % OOB); A("s_mov_b32 s68, 0x%x" % OOB)
    QF = [160 + 4 * i for i in range(4)]; OO = [144 + 4 * i for i in range(4)]; MX, ZX, TM, M2, AL = 176, 177, 178, 179, 180; RESN = 184; RES = 20
    KF = [72 + 4 * i for i in range(8)]; VF = [104 + 4 * i for i in range(4)]; SA, SB, PB, SM = 120, 124, 128, 48; FLG = 15
    def flag_load(E): E("v_lshlrev_b32 v10, 3, v0"); E("s_mov_b64 exec, 3"); E("buffer_load_dword v%d, v10, s[8:11], s60 offen sc1" % FLG); E("s_mov_b64 exec, -1")
    def flag_get(E): E("v_readlane_b32 s65, v%d, 0" % FLG); E("v_readlane_b32 s27, v%d, 1" % FLG); E("s_nop 3"); E("s_min_u32 s65, s65, s27")
    def xl(reg, op, both=True):
        for sw in ("v_permlane16_swap_b32", "v_permlane32_swap_b32")[:2 if both else 1]:
            S("v_mov_b32 v%d, v%d" % (TM, reg)); S("%s v%d, v%d" % (sw, reg, TM)); S("%s v%d, v%d, v%d" % (op, reg, reg, TM))
    A.label(L("q_front"))
    A("s_add_u32 s56, s66, s43"); A("s_mov_b32 s30, 0")
    A.label(L("q_kf"))
    A("s_cmp_gt_u32 s65, s56"); A("s_cbranch_scc1 %s" % L("q_kg"))
    flag_load(A); A("s_waitcnt vmcnt(0)"); flag_get(A); A("s_sleep 1")
    A("s_add_u32 s30, s30, 1"); A("s_cmp_lt_u32 s30, %d" % SPIN_MAX); A("s_cbranch_scc1 %s" % L("q_kf")); A("s_branch %s" % L("fail"))
    A.label(L("q_kg"))
    S = Seq(A); S("s_nop 1")
    S("s_lshl_b32 s27, s66, 18"); S("s_add_u32 s27, s27, s50"); S("s_add_u32 s28, s27, 4096")
    for i in range(8): S("buffer_load_dwordx4 %s, v0, s[8:11], %s offen offset:%d sc1" % (r4(KF[i]), "s28" if i >= 4 else "s27", 1024 * (i % 4)))
    S("s_lshl_b32 s28, s59, 12"); S("s_add_u32 s27, s27, s28"); S("s_add_u32 s27, s27, %d" % KV_MAT)
    for i in range(4): S("buffer_load_dwordx4 %s, v0, s[8:11], s27 offen offset:%d sc1" % (r4(VF[i]), 1024 * i))
    S("s_mul_i32 s27, s66, 40960")
    S("buffer_load_dwordx2 %s, v%d, s[16:19], s27 offen sc1" % (r2(RESN), XOA)); S("buffer_load_dwordx2 %s, v%d, s[16:19], s27 offen offset:256 sc1" % (r2(RESN + 2), XOB))
    flag_load(S)
    QA = 24
    S("v_add_u32 v11, s45, v0"); S("s_sub_u32 s45, 40960, s45")
    proj(S, 11, QA, [40 + 4 * i for i in range(6)])
    for r in range(QA, QA + 16, 2): S("v_pk_mul_f32 %s, %s, s[40:41]" % (r2(r), r2(r)))
    S("s_lshl_b32 s27, s21, 10"); S("v_add_u32 v10, s27, v%d" % VH)
    for mt in range(2):
        for i in range(4): cvt(40 + 4 * mt + i, QA + 8 * mt + i, QA + 4 + 8 * mt + i)
        S("ds_write_b128 v10, %s offset:%d" % (r4(40 + 4 * mt), mt * 4096))
    S("s_lshl_b32 s27, s58, 12"); S("v_add_u32 v10, s27, v%d" % VH)
    S("s_waitcnt vmcnt(15) lgkmcnt(0)"); S("s_barrier")
    for u in range(4): rd(S, QF[u], 10, 1024 * u)
    def arr_store(tag):
        S("s_cmp_lg_u32 s21, 0"); S("s_cbranch_scc1 %s" % L(tag))
        S("s_mov_b64 exec, 1"); S("v_mov_b32 v10, s22"); S("v_mov_b32 v11, 1")
        lst(["buffer_store_byte v11, v10, s[8:11], s62 offen"])
        S("s_mov_b64 exec, -1")
        A.label(L(tag))
    S("s_waitcnt vmcnt(0)")
    arr_store("q_fa")
    S("v_mov_b32 v11, 0x%08x" % f2u(-1e30))
    for i in range(8):
        S("v_cmp_gt_i32 vcc, %d, v%d" % (16 * (i // 4) + i % 4, THR)); S("v_cndmask_b32 v%d, 0, v11, vcc" % (SA + i))
    for u in range(4): mf32(S, SA, KF[u], QF[u], SA); mf32(S, SB, KF[4 + u], QF[u], SB)
    flag_get(S)
    S("v_max3_f32 v%d, v%d, v%d, v%d" % (MX, SA, SA + 1, SA + 2))
    for i in (3, 5): S("v_max3_f32 v%d, v%d, v%d, v%d" % (MX, MX, SA + i, SA + i + 1))
    S("v_max_f32 v%d, v%d, v%d" % (MX, MX, SA + 7)); xl(MX, "v_max_f32")
    for r in range(SA, SA + 8): S("v_sub_f32 v%d, v%d, v%d" % (r, r, MX))
    for r in range(SA, SA + 8): S("v_exp_f32 v%d, v%d" % (r, r))
    for q in range(4): cvt(PB + q, SA + 2 * q, SA + 2 * q + 1)
    S("v_add_f32 v%d, v%d, v%d" % (ZX, SA, SA + 1))
    for r in range(SA + 2, SA + 8): S("v_add_f32 v%d, v%d, v%d" % (ZX, ZX, r))
    for i in range(4): mf32(S, OO[i], VF[i], PB, "0")
    xl(ZX, "v_add_f32")
    S("s_cmp_lg_u32 s66, s44"); S("s_cbranch_scc1 %s" % L("q_back2"))
    A.label(L("q_top"))
    hq(0)
    S = Seq(A)
    S("s_add_u32 s56, s44, s43"); S("s_lshl_b32 s57, s44, 7"); S("s_mul_i32 s55, s44, 40960")
    S("s_lshl_b32 s26, s56, 18"); S("s_add_u32 s26, s26, s53"); S("s_lshl_b32 s28, s59, 11"); S("s_add_u32 s29, s26, s28"); S("s_add_u32 s29, s29, 4096")
    S("s_lshl_b32 s27, s58, 12"); S("s_add_u32 s27, s27, s28"); S("v_add_u32 v10, s27, v%d" % VH)
    poll(S, "s52", 3, "v_cmp_ge_u32 vcc, s57, v191", "cf", sleep=P.get("QS", 1))
    S = Seq(A)
    KMF = [24 + 4 * i for i in range(4)]; VM = [40, 44]
    hq(5)
    def dflag(stage):
        A("s_lshl_b32 s27, s20, 12"); A("s_lshl_b32 s28, s22, 7"); A("s_add_u32 s27, s27, s28"); A("s_add_u32 s27, s27, %d" % (WS_DFL - 4 * 4096))
        A("s_lshl_b32 s28, s101, 1"); A("s_add_u32 s28, s28, %d" % stage); A("v_mov_b32 v11, s28")
        A("s_mov_b64 exec, 1"); A("buffer_store_dword v11, v0, s[8:11], s27 offen sc1"); A("s_mov_b64 exec, -1")
    for u in range(4): S("buffer_load_dwordx4 %s, v0, s[8:11], s26 offen offset:%d sc1" % (r4(KMF[u]), 1024 * u))
    for i in range(2): S("buffer_load_dwordx4 %s, v0, s[8:11], s29 offen offset:%d sc1" % (r4(VM[i]), 1024 * i))
    def late_stores(E):
        E("s_add_u32 s28, s68, %d" % (16 * 8192))
        for T in range(2): E("buffer_store_dwordx4 %s, v%d, s[8:11], %s offen sc1" % (r4(104 + 4 * T), XDA, "s28" if T else "s68"))
        E("s_mov_b32 exec_hi, 0"); E("buffer_store_dwordx2 %s, v%d, s[8:11], s67 offen sc1" % (r2(RES), XOA))
        E("s_mov_b32 exec_lo, 0x000f000f"); E("buffer_store_dwordx2 %s, v%d, s[8:11], s67 offen offset:256 sc1" % (r2(RES + 2), XOA)); E("s_mov_b64 exec, -1")
    for u in range(4): mf32(S, SM, KMF[u], QF[u], "0" if u == 0 else SM)
    hq(6)
    S("v_max3_f32 v%d, v%d, v%d, v%d" % (M2, MX, SM, SM + 1)); S("v_max3_f32 v%d, v%d, v%d, v%d" % (M2, M2, SM + 2, SM + 3)); xl(M2, "v_max_f32", False)
    S("v_sub_f32 v%d, v%d, v%d" % (AL, MX, M2))
    for r in range(SM, SM + 4): S("v_sub_f32 v%d, v%d, v%d" % (r, r, M2))
    S("v_exp_f32 v%d, v%d" % (AL, AL))
    for r in range(SM, SM + 4): S("v_exp_f32 v%d, v%d" % (r, r))
    S("v_add_f32 v%d, v%d, v%d" % (M2, SM, SM + 1)); S("v_add_f32 v%d, v%d, v%d" % (MX, SM + 2, SM + 3)); S("v_add_f32 v%d, v%d, v%d" % (M2, M2, MX)); xl(M2, "v_add_f32", False)
    S("v_fmac_f32 v%d, v%d, v%d" % (M2, AL, ZX)); S("v_rcp_f32 v%d, v%d" % (M2, M2))
    S("v_mul_f32 v%d, v%d, v%d" % (AL, AL, M2))
    for r in range(SM, SM + 4): S("v_mul_f32 v%d, v%d, v%d" % (r, r, M2))
    cvt(SM, SM, SM + 1); cvt(SM + 1, SM + 2, SM + 3)
    for r in range(OO[0], OO[0] + 16, 2): S("v_pk_mul_f32 %s, %s, %s op_sel_hi:[1,0]" % (r2(r), r2(r), r2(AL)))
    for i in range(4): mf16(S, OO[i], VM[i // 2] + 2 * (i % 2), SM, OO[i])
    for j in range(2):
        for i in range(4): cvt(56 + 4 * j + i, OO[2 * j] + i, OO[2 * j + 1] + i)
        S("ds_write_b128 v10, %s offset:%d" % (r4(56 + 4 * j), LQ_EO - LQ_EQ + j * 1024))
    S.wait_lds_all(); S("s_barrier")
    OF = [24 + 4 * i for i in range(8)]
    hq(7)
    for u in range(4):
        for qt in range(2): rd(S, OF[4 * qt + u], VH, LQ_EO - LQ_EQ + 4096 * qt + 1024 * u)
    late_stores(S)
    S("v_mov_b64 %s, %s" % (r2(RES), r2(RESN))); S("v_mov_b64 %s, %s" % (r2(RES + 2), r2(RESN + 2)))
    A("s_add_u32 s46, s44, 8"); A("s_cmp_ge_u32 s46, 64"); A("s_cbranch_scc1 %s" % L("q_nx"))
    A("s_sub_u32 s29, 40960, s45"); x_dma(Seq(A), "s46", "s29")
    A.label(L("q_nx"))
    S("s_mov_b32 s62, s51")
    S("s_add_u32 s27, s48, %d" % (16 * 40960))
    XA = lambda pr, qt, tb: 64 + 16 * pr + 8 * qt + 4 * tb
    pend = []
    st = lambda pr: ["buffer_store_dwordx4 %s, v%d, s[8:11], %s offen offset:%d" % (r4(XA(pr, qt, 0)), PSX, "s27" if qt else "s48", 64 * pr) for qt in range(2)]
    for pr in range(5):
        for u in range(4):
            for qt in range(2):
                for tb in range(2):
                    mf32(S, XA(pr, qt, tb), breg(40 + (2 * pr + tb) * 4 + u), OF[4 * qt + u], "0" if u == 0 else XA(pr, qt, tb))
                    if u >= 1 and pend: cvt(*pend.pop(0)); cvt(*pend.pop(0))
            if u == 1 and pr: lst(st(pr - 1), S)
        pend = [(XA(pr, qt, 0) + q, XA(pr, qt, 0) + 2 * q, XA(pr, qt, 0) + 2 * q + 1) for qt in range(2) for q in range(4)]
    while pend: cvt(*pend.pop(0))
    lst(st(4), S)
    hq(8)
    S("s_add_u32 s66, s44, 4"); S("s_cmp_lt_u32 s66, 64"); S("s_cbranch_scc1 %s" % L("q_front"))
    S = Seq(A)
    def arrive(tag):
        S("s_waitcnt vmcnt(0)"); S("s_barrier"); arr_store(tag)
    arrive("q_na")
    A.label(L("q_back2"))
    A("s_lshr_b32 s27, s44, 2"); A("s_lshl_b32 s28, s21, 8"); A("s_or_b32 s27, s27, s28"); A("s_cmp_lg_u32 s27, %d" % (14 + 256 * 3)); A("s_cbranch_scc1 %s" % L("q_nf1"))
    dflag(1)
    A.label(L("q_nf1"))
    hq(9)
    poll(S, "s62", 0xff, "v_cmp_ne_u32 vcc, 0x01010101, v191", "ar", sleep=0)
    S = Seq(A)
    B0, D0 = 24, 64
    hq(10)
    for j in range(8):
        if j: S("s_add_u32 s27, s48, %d" % (j * 5120))
        S("buffer_load_dwordx4 %s, v%d, s[8:11], %s offen sc1" % (r4(B0 + 4 * j), RLA, "s27" if j else "s48"))
        if j % 4 == 0: S("buffer_load_dwordx4 %s, v%d, s[8:11], %s offen offset:256 sc1" % (r4(B0 + 32 + j), RLB, "s27" if j else "s48"))
    XV = 72
    for q in range(4): S("v_lshlrev_b32 v%d, 16, v%d" % (XV + 2 * q, RES + q)); S("v_and_b32 v%d, 0xffff0000, v%d" % (XV + 2 * q + 1, RES + q))
    S("s_add_u32 s67, s55, s54")
    for j in range(8):
        mf32(S, D0, SELR, B0 + 4 * j, "0" if j == 0 else D0)
        if j % 4 == 0: mf32(S, D0 + 4, SELR, B0 + 32 + j, "0" if j == 0 else D0 + 4)
    hq(11)
    for sh in (8, 4):
        for q in range(4): S("v_add_f32_dpp v%d, v%d, v%d row_ror:%d row_mask:0xf bank_mask:0xf" % (D0 + 4 + q, D0 + 4 + q, D0 + 4 + q, sh))
    for q in range(4): S("v_pk_add_f32 %s, %s, %s" % (r2(XV + 2 * q), r2(XV + 2 * q), r2(D0 + 2 * q)))
    for q in range(4): cvt(RES + q, XV + 2 * q, XV + 2 * q + 1)
    for q in range(4): S("v_lshlrev_b32 v%d, 16, v%d" % (XV + 2 * q, RES + q)); S("v_and_b32 v%d, 0xffff0000, v%d" % (XV + 2 * q + 1, RES + q))
    ME, DV = 80, 84
    def wsum(dst, src):
        S("v_pk_add_f32 %s, %s, %s" % (r2(92), r2(src), r2(src + 2))); S("v_pk_add_f32 %s, %s, %s" % (r2(94), r2(src + 4), r2(src + 6)))
        S("v_add_f32 v92, v92, v93"); S("v_add_f32 v94, v94, v95"); S("v_fma_f32 v%d, v94, 0.5, v92" % dst) if False else None
        S("v_mul_f32 v94, 0x3e800000, v94"); S("v_add_f32 v%d, v92, v94" % dst)
        for sh in (8, 4, 2, 1): S("v_add_f32_dpp v%d, v%d, v%d row_ror:%d row_mask:0xf bank_mask:0xf" % (dst, dst, dst, sh))
        xl(dst, "v_add_f32", False)
    wsum(ME, XV); S("v_mul_f32 v%d, 0x%08x, v%d" % (ME, f2u(1 / 160), ME))
    for q in range(4): S("v_pk_add_f32 %s, %s, %s op_sel_hi:[1,0] neg_lo:[0,1] neg_hi:[0,1]" % (r2(DV + 2 * q), r2(XV + 2 * q), r2(ME)))
    for q in range(4): S("v_pk_mul_f32 %s, %s, %s" % (r2(DV + 2 * q), r2(DV + 2 * q), r2(DV + 2 * q)))
    wsum(ME + 1, DV)
    S("s_lshl_b32 s27, s21, 3"); S("s_add_u32 s27, s27, %d" % LQ_ST); S("v_mov_b32 v10, s27"); S("v_mov_b32 v11, %d" % LQ_ST)
    S("ds_write_b64 v10, %s" % r2(ME)); S.wait_lds_all(); S("s_barrier")
    rd(S, DV, 11, 0); rd(S, DV + 4, 11, 16)
    S("v_pk_add_f32 %s, %s, %s" % (r2(ME), r2(DV), r2(DV + 2))); S("v_pk_add_f32 %s, %s, %s" % (r2(92), r2(DV + 4), r2(DV + 6))); S("v_pk_add_f32 %s, %s, %s" % (r2(ME), r2(ME), r2(92)))
    S("v_mul_f32 v%d, 0x3e800000, v%d" % (ME, ME))
    for e in range(4): S("v_sub_f32 v%d, v%d, v%d" % (DV + 2 * e, DV + 2 * e, ME))
    for e in range(4): S("v_mul_f32 v%d, 0x43200000, v%d" % (DV + 2 * e + 1, DV + 2 * e))
    for e in range(4): S("v_fmac_f32 v%d, v%d, v%d" % (ME + 1, DV + 2 * e, DV + 2 * e + 1))
    S("v_mov_b32 v%d, 0x3727c5ac" % (ME + 2)); S("v_fmac_f32 v%d, 0x3acccccd, v%d" % (ME + 2, ME + 1)); S("v_rsq_f32 v%d, v%d" % (ME + 2, ME + 2))
    for q in range(4): S("v_pk_add_f32 %s, %s, %s op_sel_hi:[1,0] neg_lo:[0,1] neg_hi:[0,1]" % (r2(XV + 2 * q), r2(XV + 2 * q), r2(ME)))
    for q in range(4): S("v_pk_mul_f32 %s, %s, %s op_sel_hi:[1,0]" % (r2(XV + 2 * q), r2(XV + 2 * q), r2(ME + 2)))
    for q in range(4): cvt(XV + q, XV + 2 * q, XV + 2 * q + 1, "v_cvt_pk_f16_f32")
    lst(["s_mov_b32 exec_hi, 0", "buffer_store_dwordx2 %s, v%d, s[8:11], s63 offen" % (r2(XV), XHA), "s_mov_b32 exec_lo, 0x000f000f", "buffer_store_dwordx2 %s, v%d, s[8:11], s64 offen" % (r2(XV + 2), XHA), "s_mov_b64 exec, -1"], S)
    hq(12)
    S("s_add_u32 s62, s51, 16384"); arrive("q_nb")
    hq(13)
    A("s_cmp_ge_u32 s22, 20"); A("s_cbranch_scc1 %s" % L("q_nd"))
    poll(S, "s62", 0xff, "v_cmp_ne_u32 vcc, 0x01010101, v191", "ar", sleep=0)
    hq(14)
    A("s_cmp_ge_u32 s21, 2"); A("s_cbranch_scc1 %s" % L("q_nd"))
    S = Seq(A)
    S("s_mul_i32 s27, s21, 20480"); S("s_add_u32 s27, s27, s63")
    for f in range(20):
        S("buffer_load_dwordx4 %s, v0, s[8:11], s27 offen offset:%d sc1" % (r4(24 + 4 * f), (f % 4) * 1024))
        if f % 4 == 3: S("s_add_u32 s27, s27, 4096")
    TB = [112 + 4 * i for i in range(8)]
    sq = [(ks, T) for ks in range(20) for T in range(2)]
    def trd(i):
        if i < 40: rd(S, TB[i % 8], FTA, (sq[i][1] * 20 + sq[i][0]) * 1024)
    for i in range(7): trd(i)
    S("s_lshl_b32 s27, s44, 7"); S("s_mul_i32 s68, s101, %d" % XD_LAYER); S("s_add_u32 s68, s68, s27"); S("s_add_u32 s68, s68, %d" % WS_XD)
    for i, (ks, T) in enumerate(sq):
        S("v_mfma_f32_16x16x32_f16 %s, %s, %s, %s" % (r4(104 + 4 * T), r4(24 + 4 * ks), r4(TB[i % 8]), "0" if ks == 0 else r4(104 + 4 * T)))
        trd(i + 7)
    S("s_nop 7")
    A.label(L("q_nd"))
    hq(15)
    A("s_add_u32 s48, s48, s49"); A("s_sub_u32 s49, 0, s49"); A("s_add_u32 s51, s51, 128")
    A("s_add_u32 s44, s44, 4"); A("s_cmp_lt_u32 s44, 64"); A("s_cbranch_scc1 %s" % L("q_top"))
    A("s_cmp_ge_u32 s21, 2"); A("s_cbranch_scc1 %s" % L("q_e1"))
    late_stores(A); A("s_waitcnt vmcnt(2)"); A("s_barrier"); A("s_cmp_lg_u32 s21, 0"); A("s_cbranch_scc1 %s" % L("bphase"))
    dflag(2); A("s_branch %s" % L("bphase"))
    A.label(L("q_e1"))
    A("s_barrier"); late_stores(A)

    A.label(L("bphase"))
    ht(3)
    def gbar(ph, between=None, ng=6):
        base = WS_BAR2 + ph * 4096
        lw = A.newlabel(L("gb")); ld = A.newlabel(L("gb")); la = A.newlabel(L("gb"))
        def spin(addr_setup, lanes, want):
            lp = A.newlabel(L("gs"))
            A("s_mov_b64 exec, 0x%x" % lanes); addr_setup(); A("s_mov_b32 s30, 0")
            A.label(lp)
            A("buffer_load_dword v191, v190, s[8:11], s28 offen sc1")
            A("s_add_u32 s30, s30, 1"); A("s_cmp_ge_u32 s30, %d" % (SPIN_MAX * 4)); A("s_cbranch_scc1 %s" % L("fail"))
            A("s_waitcnt vmcnt(0)"); A("v_cmp_ne_u32 vcc, 0x%x, v191" % want); A("s_cbranch_vccnz %s" % lp)
        if ng < 6: A("s_cmp_ge_u32 s82, %d" % ng); A("s_cbranch_scc1 %s" % la)
        A("s_waitcnt vmcnt(0) lgkmcnt(0)"); A("s_barrier")
        A("s_cmp_lg_u32 s83, 0"); A("s_cbranch_scc1 %s" % la)
        A("s_mov_b32 s23, s85"); A("s_add_u32 s28, s86, %d" % base); A("s_lshl_b32 s27, s82, 7")
        A("s_mov_b64 exec, 1"); A("s_add_u32 s31, s27, s84"); A("v_mov_b32 v190, s31"); A("v_mov_b32 v191, 1")
        lst(["buffer_store_byte v191, v190, s[8:11], s28 offen"])
        A("s_cmp_lg_u32 s84, 31"); A("s_cbranch_scc1 %s" % lw)
        A("s_mov_b64 exec, -1"); A("v_mbcnt_lo_u32_b32 v189, -1, 0")
        spin(lambda: A("v_lshl_add_u32 v190, v189, 2, s27"), 0xff, 0x01010101)
        A("s_mov_b64 exec, 1"); A("v_mov_b32 v190, s27"); A("v_mov_b32 v191, 1"); A("buffer_store_dword v191, v190, s[8:11], s28 offen offset:1024 sc1")
        A.label(lw)
        A("s_mov_b64 exec, -1")
        A.label(la)
        if between: between()
        A("s_cmp_lg_u32 s83, 0"); A("s_cbranch_scc1 %s" % ld)
        A("s_add_u32 s28, s86, %d" % base); A("v_mbcnt_lo_u32_b32 v189, -1, 0")
        spin(lambda: A("v_lshlrev_b32 v190, 7, v189\nv_add_u32 v190, 1024, v190"), (1 << ng) - 1, 1)
        A("s_mov_b64 exec, -1")
        A.label(ld)
        A("s_barrier")
    A("s_sub_u32 s82, s20, 2"); A("s_mov_b32 s83, s21"); A("s_mov_b32 s84, s22"); A("s_mov_b32 s85, s23")
    A("s_lshl_b32 s87, s82, 5"); A("s_add_u32 s87, s87, s22")
    A("s_mul_i32 s86, s101, %d" % (6 * 4096))
    A("s_mul_i32 s80, s101, %d" % (WS_X3 - WS_X1)); A("s_add_u32 s80, s80, %d" % WS_X1)
    A("s_load_dwordx2 s[16:17], s[0:1], %d" % KA_OUT); A("s_waitcnt lgkmcnt(0)"); A("s_and_b32 s17, s17, 0xffff")
    A("s_cmp_eq_u32 s101, 1"); A("s_cbranch_scc1 %s" % L("osrd"))
    A("s_add_u32 s16, s8, %d" % WS_X2); A("s_addc_u32 s17, s9, 0")
    A.label(L("osrd"))
    def restore():
        A("s_add_u32 s20, s82, 2"); A("s_mov_b32 s21, s83"); A("s_mov_b32 s22, s84"); A("s_mov_b32 s23, s85")
    def tid():
        A("v_mbcnt_lo_u32_b32 v0, -1, 0"); A("v_mbcnt_hi_u32_b32 v0, -1, v0"); A("s_lshl_b32 s27, s83, 6"); A("v_add_u32 v0, s27, v0"); A("s_mov_b32 s2, s81")
    A("s_mul_i32 s27, s84, 26"); A("s_lshr_b32 s27, s27, 8"); A("s_mul_i32 s28, s27, 10"); A("s_sub_u32 s88, s84, s28")
    A("s_mul_i32 s28, s82, 3"); A("s_sub_u32 s28, s28, 6"); A("s_lshl_b32 s29, s82, 1"); A("s_add_u32 s29, s29, 12")
    A("s_cmp_lt_u32 s82, 2"); A("s_cselect_b32 s28, s29, s28"); A("s_cselect_b32 s29, 2, 3"); A("s_add_u32 s28, s28, s27")
    A("s_lshl_b32 s89, s28, 2"); A("s_add_u32 s89, s89, s83"); A("s_cmp_lt_u32 s27, s29"); A("s_cselect_b32 s89, s89, 64")
    fpre, fmain = fft2(A, L("fft"), 81920)
    A("s_cmp_eq_u32 s87, 160"); A("s_cselect_b32 s81, 191, s87"); A("s_cmp_eq_u32 s87, 191"); A("s_cselect_b32 s81, 160, s81")
    def dpoll(stage):
        ld = A.newlabel(L("dp")); lp = A.newlabel(L("dp"))
        A("s_cmp_lg_u32 s83, 0"); A("s_cbranch_scc1 %s" % ld)
        A("v_and_b32 v190, 3, v0"); A("v_lshlrev_b32 v190, 12, v190"); A("v_bfe_u32 v191, v0, 2, 1"); A("v_mul_u32_u24 v191, 1280, v191"); A("v_add_u32 v190, v190, v191")
        A("s_mov_b64 exec, 0xff"); A("s_cmp_eq_u32 s2, 160"); A("s_cselect_b32 exec_lo, 15, exec_lo")
        A("s_lshr_b32 s31, s2, 4"); A("s_lshl_b32 s31, s31, 7"); A("s_add_u32 s31, s31, %d" % WS_DFL); A("s_lshl_b32 s32, s101, 1"); A("s_add_u32 s32, s32, %d" % stage); A("s_mov_b32 s30, 0")
        A.label(lp)
        A("buffer_load_dword v191, v190, s[8:11], s31 offen sc1")
        A("s_add_u32 s30, s30, 1"); A("s_cmp_ge_u32 s30, %d" % (SPIN_MAX * 4)); A("s_cbranch_scc1 %s" % L("fail"))
        if stage == 1: A("s_sleep 4")
        A("s_waitcnt vmcnt(0)"); A("v_cmp_gt_u32 vcc, s32, v191"); A("s_cbranch_vccnz %s" % lp)
        A("s_mov_b64 exec, -1")
        A.label(ld)
        A("s_barrier")
        if stage == 2: ht2(8)
    A("s_cmp_lg_u32 s101, 0"); A("s_cbranch_scc1 %s" % L("tabok"))
    gbar(0, None, 2)
    A.label(L("tabok"))
    tid(); fpre()
    fmain(dpoll); ht2(9)
    gbar(1); ht2(10)
    A("s_cmp_ge_u32 s89, 64"); A("s_cbranch_scc1 %s" % L("noid"))
    A("v_mbcnt_lo_u32_b32 v0, -1, 0"); A("v_mbcnt_hi_u32_b32 v0, -1, v0"); A("s_mov_b32 s23, s85")
    idft(A, lambda x: L("idend") if (x == "end" and P.get("HT")) else L(x), lst, L("fail"), SPIN_MAX)
    A.label(L("noid"))
    if P.get("HT"): A.label(L("idend"))
    restore(); ht(5)
    A("s_cmp_eq_u32 s101, 1"); A("s_cbranch_scc1 %s" % L("end"))
    A("s_mov_b32 s101, 1")
    A("v_mbcnt_lo_u32_b32 v0, -1, 0"); A("v_mbcnt_hi_u32_b32 v0, -1, v0"); A("v_lshlrev_b32 v0, 4, v0")
    A("s_waitcnt lgkmcnt(0)"); A("s_barrier")
    A("s_branch %s" % L("bulk"))
    flush_ool()
    A.label(L("fail"))
    A("s_mov_b64 exec, 1"); A("v_mov_b32 v12, 1"); A("v_mov_b32 v13, 48"); A("buffer_atomic_add v12, v13, s[12:15], 0 offen")
    A.label(L("end"))
    A("s_endpgm")
    return k
```

```python
MB = 1 << 20
WS_WQKP = 0
WQKP_H = 491520
WQKP_W = 122880
WS_WOC = 16 * MB
WS_WOX = 22 * MB
WS_XNF = 28 * MB
XNF_LAYER = 3 * MB
WS_KXF = 36 * MB
KV_MAT = 16 * MB
KV_LAYER = 32 * MB
WS_KM = 208 * MB
WS_PARTX = 116 * MB
PARTX_SLOT = 32 * 32 * 1280
WS_X1 = 128 * MB
WS_X2 = 132 * MB
WS_X3 = 136 * MB
WS_FT1 = 140 * MB
WS_GT2 = 141 * MB
WS_WT = 142 * MB
WS_XNH = 100 * MB
WS_XD = 168 * MB
XD_LAYER = 6 * MB
WS_ZF = 150 * MB
WS_M0 = 160 * MB
WS_ZERO = WS_M0 + 65536
WS_BAR2 = WS_ZERO
WS_KVFL = WS_BAR2 + 12 * 4096
WS_CHFL = WS_KVFL + 8192
WS_ARR = WS_CHFL + 8192
WS_XFL = WS_ARR + 32768
WS_DFL = WS_XFL + 16384
ZERO_BYTES = 131072
assert WS_DFL + 16384 <= WS_ZERO + ZERO_BYTES
assert ZERO_BYTES % 4096 == 0
WS_FILL = 164 * MB
WS_MR = WS_FILL
WS_PART = WS_MR + 262144
PART_H = 4224
PART_T4 = 32 * PART_H
PART_SLOT = PART_T4 + 32768
PART_X = 4 * PART_SLOT
WS_ML = WS_PART + 2 * PART_X
WS_CAL = WS_ML + 49152
WS_STAT = WS_CAL + 4096
WS_FILL_END = WS_FILL + 2 * MB
assert WS_STAT + 262144 <= WS_FILL_END
FILL_BYTES = WS_FILL_END - WS_FILL
assert FILL_BYTES % 65536 == 0, FILL_BYTES
WS_DBG = 200 * MB
```

```python
import re

_R = re.compile(r'\b([vas])(\d+)\b|\b([vas])\[(\d+):(\d+)\]|\b(vcc|exec|m0|vcc_lo|vcc_hi|exec_lo|exec_hi|scc)\b')
TRANS = ("v_exp_f32", "v_log_f32", "v_rcp_f32", "v_rsq_f32", "v_sqrt_f32", "v_sin_f32", "v_cos_f32")


def regs_of(op):
    out = []
    for m in _R.finditer(op):
        if m.group(1): k, lo, hi = m.group(1), int(m.group(2)), int(m.group(2))
        elif m.group(3): k, lo, hi = m.group(3), int(m.group(4)), int(m.group(5))
        else:
            out.append(m.group(6).split("_")[0]); continue
        for i in range(lo, hi + 1): out.append(k + str(i))
    return out


class Seq:
    def __init__(self, A):
        self.A = A
        self.pos = 0
        self.cyc = 0
        self.vw = {}
        self.tw = {}
        self.mw = {}
        self.mc = {}
        self.sd = {}
        self.sw = {}
        self.m0 = -99
        self.lp = {}
        self.vp = {}
        self.nl = self.dl = self.nv = self.dv = 0
        self.nops = 0
        self.warm = None
        self.mst = 1
        self.lastm = False
        self.cnt = 0
        self.hoist = False
        self.tailv = 0
        self.hook = None

    def _raw(self, t, cost=4):
        self.A(t); self.pos += 1; self.cyc += cost
        self.tailv = self.tailv + 1 if (t.startswith("v_") and not t.startswith(("v_mfma", "v_smfmac"))) else 0
        if t.startswith("s_waitcnt"): self.lastm = False

    def wait(self, lds=None, vm=None, hoist=False):
        parts = []
        if vm is not None and vm > self.dv:
            n = min(self.nv - vm, 62)
            parts.append("vmcnt(%d)" % n); self.dv = self.nv - n
        if lds is not None and lds > self.dl:
            n = self.nl - lds
            n = min(n, 14)
            parts.append("lgkmcnt(%d)" % n); self.dl = self.nl - n
        if parts:
            t = "s_waitcnt " + " ".join(parts)
            k = self.tailv if (self.hoist and hoist) else 0
            if 0 < k <= 4:
                self.A.lines.insert(len(self.A.lines) - k, "    " + t)
                p0 = self.pos - k
                for d in (self.vw, self.tw, self.sw):
                    for x in d:
                        if d[x] >= p0: d[x] += 1
                self.pos += 1
            else: self._raw(t)

    def wait_lds_all(self): self.wait(lds=self.nl)
    def wait_vm_all(self): self.wait(vm=self.nv)

    def nop(self, n):
        while n > 0:
            k = min(n, 16); self.A("s_nop %d" % (k - 1)); self.pos += k; self.cyc += 4 * k; n -= k; self.tailv = 0

    def label(self, l): self.A.label(l); self.tailv = 0

    def settle(self):
        self._raw("s_waitcnt vmcnt(0) lgkmcnt(0)"); self.dl = self.nl; self.dv = self.nv; self.nop(8)

    def __call__(self, text):
        tok = None
        for t in text.split("\n"):
            t = t.strip()
            if t: tok = self.ins(t)
        return tok

    def ins(self, t):
        if self.hook: self.hook(self.cnt, t)
        self.cnt += 1
        opc, _, rest = t.partition(" ")
        ops = [o.strip() for o in rest.split(",")]
        R = [regs_of(o) for o in ops]
        mfma = opc.startswith("v_mfma") or opc.startswith("v_smfmac")
        valu = opc.startswith("v_") and not mfma
        ds = opc.startswith("ds_")
        vm = opc.startswith("buffer_") or opc.startswith("global_")
        islds = vm and re.search(r'\blds\b', t) is not None
        rd, wr = [], []
        if mfma:
            wr = R[0]; ab = R[1] + R[2]; c = R[3] if opc.startswith("v_mfma") else R[0]
            if opc.startswith("v_smfmac"): ab = ab + R[3]
            rd = ab + c
        elif valu:
            if "swap" in opc: wr = R[0] + R[1]; rd = R[0] + R[1]
            else:
                wr = R[0]; rd = [x for r in R[1:] for x in r]
                if opc.startswith(("v_fmac", "v_writelane")) or "dpp" in opc: rd = rd + R[0]
        elif ds:
            if opc.startswith("ds_read"): wr = R[0]; rd = R[1]
            else: rd = [x for r in R for x in r]
        elif vm:
            if "load" in opc and not islds: wr = R[0]; rd = [x for r in R[1:] for x in r]
            else: rd = [x for r in R for x in r]
        else:
            if opc.startswith(("s_cmp", "s_cbranch", "s_branch", "s_barrier", "s_nop", "s_waitcnt", "s_bitcmp", "s_setprio", "s_sleep")): rd = [x for r in R for x in r]
            else: wr = R[0] if R else []; rd = [x for r in R[1:] for x in r]
        lt = max([self.lp.get(x, 0) for x in rd + wr] + [0]); vt = max([self.vp.get(x, 0) for x in rd + wr] + [0])
        if ds and opc.startswith("ds_read"): lt = max([self.lp.get(x, 0) for x in rd] + [0])
        self.wait(lds=lt or None, vm=vt or None, hoist=mfma)
        need = 0
        def req(p, n):
            nonlocal need
            need = max(need, n - (self.pos - p - 1))
        if mfma:
            for x in rd:
                if x in self.vw: req(self.vw[x], 2)
            for x in ab:
                if x in self.mw: req(self.mw[x][0], 8)
            for x in c:
                if x in self.mw:
                    p, o, d = self.mw[x]
                    if not (o == opc and d == tuple(c)): req(p, 6)
            for x in wr:
                if x in self.mw and x not in c: req(self.mw[x][0], 6)
            if "exec" in self.sw: req(self.sw["exec"], 4)
        if valu or ds or vm:
            for x in rd + wr:
                if x in self.mw: req(self.mw[x][0], 8)
        if valu:
            for x in wr:
                if x in self.mc: req(self.mc[x], 3)
                if x in self.sd: req(self.sd[x], 2)
            if "permlane" in opc or "dpp" in opc:
                for x in (rd if "permlane" in opc else R[1]):
                    if x in self.vw: req(self.vw[x], 2)
            if "readfirstlane" in opc or "readlane" in opc:
                for x in rd:
                    if x in self.vw: req(self.vw[x], 1)
            if opc.replace("_e32", "").replace("_e64", "") not in TRANS:
                for x in rd:
                    if x in self.tw: req(self.tw[x], 1)
            for x in rd:
                if x in self.sw: req(self.sw[x], 4 if "lane" in opc and "perm" not in opc else 2)
        if ds or vm:
            for x in wr:
                if x in self.sd: req(self.sd[x], 1)
            for x in rd:
                if x in self.tw: req(self.tw[x], 1)
        if vm:
            for x in rd:
                if x in self.sw: req(self.sw[x], 5)
            if islds: req(self.m0, 1)
        if need > 0:
            self.nops += need
            if self.warm is not None and need >= 2:
                for _ in range(need): self._raw("v_mov_b32 v%d, v%d" % (self.warm, self.warm))
            else: self.nop(need)
            self.lastm = False
        cost = 4
        if opc.startswith("v_smfmac"): cost = 12
        elif mfma: cost = 8
        elif opc in TRANS or "permlane" in opc: cost = 8
        if mfma and self.lastm: self.pos += self.mst - 1
        self.lastm = mfma
        p = self.pos
        if opc == "s_nop":
            self.A(t); k = int(rest) + 1; self.pos += k; self.cyc += 4 * k; self.tailv = 0; return None
        self._raw(t, cost)
        tok = None
        if mfma:
            for x in wr: self.mw[x] = (p, opc, tuple(wr)); self.vw.pop(x, None); self.tw.pop(x, None)
            for x in c: self.mc[x] = p
        elif valu:
            for x in wr:
                if x[0] in "va" and x != "vcc":
                    self.vw[x] = p; self.mw.pop(x, None)
                    if opc in TRANS: self.tw[x] = p
                    else: self.tw.pop(x, None)
                else: self.sw[x] = p
        elif ds:
            self.nl += 1; tok = self.nl
            for x in wr: self.lp[x] = tok; self.vw.pop(x, None); self.mw.pop(x, None)
        elif vm:
            self.nv += 1; tok = self.nv
            for x in wr: self.vp[x] = tok; self.vw.pop(x, None); self.mw.pop(x, None)
            if "store" in opc and ("x4" in opc or "x3" in opc):
                for x in R[0]: self.sd[x] = p
        else:
            if opc == "s_waitcnt":
                m = re.search(r'vmcnt\((\d+)\)', t)
                if m: self.dv = max(self.dv, self.nv - int(m.group(1)))
                m = re.search(r'lgkmcnt\((\d+)\)', t)
                if m: self.dl = max(self.dl, self.nl - int(m.group(1)))
            for x in wr:
                if x == "m0": self.m0 = p
                self.sw.pop(x, None)
            assert not opc.startswith(("s_load", "s_memtime", "s_memrealtime", "s_buffer")) or True
        return tok


def r4(r): return "v[%d:%d]" % (r, r + 3)
def r2(r): return "v[%d:%d]" % (r, r + 1)


def estimate(lines, show=False):
    t = -4; vf = 0; mf = 0
    for ln in lines:
        ln = ln.strip()
        if not ln or ln.endswith(":") or ln.startswith(";"): continue
        opc = ln.split()[0]
        t += 4
        if opc.startswith(("v_mfma", "v_smfmac")):
            t = max(t, vf, mf); mf = t + 16; vf = t + (12 if opc.startswith("v_smf") else 8)
        elif opc.startswith("v_"):
            t = max(t, vf)
            if opc.startswith("v_pk"): t = max(t, mf)
            vf = t + (8 if (opc in TRANS or "permlane" in opc) else 4)
        elif opc.startswith("buffer_"): t = max(t, mf) + 26
        elif opc == "s_nop": t += 4 * int(ln.split()[1])
        if show: print(t, ln)
    return t + 4
```

```python
from asmlib import *
from layout import *
from seq import *
import k_chain
from k_chain import chain_body, f2u, C1, SPIN_MAX, OOB, L_FL
from k_load import chain_load, bulk_load
from k_tab import lane_setup, t1_frag, t2_frag, wt_task
from k_ln import ln_body
from k_b import fft2, idft, idft_table

GMAP = 0x76325140


def breg(i):
    return 256 + 4 * i if i < 64 else 192 + 4 * (i - 64)


def main_kernel(P):
    name = "interleave_layers__memory_aug_recurrent_mem_tr__spectral_gfnet__prompt_kernel"
    k = Kernel(name, 256, 256, 163840, 256, 256, sgpr=102)
    A = k.asm
    L = lambda x: "M_%s" % x

    def ht2(i):
        if P.get("HT", 0) >= 2: ht(i, True)
    def hb(i, flush=False):
        if P.get("HT", 0) != 4: return
        lab = A.newlabel(L("hb"))
        A("s_xor_b32 s6, s84, 1"); A("s_or_b32 s6, s6, s83"); A("s_cmp_lg_u32 s6, 0"); A("s_cbranch_scc1 %s" % lab)
        A("s_memrealtime s[6:7]"); A("s_waitcnt lgkmcnt(0)"); A("s_lshl_b32 s6, s6, 4"); A("s_or_b32 s6, s6, %d" % (i & 15))
        A("v_writelane_b32 v188, s6, %d" % i)
        if flush:
            A("s_add_u32 s7, s82, 2"); A("s_lshl_b32 s7, s7, 8"); A("s_add_u32 s7, s7, %d" % (WS_DBG + (4 << 20) + 128)); A("v_mbcnt_lo_u32_b32 v189, -1, 0"); A("v_lshlrev_b32 v189, 2, v189")
            A("s_mov_b64 exec, 0x%x" % ((1 << (i + 1)) - 1)); A("buffer_store_dword v188, v189, s[8:11], s7 offen"); A("s_mov_b64 exec, -1")
        A.label(lab)
    def hq(i):
        if P.get("HT", 0) != 3: return
        lab = A.newlabel(L("hq"))
        A("s_or_b32 s6, s21, s22"); A("s_cmp_lg_u32 s6, 0"); A("s_cbranch_scc1 %s" % lab); A("s_cmp_lt_u32 s44, 60"); A("s_cbranch_scc1 %s" % lab)
        A("s_memrealtime s[6:7]"); A("s_waitcnt lgkmcnt(0)")
        A("s_lshl_b32 s7, s20, 8"); A("s_add_u32 s7, s7, s5"); A("s_add_u32 s5, s5, 4"); A("s_add_u32 s7, s7, %d" % (WS_DBG + (4 << 20)))
        A("s_lshl_b32 s6, s6, 4"); A("s_or_b32 s6, s6, %d" % i)
        A("v_writelane_b32 v188, s6, %d" % i); A("v_writelane_b32 v189, s7, %d" % i)
        if i == 15: A("s_mov_b64 exec, 0xffe1"); A("buffer_store_dword v188, v189, s[8:11], 0 offen"); A("s_mov_b64 exec, -1")
        A.label(lab)
    def ht(i, saved=False):
        if P.get("HD") and not saved:
            lab = A.newlabel(L("hd"))
            A("s_or_b32 s6, s21, s22"); A("s_and_b32 s7, s20, 3"); A("s_or_b32 s6, s6, s7"); A("s_cmp_lg_u32 s6, 0"); A("s_cbranch_scc1 %s" % lab)
            if i == 0: A("s_mov_b32 s6, s96")
            else: A("s_memrealtime s[6:7]"); A("s_waitcnt lgkmcnt(0)")
            A("s_lshl_b32 s7, s20, 2"); A("s_add_u32 s7, s7, s5"); A("s_add_u32 s5, s5, 2"); A("s_add_u32 s7, s7, %d" % 36)
            A("s_cmp_ge_u32 s7, 64"); A("s_cselect_b32 s7, 50, s7")
            A("s_mov_b64 exec, 1"); A("v_mov_b32 v10, s6"); A("v_mov_b32 v11, 0"); A("buffer_store_short v10, v11, s[12:15], s7 offen"); A("s_waitcnt vmcnt(0)"); A("s_mov_b64 exec, -1")
            A.label(lab); return
        if not P.get("HT"): return
        lab = A.newlabel(L("ht"))
        if saved:
            A("s_or_b32 s6, s83, s84"); A("s_cmp_lg_u32 s6, 0"); A("s_cbranch_scc1 %s" % lab)
            A("s_memrealtime s[6:7]"); A("s_waitcnt lgkmcnt(0)")
            A("s_add_u32 s7, s82, 2"); A("s_lshl_b32 s7, s7, 8"); A("s_add_u32 s7, s7, s5"); A("s_add_u32 s5, s5, 4"); A("s_add_u32 s7, s7, %d" % (WS_DBG + (4 << 20)))
            A("s_lshl_b32 s6, s6, 4"); A("s_or_b32 s6, s6, %d" % i)
            A("s_mov_b64 exec, 1"); A("v_mov_b32 v190, s6"); A("v_mov_b32 v191, 0"); A("buffer_store_dword v190, v191, s[8:11], s7 offen"); A("s_mov_b64 exec, -1")
            A.label(lab); return
        A("s_or_b32 s6, s21, s22"); A("s_cmp_lg_u32 s6, 0"); A("s_cbranch_scc1 %s" % lab)
        A("s_memrealtime s[6:7]"); A("s_waitcnt lgkmcnt(0)")
        A("s_lshl_b32 s7, s20, 8"); A("s_add_u32 s7, s7, s5"); A("s_add_u32 s5, s5, 4"); A("s_add_u32 s7, s7, %d" % (WS_DBG + (4 << 20)))
        A("s_lshl_b32 s6, s6, 4"); A("s_or_b32 s6, s6, %d" % i)
        A("s_mov_b64 exec, 1"); A("v_mov_b32 v10, s6"); A("v_mov_b32 v11, 0"); A("buffer_store_dword v10, v11, s[8:11], s7 offen"); A("s_waitcnt vmcnt(0)"); A("s_mov_b64 exec, -1")
        A.label(lab)

    ool = []
    def flush_ool():
        for lab, grp in ool:
            A.label(lab)
            for t_ in grp: A(t_)
            A("s_branch %s_r" % lab)
        del ool[:]

    def lst(op, E=None):
        E = E or A
        l1 = A.newlabel(L("ls"))
        E("s_cmp_lg_u32 s23, 0"); E("s_cbranch_scc1 %s" % l1)
        for o in op: E(o)
        A.label(l1 + "_r")
        ool.append((l1, ["s_nop 7"] + [o + " sc1" if o.startswith("buffer_store") else o for o in op]))

    A("s_cmp_ge_u32 s2, 256"); A("s_cbranch_scc1 %s" % L("end"))
    if P.get("HD"): A("s_memrealtime s[96:97]")
    load_srd(A, 16, KA_X, SZ_X); load_srd(A, 8, KA_WS, SZ_WS); load_srd(A, 12, KA_DBG, 256)
    for b_, ka in ((72, KA_WQ), (76, KA_WK), (80, KA_WV), (84, KA_WO), (68, KA_MEM0)): load_srd(A, b_, ka, 0)
    A("s_getreg_b32 s24, hwreg(HW_REG_XCC_ID)"); A("s_and_b32 s24, s24, 7")
    if P.get("CPF", 1):
        A("s_getpc_b64 s[26:27]")
        A.label(L("cpf"))
        A("s_lshr_b32 s28, s2, 3"); A("s_lshl_b32 s28, s28, 8"); A("v_add_u32 v13, s28, v0"); A("v_lshlrev_b32 v13, 6, v13")
        A("v_cmp_gt_u32 vcc, %s - %s, v13" % (L("end"), L("cpf"))); A("s_and_saveexec_b64 s[28:29], vcc"); A("s_cbranch_execz %s" % L("cpfd"))
        A("global_load_dword v14, v13, s[26:27]")
        A.label(L("cpfd"))
        A("s_mov_b64 exec, s[28:29]")
    A("v_lshrrev_b32 v12, 6, v0"); A("v_and_b32 v0, 63, v0"); A("v_readfirstlane_b32 s21, v12")
    A("v_lshlrev_b32 v0, 4, v0")
    A("s_waitcnt lgkmcnt(0)")
    fin_srd(A, 8, SZ_WS); fin_srd(A, 12, 256); fin_srd(A, 16, SZ_X)
    for b_, sz in ((72, SZ_W), (76, SZ_W), (80, SZ_W), (84, SZ_W), (68, SZ_MEM0)): fin_srd(A, b_, sz)
    A("s_mov_b32 s5, 0"); A("s_mov_b32 s101, 0")
    A("s_cmp_eq_u32 s21, 0"); A("s_cbranch_scc1 %s" % L("tick"))
    A("s_cmp_eq_u32 s21, 3"); A("s_cbranch_scc1 %s" % L("zero"))
    for q in range(4): A("v_mov_b32 v%d, -1" % (28 + q))
    A("s_lshl_b32 s26, s2, 1"); A("s_add_u32 s26, s26, s21"); A("s_lshl_b32 s26, s26, 12"); A("s_add_u32 s26, s26, %d" % (WS_FILL - 4096))
    for q in range(4): A("buffer_store_dwordx4 v[28:31], v0, s[8:11], s26 offen offset:%d sc1" % (1024 * q))
    A("s_branch %s" % L("notick"))
    A.label(L("zero"))
    for q in range(4): A("v_mov_b32 v%d, 0" % (28 + q))
    A("s_lshl_b32 s26, s2, 9"); A("s_add_u32 s26, s26, %d" % WS_ZERO)
    A("s_mov_b32 exec_hi, 0"); A("buffer_store_dwordx4 v[28:31], v0, s[8:11], s26 offen sc1"); A("s_mov_b64 exec, -1")
    A("s_cmp_ge_u32 s2, 10"); A("s_cbranch_scc1 %s" % L("notick"))
    A("v_bfe_u32 v6, v0, 4, 3"); A("v_mul_u32_u24 v6, 1280, v6"); A("v_lshrrev_b32 v7, 8, v0"); A("v_lshl_add_u32 v6, v7, 5, v6"); A("v_bfe_u32 v7, v0, 7, 1"); A("v_lshl_add_u32 v6, v7, 2, v6")
    A("s_lshl_b32 s26, s2, 7")
    for n in range(4): A("buffer_load_dword v%d, v6, s[68:71], s26 offen offset:%d" % (32 + n, 8 * n))
    A("v_and_b32 v7, 0x200, v0")
    for src, dst in ((6, 8), (4, 7), (5, 6), (8, 5), (7, 4)):
        A("v_bfe_u32 v12, v0, %d, 1" % src); A("v_lshl_or_b32 v7, v12, %d, v7" % dst)
    A("s_lshl_b32 s26, s2, 10"); A("s_add_u32 s26, s26, %d" % WS_M0); A("s_waitcnt vmcnt(0)")
    for n in range(4): A("v_min_u32 v%d, -2, v%d" % (32 + n, 32 + n))
    A("buffer_store_dwordx4 v[32:35], v7, s[8:11], s26 offen sc1")
    A("s_branch %s" % L("notick"))
    A.label(L("tick"))
    A("s_and_b32 s25, s24, 5"); A("s_cmp_lg_u32 s25, 1"); A("s_cbranch_scc1 %s" % L("nocal"))
    A("s_bfe_u32 s25, s2, 0x20003"); A("s_lshl_b32 s26, s25, 13"); A("s_lshr_b32 s27, s2, 5"); A("s_lshl_b32 s27, s27, 15"); A("s_add_u32 s26, s26, s27")
    A("s_lshl_b32 s27, s24, 8"); A("s_add_u32 s26, s26, s27"); A("s_add_u32 s26, s26, %d" % WS_MR)
    for q in range(4): A("v_mov_b32 v%d, -1" % (28 + q))
    A("s_mov_b64 exec, 0xff"); A("s_mov_b32 s27, -1"); A("s_waitcnt vmcnt(0)")
    for rep in range(4):
        A("s_memtime s[28:29]"); A("buffer_store_dwordx4 v[28:31], v0, s[8:11], s26 offen sc1"); A("s_waitcnt vmcnt(0)"); A("s_memtime s[30:31]")
        A("s_waitcnt lgkmcnt(0)"); A("s_sub_u32 s28, s30, s28"); A("s_min_u32 s27, s27, s28")
    A("s_mov_b64 exec, 1"); A("s_not_b32 s27, s27"); A("v_mov_b32 v28, s27"); A("s_lshl_b32 s25, s25, 2"); A("s_add_u32 s25, s25, 128"); A("v_mov_b32 v29, s25")
    A("buffer_atomic_umax v28, v29, s[12:15], 0 offen")
    A.label(L("nocal"))
    A("s_mov_b64 exec, 1")
    A("v_mov_b32 v28, 1"); A("s_lshl_b32 s25, s24, 2"); A("v_mov_b32 v29, s25")
    A("buffer_atomic_add v28, v29, s[12:15], 0 offen sc0"); A("s_waitcnt vmcnt(0)")
    A("v_mov_b32 v29, %d" % L_FL); A("ds_write_b32 v29, v28"); A("s_waitcnt lgkmcnt(0)")
    A("s_mov_b64 exec, -1")
    A.label(L("notick"))
    A("s_waitcnt vmcnt(0)"); A("s_barrier")
    A("s_cmp_lg_u32 s21, 0"); A("s_cbranch_scc1 %s" % L("noarr"))
    A("s_mov_b64 exec, 1"); A("v_mov_b32 v30, 1"); A("v_mov_b32 v29, 32"); A("buffer_atomic_add v30, v29, s[12:15], 0 offen"); A("s_mov_b64 exec, -1")
    A.label(L("noarr"))
    A("v_mov_b32 v29, %d" % L_FL); A("ds_read_b32 v28, v29"); A("s_waitcnt lgkmcnt(0)"); A("v_readfirstlane_b32 s25, v28")
    A("s_lshl_b32 s20, s24, 2"); A("s_lshr_b32 s20, 0x%x, s20" % GMAP); A("s_and_b32 s20, s20, 7"); A("s_and_b32 s22, s25, 31")
    A("s_mov_b32 s23, 0"); A("s_mov_b32 s32, 0")
    ht(0)
    A("s_cmp_ge_u32 s20, 4"); A("s_cbranch_scc1 %s" % L("lw_done"))
    A.label(L("loadw"))
    A("s_barrier")
    A("s_cmp_lt_u32 s20, 2"); A("s_cbranch_scc1 %s" % L("lw_chain"))
    A("s_cmp_lt_u32 s20, 4"); A("s_cbranch_scc1 %s" % L("lw_bulk"))
    A("s_lshl_b32 s34, s22, 2"); A("s_add_u32 s34, s34, s20"); A("s_sub_u32 s34, s34, 4"); A("s_mov_b32 s92, s33"); A("s_mov_b32 s33, s21")
    lane_setup(A); ln_body(A, "s34", 16, 0, WS_XNF, False, "", lambda st: [A(t_ + " sc1") for t_ in st])
    A("s_mov_b32 s33, s92"); A("s_waitcnt vmcnt(0)"); A("s_barrier")
    A("s_cmp_lg_u32 s21, 0"); A("s_cbranch_scc1 %s" % L("lw_bulk"))
    A("s_lshr_b32 s27, s34, 1"); A("s_lshl_b32 s27, s27, 7"); A("s_and_b32 s28, s34, 1"); A("s_mul_i32 s28, s28, 20"); A("s_add_u32 s27, s27, s28"); A("s_add_u32 s27, s27, %d" % WS_XFL)
    A("v_lshrrev_b32 v12, 2, v0"); A("v_mov_b32 v13, 1"); A("s_mov_b64 exec, 31"); A("buffer_store_dword v13, v12, s[8:11], s27 offen sc1"); A("s_mov_b64 exec, -1")
    A.label(L("lw_bulk"))
    bulk_load(A, L, breg)
    A("s_branch %s" % L("lw_done"))
    A.label(L("lw_chain"))
    chain_load(A, k_chain)
    A.label(L("lw_done"))
    A("s_cmp_lg_u32 s32, 0"); A("s_cbranch_scc1 %s" % L("role_ok"))
    A("s_mov_b32 s32, 1"); A("s_mov_b32 s30, 0")
    A("v_bfe_u32 v12, v0, 4, 4"); A("v_lshlrev_b32 v12, 2, v12")
    A.label(L("modepoll"))
    A("buffer_load_dword v13, v12, s[12:15], 0 offen sc1"); A("s_waitcnt vmcnt(0)")
    A("v_readlane_b32 s31, v13, 8")
    A("s_cmp_eq_u32 s31, 256"); A("s_cbranch_scc1 %s" % L("modegot"))
    A("s_sleep 2")
    A("s_add_u32 s30, s30, 1"); A("s_cmp_lt_u32 s30, %d" % SPIN_MAX); A("s_cbranch_scc1 %s" % L("modepoll"))
    A("s_branch %s" % L("fail"))
    A.label(L("modegot"))
    A("buffer_load_dword v13, v12, s[12:15], 0 offen sc1"); A("buffer_load_dword v14, v12, s[12:15], 0 offen offset:128 sc1"); A("s_waitcnt vmcnt(0)")
    A("v_readlane_b32 s26, v14, 0"); A("s_mov_b32 s33, 0")
    for q in range(1, 4):
        A("v_readlane_b32 s27, v14, %d" % q); A("s_nop 0"); A("s_cmp_gt_u32 s27, s26"); A("s_cselect_b32 s33, %d, s33" % (q << 13)); A("s_max_u32 s26, s26, s27")
    A("s_xor_b32 s33, s33, %d" % (0x4000 ^ (P.get("PG", 0) << 13)))
    A("v_cmp_ne_u32 vcc, 32, v13"); A("s_and_b32 s31, vcc_lo, 0xff")
    if P.get("FORCE_SLOW"): A("s_mov_b32 s31, 1")
    A("s_cmp_lg_u32 s31, 0"); A("s_cbranch_scc1 %s" % L("slowm"))
    A("s_cmp_ge_u32 s20, 4"); A("s_cbranch_scc1 %s" % L("loadw")); A("s_branch %s" % L("role_ok"))
    A.label(L("slowm"))
    A("s_mov_b32 s23, 1"); A("s_mov_b32 s31, s25")
    for x in range(7):
        A("v_readlane_b32 s30, v13, %d" % x); A("s_cmp_gt_u32 s24, %d" % x); A("s_cselect_b32 s30, s30, 0"); A("s_add_u32 s31, s31, s30")
    if P.get("FORCE_SLOW"):
        A("s_and_b32 s20, s31, 7"); A("s_lshr_b32 s22, s31, 3")
    else:
        A("s_lshr_b32 s20, s31, 5"); A("s_and_b32 s22, s31, 31")
    A("s_and_b32 s20, s20, 7"); A("s_and_b32 s22, s22, 31")
    A("s_branch %s" % L("loadw"))
    A.label(L("role_ok"))
    A("s_mov_b32 s25, s33")
    A("s_cmp_ge_u32 s20, 2"); A("s_cbranch_scc1 %s" % L("bulk"))
    chain_body(A, P, L, ht)

    def mf32(S, acc, a_, b_, c): S("v_mfma_f32_16x16x32_bf16 %s, %s, %s, %s" % (r4(acc), ureg(a_, 4), ureg(b_, 4), c if isinstance(c, str) else r4(c)))
    def mf16(S, acc, a_, b_, c): S("v_mfma_f32_16x16x16_bf16 %s, %s, %s, %s" % (r4(acc), r2(a_), r2(b_), c if isinstance(c, str) else r4(c)))
    def rd(S, dst, areg, off): return S("ds_read_b128 %s, v%d offset:%d" % (r4(dst), areg, off))

    def x_dma(S, seg_s, slot_s):
        S("s_min_u32 s27, %s, 63" % seg_s); S("s_mul_i32 s27, s27, 40960"); S("s_add_u32 s27, s27, s47"); S("s_add_u32 s28, %s, s42" % slot_s)
        for f in range(10):
            if f % 4 == 0:
                if f: S("s_add_u32 s27, s27, 4096"); S("s_add_u32 s28, s28, 4096")
                S("s_mov_b32 m0, s28")
            S("buffer_load_dwordx4 v0, s[8:11], s27 offen offset:%d sc1 lds" % ((f % 4) * 1024))

    def proj(S, areg, acc, XB, tr=False):
        NB = len(XB)
        seq = [(mt, ks) for mt in range(2) for ks in range(20)]
        for i in range(NB - 1): rd(S, XB[i], areg, i * 1024)
        for i, (mt, ks) in enumerate(seq):
            if i + NB - 1 < 40: rd(S, XB[(i + NB - 1) % NB], areg, (i + NB - 1) * 1024)
            for tl in range(2):
                a = acc + 8 * mt + 4 * tl
                if tr: mf32(S, a, XB[i % NB], breg(tl * 20 + ks), "0" if ks == 0 else a)
                else: mf32(S, a, breg(tl * 20 + ks), XB[i % NB], "0" if ks == 0 else a)

    def xpoll(S, mask, tag):
        ld = A.newlabel(L(tag)); lp = A.newlabel(L(tag)); le = A.newlabel(L(tag))
        A("s_cmp_lg_u32 s21, 0"); A("s_cbranch_scc1 %s" % ld)
        A("v_lshlrev_b32 v190, 3, v0"); A("s_mov_b64 exec, %s" % mask); A("s_mov_b32 s30, 0"); A("s_lshl_b32 s27, %s, 13" % ("0" if P.get("NOQAO") else "s101")); A("s_add_u32 s27, s27, %d" % WS_XFL)
        A.label(lp)
        A("buffer_load_dwordx4 v[176:179], v190, s[8:11], s27 offen sc1"); A("buffer_load_dwordx4 v[180:183], v190, s[8:11], s27 offen offset:16 sc1"); A("buffer_load_dwordx2 v[184:185], v190, s[8:11], s27 offen offset:32 sc1")
        A("s_add_u32 s30, s30, 1"); A("s_cmp_ge_u32 s30, %d" % SPIN_MAX); A("s_cbranch_scc1 %s" % L("fail"))
        A("s_waitcnt vmcnt(0)")
        for i in range(177, 185, 2): A("v_min3_u32 v176, v176, v%d, v%d" % (i, i + 1))
        A("v_min_u32 v176, v176, v185"); A("v_cmp_eq_u32 vcc, 0, v176"); A("s_cbranch_vccnz %s" % lp)
        A("s_mov_b64 exec, -1")
        A.label(ld)
        A("s_barrier")
        A.label(le)

    def poll(S, addr_s, lanes, cmp_ins, tag, sleep=1, sh="v_lshrrev_b32 v190, 2, v0"):
        ld = A.newlabel(L(tag)); lp = A.newlabel(L(tag))
        S("s_cmp_lg_u32 s21, 0"); S("s_cbranch_scc1 %s" % ld)
        A("s_mov_b64 exec, 0x%x" % lanes); A("s_mov_b32 s30, 0"); A(sh)
        A.label(lp)
        A("buffer_load_dword v191, v190, s[8:11], %s offen sc1" % addr_s)
        A("s_add_u32 s30, s30, 1"); A("s_cmp_ge_u32 s30, %d" % SPIN_MAX); A("s_cbranch_scc1 %s" % L("fail"))
        A("s_waitcnt vmcnt(0)"); A(cmp_ins); A("s_cbranch_vccz %s" % (lp + "d"))
        if sleep: A("s_sleep %d" % sleep)
        A("s_branch %s" % lp)
        A.label(lp + "d")
        A("s_mov_b64 exec, -1")
        A.label(ld)
        S("s_barrier")

    A.label(L("bulk"))
    A("s_waitcnt vmcnt(0)"); A("s_barrier")
    ht(1)
    A("s_mul_i32 s42, s21, 10240"); A("s_mul_i32 s47, s101, %d" % XNF_LAYER); A("s_add_u32 s47, s47, s42"); A("s_add_u32 s47, s47, %d" % WS_XNF)
    A("s_mul_i32 s50, s101, %d" % KV_LAYER); A("s_lshl_b32 s27, s22, 13"); A("s_add_u32 s50, s50, s27"); A("s_add_u32 s50, s50, %d" % WS_KXF)
    A("s_lshl_b32 s43, s101, 6")
    A("s_mul_i32 s27, s22, 26"); A("s_lshr_b32 s27, s27, 8"); A("s_mul_i32 s28, s27, 10"); A("s_sub_u32 s88, s22, s28")
    A("s_mul_i32 s28, s20, 3"); A("s_sub_u32 s28, s28, 12"); A("s_lshl_b32 s29, s20, 1"); A("s_add_u32 s29, s29, 8")
    A("s_cmp_lt_u32 s20, 4"); A("s_cselect_b32 s28, s29, s28"); A("s_cselect_b32 s29, 2, 3"); A("s_add_u32 s28, s28, s27")
    A("s_lshl_b32 s89, s28, 2"); A("s_add_u32 s89, s89, s21"); A("s_cmp_lt_u32 s27, s29"); A("s_cselect_b32 s89, s89, 64")
    A("s_cmp_ge_u32 s20, 4"); A("s_cbranch_scc1 %s" % L("qao"))
    S = Seq(A)
    S("s_sub_u32 s27, s20, 2"); S("s_mul_i32 s28, s27, %d" % KV_MAT); S("s_add_u32 s50, s50, s28"); S("s_add_u32 s28, s27, 10"); S("s_lshl_b32 s28, s21, s28"); S("s_add_u32 s50, s50, s28")
    S("s_lshl_b32 s51, s27, 7"); S("s_lshl_b32 s28, s22, 8"); S("s_add_u32 s51, s51, s28"); S("s_add_u32 s51, s51, %d" % WS_KVFL)
    S("s_mov_b32 s44, 0"); S("s_mov_b32 s45, 0")
    load_srd(A, 72, KA_WR, 0); load_srd(A, 76, KA_WI, 0)
    A("s_lshl_b32 s27, s27, 5"); A("s_add_u32 s27, s27, s22"); A("s_lshl_b32 s27, s27, 2"); A("s_add_u32 s94, s27, s21"); A("s_mov_b32 s95, 0")
    A("s_and_b32 s93, s22, 3"); A("s_add_u32 s93, s93, 10"); A("s_cmp_lg_u32 s101, 0"); A("s_cselect_b32 s93, 1000, s93")
    A("s_waitcnt lgkmcnt(0)"); fin_srd(A, 72, SZ_WF); fin_srd(A, 76, SZ_WF)
    xpoll(S, "7", "kx")
    x_dma(S, "s44", "s45"); S.wait_vm_all(); S("s_barrier")
    A.label(L("kv_top"))
    S = Seq(A)
    S("v_add_u32 v1, s45, v0"); S("s_sub_u32 s45, 40960, s45"); S("s_add_u32 s44, s44, 1")
    x_dma(S, "s44", "s45")
    S("s_cmp_eq_u32 s20, 3"); S("s_cbranch_scc1 %s" % L("kv_v"))
    nv0 = S.nv
    proj(S, 1, 8, [32 + 4 * i for i in range(6)])
    S("s_add_u32 s27, s50, 4096")
    for mt in range(2):
        for i in range(4): S("v_cvt_pk_bf16_f32 v%d, v%d, v%d" % (24 + 4 * mt + i, 8 + 8 * mt + i, 12 + 8 * mt + i))
        S("buffer_store_dwordx4 %s, v0, s[8:11], %s offen sc1" % (r4(24 + 4 * mt), "s27" if mt else "s50"))
    S("s_branch %s" % L("kv_c"))
    A.label(L("kv_v"))
    S = Seq(A)
    proj(S, 1, 8, [32 + 4 * i for i in range(6)], True)
    for tl in range(2):
        for q in range(4): S("v_cvt_pk_bf16_f32 v%d, v%d, v%d" % (24 + 4 * tl + q, 8 + 8 * (q // 2) + 4 * tl + 2 * (q % 2), 9 + 8 * (q // 2) + 4 * tl + 2 * (q % 2)))
        S("buffer_store_dwordx4 %s, v0, s[8:11], s50 offen offset:%d sc1" % (r4(24 + 4 * tl), 1024 * tl))
    A.label(L("kv_c"))
    S("s_add_u32 s50, s50, 262144"); S("s_add_u32 s27, s44, s43"); S("v_mov_b32 v2, s27")
    S.wait_vm_all(); S("s_barrier")
    S("s_cmp_lg_u32 s21, 0"); S("s_cbranch_scc1 %s" % L("kv_nf"))
    S("s_mov_b64 exec, 1"); S("buffer_store_dword v2, v0, s[8:11], s51 offen sc1"); S("s_mov_b64 exec, -1")
    A.label(L("kv_nf"))
    S("s_cmp_lg_u32 s44, 2"); S("s_cbranch_scc1 %s" % L("kv_np"))
    xpoll(S, "-1", "kx")
    A.label(L("kv_np"))
    A("s_cmp_lg_u32 s44, s93"); A("s_cbranch_scc1 %s" % L("kv_nt"))
    A("s_add_u32 s93, s93, 5"); lane_setup(A)
    A("s_cmp_ge_u32 s94, 800"); A("s_cbranch_scc1 %s" % L("kv_wt"))
    A("s_mov_b32 s36, s94"); t2_frag(A); A("s_add_u32 s94, s94, 256"); A("s_branch %s" % L("kv_nt"))
    A.label(L("kv_wt"))
    A("s_cmp_ge_u32 s95, 6"); A("s_cbranch_scc1 %s" % L("kv_nt"))
    A("s_mov_b32 s36, s95"); A("s_and_b32 s37, s94, 255"); wt_task(A, L("kv_ws")); A("s_add_u32 s95, s95, 1")
    A.label(L("kv_nt"))
    S("s_cmp_lt_u32 s44, 64"); S("s_cbranch_scc1 %s" % L("kv_top"))
    if P.get("NOQAO"):
        A("s_cmp_lg_u32 s101, 0"); A("s_cbranch_scc1 %s" % L("end")); A("s_mov_b32 s101, 1"); A("s_branch %s" % L("bulk"))
    A("s_branch %s" % L("bphase"))

    LQ_EQ, LQ_EO, LQ_ST, LQ_FT = 81920, 90112, 98304, 122880
    A.label(L("qao"))
    if P.get("NOQAO"): A("s_branch %s" % L("end"))
    A("s_cmp_lg_u32 s101, 0"); A("s_cbranch_scc1 %s" % L("q_ft"))
    lane_setup(A); A("s_min_u32 s36, s22, 19"); A("s_mul_i32 s36, s36, 40"); A("s_mul_i32 s27, s21, 10"); A("s_add_u32 s36, s36, s27"); A("s_add_u32 s35, s36, 10")
    A("s_add_u32 s27, s42, %d" % LQ_FT); A("v_add_u32 v2, s27, v0")
    A.label(L("q_ftl"))
    t1_frag(A); A("ds_write_b128 v2, v[24:27]"); A("v_add_u32 v2, 1024, v2")
    A("s_add_u32 s36, s36, 1"); A("s_cmp_lt_u32 s36, s35"); A("s_cbranch_scc1 %s" % L("q_ftl"))
    A("s_waitcnt lgkmcnt(0)")
    A.label(L("q_ft"))
    S = Seq(A)
    G, R_, VH, PSX, RLA, RLB, XOA, XOB, THR, XHA, XDA, FTA = 1, 2, 3, 4, 5, 6, 7, 8, 9, 12, 13, 14
    SELR = 16
    def cvt(d, a_, b_, op="v_cvt_pk_bf16_f32"): S("%s v%d, v%d, v%d" % (op, d, a_, b_))
    S("v_lshrrev_b32 v%d, 8, v0" % G); S("v_bfe_u32 v%d, v0, 4, 4" % R_)
    S("v_add_u32 v%d, %d, v0" % (VH, LQ_EQ)); S("v_add_u32 v%d, %d, v0" % (FTA, LQ_FT))
    S("s_mul_i32 s28, s21, 320")
    S("v_mul_u32_u24 v10, 40960, v%d" % R_); S("v_lshl_add_u32 v10, v%d, 4, v10" % G); S("s_mul_i32 s27, s22, 1280"); S("s_add_u32 s29, s27, s28"); S("v_add_u32 v%d, s29, v10" % PSX)
    S("v_mul_u32_u24 v10, 1280, v%d" % G); S("s_mul_i32 s27, s22, 40960"); S("s_add_u32 s27, s27, s28"); S("v_add_u32 v10, s27, v10"); S("v_lshl_add_u32 v%d, v%d, 4, v10" % (RLA, R_))
    S("v_lshrrev_b32 v11, 2, v%d" % R_); S("v_mul_u32_u24 v15, 5120, v11"); S("v_add_u32 v10, v10, v15"); S("v_and_b32 v15, 0x30, v0"); S("v_add_u32 v%d, v10, v15" % RLB)
    S("v_and_b32 v10, 1, v%d" % G); S("v_lshlrev_b32 v10, 3, v10"); S("v_add_u32 v%d, s29, v10" % XOB); S("v_lshl_add_u32 v%d, v%d, 4, v%d" % (XOA, R_, XOB)); S("v_add_u32 v%d, v%d, v15" % (XOB, XOB))
    S("v_lshl_add_u32 v10, v11, 10, v10"); S("v_lshl_add_u32 v10, v15, 4, v10"); S("s_mul_i32 s27, s21, 5120"); S("s_and_b32 s28, s22, 15"); S("s_lshl_b32 s28, s28, 4"); S("s_add_u32 s27, s27, s28")
    S("s_lshr_b32 s28, s22, 4"); S("s_mul_i32 s28, s28, 20480"); S("s_add_u32 s27, s27, s28"); S("v_add_u32 v%d, s27, v10" % XHA)
    S("v_lshlrev_b32 v10, 13, v%d" % R_); S("v_lshl_add_u32 v10, v%d, 4, v10" % G); S("s_lshl_b32 s27, s22, 18"); S("s_lshl_b32 s28, s21, 6"); S("s_add_u32 s27, s27, s28"); S("v_add_u32 v%d, s27, v10" % XDA)
    S("s_and_b32 s58, s21, 1"); S("s_lshr_b32 s59, s21, 1")
    S("v_lshlrev_b32 v10, 2, v%d" % G); S("v_sub_u32 v10, v%d, v10" % R_); S("s_lshl_b32 s27, s58, 4"); S("v_add_u32 v%d, s27, v10" % THR)
    S("v_and_b32 v10, 16, v0"); S("s_movk_i32 s27, 0x3f80"); S("v_lshlrev_b32_e64 v10, v10, s27"); S("v_bfe_u32 v11, v0, 5, 2")
    for q in range(4):
        S("v_cmp_eq_u32 vcc, %d, v11" % q); S("v_cndmask_b32 v%d, 0, v10, vcc" % (SELR + q))
    S("s_mov_b32 s40, 0x%08x" % f2u(C1)); S("s_mov_b32 s41, s40")
    S("s_sub_u32 s44, s20, 4"); S("s_mov_b32 s45, 0")
    S("s_mul_i32 s48, s44, %d" % (2 * PARTX_SLOT)); S("s_add_u32 s48, s48, %d" % WS_PARTX); S("s_mov_b32 s49, %d" % PARTX_SLOT)
    S("s_lshl_b32 s51, s44, 12"); S("s_lshl_b32 s27, s101, 11"); S("s_add_u32 s51, s51, s27"); S("s_add_u32 s51, s51, %d" % WS_ARR)
    S("s_lshl_b32 s52, s22, 7"); S("s_lshl_b32 s27, s101, 12"); S("s_add_u32 s52, s52, s27"); S("s_add_u32 s52, s52, %d" % WS_CHFL)
    S("s_lshl_b32 s53, s22, 13"); S("s_add_u32 s53, s53, %d" % WS_KM)
    S("s_mul_i32 s54, s101, %d" % (WS_X3 - WS_X1)); S("s_add_u32 s54, s54, %d" % WS_X1)
    S("s_lshl_b32 s60, s22, 8"); S("s_add_u32 s60, s60, %d" % WS_KVFL)
    S("s_mul_i32 s63, s44, 65536"); S("s_add_u32 s63, s63, %d" % WS_XNH); S("s_add_u32 s64, s63, 4096")
    xpoll(S, "-1", "qx")
    x_dma(S, "s44", "0"); S("s_add_u32 s46, s44, 4"); x_dma(S, "s46", "40960"); S("s_waitcnt vmcnt(0)"); S("s_barrier")
    A("s_mov_b32 s65, 0"); A("s_mov_b32 s66, s44"); A("s_mov_b32 s62, 0x%x" % OOB); A("s_mov_b32 s67, 0x%x" % OOB); A("s_mov_b32 s68, 0x%x" % OOB)
    QF = [160 + 4 * i for i in range(4)]; OO = [144 + 4 * i for i in range(4)]; MX, ZX, TM, M2, AL = 176, 177, 178, 179, 180; RESN = 184; RES = 20
    KF = [72 + 4 * i for i in range(8)]; VF = [104 + 4 * i for i in range(4)]; SA, SB, PB, SM = 120, 124, 128, 48; FLG = 15
    def flag_load(E): E("v_lshlrev_b32 v10, 3, v0"); E("s_mov_b64 exec, 3"); E("buffer_load_dword v%d, v10, s[8:11], s60 offen sc1" % FLG); E("s_mov_b64 exec, -1")
    def flag_get(E): E("v_readlane_b32 s65, v%d, 0" % FLG); E("v_readlane_b32 s27, v%d, 1" % FLG); E("s_nop 3"); E("s_min_u32 s65, s65, s27")
    def xl(reg, op, both=True):
        for sw in ("v_permlane16_swap_b32", "v_permlane32_swap_b32")[:2 if both else 1]:
            S("v_mov_b32 v%d, v%d" % (TM, reg)); S("%s v%d, v%d" % (sw, reg, TM)); S("%s v%d, v%d, v%d" % (op, reg, reg, TM))
    A.label(L("q_front"))
    A("s_add_u32 s56, s66, s43"); A("s_mov_b32 s30, 0")
    A.label(L("q_kf"))
    A("s_cmp_gt_u32 s65, s56"); A("s_cbranch_scc1 %s" % L("q_kg"))
    flag_load(A); A("s_waitcnt vmcnt(0)"); flag_get(A); A("s_sleep 1")
    A("s_add_u32 s30, s30, 1"); A("s_cmp_lt_u32 s30, %d" % SPIN_MAX); A("s_cbranch_scc1 %s" % L("q_kf")); A("s_branch %s" % L("fail"))
    A.label(L("q_kg"))
    S = Seq(A); S("s_nop 1")
    S("s_lshl_b32 s27, s66, 18"); S("s_add_u32 s27, s27, s50"); S("s_add_u32 s28, s27, 4096")
    for i in range(8): S("buffer_load_dwordx4 %s, v0, s[8:11], %s offen offset:%d sc1" % (r4(KF[i]), "s28" if i >= 4 else "s27", 1024 * (i % 4)))
    S("s_lshl_b32 s28, s59, 12"); S("s_add_u32 s27, s27, s28"); S("s_add_u32 s27, s27, %d" % KV_MAT)
    for i in range(4): S("buffer_load_dwordx4 %s, v0, s[8:11], s27 offen offset:%d sc1" % (r4(VF[i]), 1024 * i))
    S("s_mul_i32 s27, s66, 40960")
    S("buffer_load_dwordx2 %s, v%d, s[16:19], s27 offen sc1" % (r2(RESN), XOA)); S("buffer_load_dwordx2 %s, v%d, s[16:19], s27 offen offset:256 sc1" % (r2(RESN + 2), XOB))
    flag_load(S)
    QA = 24
    S("v_add_u32 v11, s45, v0"); S("s_sub_u32 s45, 40960, s45")
    proj(S, 11, QA, [40 + 4 * i for i in range(6)])
    for r in range(QA, QA + 16, 2): S("v_pk_mul_f32 %s, %s, s[40:41]" % (r2(r), r2(r)))
    S("s_lshl_b32 s27, s21, 10"); S("v_add_u32 v10, s27, v%d" % VH)
    for mt in range(2):
        for i in range(4): cvt(40 + 4 * mt + i, QA + 8 * mt + i, QA + 4 + 8 * mt + i)
        S("ds_write_b128 v10, %s offset:%d" % (r4(40 + 4 * mt), mt * 4096))
    S("s_lshl_b32 s27, s58, 12"); S("v_add_u32 v10, s27, v%d" % VH)
    S("s_waitcnt vmcnt(15) lgkmcnt(0)"); S("s_barrier")
    for u in range(4): rd(S, QF[u], 10, 1024 * u)
    def arr_store(tag):
        S("s_cmp_lg_u32 s21, 0"); S("s_cbranch_scc1 %s" % L(tag))
        S("s_mov_b64 exec, 1"); S("v_mov_b32 v10, s22"); S("v_mov_b32 v11, 1")
        lst(["buffer_store_byte v11, v10, s[8:11], s62 offen"])
        S("s_mov_b64 exec, -1")
        A.label(L(tag))
    S("s_waitcnt vmcnt(0)")
    arr_store("q_fa")
    S("v_mov_b32 v11, 0x%08x" % f2u(-1e30))
    for i in range(8):
        S("v_cmp_gt_i32 vcc, %d, v%d" % (16 * (i // 4) + i % 4, THR)); S("v_cndmask_b32 v%d, 0, v11, vcc" % (SA + i))
    for u in range(4): mf32(S, SA, KF[u], QF[u], SA); mf32(S, SB, KF[4 + u], QF[u], SB)
    flag_get(S)
    S("v_max3_f32 v%d, v%d, v%d, v%d" % (MX, SA, SA + 1, SA + 2))
    for i in (3, 5): S("v_max3_f32 v%d, v%d, v%d, v%d" % (MX, MX, SA + i, SA + i + 1))
    S("v_max_f32 v%d, v%d, v%d" % (MX, MX, SA + 7)); xl(MX, "v_max_f32")
    for r in range(SA, SA + 8): S("v_sub_f32 v%d, v%d, v%d" % (r, r, MX))
    for r in range(SA, SA + 8): S("v_exp_f32 v%d, v%d" % (r, r))
    for q in range(4): cvt(PB + q, SA + 2 * q, SA + 2 * q + 1)
    S("v_add_f32 v%d, v%d, v%d" % (ZX, SA, SA + 1))
    for r in range(SA + 2, SA + 8): S("v_add_f32 v%d, v%d, v%d" % (ZX, ZX, r))
    for i in range(4): mf32(S, OO[i], VF[i], PB, "0")
    xl(ZX, "v_add_f32")
    S("s_cmp_lg_u32 s66, s44"); S("s_cbranch_scc1 %s" % L("q_back2"))
    A.label(L("q_top"))
    hq(0)
    S = Seq(A)
    S("s_add_u32 s56, s44, s43"); S("s_lshl_b32 s57, s44, 7"); S("s_mul_i32 s55, s44, 40960")
    S("s_lshl_b32 s26, s56, 18"); S("s_add_u32 s26, s26, s53"); S("s_lshl_b32 s28, s59, 11"); S("s_add_u32 s29, s26, s28"); S("s_add_u32 s29, s29, 4096")
    S("s_lshl_b32 s27, s58, 12"); S("s_add_u32 s27, s27, s28"); S("v_add_u32 v10, s27, v%d" % VH)
    poll(S, "s52", 3, "v_cmp_ge_u32 vcc, s57, v191", "cf", sleep=P.get("QS", 1))
    S = Seq(A)
    KMF = [24 + 4 * i for i in range(4)]; VM = [40, 44]
    hq(5)
    def dflag(stage):
        A("s_lshl_b32 s27, s20, 12"); A("s_lshl_b32 s28, s22, 7"); A("s_add_u32 s27, s27, s28"); A("s_add_u32 s27, s27, %d" % (WS_DFL - 4 * 4096))
        A("s_lshl_b32 s28, s101, 1"); A("s_add_u32 s28, s28, %d" % stage); A("v_mov_b32 v11, s28")
        A("s_mov_b64 exec, 1"); A("buffer_store_dword v11, v0, s[8:11], s27 offen sc1"); A("s_mov_b64 exec, -1")
    for u in range(4): S("buffer_load_dwordx4 %s, v0, s[8:11], s26 offen offset:%d sc1" % (r4(KMF[u]), 1024 * u))
    for i in range(2): S("buffer_load_dwordx4 %s, v0, s[8:11], s29 offen offset:%d sc1" % (r4(VM[i]), 1024 * i))
    def late_stores(E):
        E("s_add_u32 s28, s68, %d" % (16 * 8192))
        for T in range(2): E("buffer_store_dwordx4 %s, v%d, s[8:11], %s offen sc1" % (r4(104 + 4 * T), XDA, "s28" if T else "s68"))
        E("s_mov_b32 exec_hi, 0"); E("buffer_store_dwordx2 %s, v%d, s[8:11], s67 offen sc1" % (r2(RES), XOA))
        E("s_mov_b32 exec_lo, 0x000f000f"); E("buffer_store_dwordx2 %s, v%d, s[8:11], s67 offen offset:256 sc1" % (r2(RES + 2), XOA)); E("s_mov_b64 exec, -1")
    for u in range(4): mf32(S, SM, KMF[u], QF[u], "0" if u == 0 else SM)
    hq(6)
    S("v_max3_f32 v%d, v%d, v%d, v%d" % (M2, MX, SM, SM + 1)); S("v_max3_f32 v%d, v%d, v%d, v%d" % (M2, M2, SM + 2, SM + 3)); xl(M2, "v_max_f32", False)
    S("v_sub_f32 v%d, v%d, v%d" % (AL, MX, M2))
    for r in range(SM, SM + 4): S("v_sub_f32 v%d, v%d, v%d" % (r, r, M2))
    S("v_exp_f32 v%d, v%d" % (AL, AL))
    for r in range(SM, SM + 4): S("v_exp_f32 v%d, v%d" % (r, r))
    S("v_add_f32 v%d, v%d, v%d" % (M2, SM, SM + 1)); S("v_add_f32 v%d, v%d, v%d" % (MX, SM + 2, SM + 3)); S("v_add_f32 v%d, v%d, v%d" % (M2, M2, MX)); xl(M2, "v_add_f32", False)
    S("v_fmac_f32 v%d, v%d, v%d" % (M2, AL, ZX)); S("v_rcp_f32 v%d, v%d" % (M2, M2))
    S("v_mul_f32 v%d, v%d, v%d" % (AL, AL, M2))
    for r in range(SM, SM + 4): S("v_mul_f32 v%d, v%d, v%d" % (r, r, M2))
    cvt(SM, SM, SM + 1); cvt(SM + 1, SM + 2, SM + 3)
    for r in range(OO[0], OO[0] + 16, 2): S("v_pk_mul_f32 %s, %s, %s op_sel_hi:[1,0]" % (r2(r), r2(r), r2(AL)))
    for i in range(4): mf16(S, OO[i], VM[i // 2] + 2 * (i % 2), SM, OO[i])
    for j in range(2):
        for i in range(4): cvt(56 + 4 * j + i, OO[2 * j] + i, OO[2 * j + 1] + i)
        S("ds_write_b128 v10, %s offset:%d" % (r4(56 + 4 * j), LQ_EO - LQ_EQ + j * 1024))
    S.wait_lds_all(); S("s_barrier")
    OF = [24 + 4 * i for i in range(8)]
    hq(7)
    for u in range(4):
        for qt in range(2): rd(S, OF[4 * qt + u], VH, LQ_EO - LQ_EQ + 4096 * qt + 1024 * u)
    late_stores(S)
    S("v_mov_b64 %s, %s" % (r2(RES), r2(RESN))); S("v_mov_b64 %s, %s" % (r2(RES + 2), r2(RESN + 2)))
    A("s_add_u32 s46, s44, 8"); A("s_cmp_ge_u32 s46, 64"); A("s_cbranch_scc1 %s" % L("q_tb"))
    A("s_sub_u32 s29, 40960, s45"); x_dma(Seq(A), "s46", "s29")
    A.label(L("q_nx"))
    S("s_mov_b32 s62, s51")
    S("s_add_u32 s27, s48, %d" % (16 * 40960))
    XA = lambda pr, qt, tb: 64 + 16 * pr + 8 * qt + 4 * tb
    pend = []
    st = lambda pr: ["buffer_store_dwordx4 %s, v%d, s[8:11], %s offen offset:%d" % (r4(XA(pr, qt, 0)), PSX, "s27" if qt else "s48", 64 * pr) for qt in range(2)]
    for pr in range(5):
        for u in range(4):
            for qt in range(2):
                for tb in range(2):
                    mf32(S, XA(pr, qt, tb), breg(40 + (2 * pr + tb) * 4 + u), OF[4 * qt + u], "0" if u == 0 else XA(pr, qt, tb))
                    if u >= 1 and pend: cvt(*pend.pop(0)); cvt(*pend.pop(0))
            if u == 1 and pr: lst(st(pr - 1), S)
        pend = [(XA(pr, qt, 0) + q, XA(pr, qt, 0) + 2 * q, XA(pr, qt, 0) + 2 * q + 1) for qt in range(2) for q in range(4)]
    while pend: cvt(*pend.pop(0))
    lst(st(4), S)
    hq(8)
    S("s_add_u32 s66, s44, 4"); S("s_cmp_lt_u32 s66, 64"); S("s_cbranch_scc1 %s" % L("q_front"))
    S = Seq(A)
    def arrive(tag):
        S("s_waitcnt vmcnt(0)"); S("s_barrier"); arr_store(tag)
    arrive("q_na")
    A.label(L("q_back2"))
    A("s_lshr_b32 s27, s44, 2"); A("s_lshl_b32 s28, s21, 8"); A("s_or_b32 s27, s27, s28"); A("s_cmp_lg_u32 s27, %d" % (14 + 256 * 3)); A("s_cbranch_scc1 %s" % L("q_nf1"))
    dflag(1)
    A.label(L("q_nf1"))
    hq(9)
    poll(S, "s62", 0xff, "v_cmp_ne_u32 vcc, 0x01010101, v191", "ar", sleep=0)
    S = Seq(A)
    B0, D0 = 24, 64
    hq(10)
    for j in range(8):
        if j: S("s_add_u32 s27, s48, %d" % (j * 5120))
        S("buffer_load_dwordx4 %s, v%d, s[8:11], %s offen sc1" % (r4(B0 + 4 * j), RLA, "s27" if j else "s48"))
        if j % 4 == 0: S("buffer_load_dwordx4 %s, v%d, s[8:11], %s offen offset:256 sc1" % (r4(B0 + 32 + j), RLB, "s27" if j else "s48"))
    XV = 72
    for q in range(4): S("v_lshlrev_b32 v%d, 16, v%d" % (XV + 2 * q, RES + q)); S("v_and_b32 v%d, 0xffff0000, v%d" % (XV + 2 * q + 1, RES + q))
    S("s_add_u32 s67, s55, s54")
    for j in range(8):
        mf32(S, D0, SELR, B0 + 4 * j, "0" if j == 0 else D0)
        if j % 4 == 0: mf32(S, D0 + 4, SELR, B0 + 32 + j, "0" if j == 0 else D0 + 4)
    hq(11)
    for sh in (8, 4):
        for q in range(4): S("v_add_f32_dpp v%d, v%d, v%d row_ror:%d row_mask:0xf bank_mask:0xf" % (D0 + 4 + q, D0 + 4 + q, D0 + 4 + q, sh))
    for q in range(4): S("v_pk_add_f32 %s, %s, %s" % (r2(XV + 2 * q), r2(XV + 2 * q), r2(D0 + 2 * q)))
    for q in range(4): cvt(RES + q, XV + 2 * q, XV + 2 * q + 1)
    for q in range(4): S("v_lshlrev_b32 v%d, 16, v%d" % (XV + 2 * q, RES + q)); S("v_and_b32 v%d, 0xffff0000, v%d" % (XV + 2 * q + 1, RES + q))
    ME, DV = 80, 84
    def wsum(dst, src):
        S("v_pk_add_f32 %s, %s, %s" % (r2(92), r2(src), r2(src + 2))); S("v_pk_add_f32 %s, %s, %s" % (r2(94), r2(src + 4), r2(src + 6)))
        S("v_add_f32 v92, v92, v93"); S("v_add_f32 v94, v94, v95"); S("v_fma_f32 v%d, v94, 0.5, v92" % dst) if False else None
        S("v_mul_f32 v94, 0x3e800000, v94"); S("v_add_f32 v%d, v92, v94" % dst)
        for sh in (8, 4, 2, 1): S("v_add_f32_dpp v%d, v%d, v%d row_ror:%d row_mask:0xf bank_mask:0xf" % (dst, dst, dst, sh))
        xl(dst, "v_add_f32", False)
    wsum(ME, XV); S("v_mul_f32 v%d, 0x%08x, v%d" % (ME, f2u(1 / 160), ME))
    for q in range(4): S("v_pk_add_f32 %s, %s, %s op_sel_hi:[1,0] neg_lo:[0,1] neg_hi:[0,1]" % (r2(DV + 2 * q), r2(XV + 2 * q), r2(ME)))
    for q in range(4): S("v_pk_mul_f32 %s, %s, %s" % (r2(DV + 2 * q), r2(DV + 2 * q), r2(DV + 2 * q)))
    wsum(ME + 1, DV)
    S("s_lshl_b32 s27, s21, 3"); S("s_add_u32 s27, s27, %d" % LQ_ST); S("v_mov_b32 v10, s27"); S("v_mov_b32 v11, %d" % LQ_ST)
    S("ds_write_b64 v10, %s" % r2(ME)); S.wait_lds_all(); S("s_barrier")
    rd(S, DV, 11, 0); rd(S, DV + 4, 11, 16)
    S("v_pk_add_f32 %s, %s, %s" % (r2(ME), r2(DV), r2(DV + 2))); S("v_pk_add_f32 %s, %s, %s" % (r2(92), r2(DV + 4), r2(DV + 6))); S("v_pk_add_f32 %s, %s, %s" % (r2(ME), r2(ME), r2(92)))
    S("v_mul_f32 v%d, 0x3e800000, v%d" % (ME, ME))
    for e in range(4): S("v_sub_f32 v%d, v%d, v%d" % (DV + 2 * e, DV + 2 * e, ME))
    for e in range(4): S("v_mul_f32 v%d, 0x43200000, v%d" % (DV + 2 * e + 1, DV + 2 * e))
    for e in range(4): S("v_fmac_f32 v%d, v%d, v%d" % (ME + 1, DV + 2 * e, DV + 2 * e + 1))
    S("v_mov_b32 v%d, 0x3727c5ac" % (ME + 2)); S("v_fmac_f32 v%d, 0x3acccccd, v%d" % (ME + 2, ME + 1)); S("v_rsq_f32 v%d, v%d" % (ME + 2, ME + 2))
    for q in range(4): S("v_pk_add_f32 %s, %s, %s op_sel_hi:[1,0] neg_lo:[0,1] neg_hi:[0,1]" % (r2(XV + 2 * q), r2(XV + 2 * q), r2(ME)))
    for q in range(4): S("v_pk_mul_f32 %s, %s, %s op_sel_hi:[1,0]" % (r2(XV + 2 * q), r2(XV + 2 * q), r2(ME + 2)))
    for q in range(4): cvt(XV + q, XV + 2 * q, XV + 2 * q + 1, "v_cvt_pk_f16_f32")
    lst(["s_mov_b32 exec_hi, 0", "buffer_store_dwordx2 %s, v%d, s[8:11], s63 offen" % (r2(XV), XHA), "s_mov_b32 exec_lo, 0x000f000f", "buffer_store_dwordx2 %s, v%d, s[8:11], s64 offen" % (r2(XV + 2), XHA), "s_mov_b64 exec, -1"], S)
    hq(12)
    S("s_add_u32 s62, s51, 16384"); arrive("q_nb")
    hq(13)
    A("s_cmp_ge_u32 s22, 20"); A("s_cbranch_scc1 %s" % L("q_nd"))
    poll(S, "s62", 0xff, "v_cmp_ne_u32 vcc, 0x01010101, v191", "ar", sleep=0)
    hq(14)
    A("s_cmp_ge_u32 s21, 2"); A("s_cbranch_scc1 %s" % L("q_nd"))
    S = Seq(A)
    S("s_mul_i32 s27, s21, 20480"); S("s_add_u32 s27, s27, s63")
    for f in range(20):
        S("buffer_load_dwordx4 %s, v0, s[8:11], s27 offen offset:%d sc1" % (r4(24 + 4 * f), (f % 4) * 1024))
        if f % 4 == 3: S("s_add_u32 s27, s27, 4096")
    TB = [112 + 4 * i for i in range(8)]
    sq = [(ks, T) for ks in range(20) for T in range(2)]
    def trd(i):
        if i < 40: rd(S, TB[i % 8], FTA, (sq[i][1] * 20 + sq[i][0]) * 1024)
    for i in range(7): trd(i)
    S("s_lshl_b32 s27, s44, 7"); S("s_mul_i32 s68, s101, %d" % XD_LAYER); S("s_add_u32 s68, s68, s27"); S("s_add_u32 s68, s68, %d" % WS_XD)
    for i, (ks, T) in enumerate(sq):
        S("v_mfma_f32_16x16x32_f16 %s, %s, %s, %s" % (r4(104 + 4 * T), r4(24 + 4 * ks), r4(TB[i % 8]), "0" if ks == 0 else r4(104 + 4 * T)))
        trd(i + 7)
    S("s_nop 7")
    A.label(L("q_nd"))
    hq(15)
    A("s_lshr_b32 s27, s44, 2"); A("s_cmp_lg_u32 s27, 14"); A("s_cbranch_scc1 %s" % L("q_nt"))
    idft_table(Seq(A), 1, "v0", "s21")
    A.label(L("q_nt"))
    A("s_add_u32 s48, s48, s49"); A("s_sub_u32 s49, 0, s49"); A("s_add_u32 s51, s51, 128")
    A("s_add_u32 s44, s44, 4"); A("s_cmp_lt_u32 s44, 64"); A("s_cbranch_scc1 %s" % L("q_top"))
    A("s_cmp_ge_u32 s21, 2"); A("s_cbranch_scc1 %s" % L("q_e1"))
    late_stores(A); A("s_waitcnt vmcnt(2)"); A("s_barrier"); A("s_cmp_lg_u32 s21, 0"); A("s_cbranch_scc1 %s" % L("bphase"))
    dflag(2); A("s_branch %s" % L("bphase"))
    A.label(L("q_tb"))
    A("s_cmp_ge_u32 s44, 60"); A("s_cbranch_scc1 %s" % L("q_nx"))
    A("s_cmp_lg_u32 s101, 0"); A("s_cbranch_scc1 %s" % L("q_tb2"))
    A("v_lshlrev_b32 v190, 3, v0"); A("s_mov_b64 exec, 3"); A("s_mov_b32 s28, %d" % (WS_BAR2 + 1024)); A("s_mov_b32 s30, 0")
    A.label(L("q_tbl"))
    A("buffer_load_dword v191, v190, s[8:11], s28 offen sc1")
    A("s_add_u32 s30, s30, 1"); A("s_cmp_ge_u32 s30, %d" % SPIN_MAX); A("s_cbranch_scc1 %s" % L("fail"))
    A("s_waitcnt vmcnt(0)"); A("v_cmp_ne_u32 vcc, 1, v191"); A("s_cbranch_vccnz %s" % L("q_tbl"))
    A("s_mov_b64 exec, -1")
    A.label(L("q_tb2"))
    idft_table(Seq(A), 0, "v0", "s21"); A("s_branch %s" % L("q_nx"))
    A.label(L("q_e1"))
    A("s_barrier"); late_stores(A)

    A.label(L("bphase"))
    ht(3)
    def gbar(ph, between=None, ng=6):
        base = WS_BAR2 + ph * 4096
        lw = A.newlabel(L("gb")); ld = A.newlabel(L("gb")); la = A.newlabel(L("gb"))
        def spin(addr_setup, lanes, want):
            lp = A.newlabel(L("gs"))
            A("s_mov_b64 exec, 0x%x" % lanes); addr_setup(); A("s_mov_b32 s30, 0")
            A.label(lp)
            A("buffer_load_dword v191, v190, s[8:11], s28 offen sc1")
            A("s_add_u32 s30, s30, 1"); A("s_cmp_ge_u32 s30, %d" % (SPIN_MAX * 4)); A("s_cbranch_scc1 %s" % L("fail"))
            A("s_waitcnt vmcnt(0)"); A("v_cmp_ne_u32 vcc, 0x%x, v191" % want); A("s_cbranch_vccnz %s" % lp)
        if ng < 6: A("s_cmp_ge_u32 s82, %d" % ng); A("s_cbranch_scc1 %s" % la)
        A("s_waitcnt vmcnt(0) lgkmcnt(0)"); A("s_barrier")
        A("s_cmp_lg_u32 s83, 0"); A("s_cbranch_scc1 %s" % la)
        A("s_mov_b32 s23, s85"); A("s_add_u32 s28, s86, %d" % base); A("s_lshl_b32 s27, s82, 7")
        A("s_mov_b64 exec, 1"); A("s_add_u32 s31, s27, s84"); A("v_mov_b32 v190, s31"); A("v_mov_b32 v191, 1")
        lst(["buffer_store_byte v191, v190, s[8:11], s28 offen"])
        A("s_cmp_lg_u32 s84, 31"); A("s_cbranch_scc1 %s" % lw)
        A("s_mov_b64 exec, -1"); A("v_mbcnt_lo_u32_b32 v189, -1, 0")
        spin(lambda: A("v_lshl_add_u32 v190, v189, 2, s27"), 0xff, 0x01010101)
        A("s_mov_b64 exec, 1"); A("v_mov_b32 v190, s27"); A("v_mov_b32 v191, 1"); A("buffer_store_dword v191, v190, s[8:11], s28 offen offset:1024 sc1")
        A.label(lw)
        A("s_mov_b64 exec, -1")
        A.label(la)
        if between: between()
        A("s_cmp_lg_u32 s83, 0"); A("s_cbranch_scc1 %s" % ld)
        A("s_add_u32 s28, s86, %d" % base); A("v_mbcnt_lo_u32_b32 v189, -1, 0")
        spin(lambda: A("v_lshlrev_b32 v190, 7, v189\nv_add_u32 v190, 1024, v190"), (1 << ng) - 1, 1)
        A("s_mov_b64 exec, -1")
        A.label(ld)
        A("s_barrier")
    A("s_sub_u32 s82, s20, 2"); A("s_mov_b32 s83, s21"); A("s_mov_b32 s84, s22"); A("s_mov_b32 s85, s23")
    A("s_lshl_b32 s87, s82, 5"); A("s_add_u32 s87, s87, s22")
    A("s_mul_i32 s86, s101, %d" % (6 * 4096))
    A("s_mul_i32 s80, s101, %d" % (WS_X3 - WS_X1)); A("s_add_u32 s80, s80, %d" % WS_X1)
    A("s_load_dwordx2 s[16:17], s[0:1], %d" % KA_OUT); A("s_waitcnt lgkmcnt(0)"); A("s_and_b32 s17, s17, 0xffff")
    A("s_cmp_eq_u32 s101, 1"); A("s_cbranch_scc1 %s" % L("osrd"))
    A("s_add_u32 s16, s8, %d" % WS_X2); A("s_addc_u32 s17, s9, 0")
    A.label(L("osrd"))
    def restore():
        A("s_add_u32 s20, s82, 2"); A("s_mov_b32 s21, s83"); A("s_mov_b32 s22, s84"); A("s_mov_b32 s23, s85")
    def tid():
        A("v_mbcnt_lo_u32_b32 v0, -1, 0"); A("v_mbcnt_hi_u32_b32 v0, -1, v0"); A("s_lshl_b32 s27, s83, 6"); A("v_add_u32 v0, s27, v0"); A("s_mov_b32 s2, s81")
    fpre, fmain = fft2(A, L("fft"), 81920, hb)
    A("s_cmp_eq_u32 s87, 160"); A("s_cselect_b32 s81, 191, s87"); A("s_cmp_eq_u32 s87, 191"); A("s_cselect_b32 s81, 160, s81")
    def dpoll(stage):
        ld = A.newlabel(L("dp")); lp = A.newlabel(L("dp"))
        A("s_cmp_lg_u32 s83, 0"); A("s_cbranch_scc1 %s" % ld)
        A("v_and_b32 v190, 3, v0"); A("v_lshlrev_b32 v190, 12, v190"); A("v_bfe_u32 v191, v0, 2, 1"); A("v_mul_u32_u24 v191, 1280, v191"); A("v_add_u32 v190, v190, v191")
        A("s_mov_b64 exec, 0xff")
        A("s_lshr_b32 s31, s34, 5"); A("s_lshl_b32 s31, s31, 7"); A("s_add_u32 s31, s31, %d" % WS_DFL); A("s_lshl_b32 s32, s101, 1"); A("s_add_u32 s32, s32, %d" % stage); A("s_mov_b32 s30, 0")
        A.label(lp)
        A("buffer_load_dword v191, v190, s[8:11], s31 offen sc1")
        A("s_add_u32 s30, s30, 1"); A("s_cmp_ge_u32 s30, %d" % (SPIN_MAX * 4)); A("s_cbranch_scc1 %s" % L("fail"))
        if stage == 1: A("s_sleep 4")
        A("s_waitcnt vmcnt(0)"); A("v_cmp_gt_u32 vcc, s32, v191"); A("s_cbranch_vccnz %s" % lp)
        A("s_mov_b64 exec, -1")
        A.label(ld)
        A("s_barrier")
        if stage == 2: ht2(8)
    A("s_cmp_ge_u32 s82, 2"); A("s_cbranch_scc1 %s" % L("tabok2"))
    A("s_cmp_lg_u32 s101, 0"); A("s_cbranch_scc1 %s" % L("tabok"))
    gbar(0, None, 2)
    A.label(L("tabok"))
    A("s_waitcnt vmcnt(0)"); A("s_barrier")
    for hf in range(2): idft_table(Seq(A), hf, "v0", "s83")
    A.label(L("tabok2"))
    def early():
        A("s_min_u32 s28, s89, 63"); A("s_lshl_b32 s29, s28, 12"); A("s_add_u32 s29, s29, %d" % WS_STAT); A("v_lshlrev_b32 v190, 3, v102")
        A("s_mov_b32 exec_hi, 0"); A("buffer_load_dword v191, v190, s[8:11], s29 offen sc1"); A("s_mov_b64 exec, 1")
        A("s_mul_i32 s28, s28, 40960"); A("s_lshl_b32 s29, s88, 7"); A("s_add_u32 s29, s29, s28"); A("buffer_load_dword v191, v190, s[16:19], s29 offen sc1")
        A("s_lshl_b32 s29, s88, 11"); A("s_add_u32 s29, s29, s28"); A("s_add_u32 s29, s29, %d" % (WS_XNF + XNF_LAYER)); A("buffer_load_dword v191, v190, s[8:11], s29 offen sc1")
        A("s_mul_i32 s28, s101, %d" % XNF_LAYER); A("s_min_u32 s29, s2, 159"); A("s_lshl_b32 s29, s29, 14"); A("s_add_u32 s28, s28, s29"); A("s_lshl_b32 s29, s83, 9"); A("s_add_u32 s28, s28, s29"); A("s_add_u32 s28, s28, %d" % WS_ZF)
        A("s_cmp_lt_u32 s2, 160"); A("s_cselect_b32 s28, s28, 0x%x" % OOB); A("buffer_load_dword v191, v190, s[8:11], s28 offen sc1")
        A("s_mov_b64 exec, -1")
    tid(); fpre()
    fmain(dpoll, early, P.get('DRY', 0)); ht2(9)
    hb(11); gbar(1); ht2(10); hb(12)
    A("s_cmp_ge_u32 s89, 64"); A("s_cbranch_scc1 %s" % L("noid"))
    A("v_mbcnt_lo_u32_b32 v0, -1, 0"); A("v_mbcnt_hi_u32_b32 v0, -1, v0"); A("s_mov_b32 s23, s85")
    idft(A, lambda x: L("idend") if (x == "end" and (P.get("HT") or P.get("HD"))) else L(x), lst, L("fail"), SPIN_MAX, hb)
    A.label(L("noid"))
    if P.get("HT") or P.get("HD"): A.label(L("idend"))
    restore(); ht(5)
    A("s_cmp_eq_u32 s101, 1"); A("s_cbranch_scc1 %s" % L("end"))
    A("s_mov_b32 s101, 1")
    A("v_mbcnt_lo_u32_b32 v0, -1, 0"); A("v_mbcnt_hi_u32_b32 v0, -1, v0"); A("v_lshlrev_b32 v0, 4, v0")
    A("s_waitcnt lgkmcnt(0)"); A("s_barrier")
    A("s_branch %s" % L("bulk"))
    flush_ool()
    A.label(L("fail"))
    A("s_mov_b64 exec, 1"); A("v_mov_b32 v12, 1"); A("v_mov_b32 v13, 48"); A("buffer_atomic_add v12, v13, s[12:15], 0 offen")
    A.label(L("end"))
    A("s_endpgm")
    return k
```

```python
import struct
from asmlib import *
from layout import *
from seq import *
from k_fft import Pool, pr, f2u

OOB = 0x10000000


def fft2(A, L, lds_base, hb):
    TW1, TW2, TW3 = 48, 62, 76
    WV = [92, 104]
    SC = "s[26:27]"
    XR = {}

    def setup():
        for TW, maskbits, N in ((TW1, 255, 2048), (TW2, 31, 256), (TW3, 3, 32)):
            A("v_and_b32 v3, %d, v0" % maskbits); A("v_cvt_f32_u32 v3, v3")
            for q in range(1, 8):
                A("v_mul_f32 v4, 0x%08x, v3" % f2u(-q / N))
                A("v_cos_f32 v%d, v4" % (TW + 2 * (q - 1))); A("v_sin_f32 v%d, v4" % (TW + 2 * (q - 1) + 1))
        A("v_lshlrev_b32 v3, 3, v0")
        A("v_lshrrev_b32 v4, 5, v0"); A("v_mul_u32_u24 v4, 2304, v4")
        A("v_add_u32 v3, %d, v3" % lds_base); A("v_add_u32 v4, %d, v4" % lds_base)
        A("v_and_b32 v5, 31, v0"); A("v_lshl_add_u32 v5, v5, 3, v4")
        A("v_bfe_u32 v6, v0, 2, 3"); A("v_mul_u32_u24 v6, 288, v6"); A("v_add_u32 v6, v6, v4")
        A("v_and_b32 v7, 3, v0"); A("v_lshl_add_u32 v100, v7, 6, v6")
        A("v_lshl_add_u32 v6, v7, 3, v6")
        A("v_and_b32 v101, 0xe0, v0"); A("v_and_b32 v7, 15, v0"); A("v_lshl_add_u32 v101, v7, 1, v101"); A("v_bfe_u32 v7, v0, 4, 1"); A("v_add_u32 v101, v101, v7"); A("v_lshlrev_b32 v101, 3, v101")

    def pre():
        A("v_lshlrev_b32 v1, 2, v0")
        A("v_and_b32 v102, 63, v0"); A("v_lshlrev_b32 v102, 4, v102"); A("v_lshlrev_b32 v2, 6, v0")

    def wload(S):
        for c in range(2):
            S("s_lshr_b32 s24, s%d, 1" % (34 + c)); S("s_lshl_b32 s24, s24, 14"); S("s_and_b32 s25, s%d, 1" % (34 + c)); S("s_lshl_b32 s25, s25, 4"); S("s_add_u32 s24, s24, s25"); S("s_add_u32 s24, s24, %d" % WS_WT)
            S("buffer_load_dwordx4 v[%d:%d], v2, s[8:11], s24 offen sc1" % (WV[c], WV[c] + 3))
            S("buffer_load_dwordx4 v[%d:%d], v2, s[8:11], s24 offen offset:32 sc1" % (WV[c] + 4, WV[c] + 7))

    def column(S, c):
        pool = Pool((8, 112)[c], 20)
        lo = 18432 * c
        def cadd(a, b):
            d = pool.get(); S("v_pk_add_f32 %s, %s, %s" % (pr(d), pr(a), pr(b))); return d
        def csub(a, b):
            d = pool.get(); S("v_pk_add_f32 %s, %s, %s neg_lo:[0,1] neg_hi:[0,1]" % (pr(d), pr(a), pr(b))); return d
        def cadd_rot(a, b, rot, nega=False):
            d = pool.get(); na = 1 if nega else 0
            mods = "neg_lo:[%d,1] neg_hi:[%d,0]" % (na, na) if rot > 0 else "neg_lo:[%d,0] neg_hi:[%d,1]" % (na, na)
            S("v_pk_add_f32 %s, %s, %s op_sel:[0,1] op_sel_hi:[1,0] %s" % (pr(d), pr(a), pr(b), mods)); return d
        def cfma(x, sign, a):
            d = pool.get(); n = 1 if sign < 0 else 0
            S("v_pk_fma_f32 %s, %s, %s, %s neg_lo:[%d,0,0] neg_hi:[%d,0,0]" % (pr(d), pr(x), SC, pr(a), n, n)); return d
        def cfma_rot(x, rot, a):
            d = pool.get()
            mods = "neg_lo:[1,0,0] neg_hi:[0,0,0]" if rot > 0 else "neg_lo:[0,0,0] neg_hi:[1,0,0]"
            S("v_pk_fma_f32 %s, %s, %s, %s op_sel:[1,0,0] op_sel_hi:[0,1,1] %s" % (pr(d), pr(x), SC, pr(a), mods)); return d
        def cmuls(xs, ws, conj):
            ts = []
            for x, w_ in zip(xs, ws):
                t = pool.get(); ts.append(t); S("v_pk_mul_f32 %s, %s, %s op_sel:[0,0] op_sel_hi:[1,0]" % (pr(t), pr(x), pr(w_)))
            mods = "neg_lo:[0,0,0] neg_hi:[1,0,0]" if conj else "neg_lo:[1,0,0] neg_hi:[0,0,0]"
            for x, w_, t in zip(xs, ws, ts):
                S("v_pk_fma_f32 %s, %s, %s, %s op_sel:[1,1,0] op_sel_hi:[0,1,1] %s" % (pr(t), pr(x), pr(w_), pr(t), mods)); pool.put(x)
            return ts
        def radix4(p, sgn):
            s0 = cadd(p[0], p[2]); s1 = csub(p[0], p[2]); s2 = cadd(p[1], p[3]); t = csub(p[1], p[3])
            pool.put(*p)
            r0 = cadd(s0, s2); r2 = csub(s0, s2); r1 = cadd_rot(s1, t, sgn); r3 = cadd_rot(s1, t, -sgn)
            pool.put(s0, s1, s2, t)
            return [r0, r1, r2, r3]
        def radix8(a, sgn):
            u = []; vv = []
            for j in range(4):
                u.append(cadd(a[j], a[j + 4])); vv.append(csub(a[j], a[j + 4])); pool.put(a[j], a[j + 4])
            ev = radix4(u, sgn)
            x1 = cadd_rot(vv[1], vv[1], sgn); x3 = cadd_rot(vv[3], vv[3], sgn, nega=True)
            s0 = cadd_rot(vv[0], vv[2], sgn); s1 = cadd_rot(vv[0], vv[2], -sgn)
            pool.put(*vv)
            s2 = cadd(x1, x3); t = csub(x1, x3); pool.put(x1, x3)
            r0 = cfma(s2, 1, s0); r2 = cfma(s2, -1, s0); r1 = cfma_rot(t, sgn, s1); r3 = cfma_rot(t, -sgn, s1)
            pool.put(s0, s1, s2, t)
            return [ev[0], r0, ev[1], r1, ev[2], r2, ev[3], r3]
        def twid(x, TW, conj): return [x[0]] + cmuls(x[1:], [TW + 2 * q for q in range(7)], conj)
        def wr(x, addr, offs):
            for r, o in zip(x, offs): S("ds_write_b64 v%d, %s offset:%d" % (addr, pr(r), o + lo))
            pool.put(*x)
        def rd(addr, offs):
            x = [pool.get() for _ in offs]
            for r, o in zip(x, offs): S("ds_read_b64 %s, v%d offset:%d" % (pr(r), addr, o + lo))
            return x
        x = [pool.get() for _ in range(8)]
        b0 = 20 + 16 * c
        for j in range(8):
            if j == 7: yield 0
            S("buffer_load_dword v%d, v1, s[8:11], s%d offen offset:%d sc1" % (x[j], b0 + (2 if j >= 4 else 0), (j % 4) * 1024))
            S("buffer_load_dword v%d, v1, s[8:11], s%d offen offset:%d sc1" % (x[j] + 1, b0 + (3 if j >= 4 else 1), (j % 4) * 1024))
        yield 0
        wr(twid(radix8(x, -1), TW1, False), 3, [q * 2304 for q in range(8)])
        yield 1
        x = rd(5, [j * 256 for j in range(8)])
        yield 0
        wr(twid(radix8(x, -1), TW2, False), 5, [q * 288 for q in range(8)]); x = rd(6, [j * 32 for j in range(8)])
        yield 0
        wr(twid(radix8(x, -1), TW3, False), 6, [q * 32 for q in range(8)]); x = rd(100, [e * 8 for e in range(8)])
        yield 0
        y = radix4(x[0:4], -1) + radix4(x[4:8], -1)
        z = []
        for hh in range(2):
            ws = [pool.get() for _ in range(4)]
            for e in range(4):
                S("v_lshlrev_b32 v%d, 16, v%d" % (ws[e], WV[c] + 4 * hh + e)); S("v_and_b32 v%d, 0xffff0000, v%d" % (ws[e] + 1, WV[c] + 4 * hh + e))
            z += cmuls(y[4 * hh:4 * hh + 4], ws, False); pool.put(*ws)
        wr(radix4(z[0:4], 1) + radix4(z[4:8], 1), 100, [e * 8 for e in range(8)]); x = rd(6, [q * 32 for q in range(8)])
        yield 0
        wr(radix8(twid(x, TW3, True), 1), 6, [j * 32 for j in range(8)]); x = rd(5, [q * 288 for q in range(8)])
        yield 0
        wr(radix8(twid(x, TW2, True), 1), 5, [j * 256 for j in range(8)])
        yield 1
        x = rd(3, [q * 2304 for q in range(8)])
        yield 0
        XR[c] = radix8(twid(x, TW1, True), 1)
        yield 0

    def main(dpoll, early, dry=0):
        A("s_cmp_lt_u32 s2, 161"); A("s_cbranch_scc1 %s_go" % L)
        early(); A("s_branch %s_end" % L)
        A.label("%s_go" % L)
        S = Seq(A)
        S("s_mov_b32 s26, 0x%08x" % f2u(0.7071067811865476)); S("s_mov_b32 s27, s26")
        S("s_lshl_b32 s34, s2, 1"); S("s_add_u32 s35, s34, 1")
        S("s_cmp_eq_u32 s2, 0"); S("s_cselect_b32 s35, 320, s35"); S("s_cmp_eq_u32 s2, 160"); S("s_cselect_b32 s34, 1, s34"); S("s_cselect_b32 s35, 1, s35")
        S("s_mul_i32 s21, s101, %d" % XD_LAYER); S("s_add_u32 s21, s21, %d" % WS_XD)
        S("s_lshl_b32 s20, s34, 13"); S("s_add_u32 s20, s20, s21"); S("s_lshl_b32 s36, s35, 13"); S("s_add_u32 s36, s36, s21")
        S("s_add_u32 s21, s20, %d" % (320 * 8192)); S("s_add_u32 s37, s36, %d" % (320 * 8192))
        S("s_cmp_eq_u32 s2, 0"); S("s_cselect_b32 s21, 0x%x, s21" % OOB); S("s_cselect_b32 s37, 0x%x, s37" % OOB)
        S("s_add_u32 s22, s20, 4096"); S("s_add_u32 s23, s21, 4096"); S("s_add_u32 s38, s36, 4096"); S("s_add_u32 s39, s37, 4096")
        if dry:
            S("s_mov_b32 s33, 0"); S("s_cmp_lt_u32 s82, %d" % dry); S("s_cbranch_scc1 %s_body" % L)
            A.label("%s_real" % L)
            S("s_mov_b32 s33, 1")
        dpoll(1)
        st = []
        for c in range(2):
            rec = []; cur = []
            for f in column(cur.append, c):
                rec.append((list(cur), f)); del cur[:]
            st.append(rec)
        def mix(comp, mem, gap):
            comp = list(comp)
            while comp or mem:
                if mem: S(mem.pop(0))
                for _ in range(gap if (mem and mem[0].startswith("ds_write")) else 2 if mem else len(comp)):
                    if comp: S(comp.pop(0))
        carry = []
        for n_ in range(len(st[0])):
            (ia, fa), (ib, fb) = st[0][n_], st[1][n_]
            ca = [t for t in ia if t.startswith("v_")]; ma = [t for t in ia if not t.startswith("v_")]
            cb = [t for t in ib if t.startswith("v_")]; mb = [t for t in ib if not t.startswith("v_")]
            mix(ca, carry, 3); mix(cb, ma, 3); carry = mb
            if fa or not ca: mix([], carry, 1)
            if n_ == 0: wload(S); early(); setup(); S("s_waitcnt vmcnt(0)"); dpoll(2)
            hb(n_)
            if n_ == 1 and dry: A.label("%s_body" % L)
            if fa: S.wait_lds_all(); S("s_barrier")
        if dry: S("s_cmp_eq_u32 s33, 0"); S("s_cbranch_scc1 %s_real" % L)
        S("s_mul_i32 s22, s101, %d" % XNF_LAYER); S("s_add_u32 s22, s22, %d" % WS_ZF); S("s_lshl_b32 s21, s2, 14"); S("s_add_u32 s21, s21, s22")
        a, b = XR[0], XR[1]
        S("s_cmp_eq_u32 s2, 0"); S("s_cbranch_scc1 %s_c0" % L)
        for j in range(8):
            S("v_cvt_pk_bf16_f32 v%d, v%d, v%d" % (a[j], a[j], a[j] + 1)); S("v_cvt_pk_bf16_f32 v%d, v%d, v%d" % (a[j] + 1, b[j], b[j] + 1))
        S("s_cmp_eq_u32 s2, 160"); S("s_cbranch_scc1 %s_c1" % L)
        for j in range(8):
            A("buffer_store_dwordx2 %s, v101, s[8:11], s21 offen offset:%d sc1" % (pr(a[j]), 2048 * (j % 2)))
            if j % 2: A("s_add_u32 s21, s21, 4096")
        A("s_branch %s_end" % L)
        A.label("%s_c0" % L)
        for j in range(8): A("v_cvt_pk_bf16_f32 v%d, v%d, v%d" % (a[j], a[j], b[j]))
        A("s_sub_u32 s22, s22, 4")
        A.label("%s_c1" % L)
        for j in range(8):
            A("buffer_store_dword v%d, v101, s[8:11], s22 offen offset:%d sc1" % (a[j], 4 + 2048 * (j % 2)))
            if j % 2: A("s_add_u32 s22, s22, 4096")
        A.label("%s_end" % L)
    return pre, main


def idft_table(S, half, lane, wave):
    S("s_mul_i32 s29, %s, 10240" % wave); S("s_add_u32 s29, s29, %s" % half); S("s_mul_i32 s28, s88, 81920"); S("s_add_u32 s28, s28, s29"); S("s_add_u32 s28, s28, %d" % WS_GT2)
    for f in range(10):
        if f % 4 == 0:
            if f: S("s_add_u32 s29, s29, 4096"); S("s_add_u32 s28, s28, 4096")
            S("s_mov_b32 m0, s29")
        S("buffer_load_dwordx4 %s, s[8:11], s28 offen offset:%d sc1 lds" % (lane, (f % 4) * 1024))


def idft(A, L, lst, fail, spin_max, hb):
    S = Seq(A)
    S("v_lshlrev_b32 v1, 4, v0"); S("v_lshrrev_b32 v3, 4, v0"); S("v_and_b32 v4, 15, v0")
    S("v_lshlrev_b32 v2, 15, v3"); S("v_lshl_add_u32 v2, v4, 4, v2")
    S("s_mul_i32 s24, s101, %d" % XNF_LAYER); S("s_lshl_b32 s25, s89, 8"); S("s_add_u32 s24, s24, s25"); S("s_add_u32 s24, s24, %d" % WS_ZF)
    NZ = 15
    ZR = lambda ks: 64 + 8 * (ks % NZ)
    def zload(ks):
        for hf in range(2):
            S("s_add_u32 s25, s24, %d" % ((8 * ks + hf) * 16384))
            S("buffer_load_dwordx4 %s, v2, s[8:11], s25 offen sc1" % r4(ZR(ks) + 4 * hf))
    N0 = 8
    for ks in range(N0): zload(ks)
    S("s_mul_i32 s29, s89, 40960")
    S("v_mul_u32_u24 v5, 1280, v4"); S("v_lshl_add_u32 v5, v3, 4, v5"); S("v_add_u32 v6, 40960, v1")
    S("s_lshl_b32 s31, s88, 7"); S("s_add_u32 s30, s29, s31"); S("s_add_u32 s31, s30, s80"); S("s_add_u32 s32, s31, 20480"); S("s_add_u32 s33, s30, 20480")
    BUF = [44, 48, 52, 56, 60]; ACC = [[12 + 4 * T for T in range(4)], [28 + 4 * T for T in range(4)]]
    RS = [[ZR(5), ZR(5) + 4], [ZR(6), ZR(6) + 4]]
    seq = [(ks, T) for ks in range(20) for T in range(4)]
    def trd(i):
        if i >= len(seq): return
        ks, T = seq[i]; off = (T * 20 + ks) * 1024
        S("ds_read_b128 %s, v%d offset:%d" % (r4(BUF[i % 5]), 1 if off < 40960 else 6, off % 40960))
    def fix(ks):
        for q in range(2): S("v_swap_b32 v%d, v%d" % (ZR(ks) + 2 + q, ZR(ks) + 4 + q))
    for i in range(4): trd(i)
    hb(13)
    fix(0)
    nxt = N0
    for i, (ks, T) in enumerate(seq):
        if i in (4, 40): hb({4: 14, 40: 15}[i])
        if T == 0 and ks % 2 == 1:
            for _ in range(4):
                if nxt < 20 and nxt - NZ < ks: zload(nxt); nxt += 1
        if i == 40:
            for mm in range(2):
                for pz in range(2): S("buffer_load_dwordx4 %s, v5, s[8:11], %s offen offset:%d sc1" % (r4(RS[mm][pz]), ("s31", "s32")[mm], 64 * pz))
        for m in range(2):
            a = ACC[m][T]
            S("v_mfma_f32_16x16x32_bf16 %s, %s, %s, %s" % (r4(a), r4(BUF[i % 5]), r4(ZR(ks) + 4 * m), "0" if ks == 0 else r4(a)))
            if m == 0: trd(i + 4)
            elif T == 2 and ks < 19: fix(ks + 1)
    assert nxt == 20
    for m in range(2):
        for pz in range(2):
            for q in range(4):
                r = RS[m][pz] + q; a = ACC[m][2 * pz] + 2 * q
                S("v_lshlrev_b32 v8, 16, v%d" % r); S("v_and_b32 v9, 0xffff0000, v%d" % r)
                S("v_pk_add_f32 %s, %s, v[8:9]" % (r2(a), r2(a))); S("v_cvt_pk_bf16_f32 v%d, v%d, v%d" % (r, a, a + 1))
    hb(16)
    A("s_cmp_eq_u32 s101, 1"); A("s_cbranch_scc1 %s" % L("id_out"))
    xs = [[ACC[m][0] + i for i in range(16)] for m in range(2)]
    ST = [124, 128]; TM = [132, 133]
    def xl(regs):
        for op in ("v_permlane16_swap_b32", "v_permlane32_swap_b32"):
            for r, t in zip(regs, TM): S("v_mov_b32 v%d, v%d" % (t, r))
            for r, t in zip(regs, TM): S("%s v%d, v%d" % (op, r, t))
            for r, t in zip(regs, TM): S("v_add_f32 v%d, v%d, v%d" % (r, r, t))
    for m in range(2):
        for pz in range(2):
            for q in range(4):
                r = RS[m][pz] + q; a = ACC[m][2 * pz] + 2 * q
                S("v_lshlrev_b32 v%d, 16, v%d" % (a, r)); S("v_and_b32 v%d, 0xffff0000, v%d" % (a + 1, r))
    for m in range(2):
        S("v_pk_add_f32 %s, %s, %s" % (r2(ST[m]), r2(xs[m][0]), r2(xs[m][2])))
    for i in range(4, 16, 2):
        for m in range(2): S("v_pk_add_f32 %s, %s, %s" % (r2(ST[m]), r2(ST[m]), r2(xs[m][i])))
    for m in range(2): S("v_add_f32 v%d, v%d, v%d" % (ST[m], ST[m], ST[m] + 1))
    xl(ST)
    for m in range(2): S("v_mul_f32 v%d, 0x%08x, v%d" % (ST[m], f2u(1 / 64), ST[m])); S("v_mov_b64 %s, 0" % r2(ST[m] + 2))
    for i in range(0, 16, 2):
        for m in range(2):
            S("v_pk_add_f32 %s, %s, %s op_sel_hi:[1,0] neg_lo:[0,1] neg_hi:[0,1]" % (r2(8 + 2 * m), r2(xs[m][i]), r2(ST[m])))
        for m in range(2):
            S("v_pk_fma_f32 %s, %s, %s, %s" % (r2(ST[m] + 2), r2(8 + 2 * m), r2(8 + 2 * m), r2(ST[m] + 2)))
    for m in range(2): S("v_add_f32 v%d, v%d, v%d" % (ST[m] + 1, ST[m] + 2, ST[m] + 3))
    xl([ST[0] + 1, ST[1] + 1])
    for m in range(2): S("v_min_u32 v%d, -2, v%d" % (ST[m], ST[m])); S("v_min_u32 v%d, -2, v%d" % (ST[m] + 1, ST[m] + 1))
    S("s_lshl_b32 s24, s89, 12"); S("s_add_u32 s24, s24, %d" % WS_STAT); S("s_lshl_b32 s25, s88, 3"); S("s_add_u32 s25, s25, s24")
    S("v_lshlrev_b32 v7, 7, v4"); S("v_lshl_add_u32 v2, v3, 5, v7")
    S("s_mov_b64 exec, 0xffff")
    lst(["buffer_store_dwordx2 %s, v7, s[8:11], s25 offen offset:%d" % (r2(ST[m]), 2048 * m) for m in range(2)], S)
    S("s_mov_b64 exec, -1")
    G = [136, 144]
    S("v_cmp_gt_u32_e64 s[36:37], 3, v3"); S("v_cmp_gt_u32_e64 s[38:39], 2, v3"); S("s_mov_b32 s34, 0")
    hb(17)
    A.label(L("id_poll"))
    S = Seq(A)
    for m in range(2):
        for hf in range(2): S("buffer_load_dwordx4 %s, v2, s[8:11], s24 offen offset:%d sc1" % (r4(G[m] + 4 * hf), 2048 * m + 16 * hf))
    S("s_add_u32 s34, s34, 1"); S("s_cmp_ge_u32 s34, %d" % spin_max); S("s_cbranch_scc1 %s" % fail)
    for m in range(2):
        for i in range(8): S("v_cndmask_b32_e64 v%d, 0, v%d, s[%d:%d]" % (G[m] + i, G[m] + i, 36 + 2 * (i // 4), 37 + 2 * (i // 4)))
    S("v_max3_u32 v8, v%d, v%d, v%d" % (G[0], G[0] + 1, G[0] + 2))
    for i in range(3, 15, 2): S("v_max3_u32 v8, v8, v%d, v%d" % (G[0] + i, G[0] + i + 1))
    S("v_max_u32 v8, v8, v%d" % (G[0] + 15)); S("v_cmp_eq_u32 vcc, -1, v8"); S("s_cbranch_vccnz %s" % L("id_poll"))
    hb(18)
    for m in range(2):
        S("v_add_f32 v%d, v%d, v%d" % (ST[m], G[m], G[m] + 2)); S("v_add_f32 v%d, v%d, v%d" % (ST[m] + 1, G[m] + 4, G[m] + 6)); S("v_add_f32 v%d, v%d, v%d" % (ST[m], ST[m], ST[m] + 1))
    xl(ST)
    for m in range(2):
        S("v_mul_f32 v%d, 0x%08x, v%d" % (ST[m], f2u(0.1), ST[m]))
        S("v_add_f32 v%d, v%d, v%d" % (ST[m] + 1, G[m] + 1, G[m] + 3)); S("v_add_f32 v%d, v%d, v%d" % (ST[m] + 2, G[m] + 5, G[m] + 7)); S("v_add_f32 v%d, v%d, v%d" % (ST[m] + 1, ST[m] + 1, ST[m] + 2))
        for e in range(4):
            S("v_sub_f32 v8, v%d, v%d" % (G[m] + 2 * e, ST[m])); S("v_cndmask_b32_e64 v8, 0, v8, s[%d:%d]" % (36 + 2 * (e // 2), 37 + 2 * (e // 2)))
            S("v_mul_f32 v9, 0x42800000, v8"); S("v_fmac_f32 v%d, v8, v9" % (ST[m] + 1))
    xl([ST[0] + 1, ST[1] + 1])
    for m in range(2):
        S("v_mov_b32 v%d, 0x3727c5ac" % (ST[m] + 2)); S("v_fmac_f32 v%d, 0x3acccccd, v%d" % (ST[m] + 2, ST[m] + 1)); S("v_rsq_f32 v%d, v%d" % (ST[m] + 2, ST[m] + 2))
    S("s_lshl_b32 s25, s88, 11"); S("s_add_u32 s25, s25, s29"); S("s_add_u32 s25, s25, %d" % (WS_XNF + XNF_LAYER)); S("s_add_u32 s24, s25, 20480")
    for m in range(2):
        for i in range(0, 16, 2):
            S("v_pk_add_f32 %s, %s, %s op_sel_hi:[1,0] neg_lo:[0,1] neg_hi:[0,1]" % (r2(xs[m][i]), r2(xs[m][i]), r2(ST[m])))
        for i in range(0, 16, 2):
            S("v_pk_mul_f32 %s, %s, %s op_sel_hi:[1,0]" % (r2(xs[m][i]), r2(xs[m][i]), r2(ST[m] + 2)))
        for i in range(8): S("v_cvt_pk_bf16_f32 v%d, v%d, v%d" % (xs[m][i], xs[m][2 * i], xs[m][2 * i + 1]))
        for pz in range(2): S("buffer_store_dwordx4 %s, v1, s[8:11], %s offen offset:%d sc1" % (r4(xs[m][4 * pz]), ("s25", "s24")[m], 1024 * pz))
    hb(19)
    A.label(L("id_out"))
    for m in range(2):
        for pz in range(2): A("buffer_store_dwordx4 %s, v5, s[16:19], %s offen offset:%d sc1" % (r4(RS[m][pz]), ("s30", "s33")[m], 64 * pz))
    A("s_cmp_eq_u32 s101, 1"); A("s_cbranch_scc1 %s" % L("end"))
    A("s_lshl_b32 s24, s89, 7"); A("s_lshl_b32 s25, s88, 2"); A("s_add_u32 s24, s24, s25"); A("s_add_u32 s24, s24, %d" % (WS_XFL + 8192)); A("v_mov_b32 v8, 1")
    A("s_waitcnt vmcnt(0)"); A("s_mov_b64 exec, 1"); A("buffer_store_dword v8, v1, s[8:11], s24 offen sc1"); A("s_mov_b64 exec, -1")
    hb(20, True)
```

```python
import struct, copy
from asmlib import *
from layout import *
from seq import *


def f2u(x):
    return struct.unpack('<I', struct.pack('<f', x))[0]


C1 = (128 ** -0.5) * 1.4426950408889634
SPIN_MAX = 60000
OOB = 0x10000000

L_K = 0
L_MR = 8192
L_EV = L_MR
L_ML = L_MR + 5120
L_EQ = L_ML + 5120
L_EK = L_EQ + 2304
L_EO = L_ML
L_JUNK = L_EK + 2304
L_FL = L_JUNK + 256
L_W = 24576
NLW = 17
LW_WAVE = NLW * 2048
assert L_FL + 64 <= L_W and L_W + 4 * LW_WAVE <= 163840

L16, IDX, EW, ER, OWA, VW, MRA, PSB, RL, PA8, T0, T1 = range(12)
KRA = L16
AV, AQ, AK = 12, 20, 28
M = [36 + 4 * t for t in range(5)]
LB = [56, 64]
X0, X1 = 72, 76
VT = [80, 84]
WR0 = 88

MATS = {'q': 0, 'k': 1, 'v': 2}
ACC = {'q': AQ, 'k': AK, 'v': AV}
import sys
NV = ([int(a_[3:]) for a_ in sys.argv if a_.startswith("NV=")] + [2])[0]
VL = ([int(a_[3:]) for a_ in sys.argv if a_.startswith("VL=")] + [0])[0]
VT_ = list(range(5 - NV, 5)) if (VL and NV >= 2) else list(range(NV))
SEQ = [(m, tl, 0, t) for t in range(5) for m in ('qkv' if t in VT_ else 'qk') for tl in range(2)] + [(m, tl, 1, t) for m in 'qkv' for t in range(5) for tl in range(2)] + \
      [('v', tl, 0, t) for t in range(5) if t not in VT_ for tl in range(2)]
NLOC = 20 + 2 * NV
LDSI = [0, 1] + [i for i in range(60) if i % 3 == 2 and 5 <= i <= 47]
assert len(LDSI) == NLW
_regs = [WR0 + 8 * i for i in range(21)] + [256 + 8 * i for i in range(32)]
WREG = {}
for i in range(60):
    if i not in LDSI: WREG[i] = _regs.pop()
WO = {(T, tp): _regs.pop() for T in range(5) for tp in range(2)}
assert not _regs

FL_ = {0: [], 1: [], 2: [0, 1, 2], 3: [3, 4]}
FR_ = {0: [0, 1], 1: [2], 2: [3], 3: [4]}


def chain_load(A):
    A("s_mul_i32 s29, s22, %d" % WQKP_H); A("s_mul_i32 s28, s21, %d" % WQKP_W); A("s_add_u32 s29, s29, s28")
    A("s_mul_i32 s28, s20, 10240"); A("s_add_u32 s30, s29, s28"); A("s_sub_u32 s31, s29, s28"); A("s_add_u32 s31, s31, 10240")
    A("s_mul_i32 s26, s21, %d" % LW_WAVE); A("s_add_u32 s26, s26, %d" % L_W)
    for i, (m, tl, rem, t) in enumerate(SEQ):
        off = WS_WQKP + MATS[m] * 40960 + tl * 20480 + t * 2048
        A("s_add_u32 s27, s%d, %d" % (31 if rem else 30, off))
        if i in LDSI:
            A("s_add_u32 m0, s26, %d" % (LDSI.index(i) * 2048)); A("s_nop 0")
            for hf in range(2): A("buffer_load_dwordx4 v%d, s[8:11], s27 offen offset:%d lds" % (L16, hf * 1024))
        else:
            for hf in range(2): A("buffer_load_dwordx4 %s, v%d, s[8:11], s27 offen offset:%d" % (ureg(WREG[i] + 4 * hf, 4), L16, hf * 1024))
    A("s_lshl_b32 s28, s20, 2"); A("s_add_u32 s28, s28, s21"); A("s_mul_i32 s28, s28, 20480"); A("s_mul_i32 s29, s22, 163840"); A("s_add_u32 s29, s29, s28")
    for T in range(5):
        A("s_add_u32 s27, s29, %d" % (WS_WOC + T * 4096))
        for u in range(4): A("buffer_load_dwordx4 %s, v%d, s[8:11], s27 offen offset:%d" % (ureg(WO[T, u // 2] + 4 * (u % 2), 4), L16, u * 1024))


def chain_body(A, P, L, ht):
    g, r, i_, p, a, b = range(36, 42)
    A("v_lshrrev_b32 v%d, 8, v0" % g); A("v_bfe_u32 v%d, v0, 4, 4" % r); A("v_bfe_u32 v%d, v0, 4, 3" % i_); A("v_bfe_u32 v%d, v0, 7, 1" % p)
    A("s_mov_b32 s36, 0x00ff00ff"); A("s_mov_b32 s37, 0x00ff00ff"); A("s_not_b64 s[18:19], s[36:37]")
    A("v_mov_b32 v%d, 0x4444" % IDX); A("v_mov_b32 v%d, 0xeeee" % a); A("v_cndmask_b32_e64 v%d, v%d, v%d, s[18:19]" % (IDX, IDX, a))
    A("v_and_b32 v%d, 1, v%d" % (a, g)); A("v_lshlrev_b32 v%d, 2, v%d" % (a, a)); A("v_lshrrev_b32 v%d, 1, v%d" % (b, g)); A("v_add_u32 v%d, v%d, v%d" % (a, a, b))
    A("v_mul_u32_u24 v%d, 288, v%d" % (a, a)); A("v_lshl_add_u32 v%d, v%d, 2, v%d" % (a, r, a)); A("s_lshl_b32 s27, s21, 6"); A("v_add_u32 v%d, s27, v%d" % (EW, a))
    A("v_mul_u32_u24 v%d, 288, v%d" % (a, i_)); A("v_lshl_add_u32 v%d, v%d, 4, v%d" % (ER, g, a))
    A("s_lshr_b32 s27, s21, 1"); A("s_lshl_b32 s27, s27, 10"); A("s_and_b32 s28, s21, 1"); A("s_lshl_b32 s28, s28, 3"); A("s_add_u32 s27, s27, s28"); A("s_add_u32 s27, s27, %d" % L_EO)
    A("v_and_b32 v%d, 0x37f, v0" % a); A("v_add_u32 v%d, s27, v%d" % (OWA, a))
    A("s_mul_i32 s27, s21, %d" % LW_WAVE); A("s_add_u32 s27, s27, %d" % L_W); A("v_add_u32 v%d, s27, v0" % VW)
    A("v_and_b32 v%d, 0x200, v0" % MRA)
    for src, dst in ((6, 8), (4, 7), (5, 6), (8, 5), (7, 4)):
        A("v_bfe_u32 v%d, v0, %d, 1" % (a, src)); A("v_lshl_or_b32 v%d, v%d, %d, v%d" % (MRA, a, dst, MRA))
    A("s_lshl_b32 s27, s21, 13"); A("s_lshl_b32 s28, s22, 5"); A("s_add_u32 s27, s27, s28"); A("s_add_u32 s27, s27, %d" % PART_T4)
    A("v_lshrrev_b32 v%d, 7, v0" % a); A("v_lshlrev_b32 v%d, 10, v%d" % (a, a)); A("v_lshl_add_u32 v%d, v%d, 2, v%d" % (a, i_, a)); A("v_add_u32 v%d, s27, v%d" % (PSB, a))
    A("v_lshrrev_b32 v%d, 7, v0" % a); A("v_mul_u32_u24 v%d, %d, v%d" % (a, PART_H, a)); A("v_lshl_add_u32 v%d, v%d, 4, v%d" % (RL, i_, a))
    A("v_lshlrev_b32 v%d, 3, v0" % PA8)
    A("s_mul_i32 s34, s20, %d" % PART_X); A("s_add_u32 s34, s34, %d" % WS_PART)
    A("s_lshl_b32 s35, s21, 10"); A("s_mul_i32 s27, s22, %d" % PART_H); A("s_add_u32 s35, s35, s27")
    A("s_and_b32 s27, s22, 1"); A("s_bfe_u32 s28, s22, 0x10001"); A("s_bfe_u32 s29, s22, 0x10002")
    A("s_lshl_b32 s30, s27, 2"); A("s_lshl_b32 s31, s28, 1"); A("s_or_b32 s30, s30, s31"); A("s_or_b32 s30, s30, s29"); A("s_and_b32 s31, s22, 0x18"); A("s_or_b32 s30, s30, s31")
    A("s_lshl_b32 s33, s30, 7"); A("s_lshl_b32 s32, s22, 7")
    A("s_cmp_eq_u32 s21, 0"); A("s_cbranch_scc1 %s" % L("c_r0"))
    A("s_lshl_b32 s32, s22, 10"); A("s_add_u32 s32, s32, %d" % PART_T4)
    A("s_lshl_b32 s33, s27, 4"); A("s_lshl_b32 s28, s28, 8"); A("s_or_b32 s33, s33, s28"); A("s_lshl_b32 s29, s29, 7"); A("s_or_b32 s33, s33, s29")
    A("s_bfe_u32 s28, s22, 0x10003"); A("s_lshl_b32 s28, s28, 5"); A("s_or_b32 s33, s33, s28"); A("s_bfe_u32 s28, s22, 0x10004"); A("s_lshl_b32 s28, s28, 9"); A("s_or_b32 s33, s33, s28")
    A("s_add_u32 s33, s33, 4096")
    A.label(L("c_r0"))
    A("s_mul_i32 s41, s20, %d" % (4 * ML_S)); A("s_add_u32 s41, s41, %d" % (WS_ML + ML_O))
    A("s_lshl_b32 s46, s20, 17"); A("s_add_u32 s46, s46, %d" % WS_MR); A("s_add_u32 s46, s46, s25"); A("s_xor_b32 s47, s46, 0x20000")
    A("s_mov_b32 s38, 0x00ff00ff"); A("s_mov_b32 s39, 0"); A("s_mov_b32 s62, 0x00030003"); A("s_mov_b32 s63, 0x00030003")
    A("s_mov_b32 s40, 0x%08x" % f2u(C1)); A("s_movk_i32 s45, 0x3f80")
    A("s_mov_b32 s68, 0x%08x" % f2u(2.0 ** -24)); A("s_mov_b32 s69, 0x%08x" % (f2u(2.0 ** 24) - f2u(2.0 ** -24)))
    A("s_lshl_b32 s51, s22, 7"); A("s_add_u32 s52, s51, %d" % WS_CHFL); A("s_lshl_b32 s51, s22, 8"); A("s_add_u32 s51, s51, %d" % WS_KVFL)
    A("s_mov_b32 s24, 0x3f803f80"); A("s_mov_b32 s25, 0x3f803f80"); A("s_mov_b32 s16, 0x3f003f00"); A("s_mov_b32 s17, 0x3f003f00")
    A("s_lshl_b32 s53, s22, 13"); A("s_add_u32 s53, s53, %d" % WS_KM)
    A("s_lshl_b32 s27, s20, 12"); A("s_add_u32 s53, s53, s27"); A("s_lshl_b32 s27, s20, 2"); A("s_add_u32 s52, s52, s27")
    A("s_cmp_eq_u32 s20, 0"); A("s_cselect_b64 s[42:43], -1, 0"); A("s_cselect_b64 s[66:67], -1, 0")
    A("s_mov_b32 s44, 0"); A("s_mov_b32 s54, 0"); A("s_mov_b32 s71, 0"); A("s_mov_b32 s4, 0x%x" % OOB); A("s_mov_b32 s60, 0x%x" % OOB); A("s_mov_b32 s64, 0x%x" % OOB); A("s_mov_b32 s65, 0x%x" % OOB)
    if P.get("PT", 1):
        A("s_mul_i32 s27, s21, %d" % PART_SLOT); A("s_add_u32 s27, s27, s34"); A("s_mul_i32 s28, s22, %d" % PART_H); A("s_add_u32 s28, s28, s27")
        A("s_mov_b32 exec_hi, 0"); A("buffer_load_dword v%d, v%d, s[8:11], s28 offen sc1" % (T0, PA8))
        A("s_lshl_b32 s28, s22, 10"); A("s_add_u32 s28, s28, s27"); A("s_add_u32 s28, s28, %d" % PART_T4); A("s_mov_b64 exec, 0xff"); A("buffer_load_dword v%d, v%d, s[8:11], s28 offen sc1" % (T0, PA8))
        A("s_mul_i32 s27, s21, %d" % ML_S); A("s_add_u32 s27, s27, s41"); A("s_mul_i32 s28, s22, 160"); A("s_add_u32 s28, s28, s27"); A("s_mov_b64 exec, 3"); A("buffer_load_dword v%d, v%d, s[8:11], s28 offen sc1" % (T0, PA8))
        A("s_mov_b64 exec, -1")
    A("s_waitcnt vmcnt(0) lgkmcnt(0)"); A("s_barrier")
    ht(1)
    A("s_cmp_lg_u32 s23, 0"); A("s_cbranch_scc1 %s" % L("c_slow"))
    for md in (0, 1):
        if md: A.label(L("c_slow"))
        for w in range(1, 4):
            A("s_cmp_eq_u32 s21, %d" % w); A("s_cbranch_scc1 %s" % L("c%d_%d_layer" % (md, w)))
        for w in range(4): chain_wave(A, P, L, ht, w, md)


def chain_wave(A, P, L0, ht, w, md):
    L = lambda x: L0("c%d_%d_%s" % (md, w, x))
    sc = " sc1" if md else ""
    ool = []
    ST = P.get("STAMP") and not md
    TR = ST and "TS" in P
    SOLO = P.get("SOLO")

    def stamp(S, i):
        if ST and not TR: S("%s s[%d:%d]" % ("s_memrealtime" if P.get("RAW") else "s_memtime", 72 + 2 * i, 73 + 2 * i))
    def hook(n, t):
        k_, r_ = divmod(n - P["TS"], P.get("TD", 16))
        if r_ == 0 and 0 <= k_ <= 8: A("s_memtime s[%d:%d]" % (72 + 2 * k_, 73 + 2 * k_)); S.tailv = 0
        if P.get("LIST") == w + 1: print(n, estimate(A.lines[top0:]), t)
    def br(t): return "s_nop 0" if SOLO else t

    def smf(S, acc, a_, b_): S("v_smfmac_f32_16x16x64_bf16 %s, %s, %s, v%d" % (r4(acc), r4(a_), ureg(b_, 8), IDX))
    def mf32(S, acc, a_, b_, c): S("v_mfma_f32_16x16x32_bf16 %s, %s, %s, %s" % (r4(acc), ureg(a_, 4), ureg(b_, 4), c if isinstance(c, str) else r4(c)))
    def mf16(S, acc, a_, b_, c): S("v_mfma_f32_16x16x16_bf16 %s, %s, %s, %s" % (r4(acc), r2(a_), r2(b_), c if isinstance(c, str) else r4(c)))
    holds = {}
    def rd(S, dst, areg, off):
        holds[dst] = (areg, off)
        return S("ds_read_b128 %s, v%d offset:%d" % (r4(dst), areg, off))
    def zero(S, q): S("v_mov_b64 %s, 0" % r2(q)); S("v_mov_b64 %s, 0" % r2(q + 2))
    def zitems(S, q): return [lambda r=r: S("v_mov_b64 %s, 0" % r2(r)) for r in (q, q + 2)]
    def cvt(d, a_, b_): return "v_cvt_pk_bf16_f32 v%d, v%d, v%d" % (d, a_, b_)
    def ror(d, s_): return "v_mov_b32_dpp v%d, v%d row_ror:8 row_mask:0xf bank_mask:0xf" % (d, s_)
    def newseq():
        S = Seq(A); S.warm = VW; S.mst = P.get("MST", 3); S.hoist = True; return S
    def idle(S, n):
        while n > 0:
            S("v_mov_b32 v%d, v%d" % (VW, VW)); n -= 1
            if n >= 2: S("s_nop 1"); n -= 2

    def pub_st(E):
        E("buffer_store_dwordx4 %s, v%d, s[8:11], s4 offen offset:%d sc1" % (r4(X1), L16, 1024 * w)); E("s_mov_b32 s4, 0x%x" % OOB)
    def pub_addr(E): E("s_lshl_b32 s4, s44, 18"); E("s_add_u32 s4, s4, s53")

    def dma(S, fr, sa, lds, fl=" sc1"):
        tok = None
        for i, f in enumerate(fr):
            blk = f // 4
            if i == 0 or f % 4 == 0:
                S("s_mov_b32 m0, %d" % (lds + blk * 4096))
                if blk: S("s_add_u32 s59, %s, %d" % (sa, blk * 4096))
            tok = S("buffer_load_dwordx4 v%d, s[8:11], %s offen offset:%d%s lds" % (L16, "s59" if blk else sa, 1024 * (f % 4), fl))
        return tok

    def lw_read(S, n):
        b = LB[n % 2]
        return [lambda: rd(S, b, VW, n * 2048), lambda: rd(S, b + 4, VW, n * 2048 + 1024)]

    def drain(fl):
        while fl: fl.pop(0)()

    def kv_addr(S, dst, ds, extra=0):
        S("s_and_b32 %s, s44, 63" % dst)
        if ds: S("s_add_u32 %s, %s, %d" % (dst, dst, ds)); S("s_min_u32 %s, %s, 63" % (dst, dst))
        S("s_lshl_b32 %s, %s, 18" % (dst, dst)); S("s_add_u32 %s, %s, s50" % (dst, dst))
        if extra: S("s_add_u32 %s, %s, %d" % (dst, dst, extra))

    def kv_prep(S, d):
        kv_addr(S, "s26", d, 2048 * w); S("s_add_u32 s3, s26, %d" % KV_MAT)
    def k_fetch(S):
        S("s_mov_b32 m0, %d" % (L_K + 2048 * w))
        for j in range(2): S("buffer_load_dwordx4 v%d, s[8:11], s26 offen offset:%d sc1 lds" % (L16, 1024 * j))
    def vt_fetch(S):
        for j in range(2): S("buffer_load_dwordx4 %s, v%d, s[8:11], s3 offen offset:%d sc1" % (r4(VT[j]), L16, 1024 * j))

    def post(S, acc, off, scale=False):
        it = []
        for tl in range(2):
            b = acc + 4 * tl
            it += ["v_permlane32_swap_b32 v%d, v%d" % (b, b + 1), "v_permlane32_swap_b32 v%d, v%d" % (b + 2, b + 3)]
        for tl in range(2):
            b = acc + 4 * tl
            it += ["v_add_f32 v%d, v%d, v%d" % (b, b, b + 1), "v_add_f32 v%d, v%d, v%d" % (b + 2, b + 2, b + 3)]
        if scale: it += ["v_mul_f32 v%d, s40, v%d" % (r, r) for r in (acc, acc + 4, acc + 2, acc + 6)]
        it += [cvt(acc, acc, acc + 4), cvt(acc + 1, acc + 2, acc + 6)]
        wr = ["ds_write_b32 v%d, v%d offset:%d" % (EW, acc, off), "ds_write_b32 v%d, v%d offset:%d" % (EW, acc + 1, off + 576)]
        return [lambda t=t: S(t) for t in it], [lambda t=t: S(t) for t in wr]

    def spin_count(S_, lim=SPIN_MAX):
        S_("s_add_u32 s30, s30, 1"); S_("s_cmp_ge_u32 s30, %d" % lim); S_("s_cbranch_scc1 %s" % L0("fail"))

    def kv_wait(S, lab, need):
        S("s_add_u32 s27, s44, %d" % need); S("s_or_b32 s28, s44, 63"); S("s_add_u32 s28, s28, 1"); S("s_min_u32 s27, s27, s28")
        S("s_cmp_lt_u32 s54, s27"); S("s_cbranch_scc1 %s" % L(lab))
        S.label(L(lab + "_r"))
        def blk():
            A.label(L(lab))
            A("s_mov_b32 s30, 0")
            A.label(L(lab + "_l"))
            A("s_waitcnt lgkmcnt(0)"); A("s_mov_b64 exec, 3")
            A("buffer_load_dword v%d, v%d, s[8:11], s51 offen sc1" % (T1, PA8)); A("s_waitcnt vmcnt(0)"); A("s_mov_b64 exec, -1")
            A("v_readlane_b32 s54, v%d, 0" % T1); A("v_readlane_b32 s28, v%d, 1" % T1); A("s_nop 3"); A("s_min_u32 s54, s54, s28")
            A("s_cmp_ge_u32 s54, s27"); A("s_cbranch_scc1 %s" % L(lab + "_r"))
            A("s_sleep 1"); spin_count(A); A("s_branch %s" % L(lab + "_l"))
        ool.append(blk)

    def step_addr(S):
        S("s_and_b32 s55, s44, 3"); S("s_mul_i32 s55, s55, %d" % PART_SLOT); S("s_add_u32 s55, s55, s34"); S("s_add_u32 s58, s55, s35"); S("s_and_b32 s57, s44, 63")
        if w < 2: S("s_add_u32 s43, s55, s32")
        if w == 0: S("s_add_u32 s61, s43, %d" % (8 * PART_H)); S("s_add_u32 s100, s43, %d" % (16 * PART_H)); S("s_add_u32 s101, s43, %d" % (24 * PART_H))
        if w == 1: S("s_sub_u32 s27, s57, 1"); S("s_max_i32 s27, s27, 0"); S("s_lshl_b64 s[100:101], 1, s27"); S("s_lshl_b32 s27, s27, 7"); S("s_sub_u32 s61, s52, s27")
        if w >= 2: S("s_sub_u32 s61, %s, %d" % ("s3" if w == 2 else "s26", 2048 * w))

    def ready(S):
        for n in range(2): drain(lw_read(S, n))
        for q in (AV, AV + 4, AQ, AQ + 4, AK, AK + 4): zero(S, q)

    MCW = P.get("MCW", 0)
    CL3 = P.get("CLP", 3) == 3
    CLP = 0 if CL3 else P.get("CLP", 3)
    cw = w - 2 if CLP else w
    Q = M[4] if (CLP and w >= 2) else X0
    def clear_prep(S):
        S("v_mov_b64 %s, -1" % r2(Q)); S("v_mov_b64 %s, -1" % r2(Q + 2))
        S("s_add_u32 s28, s44, 3"); S("s_and_b32 s29, s28, 3"); S("s_mul_i32 s31, s22, 160")
        if cw in (0, 1):
            S("s_mul_i32 s28, s29, %d" % PART_SLOT); S("s_add_u32 s28, s28, s34"); S("s_add_u32 s64, s28, s35")
            if CLP: S("s_sub_u32 s64, s64, 2048")
        if cw == 0: S("s_mul_i32 s65, s29, %d" % ML_S); S("s_add_u32 s65, s65, s41"); S("s_add_u32 s65, s65, s31")
        if cw == 1: S("s_lshl_b32 s65, s22, 10"); S("s_add_u32 s65, s65, s28"); S("s_add_u32 s65, s65, %d" % PART_T4)
        if w == 0: S("s_lshl_b32 s60, s29, 15"); S("s_add_u32 s60, s60, s47"); S("s_add_u32 s60, s60, s31")
    def clears(S):
        for j in range(cw, cw + 2): S("buffer_store_dwordx4 %s, v%d, s[8:11], s64 offen offset:%d%s" % (r4(Q), L16, j * 1024, sc))
        if cw == 0: S("s_mov_b64 exec, 0x3ff")
        S("buffer_store_dwordx4 %s, v%d, s[8:11], s65 offen%s" % (r4(Q), L16, sc))
        if cw == 0: S("s_mov_b64 exec, -1")
        S("s_mov_b32 s65, 0x%x" % OOB); S("s_mov_b32 s64, 0x%x" % OOB)
    def m_clear(S):
        S("s_mov_b64 exec, 0x3ff")
        S("buffer_store_dwordx4 %s, v%d, s[8:11], s60 offen sc1" % (r4(Q), L16))
        S("s_mov_b64 exec, -1"); S("s_mov_b32 s60, 0x%x" % OOB)

    def window(S):
        p0 = pw0; red = w < 2; tag = "w"
        FLn, RG, U1, LD, PG, KD, CD = P.get("FL", 48), P.get("RG", 24), P.get("U1", 8), P.get("LD", 56), P.get("PG2", 12), P.get("KD", 84), P.get("CD", 0)
        NS, NA, CP = P.get("NS", 2), P.get("NA", 3), P.get("CP", 0)
        nxt = ["s_add_u32 s27, s44, 1", "s_and_b32 s27, s27, 3", "s_mul_i32 s48, s27, %d" % ML_S, "s_add_u32 s48, s48, s41", "s_lshl_b32 s27, s27, 15", "s_add_u32 s49, s27, s47"]
        if not red:
            for t_ in nxt: S(t_)
        if red:
            NL = 4 if w == 0 else 1
            SETS = [[AV, AV + 4, AQ, AQ + 4], [M[1], M[2], M[3], M[4]], [LB[0], LB[0] + 4, LB[1], LB[1] + 4]][:NS] if w == 0 else [[AV + 4 * i] for i in range(NS)]
            SEL, D, X = X0, AK, AK + 4
            su = []
            if w == 0:
                su += ["v_and_b32 v%d, 16, v%d" % (X, L16), "v_bfe_u32 v%d, v%d, 5, 2" % (X + 1, L16)]
            else:
                su += ["v_bfe_u32 v%d, v%d, 4, 1" % (X + 2, L16), "v_bfe_u32 v%d, v%d, 7, 1" % (X + 1, L16), "v_lshl_add_u32 v%d, v%d, 1, v%d" % (X + 1, X + 1, X + 2),
                       "v_bfe_u32 v%d, v%d, 6, 1" % (X, L16), "v_lshlrev_b32 v%d, 4, v%d" % (X, X)]
            su += ["v_lshlrev_b32_e64 v%d, v%d, s45" % (X, X)]
            MK = ("s[64:65]", "vcc")
            su += ["v_cmp_eq_u32_e64 %s, %d, v%d" % (MK[q & 1], q, X + 1) for q in range(2)] + nxt[:2]
            su += ["v_cndmask_b32_e64 v%d, 0, v%d, %s" % (SEL + q, X, MK[q & 1]) for q in range(2)]
            su += ["v_cmp_eq_u32_e64 %s, %d, v%d" % (MK[q & 1], q, X + 1) for q in range(2, 4)] + nxt[2:4]
            su += ["v_cndmask_b32_e64 v%d, 0, v%d, %s" % (SEL + q, X, MK[q & 1]) for q in range(2, 4)] + nxt[4:]
            if w == 0:
                su += ["v_bfe_u32 v%d, v%d, 4, 3" % (T1, L16), "v_lshlrev_b32 v%d, 3, v%d" % (T1, T1), "v_lshrrev_b32 v%d, 8, v%d" % (X, L16), "v_lshl_add_u32 v%d, v%d, 6, v%d" % (T1, X, T1)]
            else:
                su += ["v_bfe_u32 v%d, v%d, 8, 1" % (X, L16), "v_lshlrev_b32 v%d, 6, v%d" % (T1, X), "v_lshl_add_u32 v%d, v%d, 3, v%d" % (T1, X + 2, T1),
                       "v_lshrrev_b32 v%d, 9, v%d" % (X + 1, L16), "v_lshl_add_u32 v%d, v%d, 2, v%d" % (T1, X + 1, T1)]
            su += ["s_add_u32 s56, s27, s46", "s_add_u32 s56, s56, s33", "s_add_u32 s58, s48, s33"]
            def gap(n):
                while n > 0 and su: S(su.pop(0)); n -= 1
                idle(S, n)
            def issue(E, B):
                for j in range(NL): E("buffer_load_dwordx4 %s, v%d, s[8:11], %s offen sc1" % (r4(B[j]), RL if w == 0 else L16, ("s43", "s61", "s100", "s101")[j]))
            gap(FLn + (P.get("F1", 4) if w else 0) - (S.pos - p0))
            for k_, B in enumerate(SETS):
                if k_: gap(RG + (P.get("R1", 14) if w else 0))
                issue(S, B)
            gap(max(U1, len(su)))
            def hint(E, B):
                if w == 0: E("v_max3_u32 v%d, v%d, v%d, v%d" % (X, B[0], B[1], B[2])); E("v_max_u32 v%d, v%d, v%d" % (X, X, B[3])); E("v_cmp_eq_u32 vcc, -1, v%d" % X)
                else: E("v_cmp_eq_u32 vcc, -1, v%d" % B[0])
            def fold(E):
                if w == 0:
                    for q in range(4): E("v_add_f32_dpp v%d, v%d, v%d row_ror:8 row_mask:0xf bank_mask:0xf" % (D + q, D + q, D + q))
                    E("v_cmp_u_f32 vcc, v%d, v%d" % (D, D))
                    E(cvt(D, D, D + 1)); E(cvt(D + 1, D + 2, D + 3))
                else:
                    for sh in (8, 4, 2):
                        for q in range(2): E("v_add_f32_dpp v%d, v%d, v%d row_ror:%d row_mask:0xf bank_mask:0xf" % (D + q, D + q, D + q, sh))
                    E("v_cmp_u_f32 vcc, v%d, v%d" % (D, D))
                    E(cvt(D, D, D + 1))
            op = "buffer_store_dwordx2 %s" % r2(D) if w == 0 else "buffer_store_dword v%d" % D
            def publish(E):
                E("s_mov_b64 exec, %s" % ("s[38:39]" if w == 0 else "s[62:63]"))
                E("%s, v%d, s[8:11], s58 offen%s" % (op, T1, sc))
            for j in range(NL): mf32(S, D, SEL, SETS[0][j], "0" if j == 0 else D)
            hint(S, SETS[0]); S(br("s_cbranch_vccnz %s" % L(tag + ("q1" if NS > 1 else "rb_i0"))))
            fold(S); S(br("s_cbranch_vccnz %s" % L(tag + "rb_e0")))
            publish(S)
            def quick():
                for k_ in range(1, NS):
                    A.label(L(tag + "q%d" % k_))
                    E = newseq()
                    if ST: E("s_add_u32 s99, s99, 1")
                    if k_ == NS - 1: issue(E, SETS[0])
                    for j in range(NL):
                        E("s_waitcnt vmcnt(%d)" % (NL * (NS - k_) - 1 - j + (NL if k_ == NS - 1 else 0))); mf32(E, D, SEL, SETS[k_][j], "0" if j == 0 else D)
                    hint(E, SETS[k_]); E("s_cbranch_vccnz %s" % L(tag + ("q%d" % (k_ + 1) if k_ < NS - 1 else "qx")))
                    fold(E); E("s_cbranch_vccnz %s" % L(tag + "qe%d" % k_))
                    publish(E); stamp(E, 7); E("s_barrier"); E("%s, v%d, s[8:11], s56 offen sc1" % (op, T1)); E("s_branch %s" % L(tag + "rb_g"))
                A.label(L(tag + "qx"))
                for k_ in range(1, NS - 1): issue(A, SETS[k_])
                A("s_branch %s" % L(tag + "rb_i%d" % (NS - 1)))
                for k_ in range(1, NS):
                    A.label(L(tag + "qe%d" % k_))
                    A("s_waitcnt vmcnt(0)")
                    for k2 in range(k_ + 1, k_ + NS): issue(A, SETS[k2 % NS])
                    A("s_branch %s" % L(tag + "rb_e%d" % k_))
            if NS > 1: ool.append(quick)
            def blk():
                A.label(L(tag + "rb_l"))
                for k_, B in enumerate(SETS):
                    E = Seq(A)
                    E("s_waitcnt vmcnt(%d)" % (NL * NS - NL))
                    for j in range(NL): mf32(E, D, SEL, B[j], "0" if j == 0 else D)
                    hint(E, B); E("s_cbranch_vccz %s" % L(tag + "rb_x%d" % k_))
                    A.label(L(tag + "rb_i%d" % k_))
                    issue(A, B)
                    if ST: A("s_add_u32 s99, s99, 1")
                A("s_add_u32 s71, s71, 1"); A("s_cmp_lt_u32 s71, %d" % (4 * SPIN_MAX)); A("s_cbranch_scc1 %s" % L(tag + "rb_l")); A("s_branch %s" % L0("fail"))
                for k_, B in enumerate(SETS):
                    A.label(L(tag + "rb_x%d" % k_))
                    E = Seq(A); E("s_nop %d" % (3 if w == 0 else 5)); fold(E); A("s_cbranch_vccz %s" % L(tag + "rb_n"))
                    A.label(L(tag + "rb_e%d" % k_))
                    allr = [b + i for b in B for i in range(4)]
                    A("v_max3_u32 v%d, v%d, v%d, v%d" % (X, allr[0], allr[1], allr[2]))
                    for i in range(3, len(allr) - 1, 2): A("v_max3_u32 v%d, v%d, v%d, v%d" % (X, X, allr[i], allr[i + 1]))
                    A("v_max_u32 v%d, v%d, v%d" % (X, X, allr[-1])); A("v_cmp_eq_u32 vcc, -1, v%d" % X)
                    A("s_cbranch_vccnz %s" % L(tag + "rb_i%d" % k_))
                    A("v_min_u32 v%d, -2, v%d" % (D, D)); A("v_min_u32 v%d, -2, v%d" % (D + 1, D + 1))
                    if k_ < NS - 1: A("s_branch %s" % L(tag + "rb_n"))
                A.label(L(tag + "rb_n"))
                publish(A)
                A("s_branch %s" % L(tag + "rb_d"))
            ool.append(blk)
            S.label(L(tag + "rb_d"))
        else:
            ready(S)
            if CLP: clear_prep(S)
        stamp(S, 7)
        S("s_barrier")
        p0 = S.pos
        if CLP == 1 and w >= 2: clears(S)
        if red:
            SCD = P.get("SCD", 0)
            if not SCD and not (P.get("NOS1") == w + 1): S("%s, v%d, s[8:11], s56 offen sc1" % (op, T1))
            S.label(L(tag + "rb_g"))
            S("s_mov_b64 exec, -1")
            if P.get("ACK") and ST:
                S("s_memtime s[28:29]"); S("s_waitcnt vmcnt(0)"); S("s_memtime s[30:31]"); S("s_waitcnt lgkmcnt(0)"); S("s_sub_u32 s28, s30, s28"); S("s_add_u32 s99, s99, s28")
            S("s_waitcnt vmcnt(%d)" % (1 if SCD else 2))
        stamp_acc(S)
        if red: ready(S)
        kv_prep(S, 2); pub_addr(S)
        if w == 0 or (w == 1 and not CLP): clear_prep(S)
        def kvcheck():
            S("ds_read_b64 %s, v%d offset:%d" % (r2(M[0]), L16, L_FL))
            S("v_min_u32 v%d, v%d, v%d" % (M[0], M[0], M[0] + 1)); S("v_readfirstlane_b32 s28, v%d" % M[0]); S("s_nop 0"); S("s_max_u32 s54, s54, s28")
            kv_wait(S, tag + "kw", 3)
        if w != 1: S("s_add_u32 s44, s44, 1"); step_addr(S)
        fr = FL_[w]
        f1 = None
        if fr:
            S.nop(LD - (S.pos - p0))
            f1 = dma(S, fr, "s48", L_ML)
            for _ in range(NA - 1):
                S.nop(PG); dma(S, fr, "s48", L_ML)
        if red and SCD:
            S.nop(SCD - (S.pos - p0))
            S("s_mov_b64 exec, %s" % ("s[38:39]" if w == 0 else "s[62:63]")); S("%s, v%d, s[8:11], s56 offen sc1" % (op, T1)); S("s_mov_b64 exec, -1")
        if w == 1: kvcheck(); S("s_add_u32 s44, s44, 1"); step_addr(S)
        if CLP == 2 and w >= 2: clears(S)
        if CL3 and w < 2:
            S.nop(P.get("CD", 96) - (S.pos - p0)); clears(S)
            if w == 0 and MCW: m_clear(S)
        S("s_mov_b32 s70, 0")
        S.wait(lds=S.nl)
        if f1: A.lines[topw] = "    s_waitcnt vmcnt(%d)" % (S.nv - f1)
        S("s_branch %s" % L("top"))

    def stamp_acc(S):
        if not ST: return
        S("s_waitcnt lgkmcnt(0)")
        if P.get("RAW") and w == P["RAW"] - 1:
            for i in range(9): S("v_writelane_b32 v%d, s%d, %d" % (T0, 72 + 2 * i, i))
            S("v_writelane_b32 v%d, s98, 9" % T0); S("v_writelane_b32 v%d, s99, 10" % T0)
            S("s_lshl_b32 s27, s20, 5"); S("s_add_u32 s27, s27, s22"); S("s_lshl_b32 s27, s27, 7"); S("s_add_u32 s27, s27, s44"); S("s_lshl_b32 s27, s27, 8"); S("s_add_u32 s27, s27, %d" % (WS_DBG + (5 << 20)))
            S("s_mov_b64 exec, 0x7ff"); S("buffer_store_dword v%d, v%d, s[8:11], s27 offen" % (T0, L16)); S("s_mov_b64 exec, -1")
        if TR:
            for i in range(8): S("s_sub_u32 s27, s%d, s%d" % (74 + 2 * i, 72 + 2 * i)); S("s_add_u32 s%d, s%d, s27" % (90 + i, 90 + i))
        else:
            for i in range(7): S("s_sub_u32 s27, s%d, s%d" % (74 + 2 * i, 72 + 2 * i)); S("s_add_u32 s%d, s%d, s27" % (90 + i, 90 + i))
            S("s_sub_u32 s27, s72, s88"); S("s_add_u32 s97, s97, s27"); S("s_mov_b32 s88, s86")

    A.label(L("layer"))
    S = Seq(A)
    S("s_lshr_b32 s27, s44, 6"); S("s_mul_i32 s50, s27, %d" % KV_LAYER); S("s_lshl_b32 s27, s22, 13"); S("s_add_u32 s50, s50, s27"); S("s_add_u32 s50, s50, %d" % WS_KXF)
    S("s_barrier")
    S("s_mov_b32 s26, 0x%x" % (OOB + 65536)); S("s_mov_b32 s3, s26")
    S("s_mul_i32 s27, s20, 5120"); S("s_add_u32 s48, s27, %d" % WS_M0); S("s_sub_u32 s49, %d, s27" % (WS_M0 + 5120))
    dma(S, FL_[w], "s48", L_ML)
    pass
    step_addr(S); ready(S); S("s_mov_b32 s70, 0"); S.wait(lds=S.nl, vm=S.nv)
    if ST:
        for i in range(10): S("s_mov_b32 s%d, 0" % (90 + i))
        S("%s s[72:73]" % ("s_memrealtime" if P.get("RAW") else "s_memtime")); S("s_waitcnt lgkmcnt(0)")
        for i in range(1, 9): S("s_mov_b32 s%d, s72" % (72 + 2 * i))

    A.label(L("top"))
    S = newseq(); top0 = len(A.lines)
    if TR: S.hook = hook
    topw = len(A.lines); A("s_nop 0")
    stamp(S, 0)
    S("s_barrier")
    stamp(S, 1)
    ME = P.get("ME", 2)
    for t in range(ME): rd(S, M[t], MRA, L_ML + 1024 * t)
    R0 = P.get("R0", 0)
    if not R0: rtok = dma(S, FR_[w], "s49", L_MR)
    S.label(L("lr_r"))
    DEF = [t for t in range(5) if t not in VT_]
    LOC = dict(zip(DEF, [M[0], M[1], M[3]])) if NV >= 2 else {t: M[t] for t in range(5)}
    fl = []
    fv = []

    def step(i):
        m, tl, rem, t = SEQ[i]
        mq = LOC[t] if i >= NLOC + 30 else M[t]
        assert holds.get(mq) == (MRA, (L_MR if rem else L_ML) + 1024 * t), (i, holds.get(mq))
        if i in LDSI:
            n = LDSI.index(i); smf(S, ACC[m] + 4 * tl, mq, LB[n % 2])
            assert n < 2 or (holds[LB[n % 2]] == (VW, n * 2048) and holds[LB[n % 2] + 4] == (VW, n * 2048 + 1024)), i
            if n + 2 < NLW:
                k_ = 1 if i == 1 else 0
                fl[k_:k_] = lw_read(S, n + 2)
        else: smf(S, ACC[m] + 4 * tl, mq, WREG[i])

    def fill(nl, nv):
        for _ in range(nl):
            if fl: fl.pop(0)()
        for _ in range(nv):
            if fv: fv.pop(0)()

    def steps(lo, hi, nl=1, nv=1):
        for i in range(lo, hi):
            step(i); fill(nl, nv)

    def I(t): return lambda: S(t)
    def R(dst, areg, off): return lambda: rd(S, dst, areg, off)
    def reread(lab, fr, sa, lds, quads, peek, cnt, redo):
        def blk():
            A.label(L(lab))
            A("s_mov_b32 s30, 0")
            A.label(L(lab + "_l"))
            E = Seq(A); E("s_waitcnt lgkmcnt(0)")
            if ST: E("s_add_u32 s98, s98, %d" % cnt)
            if fr:
                E("s_and_b32 s27, s30, 1"); E("s_cbranch_scc%d %s" % (0 if redo else 1, L(lab + "_n"))); E("s_waitcnt vmcnt(%d)" % len(fr)); dma(E, fr, sa, lds)
                A.label(L(lab + "_n"))
            for t in quads: rd(E, M[t], MRA, lds + 1024 * t)
            if peek: E("ds_read_b32 v%d, v%d offset:%d" % (T1, MRA, lds + 4096))
            E("v_max3_u32 v%d, v%d, v%d, v%d" % (T0, M[0], M[1], M[2])); E("v_max3_u32 v%d, v%d, v%d, v%d" % (T0, T0, M[3], T1 if peek else M[4]))
            E("v_cmp_eq_u32 vcc, -1, v%d" % T0); E("s_cbranch_vccz %s" % L(lab + "_d"))
            spin_count(E, 8 * SPIN_MAX); E("s_branch %s" % L(lab + "_l"))
            A.label(L(lab + "_d"))
            if redo:
                ready(E); E("s_waitcnt lgkmcnt(0)")
                if fr: E("s_waitcnt vmcnt(0)") if False else None
            E("s_branch %s" % L(lab + "_r"))
        ool.append(blk)
    HP = P.get("HP", 10)
    fl += [R(M[t], MRA, L_ML + 1024 * t) for t in range(ME, 5)]
    steps(0, HP); drain(fv)
    late = [I("s_mov_b32 m0, %d" % (L_JUNK if w >= 2 else L_FL))] if (w >= 1 or MCW) else []
    fv += [I("v_max3_u32 v%d, v%d, v%d, v%d" % (T0, M[0], M[1], M[2])), I("v_max3_u32 v%d, v%d, v%d, v%d" % (T0, T0, M[3], M[4])), I("v_cmp_eq_u32 vcc, -1, v%d" % T0), I(br("s_cbranch_vccnz %s" % L("lr")))]
    reread("lr", FL_[w], "s48", L_ML, range(5), False, 0x10000, True)
    NLA = NLOC - P.get("RA", 6 if 4 in VT_ else 4)
    assert NLOC - NLA in (4, 6, 8)
    if R0:
        steps(HP, R0); rtok = dma(S, FR_[w], "s49", L_MR); steps(R0, NLA)
    else: steps(HP, NLA)
    drain(fl); drain(fv)
    def slow_ops():
        pub_st(S)
        if w < 2 and not CLP and not CL3: clears(S)
        if w == 0 and not MCW: m_clear(S)
        if w == 0 and MCW:
            S("s_mov_b64 exec, 3"); S("buffer_load_dword v%d, s[8:11], s51 offen sc1 lds" % PA8); S("s_mov_b64 exec, -1")
        if w >= 2:
            S("buffer_load_dword v%d, s[8:11], s61 offen sc1 lds" % PA8)
        if w == 1:
            if not MCW: S("s_mov_b64 exec, 3"); S("buffer_load_dword v%d, s[8:11], s51 offen sc1 lds" % PA8)
            S("s_mov_b64 exec, s[100:101]"); S("buffer_store_dword v%d, v%d, s[8:11], s61 offen sc1" % (PA8, PA8)); S("s_mov_b64 exec, -1")
    stamp(S, 2)
    S.wait(vm=rtok); S("s_barrier")
    stamp(S, 3)
    if NLOC - NLA == 6:
        for t in range(2): rd(S, M[t], MRA, L_MR + 1024 * t)
        step(NLA); rd(S, M[2], MRA, L_MR + 2048); rd(S, M[3], MRA, L_MR + 3072)
        step(NLA + 1); S("ds_read_b32 v%d, v%d offset:%d" % (T1, MRA, L_MR + 4096)); fill(1, 0)
        steps(NLA + 2, NLA + 3)
        fv += [I("v_max3_u32 v%d, v%d, v%d, v%d" % (T0, M[0], M[1], M[2])), I("v_max3_u32 v%d, v%d, v%d, v%d" % (T0, T0, M[3], T1)), I("v_cmp_eq_u32 vcc, -1, v%d" % T0)]
        steps(NLA + 3, NLOC)
    elif NLOC - NLA == 4:
        if P.get("SE"):
            for t in range(4): rd(S, M[t], MRA, L_MR + 1024 * t)
            S("ds_read_b32 v%d, v%d offset:%d" % (T1, MRA, L_MR + 4096))
            drain(late); slow_ops()
            fv += [lambda: None, I("v_max3_u32 v%d, v%d, v%d, v%d" % (T0, M[0], M[1], M[2])), I("v_max3_u32 v%d, v%d, v%d, v%d" % (T0, T0, M[3], T1)), I("v_cmp_eq_u32 vcc, -1, v%d" % T0)]
            steps(NLA, NLOC)
        elif P.get("RI", 1):
            for t in range(2): rd(S, M[t], MRA, L_MR + 1024 * t)
            step(NLA); rd(S, M[2], MRA, L_MR + 2048); rd(S, M[3], MRA, L_MR + 3072)
            step(NLA + 1); S("ds_read_b32 v%d, v%d offset:%d" % (T1, MRA, L_MR + 4096)); fill(1, 0)
            steps(NLA + 2, NLOC - 1)
        else:
            for t in range(4): rd(S, M[t], MRA, L_MR + 1024 * t)
            S("ds_read_b32 v%d, v%d offset:%d" % (T1, MRA, L_MR + 4096))
            steps(NLA, NLOC - 1)
        if not P.get("SE"):
            S("v_max3_u32 v%d, v%d, v%d, v%d" % (T0, M[0], M[1], M[2]))
            step(NLOC - 1)
            S("v_max3_u32 v%d, v%d, v%d, v%d" % (T0, T0, M[3], T1)); S("v_cmp_eq_u32 vcc, -1, v%d" % T0)
    else:
        S("ds_read2st64_b32 %s, v%d offset0:%d offset1:%d" % (r2(T0), MRA, (L_MR + 3072) // 256, (L_MR + 4096) // 256))
        for t in range(2): rd(S, M[t], MRA, L_MR + 1024 * t)
        fl += [R(M[2], MRA, L_MR + 2048)]
        fl.insert(0, fl.pop())
        step(NLA); rd(S, M[2], MRA, L_MR + 2048); fl.remove(fl[-1])
        steps(NLA + 1, NLA + 4)
        fl.insert(0, R(M[3], MRA, L_MR + 3072)); drain(fv)
        step(NLA + 4); fill(1, 0)
        fv += [I("v_max3_u32 v%d, v%d, v%d, v%d" % (T0, T0, T1, M[0])), I("v_max3_u32 v%d, v%d, v%d, v%d" % (T0, T0, M[1], M[2])), I("v_cmp_eq_u32 vcc, -1, v%d" % T0)]
        steps(NLA + 5, NLOC)
    drain(fv)
    S("s_nop 0" if P.get("NOS1") else br("s_cbranch_vccnz %s" % L("rr")))
    S.label(L("rr_r"))
    reread("rr", FR_[w], "s49", L_MR, range(4), True, 1, False)
    drain(late)
    rd(S, M[4], MRA, L_MR + 4096)
    ftok = S.nv
    SP = P.get("SP", 0)
    steps(NLOC, NLOC + SP)
    if not P.get("SE"): slow_ops()
    steps(NLOC + SP, NLOC + 11)
    B0 = NLOC - 20
    pv, pw = post(S, AQ, L_EQ, True); fv += pv
    steps(B0 + 31, B0 + 35); steps(B0 + 35, B0 + 40, 1, 2); drain(fv)
    fl += pw
    step(B0 + 40); S("s_cmp_eq_u32 s57, 0"); S("s_cbranch_scc1 %s" % L("first")); S.label(L("first_r")); fill(1, 0)
    def blk():
        A.label(L("first"))
        E = Seq(A)
        if w == 1: kv_wait(E, "p1", 1)
        E("s_barrier"); kv_prep(E, 0); k_fetch(E); vt_fetch(E); kv_prep(E, 1); E("s_waitcnt vmcnt(0) lgkmcnt(0)"); ht(2); E("s_barrier")
        E("s_branch %s" % L("first_r"))
        A.label(L("first2"))
        E = Seq(A)
        if w == 1: kv_wait(E, "p2", 2)
        E("s_barrier"); E("s_branch %s" % L("first2_r"))
    ool.append(blk)
    pv, pw = post(S, AK, L_EK); fv += pv
    def ex(r): return I("v_exp_f32 v%d, v%d" % (r, r))
    if NV >= 2:
        QO = [AQ, AQ + 4, X0, M[2]]; KA = [LB[0], LB[0] + 4, LB[1], LB[1] + 4]; SXa, SXb = AK, AK + 4; ONE = M[4] if NV == 2 else M[3]; HALF = T0; PX = SXa
        ZQ, O4Q = X0, M[2]
        for i in range(41, 50):
            step(B0 + i)
            if i == 41: fl[0:0] = [fl.pop()]
            if i == 42: qwt = S.nl
            for t_, q_ in LOC.items():
                if i % 2 == 1 and q_ == M[(i - 41) // 2]: fl.append(R(q_, MRA, L_ML + 1024 * t_))
            if B0 + i == max(45, B0 + 41): fl.extend([R(KA[u], KRA, L_K + 1024 * u) for u in (2, 3)])
            if B0 + i == 47: fl.extend([R(KA[u], KRA, L_K + 1024 * u) for u in (0, 1)])
            if i == 45:
                S.wait(lds=qwt); S("s_barrier"); fl.extend([R(QO[u], ER, L_EQ + 64 * u) for u in range(4)]); fill(1, 2)
            elif i in (48, 49): pw.pop(0)(); kwt = S.nl; fill(1, 0)
            else: fill(1, 1 if i < 45 else 2)
        assert not fv and not pw
        stamp(S, 4)
        fv += [I("v_mov_b64 %s, s[24:25]" % r2(ONE)), I("v_mov_b64 %s, s[24:25]" % r2(ONE + 2)), I("v_mov_b64 %s, s[16:17]" % r2(HALF))]
        steps(B0 + 50, 58, 2, 0); drain(fl)
        KM = [M[0], M[1], KA[0], KA[1]] if NV == 2 else [M[4], M[0], KA[0], KA[1]]; SM = LOC[DEF[-1]]
        for u in range(4):
            mf32(S, SXa, KA[u], QO[u], "0" if u == 0 else SXa); kbt = rd(S, KA[u], KRA, L_K + 4096 + 1024 * u)
            if u == 1: S.wait(lds=kwt); S("s_barrier")
            else: fill(0, 1)
    else:
        QO = [AQ, AQ + 4, AK, AK + 4]; KA = [LB[0], LB[0] + 4, LB[1], LB[1] + 4]; SXa, SXb, SM = M[0], M[1], M[3]; ONE = X0; HALF = T0
        for i in range(41, 52):
            step(B0 + i)
            if i % 2 == 1 and NV <= (i - 41) // 2 < 5: fl.append(R(M[(i - 41) // 2], MRA, L_ML + 1024 * ((i - 41) // 2)))
            if B0 + i == 45: fl.extend([R(KA[u], KRA, L_K + 1024 * u) for u in (2, 3)])
            if B0 + i == 47: fl.extend([R(KA[u], KRA, L_K + 1024 * u) for u in (0, 1)])
            if i in (48, 49): pw.pop(0)(); kwt = S.nl; fill(1, 0)
            elif i >= 50: fill(2 if i == 50 else 1, 0)
            else: fill(1, 1 if i < 45 else 2)
        assert not fv and not pw
        step(B0 + 52); S.wait(lds=kwt); S("s_barrier")
        stamp(S, 4)
        fl[0:0] = [R(QO[u], ER, L_EQ + 64 * u) for u in range(4)]
        fill(1, 0)
        fv += [I("v_mov_b64 %s, s[24:25]" % r2(ONE)), I("v_mov_b64 %s, s[24:25]" % r2(ONE + 2)), I("v_mov_b64 %s, s[16:17]" % r2(HALF))]
        E1 = P.get("E1", 58)
        steps(B0 + 53, B0 + 55, 2, 0); steps(B0 + 55, E1, 1, 1)
        drain(fl); drain(fv)
        S.wait(lds=S.nl)
        KM = [M[2], KA[0], KA[1], KA[2]] if E1 < 58 else [M[2], M[3], KA[0], KA[1]]
        SM = M[4] if E1 >= 58 else M[3]
        for u in range(4): mf32(S, SXa, KA[u], QO[u], "0" if u == 0 else SXa); kbt = rd(S, KA[u], KRA, L_K + 4096 + 1024 * u)
        PX = SXa
        ZQ, O4Q = AK, AK + 4
    if True:
        step(58); rd(S, KM[0], ER, L_EK); step(59); rd(S, KM[1], ER, L_EK + 64); S.wait(lds=kbt - 2)
        mf32(S, SXb, KA[0], QO[0], "0"); ex(SXa)()
        mf32(S, SXb, KA[1], QO[1], SXb); S.wait(lds=kbt); ex(SXa + 1)(); rd(S, KM[2], ER, L_EK + 128)
        mf32(S, SXb, KA[2], QO[2], SXb); ex(SXa + 2)(); rd(S, KM[3], ER, L_EK + 192)
        mf32(S, SXb, KA[3], QO[3], SXb); ex(SXa + 3)()
        stamp(S, 5)
        mf32(S, SM, KM[0], QO[0], "0"); S(cvt(PX, SXa, SXa + 1)); S(cvt(PX + 1, SXa + 2, SXa + 3))
        mf32(S, SM, KM[1], QO[1], SM); S(cvt(AV, AV, AV + 1)); S(cvt(AV + 1, AV + 2, AV + 3))
        mf32(S, SM, KM[2], QO[2], SM); ex(SXb)()
        mf32(S, SM, KM[3], QO[3], SM); ex(SXb + 1)(); ex(SXb + 2)(); ex(SXb + 3)()
        S(cvt(PX + 2, SXb, SXb + 1)); S(cvt(PX + 3, SXb + 2, SXb + 3)); S(cvt(AV + 2, AV + 4, AV + 5)); S(cvt(AV + 3, AV + 6, AV + 7))
    OA = [AQ, AQ + 4]; Z = ZQ; PM = SM
    mf32(S, Z, ONE, PX, "0"); ex(SM)()
    mf32(S, OA[0], VT[0], PX, "0"); ex(SM + 1)()
    mf32(S, OA[1], VT[1], PX, "0"); ex(SM + 2)(); ex(SM + 3)()
    S(cvt(PM, SM, SM + 1)); S(cvt(PM + 1, SM + 2, SM + 3))
    OUT = [KA[0], KA[1], KA[2], KA[3], O4Q]
    def pubsel(): return [I("v_cndmask_b32_e64 v%d, v%d, v%d, s[66:67]" % (X1 + i, AV + i, KM[w] + i)) for i in range(4)]
    fv += pubsel()
    fill(0, 2)
    S.label(L("fin"))
    mf16(S, Z, HALF, PM, Z); fill(0, 2)
    for q in OUT[::-1]: fv += zitems(S, q)
    mf16(S, OA[0], AV, PM, OA[0]); S("s_cmp_eq_u32 s57, 63"); fill(0, 2)
    mf16(S, OA[1], AV + 2, PM, OA[1]); S("s_cbranch_scc1 %s" % L("last")); fill(0, 1)
    RZ = Z + 2
    S("v_rcp_f32 v%d, v%d" % (RZ, Z)); S("v_subrev_u32 v%d, s68, v%d" % (Z + 1, Z)); S("v_cmp_lt_u32 vcc, s69, v%d" % (Z + 1)); fill(0, 1)
    for i in range(4): S("v_cndmask_b32_e64 v%d, v%d, v%d, s[18:19]" % (AQ + i, AQ + i, AQ + 4 + i))
    for q in (0, 2): S("v_pk_mul_f32 %s, %s, %s op_sel_hi:[1,0]" % (r2(AQ + q), r2(AQ + q), r2(RZ)))
    S(cvt(AQ, AQ, AQ + 1)); S(cvt(AQ + 1, AQ + 2, AQ + 3))
    S("ds_write_b64 v%d, %s offset:%d" % (L16, r2(AQ), L_EO + 1024 * (w >> 1) + 8 * (w & 1)))
    S("s_nop 0" if P.get("NOS1") else br("s_cbranch_vccnz %s" % L("zbad")))
    S.label(L("zok"))
    ctok = S.nv - (2 if w == 1 else 0)
    S("s_cmp_eq_u32 s57, 0"); S("s_cbranch_scc1 %s" % L("first2")); S.label(L("first2_r"))
    BO = P.get("BO", 0)
    if BO == 0: vt_fetch(S)
    else: S("s_mov_b32 m0, %d" % (L_K + 2048 * w)); drain(fv)
    S.wait(lds=S.nl); S("s_barrier")
    O0, O1 = SXb, KM[1]
    rd(S, O0, L16, L_EO); rd(S, O1, L16, L_EO + 1024)
    if BO == 0: k_fetch(S)
    else:
        for j in range(2): S("buffer_load_dwordx4 v%d, s[8:11], s26 offen offset:%d sc1 lds" % (L16, 1024 * j))
        vt_fetch(S)
    drain(fv)
    def opost(T):
        b = OUT[T]
        return [I("v_permlane32_swap_b32 v%d, v%d" % (b, b + 1)), I("v_permlane32_swap_b32 v%d, v%d" % (b + 2, b + 3)),
                I("v_add_f32 v%d, v%d, v%d" % (b, b, b + 1)), I("v_add_f32 v%d, v%d, v%d" % (b + 2, b + 2, b + 3))]
    SD = KM[0]
    def wo(T, tp): smf(S, OUT[T], (O0, O1)[tp], WO[T, tp])
    S.hoist = False
    wo(0, 0); wo(1, 0); wo(0, 1); wo(1, 1); wo(2, 0); wo(3, 0)
    fv += opost(0) + opost(1) + [I(cvt(SD, OUT[0], OUT[1])), I(cvt(SD + 2, OUT[0] + 2, OUT[1] + 2))]
    fill(0, 1); wo(2, 1); fill(0, 1); wo(3, 1); fill(0, 2); wo(4, 0); fill(0, 1); wo(4, 1)
    fv += opost(2) + opost(3) + [I(cvt(SD + 1, OUT[2], OUT[3])), I(cvt(SD + 3, OUT[2] + 2, OUT[3] + 2))]
    drain(fv)
    if P.get("SO", 1): S("buffer_store_dwordx4 %s, v%d, s[8:11], s58 offen%s" % (r4(SD), L16, sc))
    drain(opost(4)); S(cvt(OUT[4], OUT[4], OUT[4] + 2))
    if not P.get("SO", 1): S("buffer_store_dwordx4 %s, v%d, s[8:11], s58 offen%s" % (r4(SD), L16, sc))
    S("buffer_store_dword v%d, v%d, s[8:11], s55 offen%s" % (OUT[4], PSB, sc))
    stamp(S, 6)
    if w == 0 and md == 0: print("chain on-path estimate %d, nops %d" % (estimate(A.lines[top0:], P.get("EST")), S.nops))
    def fork(S):
        S2 = copy.copy(S)
        for k_ in ("vw", "tw", "mw", "mc", "sd", "sw", "lp", "vp"): setattr(S2, k_, dict(getattr(S, k_)))
        return S2
    pw0 = S.pos
    window(S)

    A.label(L("restart"))
    E = Seq(A)
    E("s_waitcnt vmcnt(0) lgkmcnt(0)"); E.nop(8); E("s_barrier")
    dma(E, FL_[w], "s48", L_ML); ready(E); E("s_waitcnt vmcnt(0) lgkmcnt(0)"); E("s_branch %s" % L("top"))
    A.label(L("zbad"))
    E = Seq(A)
    E("s_cmp_eq_u32 s70, 2"); E("s_cbranch_scc1 %s" % L("zok"))
    E("v_cmp_u_f32 vcc, v%d, v%d" % (Z, Z)); E("s_cbranch_vccz %s" % L("exact"))
    E("s_cmp_eq_u32 s70, 1"); E("s_cbranch_scc1 %s" % L("exact"))
    A.label(L("vfy0"))
    E("s_mov_b32 s70, 1"); E("s_mov_b32 s30, 0"); E("s_waitcnt vmcnt(0) lgkmcnt(0)"); E.nop(8)
    A.label(L("vfy"))
    E("v_mov_b32 v%d, 0" % T0)
    for sa in ("s48", "s49"):
        E("s_add_u32 s59, %s, 4096" % sa)
        for t in range(5): E("buffer_load_dwordx4 %s, v%d, s[8:11], %s offen offset:%d sc1" % (r4(M[t]), L16, "s59" if t == 4 else sa, 1024 * (t % 4)))
        for r in range(M[0], M[0] + 20, 2): E("v_max3_u32 v%d, v%d, v%d, v%d" % (T0, T0, r, r + 1))
    E("v_cmp_eq_u32 vcc, -1, v%d" % T0); E("s_cbranch_vccz %s" % L("restart"))
    spin_count(E); E("s_branch %s" % L("vfy"))
    A.label(L("exact"))
    E = Seq(A); E.nop(8)
    E("s_mov_b32 s70, 2")
    KT = [KA[0], KA[1]]; S3 = [SXa, SXb, SM]
    E("s_waitcnt lgkmcnt(0)")
    for u in range(4): rd(E, QO[u], ER, L_EQ + 64 * u)
    n = 0
    for tl in range(3):
        for u in range(4):
            kq = KT[n % 2]; n += 1
            if tl < 2: rd(E, kq, KRA, L_K + 4096 * tl + 1024 * u)
            else: rd(E, kq, ER, L_EK + 64 * u)
            mf32(E, S3[tl], kq, QO[u], "0" if u == 0 else S3[tl])
            E.nop(4)
    S12 = [q + i for q in S3 for i in range(4)]
    MX, TM = KA[2], KA[2] + 1
    E("v_max3_f32 v%d, v%d, v%d, v%d" % (MX, S12[0], S12[1], S12[2]))
    for i in range(3, 11, 2): E("v_max3_f32 v%d, v%d, v%d, v%d" % (MX, MX, S12[i], S12[i + 1]))
    E("v_max_f32 v%d, v%d, v%d" % (MX, MX, S12[11]))
    for op in ("v_permlane16_swap_b32", "v_permlane32_swap_b32"):
        E("v_mov_b32 v%d, v%d" % (TM, MX)); E("%s v%d, v%d" % (op, MX, TM)); E("v_max_f32 v%d, v%d, v%d" % (MX, MX, TM))
    for r in S12: E("v_sub_f32 v%d, v%d, v%d" % (r, r, MX)); E("v_exp_f32 v%d, v%d" % (r, r))
    for i in range(4): E(cvt(PX + i, S12[2 * i], S12[2 * i + 1]))
    E(cvt(PM, SM, SM + 1)); E(cvt(PM + 1, SM + 2, SM + 3))
    mf32(E, OA[0], VT[0], PX, "0"); mf32(E, OA[1], VT[1], PX, "0"); mf32(E, Z, ONE, PX, "0")
    rd(E, KM[w], ER, L_EK + 64 * w); E.wait_lds_all()
    E.nop(8); E("s_branch %s" % L("fin"))
    A.label(L("last"))
    A("s_cmp_lg_u32 s70, 0"); A("s_cbranch_scc1 %s" % L("last2"))
    A("v_cmp_u_f32 vcc, v%d, v%d" % (SXb, SXb)); A("s_nop 0" if P.get("NOS1") else br("s_cbranch_vccnz %s" % L("vfy0")))
    A.label(L("last2"))
    E = Seq(A); pub_addr(E); pub_st(E); E("s_waitcnt vmcnt(0) lgkmcnt(0)")
    A("s_barrier")
    if w == 1:
        A("v_mov_b32 v%d, 8192" % T1); A("s_mov_b64 exec, 1"); A("buffer_store_dword v%d, v%d, s[8:11], s52 offen sc1" % (T1, L16)); A("s_mov_b64 exec, -1"); A("s_add_u32 s52, s52, 4096")
    if True:
        E = Seq(A); E.nop(8); clear_prep(E)
        if cw in (0, 1): clears(E)
        if w == 0: m_clear(E)
        A("s_waitcnt vmcnt(0)")
    A("s_add_u32 s44, s44, 1")
    ht(3)
    if ST:
        A("s_lshl_b32 s27, s20, 5"); A("s_add_u32 s27, s27, s22"); A("s_lshl_b32 s27, s27, 2"); A("s_add_u32 s27, s27, s21"); A("s_lshl_b32 s27, s27, 6"); A("s_add_u32 s27, s27, %d" % WS_DBG)
        A("s_lshl_b32 s28, s44, 8"); A("s_add_u32 s27, s27, s28"); A("s_mov_b64 exec, 1")
        for i in range(10): A("v_mov_b32 v%d, s%d" % (T1, 90 + i)); A("buffer_store_dword v%d, v%d, s[8:11], s27 offen offset:%d" % (T1, L16, 4 * i)); A("s_nop 1")
        A("s_mov_b64 exec, -1")
    A("s_cmp_eq_u32 s44, 128"); A("s_cbranch_scc1 %s" % L0("end"))
    A("s_branch %s" % L("layer"))
    while ool: ool.pop(0)()
```

```python
from asmlib import *
from layout import *
from seq import *

SETS = [16, 48]
PO = [80, 84]
AD, WA, TA = 12, 13, 14
SRD = {0: 72, 1: 76, 2: 80, 'o': 84}


def perm(S, st, x, o):
    for r in range(4):
        lo = st + 4 * (2 * r) + x // 2; hi = st + 4 * (2 * r + 1) + x // 2
        S("v_perm_b32 v%d, v%d, v%d, s%d" % (o + r, hi, lo, 45 if x & 1 else 44))


def run(S, rounds):
    S("s_mov_b32 s44, 0x05040100"); S("s_mov_b32 s45, 0x07060302")
    for r in range(min(2, len(rounds))): rounds[r]["issue"](SETS[r % 2])
    for r, R in enumerate(rounds):
        if R.get("pre"): S.wait_lds_all(); S("s_barrier")
        R["write"](SETS[r % 2])
        if r + 2 < len(rounds): rounds[r + 2]["issue"](SETS[r % 2])
        if R.get("reads"):
            S.wait_lds_all(); S("s_barrier")
            for dst, areg, off in R["reads"]: S("ds_read_b128 %s, v%d offset:%d" % (ureg(dst, 4), areg, off))
    S.wait_lds_all()


def qkv_setup(S):
    S("v_lshrrev_b32 v%d, 8, v0" % AD); S("v_lshlrev_b32 v%d, 16, v%d" % (AD, AD)); S("v_and_b32 v%d, 0xf0, v0" % TA); S("v_add_u32 v%d, v%d, v%d" % (AD, AD, TA))
    S("s_lshl_b32 s46, s22, 8")


def qkv_issue(S, st, srd, ks_s):
    S("s_lshl_b32 s27, %s, 18" % ks_s); S("s_add_u32 s27, s27, s46")
    for j in range(8):
        if j: S("s_add_u32 s27, s27, 8192")
        S("buffer_load_dwordx4 %s, v%d, %s, s27 offen" % (r4(st + 4 * j), AD, srd))


def plain_rounds(S, srd, dst, bufs, RA):
    out = []
    for r in range(5):
        def issue(st, r=r):
            S("s_add_u32 s26, s21, %d" % (4 * r)); qkv_issue(S, st, srd, "s26")
        def write(st, r=r):
            S("s_lshl_b32 s27, s21, 11"); S("s_add_u32 s27, s27, %d" % bufs[r % 2]); S("v_add_u32 v%d, s27, v0" % WA)
            for x in range(8):
                perm(S, st, x, PO[x % 2]); S("ds_write_b128 v%d, %s offset:%d" % (WA, r4(PO[x % 2]), (x // 2) * 8192 + (x % 2) * 1024))
        out.append(dict(issue=issue, write=write, reads=[(dst(tl, 4 * r + tk), RA[r % 2], tk * 2048 + tl * 1024) for tk in range(4) for tl in range(2)]))
    return out


def wo_rounds(S, chain, base, reads):
    A2, B2 = 8, 9
    ST = [10, 11, 15]
    if chain:
        S("v_lshrrev_b32 v%d, 9, v0" % A2); S("v_lshlrev_b32 v%d, 4, v%d" % (A2, A2)); S("v_bfe_u32 v%d, v0, 8, 1" % TA); S("v_add_u32 v%d, v%d, v%d" % (A2, A2, TA)); S("v_mul_u32_u24 v%d, 2560, v%d" % (A2, A2))
        S("s_and_b32 s47, s21, 1"); S("s_lshl_b32 s47, s47, 6"); S("s_lshr_b32 s27, s21, 1"); S("s_lshl_b32 s27, s27, 2"); S("s_add_u32 s47, s47, s27")
        S("s_lshl_b32 s27, s22, 7"); S("s_add_u32 s47, s47, s27"); S("s_mul_i32 s47, s47, 1280"); S("s_mul_i32 s27, s20, 640"); S("s_add_u32 s47, s47, s27")
        rows = [16 * (jj >> 2) + 8 * (jj & 1) + ((jj >> 1) & 1) for jj in range(8)]
    else:
        S("v_lshrrev_b32 v%d, 8, v0" % A2); S("v_mul_u32_u24 v%d, %d, v%d" % (A2, 32 * 1280, A2))
        S("s_lshl_b32 s47, s22, 6"); S("s_add_u32 s47, s47, s21"); S("s_mul_i32 s47, s47, 2560")
        rows = [8 * (jj >> 1) + (jj & 1) for jj in range(8)]
    S("v_and_b32 v%d, 0xf0, v0" % TA); S("v_add_u32 v%d, v%d, v%d" % (A2, A2, TA))
    out = []
    n = 3 if chain else 5
    for it in range(n):
        half = chain and it == 2
        def issue(st, it=it, half=half):
            if half: S("s_mov_b32 exec_lo, 0x00ff00ff"); S("s_mov_b32 exec_hi, 0x00ff00ff")
            for jj in range(8):
                S("s_add_u32 s27, s47, %d" % (rows[jj] * 1280 + it * 256))
                S("buffer_load_dwordx4 %s, v%d, s[84:87], s27 offen" % (r4(st + 4 * jj), A2))
            if half: S("s_mov_b64 exec, -1")
        def write(st, it=it, half=half):
            S("v_and_b32 v%d, 0x300, v0" % WA); S("s_lshl_b32 s27, s21, 10")
            if not chain:
                S("s_add_u32 s27, s27, %d" % (base + it * 32768)); S("v_add_u32 v%d, s27, v%d" % (WA, WA))
                S("v_bfe_u32 v%d, v0, 6, 2" % TA); S("v_lshl_add_u32 v%d, v%d, 13, v%d" % (WA, TA, WA)); S("v_bfe_u32 v%d, v0, 4, 2" % TA); S("v_lshl_add_u32 v%d, v%d, 6, v%d" % (WA, TA, WA))
                off = [(x >> 2) * 4096 + (x & 3) * 16 for x in range(8)]
            elif not half:
                S("s_add_u32 s27, s27, %d" % (base + it * 40960)); S("v_add_u32 v%d, s27, v%d" % (WA, WA))
                S("v_bfe_u32 v%d, v0, 7, 1" % TA); S("v_mul_u32_u24 v%d, 20480, v%d" % (TA, TA)); S("v_add_u32 v%d, v%d, v%d" % (WA, WA, TA))
                S("v_bfe_u32 v%d, v0, 5, 2" % TA); S("v_lshl_add_u32 v%d, v%d, 6, v%d" % (WA, TA, WA)); S("v_and_b32 v%d, 16, v0" % TA); S("v_add_u32 v%d, v%d, v%d" % (WA, WA, TA))
                off = [(x >> 2) * 8192 + ((x >> 1) & 1) * 32 + (x & 1) * 4096 for x in range(8)]
            else:
                S("s_add_u32 s27, s27, %d" % (base + 16384)); S("v_add_u32 v%d, s27, v%d" % (WA, WA))
                S("v_bfe_u32 v%d, v0, 5, 2" % TA); S("v_mul_u32_u24 v%d, 20480, v%d" % (TA, TA)); S("v_add_u32 v%d, v%d, v%d" % (WA, WA, TA))
                S("v_bfe_u32 v%d, v0, 4, 1" % TA); S("v_lshl_add_u32 v%d, v%d, 6, v%d" % (WA, TA, WA))
                off = [(x >> 2) * 32 + ((x >> 1) & 1) * 128 + (x & 1) * 16 for x in range(8)]
                S("s_mov_b32 exec_lo, 0x00ff00ff"); S("s_mov_b32 exec_hi, 0x00ff00ff")
            for x in range(8):
                perm(S, st, x, PO[x % 2]); S("ds_write_b128 v%d, %s offset:%d" % (WA, r4(PO[x % 2]), off[x]))
            if half: S("s_mov_b64 exec, -1")
        out.append(dict(issue=issue, write=write, reads=reads if it == n - 1 else None))
    return out


def chain_load(A, K):
    S = Seq(A)
    qkv_setup(S)
    R0, R1, R2, RW = 4, 5, 6, 7
    B0, B1 = K.L_W + 81920, K.L_W
    S("s_lshl_b32 s27, s21, 13"); S("s_add_u32 s28, s27, %d" % B0); S("v_add_u32 v%d, s28, v0" % R0); S("s_add_u32 s28, s27, %d" % B1); S("v_add_u32 v%d, s28, v0" % R1)
    S("s_lshl_b32 s27, s21, 12"); S("v_add_u32 v%d, s27, v0" % R2)
    S("s_mul_i32 s27, s21, 20480"); S("s_add_u32 s27, s27, %d" % K.L_W); S("v_add_u32 v%d, s27, v0" % RW)
    S("s_mul_i32 s48, s20, 10"); S("s_and_b32 s27, s21, 1"); S("s_add_u32 s49, s27, 10"); S("s_sub_u32 s49, s49, s48"); S("s_add_u32 s48, s48, s27")
    rounds = wo_rounds(S, True, K.L_W, [(K.WO[T, u // 2] + 4 * (u % 2), RW, T * 4096 + u * 1024) for T in range(5) for u in range(4)])
    units = {}
    for i, (m, tl, rem, t) in enumerate(K.SEQ): units.setdefault((m, rem, t), {})[tl] = i
    pure = [u for u, d in units.items() if not any(i in K.LDSI for i in d.values())]
    mixed = [u for u in units if u not in pure]
    if len(pure) % 2: mixed.insert(0, pure.pop())
    assert len(mixed) % 2 == 0
    def issue_pair(st, ua, ub):
        S("s_cmp_lt_u32 s21, 2")
        S("s_cselect_b32 s26, s%d, s%d" % (48 + ua[1], 48 + ub[1])); S("s_cselect_b32 s27, %d, %d" % (2 * ua[2], 2 * ub[2]));
        S("s_cselect_b64 s[88:89], s[%d:%d], s[%d:%d]" % (SRD[K.MATS[ua[0]]], SRD[K.MATS[ua[0]]] + 1, SRD[K.MATS[ub[0]]], SRD[K.MATS[ub[0]]] + 1))
        S("s_add_u32 s26, s26, s27"); qkv_issue(S, st, "s[88:91]", "s26")
    S("s_mov_b32 s90, %d" % SZ_W); S("s_mov_b32 s91, 0x00020000")
    for r in range(len(pure) // 2):
        ua, ub = pure[2 * r], pure[2 * r + 1]
        def write(st, r=r):
            S("s_lshl_b32 s27, s21, 11"); S("s_add_u32 s27, s27, %d" % (B0, B1)[r % 2]); S("v_add_u32 v%d, s27, v0" % WA)
            for x in range(8):
                perm(S, st, x, PO[x % 2]); S("ds_write_b128 v%d, %s offset:%d" % (WA, r4(PO[x % 2]), (x // 2) * 8192 + (x % 2) * 1024))
        rounds.append(dict(issue=lambda st, ua=ua, ub=ub: issue_pair(st, ua, ub), write=write,
                           reads=[(K.WREG[units[(ua, ub)[tk // 2]][tl]] + 4 * (tk % 2), (R0, R1)[r % 2], tk * 2048 + tl * 1024) for tk in range(4) for tl in range(2)]))
    for r in range(len(mixed) // 2):
        ua, ub = mixed[2 * r], mixed[2 * r + 1]
        assert all(sum(i not in K.LDSI for i in units[u].values()) <= 1 for u in (ua, ub))
        def write(st, ua=ua, ub=ub):
            S("s_and_b32 s28, s21, 1"); S("s_lshl_b32 s28, s28, 10")
            for tl in range(2):
                pr = []
                for k_, u in enumerate((ua, ub)):
                    i = units[u][tl]
                    pr.append((K.L_W + K.LDSI.index(i) * 2048, K.LW_WAVE) if i in K.LDSI else (k_ * 2048, 4096))
                S("s_mov_b32 s29, %d" % pr[1][0]); S("s_mov_b32 s30, %d" % pr[1][1])
                S("s_cmp_lt_u32 s21, 2"); S("s_cselect_b32 s29, %d, s29" % pr[0][0]); S("s_cselect_b32 s30, %d, s30" % pr[0][1]); S("s_add_u32 s29, s29, s28")
                for dw in range(4):
                    x = 2 * dw + tl
                    S("v_add_u32 v%d, s29, v0" % (WA + dw % 2)); S("s_add_u32 s29, s29, s30")
                    perm(S, st, x, PO[dw % 2]); S("ds_write_b128 v%d, %s" % (WA + dw % 2, r4(PO[dw % 2])))
        rd = []
        for k_, u in enumerate((ua, ub)):
            for tl in range(2):
                i = units[u][tl]
                if i not in K.LDSI: rd += [(K.WREG[i] + 4 * hf, R2, k_ * 2048 + hf * 1024) for hf in range(2)]
        rounds.append(dict(issue=lambda st, ua=ua, ub=ub: issue_pair(st, ua, ub), write=write, reads=rd, pre=True))
    run(S, rounds)


def bulk_load(A, L, breg):
    S = Seq(A)
    qkv_setup(S)
    R0, R1, RW = 4, 5, 7
    S("s_lshl_b32 s27, s21, 13"); S("v_add_u32 v%d, s27, v0" % R0); S("v_add_u32 v%d, 32768, v%d" % (R1, R0))
    S("s_cmp_eq_u32 s20, 2"); S("s_cbranch_scc1 %s" % L("bl_kv"))
    S("s_mul_i32 s27, s21, 40960"); S("v_add_u32 v%d, s27, v0" % RW)
    run(S, wo_rounds(S, False, 0, [(breg(40 + f), RW, f * 1024) for f in range(40)]))
    S("s_barrier")
    run(S, plain_rounds(S, "s[72:75]", lambda tl, ks: breg(tl * 20 + ks), [0, 32768], [R0, R1]))
    S("s_branch %s" % L("lw_done"))
    A.label(L("bl_kv"))
    S = Seq(A)
    run(S, plain_rounds(S, "s[76:79]", lambda tl, ks: breg(tl * 20 + ks), [0, 32768], [R0, R1]) +
        plain_rounds(S, "s[80:83]", lambda tl, ks: breg(40 + tl * 20 + ks), [32768, 0], [R1, R0]))
```

```python
from asmlib import *
from layout import *
from seq import *
import k_chain
from k_chain import chain_body, f2u, C1, SPIN_MAX, OOB, L_FL
from k_load import chain_load, bulk_load
from k_tab import lane_setup, t1_frag, t2_frag, wt_task
from k_ln import ln_body
from k_b import fft2, idft, idft_table

GMAP = 0x76524130


def breg(i):
    return 256 + 4 * i if i < 64 else 192 + 4 * (i - 64)


def main_kernel(P):
    name = "interleave_layers__memory_aug_recurrent_mem_tr__spectral_gfnet__prompt_kernel"
    k = Kernel(name, 256, 256, 163840, 256, 256, sgpr=102)
    A = k.asm
    L = lambda x: "M_%s" % x

    def ht2(i):
        if P.get("HT", 0) >= 2: ht(i, True)
    def hb(i, flush=False):
        if P.get("HT", 0) != 4: return
        lab = A.newlabel(L("hb"))
        A("s_xor_b32 s6, s84, 1"); A("s_or_b32 s6, s6, s83"); A("s_cmp_lg_u32 s6, 0"); A("s_cbranch_scc1 %s" % lab)
        A("s_memrealtime s[6:7]"); A("s_waitcnt lgkmcnt(0)"); A("s_lshl_b32 s6, s6, 4"); A("s_or_b32 s6, s6, %d" % (i & 15))
        A("v_writelane_b32 v188, s6, %d" % i)
        if flush:
            A("s_add_u32 s7, s82, 2"); A("s_lshl_b32 s7, s7, 8"); A("s_add_u32 s7, s7, %d" % (WS_DBG + (4 << 20) + 128)); A("v_mbcnt_lo_u32_b32 v189, -1, 0"); A("v_lshlrev_b32 v189, 2, v189")
            A("s_mov_b64 exec, 0x%x" % ((1 << (i + 1)) - 1)); A("buffer_store_dword v188, v189, s[8:11], s7 offen"); A("s_mov_b64 exec, -1")
        A.label(lab)
    def hq(i):
        if P.get("HT", 0) != 3: return
        lab = A.newlabel(L("hq"))
        A("s_or_b32 s6, s21, s22"); A("s_cmp_lg_u32 s6, 0"); A("s_cbranch_scc1 %s" % lab); A("s_cmp_lt_u32 s44, 59"); A("s_cbranch_scc1 %s" % lab)
        A("s_memrealtime s[6:7]"); A("s_waitcnt lgkmcnt(0)")
        A("s_lshl_b32 s7, s20, 8"); A("s_add_u32 s7, s7, s5"); A("s_add_u32 s5, s5, 4"); A("s_add_u32 s7, s7, %d" % (WS_DBG + (4 << 20)))
        A("s_lshl_b32 s6, s6, 4"); A("s_or_b32 s6, s6, %d" % i)
        A("v_writelane_b32 v188, s6, %d" % i); A("v_writelane_b32 v189, s7, %d" % i)
        if i == 15: A("s_mov_b64 exec, 0xffe1"); A("buffer_store_dword v188, v189, s[8:11], 0 offen"); A("s_mov_b64 exec, -1")
        A.label(lab)
    def ht(i, saved=False):
        if P.get("HD") and not saved:
            lab = A.newlabel(L("hd"))
            A("s_or_b32 s6, s21, s22"); A("s_and_b32 s7, s20, 3"); A("s_or_b32 s6, s6, s7"); A("s_cmp_lg_u32 s6, 0"); A("s_cbranch_scc1 %s" % lab)
            if i == 0: A("s_mov_b32 s6, s96")
            else: A("s_memrealtime s[6:7]"); A("s_waitcnt lgkmcnt(0)")
            A("s_lshl_b32 s7, s20, 2"); A("s_add_u32 s7, s7, s5"); A("s_add_u32 s5, s5, 2"); A("s_add_u32 s7, s7, %d" % 36)
            A("s_cmp_ge_u32 s7, 64"); A("s_cselect_b32 s7, 50, s7")
            A("s_mov_b64 exec, 1"); A("v_mov_b32 v10, s6"); A("v_mov_b32 v11, 0"); A("buffer_store_short v10, v11, s[12:15], s7 offen"); A("s_waitcnt vmcnt(0)"); A("s_mov_b64 exec, -1")
            A.label(lab); return
        if not P.get("HT"): return
        lab = A.newlabel(L("ht"))
        if saved:
            A("s_or_b32 s6, s83, s84"); A("s_cmp_lg_u32 s6, 0"); A("s_cbranch_scc1 %s" % lab)
            A("s_memrealtime s[6:7]"); A("s_waitcnt lgkmcnt(0)")
            A("s_add_u32 s7, s82, 2"); A("s_lshl_b32 s7, s7, 8"); A("s_add_u32 s7, s7, s5"); A("s_add_u32 s5, s5, 4"); A("s_add_u32 s7, s7, %d" % (WS_DBG + (4 << 20)))
            A("s_lshl_b32 s6, s6, 4"); A("s_or_b32 s6, s6, %d" % i)
            A("s_mov_b64 exec, 1"); A("v_mov_b32 v190, s6"); A("v_mov_b32 v191, 0"); A("buffer_store_dword v190, v191, s[8:11], s7 offen"); A("s_mov_b64 exec, -1")
            A.label(lab); return
        A("s_or_b32 s6, s21, s22"); A("s_cmp_lg_u32 s6, 0"); A("s_cbranch_scc1 %s" % lab)
        A("s_memrealtime s[6:7]"); A("s_waitcnt lgkmcnt(0)")
        A("s_lshl_b32 s7, s20, 8"); A("s_add_u32 s7, s7, s5"); A("s_add_u32 s5, s5, 4"); A("s_add_u32 s7, s7, %d" % (WS_DBG + (4 << 20)))
        A("s_lshl_b32 s6, s6, 4"); A("s_or_b32 s6, s6, %d" % i)
        A("s_mov_b64 exec, 1"); A("v_mov_b32 v10, s6"); A("v_mov_b32 v11, 0"); A("buffer_store_dword v10, v11, s[8:11], s7 offen"); A("s_waitcnt vmcnt(0)"); A("s_mov_b64 exec, -1")
        A.label(lab)

    ool = []
    def flush_ool():
        for lab, grp in ool:
            A.label(lab)
            for t_ in grp: A(t_)
            A("s_branch %s_r" % lab)
        del ool[:]

    def lst(op, E=None):
        E = E or A
        l1 = A.newlabel(L("ls"))
        E("s_cmp_lg_u32 s23, 0"); E("s_cbranch_scc1 %s" % l1)
        for o in op: E(o)
        A.label(l1 + "_r")
        ool.append((l1, ["s_nop 7"] + [o + " sc1" if o.startswith("buffer_store") else o for o in op]))

    A("s_cmp_ge_u32 s2, 256"); A("s_cbranch_scc1 %s" % L("end"))
    if P.get("HD"): A("s_memrealtime s[96:97]")
    load_srd(A, 16, KA_X, SZ_X); load_srd(A, 8, KA_WS, SZ_WS); load_srd(A, 12, KA_DBG, 256)
    for b_, ka in ((72, KA_WQ), (76, KA_WK), (80, KA_WV), (84, KA_WO), (68, KA_MEM0)): load_srd(A, b_, ka, 0)
    A("s_getreg_b32 s24, hwreg(HW_REG_XCC_ID)"); A("s_and_b32 s24, s24, 7")
    if P.get("CPF", 1):
        A("s_getpc_b64 s[26:27]")
        A.label(L("cpf"))
        A("s_lshr_b32 s28, s2, 3"); A("s_lshl_b32 s28, s28, 8"); A("v_add_u32 v13, s28, v0"); A("v_lshlrev_b32 v13, 6, v13")
        A("v_cmp_gt_u32 vcc, %s - %s, v13" % (L("end"), L("cpf"))); A("s_and_saveexec_b64 s[28:29], vcc"); A("s_cbranch_execz %s" % L("cpfd"))
        A("global_load_dword v14, v13, s[26:27]")
        A.label(L("cpfd"))
        A("s_mov_b64 exec, s[28:29]")
    A("v_lshrrev_b32 v12, 6, v0"); A("v_and_b32 v0, 63, v0"); A("v_readfirstlane_b32 s21, v12")
    A("v_lshlrev_b32 v0, 4, v0")
    A("s_waitcnt lgkmcnt(0)")
    fin_srd(A, 8, SZ_WS); fin_srd(A, 12, 256); fin_srd(A, 16, SZ_X)
    for b_, sz in ((72, SZ_W), (76, SZ_W), (80, SZ_W), (84, SZ_W), (68, SZ_MEM0)): fin_srd(A, b_, sz)
    A("s_mov_b32 s5, 0"); A("s_mov_b32 s101, 0")
    A("s_cmp_eq_u32 s21, 0"); A("s_cbranch_scc1 %s" % L("tick"))
    A("s_cmp_eq_u32 s21, 3"); A("s_cbranch_scc1 %s" % L("zero"))
    for q in range(4): A("v_mov_b32 v%d, -1" % (28 + q))
    A("s_lshl_b32 s26, s2, 1"); A("s_add_u32 s26, s26, s21"); A("s_lshl_b32 s26, s26, 12"); A("s_add_u32 s26, s26, %d" % (WS_FILL - 4096))
    for q in range(4): A("buffer_store_dwordx4 v[28:31], v0, s[8:11], s26 offen offset:%d sc1" % (1024 * q))
    A("s_branch %s" % L("notick"))
    A.label(L("zero"))
    for q in range(4): A("v_mov_b32 v%d, 0" % (28 + q))
    A("s_lshl_b32 s26, s2, 9"); A("s_add_u32 s26, s26, %d" % WS_ZERO)
    A("s_mov_b32 exec_hi, 0"); A("buffer_store_dwordx4 v[28:31], v0, s[8:11], s26 offen sc1"); A("s_mov_b64 exec, -1")
    A("s_cmp_ge_u32 s2, 10"); A("s_cbranch_scc1 %s" % L("notick"))
    A("v_bfe_u32 v6, v0, 4, 3"); A("v_mul_u32_u24 v6, 1280, v6"); A("v_lshrrev_b32 v7, 8, v0"); A("v_lshl_add_u32 v6, v7, 5, v6"); A("v_bfe_u32 v7, v0, 7, 1"); A("v_lshl_add_u32 v6, v7, 2, v6")
    A("s_lshl_b32 s26, s2, 7")
    for n in range(4): A("buffer_load_dword v%d, v6, s[68:71], s26 offen offset:%d" % (32 + n, 8 * n))
    A("v_and_b32 v7, 0x200, v0")
    for src, dst in ((6, 8), (4, 7), (5, 6), (8, 5), (7, 4)):
        A("v_bfe_u32 v12, v0, %d, 1" % src); A("v_lshl_or_b32 v7, v12, %d, v7" % dst)
    A("s_lshl_b32 s26, s2, 10"); A("s_add_u32 s26, s26, %d" % WS_M0); A("s_waitcnt vmcnt(0)")
    for n in range(4): A("v_min_u32 v%d, -2, v%d" % (32 + n, 32 + n))
    A("buffer_store_dwordx4 v[32:35], v7, s[8:11], s26 offen sc1")
    A("s_branch %s" % L("notick"))
    A.label(L("tick"))
    A("s_and_b32 s25, s24, 5"); A("s_cmp_lg_u32 s25, 1"); A("s_cbranch_scc1 %s" % L("nocal"))
    A("s_bfe_u32 s25, s2, 0x20003"); A("s_lshl_b32 s26, s25, 13"); A("s_lshr_b32 s27, s2, 5"); A("s_lshl_b32 s27, s27, 15"); A("s_add_u32 s26, s26, s27")
    A("s_lshl_b32 s27, s24, 8"); A("s_add_u32 s26, s26, s27"); A("s_add_u32 s26, s26, %d" % WS_MR)
    for q in range(4): A("v_mov_b32 v%d, -1" % (28 + q))
    A("s_mov_b64 exec, 0xff"); A("s_mov_b32 s27, -1"); A("s_waitcnt vmcnt(0)")
    for rep in range(4):
        A("s_memtime s[28:29]"); A("buffer_store_dwordx4 v[28:31], v0, s[8:11], s26 offen sc1"); A("s_waitcnt vmcnt(0)"); A("s_memtime s[30:31]")
        A("s_waitcnt lgkmcnt(0)"); A("s_sub_u32 s28, s30, s28"); A("s_min_u32 s27, s27, s28")
    A("s_mov_b64 exec, 1"); A("s_not_b32 s27, s27"); A("v_mov_b32 v28, s27"); A("s_lshl_b32 s25, s25, 2"); A("s_add_u32 s25, s25, 128"); A("v_mov_b32 v29, s25")
    A("buffer_atomic_umax v28, v29, s[12:15], 0 offen")
    A.label(L("nocal"))
    A("s_mov_b64 exec, 1")
    A("v_mov_b32 v28, 1"); A("s_lshl_b32 s25, s24, 2"); A("v_mov_b32 v29, s25")
    A("buffer_atomic_add v28, v29, s[12:15], 0 offen sc0"); A("s_waitcnt vmcnt(0)")
    A("v_mov_b32 v29, %d" % L_FL); A("ds_write_b32 v29, v28"); A("s_waitcnt lgkmcnt(0)")
    A("s_mov_b64 exec, -1")
    A.label(L("notick"))
    A("s_waitcnt vmcnt(0)"); A("s_barrier")
    A("s_cmp_lg_u32 s21, 0"); A("s_cbranch_scc1 %s" % L("noarr"))
    A("s_mov_b64 exec, 1"); A("v_mov_b32 v30, 1"); A("v_mov_b32 v29, 32"); A("buffer_atomic_add v30, v29, s[12:15], 0 offen"); A("s_mov_b64 exec, -1")
    A.label(L("noarr"))
    A("v_mov_b32 v29, %d" % L_FL); A("ds_read_b32 v28, v29"); A("s_waitcnt lgkmcnt(0)"); A("v_readfirstlane_b32 s25, v28")
    A("s_lshl_b32 s20, s24, 2"); A("s_lshr_b32 s20, 0x%x, s20" % GMAP); A("s_and_b32 s20, s20, 7"); A("s_and_b32 s22, s25, 31")
    A("s_mov_b32 s23, 0"); A("s_mov_b32 s32, 0")
    ht(0)
    A("s_cmp_ge_u32 s20, 3"); A("s_cbranch_scc1 %s" % L("lw_done"))
    A.label(L("loadw"))
    A("s_barrier")
    A("s_cmp_lt_u32 s20, 2"); A("s_cbranch_scc1 %s" % L("lw_chain"))
    A("s_cmp_lt_u32 s20, 4"); A("s_cbranch_scc1 %s" % L("lw_bulk"))
    A("s_lshl_b32 s34, s22, 2"); A("s_add_u32 s34, s34, s20"); A("s_sub_u32 s34, s34, 4"); A("s_mov_b32 s92, s33"); A("s_mov_b32 s33, s21")
    lane_setup(A); ln_body(A, "s34", 16, 0, WS_XNF, False, "", lambda st: [A(t_ + " sc1") for t_ in st])
    A("s_mov_b32 s33, s92"); A("s_waitcnt vmcnt(0)"); A("s_barrier")
    A("s_cmp_lg_u32 s21, 0"); A("s_cbranch_scc1 %s" % L("lw_bulk"))
    A("s_lshr_b32 s27, s34, 1"); A("s_lshl_b32 s27, s27, 7"); A("s_and_b32 s28, s34, 1"); A("s_mul_i32 s28, s28, 20"); A("s_add_u32 s27, s27, s28"); A("s_add_u32 s27, s27, %d" % WS_XFL)
    A("v_lshrrev_b32 v12, 2, v0"); A("v_mov_b32 v13, 1"); A("s_mov_b64 exec, 31"); A("buffer_store_dword v13, v12, s[8:11], s27 offen sc1"); A("s_mov_b64 exec, -1")
    A.label(L("lw_bulk"))
    bulk_load(A, L, breg)
    A("s_branch %s" % L("lw_done"))
    A.label(L("lw_chain"))
    chain_load(A, k_chain)
    A.label(L("lw_done"))
    A("s_cmp_lg_u32 s32, 0"); A("s_cbranch_scc1 %s" % L("role_ok"))
    A("s_mov_b32 s32, 1"); A("s_mov_b32 s30, 0")
    A("v_bfe_u32 v12, v0, 4, 4"); A("v_lshlrev_b32 v12, 2, v12")
    A.label(L("modepoll"))
    A("buffer_load_dword v13, v12, s[12:15], 0 offen sc1"); A("s_waitcnt vmcnt(0)")
    A("v_readlane_b32 s31, v13, 8")
    A("s_cmp_eq_u32 s31, 256"); A("s_cbranch_scc1 %s" % L("modegot"))
    A("s_sleep 2")
    A("s_add_u32 s30, s30, 1"); A("s_cmp_lt_u32 s30, %d" % SPIN_MAX); A("s_cbranch_scc1 %s" % L("modepoll"))
    A("s_branch %s" % L("fail"))
    A.label(L("modegot"))
    A("buffer_load_dword v13, v12, s[12:15], 0 offen sc1"); A("buffer_load_dword v14, v12, s[12:15], 0 offen offset:128 sc1"); A("s_waitcnt vmcnt(0)")
    A("v_readlane_b32 s26, v14, 0"); A("s_mov_b32 s33, 0")
    for q in range(1, 4):
        A("v_readlane_b32 s27, v14, %d" % q); A("s_nop 0"); A("s_cmp_gt_u32 s27, s26"); A("s_cselect_b32 s33, %d, s33" % (q << 13)); A("s_max_u32 s26, s26, s27")
    A("s_xor_b32 s33, s33, %d" % (0x4000 ^ (P.get("PG", 0) << 13)))
    A("v_cmp_ne_u32 vcc, 32, v13"); A("s_and_b32 s31, vcc_lo, 0xff")
    if P.get("FORCE_SLOW"): A("s_mov_b32 s31, 1")
    A("s_cmp_lg_u32 s31, 0"); A("s_cbranch_scc1 %s" % L("slowm"))
    A("s_cmp_ge_u32 s20, 3"); A("s_cbranch_scc1 %s" % L("loadw")); A("s_branch %s" % L("role_ok"))
    A.label(L("slowm"))
    A("s_mov_b32 s23, 1"); A("s_mov_b32 s31, s25")
    for x in range(7):
        A("v_readlane_b32 s30, v13, %d" % x); A("s_cmp_gt_u32 s24, %d" % x); A("s_cselect_b32 s30, s30, 0"); A("s_add_u32 s31, s31, s30")
    if P.get("FORCE_SLOW"):
        A("s_and_b32 s20, s31, 7"); A("s_lshr_b32 s22, s31, 3")
    else:
        A("s_lshr_b32 s20, s31, 5"); A("s_and_b32 s22, s31, 31")
    A("s_and_b32 s20, s20, 7"); A("s_and_b32 s22, s22, 31")
    A("s_branch %s" % L("loadw"))
    A.label(L("role_ok"))
    A("s_mov_b32 s25, s33")
    A("s_cmp_ge_u32 s20, 2"); A("s_cbranch_scc1 %s" % L("bulk"))
    chain_body(A, P, L, ht)

    def mf32(S, acc, a_, b_, c): S("v_mfma_f32_16x16x32_bf16 %s, %s, %s, %s" % (r4(acc), ureg(a_, 4), ureg(b_, 4), c if isinstance(c, str) else r4(c)))
    def mf16(S, acc, a_, b_, c): S("v_mfma_f32_16x16x16_bf16 %s, %s, %s, %s" % (r4(acc), r2(a_), r2(b_), c if isinstance(c, str) else r4(c)))
    def rd(S, dst, areg, off): return S("ds_read_b128 %s, v%d offset:%d" % (r4(dst), areg, off))

    def x_dma(S, seg_s, slot_s):
        S("s_min_u32 s27, %s, 63" % seg_s); S("s_mul_i32 s27, s27, 40960"); S("s_add_u32 s27, s27, s47"); S("s_add_u32 s28, %s, s42" % slot_s)
        for f in range(10):
            if f % 4 == 0:
                if f: S("s_add_u32 s27, s27, 4096"); S("s_add_u32 s28, s28, 4096")
                S("s_mov_b32 m0, s28")
            S("buffer_load_dwordx4 v0, s[8:11], s27 offen offset:%d sc1 lds" % ((f % 4) * 1024))

    def proj(S, areg, acc, XB, tr=False, mid=None):
        NB = len(XB)
        seq = [(mt, ks) for mt in range(2) for ks in range(20)]
        for i in range(NB - 1): rd(S, XB[i], areg, i * 1024)
        for i, (mt, ks) in enumerate(seq):
            if mid and i == 22: mid(S)
            if i + NB - 1 < 40: rd(S, XB[(i + NB - 1) % NB], areg, (i + NB - 1) * 1024)
            for tl in range(2):
                a = acc + 8 * mt + 4 * tl
                if tr: mf32(S, a, XB[i % NB], breg(tl * 20 + ks), "0" if ks == 0 else a)
                else: mf32(S, a, breg(tl * 20 + ks), XB[i % NB], "0" if ks == 0 else a)

    def xpoll(S, mask, tag):
        ld = A.newlabel(L(tag)); lp = A.newlabel(L(tag)); le = A.newlabel(L(tag))
        A("s_cmp_lg_u32 s21, 0"); A("s_cbranch_scc1 %s" % ld)
        A("v_lshlrev_b32 v190, 3, v0"); A("s_mov_b64 exec, %s" % mask); A("s_mov_b32 s30, 0"); A("s_lshl_b32 s27, %s, 13" % ("0" if P.get("NOQAO") else "s101")); A("s_add_u32 s27, s27, %d" % WS_XFL)
        A.label(lp)
        A("buffer_load_dwordx4 v[176:179], v190, s[8:11], s27 offen sc1"); A("buffer_load_dwordx4 v[180:183], v190, s[8:11], s27 offen offset:16 sc1"); A("buffer_load_dwordx2 v[184:185], v190, s[8:11], s27 offen offset:32 sc1")
        A("s_add_u32 s30, s30, 1"); A("s_cmp_ge_u32 s30, %d" % SPIN_MAX); A("s_cbranch_scc1 %s" % L("fail"))
        A("s_waitcnt vmcnt(0)")
        for i in range(177, 185, 2): A("v_min3_u32 v176, v176, v%d, v%d" % (i, i + 1))
        A("v_min_u32 v176, v176, v185"); A("v_cmp_eq_u32 vcc, 0, v176"); A("s_cbranch_vccnz %s" % lp)
        A("s_mov_b64 exec, -1")
        A.label(ld)
        A("s_barrier")
        A.label(le)

    def poll(S, addr_s, lanes, cmp_ins, tag, sleep=1, sh="v_lshrrev_b32 v190, 2, v0"):
        ld = A.newlabel(L(tag)); lp = A.newlabel(L(tag))
        S("s_cmp_lg_u32 s21, 0"); S("s_cbranch_scc1 %s" % ld)
        A("s_mov_b64 exec, 0x%x" % lanes); A("s_mov_b32 s30, 0"); A(sh)
        A.label(lp)
        A("buffer_load_dword v191, v190, s[8:11], %s offen sc1" % addr_s)
        A("s_add_u32 s30, s30, 1"); A("s_cmp_ge_u32 s30, %d" % SPIN_MAX); A("s_cbranch_scc1 %s" % L("fail"))
        A("s_waitcnt vmcnt(0)"); A(cmp_ins); A("s_cbranch_vccz %s" % (lp + "d"))
        if sleep: A("s_sleep %d" % sleep)
        A("s_branch %s" % lp)
        A.label(lp + "d")
        A("s_mov_b64 exec, -1")
        A.label(ld)
        S("s_barrier")

    A.label(L("bulk"))
    A("s_waitcnt vmcnt(0)"); A("s_barrier")
    ht(1)
    A("s_mul_i32 s42, s21, 10240"); A("s_mul_i32 s47, s101, %d" % XNF_LAYER); A("s_add_u32 s47, s47, s42"); A("s_add_u32 s47, s47, %d" % WS_XNF)
    A("s_mul_i32 s50, s101, %d" % KV_LAYER); A("s_lshl_b32 s27, s22, 13"); A("s_add_u32 s50, s50, s27"); A("s_add_u32 s50, s50, %d" % WS_KXF)
    A("s_lshl_b32 s43, s101, 6")
    A("s_mul_i32 s27, s22, 26"); A("s_lshr_b32 s27, s27, 8"); A("s_mul_i32 s28, s27, 10"); A("s_sub_u32 s88, s22, s28")
    A("s_mul_i32 s28, s20, 3"); A("s_sub_u32 s28, s28, 9")
    A("s_cmp_lt_u32 s20, 3"); A("s_cselect_b32 s28, 15, s28"); A("s_cselect_b32 s29, 1, 3"); A("s_add_u32 s28, s28, s27")
    A("s_lshl_b32 s89, s28, 2"); A("s_add_u32 s89, s89, s21"); A("s_cmp_lt_u32 s27, s29"); A("s_cselect_b32 s89, s89, 64")
    A("s_cmp_ge_u32 s20, 3"); A("s_cbranch_scc1 %s" % L("qao"))
    S = Seq(A)
    S("s_lshl_b32 s28, s21, 11"); S("s_add_u32 s52, s50, s28"); S("s_add_u32 s52, s52, %d" % KV_MAT); S("s_lshl_b32 s28, s21, 10"); S("s_add_u32 s50, s50, s28")
    S("s_lshl_b32 s51, s22, 8"); S("s_add_u32 s51, s51, %d" % WS_KVFL); S("v_lshlrev_b32 v3, 3, v0")
    S("s_mov_b32 s44, 0"); S("s_mov_b32 s45, 0")
    xpoll(S, "7", "kx")
    x_dma(S, "s44", "s45"); S.wait_vm_all(); S("s_barrier")
    XB = [56 + 4 * i for i in range(5)]
    S("v_mov_b32 v1, v0")
    for i in range(4): rd(S, XB[i], 1, i * 1024)
    A.label(L("kv_top"))
    S = Seq(A); S.nl = 4
    for i in range(4):
        for r_ in range(4): S.lp["v%d" % (XB[i] + r_)] = i + 1
    S("s_add_u32 s27, s44, s43"); S("v_mov_b32 v2, s27")
    S("s_sub_u32 s45, 40960, s45"); S("s_add_u32 s44, s44, 1"); S("v_add_u32 v4, s45, v0")
    dm = []; x_dma(dm.append, "s44", "s45")
    def kflag(tag):
        A("s_cmp_lg_u32 s21, 0"); A("s_cbranch_scc1 %s" % L(tag))
        A("s_mov_b64 exec, 3"); A("buffer_store_dword v2, v3, s[8:11], s51 offen sc1"); A("s_mov_b64 exec, -1")
        A.label(L(tag))
    sq = [(mt, ks) for mt in range(2) for ks in range(20)]
    ep = []
    for i, (mt, ks) in enumerate(sq):
        if i in (0, 2, 4):
            n_ = 0
            while dm and (n_ < 4 or not dm[0].startswith("s_")) and not (n_ >= 4 and dm[0].startswith("buffer")):
                if dm[0].startswith("buffer"): n_ += 1
                S(dm.pop(0))
        if i == 12: S("s_waitcnt vmcnt(10)"); S("s_barrier"); kflag("kv_f0")
        if i == 22:
            ep = ["v_cvt_pk_bf16_f32 v%d, v%d, v%d" % (40 + q, 8 + q, 12 + q) for q in range(4)]
            ep += ["v_cvt_pk_bf16_f32 v%d, v%d, v%d" % (48 + 4 * tl + q, 24 + 4 * tl + 2 * q, 25 + 4 * tl + 2 * q) for tl in range(2) for q in range(2)]
        if i == 36: S("s_waitcnt vmcnt(0)"); S("s_barrier")
        if i + 4 < 40: rd(S, XB[(i + 4) % 5], 1, (i + 4) * 1024)
        else: rd(S, XB[(i + 4) % 5], 4, (i - 36) * 1024)
        for tl in range(2):
            a_ = 8 + 8 * mt + 4 * tl
            mf32(S, a_, breg(tl * 20 + ks), XB[i % 5], "0" if ks == 0 else a_)
            if ep: S(ep.pop(0))
            mf32(S, a_ + 16, XB[i % 5], breg(40 + tl * 20 + ks), "0" if ks == 0 else a_ + 16)
    assert not dm
    S("s_add_u32 s27, s50, 4096"); S("v_mov_b32 v1, v4")
    S("buffer_store_dwordx4 %s, v0, s[8:11], s50 offen sc1" % r4(40))
    for i in range(4): S("v_cvt_pk_bf16_f32 v%d, v%d, v%d" % (44 + i, 16 + i, 20 + i))
    for tl in range(2):
        for q in range(2): S("v_cvt_pk_bf16_f32 v%d, v%d, v%d" % (50 + 4 * tl + q, 32 + 4 * tl + 2 * q, 33 + 4 * tl + 2 * q))
    S("buffer_store_dwordx4 %s, v0, s[8:11], s27 offen sc1" % r4(44))
    for tl in range(2): S("buffer_store_dwordx4 %s, v0, s[8:11], s52 offen offset:%d sc1" % (r4(48 + 4 * tl), 1024 * tl))
    S("s_add_u32 s50, s50, 262144"); S("s_add_u32 s52, s52, 262144")
    A("s_barrier")
    S("s_cmp_lg_u32 s44, 2"); S("s_cbranch_scc1 %s" % L("kv_np"))
    xpoll(S, "-1", "kx")
    A.label(L("kv_np"))
    S("s_cmp_lt_u32 s44, 64"); S("s_cbranch_scc1 %s" % L("kv_top"))
    A("s_add_u32 s27, s44, s43"); A("v_mov_b32 v2, s27"); A("s_waitcnt vmcnt(0) lgkmcnt(0)"); A("s_barrier"); kflag("kv_f2")
    if P.get("NOQAO"):
        A("s_cmp_lg_u32 s101, 0"); A("s_cbranch_scc1 %s" % L("end")); A("s_mov_b32 s101, 1"); A("s_branch %s" % L("bulk"))
    A("s_branch %s" % L("bphase"))

    LQ_EQ, LQ_EO, LQ_ST, LQ_FT = 81920, 90112, 98304, 122880
    A.label(L("qao"))
    if P.get("NOQAO"): A("s_branch %s" % L("end"))
    A("s_cmp_lg_u32 s101, 0"); A("s_cbranch_scc1 %s" % L("q_ft"))
    lane_setup(A); A("s_min_u32 s36, s22, 19"); A("s_mul_i32 s36, s36, 40"); A("s_mul_i32 s27, s21, 10"); A("s_add_u32 s36, s36, s27"); A("s_add_u32 s35, s36, 10")
    A("s_add_u32 s27, s42, %d" % LQ_FT); A("v_add_u32 v2, s27, v0")
    A.label(L("q_ftl"))
    t1_frag(A); A("ds_write_b128 v2, v[24:27]"); A("v_add_u32 v2, 1024, v2")
    A("s_add_u32 s36, s36, 1"); A("s_cmp_lt_u32 s36, s35"); A("s_cbranch_scc1 %s" % L("q_ftl"))
    A("s_waitcnt lgkmcnt(0)")
    A.label(L("q_ft"))
    S = Seq(A)
    G, R_, VH, PSX, RLA, RLB, XOA, XOB, THR, XHA, XDA, FTA = 1, 2, 3, 4, 5, 6, 7, 8, 9, 12, 13, 14
    SELR = 16
    def cvt(d, a_, b_, op="v_cvt_pk_bf16_f32"): S("%s v%d, v%d, v%d" % (op, d, a_, b_))
    S("v_lshrrev_b32 v%d, 8, v0" % G); S("v_bfe_u32 v%d, v0, 4, 4" % R_)
    S("v_add_u32 v%d, %d, v0" % (VH, LQ_EQ)); S("v_add_u32 v%d, %d, v0" % (FTA, LQ_FT))
    S("s_mul_i32 s28, s21, 320")
    S("v_mul_u32_u24 v10, 40960, v%d" % R_); S("v_lshl_add_u32 v10, v%d, 4, v10" % G); S("s_mul_i32 s27, s22, 1280"); S("s_add_u32 s29, s27, s28"); S("v_add_u32 v%d, s29, v10" % PSX)
    S("v_mul_u32_u24 v10, 1280, v%d" % G); S("s_mul_i32 s27, s22, 40960"); S("s_add_u32 s27, s27, s28"); S("v_add_u32 v10, s27, v10"); S("v_lshl_add_u32 v%d, v%d, 4, v10" % (RLA, R_))
    S("v_lshrrev_b32 v11, 2, v%d" % R_); S("v_mul_u32_u24 v15, 5120, v11"); S("v_add_u32 v10, v10, v15"); S("v_and_b32 v15, 0x30, v0"); S("v_add_u32 v%d, v10, v15" % RLB)
    S("v_and_b32 v10, 1, v%d" % G); S("v_lshlrev_b32 v10, 3, v10"); S("v_add_u32 v%d, s29, v10" % XOB); S("v_lshl_add_u32 v%d, v%d, 4, v%d" % (XOA, R_, XOB)); S("v_add_u32 v%d, v%d, v15" % (XOB, XOB))
    S("v_lshl_add_u32 v10, v11, 10, v10"); S("v_lshl_add_u32 v10, v15, 4, v10"); S("s_mul_i32 s27, s21, 5120"); S("s_and_b32 s28, s22, 15"); S("s_lshl_b32 s28, s28, 4"); S("s_add_u32 s27, s27, s28")
    S("s_lshr_b32 s28, s22, 4"); S("s_mul_i32 s28, s28, 20480"); S("s_add_u32 s27, s27, s28"); S("v_add_u32 v%d, s27, v10" % XHA)
    S("v_lshlrev_b32 v10, 13, v%d" % R_); S("v_lshl_add_u32 v10, v%d, 4, v10" % G); S("s_lshl_b32 s27, s22, 18"); S("s_lshl_b32 s28, s21, 6"); S("s_add_u32 s27, s27, s28"); S("v_add_u32 v%d, s27, v10" % XDA)
    S("s_and_b32 s58, s21, 1"); S("s_lshr_b32 s59, s21, 1")
    S("v_lshlrev_b32 v10, 2, v%d" % G); S("v_sub_u32 v10, v%d, v10" % R_); S("s_lshl_b32 s27, s58, 4"); S("v_add_u32 v%d, s27, v10" % THR)
    S("v_and_b32 v10, 16, v0"); S("s_movk_i32 s27, 0x3f80"); S("v_lshlrev_b32_e64 v10, v10, s27"); S("v_bfe_u32 v11, v0, 5, 2")
    for q in range(4):
        S("v_cmp_eq_u32 vcc, %d, v11" % q); S("v_cndmask_b32 v%d, 0, v10, vcc" % (SELR + q))
    S("s_mov_b32 s40, 0x%08x" % f2u(C1)); S("s_mov_b32 s41, s40")
    S("s_sub_u32 s44, s20, 4"); S("s_min_u32 s44, s44, 4"); S("s_mov_b32 s45, 0")
    load_srd(A, 72, KA_WR, 0); load_srd(A, 76, KA_WI, 0)
    A("s_mul_i32 s94, s44, 12"); A("s_add_u32 s94, s94, s22"); A("s_sub_u32 s94, s94, 20"); A("s_lshl_b32 s95, s94, 7"); A("s_add_u32 s95, s95, %d" % WS_TFL)
    A("s_lshl_b32 s94, s94, 2"); A("s_add_u32 s94, s94, s21"); A("s_cmp_lg_u32 s101, 0"); A("s_cselect_b32 s94, 5000, s94")
    A("s_waitcnt lgkmcnt(0)"); fin_srd(A, 72, SZ_WF); fin_srd(A, 76, SZ_WF)
    S("s_mul_i32 s48, s44, %d" % (2 * PARTX_SLOT)); S("s_add_u32 s48, s48, %d" % WS_PARTX); S("s_mov_b32 s49, %d" % PARTX_SLOT)
    S("s_lshl_b32 s51, s44, 12"); S("s_lshl_b32 s27, s101, 11"); S("s_add_u32 s51, s51, s27"); S("s_add_u32 s51, s51, %d" % WS_ARR)
    S("s_lshl_b32 s52, s22, 7"); S("s_lshl_b32 s27, s101, 12"); S("s_add_u32 s52, s52, s27"); S("s_add_u32 s52, s52, %d" % WS_CHFL)
    S("s_lshl_b32 s53, s22, 13"); S("s_add_u32 s53, s53, %d" % WS_KM)
    S("s_mul_i32 s54, s101, %d" % (WS_X3 - WS_X1)); S("s_add_u32 s54, s54, %d" % WS_X1)
    S("s_lshl_b32 s60, s22, 8"); S("s_add_u32 s60, s60, %d" % WS_KVFL)
    S("s_mul_i32 s63, s44, 65536"); S("s_add_u32 s63, s63, %d" % WS_XNH); S("s_add_u32 s64, s63, 4096")
    xpoll(S, "-1", "qx")
    x_dma(S, "s44", "0"); S("s_add_u32 s46, s44, 5"); x_dma(S, "s46", "40960"); S("s_waitcnt vmcnt(0)"); S("s_barrier")
    A("s_mov_b32 s65, 0"); A("s_mov_b32 s66, s44"); A("s_mov_b32 s62, 0x%x" % OOB); A("s_mov_b32 s67, 0x%x" % OOB); A("s_mov_b32 s68, 0x%x" % OOB)
    QF = [160 + 4 * i for i in range(4)]; OO = [144 + 4 * i for i in range(4)]; MX, ZX, TM, M2, AL = 176, 177, 178, 179, 180; RESN = 184; RES = 20
    KF = [72 + 4 * i for i in range(8)]; VF = [104 + 4 * i for i in range(4)]; SA, SB, PB, SM = 120, 124, 128, 48; FLG = 15
    def flag_load(E): E("v_lshlrev_b32 v10, 3, v0"); E("s_mov_b64 exec, 3"); E("buffer_load_dword v%d, v10, s[8:11], s60 offen sc1" % FLG); E("s_mov_b64 exec, -1")
    def flag_get(E): E("v_readlane_b32 s65, v%d, 0" % FLG); E("v_readlane_b32 s27, v%d, 1" % FLG); E("s_nop 3"); E("s_min_u32 s65, s65, s27")
    def xl(reg, op, both=True):
        for sw in ("v_permlane16_swap_b32", "v_permlane32_swap_b32")[:2 if both else 1]:
            S("v_mov_b32 v%d, v%d" % (TM, reg)); S("%s v%d, v%d" % (sw, reg, TM)); S("%s v%d, v%d, v%d" % (op, reg, reg, TM))
    A.label(L("q_front"))
    A("s_add_u32 s56, s66, s43"); A("s_mov_b32 s30, 0")
    A.label(L("q_kf"))
    A("s_cmp_gt_u32 s65, s56"); A("s_cbranch_scc1 %s" % L("q_kg"))
    flag_load(A); A("s_waitcnt vmcnt(0)"); flag_get(A); A("s_sleep 1")
    A("s_add_u32 s30, s30, 1"); A("s_cmp_lt_u32 s30, %d" % SPIN_MAX); A("s_cbranch_scc1 %s" % L("q_kf")); A("s_branch %s" % L("fail"))
    A.label(L("q_kg"))
    S = Seq(A); S("s_nop 1")
    S("s_lshl_b32 s27, s66, 18"); S("s_add_u32 s27, s27, s50"); S("s_add_u32 s28, s27, 4096")
    for i in range(8): S("buffer_load_dwordx4 %s, v0, s[8:11], %s offen offset:%d sc1" % (r4(KF[i]), "s28" if i >= 4 else "s27", 1024 * (i % 4)))
    S("s_lshl_b32 s28, s59, 12"); S("s_add_u32 s27, s27, s28"); S("s_add_u32 s27, s27, %d" % KV_MAT)
    for i in range(4): S("buffer_load_dwordx4 %s, v0, s[8:11], s27 offen offset:%d sc1" % (r4(VF[i]), 1024 * i))
    S("s_mul_i32 s27, s66, 40960")
    S("buffer_load_dwordx2 %s, v%d, s[16:19], s27 offen sc1" % (r2(RESN), XOA)); S("buffer_load_dwordx2 %s, v%d, s[16:19], s27 offen offset:256 sc1" % (r2(RESN + 2), XOB))
    flag_load(S)
    QA = 24
    S("v_add_u32 v11, s45, v0"); S("s_sub_u32 s45, 40960, s45")
    proj(S, 11, QA, [40 + 4 * i for i in range(6)])
    for r in range(QA, QA + 16, 2): S("v_pk_mul_f32 %s, %s, s[40:41]" % (r2(r), r2(r)))
    S("s_lshl_b32 s27, s21, 10"); S("v_add_u32 v10, s27, v%d" % VH)
    for mt in range(2):
        for i in range(4): cvt(40 + 4 * mt + i, QA + 8 * mt + i, QA + 4 + 8 * mt + i)
        S("ds_write_b128 v10, %s offset:%d" % (r4(40 + 4 * mt), mt * 4096))
    S("s_lshl_b32 s27, s58, 12"); S("v_add_u32 v10, s27, v%d" % VH)
    S("s_waitcnt vmcnt(15) lgkmcnt(0)"); S("s_barrier")
    for u in range(4): rd(S, QF[u], 10, 1024 * u)
    def arr_store(tag):
        S("s_cmp_lg_u32 s21, 0"); S("s_cbranch_scc1 %s" % L(tag))
        S("s_mov_b64 exec, 1"); S("v_mov_b32 v10, s22"); S("v_mov_b32 v11, 1")
        lst(["buffer_store_byte v11, v10, s[8:11], s62 offen"])
        S("s_mov_b64 exec, -1")
        A.label(L(tag))
    S("s_waitcnt vmcnt(0)")
    arr_store("q_fa")
    S("v_mov_b32 v11, 0x%08x" % f2u(-1e30))
    for i in range(8):
        S("v_cmp_gt_i32 vcc, %d, v%d" % (16 * (i // 4) + i % 4, THR)); S("v_cndmask_b32 v%d, 0, v11, vcc" % (SA + i))
    for u in range(4): mf32(S, SA, KF[u], QF[u], SA); mf32(S, SB, KF[4 + u], QF[u], SB)
    flag_get(S)
    S("v_max3_f32 v%d, v%d, v%d, v%d" % (MX, SA, SA + 1, SA + 2))
    for i in (3, 5): S("v_max3_f32 v%d, v%d, v%d, v%d" % (MX, MX, SA + i, SA + i + 1))
    S("v_max_f32 v%d, v%d, v%d" % (MX, MX, SA + 7)); xl(MX, "v_max_f32")
    for r in range(SA, SA + 8): S("v_sub_f32 v%d, v%d, v%d" % (r, r, MX))
    for r in range(SA, SA + 8): S("v_exp_f32 v%d, v%d" % (r, r))
    for q in range(4): cvt(PB + q, SA + 2 * q, SA + 2 * q + 1)
    S("v_add_f32 v%d, v%d, v%d" % (ZX, SA, SA + 1))
    for r in range(SA + 2, SA + 8): S("v_add_f32 v%d, v%d, v%d" % (ZX, ZX, r))
    for i in range(4): mf32(S, OO[i], VF[i], PB, "0")
    xl(ZX, "v_add_f32")
    S("s_cmp_lg_u32 s66, s44"); S("s_cbranch_scc1 %s" % L("q_back2"))
    A.label(L("q_top"))
    hq(0)
    S = Seq(A)
    S("s_add_u32 s56, s44, s43"); S("s_lshl_b32 s57, s44, 7"); S("s_mul_i32 s55, s44, 40960")
    S("s_lshl_b32 s26, s56, 18"); S("s_add_u32 s26, s26, s53"); S("s_lshl_b32 s28, s59, 11"); S("s_add_u32 s29, s26, s28"); S("s_add_u32 s29, s29, 4096")
    S("s_lshl_b32 s27, s58, 12"); S("s_add_u32 s27, s27, s28"); S("v_add_u32 v10, s27, v%d" % VH)
    poll(S, "s52", 3, "v_cmp_ge_u32 vcc, s57, v191", "cf", sleep=P.get("QS", 1))
    S = Seq(A)
    KMF = [24 + 4 * i for i in range(4)]; VM = [40, 44]
    hq(5)
    def dflag(stage):
        A("s_lshl_b32 s27, s20, 12"); A("s_lshl_b32 s28, s22, 7"); A("s_add_u32 s27, s27, s28"); A("s_add_u32 s27, s27, %d" % (WS_DFL - 3 * 4096))
        A("s_lshl_b32 s28, s101, 1"); A("s_add_u32 s28, s28, %d" % stage); A("v_mov_b32 v11, s28")
        A("s_mov_b64 exec, 1"); A("buffer_store_dword v11, v0, s[8:11], s27 offen sc1"); A("s_mov_b64 exec, -1")
    for u in range(4): S("buffer_load_dwordx4 %s, v0, s[8:11], s26 offen offset:%d sc1" % (r4(KMF[u]), 1024 * u))
    for i in range(2): S("buffer_load_dwordx4 %s, v0, s[8:11], s29 offen offset:%d sc1" % (r4(VM[i]), 1024 * i))
    def late_stores(E):
        E("s_add_u32 s28, s68, %d" % (16 * 8192))
        for T in range(2): E("buffer_store_dwordx4 %s, v%d, s[8:11], %s offen sc1" % (r4(104 + 4 * T), XDA, "s28" if T else "s68"))
        E("s_mov_b32 exec_hi, 0"); E("buffer_store_dwordx2 %s, v%d, s[8:11], s67 offen sc1" % (r2(RES), XOA))
        E("s_mov_b32 exec_lo, 0x000f000f"); E("buffer_store_dwordx2 %s, v%d, s[8:11], s67 offen offset:256 sc1" % (r2(RES + 2), XOA)); E("s_mov_b64 exec, -1")
    for u in range(4): mf32(S, SM, KMF[u], QF[u], "0" if u == 0 else SM)
    hq(6)
    S("v_max3_f32 v%d, v%d, v%d, v%d" % (M2, MX, SM, SM + 1)); S("v_max3_f32 v%d, v%d, v%d, v%d" % (M2, M2, SM + 2, SM + 3)); xl(M2, "v_max_f32", False)
    S("v_sub_f32 v%d, v%d, v%d" % (AL, MX, M2))
    for r in range(SM, SM + 4): S("v_sub_f32 v%d, v%d, v%d" % (r, r, M2))
    S("v_exp_f32 v%d, v%d" % (AL, AL))
    for r in range(SM, SM + 4): S("v_exp_f32 v%d, v%d" % (r, r))
    S("v_add_f32 v%d, v%d, v%d" % (M2, SM, SM + 1)); S("v_add_f32 v%d, v%d, v%d" % (MX, SM + 2, SM + 3)); S("v_add_f32 v%d, v%d, v%d" % (M2, M2, MX)); xl(M2, "v_add_f32", False)
    S("v_fmac_f32 v%d, v%d, v%d" % (M2, AL, ZX)); S("v_rcp_f32 v%d, v%d" % (M2, M2))
    S("v_mul_f32 v%d, v%d, v%d" % (AL, AL, M2))
    for r in range(SM, SM + 4): S("v_mul_f32 v%d, v%d, v%d" % (r, r, M2))
    cvt(SM, SM, SM + 1); cvt(SM + 1, SM + 2, SM + 3)
    for r in range(OO[0], OO[0] + 16, 2): S("v_pk_mul_f32 %s, %s, %s op_sel_hi:[1,0]" % (r2(r), r2(r), r2(AL)))
    for i in range(4): mf16(S, OO[i], VM[i // 2] + 2 * (i % 2), SM, OO[i])
    for j in range(2):
        for i in range(4): cvt(56 + 4 * j + i, OO[2 * j] + i, OO[2 * j + 1] + i)
        S("ds_write_b128 v10, %s offset:%d" % (r4(56 + 4 * j), LQ_EO - LQ_EQ + j * 1024))
    S.wait_lds_all(); S("s_barrier")
    OF = [24 + 4 * i for i in range(8)]
    hq(7)
    for u in range(4):
        for qt in range(2): rd(S, OF[4 * qt + u], VH, LQ_EO - LQ_EQ + 4096 * qt + 1024 * u)
    late_stores(S)
    S("v_mov_b64 %s, %s" % (r2(RES), r2(RESN))); S("v_mov_b64 %s, %s" % (r2(RES + 2), r2(RESN + 2)))
    A("s_add_u32 s46, s44, 10"); A("s_cmp_ge_u32 s46, 64"); A("s_cbranch_scc1 %s" % L("q_tb"))
    A("s_sub_u32 s29, 40960, s45"); x_dma(Seq(A), "s46", "s29")
    A.label(L("q_nx"))
    S("s_mov_b32 s62, s51")
    S("s_add_u32 s27, s48, %d" % (16 * 40960))
    XA = lambda pr, qt, tb: 64 + 16 * pr + 8 * qt + 4 * tb
    pend = []
    st = lambda pr: ["buffer_store_dwordx4 %s, v%d, s[8:11], %s offen offset:%d" % (r4(XA(pr, qt, 0)), PSX, "s27" if qt else "s48", 64 * pr) for qt in range(2)]
    for pr in range(5):
        for u in range(4):
            for qt in range(2):
                for tb in range(2):
                    mf32(S, XA(pr, qt, tb), breg(40 + (2 * pr + tb) * 4 + u), OF[4 * qt + u], "0" if u == 0 else XA(pr, qt, tb))
                    if u >= 1 and pend: cvt(*pend.pop(0)); cvt(*pend.pop(0))
            if u == 1 and pr: lst(st(pr - 1), S)
        pend = [(XA(pr, qt, 0) + q, XA(pr, qt, 0) + 2 * q, XA(pr, qt, 0) + 2 * q + 1) for qt in range(2) for q in range(4)]
    while pend: cvt(*pend.pop(0))
    lst(st(4), S)
    hq(8)
    S("s_add_u32 s66, s44, 5"); S("s_cmp_lt_u32 s66, 64"); S("s_cbranch_scc1 %s" % L("q_front"))
    S = Seq(A)
    def arrive(tag):
        S("s_waitcnt vmcnt(0)"); S("s_barrier"); arr_store(tag)
    arrive("q_na")
    A.label(L("q_back2"))
    A("s_sub_u32 s27, s44, 56"); A("s_cmp_ge_u32 s27, 5"); A("s_cbranch_scc1 %s" % L("q_nf1")); A("s_cmp_lg_u32 s21, 3"); A("s_cbranch_scc1 %s" % L("q_nf1"))
    dflag(1)
    A.label(L("q_nf1"))
    hq(9)
    poll(S, "s62", 0xff, "v_cmp_ne_u32 vcc, 0x01010101, v191", "ar", sleep=0)
    S = Seq(A)
    B0, D0 = 24, 64
    hq(10)
    for j in range(8):
        if j: S("s_add_u32 s27, s48, %d" % (j * 5120))
        S("buffer_load_dwordx4 %s, v%d, s[8:11], %s offen sc1" % (r4(B0 + 4 * j), RLA, "s27" if j else "s48"))
        if j % 4 == 0: S("buffer_load_dwordx4 %s, v%d, s[8:11], %s offen offset:256 sc1" % (r4(B0 + 32 + j), RLB, "s27" if j else "s48"))
    XV = 72
    for q in range(4): S("v_lshlrev_b32 v%d, 16, v%d" % (XV + 2 * q, RES + q)); S("v_and_b32 v%d, 0xffff0000, v%d" % (XV + 2 * q + 1, RES + q))
    S("s_add_u32 s67, s55, s54")
    for j in range(8):
        mf32(S, D0, SELR, B0 + 4 * j, "0" if j == 0 else D0)
        if j % 4 == 0: mf32(S, D0 + 4, SELR, B0 + 32 + j, "0" if j == 0 else D0 + 4)
    hq(11)
    for sh in (8, 4):
        for q in range(4): S("v_add_f32_dpp v%d, v%d, v%d row_ror:%d row_mask:0xf bank_mask:0xf" % (D0 + 4 + q, D0 + 4 + q, D0 + 4 + q, sh))
    for q in range(4): S("v_pk_add_f32 %s, %s, %s" % (r2(XV + 2 * q), r2(XV + 2 * q), r2(D0 + 2 * q)))
    for q in range(4): cvt(RES + q, XV + 2 * q, XV + 2 * q + 1)
    for q in range(4): S("v_lshlrev_b32 v%d, 16, v%d" % (XV + 2 * q, RES + q)); S("v_and_b32 v%d, 0xffff0000, v%d" % (XV + 2 * q + 1, RES + q))
    ME, DV = 80, 84
    def wsum(dst, src):
        S("v_pk_add_f32 %s, %s, %s" % (r2(92), r2(src), r2(src + 2))); S("v_pk_add_f32 %s, %s, %s" % (r2(94), r2(src + 4), r2(src + 6)))
        S("v_add_f32 v92, v92, v93"); S("v_add_f32 v94, v94, v95"); S("v_fma_f32 v%d, v94, 0.5, v92" % dst) if False else None
        S("v_mul_f32 v94, 0x3e800000, v94"); S("v_add_f32 v%d, v92, v94" % dst)
        for sh in (8, 4, 2, 1): S("v_add_f32_dpp v%d, v%d, v%d row_ror:%d row_mask:0xf bank_mask:0xf" % (dst, dst, dst, sh))
        xl(dst, "v_add_f32", False)
    wsum(ME, XV); S("v_mul_f32 v%d, 0x%08x, v%d" % (ME, f2u(1 / 160), ME))
    for q in range(4): S("v_pk_add_f32 %s, %s, %s op_sel_hi:[1,0] neg_lo:[0,1] neg_hi:[0,1]" % (r2(DV + 2 * q), r2(XV + 2 * q), r2(ME)))
    for q in range(4): S("v_pk_mul_f32 %s, %s, %s" % (r2(DV + 2 * q), r2(DV + 2 * q), r2(DV + 2 * q)))
    wsum(ME + 1, DV)
    S("s_lshl_b32 s27, s21, 3"); S("s_add_u32 s27, s27, %d" % LQ_ST); S("v_mov_b32 v10, s27"); S("v_mov_b32 v11, %d" % LQ_ST)
    S("ds_write_b64 v10, %s" % r2(ME)); S.wait_lds_all(); S("s_barrier")
    rd(S, DV, 11, 0); rd(S, DV + 4, 11, 16)
    S("v_pk_add_f32 %s, %s, %s" % (r2(ME), r2(DV), r2(DV + 2))); S("v_pk_add_f32 %s, %s, %s" % (r2(92), r2(DV + 4), r2(DV + 6))); S("v_pk_add_f32 %s, %s, %s" % (r2(ME), r2(ME), r2(92)))
    S("v_mul_f32 v%d, 0x3e800000, v%d" % (ME, ME))
    for e in range(4): S("v_sub_f32 v%d, v%d, v%d" % (DV + 2 * e, DV + 2 * e, ME))
    for e in range(4): S("v_mul_f32 v%d, 0x43200000, v%d" % (DV + 2 * e + 1, DV + 2 * e))
    for e in range(4): S("v_fmac_f32 v%d, v%d, v%d" % (ME + 1, DV + 2 * e, DV + 2 * e + 1))
    S("v_mov_b32 v%d, 0x3727c5ac" % (ME + 2)); S("v_fmac_f32 v%d, 0x3acccccd, v%d" % (ME + 2, ME + 1)); S("v_rsq_f32 v%d, v%d" % (ME + 2, ME + 2))
    for q in range(4): S("v_pk_add_f32 %s, %s, %s op_sel_hi:[1,0] neg_lo:[0,1] neg_hi:[0,1]" % (r2(XV + 2 * q), r2(XV + 2 * q), r2(ME)))
    for q in range(4): S("v_pk_mul_f32 %s, %s, %s op_sel_hi:[1,0]" % (r2(XV + 2 * q), r2(XV + 2 * q), r2(ME + 2)))
    for q in range(4): cvt(XV + q, XV + 2 * q, XV + 2 * q + 1, "v_cvt_pk_f16_f32")
    lst(["s_mov_b32 exec_hi, 0", "buffer_store_dwordx2 %s, v%d, s[8:11], s63 offen" % (r2(XV), XHA), "s_mov_b32 exec_lo, 0x000f000f", "buffer_store_dwordx2 %s, v%d, s[8:11], s64 offen" % (r2(XV + 2), XHA), "s_mov_b64 exec, -1"], S)
    hq(12)
    S("s_add_u32 s62, s51, 20480"); arrive("q_nb")
    hq(13)
    A("s_cmp_ge_u32 s22, 20"); A("s_cbranch_scc1 %s" % L("q_tab"))
    poll(S, "s62", 0xff, "v_cmp_ne_u32 vcc, 0x01010101, v191", "ar", sleep=0)
    hq(14)
    A("s_cmp_ge_u32 s21, 2"); A("s_cbranch_scc1 %s" % L("q_nd"))
    S = Seq(A)
    S("s_mul_i32 s27, s21, 20480"); S("s_add_u32 s27, s27, s63")
    for f in range(20):
        S("buffer_load_dwordx4 %s, v0, s[8:11], s27 offen offset:%d sc1" % (r4(24 + 4 * f), (f % 4) * 1024))
        if f % 4 == 3: S("s_add_u32 s27, s27, 4096")
    TB = [112 + 4 * i for i in range(8)]
    sq = [(ks, T) for ks in range(20) for T in range(2)]
    def trd(i):
        if i < 40: rd(S, TB[i % 8], FTA, (sq[i][1] * 20 + sq[i][0]) * 1024)
    for i in range(7): trd(i)
    S("s_lshl_b32 s27, s44, 7"); S("s_mul_i32 s68, s101, %d" % XD_LAYER); S("s_add_u32 s68, s68, s27"); S("s_add_u32 s68, s68, %d" % WS_XD)
    for i, (ks, T) in enumerate(sq):
        S("v_mfma_f32_16x16x32_f16 %s, %s, %s, %s" % (r4(104 + 4 * T), r4(24 + 4 * ks), r4(TB[i % 8]), "0" if ks == 0 else r4(104 + 4 * T)))
        trd(i + 7)
    S("s_nop 7")
    A.label(L("q_nd"))
    hq(15)
    A("s_sub_u32 s27, s44, 54"); A("s_cmp_ge_u32 s27, 5"); A("s_cbranch_scc1 %s" % L("q_nt"))
    A("s_sub_u32 s27, 40960, s45"); idft_table(Seq(A), "s27", "v0", "s21")
    A.label(L("q_nt"))
    A("s_add_u32 s48, s48, s49"); A("s_sub_u32 s49, 0, s49"); A("s_add_u32 s51, s51, 128")
    A("s_add_u32 s44, s44, 5"); A("s_cmp_lt_u32 s44, 64"); A("s_cbranch_scc1 %s" % L("q_top"))
    A("s_cmp_ge_u32 s21, 2"); A("s_cbranch_scc1 %s" % L("q_e1"))
    late_stores(A); A("s_waitcnt vmcnt(2)"); A("s_barrier"); A("s_cmp_lg_u32 s21, 0"); A("s_cbranch_scc1 %s" % L("bphase"))
    dflag(2); A("s_branch %s" % L("bphase"))
    def tpoll(tag):
        A("s_cmp_lg_u32 s101, 0"); A("s_cbranch_scc1 %s" % L(tag + "2"))
        A("v_lshlrev_b32 v190, 3, v0"); A("s_mov_b32 exec_hi, 0x0fffffff"); A("s_mov_b32 s28, %d" % WS_TFL); A("s_mov_b32 s30, 0")
        A.label(L(tag + "l"))
        A("buffer_load_dword v191, v190, s[8:11], s28 offen sc1")
        A("s_add_u32 s30, s30, 1"); A("s_cmp_ge_u32 s30, %d" % (4 * SPIN_MAX)); A("s_cbranch_scc1 %s" % L("fail"))
        A("s_waitcnt vmcnt(0)"); A("v_cmp_ne_u32 vcc, 0x01010101, v191"); A("s_cbranch_vccz %s" % L(tag + "d")); A("s_sleep 8"); A("s_branch %s" % L(tag + "l"))
        A.label(L(tag + "d"))
        A("s_mov_b64 exec, -1")
        A.label(L(tag + "2"))
    A.label(L("q_tb"))
    A("s_cmp_ge_u32 s44, 59"); A("s_cbranch_scc1 %s" % L("q_nx"))
    tpoll("q_tp")
    A("s_sub_u32 s27, 40960, s45"); idft_table(Seq(A), "s27", "v0", "s21"); A("s_branch %s" % L("q_nx"))
    A.label(L("q_tab"))
    A("s_cmp_ge_u32 s94, 2400"); A("s_cbranch_scc1 %s" % L("q_nd"))
    for r_ in range(24): A("v_mov_b32 v%d, v%d" % (32 + r_, r_))
    lane_setup(A)
    A("s_cmp_ge_u32 s94, 800"); A("s_cbranch_scc1 %s" % L("q_wt"))
    A("s_mov_b32 s36, s94"); t2_frag(A); A("s_branch %s" % L("q_te"))
    A.label(L("q_wt"))
    A("s_sub_u32 s37, s94, 800"); A("s_lshr_b32 s36, s37, 8"); A("s_and_b32 s37, s37, 255"); wt_task(A, L("q_ws"), "s[90:91]")
    A.label(L("q_te"))
    A("s_add_u32 s94, s94, 240"); A("s_mov_b32 s40, 0x%08x" % f2u(C1)); A("s_mov_b32 s41, s40")
    A("s_cmp_lt_u32 s94, 2400"); A("s_cbranch_scc1 %s" % L("q_tr"))
    A("s_waitcnt vmcnt(0)"); A("v_mov_b32 v1, s21"); A("v_mov_b32 v2, 1"); A("s_mov_b64 exec, 1"); A("buffer_store_byte v2, v1, s[8:11], s95 offen sc1"); A("s_mov_b64 exec, -1")
    A.label(L("q_tr"))
    A("s_nop 1")
    for r_ in range(1, 24): A("v_mov_b32 v%d, v%d" % (r_, 32 + r_))
    A("s_branch %s" % L("q_nd"))
    A.label(L("q_e1"))
    A("s_barrier"); late_stores(A)

    A.label(L("bphase"))
    ht(3)
    def gbar(ph, between=None, ng=6):
        base = WS_BAR2 + ph * 4096
        lw = A.newlabel(L("gb")); ld = A.newlabel(L("gb")); la = A.newlabel(L("gb"))
        def spin(addr_setup, lanes, want):
            lp = A.newlabel(L("gs"))
            A("s_mov_b64 exec, 0x%x" % lanes); addr_setup(); A("s_mov_b32 s30, 0")
            A.label(lp)
            A("buffer_load_dword v191, v190, s[8:11], s28 offen sc1")
            A("s_add_u32 s30, s30, 1"); A("s_cmp_ge_u32 s30, %d" % (SPIN_MAX * 4)); A("s_cbranch_scc1 %s" % L("fail"))
            A("s_waitcnt vmcnt(0)"); A("v_cmp_ne_u32 vcc, 0x%x, v191" % want); A("s_cbranch_vccnz %s" % lp)
        if ng < 6: A("s_cmp_ge_u32 s82, %d" % ng); A("s_cbranch_scc1 %s" % la)
        A("s_waitcnt vmcnt(0) lgkmcnt(0)"); A("s_barrier")
        A("s_cmp_lg_u32 s83, 0"); A("s_cbranch_scc1 %s" % la)
        A("s_mov_b32 s23, s85"); A("s_add_u32 s28, s86, %d" % base); A("s_lshl_b32 s27, s82, 7")
        A("s_mov_b64 exec, 1"); A("s_add_u32 s31, s27, s84"); A("v_mov_b32 v190, s31"); A("v_mov_b32 v191, 1")
        lst(["buffer_store_byte v191, v190, s[8:11], s28 offen"])
        A("s_cmp_lg_u32 s84, 31"); A("s_cbranch_scc1 %s" % lw)
        A("s_mov_b64 exec, -1"); A("v_mbcnt_lo_u32_b32 v189, -1, 0")
        spin(lambda: A("v_lshl_add_u32 v190, v189, 2, s27"), 0xff, 0x01010101)
        A("s_mov_b64 exec, 1"); A("v_mov_b32 v190, s27"); A("v_mov_b32 v191, 1"); A("buffer_store_dword v191, v190, s[8:11], s28 offen offset:1024 sc1")
        A.label(lw)
        A("s_mov_b64 exec, -1")
        A.label(la)
        if between: between()
        A("s_cmp_lg_u32 s83, 0"); A("s_cbranch_scc1 %s" % ld)
        A("s_add_u32 s28, s86, %d" % base); A("v_mbcnt_lo_u32_b32 v189, -1, 0")
        spin(lambda: A("v_lshlrev_b32 v190, 7, v189\nv_add_u32 v190, 1024, v190"), (1 << ng) - 1, 1)
        A("s_mov_b64 exec, -1")
        A.label(ld)
        A("s_barrier")
    A("s_sub_u32 s82, s20, 2"); A("s_mov_b32 s83, s21"); A("s_mov_b32 s84, s22"); A("s_mov_b32 s85, s23")
    A("s_lshl_b32 s87, s82, 5"); A("s_add_u32 s87, s87, s22")
    A("s_mul_i32 s86, s101, %d" % (2 * 4096))
    A("s_mul_i32 s80, s101, %d" % (WS_X3 - WS_X1)); A("s_add_u32 s80, s80, %d" % WS_X1)
    A("s_load_dwordx2 s[16:17], s[0:1], %d" % KA_OUT); A("s_waitcnt lgkmcnt(0)"); A("s_and_b32 s17, s17, 0xffff")
    A("s_cmp_eq_u32 s101, 1"); A("s_cbranch_scc1 %s" % L("osrd"))
    A("s_add_u32 s16, s8, %d" % WS_X2); A("s_addc_u32 s17, s9, 0")
    A.label(L("osrd"))
    def restore():
        A("s_add_u32 s20, s82, 2"); A("s_mov_b32 s21, s83"); A("s_mov_b32 s22, s84"); A("s_mov_b32 s23, s85")
    def tid():
        A("v_mbcnt_lo_u32_b32 v0, -1, 0"); A("v_mbcnt_hi_u32_b32 v0, -1, v0"); A("s_lshl_b32 s27, s83, 6"); A("v_add_u32 v0, s27, v0"); A("s_mov_b32 s2, s81")
    fpre, fmain = fft2(A, L("fft"), 81920, hb)
    A("s_cmp_eq_u32 s87, 160"); A("s_cselect_b32 s81, 191, s87"); A("s_cmp_eq_u32 s87, 191"); A("s_cselect_b32 s81, 160, s81")
    def dpoll(stage):
        ld = A.newlabel(L("dp")); lp = A.newlabel(L("dp"))
        A("s_cmp_lg_u32 s83, 0"); A("s_cbranch_scc1 %s" % ld)
        A("v_and_b32 v190, 7, v0"); A("v_lshlrev_b32 v190, 12, v190"); A("v_bfe_u32 v191, v0, 3, 1"); A("v_mul_u32_u24 v191, 1280, v191"); A("v_add_u32 v190, v190, v191")
        A("s_mov_b64 exec, 0x1f1f")
        A("s_lshr_b32 s31, s34, 5"); A("s_lshl_b32 s31, s31, 7"); A("s_add_u32 s31, s31, %d" % WS_DFL); A("s_lshl_b32 s32, s101, 1"); A("s_add_u32 s32, s32, %d" % stage); A("s_mov_b32 s30, 0")
        A.label(lp)
        A("buffer_load_dword v191, v190, s[8:11], s31 offen sc1")
        A("s_add_u32 s30, s30, 1"); A("s_cmp_ge_u32 s30, %d" % (SPIN_MAX * 4)); A("s_cbranch_scc1 %s" % L("fail"))
        if stage == 1: A("s_sleep 4")
        A("s_waitcnt vmcnt(0)"); A("v_cmp_gt_u32 vcc, s32, v191"); A("s_cbranch_vccnz %s" % lp)
        A("s_mov_b64 exec, -1")
        A.label(ld)
        A("s_barrier")
        if stage == 2: ht2(8)
    A("s_cmp_ge_u32 s82, 1"); A("s_cbranch_scc1 %s" % L("tabok2"))
    tpoll("b_tp")
    for hf in range(2): idft_table(Seq(A), "%d" % (40960 * hf), "v0", "s83")
    A.label(L("tabok2"))
    def early():
        A("s_min_u32 s28, s89, 63"); A("s_lshl_b32 s29, s28, 12"); A("s_add_u32 s29, s29, %d" % WS_STAT); A("v_lshlrev_b32 v190, 3, v102")
        A("s_mov_b32 exec_hi, 0"); A("buffer_load_dword v191, v190, s[8:11], s29 offen sc1"); A("s_mov_b64 exec, 1")
        A("s_mul_i32 s28, s28, 40960"); A("s_lshl_b32 s29, s88, 7"); A("s_add_u32 s29, s29, s28"); A("buffer_load_dword v191, v190, s[16:19], s29 offen sc1")
        A("s_lshl_b32 s29, s88, 11"); A("s_add_u32 s29, s29, s28"); A("s_add_u32 s29, s29, %d" % (WS_XNF + XNF_LAYER)); A("buffer_load_dword v191, v190, s[8:11], s29 offen sc1")
        A("s_mul_i32 s28, s101, %d" % XNF_LAYER); A("s_min_u32 s29, s2, 159"); A("s_lshl_b32 s29, s29, 14"); A("s_add_u32 s28, s28, s29"); A("s_lshl_b32 s29, s83, 9"); A("s_add_u32 s28, s28, s29"); A("s_add_u32 s28, s28, %d" % WS_ZF)
        A("s_cmp_lt_u32 s2, 160"); A("s_cselect_b32 s28, s28, 0x%x" % OOB); A("buffer_load_dword v191, v190, s[8:11], s28 offen sc1")
        A("s_mov_b64 exec, -1")
    tid(); fpre()
    fmain(dpoll, early, P.get('DRY', 0)); ht2(9)
    hb(11); gbar(1); ht2(10); hb(12)
    A("s_cmp_ge_u32 s89, 64"); A("s_cbranch_scc1 %s" % L("noid"))
    A("v_mbcnt_lo_u32_b32 v0, -1, 0"); A("v_mbcnt_hi_u32_b32 v0, -1, v0"); A("s_mov_b32 s23, s85")
    idft(A, lambda x: L("idend") if (x == "end" and (P.get("HT") or P.get("HD"))) else L(x), lst, L("fail"), SPIN_MAX, hb)
    A.label(L("noid"))
    if P.get("HT") or P.get("HD"): A.label(L("idend"))
    restore(); ht(5)
    A("s_cmp_eq_u32 s101, 1"); A("s_cbranch_scc1 %s" % L("end"))
    A("s_mov_b32 s101, 1")
    A("v_mbcnt_lo_u32_b32 v0, -1, 0"); A("v_mbcnt_hi_u32_b32 v0, -1, v0"); A("v_lshlrev_b32 v0, 4, v0")
    A("s_waitcnt lgkmcnt(0)"); A("s_barrier")
    A("s_branch %s" % L("bulk"))
    flush_ool()
    A.label(L("fail"))
    A("s_mov_b64 exec, 1"); A("v_mov_b32 v12, 1"); A("v_mov_b32 v13, 48"); A("buffer_atomic_add v12, v13, s[12:15], 0 offen")
    A.label(L("end"))
    A("s_endpgm")
    return k
```

```python
import struct
from asmlib import *
from layout import *


def f2u(x):
    return struct.unpack('<I', struct.pack('<f', x))[0]


def lane_setup(A):
    A("v_lshrrev_b32 v1, 4, v0"); A("v_lshrrev_b32 v3, 8, v0"); A("v_and_b32 v4, 15, v1"); A("v_mov_b32 v5, v0")


def frag_idx(A):
    A("s_mul_hi_u32 s37, s36, 0x%x" % ((2 ** 32 + 19) // 20)); A("s_mul_i32 s38, s37, 20"); A("s_sub_u32 s38, s36, s38")
    A("s_lshl_b32 s37, s37, 4"); A("s_lshl_b32 s38, s38, 5"); A("v_lshlrev_b32 v7, 3, v3"); A("v_add_u32 v7, s38, v7")
    A("s_mov_b32 s39, 0x%x" % ((2 ** 32 + 639) // 640)); A("s_movk_i32 s40, 640")


def t1_frag(A):
    frag_idx(A); A("v_add_u32 v6, s37, v4")
    A("v_cmp_lt_u32 vcc, 320, v6"); A("v_subrev_u32 v8, 320, v6"); A("s_nop 1"); A("v_cndmask_b32 v8, v6, v8, vcc")
    A("v_mov_b32 v9, 0"); A("v_mov_b32 v10, 0x3e800000"); A("v_cndmask_b32 v9, v9, v10, vcc")
    for j in range(8):
        A("v_add_u32 v11, %d, v7" % j); A("v_mul_u32_u24 v11, v11, v8")
        A("v_mul_hi_u32 v12, v11, s39"); A("v_mul_lo_u32 v12, v12, s40"); A("v_sub_u32 v11, v11, v12")
        A("v_cvt_f32_u32 v11, v11"); A("v_mov_b32 v12, v9"); A("v_fmac_f32 v12, 0x%08x, v11" % f2u(1 / 640))
        A("v_cos_f32 v%d, v12" % (16 + j))
    A("s_nop 0")
    for q in range(4): A("v_cvt_pk_f16_f32 v%d, v%d, v%d" % (24 + q, 16 + 2 * q, 17 + 2 * q))


def t2_frag(A):
    frag_idx(A)
    A("s_and_b32 s41, s37, 16"); A("s_sub_u32 s37, s37, s41"); A("s_lshr_b32 s41, s41, 2"); A("s_add_u32 s37, s37, s41")
    A("v_and_b32 v6, 12, v4"); A("v_add_u32 v6, v6, v4"); A("v_add_u32 v6, s37, v6")
    c = 2.0 / (640 * 2048)
    A("v_lshrrev_b32 v8, 1, v7"); A("v_cmp_eq_u32 vcc, 0, v7")
    for j in range(8):
        A("v_add_u32 v11, %d, v8" % (j // 2))
        ph = 0.25 if j & 1 else 0.0
        A("v_mov_b32 v13, 0x%08x" % f2u(ph)); A("v_mov_b32 v14, 0x%08x" % f2u(c))
        if j < 2:
            A("v_mov_b32 v15, 0x%08x" % f2u(c / 2)); A("v_cndmask_b32 v14, v14, v15, vcc")
        if j == 1:
            A("v_mov_b32 v15, 320"); A("v_cndmask_b32 v11, v11, v15, vcc"); A("v_mov_b32 v15, 0"); A("v_cndmask_b32 v13, v13, v15, vcc")
        A("v_mul_u32_u24 v11, v11, v6")
        A("v_mul_hi_u32 v12, v11, s39"); A("v_mul_lo_u32 v12, v12, s40"); A("v_sub_u32 v11, v11, v12")
        A("v_cvt_f32_u32 v11, v11"); A("v_fmac_f32 v13, 0x%08x, v11" % f2u(1 / 640))
        A("v_cos_f32 v13, v13"); A("s_nop 0"); A("v_mul_f32 v%d, v13, v14" % (16 + j))
    for q in range(4): A("v_cvt_pk_bf16_f32 v%d, v%d, v%d" % (24 + q, 16 + 2 * q, 17 + 2 * q))
    A("s_lshl_b32 s37, s36, 10"); A("s_add_u32 s37, s37, %d" % WS_GT2)
    A("buffer_store_dwordx4 v[24:27], v5, s[8:11], s37 offen sc1")


def wt_task(A, skip, sv):
    A("s_lshl_b32 s38, s36, 6"); A("v_add_u32 v6, s38, v1")
    A("s_lshr_b32 s38, s37, 5"); A("s_bfe_u32 s39, s37, 0x30002"); A("s_lshl_b32 s39, s39, 3"); A("s_add_u32 s38, s38, s39")
    A("s_and_b32 s39, s37, 3"); A("s_lshl_b32 s39, s39, 7"); A("s_add_u32 s38, s38, s39"); A("s_mul_i32 s38, s38, 642")
    A("v_lshlrev_b32 v7, 1, v6"); A("v_lshrrev_b32 v2, 1, v6"); A("v_lshlrev_b32 v2, 14, v2"); A("v_and_b32 v24, 1, v6"); A("v_lshl_add_u32 v2, v24, 4, v2")
    A("v_cmp_gt_u32 vcc, 321, v6"); A("s_and_saveexec_b64 %s, vcc" % sv); A("s_cbranch_execz %s" % skip)
    for e in range(8):
        f = 64 * (e // 4) + 512 * (e % 4)
        A("s_add_u32 s39, s38, %d" % (f * 642))
        A("buffer_load_ushort v%d, v7, s[72:75], s39 offen" % (8 + e))
        A("buffer_load_ushort v%d, v7, s[76:79], s39 offen" % (16 + e))
    A("s_lshl_b32 s39, s37, 6"); A("s_add_u32 s39, s39, %d" % WS_WT)
    A("s_waitcnt vmcnt(0)")
    for e in range(8): A("v_lshl_or_b32 v%d, v%d, 16, v%d" % (8 + e, 16 + e, 8 + e))
    A("buffer_store_dwordx4 v[8:11], v2, s[8:11], s39 offen sc1")
    A("buffer_store_dwordx4 v[12:15], v2, s[8:11], s39 offen offset:32 sc1")
    A.label(skip)
    A("s_mov_b64 exec, %s" % sv)
```

```python
import sys
def _arg(k, d): return ([int(a[len(k) + 1:]) for a in sys.argv if a.startswith(k + '=') and ' ' not in a and sys.argv[0].endswith('build.py')] + [d])[0]
MB = 1 << 20
WS_WQKP = 0
WQKP_H = 491520
WQKP_W = 122880
WS_WOC = 16 * MB
WS_WOX = 22 * MB
WS_XNF = 28 * MB
XNF_LAYER = 3 * MB
WS_KXF = 36 * MB
KV_MAT = 16 * MB
KV_LAYER = 32 * MB
WS_KM = 208 * MB
WS_PARTX = 112 * MB
PARTX_SLOT = 32 * 32 * 1280
WS_X1 = 128 * MB
WS_X2 = 132 * MB
WS_X3 = 136 * MB
WS_FT1 = 140 * MB
WS_GT2 = 141 * MB
WS_WT = 142 * MB
WT_T = 324 * 32
WS_XNH = 100 * MB
WS_XD = 168 * MB
XD_LAYER = 6 * MB
WS_ZF = 150 * MB
WS_M0 = 160 * MB
WS_ZERO = WS_M0 + 65536
WS_BAR2 = WS_ZERO
WS_KVFL = WS_BAR2 + 4 * 4096
WS_CHFL = WS_KVFL + 8192
WS_ARR = WS_CHFL + 8192
WS_XFL = WS_ARR + 81920
WS_DFL = WS_XFL + 16384
ZERO_BYTES = 262144
WS_TFL = WS_DFL + 20480
WS_LFL = WS_TFL + 8192
WS_XNL = 104 * MB
assert WS_LFL + 128 <= WS_ZERO + ZERO_BYTES
assert ZERO_BYTES % 4096 == 0
WS_FILL = 164 * MB
WS_MR = WS_FILL
WS_PART = WS_MR + 262144
PART_H = _arg('PH', 4224)
PART_T4 = 32 * PART_H
PART_SLOT = _arg('PS', PART_T4 + 32768)
ML_S = _arg('MLS', 5120)
ML_O = _arg('LO', 640)
PART_X = 4 * PART_SLOT
WS_ML = (WS_PART + 2 * PART_X + 65535) // 65536 * 65536
WS_CAL = WS_ML + 8 * ML_S + 8192
WS_STAT = (WS_CAL + 4095) // 4096 * 4096
WS_FILL_END = WS_FILL + 2 * MB
assert WS_STAT + 262144 <= WS_FILL_END
FILL_BYTES = WS_FILL_END - WS_FILL
assert FILL_BYTES % 65536 == 0, FILL_BYTES
WS_DBG = 200 * MB
```

```python
import struct
from asmlib import *
from layout import *
from seq import *
from k_fft import Pool, pr, f2u

OOB = 0x10000000


def fft2(A, L, lds_base, hb):
    TW1, TW2, TW3 = 48, 62, 76
    WV = [92, 104]
    SC = "s[26:27]"
    XR = {}

    def setup():
        for TW, maskbits, N in ((TW1, 255, 2048), (TW2, 31, 256), (TW3, 3, 32)):
            A("v_and_b32 v3, %d, v0" % maskbits); A("v_cvt_f32_u32 v3, v3")
            for q in range(1, 8):
                A("v_mul_f32 v4, 0x%08x, v3" % f2u(-q / N))
                A("v_cos_f32 v%d, v4" % (TW + 2 * (q - 1))); A("v_sin_f32 v%d, v4" % (TW + 2 * (q - 1) + 1))
        A("v_lshlrev_b32 v3, 3, v0")
        A("v_lshrrev_b32 v4, 5, v0"); A("v_mul_u32_u24 v4, 2304, v4")
        A("v_add_u32 v3, %d, v3" % lds_base); A("v_add_u32 v4, %d, v4" % lds_base)
        A("v_and_b32 v5, 31, v0"); A("v_lshl_add_u32 v5, v5, 3, v4")
        A("v_bfe_u32 v6, v0, 2, 3"); A("v_mul_u32_u24 v6, 288, v6"); A("v_add_u32 v6, v6, v4")
        A("v_and_b32 v7, 3, v0"); A("v_lshl_add_u32 v100, v7, 6, v6")
        A("v_lshl_add_u32 v6, v7, 3, v6")
        A("v_and_b32 v101, 0xe0, v0"); A("v_and_b32 v7, 15, v0"); A("v_lshl_add_u32 v101, v7, 1, v101"); A("v_bfe_u32 v7, v0, 4, 1"); A("v_add_u32 v101, v101, v7"); A("v_lshlrev_b32 v101, 3, v101")

    def pre():
        A("v_lshlrev_b32 v1, 2, v0")
        A("v_and_b32 v102, 63, v0"); A("v_lshlrev_b32 v102, 4, v102"); A("v_lshlrev_b32 v2, 6, v0")

    def wload(S):
        for c in range(2):
            S("s_lshr_b32 s24, s%d, 1" % (34 + c)); S("s_lshl_b32 s24, s24, 14"); S("s_and_b32 s25, s%d, 1" % (34 + c)); S("s_lshl_b32 s25, s25, 4"); S("s_add_u32 s24, s24, s25"); S("s_add_u32 s24, s24, %d" % WS_WT)
            S("buffer_load_dwordx4 v[%d:%d], v2, s[8:11], s24 offen sc1" % (WV[c], WV[c] + 3))
            S("buffer_load_dwordx4 v[%d:%d], v2, s[8:11], s24 offen offset:32 sc1" % (WV[c] + 4, WV[c] + 7))

    def column(S, c):
        pool = Pool((8, 112)[c], 20)
        lo = 18432 * c
        def cadd(a, b):
            d = pool.get(); S("v_pk_add_f32 %s, %s, %s" % (pr(d), pr(a), pr(b))); return d
        def csub(a, b):
            d = pool.get(); S("v_pk_add_f32 %s, %s, %s neg_lo:[0,1] neg_hi:[0,1]" % (pr(d), pr(a), pr(b))); return d
        def cadd_rot(a, b, rot, nega=False):
            d = pool.get(); na = 1 if nega else 0
            mods = "neg_lo:[%d,1] neg_hi:[%d,0]" % (na, na) if rot > 0 else "neg_lo:[%d,0] neg_hi:[%d,1]" % (na, na)
            S("v_pk_add_f32 %s, %s, %s op_sel:[0,1] op_sel_hi:[1,0] %s" % (pr(d), pr(a), pr(b), mods)); return d
        def cfma(x, sign, a):
            d = pool.get(); n = 1 if sign < 0 else 0
            S("v_pk_fma_f32 %s, %s, %s, %s neg_lo:[%d,0,0] neg_hi:[%d,0,0]" % (pr(d), pr(x), SC, pr(a), n, n)); return d
        def cfma_rot(x, rot, a):
            d = pool.get()
            mods = "neg_lo:[1,0,0] neg_hi:[0,0,0]" if rot > 0 else "neg_lo:[0,0,0] neg_hi:[1,0,0]"
            S("v_pk_fma_f32 %s, %s, %s, %s op_sel:[1,0,0] op_sel_hi:[0,1,1] %s" % (pr(d), pr(x), SC, pr(a), mods)); return d
        def cmuls(xs, ws, conj):
            ts = []
            for x, w_ in zip(xs, ws):
                t = pool.get(); ts.append(t); S("v_pk_mul_f32 %s, %s, %s op_sel:[0,0] op_sel_hi:[1,0]" % (pr(t), pr(x), pr(w_)))
            mods = "neg_lo:[0,0,0] neg_hi:[1,0,0]" if conj else "neg_lo:[1,0,0] neg_hi:[0,0,0]"
            for x, w_, t in zip(xs, ws, ts):
                S("v_pk_fma_f32 %s, %s, %s, %s op_sel:[1,1,0] op_sel_hi:[0,1,1] %s" % (pr(t), pr(x), pr(w_), pr(t), mods)); pool.put(x)
            return ts
        def radix4(p, sgn):
            s0 = cadd(p[0], p[2]); s1 = csub(p[0], p[2]); s2 = cadd(p[1], p[3]); t = csub(p[1], p[3])
            pool.put(*p)
            r0 = cadd(s0, s2); r2 = csub(s0, s2); r1 = cadd_rot(s1, t, sgn); r3 = cadd_rot(s1, t, -sgn)
            pool.put(s0, s1, s2, t)
            return [r0, r1, r2, r3]
        def radix8(a, sgn):
            u = []; vv = []
            for j in range(4):
                u.append(cadd(a[j], a[j + 4])); vv.append(csub(a[j], a[j + 4])); pool.put(a[j], a[j + 4])
            ev = radix4(u, sgn)
            x1 = cadd_rot(vv[1], vv[1], sgn); x3 = cadd_rot(vv[3], vv[3], sgn, nega=True)
            s0 = cadd_rot(vv[0], vv[2], sgn); s1 = cadd_rot(vv[0], vv[2], -sgn)
            pool.put(*vv)
            s2 = cadd(x1, x3); t = csub(x1, x3); pool.put(x1, x3)
            r0 = cfma(s2, 1, s0); r2 = cfma(s2, -1, s0); r1 = cfma_rot(t, sgn, s1); r3 = cfma_rot(t, -sgn, s1)
            pool.put(s0, s1, s2, t)
            return [ev[0], r0, ev[1], r1, ev[2], r2, ev[3], r3]
        def twid(x, TW, conj): return [x[0]] + cmuls(x[1:], [TW + 2 * q for q in range(7)], conj)
        def wr(x, addr, offs):
            for r, o in zip(x, offs): S("ds_write_b64 v%d, %s offset:%d" % (addr, pr(r), o + lo))
            pool.put(*x)
        def rd(addr, offs):
            x = [pool.get() for _ in offs]
            for r, o in zip(x, offs): S("ds_read_b64 %s, v%d offset:%d" % (pr(r), addr, o + lo))
            return x
        x = [pool.get() for _ in range(8)]
        b0 = 20 + 16 * c
        for j in range(8):
            if j == 7: yield 0
            S("buffer_load_dword v%d, v1, s[8:11], s%d offen offset:%d sc1" % (x[j], b0 + (2 if j >= 4 else 0), (j % 4) * 1024))
            S("buffer_load_dword v%d, v1, s[8:11], s%d offen offset:%d sc1" % (x[j] + 1, b0 + (3 if j >= 4 else 1), (j % 4) * 1024))
        yield 0
        wr(twid(radix8(x, -1), TW1, False), 3, [q * 2304 for q in range(8)])
        yield 1
        x = rd(5, [j * 256 for j in range(8)])
        yield 0
        wr(twid(radix8(x, -1), TW2, False), 5, [q * 288 for q in range(8)]); x = rd(6, [j * 32 for j in range(8)])
        yield 0
        wr(twid(radix8(x, -1), TW3, False), 6, [q * 32 for q in range(8)]); x = rd(100, [e * 8 for e in range(8)])
        yield 0
        y = radix4(x[0:4], -1) + radix4(x[4:8], -1)
        z = []
        for hh in range(2):
            ws = [pool.get() for _ in range(4)]
            for e in range(4):
                S("v_lshlrev_b32 v%d, 16, v%d" % (ws[e], WV[c] + 4 * hh + e)); S("v_and_b32 v%d, 0xffff0000, v%d" % (ws[e] + 1, WV[c] + 4 * hh + e))
            z += cmuls(y[4 * hh:4 * hh + 4], ws, False); pool.put(*ws)
        wr(radix4(z[0:4], 1) + radix4(z[4:8], 1), 100, [e * 8 for e in range(8)]); x = rd(6, [q * 32 for q in range(8)])
        yield 0
        wr(radix8(twid(x, TW3, True), 1), 6, [j * 32 for j in range(8)]); x = rd(5, [q * 288 for q in range(8)])
        yield 0
        wr(radix8(twid(x, TW2, True), 1), 5, [j * 256 for j in range(8)])
        yield 1
        x = rd(3, [q * 2304 for q in range(8)])
        yield 0
        XR[c] = radix8(twid(x, TW1, True), 1)
        yield 0

    def main(dpoll, early, dry=0):
        A("s_cmp_lt_u32 s2, 161"); A("s_cbranch_scc1 %s_go" % L)
        early(); A("s_branch %s_end" % L)
        A.label("%s_go" % L)
        S = Seq(A)
        S("s_mov_b32 s26, 0x%08x" % f2u(0.7071067811865476)); S("s_mov_b32 s27, s26")
        S("s_lshl_b32 s34, s2, 1"); S("s_add_u32 s35, s34, 1")
        S("s_cmp_eq_u32 s2, 0"); S("s_cselect_b32 s35, 320, s35"); S("s_cmp_eq_u32 s2, 160"); S("s_cselect_b32 s34, 1, s34"); S("s_cselect_b32 s35, 1, s35")
        S("s_mul_i32 s21, s101, %d" % XD_LAYER); S("s_add_u32 s21, s21, %d" % WS_XD)
        S("s_lshl_b32 s20, s34, 13"); S("s_add_u32 s20, s20, s21"); S("s_lshl_b32 s36, s35, 13"); S("s_add_u32 s36, s36, s21")
        S("s_add_u32 s21, s20, %d" % (320 * 8192)); S("s_add_u32 s37, s36, %d" % (320 * 8192))
        S("s_cmp_eq_u32 s2, 0"); S("s_cselect_b32 s21, 0x%x, s21" % OOB); S("s_cselect_b32 s37, 0x%x, s37" % OOB)
        S("s_add_u32 s22, s20, 4096"); S("s_add_u32 s23, s21, 4096"); S("s_add_u32 s38, s36, 4096"); S("s_add_u32 s39, s37, 4096")
        if dry:
            S("s_mov_b32 s33, 0"); S("s_cmp_lt_u32 s82, %d" % dry); S("s_cbranch_scc1 %s_body" % L)
            A.label("%s_real" % L)
            S("s_mov_b32 s33, 1")
        dpoll(1)
        st = []
        for c in range(2):
            rec = []; cur = []
            for f in column(cur.append, c):
                rec.append((list(cur), f)); del cur[:]
            st.append(rec)
        def mix(comp, mem, gap):
            comp = list(comp)
            while comp or mem:
                if mem: S(mem.pop(0))
                for _ in range(gap if (mem and mem[0].startswith("ds_write")) else 2 if mem else len(comp)):
                    if comp: S(comp.pop(0))
        carry = []
        for n_ in range(len(st[0])):
            (ia, fa), (ib, fb) = st[0][n_], st[1][n_]
            ca = [t for t in ia if t.startswith("v_")]; ma = [t for t in ia if not t.startswith("v_")]
            cb = [t for t in ib if t.startswith("v_")]; mb = [t for t in ib if not t.startswith("v_")]
            mix(ca, carry, 3); mix(cb, ma, 3); carry = mb
            if fa or not ca: mix([], carry, 1)
            if n_ == 0: wload(S); early(); setup(); S("s_waitcnt vmcnt(0)"); dpoll(2)
            hb(n_)
            if n_ == 1 and dry: A.label("%s_body" % L)
            if fa: S.wait_lds_all(); S("s_barrier")
        if dry: S("s_cmp_eq_u32 s33, 0"); S("s_cbranch_scc1 %s_real" % L)
        S("s_mul_i32 s22, s101, %d" % XNF_LAYER); S("s_add_u32 s22, s22, %d" % WS_ZF); S("s_lshl_b32 s21, s2, 14"); S("s_add_u32 s21, s21, s22")
        a, b = XR[0], XR[1]
        S("s_cmp_eq_u32 s2, 0"); S("s_cbranch_scc1 %s_c0" % L)
        for j in range(8):
            S("v_cvt_pk_bf16_f32 v%d, v%d, v%d" % (a[j], a[j], a[j] + 1)); S("v_cvt_pk_bf16_f32 v%d, v%d, v%d" % (a[j] + 1, b[j], b[j] + 1))
        S("s_cmp_eq_u32 s2, 160"); S("s_cbranch_scc1 %s_c1" % L)
        for j in range(8):
            A("buffer_store_dwordx2 %s, v101, s[8:11], s21 offen offset:%d sc1" % (pr(a[j]), 2048 * (j % 2)))
            if j % 2: A("s_add_u32 s21, s21, 4096")
        A("s_branch %s_end" % L)
        A.label("%s_c0" % L)
        for j in range(8): A("v_cvt_pk_bf16_f32 v%d, v%d, v%d" % (a[j], a[j], b[j]))
        A("s_sub_u32 s22, s22, 4")
        A.label("%s_c1" % L)
        for j in range(8):
            A("buffer_store_dword v%d, v101, s[8:11], s22 offen offset:%d sc1" % (a[j], 4 + 2048 * (j % 2)))
            if j % 2: A("s_add_u32 s22, s22, 4096")
        A.label("%s_end" % L)
    return pre, main


def idft_table(S, half, lane, wave):
    S("s_mul_i32 s29, %s, 10240" % wave); S("s_add_u32 s29, s29, %s" % half); S("s_mul_i32 s28, s88, 81920"); S("s_add_u32 s28, s28, s29"); S("s_add_u32 s28, s28, %d" % WS_GT2)
    for f in range(10):
        if f % 4 == 0:
            if f: S("s_add_u32 s29, s29, 4096"); S("s_add_u32 s28, s28, 4096")
            S("s_mov_b32 m0, s29")
        S("buffer_load_dwordx4 %s, s[8:11], s28 offen offset:%d sc1 lds" % (lane, (f % 4) * 1024))


def idft(A, L, lst, fail, spin_max, hb):
    S = Seq(A)
    S("v_lshlrev_b32 v1, 4, v0"); S("v_lshrrev_b32 v3, 4, v0"); S("v_and_b32 v4, 15, v0")
    S("v_lshlrev_b32 v2, 15, v3"); S("v_lshl_add_u32 v2, v4, 4, v2")
    S("s_mul_i32 s24, s101, %d" % XNF_LAYER); S("s_lshl_b32 s25, s89, 8"); S("s_add_u32 s24, s24, s25"); S("s_add_u32 s24, s24, %d" % WS_ZF)
    NZ = 15
    ZR = lambda ks: 64 + 8 * (ks % NZ)
    def zload(ks):
        for hf in range(2):
            S("s_add_u32 s25, s24, %d" % ((8 * ks + hf) * 16384))
            S("buffer_load_dwordx4 %s, v2, s[8:11], s25 offen sc1" % r4(ZR(ks) + 4 * hf))
    N0 = 8
    for ks in range(N0): zload(ks)
    S("s_mul_i32 s29, s89, 40960")
    S("v_mul_u32_u24 v5, 1280, v4"); S("v_lshl_add_u32 v5, v3, 4, v5"); S("v_add_u32 v6, 40960, v1")
    S("s_lshl_b32 s31, s88, 7"); S("s_add_u32 s30, s29, s31"); S("s_add_u32 s31, s30, s80"); S("s_add_u32 s32, s31, 20480"); S("s_add_u32 s33, s30, 20480")
    BUF = [44, 48, 52, 56, 60]; ACC = [[12 + 4 * T for T in range(4)], [28 + 4 * T for T in range(4)]]
    RS = [[ZR(5), ZR(5) + 4], [ZR(6), ZR(6) + 4]]
    seq = [(ks, T) for ks in range(20) for T in range(4)]
    def trd(i):
        if i >= len(seq): return
        ks, T = seq[i]; off = (T * 20 + ks) * 1024
        S("ds_read_b128 %s, v%d offset:%d" % (r4(BUF[i % 5]), 1 if off < 40960 else 6, off % 40960))
    def fix(ks):
        for q in range(2): S("v_swap_b32 v%d, v%d" % (ZR(ks) + 2 + q, ZR(ks) + 4 + q))
    for i in range(4): trd(i)
    hb(13)
    fix(0)
    nxt = N0
    for i, (ks, T) in enumerate(seq):
        if i in (4, 40): hb({4: 14, 40: 15}[i])
        if T == 0 and ks % 2 == 1:
            for _ in range(4):
                if nxt < 20 and nxt - NZ < ks: zload(nxt); nxt += 1
        if i == 40:
            for mm in range(2):
                for pz in range(2): S("buffer_load_dwordx4 %s, v5, s[8:11], %s offen offset:%d sc1" % (r4(RS[mm][pz]), ("s31", "s32")[mm], 64 * pz))
        for m in range(2):
            a = ACC[m][T]
            S("v_mfma_f32_16x16x32_bf16 %s, %s, %s, %s" % (r4(a), r4(BUF[i % 5]), r4(ZR(ks) + 4 * m), "0" if ks == 0 else r4(a)))
            if m == 0: trd(i + 4)
            elif T == 2 and ks < 19: fix(ks + 1)
    assert nxt == 20
    for m in range(2):
        for pz in range(2):
            for q in range(4):
                r = RS[m][pz] + q; a = ACC[m][2 * pz] + 2 * q
                S("v_lshlrev_b32 v8, 16, v%d" % r); S("v_and_b32 v9, 0xffff0000, v%d" % r)
                S("v_pk_add_f32 %s, %s, v[8:9]" % (r2(a), r2(a))); S("v_cvt_pk_bf16_f32 v%d, v%d, v%d" % (r, a, a + 1))
    hb(16)
    A("s_cmp_eq_u32 s101, 1"); A("s_cbranch_scc1 %s" % L("id_out"))
    xs = [[ACC[m][0] + i for i in range(16)] for m in range(2)]
    ST = [124, 128]; TM = [132, 133]
    def xl(regs):
        for op in ("v_permlane16_swap_b32", "v_permlane32_swap_b32"):
            for r, t in zip(regs, TM): S("v_mov_b32 v%d, v%d" % (t, r))
            for r, t in zip(regs, TM): S("%s v%d, v%d" % (op, r, t))
            for r, t in zip(regs, TM): S("v_add_f32 v%d, v%d, v%d" % (r, r, t))
    for m in range(2):
        for pz in range(2):
            for q in range(4):
                r = RS[m][pz] + q; a = ACC[m][2 * pz] + 2 * q
                S("v_lshlrev_b32 v%d, 16, v%d" % (a, r)); S("v_and_b32 v%d, 0xffff0000, v%d" % (a + 1, r))
    for m in range(2):
        S("v_pk_add_f32 %s, %s, %s" % (r2(ST[m]), r2(xs[m][0]), r2(xs[m][2])))
    for i in range(4, 16, 2):
        for m in range(2): S("v_pk_add_f32 %s, %s, %s" % (r2(ST[m]), r2(ST[m]), r2(xs[m][i])))
    for m in range(2): S("v_add_f32 v%d, v%d, v%d" % (ST[m], ST[m], ST[m] + 1))
    xl(ST)
    for m in range(2): S("v_mul_f32 v%d, 0x%08x, v%d" % (ST[m], f2u(1 / 64), ST[m])); S("v_mov_b64 %s, 0" % r2(ST[m] + 2))
    for i in range(0, 16, 2):
        for m in range(2):
            S("v_pk_add_f32 %s, %s, %s op_sel_hi:[1,0] neg_lo:[0,1] neg_hi:[0,1]" % (r2(8 + 2 * m), r2(xs[m][i]), r2(ST[m])))
        for m in range(2):
            S("v_pk_fma_f32 %s, %s, %s, %s" % (r2(ST[m] + 2), r2(8 + 2 * m), r2(8 + 2 * m), r2(ST[m] + 2)))
    for m in range(2): S("v_add_f32 v%d, v%d, v%d" % (ST[m] + 1, ST[m] + 2, ST[m] + 3))
    xl([ST[0] + 1, ST[1] + 1])
    for m in range(2): S("v_min_u32 v%d, -2, v%d" % (ST[m], ST[m])); S("v_min_u32 v%d, -2, v%d" % (ST[m] + 1, ST[m] + 1))
    S("s_lshl_b32 s24, s89, 12"); S("s_add_u32 s24, s24, %d" % WS_STAT); S("s_lshl_b32 s25, s88, 3"); S("s_add_u32 s25, s25, s24")
    S("v_lshlrev_b32 v7, 7, v4"); S("v_lshl_add_u32 v2, v3, 5, v7")
    S("s_mov_b64 exec, 0xffff")
    lst(["buffer_store_dwordx2 %s, v7, s[8:11], s25 offen offset:%d" % (r2(ST[m]), 2048 * m) for m in range(2)], S)
    S("s_mov_b64 exec, -1")
    G = [136, 144]
    S("v_cmp_gt_u32_e64 s[36:37], 3, v3"); S("v_cmp_gt_u32_e64 s[38:39], 2, v3"); S("s_mov_b32 s34, 0")
    hb(17)
    A.label(L("id_poll"))
    S = Seq(A)
    for m in range(2):
        for hf in range(2): S("buffer_load_dwordx4 %s, v2, s[8:11], s24 offen offset:%d sc1" % (r4(G[m] + 4 * hf), 2048 * m + 16 * hf))
    S("s_add_u32 s34, s34, 1"); S("s_cmp_ge_u32 s34, %d" % spin_max); S("s_cbranch_scc1 %s" % fail)
    for m in range(2):
        for i in range(8): S("v_cndmask_b32_e64 v%d, 0, v%d, s[%d:%d]" % (G[m] + i, G[m] + i, 36 + 2 * (i // 4), 37 + 2 * (i // 4)))
    S("v_max3_u32 v8, v%d, v%d, v%d" % (G[0], G[0] + 1, G[0] + 2))
    for i in range(3, 15, 2): S("v_max3_u32 v8, v8, v%d, v%d" % (G[0] + i, G[0] + i + 1))
    S("v_max_u32 v8, v8, v%d" % (G[0] + 15)); S("v_cmp_eq_u32 vcc, -1, v8"); S("s_cbranch_vccnz %s" % L("id_poll"))
    hb(18)
    for m in range(2):
        S("v_add_f32 v%d, v%d, v%d" % (ST[m], G[m], G[m] + 2)); S("v_add_f32 v%d, v%d, v%d" % (ST[m] + 1, G[m] + 4, G[m] + 6)); S("v_add_f32 v%d, v%d, v%d" % (ST[m], ST[m], ST[m] + 1))
    xl(ST)
    for m in range(2):
        S("v_mul_f32 v%d, 0x%08x, v%d" % (ST[m], f2u(0.1), ST[m]))
        S("v_add_f32 v%d, v%d, v%d" % (ST[m] + 1, G[m] + 1, G[m] + 3)); S("v_add_f32 v%d, v%d, v%d" % (ST[m] + 2, G[m] + 5, G[m] + 7)); S("v_add_f32 v%d, v%d, v%d" % (ST[m] + 1, ST[m] + 1, ST[m] + 2))
        for e in range(4):
            S("v_sub_f32 v8, v%d, v%d" % (G[m] + 2 * e, ST[m])); S("v_cndmask_b32_e64 v8, 0, v8, s[%d:%d]" % (36 + 2 * (e // 2), 37 + 2 * (e // 2)))
            S("v_mul_f32 v9, 0x42800000, v8"); S("v_fmac_f32 v%d, v8, v9" % (ST[m] + 1))
    xl([ST[0] + 1, ST[1] + 1])
    for m in range(2):
        S("v_mov_b32 v%d, 0x3727c5ac" % (ST[m] + 2)); S("v_fmac_f32 v%d, 0x3acccccd, v%d" % (ST[m] + 2, ST[m] + 1)); S("v_rsq_f32 v%d, v%d" % (ST[m] + 2, ST[m] + 2))
    S("s_lshl_b32 s25, s88, 11"); S("s_add_u32 s25, s25, s29"); S("s_add_u32 s25, s25, %d" % (WS_XNF + XNF_LAYER)); S("s_add_u32 s24, s25, 20480")
    for m in range(2):
        for i in range(0, 16, 2):
            S("v_pk_add_f32 %s, %s, %s op_sel_hi:[1,0] neg_lo:[0,1] neg_hi:[0,1]" % (r2(xs[m][i]), r2(xs[m][i]), r2(ST[m])))
        for i in range(0, 16, 2):
            S("v_pk_mul_f32 %s, %s, %s op_sel_hi:[1,0]" % (r2(xs[m][i]), r2(xs[m][i]), r2(ST[m] + 2)))
        for i in range(8): S("v_cvt_pk_bf16_f32 v%d, v%d, v%d" % (xs[m][i], xs[m][2 * i], xs[m][2 * i + 1]))
    XS = ["buffer_store_dwordx4 %s, v1, s[8:11], %%s offen offset:%d" % (r4(xs[m][4 * pz]), 1024 * pz) for m in range(2) for pz in range(2)]
    A("s_cmp_lg_u32 s82, 0"); A("s_cbranch_scc1 %s" % L("id_nl"))
    A("s_add_u32 s34, s25, %d" % (WS_XNL - WS_XNF - XNF_LAYER)); A("s_add_u32 s35, s34, 20480")
    lst([t_ % ("s34", "s35")[i // 2] for i, t_ in enumerate(XS)])
    A("s_mul_i32 s34, s89, 10"); A("s_add_u32 s34, s34, s88"); A("s_add_u32 s34, s34, %d" % WS_LFL); A("v_mov_b32 v8, 1"); A("s_waitcnt vmcnt(0)"); A("s_mov_b64 exec, 1")
    lst(["buffer_store_byte v8, v1, s[8:11], s34 offen"])
    A("s_mov_b64 exec, -1")
    A("s_mov_b32 s68, s25"); A("s_mov_b32 s69, s24"); A("s_mov_b32 s70, s30"); A("s_mov_b32 s71, s33"); A("s_branch %s" % L("noid"))
    A.label(L("id_nl"))
    for i, t_ in enumerate(XS): A(t_ % ("s25", "s24")[i // 2] + " sc1")
    hb(19)
    A.label(L("id_out"))
    for m in range(2):
        for pz in range(2): A("buffer_store_dwordx4 %s, v5, s[16:19], %s offen offset:%d sc1" % (r4(RS[m][pz]), ("s30", "s33")[m], 64 * pz))
    A("s_cmp_eq_u32 s101, 1"); A("s_cbranch_scc1 %s" % L("end"))
    A("s_lshl_b32 s24, s89, 7"); A("s_lshl_b32 s25, s88, 2"); A("s_add_u32 s24, s24, s25"); A("s_add_u32 s24, s24, %d" % (WS_XFL + 8192)); A("v_mov_b32 v8, 1")
    A("s_waitcnt vmcnt(0)"); A("s_mov_b64 exec, 1"); A("buffer_store_dword v8, v1, s[8:11], s24 offen sc1"); A("s_mov_b64 exec, -1")
    hb(20, True)


def idft_deferred(A):
    A("v_bfe_u32 v5, v0, 4, 4"); A("v_mul_u32_u24 v5, 1280, v5"); A("v_lshrrev_b32 v6, 8, v0"); A("v_lshl_add_u32 v5, v6, 4, v5")
    for m in range(2):
        for pz in range(2):
            A("buffer_store_dwordx4 %s, v0, s[8:11], s%d offen offset:%d sc1" % (r4(12 + 16 * m + 4 * pz), 68 + m, 1024 * pz))
            A("buffer_store_dwordx4 %s, v5, s[16:19], s%d offen offset:%d sc1" % (r4(104 + 8 * m + 4 * pz), 70 + m, 64 * pz))
```

```python
import struct, copy
from asmlib import *
from layout import *
from seq import *


def f2u(x):
    return struct.unpack('<I', struct.pack('<f', x))[0]


C1 = (128 ** -0.5) * 1.4426950408889634
SPIN_MAX = 60000
OOB = 0x10000000

L_K = 0
L_MR = 8192
L_EV = L_MR
L_ML = L_MR + 5120
L_EQ = L_ML + 5120
L_EK = L_EQ + 2304
L_EO = L_ML
L_JUNK = L_EK + 2304
L_FL = L_JUNK + 256
L_W = 24576
NLW = 17
LW_WAVE = NLW * 2048
assert L_FL + 64 <= L_W and L_W + 4 * LW_WAVE <= 163840

L16, IDX, EW, ER, OWA, VW, MRA, PSB, RL, PA8, T0, T1 = range(12)
KRA = L16
AV, AQ, AK = 12, 20, 28
M = [36 + 4 * t for t in range(5)]
LB = [56, 64]
X0, X1 = 72, 76
VT = [80, 84]
WR0 = 88

MATS = {'q': 0, 'k': 1, 'v': 2}
ACC = {'q': AQ, 'k': AK, 'v': AV}
import sys
NV = ([int(a_[3:]) for a_ in sys.argv if a_.startswith("NV=")] + [2])[0]
VL = ([int(a_[3:]) for a_ in sys.argv if a_.startswith("VL=")] + [0])[0]
VT_ = list(range(5 - NV, 5)) if (VL and NV >= 2) else list(range(NV))
SEQ = [(m, tl, 0, t) for t in range(5) for m in ('qkv' if t in VT_ else 'qk') for tl in range(2)] + [(m, tl, 1, t) for m in 'qkv' for t in range(5) for tl in range(2)] + \
      [('v', tl, 0, t) for t in range(5) if t not in VT_ for tl in range(2)]
NLOC = 20 + 2 * NV
SC2 = ([int(a_[4:]) for a_ in sys.argv if a_.startswith("SC2=")] + [1])[0] and NV == 2
LDSI = [0, 1] + ([i for i in range(5, 41) if i % 5 in (0, 2)] if SC2 else [i for i in range(60) if i % 3 == 2 and 5 <= i <= 47])
assert len(LDSI) == NLW
_regs = [WR0 + 8 * i for i in range(21)] + [256 + 8 * i for i in range(32)]
WREG = {}
for i in range(60):
    if i not in LDSI: WREG[i] = _regs.pop()
WO = {(T, tp): _regs.pop() for T in range(5) for tp in range(2)}
assert not _regs

FL_ = {0: [], 1: [], 2: [0, 1, 2], 3: [3, 4]}
FR_ = {0: [0, 1], 1: [2], 2: [3], 3: [4]}


def chain_load(A):
    A("s_mul_i32 s29, s22, %d" % WQKP_H); A("s_mul_i32 s28, s21, %d" % WQKP_W); A("s_add_u32 s29, s29, s28")
    A("s_mul_i32 s28, s20, 10240"); A("s_add_u32 s30, s29, s28"); A("s_sub_u32 s31, s29, s28"); A("s_add_u32 s31, s31, 10240")
    A("s_mul_i32 s26, s21, %d" % LW_WAVE); A("s_add_u32 s26, s26, %d" % L_W)
    for i, (m, tl, rem, t) in enumerate(SEQ):
        off = WS_WQKP + MATS[m] * 40960 + tl * 20480 + t * 2048
        A("s_add_u32 s27, s%d, %d" % (31 if rem else 30, off))
        if i in LDSI:
            A("s_add_u32 m0, s26, %d" % (LDSI.index(i) * 2048)); A("s_nop 0")
            for hf in range(2): A("buffer_load_dwordx4 v%d, s[8:11], s27 offen offset:%d lds" % (L16, hf * 1024))
        else:
            for hf in range(2): A("buffer_load_dwordx4 %s, v%d, s[8:11], s27 offen offset:%d" % (ureg(WREG[i] + 4 * hf, 4), L16, hf * 1024))
    A("s_lshl_b32 s28, s20, 2"); A("s_add_u32 s28, s28, s21"); A("s_mul_i32 s28, s28, 20480"); A("s_mul_i32 s29, s22, 163840"); A("s_add_u32 s29, s29, s28")
    for T in range(5):
        A("s_add_u32 s27, s29, %d" % (WS_WOC + T * 4096))
        for u in range(4): A("buffer_load_dwordx4 %s, v%d, s[8:11], s27 offen offset:%d" % (ureg(WO[T, u // 2] + 4 * (u % 2), 4), L16, u * 1024))


def chain_body(A, P, L, ht):
    g, r, i_, p, a, b = range(36, 42)
    A("v_lshrrev_b32 v%d, 8, v0" % g); A("v_bfe_u32 v%d, v0, 4, 4" % r); A("v_bfe_u32 v%d, v0, 4, 3" % i_); A("v_bfe_u32 v%d, v0, 7, 1" % p)
    A("s_mov_b32 s36, 0x00ff00ff"); A("s_mov_b32 s37, 0x00ff00ff"); A("s_not_b64 s[18:19], s[36:37]")
    A("v_mov_b32 v%d, 0x4444" % IDX); A("v_mov_b32 v%d, 0xeeee" % a); A("v_cndmask_b32_e64 v%d, v%d, v%d, s[18:19]" % (IDX, IDX, a))
    A("v_and_b32 v%d, 1, v%d" % (a, g)); A("v_lshlrev_b32 v%d, 2, v%d" % (a, a)); A("v_lshrrev_b32 v%d, 1, v%d" % (b, g)); A("v_add_u32 v%d, v%d, v%d" % (a, a, b))
    A("v_mul_u32_u24 v%d, 288, v%d" % (a, a)); A("v_lshl_add_u32 v%d, v%d, 2, v%d" % (a, r, a)); A("s_lshl_b32 s27, s21, 6"); A("v_add_u32 v%d, s27, v%d" % (EW, a))
    A("v_mul_u32_u24 v%d, 288, v%d" % (a, i_)); A("v_lshl_add_u32 v%d, v%d, 4, v%d" % (ER, g, a))
    A("s_lshr_b32 s27, s21, 1"); A("s_lshl_b32 s27, s27, 10"); A("s_and_b32 s28, s21, 1"); A("s_lshl_b32 s28, s28, 3"); A("s_add_u32 s27, s27, s28"); A("s_add_u32 s27, s27, %d" % L_EO)
    A("v_and_b32 v%d, 0x37f, v0" % a); A("v_add_u32 v%d, s27, v%d" % (OWA, a))
    A("s_mul_i32 s27, s21, %d" % LW_WAVE); A("s_add_u32 s27, s27, %d" % L_W); A("v_add_u32 v%d, s27, v0" % VW)
    A("v_and_b32 v%d, 0x200, v0" % MRA)
    for src, dst in ((6, 8), (4, 7), (5, 6), (8, 5), (7, 4)):
        A("v_bfe_u32 v%d, v0, %d, 1" % (a, src)); A("v_lshl_or_b32 v%d, v%d, %d, v%d" % (MRA, a, dst, MRA))
    A("s_lshl_b32 s27, s21, 13"); A("s_lshl_b32 s28, s22, 5"); A("s_add_u32 s27, s27, s28"); A("s_add_u32 s27, s27, %d" % PART_T4)
    A("v_lshrrev_b32 v%d, 7, v0" % a); A("v_lshlrev_b32 v%d, 10, v%d" % (a, a)); A("v_lshl_add_u32 v%d, v%d, 2, v%d" % (a, i_, a)); A("v_add_u32 v%d, s27, v%d" % (PSB, a))
    A("v_lshrrev_b32 v%d, 7, v0" % a); A("v_mul_u32_u24 v%d, %d, v%d" % (a, PART_H, a)); A("v_lshl_add_u32 v%d, v%d, 4, v%d" % (RL, i_, a))
    A("v_lshlrev_b32 v%d, 3, v0" % PA8)
    A("s_mul_i32 s34, s20, %d" % PART_X); A("s_add_u32 s34, s34, %d" % WS_PART)
    A("s_lshl_b32 s35, s21, 10"); A("s_mul_i32 s27, s22, %d" % PART_H); A("s_add_u32 s35, s35, s27")
    A("s_and_b32 s27, s22, 1"); A("s_bfe_u32 s28, s22, 0x10001"); A("s_bfe_u32 s29, s22, 0x10002")
    A("s_lshl_b32 s30, s27, 2"); A("s_lshl_b32 s31, s28, 1"); A("s_or_b32 s30, s30, s31"); A("s_or_b32 s30, s30, s29"); A("s_and_b32 s31, s22, 0x18"); A("s_or_b32 s30, s30, s31")
    A("s_lshl_b32 s33, s30, 7"); A("s_lshl_b32 s32, s22, 7")
    if P.get("RS", 0): A("s_mov_b32 s2, s32"); A("s_mov_b32 s42, s33")
    else: A("s_cmp_eq_u32 s21, 0"); A("s_cbranch_scc1 %s" % L("c_r0"))
    A("s_lshl_b32 s32, s22, 10"); A("s_add_u32 s32, s32, %d" % PART_T4)
    A("s_lshl_b32 s33, s27, 4"); A("s_lshl_b32 s28, s28, 8"); A("s_or_b32 s33, s33, s28"); A("s_lshl_b32 s29, s29, 7"); A("s_or_b32 s33, s33, s29")
    A("s_bfe_u32 s28, s22, 0x10003"); A("s_lshl_b32 s28, s28, 5"); A("s_or_b32 s33, s33, s28"); A("s_bfe_u32 s28, s22, 0x10004"); A("s_lshl_b32 s28, s28, 9"); A("s_or_b32 s33, s33, s28")
    A("s_add_u32 s33, s33, 4096")
    A.label(L("c_r0"))
    A("s_mul_i32 s41, s20, %d" % (4 * ML_S)); A("s_add_u32 s41, s41, %d" % (WS_ML + ML_O))
    A("s_lshl_b32 s46, s20, 17"); A("s_add_u32 s46, s46, %d" % WS_MR); A("s_add_u32 s46, s46, s25"); A("s_xor_b32 s47, s46, 0x20000")
    A("s_mov_b32 s38, 0x00ff00ff"); A("s_mov_b32 s39, 0"); A("s_mov_b32 s62, 0x%08x" % (0x00ff00ff if P.get("RS", 0) else 0x00030003)); A("s_mov_b32 s63, 0x00030003")
    A("s_mov_b32 s40, 0x%08x" % f2u(C1)); A("s_movk_i32 s45, 0x3f80")
    A("s_mov_b32 s68, 0x%08x" % f2u(2.0 ** -24)); A("s_mov_b32 s69, 0x%08x" % (f2u(2.0 ** 24) - f2u(2.0 ** -24)))
    A("s_lshl_b32 s51, s22, 7"); A("s_add_u32 s52, s51, %d" % WS_CHFL); A("s_lshl_b32 s51, s22, 8"); A("s_add_u32 s51, s51, %d" % WS_KVFL)
    A("s_mov_b32 s24, 0x3f803f80"); A("s_mov_b32 s25, 0x3f803f80"); A("s_mov_b32 s16, 0x3f003f00"); A("s_mov_b32 s17, 0x3f003f00")
    A("s_lshl_b32 s53, s22, 13"); A("s_add_u32 s53, s53, %d" % WS_KM)
    A("s_lshl_b32 s27, s20, 12"); A("s_add_u32 s53, s53, s27"); A("s_lshl_b32 s27, s20, 2"); A("s_add_u32 s52, s52, s27")
    A("s_cmp_eq_u32 s20, 0"); A("s_cselect_b64 s[66:67], -1, 0")
    A("s_mov_b32 s44, 0"); A("s_mov_b32 s54, 0"); A("s_mov_b32 s71, 0"); A("s_mov_b32 s4, 0x%x" % OOB); A("s_mov_b32 s60, 0x%x" % OOB); A("s_mov_b32 s64, 0x%x" % OOB); A("s_mov_b32 s65, 0x%x" % OOB)
    A("v_mov_b32 v%d, %d" % (a, L_FL)); A("v_mov_b64 v[%d:%d], 0" % (T0, T1)); A("ds_write_b64 v%d, v[%d:%d]" % (a, T0, T1))
    A("s_waitcnt vmcnt(0) lgkmcnt(0)"); A("s_barrier")
    ht(1)
    A("s_cmp_lg_u32 s23, 0"); A("s_cbranch_scc1 %s" % L("c_slow"))
    for md in (0, 1):
        if md: A.label(L("c_slow"))
        for w in range(1, 4):
            A("s_cmp_eq_u32 s21, %d" % w); A("s_cbranch_scc1 %s" % L("c%d_%d_layer" % (md, w)))
        for w in range(4): chain_wave(A, P, L, ht, w, md)


def chain_wave(A, P, L0, ht, w, md):
    L = lambda x: L0("c%d_%d_%s" % (md, w, x))
    sc = " sc1" if md else ""
    ool = []
    ST = P.get("STAMP") and not md
    TR = ST and "TS" in P
    SOLO = P.get("SOLO")

    def stamp(S, i):
        if ST and not TR: S("%s s[%d:%d]" % ("s_memrealtime" if P.get("RAW") else "s_memtime", 72 + 2 * i, 73 + 2 * i))
    def hook(n, t):
        k_, r_ = divmod(n - P["TS"], P.get("TD", 16))
        if r_ == 0 and 0 <= k_ <= 8: A("s_memtime s[%d:%d]" % (72 + 2 * k_, 73 + 2 * k_)); S.tailv = 0
        if P.get("LIST") == w + 1: print(n, estimate(A.lines[top0:]), t)
    def br(t): return "s_nop 0" if SOLO else t

    def smf(S, acc, a_, b_): S("v_smfmac_f32_16x16x64_bf16 %s, %s, %s, v%d" % (r4(acc), r4(a_), ureg(b_, 8), IDX))
    def mf32(S, acc, a_, b_, c): S("v_mfma_f32_16x16x32_bf16 %s, %s, %s, %s" % (r4(acc), ureg(a_, 4), ureg(b_, 4), c if isinstance(c, str) else r4(c)))
    def mf16(S, acc, a_, b_, c): S("v_mfma_f32_16x16x16_bf16 %s, %s, %s, %s" % (r4(acc), r2(a_), r2(b_), c if isinstance(c, str) else r4(c)))
    holds = {}
    def rd(S, dst, areg, off):
        holds[dst] = (areg, off)
        return S("ds_read_b128 %s, v%d offset:%d" % (r4(dst), areg, off))
    def zero(S, q): S("v_mov_b64 %s, 0" % r2(q)); S("v_mov_b64 %s, 0" % r2(q + 2))
    def zitems(S, q): return [lambda r=r: S("v_mov_b64 %s, 0" % r2(r)) for r in (q, q + 2)]
    def cvt(d, a_, b_): return "v_cvt_pk_bf16_f32 v%d, v%d, v%d" % (d, a_, b_)
    def ror(d, s_): return "v_mov_b32_dpp v%d, v%d row_ror:8 row_mask:0xf bank_mask:0xf" % (d, s_)
    def newseq():
        S = Seq(A); S.warm = VW; S.mst = P.get("MST", 3); S.hoist = True; return S
    def idle(S, n):
        while n > 0:
            S("v_mov_b32 v%d, v%d" % (VW, VW)); n -= 1
            if n >= 2: S("s_nop 1"); n -= 2

    def pub_st(E):
        E("buffer_store_dwordx4 %s, v%d, s[8:11], s4 offen offset:%d sc1" % (r4(X1), L16, 1024 * w)); E("s_mov_b32 s4, 0x%x" % OOB)
    def pub_addr(E): E("s_lshl_b32 s4, s44, 18"); E("s_add_u32 s4, s4, s53")

    def dma(S, fr, sa, lds, fl=" sc1"):
        tok = None
        for i, f in enumerate(fr):
            blk = f // 4
            if i == 0 or f % 4 == 0:
                S("s_mov_b32 m0, %d" % (lds + blk * 4096))
                if blk: S("s_add_u32 s59, %s, %d" % (sa, blk * 4096))
            tok = S("buffer_load_dwordx4 v%d, s[8:11], %s offen offset:%d%s lds" % (L16, "s59" if blk else sa, 1024 * (f % 4), fl))
        return tok

    def lw_read(S, n):
        b = LB[n % 2]
        return [lambda: rd(S, b, VW, n * 2048), lambda: rd(S, b + 4, VW, n * 2048 + 1024)]

    def drain(fl):
        while fl: fl.pop(0)()

    def kv_addr(S, dst, ds, extra=0):
        S("s_and_b32 %s, s44, 63" % dst)
        if ds: S("s_add_u32 %s, %s, %d" % (dst, dst, ds)); S("s_min_u32 %s, %s, 63" % (dst, dst))
        S("s_lshl_b32 %s, %s, 18" % (dst, dst)); S("s_add_u32 %s, %s, s50" % (dst, dst))
        if extra: S("s_add_u32 %s, %s, %d" % (dst, dst, extra))

    def kv_prep(S, d):
        kv_addr(S, "s26", d, 2048 * w)
        if P.get("KV0"): S("s_add_u32 s26, s50, %d" % (2048 * w))
        S("s_add_u32 s3, s26, %d" % KV_MAT)
    def k_fetch(S):
        S("s_mov_b32 m0, %d" % (L_K + 2048 * w))
        for j in range(2): S("buffer_load_dwordx4 v%d, s[8:11], s26 offen offset:%d sc1 lds" % (L16, 1024 * j))
    def vt_fetch(S):
        for j in range(2): S("buffer_load_dwordx4 %s, v%d, s[8:11], s3 offen offset:%d sc1" % (r4(VT[j]), L16, 1024 * j))

    def post(S, acc, off, scale=False):
        it = []
        for tl in range(2):
            b = acc + 4 * tl
            it += ["v_permlane32_swap_b32 v%d, v%d" % (b, b + 1), "v_permlane32_swap_b32 v%d, v%d" % (b + 2, b + 3)]
        for tl in range(2):
            b = acc + 4 * tl
            it += ["v_add_f32 v%d, v%d, v%d" % (b, b, b + 1), "v_add_f32 v%d, v%d, v%d" % (b + 2, b + 2, b + 3)]
        if scale: it += ["v_mul_f32 v%d, s40, v%d" % (r, r) for r in (acc, acc + 4, acc + 2, acc + 6)]
        it += [cvt(acc, acc, acc + 4), cvt(acc + 1, acc + 2, acc + 6)]
        wr = ["ds_write_b32 v%d, v%d offset:%d" % (EW, acc, off), "ds_write_b32 v%d, v%d offset:%d" % (EW, acc + 1, off + 576)]
        return [lambda t=t: S(t) for t in it], [lambda t=t: S(t) for t in wr]

    def spin_count(S_, lim=SPIN_MAX):
        S_("s_add_u32 s30, s30, 1"); S_("s_cmp_ge_u32 s30, %d" % lim); S_("s_cbranch_scc1 %s" % L0("fail"))

    def kv_wait(S, lab, need):
        S("s_add_u32 s27, s44, %d" % need); S("s_or_b32 s28, s44, 63"); S("s_add_u32 s28, s28, 1"); S("s_min_u32 s27, s27, s28")
        S("s_cmp_lt_u32 s54, s27"); S("s_cbranch_scc1 %s" % L(lab))
        S.label(L(lab + "_r"))
        def blk():
            A.label(L(lab))
            A("s_mov_b32 s30, 0")
            A.label(L(lab + "_l"))
            A("s_waitcnt lgkmcnt(0)"); A("s_mov_b64 exec, 3")
            A("buffer_load_dword v%d, v%d, s[8:11], s51 offen sc1" % (T0, PA8)); A("s_waitcnt vmcnt(0)"); A("s_mov_b64 exec, -1")
            A("v_readlane_b32 s54, v%d, 0" % T0); A("v_readlane_b32 s28, v%d, 1" % T0); A("s_nop 3"); A("s_min_u32 s54, s54, s28")
            A("s_cmp_ge_u32 s54, s27"); A("s_cbranch_scc1 %s" % L(lab + "_r"))
            A("s_sleep %d" % P.get("CS", 2)); spin_count(A, 4 * SPIN_MAX); A("s_branch %s" % L(lab + "_l"))
        ool.append(blk)

    def step_addr(S):
        S("s_and_b32 s55, s44, 3"); S("s_mul_i32 s55, s55, %d" % PART_SLOT); S("s_add_u32 s55, s55, s34"); S("s_add_u32 s58, s55, s35"); S("s_and_b32 s57, s44, 63")
        if RS and w == 0: S("s_add_u32 s59, s55, s32") if False else None
        if RS and w == 0: S("s_add_u32 s43, s55, s2"); S("s_add_u32 s15x, s55, s32".replace("s15x", "s31"))
        elif w < 2: S("s_add_u32 s43, s55, s32")
        if w == 0: S("s_add_u32 s61, s43, %d" % (8 * PART_H)); S("s_add_u32 s100, s43, %d" % (16 * PART_H)); S("s_add_u32 s101, s43, %d" % (24 * PART_H))
        if w == 1: S("s_sub_u32 s27, s57, 1"); S("s_max_i32 s27, s27, 0"); S("s_lshl_b64 s[100:101], 1, s27"); S("s_lshl_b32 s27, s27, 7"); S("s_sub_u32 s61, s52, s27")
        if w >= 2: S("s_sub_u32 s61, %s, %d" % ("s3" if w == 2 else "s26", 2048 * w))

    def ready(S):
        for n in range(2): drain(lw_read(S, n))
        for q in (AV, AV + 4, AQ, AQ + 4, AK, AK + 4): zero(S, q)

    MCW = P.get("MCW", 0)
    RS = P.get("RS", 0)
    CL3 = P.get("CLP", 3) == 3
    CLP = 0 if CL3 else P.get("CLP", 3)
    cw = w - 2 if CLP else w
    Q = M[4] if (CLP and w >= 2) else X0
    def clear_prep(S):
        S("v_mov_b64 %s, -1" % r2(Q)); S("v_mov_b64 %s, -1" % r2(Q + 2))
        S("s_add_u32 s28, s44, 3"); S("s_and_b32 s29, s28, 3"); S("s_mul_i32 s31, s22, 160")
        if cw in (0, 1):
            S("s_mul_i32 s28, s29, %d" % PART_SLOT); S("s_add_u32 s28, s28, s34"); S("s_add_u32 s64, s28, s35")
            if CLP: S("s_sub_u32 s64, s64, 2048")
        if cw == 0: S("s_mul_i32 s65, s29, %d" % ML_S); S("s_add_u32 s65, s65, s41"); S("s_add_u32 s65, s65, s31")
        if cw == 1: S("s_lshl_b32 s65, s22, 10"); S("s_add_u32 s65, s65, s28"); S("s_add_u32 s65, s65, %d" % PART_T4)
        if w == 0: S("s_lshl_b32 s60, s29, 15"); S("s_add_u32 s60, s60, s47"); S("s_add_u32 s60, s60, s31")
    def clears(S):
        for j in range(cw, cw + 2): S("buffer_store_dwordx4 %s, v%d, s[8:11], s64 offen offset:%d%s" % (r4(Q), L16, j * 1024, sc))
        if cw == 0: S("s_mov_b64 exec, 0x3ff")
        S("buffer_store_dwordx4 %s, v%d, s[8:11], s65 offen%s" % (r4(Q), L16, sc))
        if cw == 0: S("s_mov_b64 exec, -1")
        S("s_mov_b32 s65, 0x%x" % OOB); S("s_mov_b32 s64, 0x%x" % OOB)
    def m_clear(S):
        S("s_mov_b64 exec, 0x3ff")
        S("buffer_store_dwordx4 %s, v%d, s[8:11], s60 offen sc1" % (r4(Q), L16))
        S("s_mov_b64 exec, -1"); S("s_mov_b32 s60, 0x%x" % OOB)

    def window(S):
        p0 = pw0; red = w < (1 if RS else 2); tag = "w"
        FLn, RG, U1, LD, PG, KD, CD = P.get("FL", 48), P.get("RG", 24), P.get("U1", 8), P.get("LD", 56), P.get("PG2", 12), P.get("KD", 84), P.get("CD", 0)
        NS, NA, CP = P.get("NS", 2), P.get("NA", 3), P.get("CP", 0)
        nxt = ["s_add_u32 s27, s44, 1", "s_and_b32 s27, s27, 3", "s_mul_i32 s48, s27, %d" % ML_S, "s_add_u32 s48, s48, s41", "s_lshl_b32 s27, s27, 15", "s_add_u32 s49, s27, s47"]
        if not red:
            for t_ in nxt: S(t_)
        if red:
            if RS:
                NL = 5
                assert NS <= 2
                SETS = [[LB[0], AV, AV + 4, AQ, AQ + 4], [LB[0] + 4, M[1], M[2], M[3], M[4]]][:NS]
                SEL, SELQ, D, X = X0, LB[1], AK, AK + 4
                MK = ("s[64:65]", "vcc")
                su = ["v_bfe_u32 v%d, v%d, 6, 1" % (X, L16), "v_lshlrev_b32 v%d, 4, v%d" % (X, X), "v_lshlrev_b32_e64 v%d, v%d, s45" % (X, X), "v_and_b32 v%d, 0xb0, v%d" % (X + 1, L16)]
                for q0 in (0, 2):
                    su += ["v_cmp_eq_u32 vcc, 0x%x, v%d" % (0x80 + 16 * q0, X + 1), "s_mov_b64 s[64:65], vcc", "v_cmp_eq_u32 vcc, 0x%x, v%d" % (0x90 + 16 * q0, X + 1)] + nxt[q0:q0 + 2]
                    su += ["v_cndmask_b32_e64 v%d, 0, v%d, %s" % (SELQ + q0 + q, X, MK[q]) for q in range(2)]
                su += ["v_and_b32 v%d, 16, v%d" % (X, L16), "v_bfe_u32 v%d, v%d, 5, 3" % (X + 1, L16), "v_lshlrev_b32_e64 v%d, v%d, s45" % (X, X)]
                for q0 in (0, 2):
                    su += ["v_cmp_eq_u32_e64 %s, %d, v%d" % (MK[q & 1], q, X + 1) for q in (q0, q0 + 1)] + [nxt[4 + q0 // 2], "s_nop 0"]
                    su += ["v_cndmask_b32_e64 v%d, 0, v%d, %s" % (SEL + q, X, MK[q & 1]) for q in (q0, q0 + 1)]
                su += ["v_mov_b32 v%d, s42" % X, "v_mov_b32 v%d, s33" % (X + 1), "v_cmp_lt_u32 vcc, 0x1ff, v%d" % L16, "v_bfe_u32 v%d, v%d, 4, 3" % (T1, L16), "v_bfe_u32 v%d, v%d, 8, 1" % (X + 2, L16),
                       "v_cndmask_b32 v%d, v%d, v%d, vcc" % (X, X, X + 1), "v_lshl_add_u32 v%d, v%d, 3, v%d" % (T1, T1, X), "v_lshl_add_u32 v%d, v%d, 6, v%d" % (T1, X + 2, T1)]
                su += ["s_add_u32 s56, s27, s46", "s_mov_b32 s58, s48"]
            else:
                NL = 4 if w == 0 else 1
                SETS = [[AV, AV + 4, AQ, AQ + 4], [M[1], M[2], M[3], M[4]], [LB[0], LB[0] + 4, LB[1], LB[1] + 4]][:NS] if w == 0 else [[AV + 4 * i] for i in range(NS)]
                SEL, D, X = X0, AK, AK + 4
                su = []
                if w == 0:
                    su += ["v_and_b32 v%d, 16, v%d" % (X, L16), "v_bfe_u32 v%d, v%d, 5, 2" % (X + 1, L16)]
                else:
                    su += ["v_bfe_u32 v%d, v%d, 4, 1" % (X + 2, L16), "v_bfe_u32 v%d, v%d, 7, 1" % (X + 1, L16), "v_lshl_add_u32 v%d, v%d, 1, v%d" % (X + 1, X + 1, X + 2),
                           "v_bfe_u32 v%d, v%d, 6, 1" % (X, L16), "v_lshlrev_b32 v%d, 4, v%d" % (X, X)]
                su += ["v_lshlrev_b32_e64 v%d, v%d, s45" % (X, X)]
                MK = ("s[64:65]", "vcc")
                su += ["v_cmp_eq_u32_e64 %s, %d, v%d" % (MK[q & 1], q, X + 1) for q in range(2)] + nxt[:2]
                su += ["v_cndmask_b32_e64 v%d, 0, v%d, %s" % (SEL + q, X, MK[q & 1]) for q in range(2)]
                su += ["v_cmp_eq_u32_e64 %s, %d, v%d" % (MK[q & 1], q, X + 1) for q in range(2, 4)] + nxt[2:4]
                su += ["v_cndmask_b32_e64 v%d, 0, v%d, %s" % (SEL + q, X, MK[q & 1]) for q in range(2, 4)] + nxt[4:]
                if w == 0:
                    su += ["v_bfe_u32 v%d, v%d, 4, 3" % (T1, L16), "v_lshlrev_b32 v%d, 3, v%d" % (T1, T1), "v_lshrrev_b32 v%d, 8, v%d" % (X, L16), "v_lshl_add_u32 v%d, v%d, 6, v%d" % (T1, X, T1)]
                else:
                    su += ["v_bfe_u32 v%d, v%d, 8, 1" % (X, L16), "v_lshlrev_b32 v%d, 6, v%d" % (T1, X), "v_lshl_add_u32 v%d, v%d, 3, v%d" % (T1, X + 2, T1),
                           "v_lshrrev_b32 v%d, 9, v%d" % (X + 1, L16), "v_lshl_add_u32 v%d, v%d, 2, v%d" % (T1, X + 1, T1)]
                su += ["s_add_u32 s56, s27, s46", "s_add_u32 s56, s56, s33", "s_add_u32 s58, s48, s33"]
            def gap(n):
                while n > 0 and su: S(su.pop(0)); n -= 1
                idle(S, n)
            def issue(E, B):
                if RS:
                    for j in range(5): E("buffer_load_dwordx4 %s, v%d, s[8:11], %s offen sc1" % (r4(B[j]), RL if j else L16, ("s31", "s43", "s61", "s100", "s101")[j]))
                    return
                for j in range(NL): E("buffer_load_dwordx4 %s, v%d, s[8:11], %s offen sc1" % (r4(B[j]), RL if w == 0 else L16, ("s43", "s61", "s100", "s101")[j]))
            def acc(E, B, j):
                if not RS: return mf32(E, D, SEL, B[j], "0" if j == 0 else D)
                mf32(E, D, SEL if j else SELQ, B[j], D if j else "0")
                if j == 0:
                    for sh in (4, 2):
                        for q in range(4): E("v_add_f32_dpp v%d, v%d, v%d row_ror:%d row_mask:0xc bank_mask:0xf" % (D + q, D + q, D + q, sh))
            gap(FLn + (P.get("F1", 4) if w else 0) - (S.pos - p0))
            for k_, B in enumerate(SETS):
                if k_: gap(RG + (P.get("R1", 14) if w else 0))
                issue(S, B)
            gap(max(U1, len(su)))
            def hint(E, B):
                if RS: E("v_max3_u32 v%d, v%d, v%d, v%d" % (X, B[0], B[1], B[2])); E("v_max3_u32 v%d, v%d, v%d, v%d" % (X, X, B[3], B[4])); E("v_cmp_eq_u32 vcc, -1, v%d" % X)
                elif w == 0: E("v_max3_u32 v%d, v%d, v%d, v%d" % (X, B[0], B[1], B[2])); E("v_max_u32 v%d, v%d, v%d" % (X, X, B[3])); E("v_cmp_eq_u32 vcc, -1, v%d" % X)
                else: E("v_cmp_eq_u32 vcc, -1, v%d" % B[0])
            def fold(E):
                if w == 0:
                    for q in range(4): E("v_add_f32_dpp v%d, v%d, v%d row_ror:8 row_mask:0xf bank_mask:0xf" % (D + q, D + q, D + q))
                    E("v_cmp_u_f32 vcc, v%d, v%d" % (D, D))
                    E(cvt(D, D, D + 1)); E(cvt(D + 1, D + 2, D + 3))
                else:
                    for sh in (8, 4, 2):
                        for q in range(2): E("v_add_f32_dpp v%d, v%d, v%d row_ror:%d row_mask:0xf bank_mask:0xf" % (D + q, D + q, D + q, sh))
                    E("v_cmp_u_f32 vcc, v%d, v%d" % (D, D))
                    E(cvt(D, D, D + 1))
            op = "buffer_store_dwordx2 %s" % r2(D) if w == 0 else "buffer_store_dword v%d" % D
            SI = P.get("SI", 1 if RS else 0)
            def publish(E):
                E("s_mov_b64 exec, %s" % ("s[38:39]" if (w == 0 and not RS) else "s[62:63]"))
                if SI == 2: E("%s, v%d, s[8:11], s56 offen sc1" % (op, T1))
                E("%s, v%d, s[8:11], s58 offen%s" % (op, T1, sc))
                if SI == 1: E("%s, v%d, s[8:11], s56 offen sc1" % (op, T1))
            if not P.get("WP", 1): S.warm = None
            for j in range(NL): acc(S, SETS[0], j)
            if P.get("HN", 1):
                hint(S, SETS[0]); S(br("s_cbranch_vccnz %s" % L(tag + ("q1" if NS > 1 else "rb_i0"))))
                fold(S); S(br("s_cbranch_vccnz %s" % L(tag + "rb_e0")))
            else:
                fold(S); S(br("s_cbranch_vccnz %s" % L(tag + "q1")))
            publish(S)
            def quick():
                for k_ in range(1, NS):
                    A.label(L(tag + "q%d" % k_))
                    E = newseq()
                    if ST: E("s_add_u32 s99, s99, 1")
                    if k_ == NS - 1: issue(E, SETS[0])
                    for j in range(NL):
                        E("s_waitcnt vmcnt(%d)" % (NL * (NS - k_) - 1 - j + (NL if k_ == NS - 1 else 0))); acc(E, SETS[k_], j)
                    hint(E, SETS[k_]); E("s_cbranch_vccnz %s" % L(tag + ("q%d" % (k_ + 1) if k_ < NS - 1 else "qx")))
                    fold(E); E("s_cbranch_vccnz %s" % L(tag + "qe%d" % k_))
                    publish(E); stamp(E, 7); E("s_barrier"); E("s_nop 0" if (SI or P.get("SCD")) else "%s, v%d, s[8:11], s56 offen sc1" % (op, T1)); E("s_branch %s" % L(tag + "rb_g"))
                A.label(L(tag + "qx"))
                for k_ in range(1, NS - 1): issue(A, SETS[k_])
                A("s_branch %s" % L(tag + "rb_i%d" % (NS - 1)))
                for k_ in range(1, NS):
                    A.label(L(tag + "qe%d" % k_))
                    A("s_waitcnt vmcnt(0)")
                    for k2 in range(k_ + 1, k_ + NS): issue(A, SETS[k2 % NS])
                    A("s_branch %s" % L(tag + "rb_e%d" % k_))
            if NS > 1: ool.append(quick)
            def blk():
                A.label(L(tag + "rb_l"))
                for k_, B in enumerate(SETS):
                    E = Seq(A)
                    E("s_waitcnt vmcnt(%d)" % (NL * NS - NL))
                    for j in range(NL): acc(E, B, j)
                    hint(E, B); E("s_cbranch_vccz %s" % L(tag + "rb_x%d" % k_))
                    A.label(L(tag + "rb_i%d" % k_))
                    issue(A, B)
                    if ST: A("s_add_u32 s99, s99, 1")
                A("s_add_u32 s71, s71, 1"); A("s_cmp_lt_u32 s71, %d" % (4 * SPIN_MAX)); A("s_cbranch_scc1 %s" % L(tag + "rb_l")); A("s_branch %s" % L0("fail"))
                for k_, B in enumerate(SETS):
                    A.label(L(tag + "rb_x%d" % k_))
                    E = Seq(A); E("s_nop %d" % (3 if w == 0 else 5)); fold(E); A("s_cbranch_vccz %s" % L(tag + "rb_n"))
                    A.label(L(tag + "rb_e%d" % k_))
                    allr = [b + i for b in B for i in range(4)]
                    A("v_max3_u32 v%d, v%d, v%d, v%d" % (X, allr[0], allr[1], allr[2]))
                    for i in range(3, len(allr) - 1, 2): A("v_max3_u32 v%d, v%d, v%d, v%d" % (X, X, allr[i], allr[i + 1]))
                    A("v_max_u32 v%d, v%d, v%d" % (X, X, allr[-1])); A("v_cmp_eq_u32 vcc, -1, v%d" % X)
                    A("s_cbranch_vccnz %s" % L(tag + "rb_i%d" % k_))
                    A("v_min_u32 v%d, -2, v%d" % (D, D)); A("v_min_u32 v%d, -2, v%d" % (D + 1, D + 1))
                    if k_ < NS - 1: A("s_branch %s" % L(tag + "rb_n"))
                A.label(L(tag + "rb_n"))
                publish(A)
                A("s_branch %s" % L(tag + "rb_d"))
            ool.append(blk)
            S.label(L(tag + "rb_d"))
        else:
            ready(S)
            if CLP and w >= 2: clear_prep(S)
            if w == 1: S.wait_vm_all()
            if w == 3:
                S("ds_read_b64 %s, v%d offset:%d" % (r2(T0), L16, L_FL))
                S("v_min_u32 v%d, v%d, v%d" % (T0, T0, T1)); S("v_readfirstlane_b32 s28, v%d" % T0); S("s_nop 0"); S("s_max_u32 s54, s54, s28")
        stamp(S, 7)
        S("s_barrier")
        p0 = S.pos
        if CLP == 1 and w >= 2: clears(S)
        if red:
            SCD = P.get("SCD", 0)
            if not SCD and not SI and not (P.get("NOS1") == w + 1): S("%s, v%d, s[8:11], s56 offen sc1" % (op, T1))
            S.label(L(tag + "rb_g"))
            if SCD: S("v_mov_b64 %s, %s" % (r2(M[0] + 2), r2(D)))
            S("s_mov_b64 exec, -1")
            if P.get("ACK") and ST:
                S("s_memtime s[28:29]"); S("s_waitcnt vmcnt(0)"); S("s_memtime s[30:31]"); S("s_waitcnt lgkmcnt(0)"); S("s_sub_u32 s28, s30, s28"); S("s_add_u32 s99, s99, s28")
            S("s_waitcnt vmcnt(%d)" % (1 if SCD else 2))
        stamp_acc(S)
        if red: ready(S)
        kv_prep(S, 2); pub_addr(S)
        if w == 0 or (w == 1 and not CLP): clear_prep(S)
        S("s_add_u32 s44, s44, 1"); step_addr(S)
        fr = FL_[w]
        f1 = None
        if fr:
            S.nop(LD - (S.pos - p0))
            f1 = dma(S, fr, "s48", L_ML)
            for _ in range(NA - 1):
                S.nop(PG); dma(S, fr, "s48", L_ML)
        if w == 3: kv_wait(S, tag + "kw", 2)
        if red and SCD:
            S.nop(SCD - 12 - (S.pos - p0))
            S("s_mov_b64 exec, %s" % ("s[38:39]" if w == 0 else "s[62:63]"))
            S("%s, v%d, s[8:11], s56 offen sc1" % ("buffer_store_dwordx2 %s" % r2(M[0] + 2) if w == 0 else "buffer_store_dword v%d" % (M[0] + 2), T1)); S("s_mov_b64 exec, -1")
        if CLP == 2 and w >= 2: clears(S)
        if CL3 and w < 2:
            S.nop(P.get("CD", 96) - (S.pos - p0)); clears(S)
            if w == 0 and MCW: m_clear(S)
        S("s_mov_b32 s70, 0")
        S.wait(lds=S.nl)
        if f1: A.lines[topw] = "    s_waitcnt vmcnt(%d)" % (S.nv - f1)
        S("s_branch %s" % L("top"))

    def stamp_acc(S):
        if not ST: return
        S("s_waitcnt lgkmcnt(0)")
        if P.get("RAW") and w == P["RAW"] - 1:
            for i in range(9): S("v_writelane_b32 v%d, s%d, %d" % (T0, 72 + 2 * i, i))
            S("v_writelane_b32 v%d, s98, 9" % T0); S("v_writelane_b32 v%d, s99, 10" % T0)
            S("s_lshl_b32 s27, s20, 5"); S("s_add_u32 s27, s27, s22"); S("s_lshl_b32 s27, s27, 7"); S("s_add_u32 s27, s27, s44"); S("s_lshl_b32 s27, s27, 8"); S("s_add_u32 s27, s27, %d" % (WS_DBG + (5 << 20)))
            S("s_mov_b64 exec, 0x7ff"); S("buffer_store_dword v%d, v%d, s[8:11], s27 offen" % (T0, L16)); S("s_mov_b64 exec, -1")
        if TR:
            for i in range(8): S("s_sub_u32 s27, s%d, s%d" % (74 + 2 * i, 72 + 2 * i)); S("s_add_u32 s%d, s%d, s27" % (90 + i, 90 + i))
        else:
            for i in range(7): S("s_sub_u32 s27, s%d, s%d" % (74 + 2 * i, 72 + 2 * i)); S("s_add_u32 s%d, s%d, s27" % (90 + i, 90 + i))
            S("s_sub_u32 s27, s72, s88"); S("s_add_u32 s97, s97, s27"); S("s_mov_b32 s88, s86")

    A.label(L("layer"))
    S = Seq(A)
    S("s_lshr_b32 s27, s44, 6"); S("s_mul_i32 s50, s27, %d" % KV_LAYER); S("s_lshl_b32 s27, s22, 13"); S("s_add_u32 s50, s50, s27"); S("s_add_u32 s50, s50, %d" % WS_KXF)
    S("s_barrier")
    S("s_mov_b32 s26, 0x%x" % (OOB + 65536)); S("s_mov_b32 s3, s26")
    S("s_mul_i32 s27, s20, 5120"); S("s_add_u32 s48, s27, %d" % WS_M0); S("s_sub_u32 s49, %d, s27" % (WS_M0 + 5120))
    dma(S, FL_[w], "s48", L_ML)
    pass
    step_addr(S); ready(S); S("s_mov_b32 s70, 0"); S.wait(lds=S.nl, vm=S.nv)
    if ST:
        for i in range(10): S("s_mov_b32 s%d, 0" % (90 + i))
        S("%s s[72:73]" % ("s_memrealtime" if P.get("RAW") else "s_memtime")); S("s_waitcnt lgkmcnt(0)")
        for i in range(1, 9): S("s_mov_b32 s%d, s72" % (72 + 2 * i))

    A.label(L("top"))
    S = newseq(); top0 = len(A.lines)
    if TR: S.hook = hook
    topw = len(A.lines); A("s_nop 0")
    stamp(S, 0)
    S("s_barrier")
    stamp(S, 1)
    ME = P.get("ME", 2)
    for t in range(ME): rd(S, M[t], MRA, L_ML + 1024 * t)
    R0 = P.get("R0", 0)
    if not R0: rtok = dma(S, FR_[w], "s49", L_MR)
    S.label(L("lr_r"))
    DEF = [t for t in range(5) if t not in VT_]
    LOC = dict(zip(DEF, [M[0], M[1], M[3]])) if NV >= 2 else {t: M[t] for t in range(5)}
    lwset = []
    fl = []
    fv = []

    def step(i):
        m, tl, rem, t = SEQ[i]
        mq = LOC[t] if i >= NLOC + 30 else M[t]
        assert holds.get(mq) == (MRA, (L_MR if rem else L_ML) + 1024 * t), (i, holds.get(mq))
        if i in LDSI:
            n = LDSI.index(i); smf(S, ACC[m] + 4 * tl, mq, LB[n % 2])
            assert n < 2 or (holds[LB[n % 2]] == (VW, n * 2048) and holds[LB[n % 2] + 4] == (VW, n * 2048 + 1024)), i
            if n + 2 < NLW:
                k_ = 0
                while k_ < len(fl) and fl[k_] in lwset: k_ += 1
                it_ = lw_read(S, n + 2); lwset.extend(it_)
                fl[k_:k_] = it_
        else: smf(S, ACC[m] + 4 * tl, mq, WREG[i])

    def fill(nl, nv):
        for _ in range(nl):
            if fl: fl.pop(0)()
        for _ in range(nv):
            if fv: fv.pop(0)()

    def steps(lo, hi, nl=1, nv=1):
        for i in range(lo, hi):
            step(i); fill(2 if (SC2 and P.get("L2", 0) and not fv and len(fl) >= 2 and fl[1] in lwset) else nl, nv)

    def I(t): return lambda: S(t)
    def R(dst, areg, off): return lambda: rd(S, dst, areg, off)
    def reread(lab, fr, sa, lds, quads, peek, cnt, redo):
        def blk():
            A.label(L(lab))
            A("s_mov_b32 s30, 0")
            A.label(L(lab + "_l"))
            E = Seq(A); E("s_waitcnt lgkmcnt(0)")
            if ST: E("s_add_u32 s98, s98, %d" % cnt)
            if fr:
                E("s_and_b32 s27, s30, 1"); E("s_cbranch_scc%d %s" % (0 if redo else 1, L(lab + "_n"))); E("s_waitcnt vmcnt(%d)" % len(fr)); dma(E, fr, sa, lds)
                A.label(L(lab + "_n"))
            for t in quads: rd(E, M[t], MRA, lds + 1024 * t)
            if peek: E("ds_read_b32 v%d, v%d offset:%d" % (T1, MRA, lds + 4096))
            E("v_max3_u32 v%d, v%d, v%d, v%d" % (T0, M[0], M[1], M[2])); E("v_max3_u32 v%d, v%d, v%d, v%d" % (T0, T0, M[3], T1 if peek else M[4]))
            E("v_cmp_eq_u32 vcc, -1, v%d" % T0); E("s_cbranch_vccz %s" % L(lab + "_d"))
            spin_count(E, 8 * SPIN_MAX); E("s_branch %s" % L(lab + "_l"))
            A.label(L(lab + "_d"))
            if redo:
                ready(E); E("s_waitcnt lgkmcnt(0)")
                if fr: E("s_waitcnt vmcnt(0)") if False else None
            E("s_branch %s" % L(lab + "_r"))
        ool.append(blk)
    HP = P.get("HP", 16 if SC2 else 11)
    fl += [R(M[t], MRA, L_ML + 1024 * t) for t in range(ME, 5)]
    if 0 < R0 < HP:
        steps(0, R0); rtok = dma(S, FR_[w], "s49", L_MR); steps(R0, HP); R0 = 0
    else: steps(0, HP)
    drain(fv)
    assert all(holds[M[t]] == (MRA, L_ML + 1024 * t) for t in range(5))
    late = [I("s_mov_b32 m0, %d" % (L_JUNK if w >= 2 else L_FL))] if (w >= 1 or MCW) else []
    fv += [I("v_max3_u32 v%d, v%d, v%d, v%d" % (T0, M[0], M[1], M[2])), I("v_max3_u32 v%d, v%d, v%d, v%d" % (T0, T0, M[3], M[4])), I("v_cmp_eq_u32 vcc, -1, v%d" % T0), I(br("s_cbranch_vccnz %s" % L("lr")))]
    reread("lr", FL_[w], "s48", L_ML, range(5), False, 0x10000, True)
    NLA = NLOC - P.get("RA", 6 if 4 in VT_ else 4)
    assert NLOC - NLA in (4, 6, 8)
    if R0:
        steps(HP, R0); rtok = dma(S, FR_[w], "s49", L_MR); steps(R0, NLA)
    else: steps(HP, NLA)
    drain(fl); drain(fv)
    def slow_ops():
        if not P.get("NOPUB"): pub_st(S)
        if w < 2 and not CLP and not CL3: clears(S)
        if w == 0 and not MCW: m_clear(S)
        if w == 0 and MCW:
            S("s_mov_b64 exec, 3"); S("buffer_load_dword v%d, s[8:11], s51 offen sc1 lds" % PA8); S("s_mov_b64 exec, -1")
        if w >= 2:
            if P.get("TH", 0) != 2: S("buffer_load_dword v%d, s[8:11], s61 offen sc1 lds" % PA8)
            if P.get("TH", 0) == 1: S("s_mov_b32 m0, %d" % (L_JUNK - 64)); S("buffer_load_dword v%d, s[8:11], s61 offen offset:64 sc1 lds" % PA8)
        if w == 1:
            if not MCW: S("s_mov_b64 exec, 3"); S("buffer_load_dword v%d, s[8:11], s51 offen sc1 lds" % PA8)
            S("s_mov_b64 exec, s[100:101]"); S("buffer_store_dword v%d, v%d, s[8:11], s61 offen sc1" % (PA8, PA8)); S("s_mov_b64 exec, -1")
    stamp(S, 2)
    S.wait(vm=rtok); S("s_barrier")
    stamp(S, 3)
    if NLOC - NLA == 6:
        for t in range(2): rd(S, M[t], MRA, L_MR + 1024 * t)
        step(NLA); rd(S, M[2], MRA, L_MR + 2048); rd(S, M[3], MRA, L_MR + 3072)
        step(NLA + 1); S("ds_read_b32 v%d, v%d offset:%d" % (T1, MRA, L_MR + 4096)); fill(1, 0)
        steps(NLA + 2, NLA + 3)
        fv += [I("v_max3_u32 v%d, v%d, v%d, v%d" % (T0, M[0], M[1], M[2])), I("v_max3_u32 v%d, v%d, v%d, v%d" % (T0, T0, M[3], T1)), I("v_cmp_eq_u32 vcc, -1, v%d" % T0)]
        steps(NLA + 3, NLOC)
    elif NLOC - NLA == 4:
        if P.get("SE"):
            for t in range(4): rd(S, M[t], MRA, L_MR + 1024 * t)
            S("ds_read_b32 v%d, v%d offset:%d" % (T1, MRA, L_MR + 4096))
            drain(late); slow_ops()
            fv += [lambda: None, I("v_max3_u32 v%d, v%d, v%d, v%d" % (T0, M[0], M[1], M[2])), I("v_max3_u32 v%d, v%d, v%d, v%d" % (T0, T0, M[3], T1)), I("v_cmp_eq_u32 vcc, -1, v%d" % T0)]
            steps(NLA, NLOC)
        elif P.get("RI", 1):
            for t in range(2): rd(S, M[t], MRA, L_MR + 1024 * t)
            step(NLA); rd(S, M[2], MRA, L_MR + 2048); rd(S, M[3], MRA, L_MR + 3072)
            step(NLA + 1); S("ds_read_b32 v%d, v%d offset:%d" % (T1, MRA, L_MR + 4096)); fill(1, 0)
            steps(NLA + 2, NLOC - 1)
        else:
            for t in range(4): rd(S, M[t], MRA, L_MR + 1024 * t)
            S("ds_read_b32 v%d, v%d offset:%d" % (T1, MRA, L_MR + 4096))
            steps(NLA, NLOC - 1)
        if not P.get("SE"):
            S("v_max3_u32 v%d, v%d, v%d, v%d" % (T0, M[0], M[1], M[2]))
            step(NLOC - 1)
            S("v_max3_u32 v%d, v%d, v%d, v%d" % (T0, T0, M[3], T1)); S("v_cmp_eq_u32 vcc, -1, v%d" % T0)
    else:
        S("ds_read2st64_b32 %s, v%d offset0:%d offset1:%d" % (r2(T0), MRA, (L_MR + 3072) // 256, (L_MR + 4096) // 256))
        for t in range(2): rd(S, M[t], MRA, L_MR + 1024 * t)
        fl += [R(M[2], MRA, L_MR + 2048)]
        fl.insert(0, fl.pop())
        step(NLA); rd(S, M[2], MRA, L_MR + 2048); fl.remove(fl[-1])
        steps(NLA + 1, NLA + 4)
        fl.insert(0, R(M[3], MRA, L_MR + 3072)); drain(fv)
        step(NLA + 4); fill(1, 0)
        fv += [I("v_max3_u32 v%d, v%d, v%d, v%d" % (T0, T0, T1, M[0])), I("v_max3_u32 v%d, v%d, v%d, v%d" % (T0, T0, M[1], M[2])), I("v_cmp_eq_u32 vcc, -1, v%d" % T0)]
        steps(NLA + 5, NLOC)
    drain(fv)
    S("s_nop 0" if P.get("NOS1") else br("s_cbranch_vccnz %s" % L("rr")))
    S.label(L("rr_r"))
    reread("rr", FR_[w], "s49", L_MR, range(4), True, 1, False)
    drain(late); drain(fl)
    rd(S, M[4], MRA, L_MR + 4096)
    ftok = S.nv
    SP = P.get("SP", 0)
    steps(NLOC, NLOC + SP)
    if not P.get("SE"): slow_ops()
    steps(NLOC + SP, NLOC + 11)
    B0 = NLOC - 20
    pv, pw = post(S, AQ, L_EQ, True); fv += pv
    def first_hook(): S("s_cmp_eq_u32 s57, 0"); S("s_cbranch_scc1 %s" % L("first")); S.label(L("first_r"))
    if SC2:
        first_hook()
        for i in range(35, 44):
            step(i)
            if i == 37: fl.extend([R(LB[1] + 4 * u, KRA, L_K + 2048 + 1024 * u) for u in range(2)])
            if i == 40: fl.extend([R(LB[0] + 4 * u, KRA, L_K + 1024 * u) for u in range(2)])
            fill(1, 1 if i < 39 else 2)
        drain(fv); assert not fl
        fl += pw
        step(44); fill(1, 0)
    else:
        steps(B0 + 31, B0 + 35); steps(B0 + 35, B0 + 40, 1, 2); drain(fv)
        fl += pw
        step(B0 + 40); first_hook(); fill(1, 0)
    def blk():
        A.label(L("first"))
        if P.get("PT", 1):
            A("s_mul_i32 s27, s21, %d" % PART_SLOT); A("s_add_u32 s27, s27, s34"); A("s_mul_i32 s28, s22, %d" % PART_H); A("s_add_u32 s28, s28, s27")
            A("s_mov_b32 exec_hi, 0"); A("buffer_load_dword v%d, v%d, s[8:11], s28 offen sc1" % (T0, PA8))
            A("s_lshl_b32 s28, s22, 10"); A("s_add_u32 s28, s28, s27"); A("s_add_u32 s28, s28, %d" % PART_T4); A("s_mov_b64 exec, 0xff"); A("buffer_load_dword v%d, v%d, s[8:11], s28 offen sc1" % (T0, PA8))
            A("s_mul_i32 s27, s21, %d" % ML_S); A("s_add_u32 s27, s27, s41"); A("s_mul_i32 s28, s22, 160"); A("s_add_u32 s28, s28, s27"); A("s_mov_b64 exec, 3"); A("buffer_load_dword v%d, v%d, s[8:11], s28 offen sc1" % (T0, PA8))
            A("s_mov_b64 exec, -1")
        E = Seq(A)
        if w == 3: kv_wait(E, "p1", 1)
        E("s_barrier"); kv_prep(E, 0); k_fetch(E); vt_fetch(E); kv_prep(E, 1); E("s_waitcnt vmcnt(0) lgkmcnt(0)"); ht(2); E("s_barrier")
        E("s_branch %s" % L("first_r"))
        A.label(L("first2"))
        E = Seq(A)
        if w == 3: kv_wait(E, "p2", 2)
        E("s_barrier"); E("s_branch %s" % L("first2_r"))
    ool.append(blk)
    pv, pw = post(S, AK, L_EK); fv += pv
    def ex(r): return I("v_exp_f32 v%d, v%d" % (r, r))
    if SC2:
        QO = [AQ, AQ + 4, X0, M[2]]; KA = [LB[0], LB[0] + 4, LB[1], LB[1] + 4]; SXa, SXb = AK, AK + 4; ONE = KA[2]; HALF = T0; PX = SXa
        ZQ, O4Q = X0, M[2]
        loc = lambda k_: rd(S, LOC[DEF[k_]], MRA, L_ML + 1024 * DEF[k_])
        qr = lambda u: rd(S, QO[u], ER, L_EQ + 64 * u)
        step(45); fill(1, 1); qwt = S.nl
        step(46); loc(0); fill(0, 1)
        step(47); loc(1); fill(0, 1)
        step(48); S.wait(lds=qwt); S("s_barrier"); fill(0, 1)
        step(49); qr(0); fill(0, 2)
        step(50); qr(1); fill(0, 2)
        step(51); qr(2); fill(0, 2)
        step(52); pw.pop(0)(); qr(3)
        step(53); pw.pop(0)(); kwt = S.nl
        assert not fv
        stamp(S, 4)
        step(54); loc(2); S("v_mov_b64 %s, s[16:17]" % r2(HALF))
        step(55)
        KM = [M[0], M[4], KA[0], KA[1]]; SM = M[1]
        for u in range(4):
            mf32(S, SXa, KA[u], QO[u], "0" if u == 0 else SXa); kbt = rd(S, KA[u], KRA, L_K + 4096 + 1024 * u)
            if u == 1: S.wait(lds=kwt); S("s_barrier")
        step(56); rd(S, KM[0], ER, L_EK); step(57); rd(S, KM[1], ER, L_EK + 64); S.wait(lds=kbt - 2)
        mf32(S, SXb, KA[0], QO[0], "0"); ex(SXa)(); rd(S, KM[2], ER, L_EK + 128)
        mf32(S, SXb, KA[1], QO[1], SXb); S.wait(lds=kbt); ex(SXa + 1)(); rd(S, KM[3], ER, L_EK + 192)
        mf32(S, SXb, KA[2], QO[2], SXb); ex(SXa + 2)()
        mf32(S, SXb, KA[3], QO[3], SXb); ex(SXa + 3)()
        stamp(S, 5)
        mf32(S, SM, KM[0], QO[0], "0"); S(cvt(PX, SXa, SXa + 1)); S(cvt(PX + 1, SXa + 2, SXa + 3))
        mf32(S, SM, KM[1], QO[1], SM); S("v_mov_b64 %s, s[24:25]" % r2(ONE)); S("v_mov_b64 %s, s[24:25]" % r2(ONE + 2))
        mf32(S, SM, KM[2], QO[2], SM); ex(SXb)()
        mf32(S, SM, KM[3], QO[3], SM); ex(SXb + 1)()
        step(58); ex(SXb + 2)()
        step(59); ex(SXb + 3)(); S(cvt(PX + 2, SXb, SXb + 1)); S(cvt(PX + 3, SXb + 2, SXb + 3)); ex(SM)()
        OA = [AQ, AQ + 4]; Z = ZQ; PM = SM
        mf32(S, Z, ONE, PX, "0"); ex(SM + 1)()
        mf32(S, OA[0], VT[0], PX, "0"); ex(SM + 2)()
        mf32(S, OA[1], VT[1], PX, "0"); ex(SM + 3)()
        S(cvt(PM, SM, SM + 1)); S(cvt(PM + 1, SM + 2, SM + 3)); S(cvt(AV, AV, AV + 1)); S(cvt(AV + 1, AV + 2, AV + 3))
    elif NV >= 2:
        QO = [AQ, AQ + 4, X0, M[2]]; KA = [LB[0], LB[0] + 4, LB[1], LB[1] + 4]; SXa, SXb = AK, AK + 4; ONE = M[4] if NV == 2 else M[3]; HALF = T0; PX = SXa
        ZQ, O4Q = X0, M[2]
        for i in range(41, 50):
            step(B0 + i)
            if i == 41: fl[0:0] = [fl.pop()]
            if i == 42: qwt = S.nl
            for t_, q_ in LOC.items():
                if i % 2 == 1 and q_ == M[(i - 41) // 2]: fl.append(R(q_, MRA, L_ML + 1024 * t_))
            if B0 + i == max(45, B0 + 41): fl.extend([R(KA[u], KRA, L_K + 1024 * u) for u in (2, 3)])
            if B0 + i == 47: fl.extend([R(KA[u], KRA, L_K + 1024 * u) for u in (0, 1)])
            if i == 45:
                S.wait(lds=qwt); S("s_barrier"); fl.extend([R(QO[u], ER, L_EQ + 64 * u) for u in range(4)]); fill(1, 2)
            elif i in (48, 49): pw.pop(0)(); kwt = S.nl; fill(1, 0)
            else: fill(1, 1 if i < 45 else 2)
        assert not fv and not pw
        stamp(S, 4)
        fv += [I("v_mov_b64 %s, s[24:25]" % r2(ONE)), I("v_mov_b64 %s, s[24:25]" % r2(ONE + 2)), I("v_mov_b64 %s, s[16:17]" % r2(HALF))]
        steps(B0 + 50, 58, 2, 0); drain(fl)
        KM = [M[0], M[1], KA[0], KA[1]] if NV == 2 else [M[4], M[0], KA[0], KA[1]]; SM = LOC[DEF[-1]]
        for u in range(4):
            mf32(S, SXa, KA[u], QO[u], "0" if u == 0 else SXa); kbt = rd(S, KA[u], KRA, L_K + 4096 + 1024 * u)
            if u == 1: S.wait(lds=kwt); S("s_barrier")
            else: fill(0, 1)
    else:
        QO = [AQ, AQ + 4, AK, AK + 4]; KA = [LB[0], LB[0] + 4, LB[1], LB[1] + 4]; SXa, SXb, SM = M[0], M[1], M[3]; ONE = X0; HALF = T0
        for i in range(41, 52):
            step(B0 + i)
            if i % 2 == 1 and NV <= (i - 41) // 2 < 5: fl.append(R(M[(i - 41) // 2], MRA, L_ML + 1024 * ((i - 41) // 2)))
            if B0 + i == 45: fl.extend([R(KA[u], KRA, L_K + 1024 * u) for u in (2, 3)])
            if B0 + i == 47: fl.extend([R(KA[u], KRA, L_K + 1024 * u) for u in (0, 1)])
            if i in (48, 49): pw.pop(0)(); kwt = S.nl; fill(1, 0)
            elif i >= 50: fill(2 if i == 50 else 1, 0)
            else: fill(1, 1 if i < 45 else 2)
        assert not fv and not pw
        step(B0 + 52); S.wait(lds=kwt); S("s_barrier")
        stamp(S, 4)
        fl[0:0] = [R(QO[u], ER, L_EQ + 64 * u) for u in range(4)]
        fill(1, 0)
        fv += [I("v_mov_b64 %s, s[24:25]" % r2(ONE)), I("v_mov_b64 %s, s[24:25]" % r2(ONE + 2)), I("v_mov_b64 %s, s[16:17]" % r2(HALF))]
        E1 = P.get("E1", 58)
        steps(B0 + 53, B0 + 55, 2, 0); steps(B0 + 55, E1, 1, 1)
        drain(fl); drain(fv)
        S.wait(lds=S.nl)
        KM = [M[2], KA[0], KA[1], KA[2]] if E1 < 58 else [M[2], M[3], KA[0], KA[1]]
        SM = M[4] if E1 >= 58 else M[3]
        for u in range(4): mf32(S, SXa, KA[u], QO[u], "0" if u == 0 else SXa); kbt = rd(S, KA[u], KRA, L_K + 4096 + 1024 * u)
        PX = SXa
        ZQ, O4Q = AK, AK + 4
    if not SC2:
        step(58); rd(S, KM[0], ER, L_EK); step(59); rd(S, KM[1], ER, L_EK + 64); S.wait(lds=kbt - 2)
        mf32(S, SXb, KA[0], QO[0], "0"); ex(SXa)()
        mf32(S, SXb, KA[1], QO[1], SXb); S.wait(lds=kbt); ex(SXa + 1)(); rd(S, KM[2], ER, L_EK + 128)
        mf32(S, SXb, KA[2], QO[2], SXb); ex(SXa + 2)(); rd(S, KM[3], ER, L_EK + 192)
        mf32(S, SXb, KA[3], QO[3], SXb); ex(SXa + 3)()
        stamp(S, 5)
        mf32(S, SM, KM[0], QO[0], "0"); S(cvt(PX, SXa, SXa + 1)); S(cvt(PX + 1, SXa + 2, SXa + 3))
        mf32(S, SM, KM[1], QO[1], SM); S(cvt(AV, AV, AV + 1)); S(cvt(AV + 1, AV + 2, AV + 3))
        mf32(S, SM, KM[2], QO[2], SM); ex(SXb)()
        mf32(S, SM, KM[3], QO[3], SM); ex(SXb + 1)(); ex(SXb + 2)(); ex(SXb + 3)()
        S(cvt(PX + 2, SXb, SXb + 1)); S(cvt(PX + 3, SXb + 2, SXb + 3)); S(cvt(AV + 2, AV + 4, AV + 5)); S(cvt(AV + 3, AV + 6, AV + 7))
    if not SC2:
        OA = [AQ, AQ + 4]; Z = ZQ; PM = SM
        mf32(S, Z, ONE, PX, "0"); ex(SM)()
        mf32(S, OA[0], VT[0], PX, "0"); ex(SM + 1)()
        mf32(S, OA[1], VT[1], PX, "0"); ex(SM + 2)(); ex(SM + 3)()
        S(cvt(PM, SM, SM + 1)); S(cvt(PM + 1, SM + 2, SM + 3))
    OUT = [KA[0], KA[1], KA[2], KA[3], O4Q]
    def pubsel(): return [I("v_cndmask_b32_e64 v%d, v%d, v%d, s[66:67]" % (X1 + i, AV + i, KM[w] + i)) for i in range(4)]
    fv += pubsel()
    if SC2:
        mf16(S, Z, HALF, PM, Z); S(cvt(AV + 2, AV + 4, AV + 5)); S(cvt(AV + 3, AV + 6, AV + 7))
        S.label(L("fin"))
        mf16(S, OA[0], AV, PM, OA[0]); S("s_cmp_eq_u32 s57, 63"); fill(0, 2)
        mf16(S, OA[1], AV + 2, PM, OA[1]); fill(0, 2); S("s_cbranch_scc1 %s" % L("last"))
        for q in OUT[::-1]: fv += zitems(S, q)
    else:
        fill(0, 2)
        S.label(L("fin"))
        mf16(S, Z, HALF, PM, Z); fill(0, 2)
        for q in OUT[::-1]: fv += zitems(S, q)
        mf16(S, OA[0], AV, PM, OA[0]); S("s_cmp_eq_u32 s57, 63"); fill(0, 2)
        mf16(S, OA[1], AV + 2, PM, OA[1]); S("s_cbranch_scc1 %s" % L("last")); fill(0, 1)
    RZ = Z + 2
    S("v_rcp_f32 v%d, v%d" % (RZ, Z)); S("v_subrev_u32 v%d, s68, v%d" % (Z + 1, Z)); S("v_cmp_lt_u32 vcc, s69, v%d" % (Z + 1)); fill(0, 2 if SC2 else 1)
    for i in range(4): S("v_cndmask_b32_e64 v%d, v%d, v%d, s[18:19]" % (AQ + i, AQ + i, AQ + 4 + i))
    for q in (0, 2): S("v_pk_mul_f32 %s, %s, %s op_sel_hi:[1,0]" % (r2(AQ + q), r2(AQ + q), r2(RZ)))
    S(cvt(AQ, AQ, AQ + 1)); S(cvt(AQ + 1, AQ + 2, AQ + 3))
    S("ds_write_b64 v%d, %s offset:%d" % (L16, r2(AQ), L_EO + 1024 * (w >> 1) + 8 * (w & 1)))
    S("s_nop 0" if P.get("NOS1") else br("s_cbranch_vccnz %s" % L("zbad")))
    S.label(L("zok"))
    ctok = S.nv - (2 if w == 1 else 0)
    S("s_cmp_eq_u32 s57, 0"); S("s_cbranch_scc1 %s" % L("first2")); S.label(L("first2_r"))
    BO = P.get("BO", 0)
    if BO == 0: vt_fetch(S)
    else: S("s_mov_b32 m0, %d" % (L_K + 2048 * w)); drain(fv)
    S.wait(lds=S.nl); S("s_barrier")
    O0, O1 = SXb, KM[1]
    rd(S, O0, L16, L_EO); rd(S, O1, L16, L_EO + 1024)
    if BO == 0: k_fetch(S)
    else:
        for j in range(2): S("buffer_load_dwordx4 v%d, s[8:11], s26 offen offset:%d sc1 lds" % (L16, 1024 * j))
        vt_fetch(S)
    drain(fv)
    def opost(T):
        b = OUT[T]
        return [I("v_permlane32_swap_b32 v%d, v%d" % (b, b + 1)), I("v_permlane32_swap_b32 v%d, v%d" % (b + 2, b + 3)),
                I("v_add_f32 v%d, v%d, v%d" % (b, b, b + 1)), I("v_add_f32 v%d, v%d, v%d" % (b + 2, b + 2, b + 3))]
    SD = KM[0]
    def wo(T, tp): smf(S, OUT[T], (O0, O1)[tp], WO[T, tp])
    S.hoist = False
    wo(0, 0); wo(1, 0); wo(0, 1); wo(1, 1); wo(2, 0); wo(3, 0)
    fv += opost(0) + opost(1) + [I(cvt(SD, OUT[0], OUT[1])), I(cvt(SD + 2, OUT[0] + 2, OUT[1] + 2))]
    fill(0, 1); wo(2, 1); fill(0, 1); wo(3, 1); fill(0, 2); wo(4, 0); fill(0, 1); wo(4, 1)
    fv += opost(2) + opost(3) + [I(cvt(SD + 1, OUT[2], OUT[3])), I(cvt(SD + 3, OUT[2] + 2, OUT[3] + 2))]
    drain(fv)
    if P.get("SO", 1): S("buffer_store_dwordx4 %s, v%d, s[8:11], s58 offen%s" % (r4(SD), L16, sc))
    drain(opost(4)); S(cvt(OUT[4], OUT[4], OUT[4] + 2))
    if not P.get("SO", 1): S("buffer_store_dwordx4 %s, v%d, s[8:11], s58 offen%s" % (r4(SD), L16, sc))
    S("buffer_store_dword v%d, v%d, s[8:11], s55 offen%s" % (OUT[4], PSB, sc))
    stamp(S, 6)
    if w == 0 and md == 0: print("chain on-path estimate %d, nops %d" % (estimate(A.lines[top0:], P.get("EST")), S.nops))
    def fork(S):
        S2 = copy.copy(S)
        for k_ in ("vw", "tw", "mw", "mc", "sd", "sw", "lp", "vp"): setattr(S2, k_, dict(getattr(S, k_)))
        return S2
    pw0 = S.pos
    window(S)

    A.label(L("restart"))
    E = Seq(A)
    E("s_waitcnt vmcnt(0) lgkmcnt(0)"); E.nop(8); E("s_barrier")
    dma(E, FL_[w], "s48", L_ML); ready(E); E("s_waitcnt vmcnt(0) lgkmcnt(0)"); E("s_branch %s" % L("top"))
    A.label(L("zbad"))
    E = Seq(A)
    E("s_cmp_eq_u32 s70, 2"); E("s_cbranch_scc1 %s" % L("zok"))
    E("v_cmp_u_f32 vcc, v%d, v%d" % (Z, Z)); E("s_cbranch_vccz %s" % L("exact"))
    E("s_cmp_eq_u32 s70, 1"); E("s_cbranch_scc1 %s" % L("exact"))
    A.label(L("vfy0"))
    E("s_mov_b32 s70, 1"); E("s_mov_b32 s30, 0"); E("s_waitcnt vmcnt(0) lgkmcnt(0)"); E.nop(8)
    A.label(L("vfy"))
    E("v_mov_b32 v%d, 0" % T0)
    for sa in ("s48", "s49"):
        E("s_add_u32 s59, %s, 4096" % sa)
        for t in range(5): E("buffer_load_dwordx4 %s, v%d, s[8:11], %s offen offset:%d sc1" % (r4(M[t]), L16, "s59" if t == 4 else sa, 1024 * (t % 4)))
        for r in range(M[0], M[0] + 20, 2): E("v_max3_u32 v%d, v%d, v%d, v%d" % (T0, T0, r, r + 1))
    E("v_cmp_eq_u32 vcc, -1, v%d" % T0); E("s_cbranch_vccz %s" % L("restart"))
    spin_count(E); E("s_branch %s" % L("vfy"))
    A.label(L("exact"))
    E = Seq(A); E.nop(8)
    E("s_mov_b32 s70, 2")
    KT = [KA[0], KA[1]]; S3 = [SXa, SXb, SM]
    E("s_waitcnt lgkmcnt(0)")
    for u in range(4): rd(E, QO[u], ER, L_EQ + 64 * u)
    n = 0
    for tl in range(3):
        for u in range(4):
            kq = KT[n % 2]; n += 1
            if tl < 2: rd(E, kq, KRA, L_K + 4096 * tl + 1024 * u)
            else: rd(E, kq, ER, L_EK + 64 * u)
            mf32(E, S3[tl], kq, QO[u], "0" if u == 0 else S3[tl])
            E.nop(4)
    S12 = [q + i for q in S3 for i in range(4)]
    MX, TM = KA[3], KA[3] + 1
    E("v_max3_f32 v%d, v%d, v%d, v%d" % (MX, S12[0], S12[1], S12[2]))
    for i in range(3, 11, 2): E("v_max3_f32 v%d, v%d, v%d, v%d" % (MX, MX, S12[i], S12[i + 1]))
    E("v_max_f32 v%d, v%d, v%d" % (MX, MX, S12[11]))
    for op in ("v_permlane16_swap_b32", "v_permlane32_swap_b32"):
        E("v_mov_b32 v%d, v%d" % (TM, MX)); E("%s v%d, v%d" % (op, MX, TM)); E("v_max_f32 v%d, v%d, v%d" % (MX, MX, TM))
    for r in S12: E("v_sub_f32 v%d, v%d, v%d" % (r, r, MX)); E("v_exp_f32 v%d, v%d" % (r, r))
    for i in range(4): E(cvt(PX + i, S12[2 * i], S12[2 * i + 1]))
    E(cvt(PM, SM, SM + 1)); E(cvt(PM + 1, SM + 2, SM + 3))
    mf32(E, OA[0], VT[0], PX, "0"); mf32(E, OA[1], VT[1], PX, "0"); mf32(E, Z, ONE, PX, "0")
    rd(E, KM[w], ER, L_EK + 64 * w); E.wait_lds_all()
    if SC2: E.nop(8); mf16(E, Z, HALF, PM, Z)
    E.nop(8); E("s_branch %s" % L("fin"))
    A.label(L("last"))
    A("s_cmp_lg_u32 s70, 0"); A("s_cbranch_scc1 %s" % L("last2"))
    A("v_cmp_u_f32 vcc, v%d, v%d" % (SXb, SXb)); A("s_nop 0" if P.get("NOS1") else br("s_cbranch_vccnz %s" % L("vfy0")))
    A.label(L("last2"))
    E = Seq(A); pub_addr(E); pub_st(E); E("s_waitcnt vmcnt(0) lgkmcnt(0)")
    A("s_barrier")
    if w == 1:
        A("v_mov_b32 v%d, 8192" % T1); A("s_mov_b64 exec, 1"); A("buffer_store_dword v%d, v%d, s[8:11], s52 offen sc1" % (T1, L16)); A("s_mov_b64 exec, -1"); A("s_add_u32 s52, s52, 4096")
    if True:
        E = Seq(A); E.nop(8); clear_prep(E)
        if cw in (0, 1): clears(E)
        if w == 0: m_clear(E)
        A("s_waitcnt vmcnt(0)")
    A("s_add_u32 s44, s44, 1")
    ht(3)
    if ST:
        A("s_lshl_b32 s27, s20, 5"); A("s_add_u32 s27, s27, s22"); A("s_lshl_b32 s27, s27, 2"); A("s_add_u32 s27, s27, s21"); A("s_lshl_b32 s27, s27, 6"); A("s_add_u32 s27, s27, %d" % WS_DBG)
        A("s_lshl_b32 s28, s44, 8"); A("s_add_u32 s27, s27, s28"); A("s_mov_b64 exec, 1")
        for i in range(10): A("v_mov_b32 v%d, s%d" % (T1, 90 + i)); A("buffer_store_dword v%d, v%d, s[8:11], s27 offen offset:%d" % (T1, L16, 4 * i)); A("s_nop 1")
        A("s_mov_b64 exec, -1")
    A("s_cmp_eq_u32 s44, 128"); A("s_cbranch_scc1 %s" % L0("end"))
    A("s_branch %s" % L("layer"))
    while ool: ool.pop(0)()
```

```python
from asmlib import *
from layout import *
from layout import _arg
from seq import *

SETS = [16, 48]
PO = [80, 84]
AD, WA, TA = 12, 13, 14
SRD = {0: 72, 1: 76, 2: 80, 'o': 84}


def perm(S, st, x, o):
    for r in range(4):
        lo = st + 4 * (2 * r) + x // 2; hi = st + 4 * (2 * r + 1) + x // 2
        S("v_perm_b32 v%d, v%d, v%d, s%d" % (o + r, hi, lo, 45 if x & 1 else 44))


NT = _arg("NT", 0)
FLG = ["", " sc1", " nt", " sc0 sc1", " sc1 nt"][_arg("WF", 0)]


def stouch(S, base, ks_s):
    S("s_lshl_b32 s27, %s, 18" % ks_s); S("s_add_u32 s27, s27, s46"); S("s_add_u32 s50, s%d, s27" % base); S("s_addc_u32 s51, s%d, 0" % (base + 1))
    for i in range(NT):
        if i and i % 14 == 0: S("s_waitcnt lgkmcnt(0)")
        S("s_load_dword s52, s[50:51], 0x%x" % ((31 - i // 2) * 8192 + (i % 2) * 128))
    S("s_waitcnt lgkmcnt(0)")


def run(S, rounds):
    S("s_mov_b32 s44, 0x05040100"); S("s_mov_b32 s45, 0x07060302")
    for r in range(min(2, len(rounds))): rounds[r]["issue"](SETS[r % 2])
    for r, R in enumerate(rounds):
        if NT and r + 2 < len(rounds) and rounds[r + 2].get("touch"): rounds[r + 2]["touch"]()
        if R.get("pre"): S.wait_lds_all(); S("s_barrier")
        if _arg("NOW", 0): S.wait(vm=S.nv - 8)
        else: R["write"](SETS[r % 2])
        if r + 2 < len(rounds): rounds[r + 2]["issue"](SETS[r % 2])
        if R.get("reads") and not _arg("NOW", 0):
            S.wait_lds_all(); S("s_barrier")
            for dst, areg, off in R["reads"]: S("ds_read_b128 %s, v%d offset:%d" % (ureg(dst, 4), areg, off))
    S.wait_lds_all()


def qkv_setup(S):
    S("v_lshrrev_b32 v%d, 8, v0" % AD); S("v_lshlrev_b32 v%d, 16, v%d" % (AD, AD)); S("v_and_b32 v%d, 0xf0, v0" % TA); S("v_add_u32 v%d, v%d, v%d" % (AD, AD, TA))
    S("s_lshl_b32 s46, s22, 8")


def qkv_issue(S, st, srd, ks_s):
    S("s_lshl_b32 s27, %s, 18" % ks_s); S("s_add_u32 s27, s27, s46")
    for j in range(8):
        if j: S("s_add_u32 s27, s27, 8192")
        S("buffer_load_dwordx4 %s, v%d, %s, s27 offen%s" % (r4(st + 4 * j), AD, srd, FLG))


def plain_rounds(S, srd, dst, bufs, RA):
    out = []
    for r in range(5):
        def issue(st, r=r):
            S("s_add_u32 s26, s21, %d" % (4 * r)); qkv_issue(S, st, srd, "s26")
        def write(st, r=r):
            S("s_lshl_b32 s27, s21, 11"); S("s_add_u32 s27, s27, %d" % bufs[r % 2]); S("v_add_u32 v%d, s27, v0" % WA)
            for x in range(8):
                perm(S, st, x, PO[x % 2]); S("ds_write_b128 v%d, %s offset:%d" % (WA, r4(PO[x % 2]), (x // 2) * 8192 + (x % 2) * 1024))
        def touch(r=r):
            S("s_add_u32 s26, s21, %d" % (4 * r)); stouch(S, int(srd[2:4]), "s26")
        out.append(dict(issue=issue, write=write, touch=touch, reads=[(dst(tl, 4 * r + tk), RA[r % 2], tk * 2048 + tl * 1024) for tk in range(4) for tl in range(2)]))
    return out


def wo_rounds(S, chain, base, reads):
    A2, B2 = 8, 9
    ST = [10, 11, 15]
    if chain:
        S("v_lshrrev_b32 v%d, 9, v0" % A2); S("v_lshlrev_b32 v%d, 4, v%d" % (A2, A2)); S("v_bfe_u32 v%d, v0, 8, 1" % TA); S("v_add_u32 v%d, v%d, v%d" % (A2, A2, TA)); S("v_mul_u32_u24 v%d, 2560, v%d" % (A2, A2))
        S("s_and_b32 s47, s21, 1"); S("s_lshl_b32 s47, s47, 6"); S("s_lshr_b32 s27, s21, 1"); S("s_lshl_b32 s27, s27, 2"); S("s_add_u32 s47, s47, s27")
        S("s_lshl_b32 s27, s22, 7"); S("s_add_u32 s47, s47, s27"); S("s_mul_i32 s47, s47, 1280"); S("s_mul_i32 s27, s20, 640"); S("s_add_u32 s47, s47, s27")
        rows = [16 * (jj >> 2) + 8 * (jj & 1) + ((jj >> 1) & 1) for jj in range(8)]
    else:
        S("v_lshrrev_b32 v%d, 8, v0" % A2); S("v_mul_u32_u24 v%d, %d, v%d" % (A2, 32 * 1280, A2))
        S("s_lshl_b32 s47, s22, 6"); S("s_add_u32 s47, s47, s21"); S("s_mul_i32 s47, s47, 2560")
        rows = [8 * (jj >> 1) + (jj & 1) for jj in range(8)]
    S("v_and_b32 v%d, 0xf0, v0" % TA); S("v_add_u32 v%d, v%d, v%d" % (A2, A2, TA))
    out = []
    n = 3 if chain else 5
    for it in range(n):
        half = chain and it == 2
        def issue(st, it=it, half=half):
            if half: S("s_mov_b32 exec_lo, 0x00ff00ff"); S("s_mov_b32 exec_hi, 0x00ff00ff")
            for jj in range(8):
                S("s_add_u32 s27, s47, %d" % (rows[jj] * 1280 + it * 256))
                S("buffer_load_dwordx4 %s, v%d, s[84:87], s27 offen%s" % (r4(st + 4 * jj), A2, FLG))
            if half: S("s_mov_b64 exec, -1")
        def write(st, it=it, half=half):
            S("v_and_b32 v%d, 0x300, v0" % WA); S("s_lshl_b32 s27, s21, 10")
            if not chain:
                S("s_add_u32 s27, s27, %d" % (base + it * 32768)); S("v_add_u32 v%d, s27, v%d" % (WA, WA))
                S("v_bfe_u32 v%d, v0, 6, 2" % TA); S("v_lshl_add_u32 v%d, v%d, 13, v%d" % (WA, TA, WA)); S("v_bfe_u32 v%d, v0, 4, 2" % TA); S("v_lshl_add_u32 v%d, v%d, 6, v%d" % (WA, TA, WA))
                off = [(x >> 2) * 4096 + (x & 3) * 16 for x in range(8)]
            elif not half:
                S("s_add_u32 s27, s27, %d" % (base + it * 40960)); S("v_add_u32 v%d, s27, v%d" % (WA, WA))
                S("v_bfe_u32 v%d, v0, 7, 1" % TA); S("v_mul_u32_u24 v%d, 20480, v%d" % (TA, TA)); S("v_add_u32 v%d, v%d, v%d" % (WA, WA, TA))
                S("v_bfe_u32 v%d, v0, 5, 2" % TA); S("v_lshl_add_u32 v%d, v%d, 6, v%d" % (WA, TA, WA)); S("v_and_b32 v%d, 16, v0" % TA); S("v_add_u32 v%d, v%d, v%d" % (WA, WA, TA))
                off = [(x >> 2) * 8192 + ((x >> 1) & 1) * 32 + (x & 1) * 4096 for x in range(8)]
            else:
                S("s_add_u32 s27, s27, %d" % (base + 16384)); S("v_add_u32 v%d, s27, v%d" % (WA, WA))
                S("v_bfe_u32 v%d, v0, 5, 2" % TA); S("v_mul_u32_u24 v%d, 20480, v%d" % (TA, TA)); S("v_add_u32 v%d, v%d, v%d" % (WA, WA, TA))
                S("v_bfe_u32 v%d, v0, 4, 1" % TA); S("v_lshl_add_u32 v%d, v%d, 6, v%d" % (WA, TA, WA))
                off = [(x >> 2) * 32 + ((x >> 1) & 1) * 128 + (x & 1) * 16 for x in range(8)]
                S("s_mov_b32 exec_lo, 0x00ff00ff"); S("s_mov_b32 exec_hi, 0x00ff00ff")
            for x in range(8):
                perm(S, st, x, PO[x % 2]); S("ds_write_b128 v%d, %s offset:%d" % (WA, r4(PO[x % 2]), off[x]))
            if half: S("s_mov_b64 exec, -1")
        out.append(dict(issue=issue, write=write, reads=reads if it == n - 1 else None))
    return out


def chain_load(A, K):
    S = Seq(A)
    qkv_setup(S)
    R0, R1, R2, RW = 4, 5, 6, 7
    B0, B1 = K.L_W + 81920, K.L_W
    S("s_lshl_b32 s27, s21, 13"); S("s_add_u32 s28, s27, %d" % B0); S("v_add_u32 v%d, s28, v0" % R0); S("s_add_u32 s28, s27, %d" % B1); S("v_add_u32 v%d, s28, v0" % R1)
    S("s_lshl_b32 s27, s21, 12"); S("v_add_u32 v%d, s27, v0" % R2)
    S("s_mul_i32 s27, s21, 20480"); S("s_add_u32 s27, s27, %d" % K.L_W); S("v_add_u32 v%d, s27, v0" % RW)
    S("s_mul_i32 s48, s20, 10"); S("s_and_b32 s27, s21, 1"); S("s_add_u32 s49, s27, 10"); S("s_sub_u32 s49, s49, s48"); S("s_add_u32 s48, s48, s27")
    rounds = wo_rounds(S, True, K.L_W, [(K.WO[T, u // 2] + 4 * (u % 2), RW, T * 4096 + u * 1024) for T in range(5) for u in range(4)])
    units = {}
    for i, (m, tl, rem, t) in enumerate(K.SEQ): units.setdefault((m, rem, t), {})[tl] = i
    pure = [u for u, d in units.items() if not any(i in K.LDSI for i in d.values())]
    mixed = [u for u in units if u not in pure]
    if len(pure) % 2: mixed.insert(0, pure.pop())
    assert len(mixed) % 2 == 0
    def issue_pair(st, ua, ub, tch=False):
        S("s_cmp_lt_u32 s21, 2")
        S("s_cselect_b32 s26, s%d, s%d" % (48 + ua[1], 48 + ub[1])); S("s_cselect_b32 s27, %d, %d" % (2 * ua[2], 2 * ub[2]));
        S("s_cselect_b64 s[88:89], s[%d:%d], s[%d:%d]" % (SRD[K.MATS[ua[0]]], SRD[K.MATS[ua[0]]] + 1, SRD[K.MATS[ub[0]]], SRD[K.MATS[ub[0]]] + 1))
        S("s_add_u32 s26, s26, s27")
        if tch: stouch(S, 88, "s26")
        else: qkv_issue(S, st, "s[88:91]", "s26")
    S("s_mov_b32 s90, %d" % SZ_W); S("s_mov_b32 s91, 0x00020000")
    for r in range(len(pure) // 2):
        ua, ub = pure[2 * r], pure[2 * r + 1]
        def write(st, r=r):
            S("s_lshl_b32 s27, s21, 11"); S("s_add_u32 s27, s27, %d" % (B0, B1)[r % 2]); S("v_add_u32 v%d, s27, v0" % WA)
            for x in range(8):
                perm(S, st, x, PO[x % 2]); S("ds_write_b128 v%d, %s offset:%d" % (WA, r4(PO[x % 2]), (x // 2) * 8192 + (x % 2) * 1024))
        rounds.append(dict(issue=lambda st, ua=ua, ub=ub: issue_pair(st, ua, ub), touch=lambda ua=ua, ub=ub: issue_pair(0, ua, ub, True), write=write,
                           reads=[(K.WREG[units[(ua, ub)[tk // 2]][tl]] + 4 * (tk % 2), (R0, R1)[r % 2], tk * 2048 + tl * 1024) for tk in range(4) for tl in range(2)]))
    for r in range(len(mixed) // 2):
        ua, ub = mixed[2 * r], mixed[2 * r + 1]
        assert all(sum(i not in K.LDSI for i in units[u].values()) <= 1 for u in (ua, ub))
        def write(st, ua=ua, ub=ub):
            S("s_and_b32 s28, s21, 1"); S("s_lshl_b32 s28, s28, 10")
            for tl in range(2):
                pr = []
                for k_, u in enumerate((ua, ub)):
                    i = units[u][tl]
                    pr.append((K.L_W + K.LDSI.index(i) * 2048, K.LW_WAVE) if i in K.LDSI else (k_ * 2048, 4096))
                S("s_mov_b32 s29, %d" % pr[1][0]); S("s_mov_b32 s30, %d" % pr[1][1])
                S("s_cmp_lt_u32 s21, 2"); S("s_cselect_b32 s29, %d, s29" % pr[0][0]); S("s_cselect_b32 s30, %d, s30" % pr[0][1]); S("s_add_u32 s29, s29, s28")
                for dw in range(4):
                    x = 2 * dw + tl
                    S("v_add_u32 v%d, s29, v0" % (WA + dw % 2)); S("s_add_u32 s29, s29, s30")
                    perm(S, st, x, PO[dw % 2]); S("ds_write_b128 v%d, %s" % (WA + dw % 2, r4(PO[dw % 2])))
        rd = []
        for k_, u in enumerate((ua, ub)):
            for tl in range(2):
                i = units[u][tl]
                if i not in K.LDSI: rd += [(K.WREG[i] + 4 * hf, R2, k_ * 2048 + hf * 1024) for hf in range(2)]
        rounds.append(dict(issue=lambda st, ua=ua, ub=ub: issue_pair(st, ua, ub), touch=lambda ua=ua, ub=ub: issue_pair(0, ua, ub, True), write=write, reads=rd, pre=True))
    run(S, rounds)


def bulk_load(A, L, breg):
    S = Seq(A)
    qkv_setup(S)
    R0, R1, RW = 4, 5, 7
    S("s_lshl_b32 s27, s21, 13"); S("v_add_u32 v%d, s27, v0" % R0); S("v_add_u32 v%d, 32768, v%d" % (R1, R0))
    S("s_cmp_eq_u32 s20, 2"); S("s_cbranch_scc1 %s" % L("bl_kv"))
    S("s_mul_i32 s27, s21, 40960"); S("v_add_u32 v%d, s27, v0" % RW)
    run(S, wo_rounds(S, False, 0, [(breg(40 + f), RW, f * 1024) for f in range(40)]))
    S("s_barrier")
    run(S, plain_rounds(S, "s[72:75]", lambda tl, ks: breg(tl * 20 + ks), [0, 32768], [R0, R1]))
    S("s_branch %s" % L("lw_done"))
    A.label(L("bl_kv"))
    S = Seq(A)
    run(S, plain_rounds(S, "s[76:79]", lambda tl, ks: breg(tl * 20 + ks), [0, 32768], [R0, R1]) +
        plain_rounds(S, "s[80:83]", lambda tl, ks: breg(40 + tl * 20 + ks), [32768, 0], [R1, R0]))
```

```python
from asmlib import *
from layout import *
from seq import *
import k_chain
from k_chain import chain_body, f2u, C1, SPIN_MAX, OOB, L_FL
from k_load import chain_load, bulk_load
from k_tab import lane_setup, t1_frag, t2_frag, wt_task
from k_ln import ln_body
from k_b import fft2, idft, idft_table, idft_deferred

GMAP = 0x76524130


def breg(i):
    return 256 + 4 * i if i < 64 else 192 + 4 * (i - 64)


def main_kernel(P):
    name = "interleave_layers__memory_aug_recurrent_mem_tr__spectral_gfnet__prompt_kernel"
    k = Kernel(name, 256, 256, 163840, 256, 256, sgpr=102)
    A = k.asm
    L = lambda x: "M_%s" % x

    def ht2(i):
        if P.get("HT", 0) >= 2: ht(i, True)
    def hb(i, flush=False):
        if P.get("HT", 0) != 4: return
        lab = A.newlabel(L("hb"))
        A("s_xor_b32 s6, s84, 1"); A("s_or_b32 s6, s6, s83"); A("s_cmp_lg_u32 s6, 0"); A("s_cbranch_scc1 %s" % lab)
        A("s_memrealtime s[6:7]"); A("s_waitcnt lgkmcnt(0)"); A("s_lshl_b32 s6, s6, 4"); A("s_or_b32 s6, s6, %d" % (i & 15))
        A("v_writelane_b32 v188, s6, %d" % i)
        if flush:
            A("s_add_u32 s7, s82, 2"); A("s_lshl_b32 s7, s7, 8"); A("s_add_u32 s7, s7, %d" % (WS_DBG + (4 << 20) + 128)); A("v_mbcnt_lo_u32_b32 v189, -1, 0"); A("v_lshlrev_b32 v189, 2, v189")
            A("s_mov_b64 exec, 0x%x" % ((1 << (i + 1)) - 1)); A("buffer_store_dword v188, v189, s[8:11], s7 offen"); A("s_mov_b64 exec, -1")
        A.label(lab)
    def hq(i):
        if P.get("HT", 0) != 3: return
        lab = A.newlabel(L("hq"))
        A("s_or_b32 s6, s21, s22"); A("s_cmp_lg_u32 s6, 0"); A("s_cbranch_scc1 %s" % lab); A("s_cmp_lt_u32 s44, 59"); A("s_cbranch_scc1 %s" % lab)
        A("s_memrealtime s[6:7]"); A("s_waitcnt lgkmcnt(0)")
        A("s_lshl_b32 s7, s20, 8"); A("s_add_u32 s7, s7, s5"); A("s_add_u32 s5, s5, 4"); A("s_add_u32 s7, s7, %d" % (WS_DBG + (4 << 20)))
        A("s_lshl_b32 s6, s6, 4"); A("s_or_b32 s6, s6, %d" % i)
        A("v_writelane_b32 v188, s6, %d" % i); A("v_writelane_b32 v189, s7, %d" % i)
        if i == 15: A("s_mov_b64 exec, 0xffe1"); A("buffer_store_dword v188, v189, s[8:11], 0 offen"); A("s_mov_b64 exec, -1")
        A.label(lab)
    def ht(i, saved=False):
        if P.get("HD") and not saved:
            lab = A.newlabel(L("hd"))
            A("s_or_b32 s6, s21, s22"); A("s_and_b32 s7, s20, 3"); A("s_or_b32 s6, s6, s7"); A("s_cmp_lg_u32 s6, 0"); A("s_cbranch_scc1 %s" % lab)
            if i == 0: A("s_mov_b32 s6, s96")
            else: A("s_memrealtime s[6:7]"); A("s_waitcnt lgkmcnt(0)")
            A("s_lshl_b32 s7, s20, 2"); A("s_add_u32 s7, s7, s5"); A("s_add_u32 s5, s5, 2"); A("s_add_u32 s7, s7, %d" % 36)
            A("s_cmp_ge_u32 s7, 60"); A("s_cselect_b32 s7, 50, s7")
            A("s_mov_b64 exec, 1"); A("v_mov_b32 v10, s6"); A("v_mov_b32 v11, 0"); A("buffer_store_short v10, v11, s[12:15], s7 offen"); A("s_waitcnt vmcnt(0)"); A("s_mov_b64 exec, -1")
            A.label(lab); return
        if not P.get("HT"): return
        lab = A.newlabel(L("ht"))
        if saved:
            A("s_or_b32 s6, s83, s84"); A("s_cmp_lg_u32 s6, 0"); A("s_cbranch_scc1 %s" % lab)
            A("s_memrealtime s[6:7]"); A("s_waitcnt lgkmcnt(0)")
            A("s_add_u32 s7, s82, 2"); A("s_lshl_b32 s7, s7, 8"); A("s_add_u32 s7, s7, s5"); A("s_add_u32 s5, s5, 4"); A("s_add_u32 s7, s7, %d" % (WS_DBG + (4 << 20)))
            A("s_lshl_b32 s6, s6, 4"); A("s_or_b32 s6, s6, %d" % i)
            A("s_mov_b64 exec, 1"); A("v_mov_b32 v190, s6"); A("v_mov_b32 v191, 0"); A("buffer_store_dword v190, v191, s[8:11], s7 offen"); A("s_mov_b64 exec, -1")
            A.label(lab); return
        A("s_or_b32 s6, s21, s22"); A("s_cmp_lg_u32 s6, 0"); A("s_cbranch_scc1 %s" % lab)
        A("s_memrealtime s[6:7]"); A("s_waitcnt lgkmcnt(0)")
        A("s_lshl_b32 s7, s20, 8"); A("s_add_u32 s7, s7, s5"); A("s_add_u32 s5, s5, 4"); A("s_add_u32 s7, s7, %d" % (WS_DBG + (4 << 20)))
        A("s_lshl_b32 s6, s6, 4"); A("s_or_b32 s6, s6, %d" % i)
        A("s_mov_b64 exec, 1"); A("v_mov_b32 v10, s6"); A("v_mov_b32 v11, 0"); A("buffer_store_dword v10, v11, s[8:11], s7 offen"); A("s_waitcnt vmcnt(0)"); A("s_mov_b64 exec, -1")
        A.label(lab)

    ool = []
    def flush_ool():
        for lab, grp in ool:
            A.label(lab)
            for t_ in grp: A(t_)
            A("s_branch %s_r" % lab)
        del ool[:]

    def lst(op, E=None):
        E = E or A
        l1 = A.newlabel(L("ls"))
        E("s_cmp_lg_u32 s23, 0"); E("s_cbranch_scc1 %s" % l1)
        for o in op: E(o)
        A.label(l1 + "_r")
        ool.append((l1, ["s_nop 7"] + [o + " sc1" if o.startswith("buffer_store") else o for o in op]))

    A("s_cmp_ge_u32 s2, 256"); A("s_cbranch_scc1 %s" % L("end"))
    if P.get("HD"): A("s_memrealtime s[96:97]")
    load_srd(A, 16, KA_X, SZ_X); load_srd(A, 8, KA_WS, SZ_WS); load_srd(A, 12, KA_DBG, 256)
    for b_, ka in ((72, KA_WQ), (76, KA_WK), (80, KA_WV), (84, KA_WO), (68, KA_MEM0)): load_srd(A, b_, ka, 0)
    A("s_getreg_b32 s24, hwreg(HW_REG_XCC_ID)"); A("s_and_b32 s24, s24, 7")
    if P.get("CPF", 1):
        A("s_getpc_b64 s[26:27]")
        A.label(L("cpf"))
        A("s_lshr_b32 s28, s2, 3"); A("s_lshl_b32 s28, s28, 8"); A("v_add_u32 v13, s28, v0"); A("v_lshlrev_b32 v13, 6, v13")
        A("v_cmp_gt_u32 vcc, %s - %s, v13" % (L("end"), L("cpf"))); A("s_and_saveexec_b64 s[28:29], vcc"); A("s_cbranch_execz %s" % L("cpfd"))
        A("global_load_dword v14, v13, s[26:27]")
        A.label(L("cpfd"))
        A("s_mov_b64 exec, s[28:29]")
    A("v_lshrrev_b32 v12, 6, v0"); A("v_and_b32 v0, 63, v0"); A("v_readfirstlane_b32 s21, v12")
    A("v_lshlrev_b32 v0, 4, v0")
    A("s_waitcnt lgkmcnt(0)")
    fin_srd(A, 8, SZ_WS); fin_srd(A, 12, 256); fin_srd(A, 16, SZ_X)
    for b_, sz in ((72, SZ_W), (76, SZ_W), (80, SZ_W), (84, SZ_W), (68, SZ_MEM0)): fin_srd(A, b_, sz)
    A("s_mov_b32 s5, 0"); A("s_mov_b32 s101, 0")
    A("s_cmp_eq_u32 s21, 0"); A("s_cbranch_scc1 %s" % L("tick"))
    A("s_cmp_eq_u32 s21, 3"); A("s_cbranch_scc1 %s" % L("zero"))
    for q in range(4): A("v_mov_b32 v%d, -1" % (28 + q))
    A("s_lshl_b32 s26, s2, 1"); A("s_add_u32 s26, s26, s21"); A("s_lshl_b32 s26, s26, 12"); A("s_add_u32 s26, s26, %d" % (WS_FILL - 4096))
    for q in range(4): A("buffer_store_dwordx4 v[28:31], v0, s[8:11], s26 offen offset:%d sc1" % (1024 * q))
    A("s_branch %s" % L("notick"))
    A.label(L("zero"))
    for q in range(4): A("v_mov_b32 v%d, 0" % (28 + q))
    A("s_lshl_b32 s26, s2, 9"); A("s_add_u32 s26, s26, %d" % WS_ZERO)
    A("s_mov_b32 exec_hi, 0"); A("buffer_store_dwordx4 v[28:31], v0, s[8:11], s26 offen sc1"); A("s_mov_b64 exec, -1")
    A("s_cmp_ge_u32 s2, 10"); A("s_cbranch_scc1 %s" % L("notick"))
    A("v_bfe_u32 v6, v0, 4, 3"); A("v_mul_u32_u24 v6, 1280, v6"); A("v_lshrrev_b32 v7, 8, v0"); A("v_lshl_add_u32 v6, v7, 5, v6"); A("v_bfe_u32 v7, v0, 7, 1"); A("v_lshl_add_u32 v6, v7, 2, v6")
    A("s_lshl_b32 s26, s2, 7")
    for n in range(4): A("buffer_load_dword v%d, v6, s[68:71], s26 offen offset:%d" % (32 + n, 8 * n))
    A("v_and_b32 v7, 0x200, v0")
    for src, dst in ((6, 8), (4, 7), (5, 6), (8, 5), (7, 4)):
        A("v_bfe_u32 v12, v0, %d, 1" % src); A("v_lshl_or_b32 v7, v12, %d, v7" % dst)
    A("s_lshl_b32 s26, s2, 10"); A("s_add_u32 s26, s26, %d" % WS_M0); A("s_waitcnt vmcnt(0)")
    for n in range(4): A("v_min_u32 v%d, -2, v%d" % (32 + n, 32 + n))
    A("buffer_store_dwordx4 v[32:35], v7, s[8:11], s26 offen sc1")
    A("s_branch %s" % L("notick"))
    A.label(L("tick"))
    A("s_and_b32 s25, s24, 5"); A("s_cmp_lg_u32 s25, 1"); A("s_cbranch_scc1 %s" % L("nocal"))
    A("s_bfe_u32 s25, s2, 0x20003"); A("s_lshl_b32 s26, s25, 13"); A("s_lshr_b32 s27, s2, 5"); A("s_lshl_b32 s27, s27, 15"); A("s_add_u32 s26, s26, s27")
    A("s_lshl_b32 s27, s24, 8"); A("s_add_u32 s26, s26, s27"); A("s_add_u32 s26, s26, %d" % WS_MR)
    for q in range(4): A("v_mov_b32 v%d, -1" % (28 + q))
    A("s_mov_b64 exec, 0xff"); A("s_mov_b32 s27, -1"); A("s_waitcnt vmcnt(0)")
    for rep in range(4):
        A("s_memtime s[28:29]"); A("buffer_store_dwordx4 v[28:31], v0, s[8:11], s26 offen sc1"); A("s_waitcnt vmcnt(0)"); A("s_memtime s[30:31]")
        A("s_waitcnt lgkmcnt(0)"); A("s_sub_u32 s28, s30, s28"); A("s_min_u32 s27, s27, s28")
    A("s_mov_b64 exec, 1"); A("s_min_u32 s27, s27, 0xffff"); A("s_sub_u32 s27, 0x10000, s27"); A("s_lshl_b32 s27, s27, 2"); A("s_or_b32 s27, s27, s25"); A("v_mov_b32 v28, s27"); A("v_mov_b32 v29, 60")
    A("buffer_atomic_umax v28, v29, s[12:15], 0 offen")
    A.label(L("nocal"))
    A("s_mov_b64 exec, 1")
    A("v_mov_b32 v28, 1"); A("s_lshl_b32 s25, s24, 2"); A("v_mov_b32 v29, s25")
    A("buffer_atomic_add v28, v29, s[12:15], 0 offen sc0")
    A("s_mov_b64 exec, -1")
    A.label(L("notick"))
    A("s_lshl_b32 s20, s24, 2"); A("s_lshr_b32 s20, 0x%x, s20" % GMAP); A("s_and_b32 s20, s20, 7")
    NPF = P.get("NPF", 3)
    A("s_lshr_b32 s26, s2, 3"); A("v_lshrrev_b32 v6, 4, v0"); A("s_cmp_eq_u32 s20, 2"); A("s_cbranch_scc1 %s" % L("pf_kv"))
    A("s_mul_i32 s26, s26, 163840"); A("s_mul_i32 s27, s20, 640"); A("s_add_u32 s26, s26, s27"); A("s_and_b32 s27, s21, 1"); A("s_mul_i32 s27, s27, 81920"); A("s_add_u32 s26, s26, s27")
    A("s_lshr_b32 s27, s21, 1"); A("s_mul_i32 s27, s27, 384"); A("s_add_u32 s26, s26, s27"); A("s_cmp_lt_u32 s20, 2"); A("s_cselect_b32 s26, s26, 0x%x" % OOB); A("v_mul_u32_u24 v6, 1280, v6")
    for q in range(NPF): A("buffer_load_dword v3, v6, s[84:87], s26 offen offset:%d sc1" % (128 * q))
    A("s_branch %s" % L("pf_d"))
    A.label(L("pf_kv"))
    A("s_lshl_b32 s26, s26, 8"); A("s_lshl_b32 s27, s21, 18"); A("s_add_u32 s26, s26, s27"); A("v_lshrrev_b32 v7, 1, v6"); A("v_lshlrev_b32 v7, 13, v7"); A("v_and_b32 v6, 1, v6"); A("v_lshl_add_u32 v6, v6, 7, v7")
    for q in range(NPF):
        A("buffer_load_dword v3, v6, s[76:79], s26 offen sc1"); A("s_add_u32 s26, s26, %d" % (1 << 20))
    A.label(L("pf_d"))
    A("s_waitcnt vmcnt(%d)" % NPF)
    A("s_cmp_lg_u32 s21, 0"); A("s_cbranch_scc1 %s" % L("notick2"))
    A("s_mov_b64 exec, 1"); A("v_mov_b32 v29, %d" % L_FL); A("ds_write_b32 v29, v28"); A("s_waitcnt lgkmcnt(0)"); A("s_mov_b64 exec, -1")
    A.label(L("notick2"))
    A("s_barrier")
    A("s_cmp_lg_u32 s21, 0"); A("s_cbranch_scc1 %s" % L("noarr"))
    A("s_mov_b64 exec, 1"); A("v_mov_b32 v30, 1"); A("v_mov_b32 v29, 32"); A("buffer_atomic_add v30, v29, s[12:15], 0 offen"); A("s_mov_b64 exec, -1")
    A.label(L("noarr"))
    A("v_mov_b32 v29, %d" % L_FL); A("ds_read_b32 v28, v29"); A("s_waitcnt lgkmcnt(0)"); A("v_readfirstlane_b32 s25, v28")
    A("s_and_b32 s22, s25, 31")
    A("s_mov_b32 s23, 0"); A("s_mov_b32 s32, 0")
    ht(0)
    A("s_cmp_ge_u32 s20, 3"); A("s_cbranch_scc1 %s" % L("lw_done"))
    A.label(L("loadw"))
    A("s_barrier")
    A("s_cmp_lt_u32 s20, 2"); A("s_cbranch_scc1 %s" % L("lw_chain"))
    A("s_cmp_lt_u32 s20, 4"); A("s_cbranch_scc1 %s" % L("lw_bulk"))
    A("s_lshl_b32 s34, s22, 2"); A("s_add_u32 s34, s34, s20"); A("s_sub_u32 s34, s34, 4"); A("s_mov_b32 s92, s33"); A("s_mov_b32 s33, s21")
    lane_setup(A); ln_body(A, "s34", 16, 0, WS_XNF, False, "", lambda st: [A(t_ + " sc1") for t_ in st])
    A("s_mov_b32 s33, s92"); A("s_waitcnt vmcnt(0)"); A("s_barrier")
    A("s_cmp_lg_u32 s21, 0"); A("s_cbranch_scc1 %s" % L("lw_bulk"))
    A("s_lshr_b32 s27, s34, 1"); A("s_lshl_b32 s27, s27, 7"); A("s_and_b32 s28, s34, 1"); A("s_mul_i32 s28, s28, 20"); A("s_add_u32 s27, s27, s28"); A("s_add_u32 s27, s27, %d" % WS_XFL)
    A("v_lshrrev_b32 v12, 2, v0"); A("v_mov_b32 v13, 1"); A("s_mov_b64 exec, 31"); A("buffer_store_dword v13, v12, s[8:11], s27 offen sc1"); A("s_mov_b64 exec, -1")
    A.label(L("lw_bulk"))
    bulk_load(A, L, breg)
    A("s_branch %s" % L("lw_done"))
    A.label(L("lw_chain"))
    if P.get("HALF"): A("s_cmp_ge_u32 s22, %d" % P["HALF"]); A("s_cbranch_scc1 %s" % L("lw_done"))
    chain_load(A, k_chain)
    A.label(L("lw_done"))
    A("s_cmp_lg_u32 s32, 0"); A("s_cbranch_scc1 %s" % L("role_ok"))
    A("s_mov_b32 s32, 1"); A("s_mov_b32 s30, 0")
    A("v_bfe_u32 v12, v0, 4, 4"); A("v_lshlrev_b32 v12, 2, v12")
    A.label(L("modepoll"))
    A("buffer_load_dword v13, v12, s[12:15], 0 offen sc1"); A("s_waitcnt vmcnt(0)")
    A("v_readlane_b32 s31, v13, 8")
    A("s_cmp_eq_u32 s31, 256"); A("s_cbranch_scc1 %s" % L("modegot"))
    A("s_sleep 2")
    A("s_add_u32 s30, s30, 1"); A("s_cmp_lt_u32 s30, %d" % SPIN_MAX); A("s_cbranch_scc1 %s" % L("modepoll"))
    A("s_branch %s" % L("fail"))
    A.label(L("modegot"))
    A("s_cmp_eq_u32 s30, 0"); A("s_cbranch_scc1 %s" % L("moderd"))
    A("buffer_load_dword v13, v12, s[12:15], 0 offen sc1"); A("s_waitcnt vmcnt(0)")
    A.label(L("moderd"))
    A("v_readlane_b32 s33, v13, 15"); A("s_nop 0"); A("s_and_b32 s33, s33, 3"); A("s_lshl_b32 s33, s33, 13")
    A("s_xor_b32 s33, s33, %d" % (0x4000 ^ (P.get("PG", 0) << 13)))
    A("v_cmp_ne_u32 vcc, 32, v13"); A("s_and_b32 s31, vcc_lo, 0xff")
    if P.get("FORCE_SLOW"): A("s_mov_b32 s31, 1")
    A("s_cmp_lg_u32 s31, 0"); A("s_cbranch_scc1 %s" % L("slowm"))
    A("s_cmp_ge_u32 s20, 3"); A("s_cbranch_scc1 %s" % L("loadw")); A("s_branch %s" % L("role_ok"))
    A.label(L("slowm"))
    A("s_mov_b32 s23, 1"); A("s_mov_b32 s31, s25")
    for x in range(7):
        A("v_readlane_b32 s30, v13, %d" % x); A("s_cmp_gt_u32 s24, %d" % x); A("s_cselect_b32 s30, s30, 0"); A("s_add_u32 s31, s31, s30")
    if P.get("FORCE_SLOW"):
        A("s_and_b32 s20, s31, 7"); A("s_lshr_b32 s22, s31, 3")
    else:
        A("s_lshr_b32 s20, s31, 5"); A("s_and_b32 s22, s31, 31")
    A("s_and_b32 s20, s20, 7"); A("s_and_b32 s22, s22, 31")
    A("s_branch %s" % L("loadw"))
    A.label(L("role_ok"))
    A("s_mov_b32 s25, s33")
    A("s_cmp_ge_u32 s20, 2"); A("s_cbranch_scc1 %s" % L("bulk"))
    chain_body(A, P, L, ht)

    def mf32(S, acc, a_, b_, c): S("v_mfma_f32_16x16x32_bf16 %s, %s, %s, %s" % (r4(acc), ureg(a_, 4), ureg(b_, 4), c if isinstance(c, str) else r4(c)))
    def mf16(S, acc, a_, b_, c): S("v_mfma_f32_16x16x16_bf16 %s, %s, %s, %s" % (r4(acc), r2(a_), r2(b_), c if isinstance(c, str) else r4(c)))
    def rd(S, dst, areg, off): return S("ds_read_b128 %s, v%d offset:%d" % (r4(dst), areg, off))

    def x_dma(S, seg_s, slot_s, loc=False):
        S("s_min_u32 s27, %s, 63" % seg_s); S("s_mul_i32 s27, s27, 40960"); S("s_add_u32 s27, s27, s47")
        if loc: S("s_cmp_lt_u32 %s, 4" % seg_s); S("s_cselect_b32 s28, s53, 0"); S("s_add_u32 s27, s27, s28")
        S("s_add_u32 s28, %s, s42" % slot_s)
        for f in range(10):
            if f % 4 == 0:
                if f: S("s_add_u32 s27, s27, 4096"); S("s_add_u32 s28, s28, 4096")
                S("s_mov_b32 m0, s28")
            S("buffer_load_dwordx4 v0, s[8:11], s27 offen offset:%d sc1 lds" % ((f % 4) * 1024))

    def proj(S, areg, acc, XB, tr=False, mid=None):
        NB = len(XB)
        seq = [(mt, ks) for mt in range(2) for ks in range(20)]
        for i in range(NB - 1): rd(S, XB[i], areg, i * 1024)
        for i, (mt, ks) in enumerate(seq):
            if mid and i == 22: mid(S)
            if i + NB - 1 < 40: rd(S, XB[(i + NB - 1) % NB], areg, (i + NB - 1) * 1024)
            for tl in range(2):
                a = acc + 8 * mt + 4 * tl
                if tr: mf32(S, a, XB[i % NB], breg(tl * 20 + ks), "0" if ks == 0 else a)
                else: mf32(S, a, breg(tl * 20 + ks), XB[i % NB], "0" if ks == 0 else a)

    def xpoll(S, mask, tag, sleep=4):
        ld = A.newlabel(L(tag)); lp = A.newlabel(L(tag)); le = A.newlabel(L(tag))
        A("s_cmp_lg_u32 s21, 0"); A("s_cbranch_scc1 %s" % ld)
        A("v_lshlrev_b32 v190, 3, v0"); A("s_mov_b64 exec, %s" % mask); A("s_mov_b32 s30, 0"); A("s_lshl_b32 s27, %s, 13" % ("0" if P.get("NOQAO") else "s101")); A("s_add_u32 s27, s27, %d" % WS_XFL)
        A.label(lp)
        A("buffer_load_dwordx4 v[176:179], v190, s[8:11], s27 offen sc1"); A("buffer_load_dwordx4 v[180:183], v190, s[8:11], s27 offen offset:16 sc1"); A("buffer_load_dwordx2 v[184:185], v190, s[8:11], s27 offen offset:32 sc1")
        A("s_add_u32 s30, s30, 1"); A("s_cmp_ge_u32 s30, %d" % SPIN_MAX); A("s_cbranch_scc1 %s" % L("fail"))
        A("s_waitcnt vmcnt(0)")
        for i in range(177, 185, 2): A("v_min3_u32 v176, v176, v%d, v%d" % (i, i + 1))
        A("v_min_u32 v176, v176, v185"); A("v_cmp_eq_u32 vcc, 0, v176"); A("s_cbranch_vccz %s" % (lp + "d")); A("s_sleep %d" % sleep); A("s_branch %s" % lp)
        A.label(lp + "d")
        A("s_mov_b64 exec, -1")
        A.label(ld)
        A("s_barrier")
        A.label(le)

    def poll(S, addr_s, lanes, cmp_ins, tag, sleep=1, sh="v_lshrrev_b32 v190, 2, v0"):
        ld = A.newlabel(L(tag)); lp = A.newlabel(L(tag))
        S("s_cmp_lg_u32 s21, 0"); S("s_cbranch_scc1 %s" % ld)
        A("s_mov_b64 exec, 0x%x" % lanes); A("s_mov_b32 s30, 0"); A(sh)
        A.label(lp)
        A("buffer_load_dword v191, v190, s[8:11], %s offen sc1" % addr_s)
        A("s_add_u32 s30, s30, 1"); A("s_cmp_ge_u32 s30, %d" % SPIN_MAX); A("s_cbranch_scc1 %s" % L("fail"))
        A("s_waitcnt vmcnt(0)"); A(cmp_ins); A("s_cbranch_vccz %s" % (lp + "d"))
        if sleep: A("s_sleep %d" % sleep)
        A("s_branch %s" % lp)
        A.label(lp + "d")
        A("s_mov_b64 exec, -1")
        A.label(ld)
        S("s_barrier")

    A.label(L("bulk"))
    A("s_waitcnt vmcnt(0)"); A("s_barrier")
    ht(1)
    A("s_mul_i32 s42, s21, 10240"); A("s_mul_i32 s47, s101, %d" % XNF_LAYER); A("s_add_u32 s47, s47, s42"); A("s_add_u32 s47, s47, %d" % WS_XNF)
    A("s_mul_i32 s50, s101, %d" % KV_LAYER); A("s_lshl_b32 s27, s22, 13"); A("s_add_u32 s50, s50, s27"); A("s_add_u32 s50, s50, %d" % WS_KXF)
    A("s_lshl_b32 s43, s101, 6")
    A("s_sub_u32 s82, s20, 2"); A("s_mov_b32 s83, s21"); A("s_mov_b32 s84, s22"); A("s_mov_b32 s85, s23")
    A("s_lshl_b32 s87, s82, 5"); A("s_add_u32 s87, s87, s22")
    A("s_mul_i32 s86, s101, %d" % (2 * 4096))
    A("s_mul_i32 s80, s101, %d" % (WS_X3 - WS_X1)); A("s_add_u32 s80, s80, %d" % WS_X1)
    A("s_load_dwordx2 s[98:99], s[0:1], %d" % KA_OUT)
    A("s_cmp_eq_u32 s87, 160"); A("s_cselect_b32 s81, 191, s87"); A("s_cmp_eq_u32 s87, 191"); A("s_cselect_b32 s81, 160, s81"); A("s_waitcnt lgkmcnt(0)")
    A("s_mul_i32 s27, s22, 26"); A("s_lshr_b32 s27, s27, 8"); A("s_mul_i32 s28, s27, 10"); A("s_sub_u32 s88, s22, s28")
    A("s_mul_i32 s28, s20, 3"); A("s_sub_u32 s28, s28, %d" % (8 if P.get("RG0", 1) else 9))
    A("s_cmp_lt_u32 s20, 3"); A("s_cselect_b32 s28, %d, s28" % (0 if P.get("RG0", 1) else 15)); A("s_cselect_b32 s29, 1, 3"); A("s_add_u32 s28, s28, s27")
    A("s_lshl_b32 s89, s28, 2"); A("s_add_u32 s89, s89, s21"); A("s_cmp_lt_u32 s27, s29"); A("s_cselect_b32 s89, s89, 64")
    A("s_cmp_ge_u32 s20, 3"); A("s_cbranch_scc1 %s" % L("qao"))
    S = Seq(A)
    S("s_lshl_b32 s28, s21, 11"); S("s_add_u32 s52, s50, s28"); S("s_add_u32 s52, s52, %d" % KV_MAT); S("s_lshl_b32 s28, s21, 10"); S("s_add_u32 s50, s50, s28")
    S("s_lshl_b32 s51, s22, 8"); S("s_add_u32 s51, s51, %d" % WS_KVFL); S("v_lshlrev_b32 v3, 3, v0")
    S("s_mov_b32 s44, 0"); S("s_mov_b32 s45, 0")
    S("s_mul_i32 s53, s101, %d" % (WS_XNL - WS_XNF - XNF_LAYER))
    A("s_cmp_lg_u32 s101, 0"); A("s_cbranch_scc1 %s" % L("kv_l1"))
    xpoll(S, "15", "kx", P.get("KS", 4)); A("s_branch %s" % L("kv_l2"))
    A.label(L("kv_l1"))
    A("s_mov_b32 s54, %d" % WS_LFL); poll(S, "s54", 0x3ff, "v_cmp_ne_u32 vcc, 0x01010101, v191", "kl", sleep=1)
    A.label(L("kv_l2"))
    x_dma(S, "s44", "s45", True)
    A("s_lshl_b32 s55, s89, 7"); A("s_lshl_b32 s27, s88, 2"); A("s_add_u32 s55, s55, s27"); A("s_add_u32 s55, s55, %d" % (WS_XFL + 8192))
    A("s_cmp_lt_u32 s89, 64"); A("s_cselect_b32 s27, s101, 0"); A("s_cmp_lg_u32 s27, 0"); A("s_cselect_b32 s55, s55, 0x%x" % OOB); A("s_cbranch_scc1 %s" % L("kv_d1"))
    A("s_waitcnt vmcnt(0)"); A("s_barrier"); A("s_branch %s" % L("kv_d2"))
    A.label(L("kv_d1"))
    A("s_waitcnt vmcnt(0)"); A("s_barrier"); idft_deferred(A)
    A.label(L("kv_d2"))
    A("v_mov_b32 v6, 1")
    XB = [56 + 4 * i for i in range(5)]
    S("v_mov_b32 v1, v0")
    for i in range(4): rd(S, XB[i], 1, i * 1024)
    A.label(L("kv_top"))
    S = Seq(A); S.nl = 4
    for i in range(4):
        for r_ in range(4): S.lp["v%d" % (XB[i] + r_)] = i + 1
    S("s_add_u32 s27, s44, s43"); S("v_mov_b32 v2, s27")
    S("s_sub_u32 s45, 40960, s45"); S("s_add_u32 s44, s44, 1"); S("v_add_u32 v4, s45, v0")
    dm = []; x_dma(dm.append, "s44", "s45", True)
    def kflag(tag):
        A("s_cmp_lg_u32 s21, 0"); A("s_cbranch_scc1 %s" % L(tag))
        A("s_mov_b64 exec, 3"); A("buffer_store_dword v2, v3, s[8:11], s51 offen sc1"); A("s_mov_b64 exec, -1")
        A.label(L(tag))
    sq = [(mt, ks) for mt in range(2) for ks in range(20)]
    ep = []
    for i, (mt, ks) in enumerate(sq):
        KG, KD, KM_ = P.get("KG", 2), P.get("KDI", 4), P.get("KM", 10)
        if i == KM_:
            S("s_waitcnt vmcnt(%d)" % S.nv); S("s_barrier"); kflag("kv_f0"); S("s_mov_b64 exec, 1"); S("buffer_store_dword v6, v0, s[8:11], s55 offen sc1"); S("s_mov_b64 exec, -1"); S("s_mov_b32 s55, 0x%x" % OOB)
        if i % KD == 2 % KD:
            n_ = 0
            while dm and n_ < KG:
                if dm[0].startswith("buffer"): n_ += 1
                S(dm.pop(0))
        if i == 22:
            ep = ["v_cvt_pk_bf16_f32 v%d, v%d, v%d" % (40 + q, 8 + q, 12 + q) for q in range(4)]
            ep += ["v_cvt_pk_bf16_f32 v%d, v%d, v%d" % (48 + 4 * tl + q, 24 + 4 * tl + 2 * q, 25 + 4 * tl + 2 * q) for tl in range(2) for q in range(2)]
        if i == 36: S("s_waitcnt vmcnt(0)"); S("s_barrier")
        if i + 4 < 40: rd(S, XB[(i + 4) % 5], 1, (i + 4) * 1024)
        else: rd(S, XB[(i + 4) % 5], 4, (i - 36) * 1024)
        for tl in range(2):
            a_ = 8 + 8 * mt + 4 * tl
            mf32(S, a_, breg(tl * 20 + ks), XB[i % 5], "0" if ks == 0 else a_)
            if ep: S(ep.pop(0))
            mf32(S, a_ + 16, XB[i % 5], breg(40 + tl * 20 + ks), "0" if ks == 0 else a_ + 16)
    assert not dm
    S("s_add_u32 s27, s50, 4096"); S("v_mov_b32 v1, v4")
    S("buffer_store_dwordx4 %s, v0, s[8:11], s50 offen sc1" % r4(40))
    for i in range(4): S("v_cvt_pk_bf16_f32 v%d, v%d, v%d" % (44 + i, 16 + i, 20 + i))
    for tl in range(2):
        for q in range(2): S("v_cvt_pk_bf16_f32 v%d, v%d, v%d" % (50 + 4 * tl + q, 32 + 4 * tl + 2 * q, 33 + 4 * tl + 2 * q))
    S("buffer_store_dwordx4 %s, v0, s[8:11], s27 offen sc1" % r4(44))
    for tl in range(2): S("buffer_store_dwordx4 %s, v0, s[8:11], s52 offen offset:%d sc1" % (r4(48 + 4 * tl), 1024 * tl))
    S("s_add_u32 s50, s50, 262144"); S("s_add_u32 s52, s52, 262144")
    A("s_barrier")
    S("s_cmp_lg_u32 s44, 3"); S("s_cbranch_scc1 %s" % L("kv_np"))
    xpoll(S, "-1", "kx")
    A.label(L("kv_np"))
    S("s_cmp_lt_u32 s44, 64"); S("s_cbranch_scc1 %s" % L("kv_top"))
    A("s_add_u32 s27, s44, s43"); A("v_mov_b32 v2, s27"); A("s_waitcnt vmcnt(0) lgkmcnt(0)"); A("s_barrier"); kflag("kv_f2")
    if P.get("NOQAO"):
        A("s_cmp_lg_u32 s101, 0"); A("s_cbranch_scc1 %s" % L("end")); A("s_mov_b32 s101, 1"); A("s_branch %s" % L("bulk"))
    A("s_branch %s" % L("bphase"))

    LQ_EQ, LQ_EO, LQ_ST, LQ_FT = 81920, 90112, 98304, 122880
    A.label(L("qao"))
    if P.get("NOQAO"): A("s_branch %s" % L("end"))
    A("s_cmp_lg_u32 s101, 0"); A("s_cbranch_scc1 %s" % L("q_ft"))
    lane_setup(A); A("s_min_u32 s36, s22, 19"); A("s_mul_i32 s36, s36, 40"); A("s_mul_i32 s27, s21, 10"); A("s_add_u32 s36, s36, s27"); A("s_add_u32 s35, s36, 10")
    A("s_add_u32 s27, s42, %d" % LQ_FT); A("v_add_u32 v2, s27, v0")
    A.label(L("q_ftl"))
    t1_frag(A); A("ds_write_b128 v2, v[24:27]"); A("v_add_u32 v2, 1024, v2")
    A("s_add_u32 s36, s36, 1"); A("s_cmp_lt_u32 s36, s35"); A("s_cbranch_scc1 %s" % L("q_ftl"))
    A("s_waitcnt lgkmcnt(0)")
    A.label(L("q_ft"))
    S = Seq(A)
    G, R_, VH, PSX, RLA, RLB, XOA, XOB, THR, XHA, XDA, FTA = 1, 2, 3, 4, 5, 6, 7, 8, 9, 12, 13, 14
    SELR = 16
    def cvt(d, a_, b_, op="v_cvt_pk_bf16_f32"): S("%s v%d, v%d, v%d" % (op, d, a_, b_))
    S("v_lshrrev_b32 v%d, 8, v0" % G); S("v_bfe_u32 v%d, v0, 4, 4" % R_)
    S("v_add_u32 v%d, %d, v0" % (VH, LQ_EQ)); S("v_add_u32 v%d, %d, v0" % (FTA, LQ_FT))
    S("s_mul_i32 s28, s21, 320")
    S("v_mul_u32_u24 v10, 40960, v%d" % R_); S("v_lshl_add_u32 v10, v%d, 4, v10" % G); S("s_mul_i32 s27, s22, 1280"); S("s_add_u32 s29, s27, s28"); S("v_add_u32 v%d, s29, v10" % PSX)
    S("v_mul_u32_u24 v10, 1280, v%d" % G); S("s_mul_i32 s27, s22, 40960"); S("s_add_u32 s27, s27, s28"); S("v_add_u32 v10, s27, v10"); S("v_lshl_add_u32 v%d, v%d, 4, v10" % (RLA, R_))
    S("v_lshrrev_b32 v11, 2, v%d" % R_); S("v_mul_u32_u24 v15, 5120, v11"); S("v_add_u32 v10, v10, v15"); S("v_and_b32 v15, 0x30, v0"); S("v_add_u32 v%d, v10, v15" % RLB)
    S("v_and_b32 v10, 1, v%d" % G); S("v_lshlrev_b32 v10, 3, v10"); S("v_add_u32 v%d, s29, v10" % XOB); S("v_lshl_add_u32 v%d, v%d, 4, v%d" % (XOA, R_, XOB)); S("v_add_u32 v%d, v%d, v15" % (XOB, XOB))
    S("v_lshl_add_u32 v10, v11, 10, v10"); S("v_lshl_add_u32 v10, v15, 4, v10"); S("s_mul_i32 s27, s21, 5120"); S("s_and_b32 s28, s22, 15"); S("s_lshl_b32 s28, s28, 4"); S("s_add_u32 s27, s27, s28")
    S("s_lshr_b32 s28, s22, 4"); S("s_mul_i32 s28, s28, 20480"); S("s_add_u32 s27, s27, s28"); S("v_add_u32 v%d, s27, v10" % XHA)
    S("v_lshlrev_b32 v10, 13, v%d" % R_); S("v_lshl_add_u32 v10, v%d, 4, v10" % G); S("s_lshl_b32 s27, s22, 18"); S("s_lshl_b32 s28, s21, 6"); S("s_add_u32 s27, s27, s28"); S("v_add_u32 v%d, s27, v10" % XDA)
    S("s_and_b32 s58, s21, 1"); S("s_lshr_b32 s59, s21, 1")
    S("v_lshlrev_b32 v10, 2, v%d" % G); S("v_sub_u32 v10, v%d, v10" % R_); S("s_lshl_b32 s27, s58, 4"); S("v_add_u32 v%d, s27, v10" % THR)
    S("v_and_b32 v10, 16, v0"); S("s_movk_i32 s27, 0x3f80"); S("v_lshlrev_b32_e64 v10, v10, s27"); S("v_bfe_u32 v11, v0, 5, 2")
    for q in range(4):
        S("v_cmp_eq_u32 vcc, %d, v11" % q); S("v_cndmask_b32 v%d, 0, v10, vcc" % (SELR + q))
    S("s_mov_b32 s40, 0x%08x" % f2u(C1)); S("s_mov_b32 s41, s40")
    S("s_sub_u32 s44, s20, 4"); S("s_min_u32 s44, s44, 4"); S("s_mov_b32 s45, 0")
    load_srd(A, 72, KA_WR, 0); load_srd(A, 76, KA_WI, 0)
    A("s_mul_i32 s94, s44, 12"); A("s_add_u32 s94, s94, s22"); A("s_sub_u32 s94, s94, 20"); A("s_lshl_b32 s95, s94, 7"); A("s_add_u32 s95, s95, %d" % WS_TFL)
    A("s_lshl_b32 s94, s94, 2"); A("s_add_u32 s94, s94, s21"); A("s_cmp_lg_u32 s101, 0"); A("s_cselect_b32 s94, 5000, s94")
    A("s_waitcnt lgkmcnt(0)"); fin_srd(A, 72, SZ_WF); fin_srd(A, 76, SZ_WF)
    S("s_mul_i32 s48, s44, %d" % (2 * PARTX_SLOT)); S("s_add_u32 s48, s48, %d" % WS_PARTX); S("s_mov_b32 s49, %d" % (0 if P.get("PX1", 1) else PARTX_SLOT))
    S("s_lshl_b32 s51, s44, 12"); S("s_lshl_b32 s27, s101, 11"); S("s_add_u32 s51, s51, s27"); S("s_add_u32 s51, s51, %d" % WS_ARR)
    S("s_lshl_b32 s52, s22, 7"); S("s_lshl_b32 s27, s101, 12"); S("s_add_u32 s52, s52, s27"); S("s_add_u32 s52, s52, %d" % WS_CHFL)
    S("s_lshl_b32 s53, s22, 13"); S("s_add_u32 s53, s53, %d" % WS_KM)
    S("s_mul_i32 s54, s101, %d" % (WS_X3 - WS_X1)); S("s_add_u32 s54, s54, %d" % WS_X1)
    S("s_lshl_b32 s60, s22, 8"); S("s_add_u32 s60, s60, %d" % WS_KVFL)
    S("s_mul_i32 s63, s44, 65536"); S("s_add_u32 s63, s63, %d" % WS_XNH); S("s_add_u32 s64, s63, 4096")
    xpoll(S, "-1", "qx", P.get("XS", 32))
    x_dma(S, "s44", "0"); S("s_add_u32 s46, s44, 5"); x_dma(S, "s46", "40960"); S("s_waitcnt vmcnt(0)"); S("s_barrier")
    A("s_mov_b32 s65, 0"); A("s_mov_b32 s66, s44"); A("s_mov_b32 s62, 0x%x" % OOB); A("s_mov_b32 s67, 0x%x" % OOB); A("s_mov_b32 s68, 0x%x" % OOB)
    QF = [160 + 4 * i for i in range(4)]; OO = [144 + 4 * i for i in range(4)]; MX, ZX, TM, M2, AL = 176, 177, 178, 179, 180; RESN = 184; RES = 20
    KF = [72 + 4 * i for i in range(8)]; VF = [104 + 4 * i for i in range(4)]; SA, SB, PB, SM = 120, 124, 128, 48; FLG = 15
    def flag_load(E): E("v_lshlrev_b32 v10, 3, v0"); E("s_mov_b64 exec, 3"); E("buffer_load_dword v%d, v10, s[8:11], s60 offen sc1" % FLG); E("s_mov_b64 exec, -1")
    def flag_get(E): E("v_readlane_b32 s65, v%d, 0" % FLG); E("v_readlane_b32 s27, v%d, 1" % FLG); E("s_nop 3"); E("s_min_u32 s65, s65, s27")
    def xl(reg, op, both=True):
        for sw in ("v_permlane16_swap_b32", "v_permlane32_swap_b32")[:2 if both else 1]:
            S("v_mov_b32 v%d, v%d" % (TM, reg)); S("%s v%d, v%d" % (sw, reg, TM)); S("%s v%d, v%d, v%d" % (op, reg, reg, TM))
    A.label(L("q_front"))
    A("s_add_u32 s56, s66, s43"); A("s_mov_b32 s30, 0")
    A.label(L("q_kf"))
    A("s_cmp_gt_u32 s65, s56"); A("s_cbranch_scc1 %s" % L("q_kg"))
    flag_load(A); A("s_waitcnt vmcnt(0)"); flag_get(A); A("s_sleep 1")
    A("s_add_u32 s30, s30, 1"); A("s_cmp_lt_u32 s30, %d" % SPIN_MAX); A("s_cbranch_scc1 %s" % L("q_kf")); A("s_branch %s" % L("fail"))
    A.label(L("q_kg"))
    S = Seq(A); S("s_nop 1")
    S("s_lshl_b32 s27, s66, 18"); S("s_add_u32 s27, s27, s50"); S("s_add_u32 s28, s27, 4096")
    for i in range(8): S("buffer_load_dwordx4 %s, v0, s[8:11], %s offen offset:%d sc1" % (r4(KF[i]), "s28" if i >= 4 else "s27", 1024 * (i % 4)))
    S("s_lshl_b32 s28, s59, 12"); S("s_add_u32 s27, s27, s28"); S("s_add_u32 s27, s27, %d" % KV_MAT)
    for i in range(4): S("buffer_load_dwordx4 %s, v0, s[8:11], s27 offen offset:%d sc1" % (r4(VF[i]), 1024 * i))
    S("s_mul_i32 s27, s66, 40960")
    S("buffer_load_dwordx2 %s, v%d, s[16:19], s27 offen sc1" % (r2(RESN), XOA)); S("buffer_load_dwordx2 %s, v%d, s[16:19], s27 offen offset:256 sc1" % (r2(RESN + 2), XOB))
    flag_load(S)
    QA = 24
    S("v_add_u32 v11, s45, v0"); S("s_sub_u32 s45, 40960, s45")
    proj(S, 11, QA, [40 + 4 * i for i in range(6)])
    for r in range(QA, QA + 16, 2): S("v_pk_mul_f32 %s, %s, s[40:41]" % (r2(r), r2(r)))
    S("s_lshl_b32 s27, s21, 10"); S("v_add_u32 v10, s27, v%d" % VH)
    for mt in range(2):
        for i in range(4): cvt(40 + 4 * mt + i, QA + 8 * mt + i, QA + 4 + 8 * mt + i)
        S("ds_write_b128 v10, %s offset:%d" % (r4(40 + 4 * mt), mt * 4096))
    S("s_lshl_b32 s27, s58, 12"); S("v_add_u32 v10, s27, v%d" % VH)
    S("s_waitcnt vmcnt(15) lgkmcnt(0)"); S("s_barrier")
    for u in range(4): rd(S, QF[u], 10, 1024 * u)
    def arr_store(tag):
        S("s_cmp_lg_u32 s21, 0"); S("s_cbranch_scc1 %s" % L(tag))
        S("s_mov_b64 exec, 1"); S("v_mov_b32 v10, s22"); S("v_mov_b32 v11, 1")
        lst(["buffer_store_byte v11, v10, s[8:11], s62 offen"])
        S("s_mov_b64 exec, -1")
        A.label(L(tag))
    S("s_waitcnt vmcnt(0)")
    arr_store("q_fa")
    S("v_mov_b32 v11, 0x%08x" % f2u(-1e30))
    for i in range(8):
        S("v_cmp_gt_i32 vcc, %d, v%d" % (16 * (i // 4) + i % 4, THR)); S("v_cndmask_b32 v%d, 0, v11, vcc" % (SA + i))
    for u in range(4): mf32(S, SA, KF[u], QF[u], SA); mf32(S, SB, KF[4 + u], QF[u], SB)
    flag_get(S)
    S("v_max3_f32 v%d, v%d, v%d, v%d" % (MX, SA, SA + 1, SA + 2))
    for i in (3, 5): S("v_max3_f32 v%d, v%d, v%d, v%d" % (MX, MX, SA + i, SA + i + 1))
    S("v_max_f32 v%d, v%d, v%d" % (MX, MX, SA + 7)); xl(MX, "v_max_f32")
    for r in range(SA, SA + 8): S("v_sub_f32 v%d, v%d, v%d" % (r, r, MX))
    for r in range(SA, SA + 8): S("v_exp_f32 v%d, v%d" % (r, r))
    for q in range(4): cvt(PB + q, SA + 2 * q, SA + 2 * q + 1)
    S("v_add_f32 v%d, v%d, v%d" % (ZX, SA, SA + 1))
    for r in range(SA + 2, SA + 8): S("v_add_f32 v%d, v%d, v%d" % (ZX, ZX, r))
    for i in range(4): mf32(S, OO[i], VF[i], PB, "0")
    xl(ZX, "v_add_f32")
    S("s_cmp_lg_u32 s66, s44"); S("s_cbranch_scc1 %s" % L("q_back2"))
    A.label(L("q_top"))
    hq(0)
    S = Seq(A)
    S("s_add_u32 s56, s44, s43"); S("s_lshl_b32 s57, s44, 7"); S("s_mul_i32 s55, s44, 40960")
    S("s_lshl_b32 s26, s56, 18"); S("s_add_u32 s26, s26, s53"); S("s_lshl_b32 s28, s59, 11"); S("s_add_u32 s29, s26, s28"); S("s_add_u32 s29, s29, 4096")
    S("s_lshl_b32 s27, s58, 12"); S("s_add_u32 s27, s27, s28"); S("v_add_u32 v10, s27, v%d" % VH)
    poll(S, "s52", 3, "v_cmp_ge_u32 vcc, s57, v191", "cf", sleep=P.get("QS", 1))
    S = Seq(A)
    KMF = [24 + 4 * i for i in range(4)]; VM = [40, 44]
    hq(5)
    def dflag(stage):
        A("s_lshl_b32 s27, s20, 12"); A("s_lshl_b32 s28, s22, 7"); A("s_add_u32 s27, s27, s28"); A("s_add_u32 s27, s27, %d" % (WS_DFL - 3 * 4096))
        A("s_lshl_b32 s28, s101, 2"); A("s_add_u32 s28, s28, %s" % stage); A("v_mov_b32 v11, s28")
        A("s_mov_b64 exec, 1"); A("buffer_store_dword v11, v0, s[8:11], s27 offen sc1"); A("s_mov_b64 exec, -1")
    for u in range(4): S("buffer_load_dwordx4 %s, v0, s[8:11], s26 offen offset:%d sc1" % (r4(KMF[u]), 1024 * u))
    for i in range(2): S("buffer_load_dwordx4 %s, v0, s[8:11], s29 offen offset:%d sc1" % (r4(VM[i]), 1024 * i))
    def late_stores(E):
        E("s_add_u32 s28, s68, %d" % (16 * 8192))
        for T in range(2): E("buffer_store_dwordx4 %s, v%d, s[8:11], %s offen sc1" % (r4(104 + 4 * T), XDA, "s28" if T else "s68"))
        E("s_mov_b32 exec_hi, 0"); E("buffer_store_dwordx2 %s, v%d, s[8:11], s67 offen sc1" % (r2(RES), XOA))
        E("s_mov_b32 exec_lo, 0x000f000f"); E("buffer_store_dwordx2 %s, v%d, s[8:11], s67 offen offset:256 sc1" % (r2(RES + 2), XOA)); E("s_mov_b64 exec, -1")
    for u in range(4): mf32(S, SM, KMF[u], QF[u], "0" if u == 0 else SM)
    hq(6)
    S("v_max3_f32 v%d, v%d, v%d, v%d" % (M2, MX, SM, SM + 1)); S("v_max3_f32 v%d, v%d, v%d, v%d" % (M2, M2, SM + 2, SM + 3)); xl(M2, "v_max_f32", False)
    S("v_sub_f32 v%d, v%d, v%d" % (AL, MX, M2))
    for r in range(SM, SM + 4): S("v_sub_f32 v%d, v%d, v%d" % (r, r, M2))
    S("v_exp_f32 v%d, v%d" % (AL, AL))
    for r in range(SM, SM + 4): S("v_exp_f32 v%d, v%d" % (r, r))
    S("v_add_f32 v%d, v%d, v%d" % (M2, SM, SM + 1)); S("v_add_f32 v%d, v%d, v%d" % (MX, SM + 2, SM + 3)); S("v_add_f32 v%d, v%d, v%d" % (M2, M2, MX)); xl(M2, "v_add_f32", False)
    S("v_fmac_f32 v%d, v%d, v%d" % (M2, AL, ZX)); S("v_rcp_f32 v%d, v%d" % (M2, M2))
    S("v_mul_f32 v%d, v%d, v%d" % (AL, AL, M2))
    for r in range(SM, SM + 4): S("v_mul_f32 v%d, v%d, v%d" % (r, r, M2))
    cvt(SM, SM, SM + 1); cvt(SM + 1, SM + 2, SM + 3)
    for r in range(OO[0], OO[0] + 16, 2): S("v_pk_mul_f32 %s, %s, %s op_sel_hi:[1,0]" % (r2(r), r2(r), r2(AL)))
    for i in range(4): mf16(S, OO[i], VM[i // 2] + 2 * (i % 2), SM, OO[i])
    for j in range(2):
        for i in range(4): cvt(56 + 4 * j + i, OO[2 * j] + i, OO[2 * j + 1] + i)
        S("ds_write_b128 v10, %s offset:%d" % (r4(56 + 4 * j), LQ_EO - LQ_EQ + j * 1024))
    S.wait_lds_all(); S("s_barrier")
    OF = [24 + 4 * i for i in range(8)]
    hq(7)
    for u in range(4):
        for qt in range(2): rd(S, OF[4 * qt + u], VH, LQ_EO - LQ_EQ + 4096 * qt + 1024 * u)
    late_stores(S)
    S("v_mov_b64 %s, %s" % (r2(RES), r2(RESN))); S("v_mov_b64 %s, %s" % (r2(RES + 2), r2(RESN + 2)))
    A("s_add_u32 s46, s44, 10"); A("s_cmp_ge_u32 s46, 64"); A("s_cbranch_scc1 %s" % L("q_tb"))
    A("s_sub_u32 s29, 40960, s45"); x_dma(Seq(A), "s46", "s29")
    A.label(L("q_nx"))
    S("s_mov_b32 s62, s51")
    S("s_add_u32 s27, s48, %d" % (16 * 40960))
    XA = lambda pr, qt, tb: 64 + 16 * pr + 8 * qt + 4 * tb
    pend = []
    st = lambda pr: ["buffer_store_dwordx4 %s, v%d, s[8:11], %s offen offset:%d" % (r4(XA(pr, qt, 0)), PSX, "s27" if qt else "s48", 64 * pr) for qt in range(2)]
    for pr in range(5):
        for u in range(4):
            for qt in range(2):
                for tb in range(2):
                    mf32(S, XA(pr, qt, tb), breg(40 + (2 * pr + tb) * 4 + u), OF[4 * qt + u], "0" if u == 0 else XA(pr, qt, tb))
                    if u >= 1 and pend: cvt(*pend.pop(0)); cvt(*pend.pop(0))
            if u == 1 and pr: lst(st(pr - 1), S)
        pend = [(XA(pr, qt, 0) + q, XA(pr, qt, 0) + 2 * q, XA(pr, qt, 0) + 2 * q + 1) for qt in range(2) for q in range(4)]
    while pend: cvt(*pend.pop(0))
    lst(st(4), S)
    hq(8)
    S("s_add_u32 s66, s44, 5"); S("s_cmp_lt_u32 s66, 64"); S("s_cbranch_scc1 %s" % L("q_front"))
    S = Seq(A)
    def arrive(tag):
        S("s_waitcnt vmcnt(0)"); S("s_barrier"); arr_store(tag)
    arrive("q_na")
    A.label(L("q_back2"))
    A("s_sub_u32 s27, s44, 48"); A("s_lshr_b32 s29, s27, 3"); A("s_add_u32 s29, s29, 1"); A("s_and_b32 s27, s27, 0xfffffff7"); A("s_cmp_ge_u32 s27, 5"); A("s_cbranch_scc1 %s" % L("q_nf1")); A("s_cmp_lg_u32 s21, 3"); A("s_cbranch_scc1 %s" % L("q_nf1"))
    dflag("s29")
    A.label(L("q_nf1"))
    hq(9)
    poll(S, "s62", 0xff, "v_cmp_ne_u32 vcc, 0x01010101, v191", "ar", sleep=0)
    S = Seq(A)
    B0, D0 = 24, 64
    hq(10)
    for j in range(8):
        if j: S("s_add_u32 s27, s48, %d" % (j * 5120))
        S("buffer_load_dwordx4 %s, v%d, s[8:11], %s offen sc1" % (r4(B0 + 4 * j), RLA, "s27" if j else "s48"))
        if j % 4 == 0: S("buffer_load_dwordx4 %s, v%d, s[8:11], %s offen offset:256 sc1" % (r4(B0 + 32 + j), RLB, "s27" if j else "s48"))
    XV = 72
    for q in range(4): S("v_lshlrev_b32 v%d, 16, v%d" % (XV + 2 * q, RES + q)); S("v_and_b32 v%d, 0xffff0000, v%d" % (XV + 2 * q + 1, RES + q))
    S("s_add_u32 s67, s55, s54")
    for j in range(8):
        mf32(S, D0, SELR, B0 + 4 * j, "0" if j == 0 else D0)
        if j % 4 == 0: mf32(S, D0 + 4, SELR, B0 + 32 + j, "0" if j == 0 else D0 + 4)
    hq(11)
    for sh in (8, 4):
        for q in range(4): S("v_add_f32_dpp v%d, v%d, v%d row_ror:%d row_mask:0xf bank_mask:0xf" % (D0 + 4 + q, D0 + 4 + q, D0 + 4 + q, sh))
    for q in range(4): S("v_pk_add_f32 %s, %s, %s" % (r2(XV + 2 * q), r2(XV + 2 * q), r2(D0 + 2 * q)))
    for q in range(4): cvt(RES + q, XV + 2 * q, XV + 2 * q + 1)
    for q in range(4): S("v_lshlrev_b32 v%d, 16, v%d" % (XV + 2 * q, RES + q)); S("v_and_b32 v%d, 0xffff0000, v%d" % (XV + 2 * q + 1, RES + q))
    ME, DV = 80, 84
    def wsum(dst, src):
        S("v_pk_add_f32 %s, %s, %s" % (r2(92), r2(src), r2(src + 2))); S("v_pk_add_f32 %s, %s, %s" % (r2(94), r2(src + 4), r2(src + 6)))
        S("v_add_f32 v92, v92, v93"); S("v_add_f32 v94, v94, v95"); S("v_fma_f32 v%d, v94, 0.5, v92" % dst) if False else None
        S("v_mul_f32 v94, 0x3e800000, v94"); S("v_add_f32 v%d, v92, v94" % dst)
        for sh in (8, 4, 2, 1): S("v_add_f32_dpp v%d, v%d, v%d row_ror:%d row_mask:0xf bank_mask:0xf" % (dst, dst, dst, sh))
        xl(dst, "v_add_f32", False)
    wsum(ME, XV); S("v_mul_f32 v%d, 0x%08x, v%d" % (ME, f2u(1 / 160), ME))
    for q in range(4): S("v_pk_add_f32 %s, %s, %s op_sel_hi:[1,0] neg_lo:[0,1] neg_hi:[0,1]" % (r2(DV + 2 * q), r2(XV + 2 * q), r2(ME)))
    for q in range(4): S("v_pk_mul_f32 %s, %s, %s" % (r2(DV + 2 * q), r2(DV + 2 * q), r2(DV + 2 * q)))
    wsum(ME + 1, DV)
    S("s_lshl_b32 s27, s21, 3"); S("s_add_u32 s27, s27, %d" % LQ_ST); S("v_mov_b32 v10, s27"); S("v_mov_b32 v11, %d" % LQ_ST)
    S("ds_write_b64 v10, %s" % r2(ME)); S.wait_lds_all(); S("s_barrier")
    rd(S, DV, 11, 0); rd(S, DV + 4, 11, 16)
    S("v_pk_add_f32 %s, %s, %s" % (r2(ME), r2(DV), r2(DV + 2))); S("v_pk_add_f32 %s, %s, %s" % (r2(92), r2(DV + 4), r2(DV + 6))); S("v_pk_add_f32 %s, %s, %s" % (r2(ME), r2(ME), r2(92)))
    S("v_mul_f32 v%d, 0x3e800000, v%d" % (ME, ME))
    for e in range(4): S("v_sub_f32 v%d, v%d, v%d" % (DV + 2 * e, DV + 2 * e, ME))
    for e in range(4): S("v_mul_f32 v%d, 0x43200000, v%d" % (DV + 2 * e + 1, DV + 2 * e))
    for e in range(4): S("v_fmac_f32 v%d, v%d, v%d" % (ME + 1, DV + 2 * e, DV + 2 * e + 1))
    S("v_mov_b32 v%d, 0x3727c5ac" % (ME + 2)); S("v_fmac_f32 v%d, 0x3acccccd, v%d" % (ME + 2, ME + 1)); S("v_rsq_f32 v%d, v%d" % (ME + 2, ME + 2))
    for q in range(4): S("v_pk_add_f32 %s, %s, %s op_sel_hi:[1,0] neg_lo:[0,1] neg_hi:[0,1]" % (r2(XV + 2 * q), r2(XV + 2 * q), r2(ME)))
    for q in range(4): S("v_pk_mul_f32 %s, %s, %s op_sel_hi:[1,0]" % (r2(XV + 2 * q), r2(XV + 2 * q), r2(ME + 2)))
    for q in range(4): cvt(XV + q, XV + 2 * q, XV + 2 * q + 1, "v_cvt_pk_f16_f32")
    lst(["s_mov_b32 exec_hi, 0", "buffer_store_dwordx2 %s, v%d, s[8:11], s63 offen" % (r2(XV), XHA), "s_mov_b32 exec_lo, 0x000f000f", "buffer_store_dwordx2 %s, v%d, s[8:11], s64 offen" % (r2(XV + 2), XHA), "s_mov_b64 exec, -1"], S)
    hq(12)
    S("s_add_u32 s62, s51, 20480"); arrive("q_nb")
    hq(13)
    A("s_cmp_ge_u32 s22, 20"); A("s_cbranch_scc1 %s" % L("q_tab"))
    poll(S, "s62", 0xff, "v_cmp_ne_u32 vcc, 0x01010101, v191", "ar", sleep=0)
    hq(14)
    A("s_cmp_ge_u32 s21, 2"); A("s_cbranch_scc1 %s" % L("q_nd"))
    S = Seq(A)
    S("s_mul_i32 s27, s21, 20480"); S("s_add_u32 s27, s27, s63")
    for f in range(20):
        S("buffer_load_dwordx4 %s, v0, s[8:11], s27 offen offset:%d sc1" % (r4(24 + 4 * f), (f % 4) * 1024))
        if f % 4 == 3: S("s_add_u32 s27, s27, 4096")
    TB = [112 + 4 * i for i in range(8)]
    sq = [(ks, T) for ks in range(20) for T in range(2)]
    def trd(i):
        if i < 40: rd(S, TB[i % 8], FTA, (sq[i][1] * 20 + sq[i][0]) * 1024)
    for i in range(7): trd(i)
    S("s_lshl_b32 s27, s44, 7"); S("s_mul_i32 s68, s101, %d" % XD_LAYER); S("s_add_u32 s68, s68, s27"); S("s_add_u32 s68, s68, %d" % WS_XD)
    for i, (ks, T) in enumerate(sq):
        S("v_mfma_f32_16x16x32_f16 %s, %s, %s, %s" % (r4(104 + 4 * T), r4(24 + 4 * ks), r4(TB[i % 8]), "0" if ks == 0 else r4(104 + 4 * T)))
        trd(i + 7)
    S("s_nop 7")
    A.label(L("q_nd"))
    hq(15)
    A("s_sub_u32 s27, s44, 54"); A("s_cmp_ge_u32 s27, 5"); A("s_cbranch_scc1 %s" % L("q_nt"))
    A("s_sub_u32 s27, 40960, s45"); idft_table(Seq(A), "s27", "v0", "s21")
    if P.get("FP", 0):
        A("s_sub_u32 s27, s81, 1"); A("s_cmp_ge_u32 s27, 159"); A("s_cbranch_scc1 %s" % L("q_nt"))
        A("v_bfe_u32 v190, v0, 4, 3"); A("v_lshlrev_b32 v190, 12, v190"); A("v_bfe_u32 v191, v0, 7, 1"); A("v_mul_u32_u24 v191, 1280, v191"); A("v_add_u32 v190, v190, v191")
        A("s_lshr_b32 s31, s81, 4"); A("s_lshl_b32 s31, s31, 7"); A("s_add_u32 s31, s31, %d" % WS_DFL); A("s_lshl_b32 s32, s101, 2"); A("s_add_u32 s32, s32, 1")
        A("s_mov_b64 exec, 0x1f1f"); A("buffer_load_dword v191, v190, s[8:11], s31 offen sc1"); A("s_waitcnt vmcnt(0)"); A("v_cmp_gt_u32 vcc, s32, v191"); A("s_mov_b64 exec, -1")
        A("s_cbranch_vccnz %s" % L("q_nt"))
        A("v_lshlrev_b32 v24, 3, v0"); A("s_lshl_b32 s27, s81, 14"); A("s_lshl_b32 s28, s21, 12"); A("s_add_u32 s28, s28, s27"); A("s_add_u32 s28, s28, %d" % WS_WT)
        A("s_mov_b32 exec_hi, 0"); A("buffer_load_dword v25, v24, s[8:11], s28 offen sc1")
        A("s_and_b32 s28, s21, 1"); A("s_lshl_b32 s28, s28, 13"); A("s_add_u32 s27, s27, s28"); A("s_lshr_b32 s28, s21, 1"); A("s_mul_i32 s28, s28, %d" % (320 * 8192)); A("s_add_u32 s27, s27, s28")
        A("s_mul_i32 s28, s101, %d" % XD_LAYER); A("s_add_u32 s27, s27, s28"); A("s_add_u32 s27, s27, %d" % WS_XD)
        A("s_mov_b32 exec_hi, 0xffff"); A("buffer_load_dword v25, v24, s[8:11], s27 offen sc1"); A("s_mov_b64 exec, -1")
    A.label(L("q_nt"))
    A("s_add_u32 s48, s48, s49"); A("s_sub_u32 s49, 0, s49"); A("s_add_u32 s51, s51, 128")
    A("s_add_u32 s44, s44, 5"); A("s_cmp_lt_u32 s44, 64"); A("s_cbranch_scc1 %s" % L("q_top"))
    A("s_cmp_ge_u32 s21, 2"); A("s_cbranch_scc1 %s" % L("q_e1"))
    late_stores(A); A("s_waitcnt vmcnt(2)"); A("s_barrier"); A("s_cmp_lg_u32 s21, 0"); A("s_cbranch_scc1 %s" % L("bphase"))
    dflag("3"); A("s_branch %s" % L("bphase"))
    def tpoll(tag):
        A("s_cmp_lg_u32 s101, 0"); A("s_cbranch_scc1 %s" % L(tag + "2"))
        A("v_lshlrev_b32 v190, 3, v0"); A("s_mov_b32 exec_hi, 0x0fffffff"); A("s_mov_b32 s28, %d" % WS_TFL); A("s_mov_b32 s30, 0")
        A.label(L(tag + "l"))
        A("buffer_load_dword v191, v190, s[8:11], s28 offen sc1")
        A("s_add_u32 s30, s30, 1"); A("s_cmp_ge_u32 s30, %d" % (4 * SPIN_MAX)); A("s_cbranch_scc1 %s" % L("fail"))
        A("s_waitcnt vmcnt(0)"); A("v_cmp_ne_u32 vcc, 0x01010101, v191"); A("s_cbranch_vccz %s" % L(tag + "d")); A("s_sleep 8"); A("s_branch %s" % L(tag + "l"))
        A.label(L(tag + "d"))
        A("s_mov_b64 exec, -1")
        A.label(L(tag + "2"))
    A.label(L("q_tb"))
    A("s_cmp_ge_u32 s44, 59"); A("s_cbranch_scc1 %s" % L("q_nx"))
    tpoll("q_tp")
    A("s_sub_u32 s27, 40960, s45"); idft_table(Seq(A), "s27", "v0", "s21"); A("s_branch %s" % L("q_nx"))
    A.label(L("q_tab"))
    A("s_cmp_ge_u32 s44, 59"); A("s_cbranch_scc1 %s" % L("q_nd"))
    if P.get("PX1", 1): poll(A, "s62", 0xff, "v_cmp_ne_u32 vcc, 0x01010101, v191", "ar", sleep=1)
    A("s_cmp_ge_u32 s94, 2400"); A("s_cbranch_scc1 %s" % L("q_nd"))
    for r_ in range(24): A("v_mov_b32 v%d, v%d" % (32 + r_, r_))
    lane_setup(A)
    A("s_cmp_ge_u32 s94, 800"); A("s_cbranch_scc1 %s" % L("q_wt"))
    A("s_mov_b32 s36, s94"); t2_frag(A); A("s_branch %s" % L("q_te"))
    A.label(L("q_wt"))
    A("s_sub_u32 s37, s94, 800"); A("s_lshr_b32 s36, s37, 8"); A("s_and_b32 s37, s37, 255"); wt_task(A, L("q_ws"), "s[90:91]")
    A.label(L("q_te"))
    A("s_add_u32 s94, s94, 240"); A("s_mov_b32 s40, 0x%08x" % f2u(C1)); A("s_mov_b32 s41, s40")
    A("s_cmp_lt_u32 s94, 2400"); A("s_cbranch_scc1 %s" % L("q_tr"))
    A("s_waitcnt vmcnt(0)"); A("v_mov_b32 v1, s21"); A("v_mov_b32 v2, 1"); A("s_mov_b64 exec, 1"); A("buffer_store_byte v2, v1, s[8:11], s95 offen sc1"); A("s_mov_b64 exec, -1")
    A.label(L("q_tr"))
    A("s_nop 1")
    for r_ in range(1, 24): A("v_mov_b32 v%d, v%d" % (r_, 32 + r_))
    A("s_branch %s" % L("q_nd"))
    A.label(L("q_e1"))
    A("s_barrier"); late_stores(A)

    A.label(L("bphase"))
    ht(3)
    def gbar(ph, between=None, ng=6):
        base = WS_BAR2 + ph * 4096
        lw = A.newlabel(L("gb")); ld = A.newlabel(L("gb")); la = A.newlabel(L("gb"))
        def spin(addr_setup, lanes, want):
            lp = A.newlabel(L("gs"))
            A("s_mov_b64 exec, 0x%x" % lanes); addr_setup(); A("s_mov_b32 s30, 0")
            A.label(lp)
            A("buffer_load_dword v191, v190, s[8:11], s28 offen sc1")
            A("s_add_u32 s30, s30, 1"); A("s_cmp_ge_u32 s30, %d" % (SPIN_MAX * 4)); A("s_cbranch_scc1 %s" % L("fail"))
            A("s_waitcnt vmcnt(0)"); A("v_cmp_ne_u32 vcc, 0x%x, v191" % want); A("s_cbranch_vccnz %s" % lp)
        if ng < 6: A("s_cmp_ge_u32 s82, %d" % ng); A("s_cbranch_scc1 %s" % la)
        A("s_waitcnt vmcnt(0) lgkmcnt(0)"); A("s_barrier")
        A("s_cmp_lg_u32 s83, 0"); A("s_cbranch_scc1 %s" % la)
        A("s_mov_b32 s23, s85"); A("s_add_u32 s28, s86, %d" % base); A("s_lshl_b32 s27, s82, 7")
        A("s_mov_b64 exec, 1"); A("s_add_u32 s31, s27, s84"); A("v_mov_b32 v190, s31"); A("v_mov_b32 v191, 1")
        lst(["buffer_store_byte v191, v190, s[8:11], s28 offen"])
        A("s_cmp_lg_u32 s84, 31"); A("s_cbranch_scc1 %s" % lw)
        A("s_mov_b64 exec, -1"); A("v_mbcnt_lo_u32_b32 v189, -1, 0")
        spin(lambda: A("v_lshl_add_u32 v190, v189, 2, s27"), 0xff, 0x01010101)
        A("s_mov_b64 exec, 1"); A("v_mov_b32 v190, s27"); A("v_mov_b32 v191, 1"); A("buffer_store_dword v191, v190, s[8:11], s28 offen offset:1024 sc1")
        A.label(lw)
        A("s_mov_b64 exec, -1")
        A.label(la)
        if between: between()
        A("s_cmp_lg_u32 s83, 0"); A("s_cbranch_scc1 %s" % ld)
        A("s_add_u32 s28, s86, %d" % base); A("v_mbcnt_lo_u32_b32 v189, -1, 0")
        spin(lambda: A("v_lshlrev_b32 v190, 7, v189\nv_add_u32 v190, 1024, v190"), (1 << ng) - 1, 1)
        A("s_mov_b64 exec, -1")
        A.label(ld)
        A("s_barrier")
    A("s_mov_b32 s16, s98"); A("s_and_b32 s17, s99, 0xffff")
    A("s_cmp_eq_u32 s101, 1"); A("s_cbranch_scc1 %s" % L("osrd"))
    A("s_add_u32 s16, s8, %d" % WS_X2); A("s_addc_u32 s17, s9, 0")
    A.label(L("osrd"))
    def restore():
        A("s_add_u32 s20, s82, 2"); A("s_mov_b32 s21, s83"); A("s_mov_b32 s22, s84"); A("s_mov_b32 s23, s85")
    def tid():
        A("v_mbcnt_lo_u32_b32 v0, -1, 0"); A("v_mbcnt_hi_u32_b32 v0, -1, v0"); A("s_lshl_b32 s27, s83, 6"); A("v_add_u32 v0, s27, v0"); A("s_mov_b32 s2, s81")
    fpre, fmain = fft2(A, L("fft"), 81920, hb)
    def dpoll(stage):
        ld = A.newlabel(L("dp")); lp = A.newlabel(L("dp"))
        A("s_cmp_lg_u32 s83, 0"); A("s_cbranch_scc1 %s" % ld)
        A("v_and_b32 v190, 7, v0"); A("v_lshlrev_b32 v190, 12, v190"); A("v_bfe_u32 v191, v0, 3, 1"); A("v_mul_u32_u24 v191, 1280, v191"); A("v_add_u32 v190, v190, v191")
        A("s_mov_b64 exec, 0x1f1f")
        A("s_lshr_b32 s31, s34, 5"); A("s_lshl_b32 s31, s31, 7"); A("s_add_u32 s31, s31, %d" % WS_DFL); A("s_lshl_b32 s32, s101, 2"); A("s_add_u32 s32, s32, %d" % (stage + 1)); A("s_mov_b32 s30, 0")
        A.label(lp)
        A("buffer_load_dword v191, v190, s[8:11], s31 offen sc1")
        A("s_add_u32 s30, s30, 1"); A("s_cmp_ge_u32 s30, %d" % (SPIN_MAX * 4)); A("s_cbranch_scc1 %s" % L("fail"))
        if stage == 1: A("s_sleep 4")
        A("s_waitcnt vmcnt(0)"); A("v_cmp_gt_u32 vcc, s32, v191"); A("s_cbranch_vccnz %s" % lp)
        A("s_mov_b64 exec, -1")
        A.label(ld)
        A("s_barrier")
        if stage == 2: ht2(8)
    A("s_cmp_ge_u32 s82, 1"); A("s_cbranch_scc1 %s" % L("tabok2"))
    tpoll("b_tp")
    for hf in range(2): idft_table(Seq(A), "%d" % (40960 * hf), "v0", "s83")
    A.label(L("tabok2"))
    def early():
        A("s_min_u32 s28, s89, 63"); A("s_lshl_b32 s29, s28, 12"); A("s_add_u32 s29, s29, %d" % WS_STAT); A("v_lshlrev_b32 v190, 3, v102")
        A("s_mov_b32 exec_hi, 0"); A("buffer_load_dword v191, v190, s[8:11], s29 offen sc1"); A("s_mov_b64 exec, 1")
        A("s_mul_i32 s28, s28, 40960"); A("s_lshl_b32 s29, s88, 7"); A("s_add_u32 s29, s29, s28"); A("buffer_load_dword v191, v190, s[16:19], s29 offen sc1")
        A("s_lshl_b32 s29, s88, 11"); A("s_add_u32 s29, s29, s28"); A("s_add_u32 s29, s29, %d" % (WS_XNF + XNF_LAYER)); A("buffer_load_dword v191, v190, s[8:11], s29 offen sc1")
        A("s_mul_i32 s28, s101, %d" % XNF_LAYER); A("s_min_u32 s29, s2, 159"); A("s_lshl_b32 s29, s29, 14"); A("s_add_u32 s28, s28, s29"); A("s_lshl_b32 s29, s83, 9"); A("s_add_u32 s28, s28, s29"); A("s_add_u32 s28, s28, %d" % WS_ZF)
        A("s_cmp_lt_u32 s2, 160"); A("s_cselect_b32 s28, s28, 0x%x" % OOB); A("buffer_load_dword v191, v190, s[8:11], s28 offen sc1")
        A("s_mov_b64 exec, -1")
    tid(); fpre()
    fmain(dpoll, early, P.get('DRY', 0)); ht2(9)
    hb(11); gbar(1); ht2(10); hb(12)
    A("s_cmp_ge_u32 s89, 64"); A("s_cbranch_scc1 %s" % L("noid"))
    A("v_mbcnt_lo_u32_b32 v0, -1, 0"); A("v_mbcnt_hi_u32_b32 v0, -1, v0"); A("s_mov_b32 s23, s85")
    idft(A, lambda x: L("idend") if (x == "end" and (P.get("HT") or P.get("HD"))) else L(x), lst, L("fail"), SPIN_MAX, hb)
    A.label(L("noid"))
    if P.get("HT") or P.get("HD"): A.label(L("idend"))
    restore(); ht(5)
    A("s_cmp_eq_u32 s101, 1"); A("s_cbranch_scc1 %s" % L("end"))
    A("s_mov_b32 s101, 1")
    A("v_mbcnt_lo_u32_b32 v0, -1, 0"); A("v_mbcnt_hi_u32_b32 v0, -1, v0"); A("v_lshlrev_b32 v0, 4, v0")
    A("s_waitcnt lgkmcnt(0)"); A("s_barrier")
    A("s_branch %s" % L("bulk"))
    flush_ool()
    A.label(L("fail"))
    A("s_mov_b64 exec, 1"); A("v_mov_b32 v12, 1"); A("v_mov_b32 v13, 48"); A("buffer_atomic_add v12, v13, s[12:15], 0 offen")
    A.label(L("end"))
    A("s_endpgm")
    return k
```

```python
import struct, copy
from asmlib import *
from layout import *
from seq import *


def f2u(x):
    return struct.unpack('<I', struct.pack('<f', x))[0]


C1 = (128 ** -0.5) * 1.4426950408889634
SPIN_MAX = 60000
OOB = 0x10000000

L_K = 0
L_MR = 8192
L_EV = L_MR
L_ML = L_MR + 5120
L_EQ = L_ML + 5120
L_EK = L_EQ + 2304
L_EO = L_ML
L_JUNK = L_EK + 2304
L_FL = L_JUNK + 256
L_W = 24576
NLW = 17
LW_WAVE = NLW * 2048
assert L_FL + 64 <= L_W and L_W + 4 * LW_WAVE <= 163840

L16, IDX, EW, ER, OWA, VW, MRA, PSB, RL, PA8, T0, T1 = range(12)
KRA = L16
AV, AQ, AK = 12, 20, 28
M = [36 + 4 * t for t in range(5)]
LB = [56, 64]
X0, X1 = 72, 76
VT = [80, 84]
WR0 = 88

MATS = {'q': 0, 'k': 1, 'v': 2}
ACC = {'q': AQ, 'k': AK, 'v': AV}
import sys
NV = ([int(a_[3:]) for a_ in sys.argv if a_.startswith("NV=")] + [2])[0]
VL = ([int(a_[3:]) for a_ in sys.argv if a_.startswith("VL=")] + [0])[0]
VT_ = list(range(5 - NV, 5)) if (VL and NV >= 2) else list(range(NV))
SEQ = [(m, tl, 0, t) for t in range(5) for m in ('qkv' if t in VT_ else 'qk') for tl in range(2)] + [(m, tl, 1, t) for m in 'qkv' for t in range(5) for tl in range(2)] + \
      [('v', tl, 0, t) for t in range(5) if t not in VT_ for tl in range(2)]
NLOC = 20 + 2 * NV
SC2 = ([int(a_[4:]) for a_ in sys.argv if a_.startswith("SC2=")] + [1])[0] and NV == 2
LDSI = [0, 1] + ([i for i in range(5, 41) if i % 5 in (0, 2)] if SC2 else [i for i in range(60) if i % 3 == 2 and 5 <= i <= 47])
assert len(LDSI) == NLW
_regs = [WR0 + 8 * i for i in range(21)] + [256 + 8 * i for i in range(32)]
WREG = {}
for i in range(60):
    if i not in LDSI: WREG[i] = _regs.pop()
WO = {(T, tp): _regs.pop() for T in range(5) for tp in range(2)}
assert not _regs

FL_ = {0: [], 1: [], 2: [0, 1, 2], 3: [3, 4]}
FR_ = {0: [0, 1], 1: [2], 2: [3], 3: [4]}


def chain_load(A):
    A("s_mul_i32 s29, s22, %d" % WQKP_H); A("s_mul_i32 s28, s21, %d" % WQKP_W); A("s_add_u32 s29, s29, s28")
    A("s_mul_i32 s28, s20, 10240"); A("s_add_u32 s30, s29, s28"); A("s_sub_u32 s31, s29, s28"); A("s_add_u32 s31, s31, 10240")
    A("s_mul_i32 s26, s21, %d" % LW_WAVE); A("s_add_u32 s26, s26, %d" % L_W)
    for i, (m, tl, rem, t) in enumerate(SEQ):
        off = WS_WQKP + MATS[m] * 40960 + tl * 20480 + t * 2048
        A("s_add_u32 s27, s%d, %d" % (31 if rem else 30, off))
        if i in LDSI:
            A("s_add_u32 m0, s26, %d" % (LDSI.index(i) * 2048)); A("s_nop 0")
            for hf in range(2): A("buffer_load_dwordx4 v%d, s[8:11], s27 offen offset:%d lds" % (L16, hf * 1024))
        else:
            for hf in range(2): A("buffer_load_dwordx4 %s, v%d, s[8:11], s27 offen offset:%d" % (ureg(WREG[i] + 4 * hf, 4), L16, hf * 1024))
    A("s_lshl_b32 s28, s20, 2"); A("s_add_u32 s28, s28, s21"); A("s_mul_i32 s28, s28, 20480"); A("s_mul_i32 s29, s22, 163840"); A("s_add_u32 s29, s29, s28")
    for T in range(5):
        A("s_add_u32 s27, s29, %d" % (WS_WOC + T * 4096))
        for u in range(4): A("buffer_load_dwordx4 %s, v%d, s[8:11], s27 offen offset:%d" % (ureg(WO[T, u // 2] + 4 * (u % 2), 4), L16, u * 1024))


def chain_body(A, P, L, ht):
    g, r, i_, p, a, b = range(36, 42)
    A("v_lshrrev_b32 v%d, 8, v0" % g); A("v_bfe_u32 v%d, v0, 4, 4" % r); A("v_bfe_u32 v%d, v0, 4, 3" % i_); A("v_bfe_u32 v%d, v0, 7, 1" % p)
    A("s_mov_b32 s36, 0x00ff00ff"); A("s_mov_b32 s37, 0x00ff00ff"); A("s_not_b64 s[18:19], s[36:37]")
    A("v_mov_b32 v%d, 0x4444" % IDX); A("v_mov_b32 v%d, 0xeeee" % a); A("v_cndmask_b32_e64 v%d, v%d, v%d, s[18:19]" % (IDX, IDX, a))
    A("v_and_b32 v%d, 1, v%d" % (a, g)); A("v_lshlrev_b32 v%d, 2, v%d" % (a, a)); A("v_lshrrev_b32 v%d, 1, v%d" % (b, g)); A("v_add_u32 v%d, v%d, v%d" % (a, a, b))
    A("v_mul_u32_u24 v%d, 288, v%d" % (a, a)); A("v_lshl_add_u32 v%d, v%d, 2, v%d" % (a, r, a)); A("s_lshl_b32 s27, s21, 6"); A("v_add_u32 v%d, s27, v%d" % (EW, a))
    A("v_mul_u32_u24 v%d, 288, v%d" % (a, i_)); A("v_lshl_add_u32 v%d, v%d, 4, v%d" % (ER, g, a))
    A("s_lshr_b32 s27, s21, 1"); A("s_lshl_b32 s27, s27, 10"); A("s_and_b32 s28, s21, 1"); A("s_lshl_b32 s28, s28, 3"); A("s_add_u32 s27, s27, s28"); A("s_add_u32 s27, s27, %d" % L_EO)
    A("v_and_b32 v%d, 0x37f, v0" % a); A("v_add_u32 v%d, s27, v%d" % (OWA, a))
    A("s_mul_i32 s27, s21, %d" % LW_WAVE); A("s_add_u32 s27, s27, %d" % L_W); A("v_add_u32 v%d, s27, v0" % VW)
    A("v_and_b32 v%d, 0x200, v0" % MRA)
    for src, dst in ((6, 8), (4, 7), (5, 6), (8, 5), (7, 4)):
        A("v_bfe_u32 v%d, v0, %d, 1" % (a, src)); A("v_lshl_or_b32 v%d, v%d, %d, v%d" % (MRA, a, dst, MRA))
    A("s_lshl_b32 s27, s21, 13"); A("s_lshl_b32 s28, s22, 5"); A("s_add_u32 s27, s27, s28"); A("s_add_u32 s27, s27, %d" % PART_T4)
    A("v_lshrrev_b32 v%d, 7, v0" % a); A("v_lshlrev_b32 v%d, 10, v%d" % (a, a)); A("v_lshl_add_u32 v%d, v%d, 2, v%d" % (a, i_, a)); A("v_add_u32 v%d, s27, v%d" % (PSB, a))
    A("v_lshrrev_b32 v%d, 7, v0" % a); A("v_mul_u32_u24 v%d, %d, v%d" % (a, PART_H, a)); A("v_lshl_add_u32 v%d, v%d, 4, v%d" % (RL, i_, a))
    A("v_lshlrev_b32 v%d, 3, v0" % PA8)
    A("s_mul_i32 s34, s20, %d" % PART_X); A("s_add_u32 s34, s34, %d" % WS_PART)
    A("s_lshl_b32 s35, s21, 10"); A("s_mul_i32 s27, s22, %d" % PART_H); A("s_add_u32 s35, s35, s27")
    A("s_and_b32 s27, s22, 1"); A("s_bfe_u32 s28, s22, 0x10001"); A("s_bfe_u32 s29, s22, 0x10002")
    A("s_lshl_b32 s30, s27, 2"); A("s_lshl_b32 s31, s28, 1"); A("s_or_b32 s30, s30, s31"); A("s_or_b32 s30, s30, s29"); A("s_and_b32 s31, s22, 0x18"); A("s_or_b32 s30, s30, s31")
    A("s_lshl_b32 s33, s30, 7"); A("s_lshl_b32 s32, s22, 7")
    if P.get("RS", 0): A("s_mov_b32 s2, s32"); A("s_mov_b32 s42, s33")
    else: A("s_cmp_eq_u32 s21, 0"); A("s_cbranch_scc1 %s" % L("c_r0"))
    A("s_lshl_b32 s32, s22, 10"); A("s_add_u32 s32, s32, %d" % PART_T4)
    A("s_lshl_b32 s33, s27, 4"); A("s_lshl_b32 s28, s28, 8"); A("s_or_b32 s33, s33, s28"); A("s_lshl_b32 s29, s29, 7"); A("s_or_b32 s33, s33, s29")
    A("s_bfe_u32 s28, s22, 0x10003"); A("s_lshl_b32 s28, s28, 5"); A("s_or_b32 s33, s33, s28"); A("s_bfe_u32 s28, s22, 0x10004"); A("s_lshl_b32 s28, s28, 9"); A("s_or_b32 s33, s33, s28")
    A("s_add_u32 s33, s33, 4096")
    A.label(L("c_r0"))
    A("s_mul_i32 s41, s20, %d" % (4 * ML_S)); A("s_add_u32 s41, s41, %d" % (WS_ML + ML_O))
    A("s_lshl_b32 s46, s20, 17"); A("s_add_u32 s46, s46, %d" % WS_MR); A("s_add_u32 s46, s46, s25"); A("s_xor_b32 s47, s46, 0x20000")
    A("s_mov_b32 s38, 0x00ff00ff"); A("s_mov_b32 s39, 0"); A("s_mov_b32 s62, 0x%08x" % (0x00ff00ff if P.get("RS", 0) else 0x00030003)); A("s_mov_b32 s63, 0x00030003")
    A("s_mov_b32 s40, 0x%08x" % f2u(C1)); A("s_movk_i32 s45, 0x3f80")
    A("s_mov_b32 s68, 0x%08x" % f2u(2.0 ** -24)); A("s_mov_b32 s69, 0x%08x" % (f2u(2.0 ** 24) - f2u(2.0 ** -24)))
    A("s_lshl_b32 s51, s22, 7"); A("s_add_u32 s52, s51, %d" % WS_CHFL); A("s_lshl_b32 s51, s22, 8"); A("s_add_u32 s51, s51, %d" % WS_KVFL)
    A("s_mov_b32 s24, 0x3f803f80"); A("s_mov_b32 s25, 0x3f803f80"); A("s_mov_b32 s16, 0x3f003f00"); A("s_mov_b32 s17, 0x3f003f00")
    A("s_lshl_b32 s53, s22, 13"); A("s_add_u32 s53, s53, %d" % WS_KM)
    A("s_lshl_b32 s27, s20, 12"); A("s_add_u32 s53, s53, s27"); A("s_lshl_b32 s27, s20, 2"); A("s_add_u32 s52, s52, s27")
    A("s_cmp_eq_u32 s20, 0"); A("s_cselect_b64 s[66:67], -1, 0")
    A("s_mov_b32 s44, 0"); A("s_mov_b32 s54, 0"); A("s_mov_b32 s71, 0"); A("s_mov_b32 s4, 0x%x" % OOB); A("s_mov_b32 s60, 0x%x" % OOB); A("s_mov_b32 s64, 0x%x" % OOB); A("s_mov_b32 s65, 0x%x" % OOB)
    A("v_mov_b32 v%d, %d" % (a, L_FL)); A("v_mov_b64 v[%d:%d], 0" % (T0, T1)); A("ds_write_b64 v%d, v[%d:%d]" % (a, T0, T1))
    A("s_waitcnt vmcnt(0) lgkmcnt(0)"); A("s_barrier")
    ht(1)
    A.label(L("c_disp"))
    A("s_cmp_lg_u32 s23, 0"); A("s_cbranch_scc1 %s" % L("c_slow"))
    for md in (0, 1):
        if md: A.label(L("c_slow"))
        for w in range(1, 4):
            A("s_cmp_eq_u32 s21, %d" % w); A("s_cbranch_scc1 %s" % L("c%d_%d_layer" % (md, w)))
        for w in range(4): chain_wave(A, P, L, ht, w, md)


def chain_wave(A, P, L0, ht, w, md):
    L = lambda x: L0("c%d_%d_%s" % (md, w, x))
    sc = " sc1" if md else ""
    ool = []
    ST = P.get("STAMP") and not md
    TR = ST and "TS" in P
    SOLO = P.get("SOLO")

    def stamp(S, i):
        if ST and not TR: S("%s s[%d:%d]" % ("s_memrealtime" if P.get("RAW") else "s_memtime", 72 + 2 * i, 73 + 2 * i))
    def hook(n, t):
        k_, r_ = divmod(n - P["TS"], P.get("TD", 16))
        if r_ == 0 and 0 <= k_ <= 8: A("s_memtime s[%d:%d]" % (72 + 2 * k_, 73 + 2 * k_)); S.tailv = 0
        if P.get("LIST") == w + 1: print(n, estimate(A.lines[top0:]), t)
    def br(t): return "s_nop 0" if SOLO else t

    def smf(S, acc, a_, b_): S("v_smfmac_f32_16x16x64_bf16 %s, %s, %s, v%d" % (r4(acc), r4(a_), ureg(b_, 8), IDX))
    def mf32(S, acc, a_, b_, c): S("v_mfma_f32_16x16x32_bf16 %s, %s, %s, %s" % (r4(acc), ureg(a_, 4), ureg(b_, 4), c if isinstance(c, str) else r4(c)))
    def mf16(S, acc, a_, b_, c): S("v_mfma_f32_16x16x16_bf16 %s, %s, %s, %s" % (r4(acc), r2(a_), r2(b_), c if isinstance(c, str) else r4(c)))
    holds = {}
    def rd(S, dst, areg, off):
        holds[dst] = (areg, off)
        return S("ds_read_b128 %s, v%d offset:%d" % (r4(dst), areg, off))
    def zero(S, q): S("v_mov_b64 %s, 0" % r2(q)); S("v_mov_b64 %s, 0" % r2(q + 2))
    def zitems(S, q): return [lambda r=r: S("v_mov_b64 %s, 0" % r2(r)) for r in (q, q + 2)]
    def cvt(d, a_, b_): return "v_cvt_pk_bf16_f32 v%d, v%d, v%d" % (d, a_, b_)
    def ror(d, s_): return "v_mov_b32_dpp v%d, v%d row_ror:8 row_mask:0xf bank_mask:0xf" % (d, s_)
    def newseq():
        S = Seq(A); S.warm = VW; S.mst = P.get("MST", 3); S.hoist = True; return S
    def idle(S, n):
        if P.get("IDN", 1): S.nop(n); return
        while n > 0:
            S("v_mov_b32 v%d, v%d" % (VW, VW)); n -= 1
            if n >= 2: S("s_nop 1"); n -= 2

    def pub_st(E):
        E("buffer_store_dwordx4 %s, v%d, s[8:11], s4 offen offset:%d sc1" % (r4(X1), L16, 1024 * w)); E("s_mov_b32 s4, 0x%x" % OOB)
    def pub_addr(E): E("s_lshl_b32 s4, s44, 18"); E("s_add_u32 s4, s4, s53")

    def dma(S, fr, sa, lds, fl=" sc1"):
        tok = None
        for i, f in enumerate(fr):
            blk = f // 4
            if i == 0 or f % 4 == 0:
                S("s_mov_b32 m0, %d" % (lds + blk * 4096))
                if blk: S("s_add_u32 s59, %s, %d" % (sa, blk * 4096))
            tok = S("buffer_load_dwordx4 v%d, s[8:11], %s offen offset:%d%s lds" % (L16, "s59" if blk else sa, 1024 * (f % 4), fl))
        return tok

    def lw_read(S, n):
        b = LB[n % 2]
        return [lambda: rd(S, b, VW, n * 2048), lambda: rd(S, b + 4, VW, n * 2048 + 1024)]

    def drain(fl):
        while fl: fl.pop(0)()

    def kv_addr(S, dst, ds, extra=0):
        S("s_and_b32 %s, s44, 63" % dst)
        if ds: S("s_add_u32 %s, %s, %d" % (dst, dst, ds)); S("s_min_u32 %s, %s, 63" % (dst, dst))
        S("s_lshl_b32 %s, %s, 18" % (dst, dst)); S("s_add_u32 %s, %s, s50" % (dst, dst))
        if extra: S("s_add_u32 %s, %s, %d" % (dst, dst, extra))

    def kv_prep(S, d):
        kv_addr(S, "s26", d, 2048 * w)
        if P.get("KV0"): S("s_add_u32 s26, s50, %d" % (2048 * w))
        S("s_add_u32 s3, s26, %d" % KV_MAT)
    def k_fetch(S):
        S("s_mov_b32 m0, %d" % (L_K + 2048 * w))
        for j in range(2): S("buffer_load_dwordx4 v%d, s[8:11], s26 offen offset:%d sc1 lds" % (L16, 1024 * j))
    def vt_fetch(S):
        for j in range(2): S("buffer_load_dwordx4 %s, v%d, s[8:11], s3 offen offset:%d sc1" % (r4(VT[j]), L16, 1024 * j))

    def post(S, acc, off, scale=False):
        it = []
        for tl in range(2):
            b = acc + 4 * tl
            it += ["v_permlane32_swap_b32 v%d, v%d" % (b, b + 1), "v_permlane32_swap_b32 v%d, v%d" % (b + 2, b + 3)]
        for tl in range(2):
            b = acc + 4 * tl
            it += ["v_add_f32 v%d, v%d, v%d" % (b, b, b + 1), "v_add_f32 v%d, v%d, v%d" % (b + 2, b + 2, b + 3)]
        if scale: it += ["v_mul_f32 v%d, s40, v%d" % (r, r) for r in (acc, acc + 4, acc + 2, acc + 6)]
        it += [cvt(acc, acc, acc + 4), cvt(acc + 1, acc + 2, acc + 6)]
        wr = ["ds_write_b32 v%d, v%d offset:%d" % (EW, acc, off), "ds_write_b32 v%d, v%d offset:%d" % (EW, acc + 1, off + 576)]
        return [lambda t=t: S(t) for t in it], [lambda t=t: S(t) for t in wr]

    def spin_count(S_, lim=SPIN_MAX):
        S_("s_add_u32 s30, s30, 1"); S_("s_cmp_ge_u32 s30, %d" % lim); S_("s_cbranch_scc1 %s" % L0("fail"))

    def kv_wait(S, lab, need):
        S("s_add_u32 s27, s44, %d" % need); S("s_or_b32 s28, s44, 63"); S("s_add_u32 s28, s28, 1"); S("s_min_u32 s27, s27, s28")
        S("s_cmp_lt_u32 s54, s27"); S("s_cbranch_scc1 %s" % L(lab))
        S.label(L(lab + "_r"))
        def blk():
            A.label(L(lab))
            A("s_mov_b32 s30, 0")
            A.label(L(lab + "_l"))
            A("s_waitcnt lgkmcnt(0)"); A("s_mov_b64 exec, 3")
            A("buffer_load_dword v%d, v%d, s[8:11], s51 offen sc1" % (T0, PA8)); A("s_waitcnt vmcnt(0)"); A("s_mov_b64 exec, -1")
            A("v_readlane_b32 s54, v%d, 0" % T0); A("v_readlane_b32 s28, v%d, 1" % T0); A("s_nop 3"); A("s_min_u32 s54, s54, s28")
            A("s_cmp_ge_u32 s54, s27"); A("s_cbranch_scc1 %s" % L(lab + "_r"))
            A("s_sleep %d" % P.get("CS", 2)); spin_count(A, 4 * SPIN_MAX); A("s_branch %s" % L(lab + "_l"))
        ool.append(blk)

    def known(S, t):
        S("ds_read_b64 %s, v%d offset:%d" % (r2(t), L16, L_FL))
        S("v_min_u32 v%d, v%d, v%d" % (t, t, t + 1)); S("v_readfirstlane_b32 s28, v%d" % t); S("s_nop 0"); S("s_max_u32 s54, s54, s28")

    def step_addr(S):
        S("s_and_b32 s55, s44, 3"); S("s_mul_i32 s55, s55, %d" % PART_SLOT); S("s_add_u32 s55, s55, s34"); S("s_add_u32 s58, s55, s35"); S("s_and_b32 s57, s44, 63")
        if RS and w == 0: S("s_add_u32 s59, s55, s32") if False else None
        if RS and w == 0: S("s_add_u32 s43, s55, s2"); S("s_add_u32 s15x, s55, s32".replace("s15x", "s31"))
        elif w < 2: S("s_add_u32 s43, s55, s32")
        if w == 0: S("s_add_u32 s61, s43, %d" % (8 * PART_H)); S("s_add_u32 s100, s43, %d" % (16 * PART_H)); S("s_add_u32 s101, s43, %d" % (24 * PART_H))
        if w == 1: S("s_sub_u32 s27, s57, 1"); S("s_max_i32 s27, s27, 0"); S("s_lshl_b64 s[100:101], 1, s27"); S("s_lshl_b32 s27, s27, 7"); S("s_sub_u32 s61, s52, s27")
        S("s_add_u32 s42, s44, 2"); S("s_or_b32 s28, s44, 63"); S("s_add_u32 s28, s28, 1"); S("s_min_u32 s42, s42, s28")
        if w >= 2: S("s_sub_u32 s61, %s, %d" % ("s3" if w == 2 else "s26", 2048 * w))
        if w >= 2 and P.get("TC", 1): S("s_cmp_ge_u32 s54, s42"); S("s_cselect_b32 s61, s61, 0x%x" % OOB)

    def ready(S):
        for n in range(2): drain(lw_read(S, n))
        for q in (AV, AV + 4, AQ, AQ + 4, AK, AK + 4): zero(S, q)

    MCW = P.get("MCW", 0)
    RS = P.get("RS", 0)
    CL3 = P.get("CLP", 3) == 3
    CLP = 0 if CL3 else P.get("CLP", 3)
    cw = w - 2 if CLP else w
    Q = M[4] if (CLP and w >= 2) else X0
    def clear_prep(S):
        S("v_mov_b64 %s, -1" % r2(Q)); S("v_mov_b64 %s, -1" % r2(Q + 2))
        S("s_add_u32 s28, s44, 3"); S("s_and_b32 s29, s28, 3"); S("s_mul_i32 s31, s22, 160")
        if cw in (0, 1):
            S("s_mul_i32 s28, s29, %d" % PART_SLOT); S("s_add_u32 s28, s28, s34"); S("s_add_u32 s64, s28, s35")
            if CLP: S("s_sub_u32 s64, s64, 2048")
        if cw == 0: S("s_mul_i32 s65, s29, %d" % ML_S); S("s_add_u32 s65, s65, s41"); S("s_add_u32 s65, s65, s31")
        if cw == 1: S("s_lshl_b32 s65, s22, 10"); S("s_add_u32 s65, s65, s28"); S("s_add_u32 s65, s65, %d" % PART_T4)
        if w == 0: S("s_lshl_b32 s60, s29, 15"); S("s_add_u32 s60, s60, s47"); S("s_add_u32 s60, s60, s31")
    def clears(S):
        for j in range(cw, cw + 2): S("buffer_store_dwordx4 %s, v%d, s[8:11], s64 offen offset:%d%s" % (r4(Q), L16, j * 1024, sc))
        if cw == 0: S("s_mov_b64 exec, 0x3ff")
        S("buffer_store_dwordx4 %s, v%d, s[8:11], s65 offen%s" % (r4(Q), L16, sc))
        if cw == 0: S("s_mov_b64 exec, -1")
        S("s_mov_b32 s65, 0x%x" % OOB); S("s_mov_b32 s64, 0x%x" % OOB)
    def m_clear(S):
        S("s_mov_b64 exec, 0x3ff")
        S("buffer_store_dwordx4 %s, v%d, s[8:11], s60 offen sc1" % (r4(Q), L16))
        S("s_mov_b64 exec, -1"); S("s_mov_b32 s60, 0x%x" % OOB)

    def window(S):
        p0 = pw0; red = w < (1 if RS else 2); tag = "w"
        FLn, RG, U1, LD, PG, KD, CD = P.get("FL", 56), P.get("RG", 28), P.get("U1", 8), P.get("LD", 60), P.get("PG2", 14), P.get("KD", 84), P.get("CD", 0)
        NS, NA, CP = P.get("NS", 2), P.get("NA", 3), P.get("CP", 0)
        nxt = ["s_add_u32 s27, s44, 1", "s_and_b32 s27, s27, 3", "s_mul_i32 s48, s27, %d" % ML_S, "s_add_u32 s48, s48, s41", "s_lshl_b32 s27, s27, 15", "s_add_u32 s49, s27, s47"]
        if not red:
            for t_ in nxt: S(t_)
        if red:
            if RS:
                NL = 5
                assert NS <= 2
                SETS = [[LB[0], AV, AV + 4, AQ, AQ + 4], [LB[0] + 4, M[1], M[2], M[3], M[4]]][:NS]
                SEL, SELQ, D, X = X0, LB[1], AK, AK + 4
                MK = ("s[64:65]", "vcc")
                su = ["v_bfe_u32 v%d, v%d, 6, 1" % (X, L16), "v_lshlrev_b32 v%d, 4, v%d" % (X, X), "v_lshlrev_b32_e64 v%d, v%d, s45" % (X, X), "v_and_b32 v%d, 0xb0, v%d" % (X + 1, L16)]
                for q0 in (0, 2):
                    su += ["v_cmp_eq_u32 vcc, 0x%x, v%d" % (0x80 + 16 * q0, X + 1), "s_mov_b64 s[64:65], vcc", "v_cmp_eq_u32 vcc, 0x%x, v%d" % (0x90 + 16 * q0, X + 1)] + nxt[q0:q0 + 2]
                    su += ["v_cndmask_b32_e64 v%d, 0, v%d, %s" % (SELQ + q0 + q, X, MK[q]) for q in range(2)]
                su += ["v_and_b32 v%d, 16, v%d" % (X, L16), "v_bfe_u32 v%d, v%d, 5, 3" % (X + 1, L16), "v_lshlrev_b32_e64 v%d, v%d, s45" % (X, X)]
                for q0 in (0, 2):
                    su += ["v_cmp_eq_u32_e64 %s, %d, v%d" % (MK[q & 1], q, X + 1) for q in (q0, q0 + 1)] + [nxt[4 + q0 // 2], "s_nop 0"]
                    su += ["v_cndmask_b32_e64 v%d, 0, v%d, %s" % (SEL + q, X, MK[q & 1]) for q in (q0, q0 + 1)]
                su += ["v_mov_b32 v%d, s42" % X, "v_mov_b32 v%d, s33" % (X + 1), "v_cmp_lt_u32 vcc, 0x1ff, v%d" % L16, "v_bfe_u32 v%d, v%d, 4, 3" % (T1, L16), "v_bfe_u32 v%d, v%d, 8, 1" % (X + 2, L16),
                       "v_cndmask_b32 v%d, v%d, v%d, vcc" % (X, X, X + 1), "v_lshl_add_u32 v%d, v%d, 3, v%d" % (T1, T1, X), "v_lshl_add_u32 v%d, v%d, 6, v%d" % (T1, X + 2, T1)]
                su += ["s_add_u32 s56, s27, s46", "s_mov_b32 s58, s48"]
            else:
                NL = 4 if w == 0 else 1
                SETS = [[AV, AV + 4, AQ, AQ + 4], [M[1], M[2], M[3], M[4]], [LB[0], LB[0] + 4, LB[1], LB[1] + 4]][:NS] if w == 0 else [[AV + 4 * i] for i in range(NS)]
                SEL, D, X = X0, AK, AK + 4
                su = []
                if w == 0:
                    su += ["v_and_b32 v%d, 16, v%d" % (X, L16), "v_bfe_u32 v%d, v%d, 5, 2" % (X + 1, L16)]
                else:
                    su += ["v_bfe_u32 v%d, v%d, 4, 1" % (X + 2, L16), "v_bfe_u32 v%d, v%d, 7, 1" % (X + 1, L16), "v_lshl_add_u32 v%d, v%d, 1, v%d" % (X + 1, X + 1, X + 2),
                           "v_bfe_u32 v%d, v%d, 6, 1" % (X, L16), "v_lshlrev_b32 v%d, 4, v%d" % (X, X)]
                su += ["v_lshlrev_b32_e64 v%d, v%d, s45" % (X, X)]
                MK = ("s[64:65]", "vcc")
                su += ["v_cmp_eq_u32_e64 %s, %d, v%d" % (MK[q & 1], q, X + 1) for q in range(2)] + nxt[:2]
                su += ["v_cndmask_b32_e64 v%d, 0, v%d, %s" % (SEL + q, X, MK[q & 1]) for q in range(2)]
                su += ["v_cmp_eq_u32_e64 %s, %d, v%d" % (MK[q & 1], q, X + 1) for q in range(2, 4)] + nxt[2:4]
                su += ["v_cndmask_b32_e64 v%d, 0, v%d, %s" % (SEL + q, X, MK[q & 1]) for q in range(2, 4)] + nxt[4:]
                if w == 0:
                    su += ["v_bfe_u32 v%d, v%d, 4, 3" % (T1, L16), "v_lshlrev_b32 v%d, 3, v%d" % (T1, T1), "v_lshrrev_b32 v%d, 8, v%d" % (X, L16), "v_lshl_add_u32 v%d, v%d, 6, v%d" % (T1, X, T1)]
                else:
                    su += ["v_bfe_u32 v%d, v%d, 8, 1" % (X, L16), "v_lshlrev_b32 v%d, 6, v%d" % (T1, X), "v_lshl_add_u32 v%d, v%d, 3, v%d" % (T1, X + 2, T1),
                           "v_lshrrev_b32 v%d, 9, v%d" % (X + 1, L16), "v_lshl_add_u32 v%d, v%d, 2, v%d" % (T1, X + 1, T1)]
                su += ["s_add_u32 s56, s27, s46", "s_add_u32 s56, s56, s33", "s_add_u32 s58, s48, s33"]
            def gap(n):
                while n > 0 and su: S(su.pop(0)); n -= 1
                idle(S, n)
            def issue(E, B):
                if RS:
                    for j in range(5): E("buffer_load_dwordx4 %s, v%d, s[8:11], %s offen sc1" % (r4(B[j]), RL if j else L16, ("s31", "s43", "s61", "s100", "s101")[j]))
                    return
                for j in range(NL): E("buffer_load_dwordx4 %s, v%d, s[8:11], %s offen sc1" % (r4(B[j]), RL if w == 0 else L16, ("s43", "s61", "s100", "s101")[j]))
            def acc(E, B, j):
                if not RS: return mf32(E, D, SEL, B[j], "0" if j == 0 else D)
                mf32(E, D, SEL if j else SELQ, B[j], D if j else "0")
                if j == 0:
                    for sh in (4, 2):
                        for q in range(4): E("v_add_f32_dpp v%d, v%d, v%d row_ror:%d row_mask:0xc bank_mask:0xf" % (D + q, D + q, D + q, sh))
            gap(FLn + (P.get("F1", 4) if w else 0) - (S.pos - p0))
            for k_, B in enumerate(SETS):
                if k_: gap(RG + (P.get("R1", 14) if w else 0))
                issue(S, B)
            gap(max(U1, len(su)))
            def hint(E, B):
                if RS: E("v_max3_u32 v%d, v%d, v%d, v%d" % (X, B[0], B[1], B[2])); E("v_max3_u32 v%d, v%d, v%d, v%d" % (X, X, B[3], B[4])); E("v_cmp_eq_u32 vcc, -1, v%d" % X)
                elif w == 0: E("v_max3_u32 v%d, v%d, v%d, v%d" % (X, B[0], B[1], B[2])); E("v_max_u32 v%d, v%d, v%d" % (X, X, B[3])); E("v_cmp_eq_u32 vcc, -1, v%d" % X)
                else: E("v_cmp_eq_u32 vcc, -1, v%d" % B[0])
            def fold(E):
                if w == 0:
                    for q in range(4): E("v_add_f32_dpp v%d, v%d, v%d row_ror:8 row_mask:0xf bank_mask:0xf" % (D + q, D + q, D + q))
                    E("v_cmp_u_f32 vcc, v%d, v%d" % (D, D))
                    E(cvt(D, D, D + 1)); E(cvt(D + 1, D + 2, D + 3))
                else:
                    for sh in (8, 4, 2):
                        for q in range(2): E("v_add_f32_dpp v%d, v%d, v%d row_ror:%d row_mask:0xf bank_mask:0xf" % (D + q, D + q, D + q, sh))
                    E("v_cmp_u_f32 vcc, v%d, v%d" % (D, D))
                    E(cvt(D, D, D + 1))
            op = "buffer_store_dwordx2 %s" % r2(D) if w == 0 else "buffer_store_dword v%d" % D
            SI = P.get("SI", 1 if RS else 0)
            def publish(E):
                E("s_mov_b64 exec, %s" % ("s[38:39]" if (w == 0 and not RS) else "s[62:63]"))
                if SI == 2: E("%s, v%d, s[8:11], s56 offen sc1" % (op, T1))
                E("%s, v%d, s[8:11], s58 offen%s" % (op, T1, sc))
                if SI == 1: E("%s, v%d, s[8:11], s56 offen sc1" % (op, T1))
            if not P.get("WP", 1): S.warm = None
            for j in range(NL): acc(S, SETS[0], j)
            if P.get("HN", 1):
                hint(S, SETS[0]); S(br("s_cbranch_vccnz %s" % L(tag + ("q1" if NS > 1 else "rb_i0"))))
                fold(S); S(br("s_cbranch_vccnz %s" % L(tag + "rb_e0")))
            else:
                fold(S); S(br("s_cbranch_vccnz %s" % L(tag + "q1")))
            publish(S)
            def quick():
                for k_ in range(1, NS):
                    A.label(L(tag + "q%d" % k_))
                    E = newseq()
                    if ST: E("s_add_u32 s99, s99, 1")
                    if k_ == NS - 1: issue(E, SETS[0])
                    for j in range(NL):
                        E("s_waitcnt vmcnt(%d)" % (NL * (NS - k_) - 1 - j + (NL if k_ == NS - 1 else 0))); acc(E, SETS[k_], j)
                    hint(E, SETS[k_]); E("s_cbranch_vccnz %s" % L(tag + ("q%d" % (k_ + 1) if k_ < NS - 1 else "qx")))
                    fold(E); E("s_cbranch_vccnz %s" % L(tag + "qe%d" % k_))
                    publish(E); stamp(E, 7); E("s_barrier"); E("s_nop 0" if (SI or P.get("SCD")) else "%s, v%d, s[8:11], s56 offen sc1" % (op, T1)); E("s_branch %s" % L(tag + "rb_g"))
                A.label(L(tag + "qx"))
                for k_ in range(1, NS - 1): issue(A, SETS[k_])
                A("s_branch %s" % L(tag + "rb_i%d" % (NS - 1)))
                for k_ in range(1, NS):
                    A.label(L(tag + "qe%d" % k_))
                    A("s_waitcnt vmcnt(0)")
                    for k2 in range(k_ + 1, k_ + NS): issue(A, SETS[k2 % NS])
                    A("s_branch %s" % L(tag + "rb_e%d" % k_))
            if NS > 1: ool.append(quick)
            def blk():
                A.label(L(tag + "rb_l"))
                for k_, B in enumerate(SETS):
                    E = Seq(A)
                    E("s_waitcnt vmcnt(%d)" % (NL * NS - NL))
                    for j in range(NL): acc(E, B, j)
                    hint(E, B); E("s_cbranch_vccz %s" % L(tag + "rb_x%d" % k_))
                    A.label(L(tag + "rb_i%d" % k_))
                    issue(A, B)
                    if ST: A("s_add_u32 s99, s99, 1")
                A("s_add_u32 s71, s71, 1"); A("s_cmp_lt_u32 s71, %d" % (4 * SPIN_MAX)); A("s_cbranch_scc1 %s" % L(tag + "rb_l")); A("s_branch %s" % L0("fail"))
                for k_, B in enumerate(SETS):
                    A.label(L(tag + "rb_x%d" % k_))
                    E = Seq(A); E("s_nop %d" % (3 if w == 0 else 5)); fold(E); A("s_cbranch_vccz %s" % L(tag + "rb_n"))
                    A.label(L(tag + "rb_e%d" % k_))
                    allr = [b + i for b in B for i in range(4)]
                    A("v_max3_u32 v%d, v%d, v%d, v%d" % (X, allr[0], allr[1], allr[2]))
                    for i in range(3, len(allr) - 1, 2): A("v_max3_u32 v%d, v%d, v%d, v%d" % (X, X, allr[i], allr[i + 1]))
                    A("v_max_u32 v%d, v%d, v%d" % (X, X, allr[-1])); A("v_cmp_eq_u32 vcc, -1, v%d" % X)
                    A("s_cbranch_vccnz %s" % L(tag + "rb_i%d" % k_))
                    A("v_min_u32 v%d, -2, v%d" % (D, D)); A("v_min_u32 v%d, -2, v%d" % (D + 1, D + 1))
                    if k_ < NS - 1: A("s_branch %s" % L(tag + "rb_n"))
                A.label(L(tag + "rb_n"))
                publish(A)
                A("s_branch %s" % L(tag + "rb_d"))
            ool.append(blk)
            S.label(L(tag + "rb_d"))
        else:
            ready(S)
            if CLP and w >= 2: clear_prep(S)
            if w == 1: S.wait_vm_all()
            known(S, T0)
        stamp(S, 7)
        S("s_barrier")
        p0 = S.pos
        if CLP == 1 and w >= 2: clears(S)
        if red:
            SCD = P.get("SCD", 0)
            if not SCD and not SI and not (P.get("NOS1") == w + 1): S("%s, v%d, s[8:11], s56 offen sc1" % (op, T1))
            S.label(L(tag + "rb_g"))
            if SCD: S("v_mov_b64 %s, %s" % (r2(M[0] + 2), r2(D)))
            S("s_mov_b64 exec, -1")
            if P.get("ACK") and ST:
                S("s_memtime s[28:29]"); S("s_waitcnt vmcnt(0)"); S("s_memtime s[30:31]"); S("s_waitcnt lgkmcnt(0)"); S("s_sub_u32 s28, s30, s28"); S("s_add_u32 s99, s99, s28")
            S("s_waitcnt vmcnt(%d)" % (1 if SCD else 2))
        stamp_acc(S)
        if red: ready(S); known(S, M[0])
        kv_prep(S, 2); pub_addr(S)
        if w == 0 or (w == 1 and not CLP): clear_prep(S)
        S("s_add_u32 s44, s44, 1"); step_addr(S)
        fr = FL_[w]
        f1 = None
        if fr:
            S.nop(LD - (S.pos - p0))
            f1 = dma(S, fr, "s48", L_ML)
            for _ in range(NA - 1):
                S.nop(PG); dma(S, fr, "s48", L_ML)
        if red and SCD:
            S.nop(SCD - 12 - (S.pos - p0))
            S("s_mov_b64 exec, %s" % ("s[38:39]" if w == 0 else "s[62:63]"))
            S("%s, v%d, s[8:11], s56 offen sc1" % ("buffer_store_dwordx2 %s" % r2(M[0] + 2) if w == 0 else "buffer_store_dword v%d" % (M[0] + 2), T1)); S("s_mov_b64 exec, -1")
        if CLP == 2 and w >= 2: clears(S)
        if CL3 and w < 2:
            S.nop(P.get("CD", 96) - (S.pos - p0)); clears(S)
            if w == 0 and MCW: m_clear(S)
        S("s_mov_b32 s70, 0")
        S.wait(lds=S.nl)
        if f1: A.lines[topw] = "    s_waitcnt vmcnt(%d)" % (S.nv - f1)
        S("s_branch %s" % L("top"))

    def stamp_acc(S):
        if not ST: return
        S("s_waitcnt lgkmcnt(0)")
        if P.get("RAW") and w == P["RAW"] - 1:
            for i in range(9): S("v_writelane_b32 v%d, s%d, %d" % (T0, 72 + 2 * i, i))
            S("v_writelane_b32 v%d, s98, 9" % T0); S("v_writelane_b32 v%d, s99, 10" % T0)
            S("s_lshl_b32 s27, s20, 5"); S("s_add_u32 s27, s27, s22"); S("s_lshl_b32 s27, s27, 7"); S("s_add_u32 s27, s27, s44"); S("s_lshl_b32 s27, s27, 8"); S("s_add_u32 s27, s27, %d" % (WS_DBG + (5 << 20)))
            S("s_mov_b64 exec, 0x7ff"); S("buffer_store_dword v%d, v%d, s[8:11], s27 offen" % (T0, L16)); S("s_mov_b64 exec, -1")
        if TR:
            for i in range(8): S("s_sub_u32 s27, s%d, s%d" % (74 + 2 * i, 72 + 2 * i)); S("s_add_u32 s%d, s%d, s27" % (90 + i, 90 + i))
        else:
            for i in range(7): S("s_sub_u32 s27, s%d, s%d" % (74 + 2 * i, 72 + 2 * i)); S("s_add_u32 s%d, s%d, s27" % (90 + i, 90 + i))
            S("s_sub_u32 s27, s72, s88"); S("s_add_u32 s97, s97, s27"); S("s_mov_b32 s88, s86")
            S("s_cmp_eq_u32 s57, 0"); S("s_cselect_b32 s93, 900, s93"); S("s_cselect_b32 s95, 900, s95")

    A.label(L("layer"))
    S = Seq(A)
    S("s_lshr_b32 s27, s44, 6"); S("s_mul_i32 s50, s27, %d" % KV_LAYER); S("s_lshl_b32 s27, s22, 13"); S("s_add_u32 s50, s50, s27"); S("s_add_u32 s50, s50, %d" % WS_KXF)
    S("s_barrier")
    S("s_mov_b32 s26, 0x%x" % (OOB + 65536)); S("s_mov_b32 s3, s26")
    S("s_mul_i32 s27, s20, 5120"); S("s_add_u32 s48, s27, %d" % WS_M0); S("s_sub_u32 s49, %d, s27" % (WS_M0 + 5120))
    dma(S, FL_[w], "s48", L_ML)
    pass
    step_addr(S); ready(S); S("s_mov_b32 s70, 0"); S.wait(lds=S.nl, vm=S.nv)
    if ST:
        for i in range(10): S("s_mov_b32 s%d, 0" % (90 + i))
        S("%s s[72:73]" % ("s_memrealtime" if P.get("RAW") else "s_memtime")); S("s_waitcnt lgkmcnt(0)")
        for i in range(1, 9): S("s_mov_b32 s%d, s72" % (72 + 2 * i))

    A.label(L("top"))
    S = newseq(); top0 = len(A.lines)
    if TR: S.hook = hook
    topw = len(A.lines); A("s_nop 0")
    stamp(S, 0)
    S("s_barrier")
    stamp(S, 1)
    ME = P.get("ME", 2)
    for t in range(ME): rd(S, M[t], MRA, L_ML + 1024 * t)
    R0 = P.get("R0", 0)
    if not R0: rtok = dma(S, FR_[w], "s49", L_MR)
    S.label(L("lr_r"))
    DEF = [t for t in range(5) if t not in VT_]
    LOC = dict(zip(DEF, [M[0], M[1], M[3]])) if NV >= 2 else {t: M[t] for t in range(5)}
    lwset = []
    fl = []
    fv = []

    def step(i):
        m, tl, rem, t = SEQ[i]
        mq = LOC[t] if i >= NLOC + 30 else M[t]
        assert holds.get(mq) == (MRA, (L_MR if rem else L_ML) + 1024 * t), (i, holds.get(mq))
        if i in LDSI:
            n = LDSI.index(i); smf(S, ACC[m] + 4 * tl, mq, LB[n % 2])
            assert n < 2 or (holds[LB[n % 2]] == (VW, n * 2048) and holds[LB[n % 2] + 4] == (VW, n * 2048 + 1024)), i
            if n + 2 < NLW:
                k_ = 0
                while k_ < len(fl) and fl[k_] in lwset: k_ += 1
                it_ = lw_read(S, n + 2); lwset.extend(it_)
                fl[k_:k_] = it_
        else: smf(S, ACC[m] + 4 * tl, mq, WREG[i])

    def fill(nl, nv):
        for _ in range(nl):
            if fl: fl.pop(0)()
        for _ in range(nv):
            if fv: fv.pop(0)()

    def steps(lo, hi, nl=1, nv=1):
        for i in range(lo, hi):
            step(i); fill(2 if (SC2 and P.get("L2", 0) and not fv and len(fl) >= 2 and fl[1] in lwset) else nl, nv)

    def I(t): return lambda: S(t)
    def R(dst, areg, off): return lambda: rd(S, dst, areg, off)
    def reread(lab, fr, sa, lds, quads, peek, cnt, redo):
        def blk():
            A.label(L(lab))
            A("s_mov_b32 s30, 0")
            A.label(L(lab + "_l"))
            E = Seq(A); E("s_waitcnt lgkmcnt(0)")
            if ST: E("s_add_u32 s98, s98, %d" % cnt)
            if fr:
                E("s_and_b32 s27, s30, 1"); E("s_cbranch_scc%d %s" % (0 if redo else 1, L(lab + "_n"))); E("s_waitcnt vmcnt(%d)" % len(fr)); dma(E, fr, sa, lds)
                A.label(L(lab + "_n"))
            for t in quads: rd(E, M[t], MRA, lds + 1024 * t)
            if peek: E("ds_read_b32 v%d, v%d offset:%d" % (T1, MRA, lds + 4096))
            E("v_max3_u32 v%d, v%d, v%d, v%d" % (T0, M[0], M[1], M[2])); E("v_max3_u32 v%d, v%d, v%d, v%d" % (T0, T0, M[3], T1 if peek else M[4]))
            E("v_cmp_eq_u32 vcc, -1, v%d" % T0); E("s_cbranch_vccz %s" % L(lab + "_d"))
            spin_count(E, 8 * SPIN_MAX); E("s_branch %s" % L(lab + "_l"))
            A.label(L(lab + "_d"))
            if redo:
                ready(E); E("s_waitcnt lgkmcnt(0)")
                if fr: E("s_waitcnt vmcnt(0)") if False else None
            E("s_branch %s" % L(lab + "_r"))
        ool.append(blk)
    HP = P.get("HP", 16 if SC2 else 11)
    fl += [R(M[t], MRA, L_ML + 1024 * t) for t in range(ME, 5)]
    if 0 < R0 < HP:
        steps(0, R0); rtok = dma(S, FR_[w], "s49", L_MR); steps(R0, HP); R0 = 0
    else: steps(0, HP)
    drain(fv)
    assert all(holds[M[t]] == (MRA, L_ML + 1024 * t) for t in range(5))
    late = [I("s_mov_b32 m0, %d" % (L_JUNK if w >= 2 else L_FL))] if (w >= 1 or MCW) else []
    fv += [I("v_max3_u32 v%d, v%d, v%d, v%d" % (T0, M[0], M[1], M[2])), I("v_max3_u32 v%d, v%d, v%d, v%d" % (T0, T0, M[3], M[4])), I("v_cmp_eq_u32 vcc, -1, v%d" % T0), I(br("s_cbranch_vccnz %s" % L("lr")))]
    reread("lr", FL_[w], "s48", L_ML, range(5), False, 0x10000, True)
    NLA = NLOC - P.get("RA", 6 if 4 in VT_ else 4)
    assert NLOC - NLA in (4, 6, 8)
    if R0:
        steps(HP, R0); rtok = dma(S, FR_[w], "s49", L_MR); steps(R0, NLA)
    else: steps(HP, NLA)
    drain(fl); drain(fv)
    def slow_ops():
        if not P.get("NOPUB"): pub_st(S)
        if w < 2 and not CLP and not CL3: clears(S)
        if w == 0 and not MCW: m_clear(S)
        if w == 0 and MCW:
            S("s_mov_b64 exec, 3"); S("buffer_load_dword v%d, s[8:11], s51 offen sc1 lds" % PA8); S("s_mov_b64 exec, -1")
        if w >= 2:
            if P.get("TH", 0) != 2: S("buffer_load_dword v%d, s[8:11], s61 offen sc1 lds" % PA8)
            if P.get("TH", 0) == 1: S("s_mov_b32 m0, %d" % (L_JUNK - 64)); S("buffer_load_dword v%d, s[8:11], s61 offen offset:64 sc1 lds" % PA8)
        if w == 1:
            if not MCW: S("s_mov_b64 exec, 3"); S("buffer_load_dword v%d, s[8:11], s51 offen sc1 lds" % PA8)
            S("s_mov_b64 exec, s[100:101]"); S("buffer_store_dword v%d, v%d, s[8:11], s61 offen sc1" % (PA8, PA8)); S("s_mov_b64 exec, -1")
    stamp(S, 2)
    S.wait(vm=rtok); S("s_barrier")
    stamp(S, 3)
    if NLOC - NLA == 6:
        for t in range(2): rd(S, M[t], MRA, L_MR + 1024 * t)
        step(NLA); rd(S, M[2], MRA, L_MR + 2048); rd(S, M[3], MRA, L_MR + 3072)
        step(NLA + 1); S("ds_read_b32 v%d, v%d offset:%d" % (T1, MRA, L_MR + 4096)); fill(1, 0)
        steps(NLA + 2, NLA + 3)
        fv += [I("v_max3_u32 v%d, v%d, v%d, v%d" % (T0, M[0], M[1], M[2])), I("v_max3_u32 v%d, v%d, v%d, v%d" % (T0, T0, M[3], T1)), I("v_cmp_eq_u32 vcc, -1, v%d" % T0)]
        steps(NLA + 3, NLOC)
    elif NLOC - NLA == 4:
        if P.get("SE"):
            for t in range(4): rd(S, M[t], MRA, L_MR + 1024 * t)
            S("ds_read_b32 v%d, v%d offset:%d" % (T1, MRA, L_MR + 4096))
            drain(late); slow_ops()
            fv += [lambda: None, I("v_max3_u32 v%d, v%d, v%d, v%d" % (T0, M[0], M[1], M[2])), I("v_max3_u32 v%d, v%d, v%d, v%d" % (T0, T0, M[3], T1)), I("v_cmp_eq_u32 vcc, -1, v%d" % T0)]
            steps(NLA, NLOC)
        elif P.get("RI", 1):
            for t in range(2): rd(S, M[t], MRA, L_MR + 1024 * t)
            step(NLA); rd(S, M[2], MRA, L_MR + 2048); rd(S, M[3], MRA, L_MR + 3072)
            step(NLA + 1); S("ds_read_b32 v%d, v%d offset:%d" % (T1, MRA, L_MR + 4096)); fill(1, 0)
            steps(NLA + 2, NLOC - 1)
        else:
            for t in range(4): rd(S, M[t], MRA, L_MR + 1024 * t)
            S("ds_read_b32 v%d, v%d offset:%d" % (T1, MRA, L_MR + 4096))
            steps(NLA, NLOC - 1)
        if not P.get("SE"):
            S("v_max3_u32 v%d, v%d, v%d, v%d" % (T0, M[0], M[1], M[2]))
            step(NLOC - 1)
            S("v_max3_u32 v%d, v%d, v%d, v%d" % (T0, T0, M[3], T1)); S("v_cmp_eq_u32 vcc, -1, v%d" % T0)
    else:
        S("ds_read2st64_b32 %s, v%d offset0:%d offset1:%d" % (r2(T0), MRA, (L_MR + 3072) // 256, (L_MR + 4096) // 256))
        for t in range(2): rd(S, M[t], MRA, L_MR + 1024 * t)
        fl += [R(M[2], MRA, L_MR + 2048)]
        fl.insert(0, fl.pop())
        step(NLA); rd(S, M[2], MRA, L_MR + 2048); fl.remove(fl[-1])
        steps(NLA + 1, NLA + 4)
        fl.insert(0, R(M[3], MRA, L_MR + 3072)); drain(fv)
        step(NLA + 4); fill(1, 0)
        fv += [I("v_max3_u32 v%d, v%d, v%d, v%d" % (T0, T0, T1, M[0])), I("v_max3_u32 v%d, v%d, v%d, v%d" % (T0, T0, M[1], M[2])), I("v_cmp_eq_u32 vcc, -1, v%d" % T0)]
        steps(NLA + 5, NLOC)
    drain(fv)
    S("s_nop 0" if P.get("NOS1") else br("s_cbranch_vccnz %s" % L("rr")))
    S.label(L("rr_r"))
    reread("rr", FR_[w], "s49", L_MR, range(4), True, 1, False)
    drain(late); drain(fl)
    rd(S, M[4], MRA, L_MR + 4096)
    ftok = S.nv
    SP = P.get("SP", 0)
    steps(NLOC, NLOC + SP)
    if not P.get("SE"): slow_ops()
    steps(NLOC + SP, NLOC + 11)
    B0 = NLOC - 20
    pv, pw = post(S, AQ, L_EQ, True); fv += pv
    def first_hook(): S("s_cmp_eq_u32 s57, 0"); S("s_cbranch_scc1 %s" % L("first")); S.label(L("first_r"))
    if SC2:
        first_hook()
        for i in range(35, 44):
            step(i)
            if i == 37: fl.extend([R(LB[1] + 4 * u, KRA, L_K + 2048 + 1024 * u) for u in range(2)])
            if i == 40: fl.extend([R(LB[0] + 4 * u, KRA, L_K + 1024 * u) for u in range(2)])
            fill(1, 1 if i < 39 else 2)
        drain(fv); assert not fl
        fl += pw
        step(44); fill(1, 0)
    else:
        steps(B0 + 31, B0 + 35); steps(B0 + 35, B0 + 40, 1, 2); drain(fv)
        fl += pw
        step(B0 + 40); first_hook(); fill(1, 0)
    def blk():
        A.label(L("first"))
        if P.get("PT", 1):
            A("s_mul_i32 s27, s21, %d" % PART_SLOT); A("s_add_u32 s27, s27, s34"); A("s_mul_i32 s28, s22, %d" % PART_H); A("s_add_u32 s28, s28, s27")
            A("s_mov_b32 exec_hi, 0"); A("buffer_load_dword v%d, v%d, s[8:11], s28 offen sc1" % (T0, PA8))
            A("s_lshl_b32 s28, s22, 10"); A("s_add_u32 s28, s28, s27"); A("s_add_u32 s28, s28, %d" % PART_T4); A("s_mov_b64 exec, 0xff"); A("buffer_load_dword v%d, v%d, s[8:11], s28 offen sc1" % (T0, PA8))
            A("s_mul_i32 s27, s21, %d" % ML_S); A("s_add_u32 s27, s27, s41"); A("s_mul_i32 s28, s22, 160"); A("s_add_u32 s28, s28, s27"); A("s_mov_b64 exec, 3"); A("buffer_load_dword v%d, v%d, s[8:11], s28 offen sc1" % (T0, PA8))
            A("s_mov_b64 exec, -1")
        E = Seq(A)
        if w == 3: kv_wait(E, "p1", 1)
        E("s_barrier"); kv_prep(E, 0); k_fetch(E); vt_fetch(E); kv_prep(E, 1); E("s_waitcnt vmcnt(0) lgkmcnt(0)"); ht(2); E("s_barrier")
        E("s_branch %s" % L("first_r"))
        A.label(L("first2"))
        E = Seq(A)
        known(E, T0); kv_wait(E, "p2", 2)
        E("s_branch %s" % L("first2_r"))
    ool.append(blk)
    pv, pw = post(S, AK, L_EK); fv += pv
    def ex(r): return I("v_exp_f32 v%d, v%d" % (r, r))
    if SC2:
        QO = [AQ, AQ + 4, X0, M[2]]; KA = [LB[0], LB[0] + 4, LB[1], LB[1] + 4]; SXa, SXb = AK, AK + 4; ONE = KA[2]; HALF = T0; PX = SXa
        ZQ, O4Q = X0, M[2]
        loc = lambda k_: rd(S, LOC[DEF[k_]], MRA, L_ML + 1024 * DEF[k_])
        qr = lambda u: rd(S, QO[u], ER, L_EQ + 64 * u)
        step(45); fill(1, 1); qwt = S.nl
        step(46); loc(0); fill(0, 1)
        step(47); loc(1); fill(0, 1)
        step(48); S.wait(lds=qwt); S("s_barrier"); fill(0, 1)
        step(49); qr(0); fill(0, 2)
        step(50); qr(1); fill(0, 2)
        step(51); qr(2); fill(0, 2)
        step(52); pw.pop(0)(); qr(3)
        step(53); pw.pop(0)(); kwt = S.nl
        assert not fv
        stamp(S, 4)
        step(54); loc(2); S("v_mov_b64 %s, s[16:17]" % r2(HALF))
        step(55)
        KM = [M[0], M[4], KA[0], KA[1]]; SM = M[1]
        for u in range(4):
            mf32(S, SXa, KA[u], QO[u], "0" if u == 0 else SXa); kbt = rd(S, KA[u], KRA, L_K + 4096 + 1024 * u)
            if u == 1: S.wait(lds=kwt); S("s_barrier")
        step(56); rd(S, KM[0], ER, L_EK); step(57); rd(S, KM[1], ER, L_EK + 64); S.wait(lds=kbt - 2)
        mf32(S, SXb, KA[0], QO[0], "0"); ex(SXa)(); rd(S, KM[2], ER, L_EK + 128)
        mf32(S, SXb, KA[1], QO[1], SXb); S.wait(lds=kbt); ex(SXa + 1)(); rd(S, KM[3], ER, L_EK + 192)
        mf32(S, SXb, KA[2], QO[2], SXb); ex(SXa + 2)()
        mf32(S, SXb, KA[3], QO[3], SXb); ex(SXa + 3)()
        stamp(S, 5)
        mf32(S, SM, KM[0], QO[0], "0"); S(cvt(PX, SXa, SXa + 1)); S(cvt(PX + 1, SXa + 2, SXa + 3))
        mf32(S, SM, KM[1], QO[1], SM); S("v_mov_b64 %s, s[24:25]" % r2(ONE)); S("v_mov_b64 %s, s[24:25]" % r2(ONE + 2))
        mf32(S, SM, KM[2], QO[2], SM); ex(SXb)()
        mf32(S, SM, KM[3], QO[3], SM); ex(SXb + 1)()
        step(58); ex(SXb + 2)()
        step(59); ex(SXb + 3)(); S(cvt(PX + 2, SXb, SXb + 1)); S(cvt(PX + 3, SXb + 2, SXb + 3)); ex(SM)()
        OA = [AQ, AQ + 4]; Z = ZQ; PM = SM
        mf32(S, Z, ONE, PX, "0"); ex(SM + 1)()
        mf32(S, OA[0], VT[0], PX, "0"); ex(SM + 2)()
        mf32(S, OA[1], VT[1], PX, "0"); ex(SM + 3)()
        S(cvt(PM, SM, SM + 1)); S(cvt(PM + 1, SM + 2, SM + 3)); S(cvt(AV, AV, AV + 1)); S(cvt(AV + 1, AV + 2, AV + 3))
    elif NV >= 2:
        QO = [AQ, AQ + 4, X0, M[2]]; KA = [LB[0], LB[0] + 4, LB[1], LB[1] + 4]; SXa, SXb = AK, AK + 4; ONE = M[4] if NV == 2 else M[3]; HALF = T0; PX = SXa
        ZQ, O4Q = X0, M[2]
        for i in range(41, 50):
            step(B0 + i)
            if i == 41: fl[0:0] = [fl.pop()]
            if i == 42: qwt = S.nl
            for t_, q_ in LOC.items():
                if i % 2 == 1 and q_ == M[(i - 41) // 2]: fl.append(R(q_, MRA, L_ML + 1024 * t_))
            if B0 + i == max(45, B0 + 41): fl.extend([R(KA[u], KRA, L_K + 1024 * u) for u in (2, 3)])
            if B0 + i == 47: fl.extend([R(KA[u], KRA, L_K + 1024 * u) for u in (0, 1)])
            if i == 45:
                S.wait(lds=qwt); S("s_barrier"); fl.extend([R(QO[u], ER, L_EQ + 64 * u) for u in range(4)]); fill(1, 2)
            elif i in (48, 49): pw.pop(0)(); kwt = S.nl; fill(1, 0)
            else: fill(1, 1 if i < 45 else 2)
        assert not fv and not pw
        stamp(S, 4)
        fv += [I("v_mov_b64 %s, s[24:25]" % r2(ONE)), I("v_mov_b64 %s, s[24:25]" % r2(ONE + 2)), I("v_mov_b64 %s, s[16:17]" % r2(HALF))]
        steps(B0 + 50, 58, 2, 0); drain(fl)
        KM = [M[0], M[1], KA[0], KA[1]] if NV == 2 else [M[4], M[0], KA[0], KA[1]]; SM = LOC[DEF[-1]]
        for u in range(4):
            mf32(S, SXa, KA[u], QO[u], "0" if u == 0 else SXa); kbt = rd(S, KA[u], KRA, L_K + 4096 + 1024 * u)
            if u == 1: S.wait(lds=kwt); S("s_barrier")
            else: fill(0, 1)
    else:
        QO = [AQ, AQ + 4, AK, AK + 4]; KA = [LB[0], LB[0] + 4, LB[1], LB[1] + 4]; SXa, SXb, SM = M[0], M[1], M[3]; ONE = X0; HALF = T0
        for i in range(41, 52):
            step(B0 + i)
            if i % 2 == 1 and NV <= (i - 41) // 2 < 5: fl.append(R(M[(i - 41) // 2], MRA, L_ML + 1024 * ((i - 41) // 2)))
            if B0 + i == 45: fl.extend([R(KA[u], KRA, L_K + 1024 * u) for u in (2, 3)])
            if B0 + i == 47: fl.extend([R(KA[u], KRA, L_K + 1024 * u) for u in (0, 1)])
            if i in (48, 49): pw.pop(0)(); kwt = S.nl; fill(1, 0)
            elif i >= 50: fill(2 if i == 50 else 1, 0)
            else: fill(1, 1 if i < 45 else 2)
        assert not fv and not pw
        step(B0 + 52); S.wait(lds=kwt); S("s_barrier")
        stamp(S, 4)
        fl[0:0] = [R(QO[u], ER, L_EQ + 64 * u) for u in range(4)]
        fill(1, 0)
        fv += [I("v_mov_b64 %s, s[24:25]" % r2(ONE)), I("v_mov_b64 %s, s[24:25]" % r2(ONE + 2)), I("v_mov_b64 %s, s[16:17]" % r2(HALF))]
        E1 = P.get("E1", 58)
        steps(B0 + 53, B0 + 55, 2, 0); steps(B0 + 55, E1, 1, 1)
        drain(fl); drain(fv)
        S.wait(lds=S.nl)
        KM = [M[2], KA[0], KA[1], KA[2]] if E1 < 58 else [M[2], M[3], KA[0], KA[1]]
        SM = M[4] if E1 >= 58 else M[3]
        for u in range(4): mf32(S, SXa, KA[u], QO[u], "0" if u == 0 else SXa); kbt = rd(S, KA[u], KRA, L_K + 4096 + 1024 * u)
        PX = SXa
        ZQ, O4Q = AK, AK + 4
    if not SC2:
        step(58); rd(S, KM[0], ER, L_EK); step(59); rd(S, KM[1], ER, L_EK + 64); S.wait(lds=kbt - 2)
        mf32(S, SXb, KA[0], QO[0], "0"); ex(SXa)()
        mf32(S, SXb, KA[1], QO[1], SXb); S.wait(lds=kbt); ex(SXa + 1)(); rd(S, KM[2], ER, L_EK + 128)
        mf32(S, SXb, KA[2], QO[2], SXb); ex(SXa + 2)(); rd(S, KM[3], ER, L_EK + 192)
        mf32(S, SXb, KA[3], QO[3], SXb); ex(SXa + 3)()
        stamp(S, 5)
        mf32(S, SM, KM[0], QO[0], "0"); S(cvt(PX, SXa, SXa + 1)); S(cvt(PX + 1, SXa + 2, SXa + 3))
        mf32(S, SM, KM[1], QO[1], SM); S(cvt(AV, AV, AV + 1)); S(cvt(AV + 1, AV + 2, AV + 3))
        mf32(S, SM, KM[2], QO[2], SM); ex(SXb)()
        mf32(S, SM, KM[3], QO[3], SM); ex(SXb + 1)(); ex(SXb + 2)(); ex(SXb + 3)()
        S(cvt(PX + 2, SXb, SXb + 1)); S(cvt(PX + 3, SXb + 2, SXb + 3)); S(cvt(AV + 2, AV + 4, AV + 5)); S(cvt(AV + 3, AV + 6, AV + 7))
    if not SC2:
        OA = [AQ, AQ + 4]; Z = ZQ; PM = SM
        mf32(S, Z, ONE, PX, "0"); ex(SM)()
        mf32(S, OA[0], VT[0], PX, "0"); ex(SM + 1)()
        mf32(S, OA[1], VT[1], PX, "0"); ex(SM + 2)(); ex(SM + 3)()
        S(cvt(PM, SM, SM + 1)); S(cvt(PM + 1, SM + 2, SM + 3))
    OUT = [KA[0], KA[1], KA[2], KA[3], O4Q]
    def pubsel(): return [I("v_cndmask_b32_e64 v%d, v%d, v%d, s[66:67]" % (X1 + i, AV + i, KM[w] + i)) for i in range(4)]
    fv += pubsel()
    if SC2:
        mf16(S, Z, HALF, PM, Z); S(cvt(AV + 2, AV + 4, AV + 5)); S(cvt(AV + 3, AV + 6, AV + 7))
        S.label(L("fin"))
        mf16(S, OA[0], AV, PM, OA[0]); S("s_cmp_eq_u32 s57, 63"); fill(0, 2)
        mf16(S, OA[1], AV + 2, PM, OA[1]); fill(0, 2); S("s_cbranch_scc1 %s" % L("last"))
        for q in OUT[::-1]: fv += zitems(S, q)
    else:
        fill(0, 2)
        S.label(L("fin"))
        mf16(S, Z, HALF, PM, Z); fill(0, 2)
        for q in OUT[::-1]: fv += zitems(S, q)
        mf16(S, OA[0], AV, PM, OA[0]); S("s_cmp_eq_u32 s57, 63"); fill(0, 2)
        mf16(S, OA[1], AV + 2, PM, OA[1]); S("s_cbranch_scc1 %s" % L("last")); fill(0, 1)
    RZ = Z + 2
    S("v_rcp_f32 v%d, v%d" % (RZ, Z)); S("v_subrev_u32 v%d, s68, v%d" % (Z + 1, Z)); S("v_cmp_lt_u32 vcc, s69, v%d" % (Z + 1)); fill(0, 2 if SC2 else 1)
    for i in range(4): S("v_cndmask_b32_e64 v%d, v%d, v%d, s[18:19]" % (AQ + i, AQ + i, AQ + 4 + i))
    for q in (0, 2): S("v_pk_mul_f32 %s, %s, %s op_sel_hi:[1,0]" % (r2(AQ + q), r2(AQ + q), r2(RZ)))
    S(cvt(AQ, AQ, AQ + 1)); S(cvt(AQ + 1, AQ + 2, AQ + 3))
    S("ds_write_b64 v%d, %s offset:%d" % (L16, r2(AQ), L_EO + 1024 * (w >> 1) + 8 * (w & 1)))
    S("s_nop 0" if P.get("NOS1") else br("s_cbranch_vccnz %s" % L("zbad")))
    S.label(L("zok"))
    ctok = S.nv - (2 if w == 1 else 0)
    S("s_cmp_lt_u32 s54, s42"); S("s_cbranch_scc1 %s" % L("first2")); S.label(L("first2_r"))
    BO = P.get("BO", 0)
    if BO == 0: vt_fetch(S)
    else: S("s_mov_b32 m0, %d" % (L_K + 2048 * w)); drain(fv)
    S.wait(lds=S.nl); S("s_barrier")
    O0, O1 = SXb, KM[1]
    rd(S, O0, L16, L_EO); rd(S, O1, L16, L_EO + 1024)
    if BO == 0: k_fetch(S)
    else:
        for j in range(2): S("buffer_load_dwordx4 v%d, s[8:11], s26 offen offset:%d sc1 lds" % (L16, 1024 * j))
        vt_fetch(S)
    drain(fv)
    def opost(T):
        b = OUT[T]
        return [I("v_permlane32_swap_b32 v%d, v%d" % (b, b + 1)), I("v_permlane32_swap_b32 v%d, v%d" % (b + 2, b + 3)),
                I("v_add_f32 v%d, v%d, v%d" % (b, b, b + 1)), I("v_add_f32 v%d, v%d, v%d" % (b + 2, b + 2, b + 3))]
    SD = KM[0]
    def wo(T, tp): smf(S, OUT[T], (O0, O1)[tp], WO[T, tp])
    S.hoist = False
    wo(0, 0); wo(1, 0); wo(0, 1); wo(1, 1); wo(2, 0); wo(3, 0)
    fv += opost(0) + opost(1) + [I(cvt(SD, OUT[0], OUT[1])), I(cvt(SD + 2, OUT[0] + 2, OUT[1] + 2))]
    fill(0, 1); wo(2, 1); fill(0, 1); wo(3, 1); fill(0, 2); wo(4, 0); fill(0, 1); wo(4, 1)
    fv += opost(2) + opost(3) + [I(cvt(SD + 1, OUT[2], OUT[3])), I(cvt(SD + 3, OUT[2] + 2, OUT[3] + 2))]
    drain(fv)
    if P.get("SO", 1): S("buffer_store_dwordx4 %s, v%d, s[8:11], s58 offen%s" % (r4(SD), L16, sc))
    drain(opost(4)); S(cvt(OUT[4], OUT[4], OUT[4] + 2))
    if not P.get("SO", 1): S("buffer_store_dwordx4 %s, v%d, s[8:11], s58 offen%s" % (r4(SD), L16, sc))
    S("buffer_store_dword v%d, v%d, s[8:11], s55 offen%s" % (OUT[4], PSB, sc))
    stamp(S, 6)
    if w == 0 and md == 0: print("chain on-path estimate %d, nops %d" % (estimate(A.lines[top0:], P.get("EST")), S.nops))
    def fork(S):
        S2 = copy.copy(S)
        for k_ in ("vw", "tw", "mw", "mc", "sd", "sw", "lp", "vp"): setattr(S2, k_, dict(getattr(S, k_)))
        return S2
    pw0 = S.pos
    window(S)

    A.label(L("restart"))
    E = Seq(A)
    E("s_waitcnt vmcnt(0) lgkmcnt(0)"); E.nop(8); E("s_barrier")
    dma(E, FL_[w], "s48", L_ML); ready(E); E("s_waitcnt vmcnt(0) lgkmcnt(0)"); E("s_branch %s" % L("top"))
    A.label(L("zbad"))
    E = Seq(A)
    E("s_cmp_eq_u32 s70, 2"); E("s_cbranch_scc1 %s" % L("zok"))
    E("v_cmp_u_f32 vcc, v%d, v%d" % (Z, Z)); E("s_cbranch_vccz %s" % L("exact"))
    E("s_cmp_eq_u32 s70, 1"); E("s_cbranch_scc1 %s" % L("exact"))
    A.label(L("vfy0"))
    E("s_mov_b32 s70, 1"); E("s_mov_b32 s30, 0"); E("s_waitcnt vmcnt(0) lgkmcnt(0)"); E.nop(8)
    A.label(L("vfy"))
    E("v_mov_b32 v%d, 0" % T0)
    for sa in ("s48", "s49"):
        E("s_add_u32 s59, %s, 4096" % sa)
        for t in range(5): E("buffer_load_dwordx4 %s, v%d, s[8:11], %s offen offset:%d sc1" % (r4(M[t]), L16, "s59" if t == 4 else sa, 1024 * (t % 4)))
        for r in range(M[0], M[0] + 20, 2): E("v_max3_u32 v%d, v%d, v%d, v%d" % (T0, T0, r, r + 1))
    E("v_cmp_eq_u32 vcc, -1, v%d" % T0); E("s_cbranch_vccz %s" % L("restart"))
    spin_count(E); E("s_branch %s" % L("vfy"))
    A.label(L("exact"))
    E = Seq(A); E.nop(8)
    E("s_mov_b32 s70, 2")
    KT = [KA[0], KA[1]]; S3 = [SXa, SXb, SM]
    E("s_waitcnt lgkmcnt(0)")
    for u in range(4): rd(E, QO[u], ER, L_EQ + 64 * u)
    n = 0
    for tl in range(3):
        for u in range(4):
            kq = KT[n % 2]; n += 1
            if tl < 2: rd(E, kq, KRA, L_K + 4096 * tl + 1024 * u)
            else: rd(E, kq, ER, L_EK + 64 * u)
            mf32(E, S3[tl], kq, QO[u], "0" if u == 0 else S3[tl])
            E.nop(4)
    S12 = [q + i for q in S3 for i in range(4)]
    MX, TM = KA[3], KA[3] + 1
    E("v_max3_f32 v%d, v%d, v%d, v%d" % (MX, S12[0], S12[1], S12[2]))
    for i in range(3, 11, 2): E("v_max3_f32 v%d, v%d, v%d, v%d" % (MX, MX, S12[i], S12[i + 1]))
    E("v_max_f32 v%d, v%d, v%d" % (MX, MX, S12[11]))
    for op in ("v_permlane16_swap_b32", "v_permlane32_swap_b32"):
        E("v_mov_b32 v%d, v%d" % (TM, MX)); E("%s v%d, v%d" % (op, MX, TM)); E("v_max_f32 v%d, v%d, v%d" % (MX, MX, TM))
    for r in S12: E("v_sub_f32 v%d, v%d, v%d" % (r, r, MX)); E("v_exp_f32 v%d, v%d" % (r, r))
    for i in range(4): E(cvt(PX + i, S12[2 * i], S12[2 * i + 1]))
    E(cvt(PM, SM, SM + 1)); E(cvt(PM + 1, SM + 2, SM + 3))
    mf32(E, OA[0], VT[0], PX, "0"); mf32(E, OA[1], VT[1], PX, "0"); mf32(E, Z, ONE, PX, "0")
    rd(E, KM[w], ER, L_EK + 64 * w); E.wait_lds_all()
    if SC2: E.nop(8); mf16(E, Z, HALF, PM, Z)
    E.nop(8); E("s_branch %s" % L("fin"))
    A.label(L("last"))
    A("s_cmp_lg_u32 s70, 0"); A("s_cbranch_scc1 %s" % L("last2"))
    A("v_cmp_u_f32 vcc, v%d, v%d" % (SXb, SXb)); A("s_nop 0" if P.get("NOS1") else br("s_cbranch_vccnz %s" % L("vfy0")))
    A.label(L("last2"))
    E = Seq(A); pub_addr(E); pub_st(E); E("s_waitcnt vmcnt(0) lgkmcnt(0)")
    A("s_barrier")
    if w == 1:
        A("v_mov_b32 v%d, 8192" % T1); A("s_mov_b64 exec, 1"); A("buffer_store_dword v%d, v%d, s[8:11], s52 offen sc1" % (T1, L16)); A("s_mov_b64 exec, -1"); A("s_add_u32 s52, s52, 4096")
    if True:
        E = Seq(A); E.nop(8); clear_prep(E)
        if cw in (0, 1): clears(E)
        if w == 0: m_clear(E)
        A("s_waitcnt vmcnt(0)")
    A("s_add_u32 s44, s44, 1")
    ht(3)
    if ST:
        A("s_lshl_b32 s27, s20, 5"); A("s_add_u32 s27, s27, s22"); A("s_lshl_b32 s27, s27, 2"); A("s_add_u32 s27, s27, s21"); A("s_lshl_b32 s27, s27, 6"); A("s_add_u32 s27, s27, %d" % WS_DBG)
        A("s_lshl_b32 s28, s44, 8"); A("s_add_u32 s27, s27, s28"); A("s_mov_b64 exec, 1")
        for i in range(10): A("v_mov_b32 v%d, s%d" % (T1, 90 + i)); A("buffer_store_dword v%d, v%d, s[8:11], s27 offen offset:%d" % (T1, L16, 4 * i)); A("s_nop 1")
        A("s_mov_b64 exec, -1")
    if P.get("CF", 1): A("s_branch %s" % L0("c_fft"))
    A("s_cmp_eq_u32 s44, 128"); A("s_cbranch_scc1 %s" % L0("end"))
    A("s_branch %s" % L("layer"))
    while ool: ool.pop(0)()
```

```python
from asmlib import *
from layout import *
from seq import *
import k_chain
from k_chain import chain_body, f2u, C1, SPIN_MAX, OOB, L_FL
from k_load import chain_load, bulk_load
from k_tab import lane_setup, t1_frag, t2_frag, wt_task
from k_ln import ln_body
from k_b import fft2, idft, idft_table, idft_deferred

GMAP = 0x76524130


def breg(i):
    return 256 + 4 * i if i < 64 else 192 + 4 * (i - 64)


def main_kernel(P):
    name = "interleave_layers__memory_aug_recurrent_mem_tr__spectral_gfnet__prompt_kernel"
    k = Kernel(name, 256, 256, 163840, 256, 256, sgpr=102)
    A = k.asm
    L = lambda x: "M_%s" % x

    GM = [(GMAP, 0x0a), (0x76543120, 0x08), (0x76542130, 0x02), (0x76521403, 0x05), (0x41307652, 0xa0), (0x14037652, 0x50), (0x43527160, 0x0a)][P.get("GM", 3)]
    def ht2(i):
        if P.get("HT", 0) >= 2: ht(i, True)
    def hb(i, flush=False):
        if P.get("HT", 0) != 4: return
        lab = A.newlabel(L("hb"))
        A("s_xor_b32 s6, s84, 1"); A("s_or_b32 s6, s6, s83"); A("s_cmp_lg_u32 s6, 0"); A("s_cbranch_scc1 %s" % lab)
        A("s_memrealtime s[6:7]"); A("s_waitcnt lgkmcnt(0)"); A("s_lshl_b32 s6, s6, 4"); A("s_or_b32 s6, s6, %d" % (i & 15))
        A("v_writelane_b32 v188, s6, %d" % i)
        if flush:
            A("s_add_u32 s7, s82, 2"); A("s_lshl_b32 s7, s7, 8"); A("s_add_u32 s7, s7, %d" % (WS_DBG + (4 << 20) + 128)); A("v_mbcnt_lo_u32_b32 v189, -1, 0"); A("v_lshlrev_b32 v189, 2, v189")
            A("s_mov_b64 exec, 0x%x" % ((1 << (i + 1)) - 1)); A("buffer_store_dword v188, v189, s[8:11], s7 offen"); A("s_mov_b64 exec, -1")
        A.label(lab)
    def hq(i):
        if P.get("HT", 0) != 3: return
        lab = A.newlabel(L("hq"))
        A("s_or_b32 s6, s21, s22"); A("s_cmp_lg_u32 s6, 0"); A("s_cbranch_scc1 %s" % lab); A("s_cmp_lt_u32 s44, 59"); A("s_cbranch_scc1 %s" % lab)
        A("s_memrealtime s[6:7]"); A("s_waitcnt lgkmcnt(0)")
        A("s_lshl_b32 s7, s20, 8"); A("s_add_u32 s7, s7, s5"); A("s_add_u32 s5, s5, 4"); A("s_add_u32 s7, s7, %d" % (WS_DBG + (4 << 20)))
        A("s_lshl_b32 s6, s6, 4"); A("s_or_b32 s6, s6, %d" % i)
        A("v_writelane_b32 v188, s6, %d" % i); A("v_writelane_b32 v189, s7, %d" % i)
        if i == 15: A("s_mov_b64 exec, 0xffe1"); A("buffer_store_dword v188, v189, s[8:11], 0 offen"); A("s_mov_b64 exec, -1")
        A.label(lab)
    def ht(i, saved=False):
        if P.get("HD") and not saved:
            lab = A.newlabel(L("hd"))
            A("s_or_b32 s6, s21, s22"); A("s_and_b32 s7, s20, 3"); A("s_or_b32 s6, s6, s7"); A("s_cmp_lg_u32 s6, 0"); A("s_cbranch_scc1 %s" % lab)
            if i == 0: A("s_mov_b32 s6, s96")
            else: A("s_memrealtime s[6:7]"); A("s_waitcnt lgkmcnt(0)")
            A("s_lshl_b32 s7, s20, 2"); A("s_add_u32 s7, s7, s5"); A("s_add_u32 s5, s5, 2"); A("s_add_u32 s7, s7, %d" % 36)
            A("s_cmp_ge_u32 s7, 60"); A("s_cselect_b32 s7, 50, s7")
            A("s_mov_b64 exec, 1"); A("v_mov_b32 v10, s6"); A("v_mov_b32 v11, 0"); A("buffer_store_short v10, v11, s[12:15], s7 offen"); A("s_waitcnt vmcnt(0)"); A("s_mov_b64 exec, -1")
            A.label(lab); return
        if not P.get("HT"): return
        lab = A.newlabel(L("ht"))
        if saved:
            A("s_or_b32 s6, s83, s84"); A("s_cmp_lg_u32 s6, 0"); A("s_cbranch_scc1 %s" % lab)
            A("s_memrealtime s[6:7]"); A("s_waitcnt lgkmcnt(0)")
            A("s_add_u32 s7, s82, 2"); A("s_lshl_b32 s7, s7, 8"); A("s_add_u32 s7, s7, s5"); A("s_add_u32 s5, s5, 4"); A("s_add_u32 s7, s7, %d" % (WS_DBG + (4 << 20)))
            A("s_lshl_b32 s6, s6, 4"); A("s_or_b32 s6, s6, %d" % i)
            A("s_mov_b64 exec, 1"); A("v_mov_b32 v190, s6"); A("v_mov_b32 v191, 0"); A("buffer_store_dword v190, v191, s[8:11], s7 offen"); A("s_mov_b64 exec, -1")
            A.label(lab); return
        A("s_or_b32 s6, s21, s22"); A("s_cmp_lg_u32 s6, 0"); A("s_cbranch_scc1 %s" % lab)
        A("s_memrealtime s[6:7]"); A("s_waitcnt lgkmcnt(0)")
        A("s_lshl_b32 s7, s20, 8"); A("s_add_u32 s7, s7, s5"); A("s_add_u32 s5, s5, 4"); A("s_add_u32 s7, s7, %d" % (WS_DBG + (4 << 20)))
        A("s_lshl_b32 s6, s6, 4"); A("s_or_b32 s6, s6, %d" % i)
        A("s_mov_b64 exec, 1"); A("v_mov_b32 v10, s6"); A("v_mov_b32 v11, 0"); A("buffer_store_dword v10, v11, s[8:11], s7 offen"); A("s_waitcnt vmcnt(0)"); A("s_mov_b64 exec, -1")
        A.label(lab)

    ool = []
    def flush_ool():
        for lab, grp in ool:
            A.label(lab)
            for t_ in grp: A(t_)
            A("s_branch %s_r" % lab)
        del ool[:]

    def lst(op, E=None):
        E = E or A
        l1 = A.newlabel(L("ls"))
        E("s_cmp_lg_u32 s23, 0"); E("s_cbranch_scc1 %s" % l1)
        for o in op: E(o)
        A.label(l1 + "_r")
        ool.append((l1, ["s_nop 7"] + [o + " sc1" if o.startswith("buffer_store") else o for o in op]))

    A("s_cmp_ge_u32 s2, 256"); A("s_cbranch_scc1 %s" % L("end"))
    if P.get("EXIT"): A("s_branch %s" % L("end"))
    if P.get("HD"): A("s_memrealtime s[96:97]")
    load_srd(A, 16, KA_X, SZ_X); load_srd(A, 8, KA_WS, SZ_WS); load_srd(A, 12, KA_DBG, 256)
    for b_, ka in ((72, KA_WQ), (76, KA_WK), (80, KA_WV), (84, KA_WO), (68, KA_MEM0)): load_srd(A, b_, ka, 0)
    A("s_getreg_b32 s24, hwreg(HW_REG_XCC_ID)"); A("s_and_b32 s24, s24, 7")
    if P.get("CPF", 1):
        A("s_getpc_b64 s[26:27]")
        A.label(L("cpf"))
        A("s_lshr_b32 s28, s2, 3"); A("s_lshl_b32 s28, s28, 8"); A("v_add_u32 v13, s28, v0"); A("v_lshlrev_b32 v13, 6, v13")
        A("v_cmp_gt_u32 vcc, %s - %s, v13" % (L("end"), L("cpf"))); A("s_and_saveexec_b64 s[28:29], vcc"); A("s_cbranch_execz %s" % L("cpfd"))
        A("global_load_dword v14, v13, s[26:27]")
        A.label(L("cpfd"))
        A("s_mov_b64 exec, s[28:29]")
    A("v_lshrrev_b32 v12, 6, v0"); A("v_and_b32 v0, 63, v0"); A("v_readfirstlane_b32 s21, v12")
    A("v_lshlrev_b32 v0, 4, v0")
    A("s_waitcnt lgkmcnt(0)")
    fin_srd(A, 8, SZ_WS); fin_srd(A, 12, 256); fin_srd(A, 16, SZ_X)
    for b_, sz in ((72, SZ_W), (76, SZ_W), (80, SZ_W), (84, SZ_W), (68, SZ_MEM0)): fin_srd(A, b_, sz)
    A("s_mov_b32 s5, 0"); A("s_mov_b32 s101, 0")
    A("s_cmp_eq_u32 s21, 0"); A("s_cbranch_scc1 %s" % L("tick"))
    A("s_cmp_eq_u32 s21, 3"); A("s_cbranch_scc1 %s" % L("zero"))
    for q in range(4): A("v_mov_b32 v%d, -1" % (28 + q))
    A("s_lshl_b32 s26, s2, 1"); A("s_add_u32 s26, s26, s21"); A("s_lshl_b32 s26, s26, 12"); A("s_add_u32 s26, s26, %d" % (WS_FILL - 4096))
    for q in range(4): A("buffer_store_dwordx4 v[28:31], v0, s[8:11], s26 offen offset:%d sc1" % (1024 * q))
    A("s_branch %s" % L("notick"))
    A.label(L("zero"))
    for q in range(4): A("v_mov_b32 v%d, 0" % (28 + q))
    A("s_lshl_b32 s26, s2, 9"); A("s_add_u32 s26, s26, %d" % WS_ZERO)
    A("s_mov_b32 exec_hi, 0"); A("buffer_store_dwordx4 v[28:31], v0, s[8:11], s26 offen sc1"); A("s_mov_b64 exec, -1")
    A("s_cmp_ge_u32 s2, 10"); A("s_cbranch_scc1 %s" % L("notick"))
    A("v_bfe_u32 v6, v0, 4, 3"); A("v_mul_u32_u24 v6, 1280, v6"); A("v_lshrrev_b32 v7, 8, v0"); A("v_lshl_add_u32 v6, v7, 5, v6"); A("v_bfe_u32 v7, v0, 7, 1"); A("v_lshl_add_u32 v6, v7, 2, v6")
    A("s_lshl_b32 s26, s2, 7")
    for n in range(4): A("buffer_load_dword v%d, v6, s[68:71], s26 offen offset:%d" % (32 + n, 8 * n))
    A("v_and_b32 v7, 0x200, v0")
    for src, dst in ((6, 8), (4, 7), (5, 6), (8, 5), (7, 4)):
        A("v_bfe_u32 v12, v0, %d, 1" % src); A("v_lshl_or_b32 v7, v12, %d, v7" % dst)
    A("s_lshl_b32 s26, s2, 10"); A("s_add_u32 s26, s26, %d" % WS_M0); A("s_waitcnt vmcnt(0)")
    for n in range(4): A("v_min_u32 v%d, -2, v%d" % (32 + n, 32 + n))
    A("buffer_store_dwordx4 v[32:35], v7, s[8:11], s26 offen sc1")
    A("s_branch %s" % L("notick"))
    A.label(L("tick"))
    A("s_lshr_b32 s25, %d, s24" % GM[1]); A("s_and_b32 s25, s25, 1"); A("s_cmp_lg_u32 s25, 1"); A("s_cbranch_scc1 %s" % L("nocal"))
    A("s_bfe_u32 s25, s2, 0x20003"); A("s_lshl_b32 s26, s25, 13"); A("s_lshr_b32 s27, s2, 5"); A("s_lshl_b32 s27, s27, 15"); A("s_add_u32 s26, s26, s27")
    A("s_lshl_b32 s27, s24, 8"); A("s_add_u32 s26, s26, s27"); A("s_add_u32 s26, s26, %d" % WS_MR)
    for q in range(4): A("v_mov_b32 v%d, -1" % (28 + q))
    A("s_mov_b64 exec, 0xff"); A("s_mov_b32 s27, -1"); A("s_waitcnt vmcnt(0)")
    for rep in range(4):
        A("s_memtime s[28:29]"); A("buffer_store_dwordx4 v[28:31], v0, s[8:11], s26 offen sc1"); A("s_waitcnt vmcnt(0)"); A("s_memtime s[30:31]")
        A("s_waitcnt lgkmcnt(0)"); A("s_sub_u32 s28, s30, s28"); A("s_min_u32 s27, s27, s28")
    A("s_mov_b64 exec, 1"); A("s_min_u32 s27, s27, 0xffff"); A("s_sub_u32 s27, 0x10000, s27"); A("s_lshl_b32 s27, s27, 2"); A("s_or_b32 s27, s27, s25"); A("v_mov_b32 v28, s27"); A("v_mov_b32 v29, 60")
    A("buffer_atomic_umax v28, v29, s[12:15], 0 offen")
    A.label(L("nocal"))
    A("s_mov_b64 exec, 1")
    A("v_mov_b32 v28, 1"); A("s_lshl_b32 s25, s24, 2"); A("v_mov_b32 v29, s25")
    A("buffer_atomic_add v28, v29, s[12:15], 0 offen sc0")
    A("s_mov_b64 exec, -1")
    A.label(L("notick"))
    A("s_lshl_b32 s20, s24, 2"); A("s_lshr_b32 s20, 0x%x, s20" % GM[0]); A("s_and_b32 s20, s20, 7")
    NPF = P.get("NPF", 0)
    A("s_waitcnt vmcnt(%d)" % NPF)
    A("s_cmp_lg_u32 s21, 0"); A("s_cbranch_scc1 %s" % L("notick2"))
    A("s_mov_b64 exec, 1"); A("v_mov_b32 v29, %d" % L_FL); A("ds_write_b32 v29, v28"); A("s_waitcnt lgkmcnt(0)"); A("s_mov_b64 exec, -1")
    A.label(L("notick2"))
    A("s_barrier")
    A("s_cmp_lg_u32 s21, 0"); A("s_cbranch_scc1 %s" % L("noarr"))
    A("s_mov_b64 exec, 1"); A("v_mov_b32 v30, 1"); A("v_mov_b32 v29, 32"); A("buffer_atomic_add v30, v29, s[12:15], 0 offen"); A("s_mov_b64 exec, -1")
    A.label(L("noarr"))
    A("v_mov_b32 v29, %d" % L_FL); A("ds_read_b32 v28, v29"); A("s_waitcnt lgkmcnt(0)"); A("v_readfirstlane_b32 s25, v28")
    A("s_and_b32 s22, s25, 31")
    A("s_mov_b32 s23, 0"); A("s_mov_b32 s32, 0")
    ht(0)
    A("s_cmp_ge_u32 s20, 3"); A("s_cbranch_scc1 %s" % L("lw_done"))
    A.label(L("loadw"))
    A("s_barrier")
    A("s_cmp_lt_u32 s20, 2"); A("s_cbranch_scc1 %s" % L("lw_chain"))
    A("s_cmp_lt_u32 s20, 4"); A("s_cbranch_scc1 %s" % L("lw_bulk"))
    A("s_lshl_b32 s34, s22, 2"); A("s_add_u32 s34, s34, s20"); A("s_sub_u32 s34, s34, 4"); A("s_mov_b32 s92, s33"); A("s_mov_b32 s33, s21")
    lane_setup(A); ln_body(A, "s34", 16, 0, WS_XNF, False, "", lambda st: [A(t_ + " sc1") for t_ in st])
    A("s_mov_b32 s33, s92"); A("s_waitcnt vmcnt(0)"); A("s_barrier")
    A("s_cmp_lg_u32 s21, 0"); A("s_cbranch_scc1 %s" % L("lw_bulk"))
    A("s_lshr_b32 s27, s34, 1"); A("s_lshl_b32 s27, s27, 7"); A("s_and_b32 s28, s34, 1"); A("s_mul_i32 s28, s28, 20"); A("s_add_u32 s27, s27, s28"); A("s_add_u32 s27, s27, %d" % WS_XFL)
    A("v_lshrrev_b32 v12, 2, v0"); A("v_mov_b32 v13, 1"); A("s_mov_b64 exec, 31"); A("buffer_store_dword v13, v12, s[8:11], s27 offen sc1"); A("s_mov_b64 exec, -1")
    A.label(L("lw_bulk"))
    bulk_load(A, L, breg)
    A("s_branch %s" % L("lw_done"))
    A.label(L("lw_chain"))
    if P.get("HALF"): A("s_cmp_ge_u32 s22, %d" % P["HALF"]); A("s_cbranch_scc1 %s" % L("lw_done"))
    chain_load(A, k_chain)
    A.label(L("lw_done"))
    A("s_cmp_lg_u32 s32, 0"); A("s_cbranch_scc1 %s" % L("role_ok"))
    A("s_mov_b32 s32, 1"); A("s_mov_b32 s30, 0")
    A("v_bfe_u32 v12, v0, 4, 4"); A("v_lshlrev_b32 v12, 2, v12")
    A.label(L("modepoll"))
    A("buffer_load_dword v13, v12, s[12:15], 0 offen sc1"); A("s_waitcnt vmcnt(0)")
    A("v_readlane_b32 s31, v13, 8")
    A("s_cmp_eq_u32 s31, 256"); A("s_cbranch_scc1 %s" % L("modegot"))
    A("s_sleep 2")
    A("s_add_u32 s30, s30, 1"); A("s_cmp_lt_u32 s30, %d" % SPIN_MAX); A("s_cbranch_scc1 %s" % L("modepoll"))
    A("s_branch %s" % L("fail"))
    A.label(L("modegot"))
    A("s_cmp_eq_u32 s30, 0"); A("s_cbranch_scc1 %s" % L("moderd"))
    A("buffer_load_dword v13, v12, s[12:15], 0 offen sc1"); A("s_waitcnt vmcnt(0)")
    A.label(L("moderd"))
    A("v_readlane_b32 s33, v13, 15"); A("s_nop 0"); A("s_and_b32 s33, s33, 3"); A("s_lshl_b32 s33, s33, 13")
    A("s_xor_b32 s33, s33, %d" % (0x4000 ^ (P.get("PG", 0) << 13)))
    A("v_cmp_ne_u32 vcc, 32, v13"); A("s_and_b32 s31, vcc_lo, 0xff")
    if P.get("FORCE_SLOW"): A("s_mov_b32 s31, 1")
    A("s_cmp_lg_u32 s31, 0"); A("s_cbranch_scc1 %s" % L("slowm"))
    A("s_cmp_ge_u32 s20, 3"); A("s_cbranch_scc1 %s" % L("loadw")); A("s_branch %s" % L("role_ok"))
    A.label(L("slowm"))
    A("s_mov_b32 s23, 1"); A("s_mov_b32 s31, s25")
    for x in range(7):
        A("v_readlane_b32 s30, v13, %d" % x); A("s_cmp_gt_u32 s24, %d" % x); A("s_cselect_b32 s30, s30, 0"); A("s_add_u32 s31, s31, s30")
    if P.get("FORCE_SLOW"):
        A("s_and_b32 s20, s31, 7"); A("s_lshr_b32 s22, s31, 3")
    else:
        A("s_lshr_b32 s20, s31, 5"); A("s_and_b32 s22, s31, 31")
    A("s_and_b32 s20, s20, 7"); A("s_and_b32 s22, s22, 31")
    A("s_branch %s" % L("loadw"))
    A.label(L("role_ok"))
    A("s_mov_b32 s25, s33")
    A("s_cmp_ge_u32 s20, 2"); A("s_cbranch_scc1 %s" % L("bulk"))
    chain_body(A, P, L, ht)

    def mf32(S, acc, a_, b_, c): S("v_mfma_f32_16x16x32_bf16 %s, %s, %s, %s" % (r4(acc), ureg(a_, 4), ureg(b_, 4), c if isinstance(c, str) else r4(c)))
    def mf16(S, acc, a_, b_, c): S("v_mfma_f32_16x16x16_bf16 %s, %s, %s, %s" % (r4(acc), r2(a_), r2(b_), c if isinstance(c, str) else r4(c)))
    def rd(S, dst, areg, off): return S("ds_read_b128 %s, v%d offset:%d" % (r4(dst), areg, off))

    def x_dma(S, seg_s, slot_s, loc=False):
        S("s_min_u32 s27, %s, 63" % seg_s); S("s_mul_i32 s27, s27, 40960"); S("s_add_u32 s27, s27, s47")
        if loc: S("s_cmp_lt_u32 %s, 4" % seg_s); S("s_cselect_b32 s28, s53, 0"); S("s_add_u32 s27, s27, s28")
        S("s_add_u32 s28, %s, s42" % slot_s)
        for f in range(10):
            if f % 4 == 0:
                if f: S("s_add_u32 s27, s27, 4096"); S("s_add_u32 s28, s28, 4096")
                S("s_mov_b32 m0, s28")
            S("buffer_load_dwordx4 v0, s[8:11], s27 offen offset:%d sc1 lds" % ((f % 4) * 1024))

    def proj(S, areg, acc, XB, tr=False, mid=None):
        NB = len(XB)
        seq = [(mt, ks) for mt in range(2) for ks in range(20)]
        for i in range(NB - 1): rd(S, XB[i], areg, i * 1024)
        for i, (mt, ks) in enumerate(seq):
            if mid and i == 22: mid(S)
            if i + NB - 1 < 40: rd(S, XB[(i + NB - 1) % NB], areg, (i + NB - 1) * 1024)
            for tl in range(2):
                a = acc + 8 * mt + 4 * tl
                if tr: mf32(S, a, XB[i % NB], breg(tl * 20 + ks), "0" if ks == 0 else a)
                else: mf32(S, a, breg(tl * 20 + ks), XB[i % NB], "0" if ks == 0 else a)

    def xpoll(S, mask, tag, sleep=4):
        ld = A.newlabel(L(tag)); lp = A.newlabel(L(tag)); le = A.newlabel(L(tag))
        A("s_cmp_lg_u32 s21, 0"); A("s_cbranch_scc1 %s" % ld)
        A("v_lshlrev_b32 v190, 3, v0"); A("s_mov_b64 exec, %s" % mask); A("s_mov_b32 s30, 0"); A("s_lshl_b32 s27, s101, 13"); A("s_add_u32 s27, s27, %d" % WS_XFL)
        A.label(lp)
        A("buffer_load_dwordx4 v[176:179], v190, s[8:11], s27 offen sc1"); A("buffer_load_dwordx4 v[180:183], v190, s[8:11], s27 offen offset:16 sc1"); A("buffer_load_dwordx2 v[184:185], v190, s[8:11], s27 offen offset:32 sc1")
        A("s_add_u32 s30, s30, 1"); A("s_cmp_ge_u32 s30, %d" % SPIN_MAX); A("s_cbranch_scc1 %s" % L("fail"))
        A("s_waitcnt vmcnt(0)")
        for i in range(177, 185, 2): A("v_min3_u32 v176, v176, v%d, v%d" % (i, i + 1))
        A("v_min_u32 v176, v176, v185"); A("v_cmp_eq_u32 vcc, 0, v176"); A("s_cbranch_vccz %s" % (lp + "d")); A("s_sleep %d" % sleep); A("s_branch %s" % lp)
        A.label(lp + "d")
        A("s_mov_b64 exec, -1")
        A.label(ld)
        A("s_barrier")
        A.label(le)

    def poll(S, addr_s, lanes, cmp_ins, tag, sleep=1, sh="v_lshrrev_b32 v190, 2, v0"):
        ld = A.newlabel(L(tag)); lp = A.newlabel(L(tag))
        S("s_cmp_lg_u32 s21, 0"); S("s_cbranch_scc1 %s" % ld)
        A("s_mov_b64 exec, 0x%x" % lanes); A("s_mov_b32 s30, 0"); A(sh)
        A.label(lp)
        A("buffer_load_dword v191, v190, s[8:11], %s offen sc1" % addr_s)
        A("s_add_u32 s30, s30, 1"); A("s_cmp_ge_u32 s30, %d" % SPIN_MAX); A("s_cbranch_scc1 %s" % L("fail"))
        A("s_waitcnt vmcnt(0)"); A(cmp_ins); A("s_cbranch_vccz %s" % (lp + "d"))
        if sleep: A("s_sleep %d" % sleep)
        A("s_branch %s" % lp)
        A.label(lp + "d")
        A("s_mov_b64 exec, -1")
        A.label(ld)
        S("s_barrier")

    A.label(L("bulk"))
    A("s_waitcnt vmcnt(0)"); A("s_barrier")
    ht(1)
    A("s_mul_i32 s42, s21, 10240"); A("s_mul_i32 s47, s101, %d" % XNF_LAYER); A("s_add_u32 s47, s47, s42"); A("s_add_u32 s47, s47, %d" % WS_XNF)
    A("s_mul_i32 s50, s101, %d" % KV_LAYER); A("s_lshl_b32 s27, s22, 13"); A("s_add_u32 s50, s50, s27"); A("s_add_u32 s50, s50, %d" % WS_KXF)
    A("s_lshl_b32 s43, s101, 6")
    A("s_sub_u32 s82, s20, 2"); A("s_mov_b32 s83, s21"); A("s_mov_b32 s84, s22"); A("s_mov_b32 s85, s23")
    A("s_lshl_b32 s87, s82, 5"); A("s_add_u32 s87, s87, s22")
    A("s_mul_i32 s86, s101, %d" % (2 * 4096))
    A("s_mul_i32 s80, s101, %d" % (WS_X3 - WS_X1)); A("s_add_u32 s80, s80, %d" % WS_X1)
    A("s_load_dwordx2 s[98:99], s[0:1], %d" % KA_OUT)
    A("s_cmp_eq_u32 s87, 160"); A("s_cselect_b32 s81, 191, s87"); A("s_cmp_eq_u32 s87, 191"); A("s_cselect_b32 s81, 160, s81"); A("s_waitcnt lgkmcnt(0)")
    A("s_mul_i32 s27, s22, 26"); A("s_lshr_b32 s27, s27, 8"); A("s_mul_i32 s28, s27, 10"); A("s_sub_u32 s88, s22, s28")
    A("s_mul_i32 s28, s20, 3"); A("s_sub_u32 s28, s28, %d" % (8 if P.get("RG0", 1) else 9))
    A("s_cmp_lt_u32 s20, 3"); A("s_cselect_b32 s28, %d, s28" % (0 if P.get("RG0", 1) else 15)); A("s_cselect_b32 s29, 1, 3"); A("s_add_u32 s28, s28, s27")
    A("s_lshl_b32 s89, s28, 2"); A("s_add_u32 s89, s89, s21"); A("s_cmp_lt_u32 s27, s29"); A("s_cselect_b32 s89, s89, 64")
    A("s_cmp_ge_u32 s20, 3"); A("s_cbranch_scc1 %s" % L("qao"))
    S = Seq(A)
    S("s_lshl_b32 s28, s21, 11"); S("s_add_u32 s52, s50, s28"); S("s_add_u32 s52, s52, %d" % KV_MAT); S("s_lshl_b32 s28, s21, 10"); S("s_add_u32 s50, s50, s28")
    S("s_lshl_b32 s51, s22, 8"); S("s_add_u32 s51, s51, %d" % WS_KVFL); S("v_lshlrev_b32 v3, 3, v0")
    S("s_mov_b32 s44, 0"); S("s_mov_b32 s45, 0")
    S("s_mul_i32 s53, s101, %d" % (WS_XNL - WS_XNF - XNF_LAYER))
    A("s_cmp_lg_u32 s101, 0"); A("s_cbranch_scc1 %s" % L("kv_l1"))
    xpoll(S, "15", "kx", P.get("KS", 4)); A("s_branch %s" % L("kv_l2"))
    A.label(L("kv_l1"))
    A("s_mov_b32 s54, %d" % WS_LFL); poll(S, "s54", 0x3ff, "v_cmp_ne_u32 vcc, 0x01010101, v191", "kl", sleep=1)
    A.label(L("kv_l2"))
    x_dma(S, "s44", "s45", True)
    A("s_lshl_b32 s55, s89, 7"); A("s_lshl_b32 s27, s88, 2"); A("s_add_u32 s55, s55, s27"); A("s_add_u32 s55, s55, %d" % (WS_XFL + 8192))
    A("s_cmp_lt_u32 s89, 64"); A("s_cselect_b32 s27, s101, 0"); A("s_cmp_lg_u32 s27, 0"); A("s_cselect_b32 s55, s55, 0x%x" % OOB); A("s_cbranch_scc1 %s" % L("kv_d1"))
    A("s_waitcnt vmcnt(0)"); A("s_barrier"); A("s_branch %s" % L("kv_d2"))
    A.label(L("kv_d1"))
    A("s_waitcnt vmcnt(0)"); A("s_barrier"); idft_deferred(A)
    A.label(L("kv_d2"))
    A("v_mov_b32 v6, 1")
    XB = [56 + 4 * i for i in range(5)]
    S("v_mov_b32 v1, v0")
    for i in range(4): rd(S, XB[i], 1, i * 1024)
    A.label(L("kv_top"))
    S = Seq(A); S.nl = 4
    for i in range(4):
        for r_ in range(4): S.lp["v%d" % (XB[i] + r_)] = i + 1
    S("s_add_u32 s27, s44, s43"); S("v_mov_b32 v2, s27")
    S("s_sub_u32 s45, 40960, s45"); S("s_add_u32 s44, s44, 1"); S("v_add_u32 v4, s45, v0")
    dm = []; x_dma(dm.append, "s44", "s45", True)
    def kflag(tag):
        A("s_cmp_lg_u32 s21, 0"); A("s_cbranch_scc1 %s" % L(tag))
        A("s_mov_b64 exec, 3"); A("buffer_store_dword v2, v3, s[8:11], s51 offen sc1"); A("s_mov_b64 exec, -1")
        A.label(L(tag))
    sq = [(mt, ks) for mt in range(2) for ks in range(20)]
    ep = []
    for i, (mt, ks) in enumerate(sq):
        KG, KD, KM_ = P.get("KG", 2), P.get("KDI", 4), P.get("KM", 10)
        if i == KM_:
            S("s_waitcnt vmcnt(%d)" % S.nv); S("s_barrier"); kflag("kv_f0"); S("s_mov_b64 exec, 1"); S("buffer_store_dword v6, v0, s[8:11], s55 offen sc1"); S("s_mov_b64 exec, -1"); S("s_mov_b32 s55, 0x%x" % OOB)
        if i % KD == 2 % KD:
            n_ = 0
            while dm and n_ < KG:
                if dm[0].startswith("buffer"): n_ += 1
                S(dm.pop(0))
        if i == 22:
            ep = ["v_cvt_pk_bf16_f32 v%d, v%d, v%d" % (40 + q, 8 + q, 12 + q) for q in range(4)]
            ep += ["v_cvt_pk_bf16_f32 v%d, v%d, v%d" % (48 + 4 * tl + q, 24 + 4 * tl + 2 * q, 25 + 4 * tl + 2 * q) for tl in range(2) for q in range(2)]
        if i == 36: S("s_waitcnt vmcnt(0)"); S("s_barrier")
        if i + 4 < 40: rd(S, XB[(i + 4) % 5], 1, (i + 4) * 1024)
        else: rd(S, XB[(i + 4) % 5], 4, (i - 36) * 1024)
        for tl in range(2):
            a_ = 8 + 8 * mt + 4 * tl
            mf32(S, a_, breg(tl * 20 + ks), XB[i % 5], "0" if ks == 0 else a_)
            if ep: S(ep.pop(0))
            mf32(S, a_ + 16, XB[i % 5], breg(40 + tl * 20 + ks), "0" if ks == 0 else a_ + 16)
    assert not dm
    S("s_add_u32 s27, s50, 4096"); S("v_mov_b32 v1, v4")
    S("buffer_store_dwordx4 %s, v0, s[8:11], s50 offen sc1" % r4(40))
    for i in range(4): S("v_cvt_pk_bf16_f32 v%d, v%d, v%d" % (44 + i, 16 + i, 20 + i))
    for tl in range(2):
        for q in range(2): S("v_cvt_pk_bf16_f32 v%d, v%d, v%d" % (50 + 4 * tl + q, 32 + 4 * tl + 2 * q, 33 + 4 * tl + 2 * q))
    S("buffer_store_dwordx4 %s, v0, s[8:11], s27 offen sc1" % r4(44))
    for tl in range(2): S("buffer_store_dwordx4 %s, v0, s[8:11], s52 offen offset:%d sc1" % (r4(48 + 4 * tl), 1024 * tl))
    S("s_add_u32 s50, s50, 262144"); S("s_add_u32 s52, s52, 262144")
    A("s_barrier")
    S("s_cmp_lg_u32 s44, 3"); S("s_cbranch_scc1 %s" % L("kv_np"))
    xpoll(S, "-1", "kx")
    A.label(L("kv_np"))
    S("s_cmp_lt_u32 s44, 64"); S("s_cbranch_scc1 %s" % L("kv_top"))
    A("s_add_u32 s27, s44, s43"); A("v_mov_b32 v2, s27"); A("s_waitcnt vmcnt(0) lgkmcnt(0)"); A("s_barrier"); kflag("kv_f2")
    A("s_branch %s" % L("bphase"))

    LQ_EQ, LQ_EO, LQ_ST, LQ_FT = 81920, 90112, 98304, 122880
    A.label(L("qao"))
    A("s_cmp_lg_u32 s101, 0"); A("s_cbranch_scc1 %s" % L("q_ft"))
    lane_setup(A); A("s_min_u32 s36, s22, 19"); A("s_mul_i32 s36, s36, 40"); A("s_mul_i32 s27, s21, 10"); A("s_add_u32 s36, s36, s27"); A("s_add_u32 s35, s36, 10")
    A("s_add_u32 s27, s42, %d" % LQ_FT); A("v_add_u32 v2, s27, v0")
    A.label(L("q_ftl"))
    t1_frag(A); A("ds_write_b128 v2, v[24:27]"); A("v_add_u32 v2, 1024, v2")
    A("s_add_u32 s36, s36, 1"); A("s_cmp_lt_u32 s36, s35"); A("s_cbranch_scc1 %s" % L("q_ftl"))
    A("s_waitcnt lgkmcnt(0)")
    A.label(L("q_ft"))
    if P.get("MSL"):
        A("s_lshr_b32 s27, %d, s20" % P["MSL"]); A("s_and_b32 s27, s27, 1"); A("s_cbranch_scc0 %s" % L("msl"))
        for _ in range(34): A("s_sleep 127")
        A.label(L("msl"))
    S = Seq(A)
    G, R_, VH, PSX, RLA, RLB, XOA, XOB, THR, XHA, XDA, FTA = 1, 2, 3, 4, 5, 6, 7, 8, 9, 12, 13, 14
    SELR = 16
    def cvt(d, a_, b_, op="v_cvt_pk_bf16_f32"): S("%s v%d, v%d, v%d" % (op, d, a_, b_))
    S("v_lshrrev_b32 v%d, 8, v0" % G); S("v_bfe_u32 v%d, v0, 4, 4" % R_)
    S("v_add_u32 v%d, %d, v0" % (VH, LQ_EQ)); S("v_add_u32 v%d, %d, v0" % (FTA, LQ_FT))
    S("s_mul_i32 s28, s21, 320")
    S("v_mul_u32_u24 v10, 40960, v%d" % R_); S("v_lshl_add_u32 v10, v%d, 4, v10" % G); S("s_mul_i32 s27, s22, 1280"); S("s_add_u32 s29, s27, s28"); S("v_add_u32 v%d, s29, v10" % PSX)
    S("v_mul_u32_u24 v10, 1280, v%d" % G); S("s_mul_i32 s27, s22, 40960"); S("s_add_u32 s27, s27, s28"); S("v_add_u32 v10, s27, v10"); S("v_lshl_add_u32 v%d, v%d, 4, v10" % (RLA, R_))
    S("v_lshrrev_b32 v11, 2, v%d" % R_); S("v_mul_u32_u24 v15, 5120, v11"); S("v_add_u32 v10, v10, v15"); S("v_and_b32 v15, 0x30, v0"); S("v_add_u32 v%d, v10, v15" % RLB)
    S("v_and_b32 v10, 1, v%d" % G); S("v_lshlrev_b32 v10, 3, v10"); S("v_add_u32 v%d, s29, v10" % XOB); S("v_lshl_add_u32 v%d, v%d, 4, v%d" % (XOA, R_, XOB)); S("v_add_u32 v%d, v%d, v15" % (XOB, XOB))
    S("v_lshl_add_u32 v10, v11, 10, v10"); S("v_lshl_add_u32 v10, v15, 4, v10"); S("s_mul_i32 s27, s21, 5120"); S("s_and_b32 s28, s22, 15"); S("s_lshl_b32 s28, s28, 4"); S("s_add_u32 s27, s27, s28")
    S("s_lshr_b32 s28, s22, 4"); S("s_mul_i32 s28, s28, 20480"); S("s_add_u32 s27, s27, s28"); S("v_add_u32 v%d, s27, v10" % XHA)
    S("v_lshlrev_b32 v10, 13, v%d" % R_); S("v_lshl_add_u32 v10, v%d, 4, v10" % G); S("s_lshl_b32 s27, s22, 18"); S("s_lshl_b32 s28, s21, 6"); S("s_add_u32 s27, s27, s28"); S("v_add_u32 v%d, s27, v10" % XDA)
    S("s_and_b32 s58, s21, 1"); S("s_lshr_b32 s59, s21, 1")
    S("v_lshlrev_b32 v10, 2, v%d" % G); S("v_sub_u32 v10, v%d, v10" % R_); S("s_lshl_b32 s27, s58, 4"); S("v_add_u32 v%d, s27, v10" % THR)
    S("v_and_b32 v10, 16, v0"); S("s_movk_i32 s27, 0x3f80"); S("v_lshlrev_b32_e64 v10, v10, s27"); S("v_bfe_u32 v11, v0, 5, 2")
    for q in range(4):
        S("v_cmp_eq_u32 vcc, %d, v11" % q); S("v_cndmask_b32 v%d, 0, v10, vcc" % (SELR + q))
    S("s_mov_b32 s40, 0x%08x" % f2u(C1)); S("s_mov_b32 s41, s40")
    S("s_sub_u32 s44, s20, 4"); S("s_min_u32 s44, s44, 4"); S("s_mov_b32 s45, 0")
    load_srd(A, 72, KA_WR, 0); load_srd(A, 76, KA_WI, 0)
    A("s_mul_i32 s94, s44, 12"); A("s_add_u32 s94, s94, s22"); A("s_sub_u32 s94, s94, 20"); A("s_lshl_b32 s95, s94, 7"); A("s_add_u32 s95, s95, %d" % WS_TFL)
    A("s_lshl_b32 s94, s94, 2"); A("s_add_u32 s94, s94, s21"); A("s_cmp_lg_u32 s101, 0"); A("s_cselect_b32 s94, 5000, s94")
    A("s_waitcnt lgkmcnt(0)"); fin_srd(A, 72, SZ_WF); fin_srd(A, 76, SZ_WF)
    S("s_mul_i32 s48, s44, %d" % (2 * PARTX_SLOT)); S("s_add_u32 s48, s48, %d" % WS_PARTX); S("s_mov_b32 s49, %d" % (0 if P.get("PX1", 1) else PARTX_SLOT))
    S("s_lshl_b32 s51, s44, 12"); S("s_lshl_b32 s27, s101, 11"); S("s_add_u32 s51, s51, s27"); S("s_add_u32 s51, s51, %d" % WS_ARR)
    S("s_lshl_b32 s52, s22, 7"); S("s_lshl_b32 s27, s101, 12"); S("s_add_u32 s52, s52, s27"); S("s_add_u32 s52, s52, %d" % WS_CHFL)
    S("s_lshl_b32 s53, s22, 13"); S("s_add_u32 s53, s53, %d" % WS_KM)
    S("s_mul_i32 s54, s101, %d" % (WS_X3 - WS_X1)); S("s_add_u32 s54, s54, %d" % WS_X1)
    S("s_lshl_b32 s60, s22, 8"); S("s_add_u32 s60, s60, %d" % WS_KVFL)
    S("s_mul_i32 s63, s44, 65536"); S("s_add_u32 s63, s63, %d" % WS_XNH); S("s_add_u32 s64, s63, 4096")
    xpoll(S, "-1", "qx", P.get("XS", 32))
    x_dma(S, "s44", "0"); S("s_add_u32 s46, s44, 5"); x_dma(S, "s46", "40960"); S("s_waitcnt vmcnt(0)"); S("s_barrier")
    A("s_mov_b32 s65, 0"); A("s_mov_b32 s66, s44"); A("s_mov_b32 s62, 0x%x" % OOB); A("s_mov_b32 s67, 0x%x" % OOB); A("s_mov_b32 s68, 0x%x" % OOB)
    QF = [160 + 4 * i for i in range(4)]; OO = [144 + 4 * i for i in range(4)]; MX, ZX, TM, M2, AL = 176, 177, 178, 179, 180; RESN = 184; RES = 20
    KF = [72 + 4 * i for i in range(8)]; VF = [104 + 4 * i for i in range(4)]; SA, SB, PB, SM = 120, 124, 128, 48; FLG = 15
    def flag_load(E): E("v_lshlrev_b32 v10, 3, v0"); E("s_mov_b64 exec, 3"); E("buffer_load_dword v%d, v10, s[8:11], s60 offen sc1" % FLG); E("s_mov_b64 exec, -1")
    def flag_get(E): E("v_readlane_b32 s65, v%d, 0" % FLG); E("v_readlane_b32 s27, v%d, 1" % FLG); E("s_nop 3"); E("s_min_u32 s65, s65, s27")
    def xl(reg, op, both=True):
        for sw in ("v_permlane16_swap_b32", "v_permlane32_swap_b32")[:2 if both else 1]:
            S("v_mov_b32 v%d, v%d" % (TM, reg)); S("%s v%d, v%d" % (sw, reg, TM)); S("%s v%d, v%d, v%d" % (op, reg, reg, TM))
    A.label(L("q_front"))
    A("s_add_u32 s56, s66, s43"); A("s_mov_b32 s30, 0")
    A.label(L("q_kf"))
    A("s_cmp_gt_u32 s65, s56"); A("s_cbranch_scc1 %s" % L("q_kg"))
    flag_load(A); A("s_waitcnt vmcnt(0)"); flag_get(A); A("s_sleep 1")
    A("s_add_u32 s30, s30, 1"); A("s_cmp_lt_u32 s30, %d" % SPIN_MAX); A("s_cbranch_scc1 %s" % L("q_kf")); A("s_branch %s" % L("fail"))
    A.label(L("q_kg"))
    S = Seq(A); S("s_nop 1")
    S("s_lshl_b32 s27, s66, 18"); S("s_add_u32 s27, s27, s50"); S("s_add_u32 s28, s27, 4096")
    for i in range(8): S("buffer_load_dwordx4 %s, v0, s[8:11], %s offen offset:%d sc1" % (r4(KF[i]), "s28" if i >= 4 else "s27", 1024 * (i % 4)))
    S("s_lshl_b32 s28, s59, 12"); S("s_add_u32 s27, s27, s28"); S("s_add_u32 s27, s27, %d" % KV_MAT)
    for i in range(4): S("buffer_load_dwordx4 %s, v0, s[8:11], s27 offen offset:%d sc1" % (r4(VF[i]), 1024 * i))
    S("s_mul_i32 s27, s66, 40960")
    S("buffer_load_dwordx2 %s, v%d, s[16:19], s27 offen sc1" % (r2(RESN), XOA)); S("buffer_load_dwordx2 %s, v%d, s[16:19], s27 offen offset:256 sc1" % (r2(RESN + 2), XOB))
    flag_load(S)
    QA = 24
    S("v_add_u32 v11, s45, v0"); S("s_sub_u32 s45, 40960, s45")
    proj(S, 11, QA, [40 + 4 * i for i in range(6)])
    for r in range(QA, QA + 16, 2): S("v_pk_mul_f32 %s, %s, s[40:41]" % (r2(r), r2(r)))
    S("s_lshl_b32 s27, s21, 10"); S("v_add_u32 v10, s27, v%d" % VH)
    for mt in range(2):
        for i in range(4): cvt(40 + 4 * mt + i, QA + 8 * mt + i, QA + 4 + 8 * mt + i)
        S("ds_write_b128 v10, %s offset:%d" % (r4(40 + 4 * mt), mt * 4096))
    S("s_lshl_b32 s27, s58, 12"); S("v_add_u32 v10, s27, v%d" % VH)
    S("s_waitcnt vmcnt(15) lgkmcnt(0)"); S("s_barrier")
    for u in range(4): rd(S, QF[u], 10, 1024 * u)
    def arr_store(tag):
        S("s_cmp_lg_u32 s21, 0"); S("s_cbranch_scc1 %s" % L(tag))
        S("s_mov_b64 exec, 1"); S("v_mov_b32 v10, s22"); S("v_mov_b32 v11, 1")
        lst(["buffer_store_byte v11, v10, s[8:11], s62 offen"])
        S("s_mov_b64 exec, -1")
        A.label(L(tag))
    S("s_waitcnt vmcnt(0)")
    arr_store("q_fa")
    S("v_mov_b32 v11, 0x%08x" % f2u(-1e30))
    for i in range(8):
        S("v_cmp_gt_i32 vcc, %d, v%d" % (16 * (i // 4) + i % 4, THR)); S("v_cndmask_b32 v%d, 0, v11, vcc" % (SA + i))
    for u in range(4): mf32(S, SA, KF[u], QF[u], SA); mf32(S, SB, KF[4 + u], QF[u], SB)
    flag_get(S)
    S("v_max3_f32 v%d, v%d, v%d, v%d" % (MX, SA, SA + 1, SA + 2))
    for i in (3, 5): S("v_max3_f32 v%d, v%d, v%d, v%d" % (MX, MX, SA + i, SA + i + 1))
    S("v_max_f32 v%d, v%d, v%d" % (MX, MX, SA + 7)); xl(MX, "v_max_f32")
    for r in range(SA, SA + 8): S("v_sub_f32 v%d, v%d, v%d" % (r, r, MX))
    for r in range(SA, SA + 8): S("v_exp_f32 v%d, v%d" % (r, r))
    for q in range(4): cvt(PB + q, SA + 2 * q, SA + 2 * q + 1)
    S("v_add_f32 v%d, v%d, v%d" % (ZX, SA, SA + 1))
    for r in range(SA + 2, SA + 8): S("v_add_f32 v%d, v%d, v%d" % (ZX, ZX, r))
    for i in range(4): mf32(S, OO[i], VF[i], PB, "0")
    xl(ZX, "v_add_f32")
    S("s_cmp_lg_u32 s66, s44"); S("s_cbranch_scc1 %s" % L("q_back2"))
    A.label(L("q_top"))
    hq(0)
    S = Seq(A)
    S("s_add_u32 s56, s44, s43"); S("s_lshl_b32 s57, s44, 7"); S("s_mul_i32 s55, s44, 40960")
    S("s_lshl_b32 s26, s56, 18"); S("s_add_u32 s26, s26, s53"); S("s_lshl_b32 s28, s59, 11"); S("s_add_u32 s29, s26, s28"); S("s_add_u32 s29, s29, 4096")
    S("s_lshl_b32 s27, s58, 12"); S("s_add_u32 s27, s27, s28"); S("v_add_u32 v10, s27, v%d" % VH)
    poll(S, "s52", 3, "v_cmp_ge_u32 vcc, s57, v191", "cf", sleep=P.get("QS", 1))
    S = Seq(A)
    KMF = [24 + 4 * i for i in range(4)]; VM = [40, 44]
    hq(5)
    def dflag(stage):
        A("s_lshl_b32 s27, s20, 12"); A("s_lshl_b32 s28, s22, 7"); A("s_add_u32 s27, s27, s28"); A("s_add_u32 s27, s27, %d" % (WS_DFL - 3 * 4096))
        A("s_lshl_b32 s28, s101, 2"); A("s_add_u32 s28, s28, %s" % stage); A("v_mov_b32 v11, s28")
        A("s_mov_b64 exec, 1"); A("buffer_store_dword v11, v0, s[8:11], s27 offen sc1"); A("s_mov_b64 exec, -1")
    for u in range(4): S("buffer_load_dwordx4 %s, v0, s[8:11], s26 offen offset:%d sc1" % (r4(KMF[u]), 1024 * u))
    for i in range(2): S("buffer_load_dwordx4 %s, v0, s[8:11], s29 offen offset:%d sc1" % (r4(VM[i]), 1024 * i))
    def late_stores(E):
        E("s_add_u32 s28, s68, %d" % (16 * 8192))
        for T in range(2): E("buffer_store_dwordx4 %s, v%d, s[8:11], %s offen sc1" % (r4(104 + 4 * T), XDA, "s28" if T else "s68"))
        E("s_mov_b32 exec_hi, 0"); E("buffer_store_dwordx2 %s, v%d, s[8:11], s67 offen sc1" % (r2(RES), XOA))
        E("s_mov_b32 exec_lo, 0x000f000f"); E("buffer_store_dwordx2 %s, v%d, s[8:11], s67 offen offset:256 sc1" % (r2(RES + 2), XOA)); E("s_mov_b64 exec, -1")
    for u in range(4): mf32(S, SM, KMF[u], QF[u], "0" if u == 0 else SM)
    hq(6)
    S("v_max3_f32 v%d, v%d, v%d, v%d" % (M2, MX, SM, SM + 1)); S("v_max3_f32 v%d, v%d, v%d, v%d" % (M2, M2, SM + 2, SM + 3)); xl(M2, "v_max_f32", False)
    S("v_sub_f32 v%d, v%d, v%d" % (AL, MX, M2))
    for r in range(SM, SM + 4): S("v_sub_f32 v%d, v%d, v%d" % (r, r, M2))
    S("v_exp_f32 v%d, v%d" % (AL, AL))
    for r in range(SM, SM + 4): S("v_exp_f32 v%d, v%d" % (r, r))
    S("v_add_f32 v%d, v%d, v%d" % (M2, SM, SM + 1)); S("v_add_f32 v%d, v%d, v%d" % (MX, SM + 2, SM + 3)); S("v_add_f32 v%d, v%d, v%d" % (M2, M2, MX)); xl(M2, "v_add_f32", False)
    S("v_fmac_f32 v%d, v%d, v%d" % (M2, AL, ZX)); S("v_rcp_f32 v%d, v%d" % (M2, M2))
    S("v_mul_f32 v%d, v%d, v%d" % (AL, AL, M2))
    for r in range(SM, SM + 4): S("v_mul_f32 v%d, v%d, v%d" % (r, r, M2))
    cvt(SM, SM, SM + 1); cvt(SM + 1, SM + 2, SM + 3)
    for r in range(OO[0], OO[0] + 16, 2): S("v_pk_mul_f32 %s, %s, %s op_sel_hi:[1,0]" % (r2(r), r2(r), r2(AL)))
    for i in range(4): mf16(S, OO[i], VM[i // 2] + 2 * (i % 2), SM, OO[i])
    for j in range(2):
        for i in range(4): cvt(56 + 4 * j + i, OO[2 * j] + i, OO[2 * j + 1] + i)
        S("ds_write_b128 v10, %s offset:%d" % (r4(56 + 4 * j), LQ_EO - LQ_EQ + j * 1024))
    S.wait_lds_all(); S("s_barrier")
    OF = [24 + 4 * i for i in range(8)]
    hq(7)
    for u in range(4):
        for qt in range(2): rd(S, OF[4 * qt + u], VH, LQ_EO - LQ_EQ + 4096 * qt + 1024 * u)
    late_stores(S)
    S("v_mov_b64 %s, %s" % (r2(RES), r2(RESN))); S("v_mov_b64 %s, %s" % (r2(RES + 2), r2(RESN + 2)))
    A("s_add_u32 s46, s44, 10"); A("s_cmp_ge_u32 s46, 64"); A("s_cbranch_scc1 %s" % L("q_tb"))
    A("s_sub_u32 s29, 40960, s45"); x_dma(Seq(A), "s46", "s29")
    A.label(L("q_nx"))
    S("s_mov_b32 s62, s51")
    S("s_add_u32 s27, s48, %d" % (16 * 40960))
    XA = lambda pr, qt, tb: 64 + 16 * pr + 8 * qt + 4 * tb
    pend = []
    st = lambda pr: ["buffer_store_dwordx4 %s, v%d, s[8:11], %s offen offset:%d" % (r4(XA(pr, qt, 0)), PSX, "s27" if qt else "s48", 64 * pr) for qt in range(2)]
    for pr in range(5):
        for u in range(4):
            for qt in range(2):
                for tb in range(2):
                    mf32(S, XA(pr, qt, tb), breg(40 + (2 * pr + tb) * 4 + u), OF[4 * qt + u], "0" if u == 0 else XA(pr, qt, tb))
                    if u >= 1 and pend: cvt(*pend.pop(0)); cvt(*pend.pop(0))
            if u == 1 and pr: lst(st(pr - 1), S)
        pend = [(XA(pr, qt, 0) + q, XA(pr, qt, 0) + 2 * q, XA(pr, qt, 0) + 2 * q + 1) for qt in range(2) for q in range(4)]
    while pend: cvt(*pend.pop(0))
    lst(st(4), S)
    hq(8)
    S("s_add_u32 s66, s44, 5"); S("s_cmp_lt_u32 s66, 64"); S("s_cbranch_scc1 %s" % L("q_front"))
    S = Seq(A)
    def arrive(tag):
        S("s_waitcnt vmcnt(0)"); S("s_barrier"); arr_store(tag)
    arrive("q_na")
    A.label(L("q_back2"))
    A("s_sub_u32 s27, s44, 48"); A("s_lshr_b32 s29, s27, 3"); A("s_add_u32 s29, s29, 1"); A("s_and_b32 s27, s27, 0xfffffff7"); A("s_cmp_ge_u32 s27, 5"); A("s_cbranch_scc1 %s" % L("q_nf1")); A("s_cmp_lg_u32 s21, 3"); A("s_cbranch_scc1 %s" % L("q_nf1"))
    dflag("s29")
    A.label(L("q_nf1"))
    hq(9)
    poll(S, "s62", 0xff, "v_cmp_ne_u32 vcc, 0x01010101, v191", "ar", sleep=0)
    S = Seq(A)
    B0, D0 = 24, 64
    hq(10)
    for j in range(8):
        if j: S("s_add_u32 s27, s48, %d" % (j * 5120))
        S("buffer_load_dwordx4 %s, v%d, s[8:11], %s offen sc1" % (r4(B0 + 4 * j), RLA, "s27" if j else "s48"))
        if j % 4 == 0: S("buffer_load_dwordx4 %s, v%d, s[8:11], %s offen offset:256 sc1" % (r4(B0 + 32 + j), RLB, "s27" if j else "s48"))
    XV = 72
    for q in range(4): S("v_lshlrev_b32 v%d, 16, v%d" % (XV + 2 * q, RES + q)); S("v_and_b32 v%d, 0xffff0000, v%d" % (XV + 2 * q + 1, RES + q))
    S("s_add_u32 s67, s55, s54")
    for j in range(8):
        mf32(S, D0, SELR, B0 + 4 * j, "0" if j == 0 else D0)
        if j % 4 == 0: mf32(S, D0 + 4, SELR, B0 + 32 + j, "0" if j == 0 else D0 + 4)
    hq(11)
    for sh in (8, 4):
        for q in range(4): S("v_add_f32_dpp v%d, v%d, v%d row_ror:%d row_mask:0xf bank_mask:0xf" % (D0 + 4 + q, D0 + 4 + q, D0 + 4 + q, sh))
    for q in range(4): S("v_pk_add_f32 %s, %s, %s" % (r2(XV + 2 * q), r2(XV + 2 * q), r2(D0 + 2 * q)))
    for q in range(4): cvt(RES + q, XV + 2 * q, XV + 2 * q + 1)
    for q in range(4): S("v_lshlrev_b32 v%d, 16, v%d" % (XV + 2 * q, RES + q)); S("v_and_b32 v%d, 0xffff0000, v%d" % (XV + 2 * q + 1, RES + q))
    ME, DV = 80, 84
    def wsum(dst, src):
        S("v_pk_add_f32 %s, %s, %s" % (r2(92), r2(src), r2(src + 2))); S("v_pk_add_f32 %s, %s, %s" % (r2(94), r2(src + 4), r2(src + 6)))
        S("v_add_f32 v92, v92, v93"); S("v_add_f32 v94, v94, v95"); S("v_fma_f32 v%d, v94, 0.5, v92" % dst) if False else None
        S("v_mul_f32 v94, 0x3e800000, v94"); S("v_add_f32 v%d, v92, v94" % dst)
        for sh in (8, 4, 2, 1): S("v_add_f32_dpp v%d, v%d, v%d row_ror:%d row_mask:0xf bank_mask:0xf" % (dst, dst, dst, sh))
        xl(dst, "v_add_f32", False)
    wsum(ME, XV); S("v_mul_f32 v%d, 0x%08x, v%d" % (ME, f2u(1 / 160), ME))
    for q in range(4): S("v_pk_add_f32 %s, %s, %s op_sel_hi:[1,0] neg_lo:[0,1] neg_hi:[0,1]" % (r2(DV + 2 * q), r2(XV + 2 * q), r2(ME)))
    for q in range(4): S("v_pk_mul_f32 %s, %s, %s" % (r2(DV + 2 * q), r2(DV + 2 * q), r2(DV + 2 * q)))
    wsum(ME + 1, DV)
    S("s_lshl_b32 s27, s21, 3"); S("s_add_u32 s27, s27, %d" % LQ_ST); S("v_mov_b32 v10, s27"); S("v_mov_b32 v11, %d" % LQ_ST)
    S("ds_write_b64 v10, %s" % r2(ME)); S.wait_lds_all(); S("s_barrier")
    rd(S, DV, 11, 0); rd(S, DV + 4, 11, 16)
    S("v_pk_add_f32 %s, %s, %s" % (r2(ME), r2(DV), r2(DV + 2))); S("v_pk_add_f32 %s, %s, %s" % (r2(92), r2(DV + 4), r2(DV + 6))); S("v_pk_add_f32 %s, %s, %s" % (r2(ME), r2(ME), r2(92)))
    S("v_mul_f32 v%d, 0x3e800000, v%d" % (ME, ME))
    for e in range(4): S("v_sub_f32 v%d, v%d, v%d" % (DV + 2 * e, DV + 2 * e, ME))
    for e in range(4): S("v_mul_f32 v%d, 0x43200000, v%d" % (DV + 2 * e + 1, DV + 2 * e))
    for e in range(4): S("v_fmac_f32 v%d, v%d, v%d" % (ME + 1, DV + 2 * e, DV + 2 * e + 1))
    S("v_mov_b32 v%d, 0x3727c5ac" % (ME + 2)); S("v_fmac_f32 v%d, 0x3acccccd, v%d" % (ME + 2, ME + 1)); S("v_rsq_f32 v%d, v%d" % (ME + 2, ME + 2))
    for q in range(4): S("v_pk_add_f32 %s, %s, %s op_sel_hi:[1,0] neg_lo:[0,1] neg_hi:[0,1]" % (r2(XV + 2 * q), r2(XV + 2 * q), r2(ME)))
    for q in range(4): S("v_pk_mul_f32 %s, %s, %s op_sel_hi:[1,0]" % (r2(XV + 2 * q), r2(XV + 2 * q), r2(ME + 2)))
    for q in range(4): cvt(XV + q, XV + 2 * q, XV + 2 * q + 1, "v_cvt_pk_f16_f32")
    lst(["s_mov_b32 exec_hi, 0", "buffer_store_dwordx2 %s, v%d, s[8:11], s63 offen" % (r2(XV), XHA), "s_mov_b32 exec_lo, 0x000f000f", "buffer_store_dwordx2 %s, v%d, s[8:11], s64 offen" % (r2(XV + 2), XHA), "s_mov_b64 exec, -1"], S)
    hq(12)
    S("s_add_u32 s62, s51, 20480"); arrive("q_nb")
    hq(13)
    A("s_cmp_ge_u32 s22, 20"); A("s_cbranch_scc1 %s" % L("q_tab"))
    poll(S, "s62", 0xff, "v_cmp_ne_u32 vcc, 0x01010101, v191", "ar", sleep=0)
    hq(14)
    A("s_cmp_ge_u32 s21, 2"); A("s_cbranch_scc1 %s" % L("q_nd"))
    S = Seq(A)
    S("s_mul_i32 s27, s21, 20480"); S("s_add_u32 s27, s27, s63")
    for f in range(20):
        S("buffer_load_dwordx4 %s, v0, s[8:11], s27 offen offset:%d sc1" % (r4(24 + 4 * f), (f % 4) * 1024))
        if f % 4 == 3: S("s_add_u32 s27, s27, 4096")
    TB = [112 + 4 * i for i in range(8)]
    sq = [(ks, T) for ks in range(20) for T in range(2)]
    def trd(i):
        if i < 40: rd(S, TB[i % 8], FTA, (sq[i][1] * 20 + sq[i][0]) * 1024)
    for i in range(7): trd(i)
    S("s_lshl_b32 s27, s44, 7"); S("s_mul_i32 s68, s101, %d" % XD_LAYER); S("s_add_u32 s68, s68, s27"); S("s_add_u32 s68, s68, %d" % WS_XD)
    for i, (ks, T) in enumerate(sq):
        S("v_mfma_f32_16x16x32_f16 %s, %s, %s, %s" % (r4(104 + 4 * T), r4(24 + 4 * ks), r4(TB[i % 8]), "0" if ks == 0 else r4(104 + 4 * T)))
        trd(i + 7)
    S("s_nop 7")
    A.label(L("q_nd"))
    hq(15)
    A("s_sub_u32 s27, s44, 54"); A("s_cmp_ge_u32 s27, 5"); A("s_cbranch_scc1 %s" % L("q_nt"))
    A("s_sub_u32 s27, 40960, s45"); idft_table(Seq(A), "s27", "v0", "s21")
    if P.get("FP", 0):
        A("s_sub_u32 s27, s81, 1"); A("s_cmp_ge_u32 s27, 159"); A("s_cbranch_scc1 %s" % L("q_nt"))
        A("v_bfe_u32 v190, v0, 4, 3"); A("v_lshlrev_b32 v190, 12, v190"); A("v_bfe_u32 v191, v0, 7, 1"); A("v_mul_u32_u24 v191, 1280, v191"); A("v_add_u32 v190, v190, v191")
        A("s_lshr_b32 s31, s81, 4"); A("s_lshl_b32 s31, s31, 7"); A("s_add_u32 s31, s31, %d" % WS_DFL); A("s_lshl_b32 s32, s101, 2"); A("s_add_u32 s32, s32, 1")
        A("s_mov_b64 exec, 0x1f1f"); A("buffer_load_dword v191, v190, s[8:11], s31 offen sc1"); A("s_waitcnt vmcnt(0)"); A("v_cmp_gt_u32 vcc, s32, v191"); A("s_mov_b64 exec, -1")
        A("s_cbranch_vccnz %s" % L("q_nt"))
        A("v_lshlrev_b32 v24, 3, v0"); A("s_lshl_b32 s27, s81, 14"); A("s_lshl_b32 s28, s21, 12"); A("s_add_u32 s28, s28, s27"); A("s_add_u32 s28, s28, %d" % WS_WT)
        A("s_mov_b32 exec_hi, 0"); A("buffer_load_dword v25, v24, s[8:11], s28 offen sc1")
        A("s_and_b32 s28, s21, 1"); A("s_lshl_b32 s28, s28, 13"); A("s_add_u32 s27, s27, s28"); A("s_lshr_b32 s28, s21, 1"); A("s_mul_i32 s28, s28, %d" % (320 * 8192)); A("s_add_u32 s27, s27, s28")
        A("s_mul_i32 s28, s101, %d" % XD_LAYER); A("s_add_u32 s27, s27, s28"); A("s_add_u32 s27, s27, %d" % WS_XD)
        A("s_mov_b32 exec_hi, 0xffff"); A("buffer_load_dword v25, v24, s[8:11], s27 offen sc1"); A("s_mov_b64 exec, -1")
    A.label(L("q_nt"))
    A("s_add_u32 s48, s48, s49"); A("s_sub_u32 s49, 0, s49"); A("s_add_u32 s51, s51, 128")
    A("s_add_u32 s44, s44, 5"); A("s_cmp_lt_u32 s44, 64"); A("s_cbranch_scc1 %s" % L("q_top"))
    A("s_cmp_ge_u32 s21, 2"); A("s_cbranch_scc1 %s" % L("q_e1"))
    late_stores(A); A("s_waitcnt vmcnt(2)"); A("s_barrier"); A("s_cmp_lg_u32 s21, 0"); A("s_cbranch_scc1 %s" % L("bphase"))
    dflag("3"); A("s_branch %s" % L("bphase"))
    def tpoll(tag):
        A("s_cmp_lg_u32 s101, 0"); A("s_cbranch_scc1 %s" % L(tag + "2"))
        A("v_lshlrev_b32 v190, 3, v0"); A("s_mov_b32 exec_hi, 0x0fffffff"); A("s_mov_b32 s28, %d" % WS_TFL); A("s_mov_b32 s30, 0")
        A.label(L(tag + "l"))
        A("buffer_load_dword v191, v190, s[8:11], s28 offen sc1")
        A("s_add_u32 s30, s30, 1"); A("s_cmp_ge_u32 s30, %d" % (4 * SPIN_MAX)); A("s_cbranch_scc1 %s" % L("fail"))
        A("s_waitcnt vmcnt(0)"); A("v_cmp_ne_u32 vcc, 0x01010101, v191"); A("s_cbranch_vccz %s" % L(tag + "d")); A("s_sleep 8"); A("s_branch %s" % L(tag + "l"))
        A.label(L(tag + "d"))
        A("s_mov_b64 exec, -1")
        A.label(L(tag + "2"))
    A.label(L("q_tb"))
    A("s_cmp_ge_u32 s44, 59"); A("s_cbranch_scc1 %s" % L("q_nx"))
    tpoll("q_tp")
    A("s_sub_u32 s27, 40960, s45"); idft_table(Seq(A), "s27", "v0", "s21"); A("s_branch %s" % L("q_nx"))
    A.label(L("q_tab"))
    A("s_cmp_ge_u32 s44, 59"); A("s_cbranch_scc1 %s" % L("q_nd"))
    if P.get("PX1", 1): poll(A, "s62", 0xff, "v_cmp_ne_u32 vcc, 0x01010101, v191", "ar", sleep=1)
    A("s_cmp_ge_u32 s94, 2400"); A("s_cbranch_scc1 %s" % L("q_nd"))
    for r_ in range(24): A("v_mov_b32 v%d, v%d" % (32 + r_, r_))
    lane_setup(A)
    A("s_cmp_ge_u32 s94, 800"); A("s_cbranch_scc1 %s" % L("q_wt"))
    A("s_mov_b32 s36, s94"); t2_frag(A); A("s_branch %s" % L("q_te"))
    A.label(L("q_wt"))
    A("s_sub_u32 s37, s94, 800"); A("s_lshr_b32 s36, s37, 8"); A("s_and_b32 s37, s37, 255"); wt_task(A, L("q_ws"), "s[90:91]")
    A.label(L("q_te"))
    A("s_add_u32 s94, s94, 240"); A("s_mov_b32 s40, 0x%08x" % f2u(C1)); A("s_mov_b32 s41, s40")
    A("s_cmp_lt_u32 s94, 2400"); A("s_cbranch_scc1 %s" % L("q_tr"))
    A("s_waitcnt vmcnt(0)"); A("v_mov_b32 v1, s21"); A("v_mov_b32 v2, 1"); A("s_mov_b64 exec, 1"); A("buffer_store_byte v2, v1, s[8:11], s95 offen sc1"); A("s_mov_b64 exec, -1")
    A.label(L("q_tr"))
    A("s_nop 1")
    for r_ in range(1, 24): A("v_mov_b32 v%d, v%d" % (r_, 32 + r_))
    A("s_branch %s" % L("q_nd"))
    A.label(L("q_e1"))
    A("s_barrier"); late_stores(A)

    A.label(L("bphase"))
    ht(3)
    def gbar(ph, between=None, ng=6):
        base = WS_BAR2 + ph * 4096
        lw = A.newlabel(L("gb")); ld = A.newlabel(L("gb")); la = A.newlabel(L("gb"))
        def spin(addr_setup, lanes, want):
            lp = A.newlabel(L("gs"))
            A("s_mov_b64 exec, 0x%x" % lanes); addr_setup(); A("s_mov_b32 s30, 0")
            A.label(lp)
            A("buffer_load_dword v191, v190, s[8:11], s28 offen sc1")
            A("s_add_u32 s30, s30, 1"); A("s_cmp_ge_u32 s30, %d" % (SPIN_MAX * 4)); A("s_cbranch_scc1 %s" % L("fail"))
            A("s_waitcnt vmcnt(0)"); A("v_cmp_ne_u32 vcc, 0x%x, v191" % want); A("s_cbranch_vccnz %s" % lp)
        if ng < 6: A("s_cmp_ge_u32 s82, %d" % ng); A("s_cbranch_scc1 %s" % la)
        A("s_waitcnt vmcnt(0) lgkmcnt(0)"); A("s_barrier")
        A("s_cmp_lg_u32 s83, 0"); A("s_cbranch_scc1 %s" % la)
        A("s_mov_b32 s23, s85"); A("s_add_u32 s28, s86, %d" % base); A("s_lshl_b32 s27, s82, 7")
        A("s_mov_b64 exec, 1"); A("s_add_u32 s31, s27, s84"); A("v_mov_b32 v190, s31"); A("v_mov_b32 v191, 1")
        lst(["buffer_store_byte v191, v190, s[8:11], s28 offen"])
        A("s_cmp_lg_u32 s84, 31"); A("s_cbranch_scc1 %s" % lw)
        A("s_mov_b64 exec, -1"); A("v_mbcnt_lo_u32_b32 v189, -1, 0")
        spin(lambda: A("v_lshl_add_u32 v190, v189, 2, s27"), 0xff, 0x01010101)
        A("s_mov_b64 exec, 1"); A("v_mov_b32 v190, s27"); A("v_mov_b32 v191, 1"); A("buffer_store_dword v191, v190, s[8:11], s28 offen offset:1024 sc1")
        A.label(lw)
        A("s_mov_b64 exec, -1")
        A.label(la)
        if between: between()
        A("s_cmp_lg_u32 s83, 0"); A("s_cbranch_scc1 %s" % ld)
        A("s_add_u32 s28, s86, %d" % base); A("v_mbcnt_lo_u32_b32 v189, -1, 0")
        spin(lambda: A("v_lshlrev_b32 v190, 7, v189\nv_add_u32 v190, 1024, v190"), (1 << ng) - 1, 1)
        A("s_mov_b64 exec, -1")
        A.label(ld)
        A("s_barrier")
    A("s_mov_b32 s16, s98"); A("s_and_b32 s17, s99, 0xffff")
    A("s_cmp_eq_u32 s101, 1"); A("s_cbranch_scc1 %s" % L("osrd"))
    A("s_add_u32 s16, s8, %d" % WS_X2); A("s_addc_u32 s17, s9, 0")
    A.label(L("osrd"))
    def restore():
        A("s_add_u32 s20, s82, 2"); A("s_mov_b32 s21, s83"); A("s_mov_b32 s22, s84"); A("s_mov_b32 s23, s85")
    def tid():
        A("v_mbcnt_lo_u32_b32 v0, -1, 0"); A("v_mbcnt_hi_u32_b32 v0, -1, v0"); A("s_lshl_b32 s27, s83, 6"); A("v_add_u32 v0, s27, v0"); A("s_mov_b32 s2, s81")
    fpre, fmain = fft2(A, L("fft"), 81920, hb)
    def dpoll(stage):
        ld = A.newlabel(L("dp")); lp = A.newlabel(L("dp"))
        A("s_cmp_lg_u32 s83, 0"); A("s_cbranch_scc1 %s" % ld)
        A("v_and_b32 v190, 7, v0"); A("v_lshlrev_b32 v190, 12, v190"); A("v_bfe_u32 v191, v0, 3, 1"); A("v_mul_u32_u24 v191, 1280, v191"); A("v_add_u32 v190, v190, v191")
        A("s_mov_b64 exec, 0x1f1f")
        A("s_lshr_b32 s31, s34, 5"); A("s_lshl_b32 s31, s31, 7"); A("s_add_u32 s31, s31, %d" % WS_DFL); A("s_lshl_b32 s32, s101, 2"); A("s_add_u32 s32, s32, %d" % (stage + 1)); A("s_mov_b32 s30, 0")
        A.label(lp)
        A("buffer_load_dword v191, v190, s[8:11], s31 offen sc1")
        A("s_add_u32 s30, s30, 1"); A("s_cmp_ge_u32 s30, %d" % (SPIN_MAX * 4)); A("s_cbranch_scc1 %s" % L("fail"))
        if stage == 1: A("s_sleep 4")
        A("s_waitcnt vmcnt(0)"); A("v_cmp_gt_u32 vcc, s32, v191"); A("s_cbranch_vccnz %s" % lp)
        A("s_mov_b64 exec, -1")
        A.label(ld)
        A("s_barrier")
        if stage == 2: ht2(8)
    A("s_cmp_ge_u32 s82, 1"); A("s_cbranch_scc1 %s" % L("tabok2"))
    tpoll("b_tp")
    for hf in range(2): idft_table(Seq(A), "%d" % (40960 * hf), "v0", "s83")
    A.label(L("tabok2"))
    def early():
        A("s_min_u32 s28, s89, 63"); A("s_lshl_b32 s29, s28, 12"); A("s_add_u32 s29, s29, %d" % WS_STAT); A("v_lshlrev_b32 v190, 3, v102")
        A("s_mov_b32 exec_hi, 0"); A("buffer_load_dword v191, v190, s[8:11], s29 offen sc1"); A("s_mov_b64 exec, 1")
        A("s_mul_i32 s28, s28, 40960"); A("s_lshl_b32 s29, s88, 7"); A("s_add_u32 s29, s29, s28"); A("buffer_load_dword v191, v190, s[16:19], s29 offen sc1")
        A("s_lshl_b32 s29, s88, 11"); A("s_add_u32 s29, s29, s28"); A("s_add_u32 s29, s29, %d" % (WS_XNF + XNF_LAYER)); A("buffer_load_dword v191, v190, s[8:11], s29 offen sc1")
        A("s_mul_i32 s28, s101, %d" % XNF_LAYER); A("s_min_u32 s29, s2, 159"); A("s_lshl_b32 s29, s29, 14"); A("s_add_u32 s28, s28, s29"); A("s_lshl_b32 s29, s83, 9"); A("s_add_u32 s28, s28, s29"); A("s_add_u32 s28, s28, %d" % WS_ZF)
        A("s_cmp_lt_u32 s2, 160"); A("s_cselect_b32 s28, s28, 0x%x" % OOB); A("buffer_load_dword v191, v190, s[8:11], s28 offen sc1")
        A("s_mov_b64 exec, -1")
    tid(); fpre()
    fmain(dpoll, early, P.get('DRY', 0)); ht2(9)
    hb(11); gbar(1); ht2(10); hb(12)
    A("s_cmp_ge_u32 s89, 64"); A("s_cbranch_scc1 %s" % L("noid"))
    A("v_mbcnt_lo_u32_b32 v0, -1, 0"); A("v_mbcnt_hi_u32_b32 v0, -1, v0"); A("s_mov_b32 s23, s85")
    idft(A, lambda x: L("idend") if (x == "end" and (P.get("HT") or P.get("HD"))) else L(x), lst, L("fail"), SPIN_MAX, hb)
    A.label(L("noid"))
    if P.get("HT") or P.get("HD"): A.label(L("idend"))
    restore(); ht(5)
    A("s_cmp_eq_u32 s101, 1"); A("s_cbranch_scc1 %s" % L("end"))
    A("s_mov_b32 s101, 1")
    A("v_mbcnt_lo_u32_b32 v0, -1, 0"); A("v_mbcnt_hi_u32_b32 v0, -1, v0"); A("v_lshlrev_b32 v0, 4, v0")
    A("s_waitcnt lgkmcnt(0)"); A("s_barrier")
    A("s_branch %s" % L("bulk"))
    flush_ool()
    A.label(L("fail"))
    A("s_mov_b64 exec, 1"); A("v_mov_b32 v12, 1"); A("v_mov_b32 v13, 48"); A("buffer_atomic_add v12, v13, s[12:15], 0 offen")
    A.label(L("end"))
    A("s_endpgm")
    return k
```

```python
import struct
from asmlib import *
from layout import *
from seq import *
from k_fft import Pool, pr, f2u

OOB = 0x10000000
from layout import _arg
XM = _arg('XM', 0)


def fft_column(S, pool, lo, AR, b0, wv, SC, tw, prep, XR, c):
    def cadd(a, b):
        d = pool.get(); S("v_pk_add_f32 %s, %s, %s" % (pr(d), pr(a), pr(b))); return d
    def csub(a, b):
        d = pool.get(); S("v_pk_add_f32 %s, %s, %s neg_lo:[0,1] neg_hi:[0,1]" % (pr(d), pr(a), pr(b))); return d
    def cadd_rot(a, b, rot, nega=False):
        d = pool.get(); na = 1 if nega else 0
        mods = "neg_lo:[%d,1] neg_hi:[%d,0]" % (na, na) if rot > 0 else "neg_lo:[%d,0] neg_hi:[%d,1]" % (na, na)
        S("v_pk_add_f32 %s, %s, %s op_sel:[0,1] op_sel_hi:[1,0] %s" % (pr(d), pr(a), pr(b), mods)); return d
    def cfma(x, sign, a):
        d = pool.get(); n = 1 if sign < 0 else 0
        S("v_pk_fma_f32 %s, %s, %s, %s neg_lo:[%d,0,0] neg_hi:[%d,0,0]" % (pr(d), pr(x), SC, pr(a), n, n)); return d
    def cfma_rot(x, rot, a):
        d = pool.get()
        mods = "neg_lo:[1,0,0] neg_hi:[0,0,0]" if rot > 0 else "neg_lo:[0,0,0] neg_hi:[1,0,0]"
        S("v_pk_fma_f32 %s, %s, %s, %s op_sel:[1,0,0] op_sel_hi:[0,1,1] %s" % (pr(d), pr(x), SC, pr(a), mods)); return d
    def cmuls(xs, ws, conj):
        ts = []
        for x, w_ in zip(xs, ws):
            t = pool.get(); ts.append(t); S("v_pk_mul_f32 %s, %s, %s op_sel:[0,0] op_sel_hi:[1,0]" % (pr(t), pr(x), pr(w_)))
        mods = "neg_lo:[0,0,0] neg_hi:[1,0,0]" if conj else "neg_lo:[1,0,0] neg_hi:[0,0,0]"
        for x, w_, t in zip(xs, ws, ts):
            S("v_pk_fma_f32 %s, %s, %s, %s op_sel:[1,1,0] op_sel_hi:[0,1,1] %s" % (pr(t), pr(x), pr(w_), pr(t), mods)); pool.put(x)
        return ts
    def radix4(p, sgn):
        s0 = cadd(p[0], p[2]); s1 = csub(p[0], p[2]); s2 = cadd(p[1], p[3]); t = csub(p[1], p[3])
        pool.put(*p)
        r0 = cadd(s0, s2); r2 = csub(s0, s2); r1 = cadd_rot(s1, t, sgn); r3 = cadd_rot(s1, t, -sgn)
        pool.put(s0, s1, s2, t)
        return [r0, r1, r2, r3]
    def radix8(a, sgn):
        u = []; vv = []
        for j in range(4):
            u.append(cadd(a[j], a[j + 4])); vv.append(csub(a[j], a[j + 4])); pool.put(a[j], a[j + 4])
        ev = radix4(u, sgn)
        x1 = cadd_rot(vv[1], vv[1], sgn); x3 = cadd_rot(vv[3], vv[3], sgn, nega=True)
        s0 = cadd_rot(vv[0], vv[2], sgn); s1 = cadd_rot(vv[0], vv[2], -sgn)
        pool.put(*vv)
        s2 = cadd(x1, x3); t = csub(x1, x3); pool.put(x1, x3)
        r0 = cfma(s2, 1, s0); r2 = cfma(s2, -1, s0); r1 = cfma_rot(t, sgn, s1); r3 = cfma_rot(t, -sgn, s1)
        pool.put(s0, s1, s2, t)
        return [ev[0], r0, ev[1], r1, ev[2], r2, ev[3], r3]
    def twid(x, TW, conj): return [x[0]] + cmuls(x[1:], [TW + 2 * q for q in range(7)], conj)
    def wr(x, addr, offs):
        for r, o in zip(x, offs): S("ds_write_b64 v%d, %s offset:%d" % (addr, pr(r), o + lo))
        pool.put(*x)
    def rd(addr, offs):
        x = [pool.get() for _ in offs]
        for r, o in zip(x, offs): S("ds_read_b64 %s, v%d offset:%d" % (pr(r), addr, o + lo))
        return x
    def xbit(x, rb, lb):
        x = list(x); prs = [(i, i | (1 << rb)) for i in range(8) if not i & (1 << rb)]
        if lb >= 4:
            for a, b in prs:
                for h_ in range(2): S("v_permlane%d_swap_b32 v%d, v%d" % (1 << lb, x[a] + h_, x[b] + h_))
            return x
        mk = sum(1 << l for l in range(32) if l >> lb & 1)
        dn, up = {0: ("quad_perm:[1,0,3,2]",) * 2, 1: ("quad_perm:[2,3,0,1]",) * 2, 2: ("row_shr:4", "row_shl:4"), 3: ("row_ror:8",) * 2}[lb]
        na = [pool.get() for _ in prs]
        S("x_vcc 0x%08x" % (mk ^ 0xffffffff))
        for (a, b), n in zip(prs, na):
            for h_ in range(2): S("v_cndmask_b32_dpp v%d, v%d, v%d, vcc %s row_mask:0xf bank_mask:0xf bound_ctrl:0" % (n + h_, x[b] + h_, x[a] + h_, dn))
        S("x_vcc 0x%08x" % mk)
        for (a, b), n in zip(prs, na):
            for h_ in range(2): S("v_cndmask_b32_dpp v%d, v%d, v%d, vcc %s row_mask:0xf bank_mask:0xf bound_ctrl:0" % (x[b] + h_, x[a] + h_, x[b] + h_, up))
            pool.put(x[a]); x[a] = n
        return x
    def ex4(x, inv):
        if inv: x = [x[4 * (q & 1) + (q >> 1)] for q in range(8)]
        x = xbit(xbit(x, 1, 0), 2, 1)
        return x if inv else [x[2 * (e & 3) + (e >> 2)] for e in range(8)]
    def ex3(x): return xbit(xbit(xbit(x, 0, 2), 1, 3), 2, 4)
    x = [pool.get() for _ in range(8)]
    for j in range(8):
        if j == 7: yield 0
        S("buffer_load_dword v%d, v%d, s[8:11], s%d offen offset:%d sc1" % (x[j], AR["x"], b0 + (2 if j >= 4 else 0), (j % 4) * 1024))
        S("buffer_load_dword v%d, v%d, s[8:11], s%d offen offset:%d sc1" % (x[j] + 1, AR["x"], b0 + (3 if j >= 4 else 1), (j % 4) * 1024))
    yield 0
    wr(twid(radix8(x, -1), tw(0), False), AR['e1'], [q * 2304 for q in range(8)])
    yield 1
    x = rd(AR['e2'], [j * 256 for j in range(8)]); prep(1)
    yield 0
    if XM & 2: x = ex3(twid(radix8(x, -1), tw(1), False))
    else: wr(twid(radix8(x, -1), tw(1), False), AR['e2'], [q * 288 for q in range(8)]); x = rd(AR['e3'], [j * 32 for j in range(8)])
    prep(2)
    yield 0
    if XM & 1: x = ex4(twid(radix8(x, -1), tw(2), False), False)
    else: wr(twid(radix8(x, -1), tw(2), False), AR['e3'], [q * 32 for q in range(8)]); x = rd(AR['e4'], [e * 8 for e in range(8)])
    yield 0
    y = radix4(x[0:4], -1) + radix4(x[4:8], -1)
    z = []
    for hh in range(2):
        ws = [pool.get() for _ in range(4)]
        for e in range(4):
            S("v_lshlrev_b32 v%d, 16, v%d" % (ws[e], wv + 4 * hh + e)); S("v_and_b32 v%d, 0xffff0000, v%d" % (ws[e] + 1, wv + 4 * hh + e))
        z += cmuls(y[4 * hh:4 * hh + 4], ws, False); pool.put(*ws)
    if XM & 1: x = ex4(radix4(z[0:4], 1) + radix4(z[4:8], 1), True)
    else: wr(radix4(z[0:4], 1) + radix4(z[4:8], 1), AR['e4'], [e * 8 for e in range(8)]); x = rd(AR['e3'], [q * 32 for q in range(8)])
    yield 0
    if XM & 2: x = ex3(radix8(twid(x, tw(2), True), 1))
    else: wr(radix8(twid(x, tw(2), True), 1), AR['e3'], [j * 32 for j in range(8)]); x = rd(AR['e2'], [q * 288 for q in range(8)])
    prep(1)
    yield 0
    wr(radix8(twid(x, tw(1), True), 1), AR['e2'], [j * 256 for j in range(8)]); prep(0)
    yield 1
    x = rd(AR['e1'], [q * 2304 for q in range(8)])
    yield 0
    XR[c] = radix8(twid(x, tw(0), True), 1)
    yield 0


def fft2(A, L, lds_base, hb):
    TW1, TW2, TW3 = 48, 62, 76
    WV = [92, 104]
    SC = "s[26:27]"
    XR = {}

    def setup():
        for TW, maskbits, N in ((TW1, 255, 2048), (TW2, 31, 256), (TW3, 3, 32)):
            A("v_and_b32 v3, %d, v0" % maskbits); A("v_cvt_f32_u32 v3, v3")
            for q in range(1, 8):
                A("v_mul_f32 v4, 0x%08x, v3" % f2u(-q / N))
                A("v_cos_f32 v%d, v4" % (TW + 2 * (q - 1))); A("v_sin_f32 v%d, v4" % (TW + 2 * (q - 1) + 1))
        A("v_lshlrev_b32 v3, 3, v0")
        A("v_lshrrev_b32 v4, 5, v0"); A("v_mul_u32_u24 v4, 2304, v4")
        A("v_add_u32 v3, %d, v3" % lds_base); A("v_add_u32 v4, %d, v4" % lds_base)
        A("v_and_b32 v5, 31, v0"); A("v_lshl_add_u32 v5, v5, 3, v4")
        A("v_bfe_u32 v6, v0, 2, 3"); A("v_mul_u32_u24 v6, 288, v6"); A("v_add_u32 v6, v6, v4")
        A("v_and_b32 v7, 3, v0"); A("v_lshl_add_u32 v100, v7, 6, v6")
        A("v_lshl_add_u32 v6, v7, 3, v6")
        A("v_and_b32 v101, 0xe0, v0"); A("v_and_b32 v7, 15, v0"); A("v_lshl_add_u32 v101, v7, 1, v101"); A("v_bfe_u32 v7, v0, 4, 1"); A("v_add_u32 v101, v101, v7"); A("v_lshlrev_b32 v101, 3, v101")

    def pre():
        A("v_lshlrev_b32 v1, 2, v0")
        A("v_and_b32 v102, 63, v0"); A("v_lshlrev_b32 v102, 4, v102"); A("v_lshlrev_b32 v2, 6, v0")

    def wload(S):
        for c in range(2):
            S("s_lshr_b32 s24, s%d, 1" % (34 + c)); S("s_lshl_b32 s24, s24, 14"); S("s_and_b32 s25, s%d, 1" % (34 + c)); S("s_lshl_b32 s25, s25, 4"); S("s_add_u32 s24, s24, s25"); S("s_add_u32 s24, s24, %d" % WS_WT)
            S("buffer_load_dwordx4 v[%d:%d], v2, s[8:11], s24 offen sc1" % (WV[c], WV[c] + 3))
            S("buffer_load_dwordx4 v[%d:%d], v2, s[8:11], s24 offen offset:32 sc1" % (WV[c] + 4, WV[c] + 7))

    def column(S, c):
        return fft_column(S, Pool((8, 112)[c], 20), 18432 * c, dict(x=1, e1=3, e2=5, e3=6, e4=100), 20 + 16 * c, WV[c], SC, lambda k: (TW1, TW2, TW3)[k], lambda k: None, XR, c)

    def main(dpoll, early, dry=0):
        A("s_cmp_lt_u32 s2, 161"); A("s_cbranch_scc1 %s_go" % L)
        early(); A("s_branch %s_end" % L)
        A.label("%s_go" % L)
        S = Seq(A)
        S("s_mov_b32 s26, 0x%08x" % f2u(0.7071067811865476)); S("s_mov_b32 s27, s26")
        S("s_lshl_b32 s34, s2, 1"); S("s_add_u32 s35, s34, 1")
        S("s_cmp_eq_u32 s2, 0"); S("s_cselect_b32 s35, 320, s35"); S("s_cmp_eq_u32 s2, 160"); S("s_cselect_b32 s34, 1, s34"); S("s_cselect_b32 s35, 1, s35")
        S("s_mul_i32 s21, s101, %d" % XD_LAYER); S("s_add_u32 s21, s21, %d" % WS_XD)
        S("s_lshl_b32 s20, s34, 13"); S("s_add_u32 s20, s20, s21"); S("s_lshl_b32 s36, s35, 13"); S("s_add_u32 s36, s36, s21")
        S("s_add_u32 s21, s20, %d" % (320 * 8192)); S("s_add_u32 s37, s36, %d" % (320 * 8192))
        S("s_cmp_eq_u32 s2, 0"); S("s_cselect_b32 s21, 0x%x, s21" % OOB); S("s_cselect_b32 s37, 0x%x, s37" % OOB)
        S("s_add_u32 s22, s20, 4096"); S("s_add_u32 s23, s21, 4096"); S("s_add_u32 s38, s36, 4096"); S("s_add_u32 s39, s37, 4096")
        if dry:
            S("s_mov_b32 s33, 0"); S("s_cmp_lt_u32 s82, %d" % dry); S("s_cbranch_scc1 %s_body" % L)
            A.label("%s_real" % L)
            S("s_mov_b32 s33, 1")
        dpoll(1)
        st = []
        for c in range(2):
            rec = []; cur = []
            for f in column(cur.append, c):
                rec.append((list(cur), f)); del cur[:]
            st.append(rec)
        def mix(comp, mem, gap):
            comp = list(comp)
            while comp or mem:
                if mem: S(mem.pop(0))
                for _ in range(gap if (mem and mem[0].startswith("ds_write")) else 2 if mem else len(comp)):
                    if comp: S(comp.pop(0))
        carry = []
        for n_ in range(len(st[0])):
            (ia, fa), (ib, fb) = st[0][n_], st[1][n_]
            ca = [t for t in ia if t.startswith(("v_", "x_"))]; ma = [t for t in ia if not t.startswith(("v_", "x_"))]
            cb = [t for t in ib if t.startswith(("v_", "x_"))]; mb = [t for t in ib if not t.startswith(("v_", "x_"))]
            mix(ca, carry, 3); mix(cb, ma, 3); carry = mb
            if fa or not ca: mix([], carry, 1)
            if n_ == 0: wload(S); early(); setup(); S("s_waitcnt vmcnt(0)"); dpoll(2)
            hb(n_)
            if n_ == 1 and dry: A.label("%s_body" % L)
            if fa: S.wait_lds_all(); S("s_barrier")
        if dry: S("s_cmp_eq_u32 s33, 0"); S("s_cbranch_scc1 %s_real" % L)
        S("s_mul_i32 s22, s101, %d" % XNF_LAYER); S("s_add_u32 s22, s22, %d" % WS_ZF); S("s_lshl_b32 s21, s2, 14"); S("s_add_u32 s21, s21, s22")
        a, b = XR[0], XR[1]
        S("s_cmp_eq_u32 s2, 0"); S("s_cbranch_scc1 %s_c0" % L)
        for j in range(8):
            S("v_cvt_pk_bf16_f32 v%d, v%d, v%d" % (a[j], a[j], a[j] + 1)); S("v_cvt_pk_bf16_f32 v%d, v%d, v%d" % (a[j] + 1, b[j], b[j] + 1))
        S("s_cmp_eq_u32 s2, 160"); S("s_cbranch_scc1 %s_c1" % L)
        for j in range(8):
            A("buffer_store_dwordx2 %s, v101, s[8:11], s21 offen offset:%d sc1" % (pr(a[j]), 2048 * (j % 2)))
            if j % 2: A("s_add_u32 s21, s21, 4096")
        A("s_branch %s_end" % L)
        A.label("%s_c0" % L)
        for j in range(8): A("v_cvt_pk_bf16_f32 v%d, v%d, v%d" % (a[j], a[j], b[j]))
        A("s_sub_u32 s22, s22, 4")
        A.label("%s_c1" % L)
        for j in range(8):
            A("buffer_store_dword v%d, v101, s[8:11], s22 offen offset:%d sc1" % (a[j], 4 + 2048 * (j % 2)))
            if j % 2: A("s_add_u32 s22, s22, 4096")
        A.label("%s_end" % L)
    return pre, main


def idft_table(S, half, lane, wave):
    S("s_mul_i32 s29, %s, 10240" % wave); S("s_add_u32 s29, s29, %s" % half); S("s_mul_i32 s28, s88, 81920"); S("s_add_u32 s28, s28, s29"); S("s_add_u32 s28, s28, %d" % WS_GT2)
    for f in range(10):
        if f % 4 == 0:
            if f: S("s_add_u32 s29, s29, 4096"); S("s_add_u32 s28, s28, 4096")
            S("s_mov_b32 m0, s29")
        S("buffer_load_dwordx4 %s, s[8:11], s28 offen offset:%d sc1 lds" % (lane, (f % 4) * 1024))


def idft(A, L, lst, fail, spin_max, hb):
    S = Seq(A)
    S("v_lshlrev_b32 v1, 4, v0"); S("v_lshrrev_b32 v3, 4, v0"); S("v_and_b32 v4, 15, v0")
    S("v_lshlrev_b32 v2, 15, v3"); S("v_lshl_add_u32 v2, v4, 4, v2")
    S("s_mul_i32 s24, s101, %d" % XNF_LAYER); S("s_lshl_b32 s25, s89, 8"); S("s_add_u32 s24, s24, s25"); S("s_add_u32 s24, s24, %d" % WS_ZF)
    NZ = 15
    ZR = lambda ks: 64 + 8 * (ks % NZ)
    def zload(ks):
        for hf in range(2):
            S("s_add_u32 s25, s24, %d" % ((8 * ks + hf) * 16384))
            S("buffer_load_dwordx4 %s, v2, s[8:11], s25 offen sc1" % r4(ZR(ks) + 4 * hf))
    N0 = 8
    for ks in range(N0): zload(ks)
    S("s_mul_i32 s29, s89, 40960")
    S("v_mul_u32_u24 v5, 1280, v4"); S("v_lshl_add_u32 v5, v3, 4, v5"); S("v_add_u32 v6, 40960, v1")
    S("s_lshl_b32 s31, s88, 7"); S("s_add_u32 s30, s29, s31"); S("s_add_u32 s31, s30, s80"); S("s_add_u32 s32, s31, 20480"); S("s_add_u32 s33, s30, 20480")
    BUF = [44, 48, 52, 56, 60]; ACC = [[12 + 4 * T for T in range(4)], [28 + 4 * T for T in range(4)]]
    RS = [[ZR(5), ZR(5) + 4], [ZR(6), ZR(6) + 4]]
    seq = [(ks, T) for ks in range(20) for T in range(4)]
    def trd(i):
        if i >= len(seq): return
        ks, T = seq[i]; off = (T * 20 + ks) * 1024
        S("ds_read_b128 %s, v%d offset:%d" % (r4(BUF[i % 5]), 1 if off < 40960 else 6, off % 40960))
    def fix(ks):
        for q in range(2): S("v_swap_b32 v%d, v%d" % (ZR(ks) + 2 + q, ZR(ks) + 4 + q))
    for i in range(4): trd(i)
    hb(13)
    fix(0)
    nxt = N0
    for i, (ks, T) in enumerate(seq):
        if i in (4, 40): hb({4: 14, 40: 15}[i])
        if T == 0 and ks % 2 == 1:
            for _ in range(4):
                if nxt < 20 and nxt - NZ < ks: zload(nxt); nxt += 1
        if i == 40:
            for mm in range(2):
                for pz in range(2): S("buffer_load_dwordx4 %s, v5, s[8:11], %s offen offset:%d sc1" % (r4(RS[mm][pz]), ("s31", "s32")[mm], 64 * pz))
        for m in range(2):
            a = ACC[m][T]
            S("v_mfma_f32_16x16x32_bf16 %s, %s, %s, %s" % (r4(a), r4(BUF[i % 5]), r4(ZR(ks) + 4 * m), "0" if ks == 0 else r4(a)))
            if m == 0: trd(i + 4)
            elif T == 2 and ks < 19: fix(ks + 1)
    assert nxt == 20
    for m in range(2):
        for pz in range(2):
            for q in range(4):
                r = RS[m][pz] + q; a = ACC[m][2 * pz] + 2 * q
                S("v_lshlrev_b32 v8, 16, v%d" % r); S("v_and_b32 v9, 0xffff0000, v%d" % r)
                S("v_pk_add_f32 %s, %s, v[8:9]" % (r2(a), r2(a))); S("v_cvt_pk_bf16_f32 v%d, v%d, v%d" % (r, a, a + 1))
    hb(16)
    A("s_cmp_eq_u32 s101, 1"); A("s_cbranch_scc1 %s" % L("id_out"))
    xs = [[ACC[m][0] + i for i in range(16)] for m in range(2)]
    ST = [124, 128]; TM = [132, 133]
    def xl(regs):
        for op in ("v_permlane16_swap_b32", "v_permlane32_swap_b32"):
            for r, t in zip(regs, TM): S("v_mov_b32 v%d, v%d" % (t, r))
            for r, t in zip(regs, TM): S("%s v%d, v%d" % (op, r, t))
            for r, t in zip(regs, TM): S("v_add_f32 v%d, v%d, v%d" % (r, r, t))
    for m in range(2):
        for pz in range(2):
            for q in range(4):
                r = RS[m][pz] + q; a = ACC[m][2 * pz] + 2 * q
                S("v_lshlrev_b32 v%d, 16, v%d" % (a, r)); S("v_and_b32 v%d, 0xffff0000, v%d" % (a + 1, r))
    for m in range(2):
        S("v_pk_add_f32 %s, %s, %s" % (r2(ST[m]), r2(xs[m][0]), r2(xs[m][2])))
    for i in range(4, 16, 2):
        for m in range(2): S("v_pk_add_f32 %s, %s, %s" % (r2(ST[m]), r2(ST[m]), r2(xs[m][i])))
    for m in range(2): S("v_add_f32 v%d, v%d, v%d" % (ST[m], ST[m], ST[m] + 1))
    xl(ST)
    for m in range(2): S("v_mul_f32 v%d, 0x%08x, v%d" % (ST[m], f2u(1 / 64), ST[m])); S("v_mov_b64 %s, 0" % r2(ST[m] + 2))
    for i in range(0, 16, 2):
        for m in range(2):
            S("v_pk_add_f32 %s, %s, %s op_sel_hi:[1,0] neg_lo:[0,1] neg_hi:[0,1]" % (r2(8 + 2 * m), r2(xs[m][i]), r2(ST[m])))
        for m in range(2):
            S("v_pk_fma_f32 %s, %s, %s, %s" % (r2(ST[m] + 2), r2(8 + 2 * m), r2(8 + 2 * m), r2(ST[m] + 2)))
    for m in range(2): S("v_add_f32 v%d, v%d, v%d" % (ST[m] + 1, ST[m] + 2, ST[m] + 3))
    xl([ST[0] + 1, ST[1] + 1])
    for m in range(2): S("v_min_u32 v%d, -2, v%d" % (ST[m], ST[m])); S("v_min_u32 v%d, -2, v%d" % (ST[m] + 1, ST[m] + 1))
    S("s_lshl_b32 s24, s89, 12"); S("s_add_u32 s24, s24, %d" % WS_STAT); S("s_lshl_b32 s25, s88, 3"); S("s_add_u32 s25, s25, s24")
    S("v_lshlrev_b32 v7, 7, v4"); S("v_lshl_add_u32 v2, v3, 5, v7")
    S("s_mov_b64 exec, 0xffff")
    lst(["buffer_store_dwordx2 %s, v7, s[8:11], s25 offen offset:%d" % (r2(ST[m]), 2048 * m) for m in range(2)], S)
    S("s_mov_b64 exec, -1")
    G = [136, 144]
    S("v_cmp_gt_u32_e64 s[36:37], 3, v3"); S("v_cmp_gt_u32_e64 s[38:39], 2, v3"); S("s_mov_b32 s34, 0")
    hb(17)
    A.label(L("id_poll"))
    S = Seq(A)
    for m in range(2):
        for hf in range(2): S("buffer_load_dwordx4 %s, v2, s[8:11], s24 offen offset:%d sc1" % (r4(G[m] + 4 * hf), 2048 * m + 16 * hf))
    S("s_add_u32 s34, s34, 1"); S("s_cmp_ge_u32 s34, %d" % spin_max); S("s_cbranch_scc1 %s" % fail)
    for m in range(2):
        for i in range(8): S("v_cndmask_b32_e64 v%d, 0, v%d, s[%d:%d]" % (G[m] + i, G[m] + i, 36 + 2 * (i // 4), 37 + 2 * (i // 4)))
    S("v_max3_u32 v8, v%d, v%d, v%d" % (G[0], G[0] + 1, G[0] + 2))
    for i in range(3, 15, 2): S("v_max3_u32 v8, v8, v%d, v%d" % (G[0] + i, G[0] + i + 1))
    S("v_max_u32 v8, v8, v%d" % (G[0] + 15)); S("v_cmp_eq_u32 vcc, -1, v8"); S("s_cbranch_vccnz %s" % L("id_poll"))
    hb(18)
    for m in range(2):
        S("v_add_f32 v%d, v%d, v%d" % (ST[m], G[m], G[m] + 2)); S("v_add_f32 v%d, v%d, v%d" % (ST[m] + 1, G[m] + 4, G[m] + 6)); S("v_add_f32 v%d, v%d, v%d" % (ST[m], ST[m], ST[m] + 1))
    xl(ST)
    for m in range(2):
        S("v_mul_f32 v%d, 0x%08x, v%d" % (ST[m], f2u(0.1), ST[m]))
        S("v_add_f32 v%d, v%d, v%d" % (ST[m] + 1, G[m] + 1, G[m] + 3)); S("v_add_f32 v%d, v%d, v%d" % (ST[m] + 2, G[m] + 5, G[m] + 7)); S("v_add_f32 v%d, v%d, v%d" % (ST[m] + 1, ST[m] + 1, ST[m] + 2))
        for e in range(4):
            S("v_sub_f32 v8, v%d, v%d" % (G[m] + 2 * e, ST[m])); S("v_cndmask_b32_e64 v8, 0, v8, s[%d:%d]" % (36 + 2 * (e // 2), 37 + 2 * (e // 2)))
            S("v_mul_f32 v9, 0x42800000, v8"); S("v_fmac_f32 v%d, v8, v9" % (ST[m] + 1))
    xl([ST[0] + 1, ST[1] + 1])
    for m in range(2):
        S("v_mov_b32 v%d, 0x3727c5ac" % (ST[m] + 2)); S("v_fmac_f32 v%d, 0x3acccccd, v%d" % (ST[m] + 2, ST[m] + 1)); S("v_rsq_f32 v%d, v%d" % (ST[m] + 2, ST[m] + 2))
    S("s_lshl_b32 s25, s88, 11"); S("s_add_u32 s25, s25, s29"); S("s_add_u32 s25, s25, %d" % (WS_XNF + XNF_LAYER)); S("s_add_u32 s24, s25, 20480")
    for m in range(2):
        for i in range(0, 16, 2):
            S("v_pk_add_f32 %s, %s, %s op_sel_hi:[1,0] neg_lo:[0,1] neg_hi:[0,1]" % (r2(xs[m][i]), r2(xs[m][i]), r2(ST[m])))
        for i in range(0, 16, 2):
            S("v_pk_mul_f32 %s, %s, %s op_sel_hi:[1,0]" % (r2(xs[m][i]), r2(xs[m][i]), r2(ST[m] + 2)))
        for i in range(8): S("v_cvt_pk_bf16_f32 v%d, v%d, v%d" % (xs[m][i], xs[m][2 * i], xs[m][2 * i + 1]))
    XS = ["buffer_store_dwordx4 %s, v1, s[8:11], %%s offen offset:%d" % (r4(xs[m][4 * pz]), 1024 * pz) for m in range(2) for pz in range(2)]
    A("s_cmp_lg_u32 s82, 0"); A("s_cbranch_scc1 %s" % L("id_nl"))
    A("s_add_u32 s34, s25, %d" % (WS_XNL - WS_XNF - XNF_LAYER)); A("s_add_u32 s35, s34, 20480")
    lst([t_ % ("s34", "s35")[i // 2] for i, t_ in enumerate(XS)])
    A("s_mul_i32 s34, s89, 10"); A("s_add_u32 s34, s34, s88"); A("s_add_u32 s34, s34, %d" % WS_LFL); A("v_mov_b32 v8, 1"); A("s_waitcnt vmcnt(0)"); A("s_mov_b64 exec, 1")
    lst(["buffer_store_byte v8, v1, s[8:11], s34 offen"])
    A("s_mov_b64 exec, -1")
    A("s_mov_b32 s68, s25"); A("s_mov_b32 s69, s24"); A("s_mov_b32 s70, s30"); A("s_mov_b32 s71, s33"); A("s_branch %s" % L("noid"))
    A.label(L("id_nl"))
    for i, t_ in enumerate(XS): A(t_ % ("s25", "s24")[i // 2] + " sc1")
    hb(19)
    A.label(L("id_out"))
    for m in range(2):
        for pz in range(2): A("buffer_store_dwordx4 %s, v5, s[16:19], %s offen offset:%d sc1" % (r4(RS[m][pz]), ("s30", "s33")[m], 64 * pz))
    A("s_cmp_eq_u32 s101, 1"); A("s_cbranch_scc1 %s" % L("end"))
    A("s_lshl_b32 s24, s89, 7"); A("s_lshl_b32 s25, s88, 2"); A("s_add_u32 s24, s24, s25"); A("s_add_u32 s24, s24, %d" % (WS_XFL + 8192)); A("v_mov_b32 v8, 1")
    A("s_waitcnt vmcnt(0)"); A("s_mov_b64 exec, 1"); A("buffer_store_dword v8, v1, s[8:11], s24 offen sc1"); A("s_mov_b64 exec, -1")
    hb(20, True)


def idft_deferred(A):
    A("v_bfe_u32 v5, v0, 4, 4"); A("v_mul_u32_u24 v5, 1280, v5"); A("v_lshrrev_b32 v6, 8, v0"); A("v_lshl_add_u32 v5, v6, 4, v5")
    for m in range(2):
        for pz in range(2):
            A("buffer_store_dwordx4 %s, v0, s[8:11], s%d offen offset:%d sc1" % (r4(12 + 16 * m + 4 * pz), 68 + m, 1024 * pz))
            A("buffer_store_dwordx4 %s, v5, s[16:19], s%d offen offset:%d sc1" % (r4(104 + 8 * m + 4 * pz), 70 + m, 64 * pz))


def fft1(A, L, dpoll):
    S = Seq(A)
    TID, TW, WV = 12, 22, 36
    AR = dict(x=13, e1=14, e2=15, e3=16, e4=17); ST, WA = 18, 19
    S("v_lshrrev_b32 v%d, 4, v0" % TID); S("s_lshl_b32 s27, s21, 6"); S("v_add_u32 v%d, s27, v%d" % (TID, TID))
    S("v_lshlrev_b32 v13, 2, v12"); S("v_lshlrev_b32 v14, 3, v12"); S("v_lshlrev_b32 v19, 6, v12")
    S("v_lshrrev_b32 v20, 5, v12"); S("v_mul_u32_u24 v20, 2304, v20"); S("v_and_b32 v15, 31, v12"); S("v_lshl_add_u32 v15, v15, 3, v20")
    S("v_bfe_u32 v16, v12, 2, 3"); S("v_mul_u32_u24 v16, 288, v16"); S("v_add_u32 v16, v16, v20"); S("v_and_b32 v21, 3, v12"); S("v_lshl_add_u32 v17, v21, 6, v16"); S("v_lshl_add_u32 v16, v21, 3, v16")
    S("v_and_b32 v18, 0xe0, v12"); S("v_and_b32 v20, 15, v12"); S("v_lshl_add_u32 v18, v20, 1, v18"); S("v_bfe_u32 v20, v12, 4, 1"); S("v_add_u32 v18, v18, v20"); S("v_lshlrev_b32 v18, 3, v18")
    S("s_lshl_b32 s73, s20, 5"); S("s_add_u32 s73, s73, s22"); S("s_add_u32 s73, s73, 256")
    S("s_mov_b32 s78, 0x%08x" % f2u(0.7071067811865476)); S("s_mov_b32 s79, s78")
    S("s_mul_i32 s74, s72, %d" % XD_LAYER); S("s_lshl_b32 s27, s73, 13"); S("s_add_u32 s74, s74, s27"); S("s_add_u32 s74, s74, %d" % WS_XD)
    S("s_add_u32 s75, s74, %d" % (320 * 8192)); S("s_add_u32 s76, s74, 4096"); S("s_add_u32 s77, s75, 4096")
    S("s_lshr_b32 s80, s73, 1"); S("s_lshl_b32 s80, s80, 14"); S("s_and_b32 s27, s73, 1"); S("s_lshl_b32 s28, s27, 4"); S("s_add_u32 s81, s80, s28"); S("s_add_u32 s81, s81, %d" % WS_WT)
    S("s_lshl_b32 s27, s27, 2"); S("s_add_u32 s80, s80, s27"); S("s_mul_i32 s27, s72, %d" % XNF_LAYER); S("s_add_u32 s80, s80, s27"); S("s_add_u32 s80, s80, %d" % WS_ZF)
    def prep(k):
        maskbits, N = ((255, 2048), (31, 256), (3, 32))[k]
        S("v_and_b32 v20, %d, v12" % maskbits); S("v_cvt_f32_u32 v20, v20")
        for q in range(1, 8):
            S("v_mul_f32 v21, 0x%08x, v20" % f2u(-q / N))
            S("v_cos_f32 v%d, v21" % (TW + 2 * (q - 1))); S("v_sin_f32 v%d, v21" % (TW + 2 * (q - 1) + 1))
    XR = {}
    dpoll(1)
    for n_, f in enumerate(fft_column(S, Pool(44, 20), 0, AR, 74, WV, "s[78:79]", lambda k: TW, prep, XR, 0)):
        if n_ == 0:
            S("buffer_load_dwordx4 v[36:39], v19, s[8:11], s81 offen sc1"); S("buffer_load_dwordx4 v[40:43], v19, s[8:11], s81 offen offset:32 sc1")
            prep(0); S("s_waitcnt vmcnt(0)"); dpoll(2)
        if f: S.wait_lds_all(); S("s_barrier")
    a = XR[0]
    for j in range(8): S("v_cvt_pk_bf16_f32 v%d, v%d, v%d" % (a[j], a[j], a[j] + 1))
    for j in range(8):
        S("buffer_store_dword v%d, v18, s[8:11], s80 offen offset:%d sc1" % (a[j], 2048 * (j % 2)))
        if j % 2: S("s_add_u32 s80, s80, 4096")
```

```python
from asmlib import *
from layout import *
from layout import _arg
from seq import *

SETS = [16, 48]
PO = [80, 84]
AD, WA, TA = 12, 13, 14
SRD = {0: 72, 1: 76, 2: 80, 'o': 84}


def perm(S, st, x, o):
    for r in range(4):
        lo = st + 4 * (2 * r) + x // 2; hi = st + 4 * (2 * r + 1) + x // 2
        S("v_perm_b32 v%d, v%d, v%d, s%d" % (o + r, hi, lo, 45 if x & 1 else 44))


NT = _arg("NT", 0)
FLG = ["", " sc1", " nt", " sc0 sc1", " sc1 nt"][_arg("WF", 0)]


def stouch(S, base, ks_s):
    S("s_lshl_b32 s27, %s, 18" % ks_s); S("s_add_u32 s27, s27, s46"); S("s_add_u32 s50, s%d, s27" % base); S("s_addc_u32 s51, s%d, 0" % (base + 1))
    for i in range(NT):
        if i and i % 14 == 0: S("s_waitcnt lgkmcnt(0)")
        S("s_load_dword s52, s[50:51], 0x%x" % ((31 - i // 2) * 8192 + (i % 2) * 128))
    S("s_waitcnt lgkmcnt(0)")


def run(S, rounds):
    S("s_mov_b32 s44, 0x05040100"); S("s_mov_b32 s45, 0x07060302")
    for r in range(min(2, len(rounds))): rounds[r]["issue"](SETS[r % 2])
    for r, R in enumerate(rounds):
        if NT and r + 2 < len(rounds) and rounds[r + 2].get("touch"): rounds[r + 2]["touch"]()
        if R.get("pre"): S.wait_lds_all(); S("s_barrier")
        if _arg("NOW", 0): S.wait(vm=S.nv - 8)
        else: R["write"](SETS[r % 2])
        if r + 2 < len(rounds): rounds[r + 2]["issue"](SETS[r % 2])
        if R.get("reads") and not _arg("NOW", 0):
            S.wait_lds_all(); S("s_barrier")
            for dst, areg, off in R["reads"]: S("ds_read_b128 %s, v%d offset:%d" % (ureg(dst, 4), areg, off))
    S.wait_lds_all()


def qkv_setup(S):
    S("v_lshrrev_b32 v%d, 8, v0" % AD); S("v_lshlrev_b32 v%d, 16, v%d" % (AD, AD)); S("v_and_b32 v%d, 0xf0, v0" % TA); S("v_add_u32 v%d, v%d, v%d" % (AD, AD, TA))
    S("s_lshl_b32 s46, s22, 8")


def qkv_issue(S, st, srd, ks_s):
    S("s_lshl_b32 s27, %s, 18" % ks_s); S("s_add_u32 s27, s27, s46")
    for j in range(8):
        if j: S("s_add_u32 s27, s27, 8192")
        S("buffer_load_dwordx4 %s, v%d, %s, s27 offen%s" % (r4(st + 4 * j), AD, srd, FLG))


def plain_rounds(S, srd, dst, bufs, RA):
    out = []
    for r in range(5):
        def issue(st, r=r):
            S("s_add_u32 s26, s21, %d" % (4 * r)); qkv_issue(S, st, srd, "s26")
        def write(st, r=r):
            S("s_lshl_b32 s27, s21, 11"); S("s_add_u32 s27, s27, %d" % bufs[r % 2]); S("v_add_u32 v%d, s27, v0" % WA)
            for x in range(8):
                perm(S, st, x, PO[x % 2]); S("ds_write_b128 v%d, %s offset:%d" % (WA, r4(PO[x % 2]), (x // 2) * 8192 + (x % 2) * 1024))
        def touch(r=r):
            S("s_add_u32 s26, s21, %d" % (4 * r)); stouch(S, int(srd[2:4]), "s26")
        out.append(dict(issue=issue, write=write, touch=touch, reads=[(dst(tl, 4 * r + tk), RA[r % 2], tk * 2048 + tl * 1024) for tk in range(4) for tl in range(2)]))
    return out


def wo_rounds(S, chain, base, reads):
    A2, B2 = 8, 9
    ST = [10, 11, 15]
    if chain:
        S("v_lshrrev_b32 v%d, 9, v0" % A2); S("v_lshlrev_b32 v%d, 4, v%d" % (A2, A2)); S("v_bfe_u32 v%d, v0, 8, 1" % TA); S("v_add_u32 v%d, v%d, v%d" % (A2, A2, TA)); S("v_mul_u32_u24 v%d, 2560, v%d" % (A2, A2))
        S("s_and_b32 s47, s21, 1"); S("s_lshl_b32 s47, s47, 6"); S("s_lshr_b32 s27, s21, 1"); S("s_lshl_b32 s27, s27, 2"); S("s_add_u32 s47, s47, s27")
        S("s_lshl_b32 s27, s22, 7"); S("s_add_u32 s47, s47, s27"); S("s_mul_i32 s47, s47, 1280"); S("s_mul_i32 s27, s20, 640"); S("s_add_u32 s47, s47, s27")
        rows = [16 * (jj >> 2) + 8 * (jj & 1) + ((jj >> 1) & 1) for jj in range(8)]
    else:
        S("v_lshrrev_b32 v%d, 8, v0" % A2); S("v_mul_u32_u24 v%d, %d, v%d" % (A2, 32 * 1280, A2))
        S("s_lshl_b32 s47, s22, 6"); S("s_add_u32 s47, s47, s21"); S("s_mul_i32 s47, s47, 2560")
        rows = [8 * (jj >> 1) + (jj & 1) for jj in range(8)]
    S("v_and_b32 v%d, 0xf0, v0" % TA); S("v_add_u32 v%d, v%d, v%d" % (A2, A2, TA))
    if not chain: S("v_bfe_u32 v%d, v0, 6, 2" % TA); S("v_lshl_add_u32 v%d, v%d, 8, v%d" % (B2, TA, A2))
    out = []
    n = 3 if chain else 5
    for it in range(n):
        half = chain and it == 2
        def issue(st, it=it, half=half):
            if half: S("s_mov_b32 exec_lo, 0x00ff00ff"); S("s_mov_b32 exec_hi, 0x00ff00ff")
            for jj in range(8):
                S("s_add_u32 s27, s47, %d" % (rows[jj] * 1280 + (it * 256 if chain else it * 320 if it < 4 else 256)))
                S("buffer_load_dwordx4 %s, v%d, s[84:87], s27 offen%s" % (r4(st + 4 * jj), B2 if (not chain and it == 4) else A2, FLG))
            if half: S("s_mov_b64 exec, -1")
        def write(st, it=it, half=half):
            S("v_and_b32 v%d, 0x300, v0" % WA); S("s_lshl_b32 s27, s21, 10")
            if not chain:
                if it < 4:
                    S("s_add_u32 s27, s27, %d" % (base + it * 40960)); S("v_add_u32 v%d, s27, v0" % WA)
                    off = [x * 4096 for x in range(8)]
                else:
                    S("s_add_u32 s27, s27, %d" % (base + 32768)); S("v_add_u32 v%d, s27, v%d" % (WA, WA))
                    S("v_bfe_u32 v%d, v0, 6, 2" % TA); S("v_mul_u32_u24 v%d, 40960, v%d" % (TA, TA)); S("v_add_u32 v%d, v%d, v%d" % (WA, WA, TA))
                    S("v_bfe_u32 v%d, v0, 4, 2" % TA); S("v_lshl_add_u32 v%d, v%d, 6, v%d" % (WA, TA, WA))
                    off = [(x & 1) * 4096 + (x >> 1) * 16 for x in range(8)]
            elif not half:
                S("s_add_u32 s27, s27, %d" % (base + it * 40960)); S("v_add_u32 v%d, s27, v%d" % (WA, WA))
                S("v_bfe_u32 v%d, v0, 7, 1" % TA); S("v_mul_u32_u24 v%d, 20480, v%d" % (TA, TA)); S("v_add_u32 v%d, v%d, v%d" % (WA, WA, TA))
                S("v_bfe_u32 v%d, v0, 5, 2" % TA); S("v_lshl_add_u32 v%d, v%d, 6, v%d" % (WA, TA, WA)); S("v_and_b32 v%d, 16, v0" % TA); S("v_add_u32 v%d, v%d, v%d" % (WA, WA, TA))
                off = [(x >> 2) * 8192 + ((x >> 1) & 1) * 32 + (x & 1) * 4096 for x in range(8)]
            else:
                S("s_add_u32 s27, s27, %d" % (base + 16384)); S("v_add_u32 v%d, s27, v%d" % (WA, WA))
                S("v_bfe_u32 v%d, v0, 5, 2" % TA); S("v_mul_u32_u24 v%d, 20480, v%d" % (TA, TA)); S("v_add_u32 v%d, v%d, v%d" % (WA, WA, TA))
                S("v_bfe_u32 v%d, v0, 4, 1" % TA); S("v_lshl_add_u32 v%d, v%d, 6, v%d" % (WA, TA, WA))
                off = [(x >> 2) * 32 + ((x >> 1) & 1) * 128 + (x & 1) * 16 for x in range(8)]
                S("s_mov_b32 exec_lo, 0x00ff00ff"); S("s_mov_b32 exec_hi, 0x00ff00ff")
            for x in range(8):
                perm(S, st, x, PO[x % 2]); S("ds_write_b128 v%d, %s offset:%d" % (WA, r4(PO[x % 2]), off[x]))
            if half: S("s_mov_b64 exec, -1")
        out.append(dict(issue=issue, write=write, reads=reads if it == n - 1 else None))
    return out


def chain_load(A, K):
    S = Seq(A)
    qkv_setup(S)
    R0, R1, R2, RW = 4, 5, 6, 7
    B0, B1 = K.L_W + 81920, K.L_W
    S("s_lshl_b32 s27, s21, 13"); S("s_add_u32 s28, s27, %d" % B0); S("v_add_u32 v%d, s28, v0" % R0); S("s_add_u32 s28, s27, %d" % B1); S("v_add_u32 v%d, s28, v0" % R1)
    S("s_lshl_b32 s27, s21, 12"); S("v_add_u32 v%d, s27, v0" % R2)
    S("s_mul_i32 s27, s21, 20480"); S("s_add_u32 s27, s27, %d" % K.L_W); S("v_add_u32 v%d, s27, v0" % RW)
    S("s_mul_i32 s48, s20, 10"); S("s_and_b32 s27, s21, 1"); S("s_add_u32 s49, s27, 10"); S("s_sub_u32 s49, s49, s48"); S("s_add_u32 s48, s48, s27")
    rounds = wo_rounds(S, True, K.L_W, [(K.WO[T, u // 2] + 4 * (u % 2), RW, T * 4096 + u * 1024) for T in range(5) for u in range(4)])
    units = {}
    for i, (m, tl, rem, t) in enumerate(K.SEQ): units.setdefault((m, rem, t), {})[tl] = i
    pure = [u for u, d in units.items() if not any(i in K.LDSI for i in d.values())]
    mixed = [u for u in units if u not in pure]
    if len(pure) % 2: mixed.insert(0, pure.pop())
    assert len(mixed) % 2 == 0
    def issue_pair(st, ua, ub, tch=False):
        S("s_cmp_lt_u32 s21, 2")
        S("s_cselect_b32 s26, s%d, s%d" % (48 + ua[1], 48 + ub[1])); S("s_cselect_b32 s27, %d, %d" % (2 * ua[2], 2 * ub[2]));
        S("s_cselect_b64 s[88:89], s[%d:%d], s[%d:%d]" % (SRD[K.MATS[ua[0]]], SRD[K.MATS[ua[0]]] + 1, SRD[K.MATS[ub[0]]], SRD[K.MATS[ub[0]]] + 1))
        S("s_add_u32 s26, s26, s27")
        if tch: stouch(S, 88, "s26")
        else: qkv_issue(S, st, "s[88:91]", "s26")
    S("s_mov_b32 s90, %d" % SZ_W); S("s_mov_b32 s91, 0x00020000")
    for r in range(len(pure) // 2):
        ua, ub = pure[2 * r], pure[2 * r + 1]
        def write(st, r=r):
            S("s_lshl_b32 s27, s21, 11"); S("s_add_u32 s27, s27, %d" % (B0, B1)[r % 2]); S("v_add_u32 v%d, s27, v0" % WA)
            for x in range(8):
                perm(S, st, x, PO[x % 2]); S("ds_write_b128 v%d, %s offset:%d" % (WA, r4(PO[x % 2]), (x // 2) * 8192 + (x % 2) * 1024))
        rounds.append(dict(issue=lambda st, ua=ua, ub=ub: issue_pair(st, ua, ub), touch=lambda ua=ua, ub=ub: issue_pair(0, ua, ub, True), write=write,
                           reads=[(K.WREG[units[(ua, ub)[tk // 2]][tl]] + 4 * (tk % 2), (R0, R1)[r % 2], tk * 2048 + tl * 1024) for tk in range(4) for tl in range(2)]))
    for r in range(len(mixed) // 2):
        ua, ub = mixed[2 * r], mixed[2 * r + 1]
        assert all(sum(i not in K.LDSI for i in units[u].values()) <= 1 for u in (ua, ub))
        def write(st, ua=ua, ub=ub):
            S("s_and_b32 s28, s21, 1"); S("s_lshl_b32 s28, s28, 10")
            for tl in range(2):
                pr = []
                for k_, u in enumerate((ua, ub)):
                    i = units[u][tl]
                    pr.append((K.L_W + K.LDSI.index(i) * 2048, K.LW_WAVE) if i in K.LDSI else (k_ * 2048, 4096))
                S("s_mov_b32 s29, %d" % pr[1][0]); S("s_mov_b32 s30, %d" % pr[1][1])
                S("s_cmp_lt_u32 s21, 2"); S("s_cselect_b32 s29, %d, s29" % pr[0][0]); S("s_cselect_b32 s30, %d, s30" % pr[0][1]); S("s_add_u32 s29, s29, s28")
                for dw in range(4):
                    x = 2 * dw + tl
                    S("v_add_u32 v%d, s29, v0" % (WA + dw % 2)); S("s_add_u32 s29, s29, s30")
                    perm(S, st, x, PO[dw % 2]); S("ds_write_b128 v%d, %s" % (WA + dw % 2, r4(PO[dw % 2])))
        rd = []
        for k_, u in enumerate((ua, ub)):
            for tl in range(2):
                i = units[u][tl]
                if i not in K.LDSI: rd += [(K.WREG[i] + 4 * hf, R2, k_ * 2048 + hf * 1024) for hf in range(2)]
        rounds.append(dict(issue=lambda st, ua=ua, ub=ub: issue_pair(st, ua, ub), touch=lambda ua=ua, ub=ub: issue_pair(0, ua, ub, True), write=write, reads=rd, pre=True))
    run(S, rounds)


def bulk_load(A, L, breg):
    S = Seq(A)
    qkv_setup(S)
    R0, R1, RW = 4, 5, 7
    S("s_lshl_b32 s27, s21, 13"); S("v_add_u32 v%d, s27, v0" % R0); S("v_add_u32 v%d, 32768, v%d" % (R1, R0))
    S("s_cmp_eq_u32 s20, 2"); S("s_cbranch_scc1 %s" % L("bl_kv"))
    S("s_mul_i32 s27, s21, 40960"); S("v_add_u32 v%d, s27, v0" % RW)
    run(S, wo_rounds(S, False, 0, [(breg(40 + f), RW, f * 1024) for f in range(40)]))
    S("s_barrier")
    run(S, plain_rounds(S, "s[72:75]", lambda tl, ks: breg(tl * 20 + ks), [0, 32768], [R0, R1]))
    S("s_branch %s" % L("lw_done"))
    A.label(L("bl_kv"))
    S = Seq(A)
    run(S, plain_rounds(S, "s[76:79]", lambda tl, ks: breg(tl * 20 + ks), [0, 32768], [R0, R1]) +
        plain_rounds(S, "s[80:83]", lambda tl, ks: breg(40 + tl * 20 + ks), [32768, 0], [R1, R0]))
```

```python
from asmlib import *
from layout import *
from seq import *
import k_chain
from k_chain import chain_body, f2u, C1, SPIN_MAX, OOB, L_FL
from k_load import chain_load, bulk_load
from k_tab import lane_setup, t1_frag, t2_frag, wt_task
from k_ln import ln_body
from k_b import fft1, fft2, idft, idft_table, idft_deferred

GMAP = 0x76524130


def breg(i):
    return 256 + 4 * i if i < 64 else 192 + 4 * (i - 64)


def main_kernel(P):
    name = "interleave_layers__memory_aug_recurrent_mem_tr__spectral_gfnet__prompt_kernel"
    k = Kernel(name, 256, 256, 163840, 256, 256, sgpr=102)
    A = k.asm
    L = lambda x: "M_%s" % x

    GM = [(GMAP, 0x0a), (0x76543120, 0x08), (0x76542130, 0x02), (0x76521403, 0x05), (0x41307652, 0xa0), (0x14037652, 0x50), (0x43527160, 0x0a), (0x54231706, 0x05), (0x25431706, 0x05), (0x76251403, 0x05), (0x27651403, 0x05), (0x54321706, 0x05)][P.get("GM", 11)]
    def ht2(i):
        if P.get("HT", 0) >= 2: ht(i, True)
    def hb(i, flush=False):
        if P.get("HT", 0) != 4: return
        lab = A.newlabel(L("hb"))
        A("s_xor_b32 s6, s84, 1"); A("s_or_b32 s6, s6, s83"); A("s_cmp_lg_u32 s6, 0"); A("s_cbranch_scc1 %s" % lab)
        A("s_memrealtime s[6:7]"); A("s_waitcnt lgkmcnt(0)"); A("s_lshl_b32 s6, s6, 4"); A("s_or_b32 s6, s6, %d" % (i & 15))
        A("v_writelane_b32 v188, s6, %d" % i)
        if flush:
            A("s_add_u32 s7, s82, 2"); A("s_lshl_b32 s7, s7, 8"); A("s_add_u32 s7, s7, %d" % (WS_DBG + (4 << 20) + 128)); A("v_mbcnt_lo_u32_b32 v189, -1, 0"); A("v_lshlrev_b32 v189, 2, v189")
            A("s_mov_b64 exec, 0x%x" % ((1 << (i + 1)) - 1)); A("buffer_store_dword v188, v189, s[8:11], s7 offen"); A("s_mov_b64 exec, -1")
        A.label(lab)
    def hq(i):
        if P.get("HT", 0) != 3: return
        lab = A.newlabel(L("hq"))
        A("s_or_b32 s6, s21, s22"); A("s_cmp_lg_u32 s6, 0"); A("s_cbranch_scc1 %s" % lab); A("s_cmp_lt_u32 s44, 59"); A("s_cbranch_scc1 %s" % lab)
        A("s_memrealtime s[6:7]"); A("s_waitcnt lgkmcnt(0)")
        A("s_lshl_b32 s7, s20, 8"); A("s_add_u32 s7, s7, s5"); A("s_add_u32 s5, s5, 4"); A("s_add_u32 s7, s7, %d" % (WS_DBG + (4 << 20)))
        A("s_lshl_b32 s6, s6, 4"); A("s_or_b32 s6, s6, %d" % i)
        A("v_writelane_b32 v188, s6, %d" % i); A("v_writelane_b32 v189, s7, %d" % i)
        if i == 15: A("s_mov_b64 exec, 0xffe1"); A("buffer_store_dword v188, v189, s[8:11], 0 offen"); A("s_mov_b64 exec, -1")
        A.label(lab)
    def ht(i, saved=False):
        if P.get("HD") and not saved:
            lab = A.newlabel(L("hd"))
            A("s_or_b32 s6, s21, s22"); A("s_and_b32 s7, s20, 3"); A("s_or_b32 s6, s6, s7"); A("s_cmp_lg_u32 s6, 0"); A("s_cbranch_scc1 %s" % lab)
            if i == 0: A("s_mov_b32 s6, s96")
            else: A("s_memrealtime s[6:7]"); A("s_waitcnt lgkmcnt(0)")
            A("s_lshl_b32 s7, s20, 2"); A("s_add_u32 s7, s7, s5"); A("s_add_u32 s5, s5, 2"); A("s_add_u32 s7, s7, %d" % 36)
            A("s_cmp_ge_u32 s7, 60"); A("s_cselect_b32 s7, 50, s7")
            A("s_mov_b64 exec, 1"); A("v_mov_b32 v10, s6"); A("v_mov_b32 v11, 0"); A("buffer_store_short v10, v11, s[12:15], s7 offen"); A("s_waitcnt vmcnt(0)"); A("s_mov_b64 exec, -1")
            A.label(lab); return
        if not P.get("HT"): return
        lab = A.newlabel(L("ht"))
        if saved:
            A("s_or_b32 s6, s83, s84"); A("s_cmp_lg_u32 s6, 0"); A("s_cbranch_scc1 %s" % lab)
            A("s_memrealtime s[6:7]"); A("s_waitcnt lgkmcnt(0)")
            A("s_add_u32 s7, s82, 2"); A("s_lshl_b32 s7, s7, 8"); A("s_add_u32 s7, s7, s5"); A("s_add_u32 s5, s5, 4"); A("s_add_u32 s7, s7, %d" % (WS_DBG + (4 << 20)))
            A("s_lshl_b32 s6, s6, 4"); A("s_or_b32 s6, s6, %d" % i)
            A("s_mov_b64 exec, 1"); A("v_mov_b32 v190, s6"); A("v_mov_b32 v191, 0"); A("buffer_store_dword v190, v191, s[8:11], s7 offen"); A("s_mov_b64 exec, -1")
            A.label(lab); return
        A("s_or_b32 s6, s21, s22"); A("s_cmp_lg_u32 s6, 0"); A("s_cbranch_scc1 %s" % lab)
        A("s_memrealtime s[6:7]"); A("s_waitcnt lgkmcnt(0)")
        A("s_lshl_b32 s7, s20, 8"); A("s_add_u32 s7, s7, s5"); A("s_add_u32 s5, s5, 4"); A("s_add_u32 s7, s7, %d" % (WS_DBG + (4 << 20)))
        A("s_lshl_b32 s6, s6, 4"); A("s_or_b32 s6, s6, %d" % i)
        A("s_mov_b64 exec, 1"); A("v_mov_b32 v10, s6"); A("v_mov_b32 v11, 0"); A("buffer_store_dword v10, v11, s[8:11], s7 offen"); A("s_waitcnt vmcnt(0)"); A("s_mov_b64 exec, -1")
        A.label(lab)

    ool = []
    def flush_ool():
        for lab, grp in ool:
            A.label(lab)
            for t_ in grp: A(t_)
            A("s_branch %s_r" % lab)
        del ool[:]

    def lst(op, E=None):
        E = E or A
        l1 = A.newlabel(L("ls"))
        E("s_cmp_lg_u32 s23, 0"); E("s_cbranch_scc1 %s" % l1)
        for o in op: E(o)
        A.label(l1 + "_r")
        ool.append((l1, ["s_nop 7"] + [o + " sc1" if o.startswith("buffer_store") else o for o in op]))

    A("s_cmp_ge_u32 s2, 256"); A("s_cbranch_scc1 %s" % L("end"))
    if P.get("EXIT"): A("s_branch %s" % L("end"))
    if P.get("HD"): A("s_memrealtime s[96:97]")
    load_srd(A, 16, KA_X, SZ_X); load_srd(A, 8, KA_WS, SZ_WS); load_srd(A, 12, KA_DBG, 256)
    for b_, ka in ((72, KA_WQ), (76, KA_WK), (80, KA_WV), (84, KA_WO), (68, KA_MEM0)): load_srd(A, b_, ka, 0)
    A("s_getreg_b32 s24, hwreg(HW_REG_XCC_ID)"); A("s_and_b32 s24, s24, 7")
    if P.get("CPF", 1):
        A("s_getpc_b64 s[26:27]")
        A.label(L("cpf"))
        A("s_lshr_b32 s28, s2, 3"); A("s_lshl_b32 s28, s28, 8"); A("v_add_u32 v13, s28, v0"); A("v_lshlrev_b32 v13, 6, v13")
        A("v_cmp_gt_u32 vcc, %s - %s, v13" % (L("end"), L("cpf"))); A("s_and_saveexec_b64 s[28:29], vcc"); A("s_cbranch_execz %s" % L("cpfd"))
        A("global_load_dword v14, v13, s[26:27]")
        A.label(L("cpfd"))
        A("s_mov_b64 exec, s[28:29]")
    A("v_lshrrev_b32 v12, 6, v0"); A("v_and_b32 v0, 63, v0"); A("v_readfirstlane_b32 s21, v12")
    A("v_lshlrev_b32 v0, 4, v0")
    A("s_waitcnt lgkmcnt(0)")
    fin_srd(A, 8, SZ_WS); fin_srd(A, 12, 256); fin_srd(A, 16, SZ_X)
    for b_, sz in ((72, SZ_W), (76, SZ_W), (80, SZ_W), (84, SZ_W), (68, SZ_MEM0)): fin_srd(A, b_, sz)
    A("s_mov_b32 s5, 0"); A("s_mov_b32 s101, 0")
    A("s_cmp_eq_u32 s21, 0"); A("s_cbranch_scc1 %s" % L("tick"))
    A("s_cmp_eq_u32 s21, 3"); A("s_cbranch_scc1 %s" % L("zero"))
    for q in range(4): A("v_mov_b32 v%d, -1" % (28 + q))
    A("s_lshl_b32 s26, s2, 1"); A("s_add_u32 s26, s26, s21"); A("s_lshl_b32 s26, s26, 12"); A("s_add_u32 s26, s26, %d" % (WS_FILL - 4096))
    for q in range(4): A("buffer_store_dwordx4 v[28:31], v0, s[8:11], s26 offen offset:%d sc1" % (1024 * q))
    A("s_branch %s" % L("notick"))
    A.label(L("zero"))
    for q in range(4): A("v_mov_b32 v%d, 0" % (28 + q))
    A("s_lshl_b32 s26, s2, 9"); A("s_add_u32 s26, s26, %d" % WS_ZERO)
    A("s_mov_b32 exec_hi, 0"); A("buffer_store_dwordx4 v[28:31], v0, s[8:11], s26 offen sc1"); A("s_mov_b64 exec, -1")
    A("s_cmp_ge_u32 s2, 10"); A("s_cbranch_scc1 %s" % L("notick"))
    A("v_bfe_u32 v6, v0, 4, 3"); A("v_mul_u32_u24 v6, 1280, v6"); A("v_lshrrev_b32 v7, 8, v0"); A("v_lshl_add_u32 v6, v7, 5, v6"); A("v_bfe_u32 v7, v0, 7, 1"); A("v_lshl_add_u32 v6, v7, 2, v6")
    A("s_lshl_b32 s26, s2, 7")
    for n in range(4): A("buffer_load_dword v%d, v6, s[68:71], s26 offen offset:%d" % (32 + n, 8 * n))
    A("v_and_b32 v7, 0x200, v0")
    for src, dst in ((6, 8), (4, 7), (5, 6), (8, 5), (7, 4)):
        A("v_bfe_u32 v12, v0, %d, 1" % src); A("v_lshl_or_b32 v7, v12, %d, v7" % dst)
    A("s_lshl_b32 s26, s2, 10"); A("s_add_u32 s26, s26, %d" % WS_M0); A("s_waitcnt vmcnt(0)")
    for n in range(4): A("v_min_u32 v%d, -2, v%d" % (32 + n, 32 + n))
    A("buffer_store_dwordx4 v[32:35], v7, s[8:11], s26 offen sc1")
    A("s_branch %s" % L("notick"))
    A.label(L("tick"))
    A("s_lshr_b32 s25, %d, s24" % GM[1]); A("s_and_b32 s25, s25, 1"); A("s_cmp_lg_u32 s25, 1"); A("s_cbranch_scc1 %s" % L("nocal"))
    A("s_bfe_u32 s25, s2, 0x20003"); A("s_lshl_b32 s26, s25, 13"); A("s_lshr_b32 s27, s2, 5"); A("s_lshl_b32 s27, s27, 15"); A("s_add_u32 s26, s26, s27")
    A("s_lshl_b32 s27, s24, 8"); A("s_add_u32 s26, s26, s27"); A("s_add_u32 s26, s26, %d" % WS_MR)
    for q in range(4): A("v_mov_b32 v%d, -1" % (28 + q))
    A("s_mov_b64 exec, 0xff"); A("s_mov_b32 s27, -1"); A("s_waitcnt vmcnt(0)")
    for rep in range(4):
        A("s_memtime s[28:29]"); A("buffer_store_dwordx4 v[28:31], v0, s[8:11], s26 offen sc1"); A("s_waitcnt vmcnt(0)"); A("s_memtime s[30:31]")
        A("s_waitcnt lgkmcnt(0)"); A("s_sub_u32 s28, s30, s28"); A("s_min_u32 s27, s27, s28")
    A("s_mov_b64 exec, 1"); A("s_min_u32 s27, s27, 0xffff"); A("s_sub_u32 s27, 0x10000, s27"); A("s_lshl_b32 s27, s27, 2"); A("s_or_b32 s27, s27, s25"); A("v_mov_b32 v28, s27"); A("v_mov_b32 v29, 60")
    A("buffer_atomic_umax v28, v29, s[12:15], 0 offen")
    A.label(L("nocal"))
    A("s_mov_b64 exec, 1")
    A("v_mov_b32 v28, 1"); A("s_lshl_b32 s25, s24, 2"); A("v_mov_b32 v29, s25")
    A("buffer_atomic_add v28, v29, s[12:15], 0 offen sc0")
    A("s_mov_b64 exec, -1")
    A.label(L("notick"))
    A("s_lshl_b32 s20, s24, 2"); A("s_lshr_b32 s20, 0x%x, s20" % GM[0]); A("s_and_b32 s20, s20, 7")
    NPF = P.get("NPF", 0)
    A("s_waitcnt vmcnt(%d)" % NPF)
    A("s_cmp_lg_u32 s21, 0"); A("s_cbranch_scc1 %s" % L("notick2"))
    A("s_mov_b64 exec, 1"); A("v_mov_b32 v29, %d" % L_FL); A("ds_write_b32 v29, v28"); A("s_waitcnt lgkmcnt(0)"); A("s_mov_b64 exec, -1")
    A.label(L("notick2"))
    A("s_barrier")
    A("s_cmp_lg_u32 s21, 0"); A("s_cbranch_scc1 %s" % L("noarr"))
    A("s_mov_b64 exec, 1"); A("v_mov_b32 v30, 1"); A("v_mov_b32 v29, 32"); A("buffer_atomic_add v30, v29, s[12:15], 0 offen"); A("s_mov_b64 exec, -1")
    A.label(L("noarr"))
    A("v_mov_b32 v29, %d" % L_FL); A("ds_read_b32 v28, v29"); A("s_waitcnt lgkmcnt(0)"); A("v_readfirstlane_b32 s25, v28")
    A("s_and_b32 s22, s25, 31")
    A("s_mov_b32 s23, 0"); A("s_mov_b32 s32, 0")
    ht(0)
    A("s_cmp_ge_u32 s20, 3"); A("s_cbranch_scc1 %s" % L("lw_done"))
    A.label(L("loadw"))
    A("s_barrier")
    A("s_cmp_lt_u32 s20, 2"); A("s_cbranch_scc1 %s" % L("lw_chain"))
    A("s_cmp_lt_u32 s20, 4"); A("s_cbranch_scc1 %s" % L("lw_bulk"))
    A("s_lshl_b32 s34, s22, 2"); A("s_add_u32 s34, s34, s20"); A("s_sub_u32 s34, s34, 4"); A("s_mov_b32 s92, s33"); A("s_mov_b32 s33, s21")
    lane_setup(A); ln_body(A, "s34", 16, 0, WS_XNF, False, "", lambda st: [A(t_ + " sc1") for t_ in st])
    A("s_mov_b32 s33, s92"); A("s_waitcnt vmcnt(0)"); A("s_barrier")
    A("s_cmp_lg_u32 s21, 0"); A("s_cbranch_scc1 %s" % L("lw_bulk"))
    A("s_lshr_b32 s27, s34, 1"); A("s_lshl_b32 s27, s27, 7"); A("s_and_b32 s28, s34, 1"); A("s_mul_i32 s28, s28, 20"); A("s_add_u32 s27, s27, s28"); A("s_add_u32 s27, s27, %d" % WS_XFL)
    A("v_lshrrev_b32 v12, 2, v0"); A("v_mov_b32 v13, 1"); A("s_mov_b64 exec, 31"); A("buffer_store_dword v13, v12, s[8:11], s27 offen sc1"); A("s_mov_b64 exec, -1")
    A.label(L("lw_bulk"))
    bulk_load(A, L, breg)
    A("s_branch %s" % L("lw_done"))
    A.label(L("lw_chain"))
    if P.get("HALF"): A("s_cmp_ge_u32 s22, %d" % P["HALF"]); A("s_cbranch_scc1 %s" % L("lw_done"))
    chain_load(A, k_chain)
    A.label(L("lw_done"))
    A("s_cmp_lg_u32 s32, 0"); A("s_cbranch_scc1 %s" % L("role_ok"))
    A("s_mov_b32 s32, 1"); A("s_mov_b32 s30, 0")
    A("v_bfe_u32 v12, v0, 4, 4"); A("v_lshlrev_b32 v12, 2, v12")
    A.label(L("modepoll"))
    A("buffer_load_dword v13, v12, s[12:15], 0 offen sc1"); A("s_waitcnt vmcnt(0)")
    A("v_readlane_b32 s31, v13, 8")
    A("s_cmp_eq_u32 s31, 256"); A("s_cbranch_scc1 %s" % L("modegot"))
    A("s_sleep 2")
    A("s_add_u32 s30, s30, 1"); A("s_cmp_lt_u32 s30, %d" % SPIN_MAX); A("s_cbranch_scc1 %s" % L("modepoll"))
    A("s_branch %s" % L("fail"))
    A.label(L("modegot"))
    A("s_cmp_eq_u32 s30, 0"); A("s_cbranch_scc1 %s" % L("moderd"))
    A("buffer_load_dword v13, v12, s[12:15], 0 offen sc1"); A("s_waitcnt vmcnt(0)")
    A.label(L("moderd"))
    A("v_readlane_b32 s33, v13, 15"); A("s_nop 0"); A("s_and_b32 s33, s33, 3"); A("s_lshl_b32 s33, s33, 13")
    A("s_xor_b32 s33, s33, %d" % (0x4000 ^ (P.get("PG", 0) << 13)))
    A("v_cmp_ne_u32 vcc, 32, v13"); A("s_and_b32 s31, vcc_lo, 0xff")
    if P.get("FORCE_SLOW"): A("s_mov_b32 s31, 1")
    A("s_cmp_lg_u32 s31, 0"); A("s_cbranch_scc1 %s" % L("slowm"))
    A("s_cmp_ge_u32 s20, 3"); A("s_cbranch_scc1 %s" % L("loadw")); A("s_branch %s" % L("role_ok"))
    A.label(L("slowm"))
    A("s_mov_b32 s23, 1"); A("s_mov_b32 s31, s25")
    for x in range(7):
        A("v_readlane_b32 s30, v13, %d" % x); A("s_cmp_gt_u32 s24, %d" % x); A("s_cselect_b32 s30, s30, 0"); A("s_add_u32 s31, s31, s30")
    if P.get("FORCE_SLOW"):
        A("s_and_b32 s20, s31, 7"); A("s_lshr_b32 s22, s31, 3")
    else:
        A("s_lshr_b32 s20, s31, 5"); A("s_and_b32 s22, s31, 31")
    A("s_and_b32 s20, s20, 7"); A("s_and_b32 s22, s22, 31")
    A("s_branch %s" % L("loadw"))
    A.label(L("role_ok"))
    A("s_mov_b32 s25, s33")
    A("s_cmp_ge_u32 s20, 2"); A("s_cbranch_scc1 %s" % L("bulk"))
    chain_body(A, P, L, ht)
    if P.get("CF", 1):
        A.label(L("c_fft"))
        A("s_lshr_b32 s72, s44, 6"); A("s_sub_u32 s72, s72, 1")
        def cpoll(stage):
            ld = A.newlabel(L("cp")); lp = A.newlabel(L("cp"))
            A("s_cmp_lg_u32 s21, 0"); A("s_cbranch_scc1 %s" % ld)
            A("v_and_b32 v84, 7, v12"); A("v_lshlrev_b32 v84, 12, v84"); A("v_bfe_u32 v85, v12, 3, 1"); A("v_mul_u32_u24 v85, 1280, v85"); A("v_add_u32 v84, v84, v85")
            A("s_mov_b64 exec, 0x1f1f"); A("s_lshr_b32 s31, s73, 5"); A("s_lshl_b32 s31, s31, 7"); A("s_add_u32 s31, s31, %d" % WS_DFL); A("s_lshl_b32 s29, s72, 2"); A("s_add_u32 s29, s29, %d" % (stage + 1)); A("s_mov_b32 s30, 0")
            A.label(lp)
            A("buffer_load_dword v85, v84, s[8:11], s31 offen sc1")
            A("s_add_u32 s30, s30, 1"); A("s_cmp_ge_u32 s30, %d" % (SPIN_MAX * 4)); A("s_cbranch_scc1 %s" % L("fail"))
            A("s_sleep %d" % (4 if stage == 1 else 1))
            A("s_waitcnt vmcnt(0)"); A("v_cmp_gt_u32 vcc, s29, v85"); A("s_cbranch_vccnz %s" % lp)
            A("s_mov_b64 exec, -1")
            A.label(ld)
            A("s_barrier")
        fft1(A, L, cpoll)
        A("s_waitcnt vmcnt(0)"); A("s_barrier")
        A("s_cmp_lg_u32 s21, 0"); A("s_cbranch_scc1 %s" % L("c_fd"))
        A("s_lshl_b32 s28, s72, 13"); A("s_add_u32 s28, s28, %d" % (WS_BAR2 + 4096 + 6 * 128)); A("s_lshl_b32 s27, s20, 7"); A("s_add_u32 s28, s28, s27")
        A("s_mov_b64 exec, 1"); A("v_mov_b32 v84, s22"); A("v_mov_b32 v85, 1")
        lst(["buffer_store_byte v85, v84, s[8:11], s28 offen"])
        A("s_cmp_lg_u32 s22, 31"); A("s_cbranch_scc1 %s" % L("c_fe"))
        A("s_mov_b64 exec, 0xff"); A("s_mov_b32 s30, 0")
        A.label(L("c_fl"))
        A("buffer_load_dword v85, v13, s[8:11], s28 offen sc1")
        A("s_add_u32 s30, s30, 1"); A("s_cmp_ge_u32 s30, %d" % (SPIN_MAX * 4)); A("s_cbranch_scc1 %s" % L("fail"))
        A("s_waitcnt vmcnt(0)"); A("v_cmp_ne_u32 vcc, 0x01010101, v85"); A("s_cbranch_vccnz %s" % L("c_fl"))
        A("s_mov_b64 exec, 1"); A("v_mov_b32 v85, 1"); A("buffer_store_dword v85, v13, s[8:11], s28 offen offset:1024 sc1")
        A.label(L("c_fe"))
        A("s_mov_b64 exec, -1")
        A.label(L("c_fd"))
        A("s_cmp_eq_u32 s44, 128"); A("s_cbranch_scc1 %s" % L("end"))
        A("s_branch %s" % L("c_disp"))

    def mf32(S, acc, a_, b_, c): S("v_mfma_f32_16x16x32_bf16 %s, %s, %s, %s" % (r4(acc), ureg(a_, 4), ureg(b_, 4), c if isinstance(c, str) else r4(c)))
    def mf16(S, acc, a_, b_, c): S("v_mfma_f32_16x16x16_bf16 %s, %s, %s, %s" % (r4(acc), r2(a_), r2(b_), c if isinstance(c, str) else r4(c)))
    def rd(S, dst, areg, off): return S("ds_read_b128 %s, v%d offset:%d" % (r4(dst), areg, off))

    def x_dma(S, seg_s, slot_s, loc=False):
        S("s_min_u32 s27, %s, 63" % seg_s); S("s_mul_i32 s27, s27, 40960"); S("s_add_u32 s27, s27, s47")
        if loc: S("s_cmp_lt_u32 %s, 4" % seg_s); S("s_cselect_b32 s28, s53, 0"); S("s_add_u32 s27, s27, s28")
        S("s_add_u32 s28, %s, s42" % slot_s)
        for f in range(10):
            if f % 4 == 0:
                if f: S("s_add_u32 s27, s27, 4096"); S("s_add_u32 s28, s28, 4096")
                S("s_mov_b32 m0, s28")
            S("buffer_load_dwordx4 v0, s[8:11], s27 offen offset:%d sc1 lds" % ((f % 4) * 1024))

    def proj(S, areg, acc, XB, tr=False, mid=None):
        NB = len(XB)
        seq = [(mt, ks) for mt in range(2) for ks in range(20)]
        for i in range(NB - 1): rd(S, XB[i], areg, i * 1024)
        for i, (mt, ks) in enumerate(seq):
            if mid and i == 22: mid(S)
            if i + NB - 1 < 40: rd(S, XB[(i + NB - 1) % NB], areg, (i + NB - 1) * 1024)
            for tl in range(2):
                a = acc + 8 * mt + 4 * tl
                if tr: mf32(S, a, XB[i % NB], breg(tl * 20 + ks), "0" if ks == 0 else a)
                else: mf32(S, a, breg(tl * 20 + ks), XB[i % NB], "0" if ks == 0 else a)

    def xpoll(S, mask, tag, sleep=4):
        ld = A.newlabel(L(tag)); lp = A.newlabel(L(tag)); le = A.newlabel(L(tag))
        A("s_cmp_lg_u32 s21, 0"); A("s_cbranch_scc1 %s" % ld)
        A("v_lshlrev_b32 v190, 3, v0"); A("s_mov_b64 exec, %s" % mask); A("s_mov_b32 s30, 0"); A("s_lshl_b32 s27, s101, 13"); A("s_add_u32 s27, s27, %d" % WS_XFL)
        A.label(lp)
        A("buffer_load_dwordx4 v[176:179], v190, s[8:11], s27 offen sc1"); A("buffer_load_dwordx4 v[180:183], v190, s[8:11], s27 offen offset:16 sc1"); A("buffer_load_dwordx2 v[184:185], v190, s[8:11], s27 offen offset:32 sc1")
        A("s_add_u32 s30, s30, 1"); A("s_cmp_ge_u32 s30, %d" % SPIN_MAX); A("s_cbranch_scc1 %s" % L("fail"))
        A("s_waitcnt vmcnt(0)")
        for i in range(177, 185, 2): A("v_min3_u32 v176, v176, v%d, v%d" % (i, i + 1))
        A("v_min_u32 v176, v176, v185"); A("v_cmp_eq_u32 vcc, 0, v176"); A("s_cbranch_vccz %s" % (lp + "d")); A("s_sleep %d" % sleep); A("s_branch %s" % lp)
        A.label(lp + "d")
        A("s_mov_b64 exec, -1")
        A.label(ld)
        A("s_barrier")
        A.label(le)

    def poll(S, addr_s, lanes, cmp_ins, tag, sleep=1, sh="v_lshrrev_b32 v190, 2, v0"):
        ld = A.newlabel(L(tag)); lp = A.newlabel(L(tag))
        S("s_cmp_lg_u32 s21, 0"); S("s_cbranch_scc1 %s" % ld)
        A("s_mov_b64 exec, 0x%x" % lanes); A("s_mov_b32 s30, 0"); A(sh)
        A.label(lp)
        A("buffer_load_dword v191, v190, s[8:11], %s offen sc1" % addr_s)
        A("s_add_u32 s30, s30, 1"); A("s_cmp_ge_u32 s30, %d" % SPIN_MAX); A("s_cbranch_scc1 %s" % L("fail"))
        A("s_waitcnt vmcnt(0)"); A(cmp_ins); A("s_cbranch_vccz %s" % (lp + "d"))
        if sleep: A("s_sleep %d" % sleep)
        A("s_branch %s" % lp)
        A.label(lp + "d")
        A("s_mov_b64 exec, -1")
        A.label(ld)
        S("s_barrier")

    A.label(L("bulk"))
    A("s_waitcnt vmcnt(0)"); A("s_barrier")
    ht(1)
    A("s_mul_i32 s42, s21, 10240"); A("s_mul_i32 s47, s101, %d" % XNF_LAYER); A("s_add_u32 s47, s47, s42"); A("s_add_u32 s47, s47, %d" % WS_XNF)
    A("s_mul_i32 s50, s101, %d" % KV_LAYER); A("s_lshl_b32 s27, s22, 13"); A("s_add_u32 s50, s50, s27"); A("s_add_u32 s50, s50, %d" % WS_KXF)
    A("s_lshl_b32 s43, s101, 6")
    A("s_sub_u32 s82, s20, 2"); A("s_mov_b32 s83, s21"); A("s_mov_b32 s84, s22"); A("s_mov_b32 s85, s23")
    A("s_lshl_b32 s87, s82, 5"); A("s_add_u32 s87, s87, s22")
    A("s_mul_i32 s86, s101, %d" % (2 * 4096))
    A("s_mul_i32 s80, s101, %d" % (WS_X3 - WS_X1)); A("s_add_u32 s80, s80, %d" % WS_X1)
    A("s_load_dwordx2 s[98:99], s[0:1], %d" % KA_OUT)
    if P.get("CF", 1): A("s_cmp_ge_u32 s87, 128"); A("s_cselect_b32 s81, 191, s87"); A("s_cmp_eq_u32 s87, 159"); A("s_cselect_b32 s81, 160, s81"); A("s_waitcnt lgkmcnt(0)")
    else: A("s_cmp_eq_u32 s87, 160"); A("s_cselect_b32 s81, 191, s87"); A("s_cmp_eq_u32 s87, 191"); A("s_cselect_b32 s81, 160, s81"); A("s_waitcnt lgkmcnt(0)")
    A("s_mul_i32 s27, s22, 26"); A("s_lshr_b32 s27, s27, 8"); A("s_mul_i32 s28, s27, 10"); A("s_sub_u32 s88, s22, s28")
    A("s_mul_i32 s28, s20, 3"); A("s_sub_u32 s28, s28, %d" % (8 if P.get("RG0", 1) else 9))
    A("s_cmp_lt_u32 s20, 3"); A("s_cselect_b32 s28, %d, s28" % (0 if P.get("RG0", 1) else 15)); A("s_cselect_b32 s29, 1, 3"); A("s_add_u32 s28, s28, s27")
    A("s_lshl_b32 s89, s28, 2"); A("s_add_u32 s89, s89, s21"); A("s_cmp_lt_u32 s27, s29"); A("s_cselect_b32 s89, s89, 64")
    A("s_cmp_ge_u32 s20, 3"); A("s_cbranch_scc1 %s" % L("qao"))
    S = Seq(A)
    S("s_lshl_b32 s28, s21, 11"); S("s_add_u32 s52, s50, s28"); S("s_add_u32 s52, s52, %d" % KV_MAT); S("s_lshl_b32 s28, s21, 10"); S("s_add_u32 s50, s50, s28")
    S("s_lshl_b32 s51, s22, 8"); S("s_add_u32 s51, s51, %d" % WS_KVFL); S("v_lshlrev_b32 v3, 3, v0")
    S("s_mov_b32 s44, 0"); S("s_mov_b32 s45, 0")
    S("s_mul_i32 s53, s101, %d" % (WS_XNL - WS_XNF - XNF_LAYER))
    A("s_cmp_lg_u32 s101, 0"); A("s_cbranch_scc1 %s" % L("kv_l1"))
    xpoll(S, "15", "kx", P.get("KS", 4)); A("s_branch %s" % L("kv_l2"))
    A.label(L("kv_l1"))
    A("s_mov_b32 s54, %d" % WS_LFL); poll(S, "s54", 0x3ff, "v_cmp_ne_u32 vcc, 0x01010101, v191", "kl", sleep=1)
    A.label(L("kv_l2"))
    x_dma(S, "s44", "s45", True)
    A("s_lshl_b32 s55, s89, 7"); A("s_lshl_b32 s27, s88, 2"); A("s_add_u32 s55, s55, s27"); A("s_add_u32 s55, s55, %d" % (WS_XFL + 8192))
    A("s_cmp_lt_u32 s89, 64"); A("s_cselect_b32 s27, s101, 0"); A("s_cmp_lg_u32 s27, 0"); A("s_cselect_b32 s55, s55, 0x%x" % OOB); A("s_cbranch_scc1 %s" % L("kv_d1"))
    A("s_waitcnt vmcnt(0)"); A("s_barrier"); A("s_branch %s" % L("kv_d2"))
    A.label(L("kv_d1"))
    A("s_waitcnt vmcnt(0)"); A("s_barrier"); idft_deferred(A)
    A.label(L("kv_d2"))
    A("v_mov_b32 v6, 1")
    XB = [56 + 4 * i for i in range(5)]
    S("v_mov_b32 v1, v0")
    for i in range(4): rd(S, XB[i], 1, i * 1024)
    A.label(L("kv_top"))
    S = Seq(A); S.nl = 4
    for i in range(4):
        for r_ in range(4): S.lp["v%d" % (XB[i] + r_)] = i + 1
    S("s_add_u32 s27, s44, s43"); S("v_mov_b32 v2, s27")
    S("s_sub_u32 s45, 40960, s45"); S("s_add_u32 s44, s44, 1"); S("v_add_u32 v4, s45, v0")
    dm = []; x_dma(dm.append, "s44", "s45", True)
    def kflag(tag):
        A("s_cmp_lg_u32 s21, 0"); A("s_cbranch_scc1 %s" % L(tag))
        A("s_mov_b64 exec, 3"); A("buffer_store_dword v2, v3, s[8:11], s51 offen sc1"); A("s_mov_b64 exec, -1")
        A.label(L(tag))
    sq = [(mt, ks) for mt in range(2) for ks in range(20)]
    ep = []
    for i, (mt, ks) in enumerate(sq):
        KG, KD, KM_ = P.get("KG", 2), P.get("KDI", 4), P.get("KM", 10)
        if i == KM_:
            S("s_waitcnt vmcnt(%d)" % S.nv); S("s_barrier"); kflag("kv_f0"); S("s_mov_b64 exec, 1"); S("buffer_store_dword v6, v0, s[8:11], s55 offen sc1"); S("s_mov_b64 exec, -1"); S("s_mov_b32 s55, 0x%x" % OOB)
        if i % KD == 2 % KD:
            n_ = 0
            while dm and n_ < KG:
                if dm[0].startswith("buffer"): n_ += 1
                S(dm.pop(0))
        if i == 22:
            ep = ["v_cvt_pk_bf16_f32 v%d, v%d, v%d" % (40 + q, 8 + q, 12 + q) for q in range(4)]
            ep += ["v_cvt_pk_bf16_f32 v%d, v%d, v%d" % (48 + 4 * tl + q, 24 + 4 * tl + 2 * q, 25 + 4 * tl + 2 * q) for tl in range(2) for q in range(2)]
        if i == 36: S("s_waitcnt vmcnt(0)"); S("s_barrier")
        if i + 4 < 40: rd(S, XB[(i + 4) % 5], 1, (i + 4) * 1024)
        else: rd(S, XB[(i + 4) % 5], 4, (i - 36) * 1024)
        for tl in range(2):
            a_ = 8 + 8 * mt + 4 * tl
            mf32(S, a_, breg(tl * 20 + ks), XB[i % 5], "0" if ks == 0 else a_)
            if ep: S(ep.pop(0))
            mf32(S, a_ + 16, XB[i % 5], breg(40 + tl * 20 + ks), "0" if ks == 0 else a_ + 16)
    assert not dm
    S("s_add_u32 s27, s50, 4096"); S("v_mov_b32 v1, v4")
    S("buffer_store_dwordx4 %s, v0, s[8:11], s50 offen sc1" % r4(40))
    for i in range(4): S("v_cvt_pk_bf16_f32 v%d, v%d, v%d" % (44 + i, 16 + i, 20 + i))
    for tl in range(2):
        for q in range(2): S("v_cvt_pk_bf16_f32 v%d, v%d, v%d" % (50 + 4 * tl + q, 32 + 4 * tl + 2 * q, 33 + 4 * tl + 2 * q))
    S("buffer_store_dwordx4 %s, v0, s[8:11], s27 offen sc1" % r4(44))
    for tl in range(2): S("buffer_store_dwordx4 %s, v0, s[8:11], s52 offen offset:%d sc1" % (r4(48 + 4 * tl), 1024 * tl))
    S("s_add_u32 s50, s50, 262144"); S("s_add_u32 s52, s52, 262144")
    A("s_barrier")
    S("s_cmp_lg_u32 s44, 3"); S("s_cbranch_scc1 %s" % L("kv_np"))
    xpoll(S, "-1", "kx")
    A.label(L("kv_np"))
    S("s_cmp_lt_u32 s44, 64"); S("s_cbranch_scc1 %s" % L("kv_top"))
    A("s_add_u32 s27, s44, s43"); A("v_mov_b32 v2, s27"); A("s_waitcnt vmcnt(0) lgkmcnt(0)"); A("s_barrier"); kflag("kv_f2")
    A("s_branch %s" % L("bphase"))

    LQ_EQ, LQ_EO, LQ_ST, LQ_FT = 81920, 90112, 98304, 122880
    A.label(L("qao"))
    A("s_cmp_lg_u32 s101, 0"); A("s_cbranch_scc1 %s" % L("q_ft"))
    lane_setup(A); A("s_min_u32 s36, s22, 19"); A("s_mul_i32 s36, s36, 40"); A("s_mul_i32 s27, s21, 10"); A("s_add_u32 s36, s36, s27"); A("s_add_u32 s35, s36, 10")
    A("s_add_u32 s27, s42, %d" % LQ_FT); A("v_add_u32 v2, s27, v0")
    A.label(L("q_ftl"))
    t1_frag(A); A("ds_write_b128 v2, v[24:27]"); A("v_add_u32 v2, 1024, v2")
    A("s_add_u32 s36, s36, 1"); A("s_cmp_lt_u32 s36, s35"); A("s_cbranch_scc1 %s" % L("q_ftl"))
    A("s_waitcnt lgkmcnt(0)")
    A.label(L("q_ft"))
    if P.get("MSL"):
        A("s_lshr_b32 s27, %d, s20" % P["MSL"]); A("s_and_b32 s27, s27, 1"); A("s_cbranch_scc0 %s" % L("msl"))
        for _ in range(34): A("s_sleep 127")
        A.label(L("msl"))
    S = Seq(A)
    G, R_, VH, PSX, RLA, RLB, XOA, XOB, THR, XHA, XDA, FTA = 1, 2, 3, 4, 5, 6, 7, 8, 9, 12, 13, 14
    SELR = 16; PSY = 1
    def cvt(d, a_, b_, op="v_cvt_pk_bf16_f32"): S("%s v%d, v%d, v%d" % (op, d, a_, b_))
    S("v_lshrrev_b32 v%d, 8, v0" % G); S("v_bfe_u32 v%d, v0, 4, 4" % R_)
    S("v_add_u32 v%d, %d, v0" % (VH, LQ_EQ)); S("v_add_u32 v%d, %d, v0" % (FTA, LQ_FT))
    S("s_mul_i32 s28, s21, 320")
    S("v_mul_u32_u24 v10, 163840, v%d" % G); S("s_mul_i32 s27, s22, 1280"); S("s_add_u32 s29, s27, s28"); S("v_add_u32 v10, s29, v10")
    S("v_lshl_add_u32 v%d, v%d, 4, v10" % (PSX, R_))
    S("v_mul_u32_u24 v10, 1280, v%d" % G); S("s_mul_i32 s27, s22, 40960"); S("s_add_u32 s27, s27, s28"); S("v_add_u32 v10, s27, v10"); S("v_lshl_add_u32 v%d, v%d, 4, v10" % (RLA, R_))
    S("v_lshrrev_b32 v11, 2, v%d" % R_); S("v_mul_u32_u24 v15, 5120, v11"); S("v_add_u32 v10, v10, v15"); S("v_and_b32 v15, 0x30, v0"); S("v_add_u32 v%d, v10, v15" % RLB)
    S("v_and_b32 v10, 1, v%d" % G); S("v_lshlrev_b32 v10, 3, v10"); S("v_add_u32 v%d, s29, v10" % XOB); S("v_lshl_add_u32 v%d, v%d, 4, v%d" % (XOA, R_, XOB)); S("v_add_u32 v%d, v%d, v15" % (XOB, XOB))
    S("v_lshl_add_u32 v10, v11, 10, v10"); S("v_lshl_add_u32 v10, v15, 4, v10"); S("s_mul_i32 s27, s21, 5120"); S("s_and_b32 s28, s22, 15"); S("s_lshl_b32 s28, s28, 4"); S("s_add_u32 s27, s27, s28")
    S("s_lshr_b32 s28, s22, 4"); S("s_mul_i32 s28, s28, 20480"); S("s_add_u32 s27, s27, s28"); S("v_add_u32 v%d, s27, v10" % XHA)
    S("v_lshlrev_b32 v10, 13, v%d" % R_); S("v_lshl_add_u32 v10, v%d, 4, v10" % G); S("s_lshl_b32 s27, s22, 18"); S("s_lshl_b32 s28, s21, 6"); S("s_add_u32 s27, s27, s28"); S("v_add_u32 v%d, s27, v10" % XDA)
    S("s_and_b32 s58, s21, 1"); S("s_lshr_b32 s59, s21, 1")
    S("v_lshlrev_b32 v10, 2, v%d" % G); S("v_sub_u32 v10, v%d, v10" % R_); S("s_lshl_b32 s27, s58, 4"); S("v_add_u32 v%d, s27, v10" % THR)
    S("v_and_b32 v10, 16, v0"); S("s_movk_i32 s27, 0x3f80"); S("v_lshlrev_b32_e64 v10, v10, s27"); S("v_bfe_u32 v11, v0, 5, 2")
    for q in range(4):
        S("v_cmp_eq_u32 vcc, %d, v11" % q); S("v_cndmask_b32 v%d, 0, v10, vcc" % (SELR + q))
    S("s_mov_b32 s40, 0x%08x" % f2u(C1)); S("s_mov_b32 s41, s40")
    S("s_sub_u32 s44, s20, 4"); S("s_min_u32 s44, s44, 4"); S("s_mov_b32 s45, 0")
    load_srd(A, 72, KA_WR, 0); load_srd(A, 76, KA_WI, 0)
    A("s_mul_i32 s94, s44, 12"); A("s_add_u32 s94, s94, s22"); A("s_sub_u32 s94, s94, 20"); A("s_lshl_b32 s95, s94, 7"); A("s_add_u32 s95, s95, %d" % WS_TFL)
    A("s_lshl_b32 s94, s94, 2"); A("s_add_u32 s94, s94, s21"); A("s_cmp_lg_u32 s101, 0"); A("s_cselect_b32 s94, 5000, s94")
    A("s_waitcnt lgkmcnt(0)"); fin_srd(A, 72, SZ_WF); fin_srd(A, 76, SZ_WF)
    S("s_mul_i32 s48, s44, %d" % (2 * PARTX_SLOT)); S("s_add_u32 s48, s48, %d" % WS_PARTX); S("s_mov_b32 s49, %d" % (0 if P.get("PX1", 1) else PARTX_SLOT))
    S("s_lshl_b32 s51, s44, 12"); S("s_lshl_b32 s27, s101, 11"); S("s_add_u32 s51, s51, s27"); S("s_add_u32 s51, s51, %d" % WS_ARR)
    S("s_lshl_b32 s52, s22, 7"); S("s_lshl_b32 s27, s101, 12"); S("s_add_u32 s52, s52, s27"); S("s_add_u32 s52, s52, %d" % WS_CHFL)
    S("s_lshl_b32 s53, s22, 13"); S("s_add_u32 s53, s53, %d" % WS_KM)
    S("s_mul_i32 s54, s101, %d" % (WS_X3 - WS_X1)); S("s_add_u32 s54, s54, %d" % WS_X1)
    S("s_lshl_b32 s60, s22, 8"); S("s_add_u32 s60, s60, %d" % WS_KVFL)
    S("s_mul_i32 s63, s44, 65536"); S("s_add_u32 s63, s63, %d" % WS_XNH); S("s_add_u32 s64, s63, 4096")
    S("v_mul_u32_u24 v10, 12, v%d" % R_); S("v_sub_u32 v%d, v%d, v10" % (PSY, PSX))
    xpoll(S, "-1", "qx", P.get("XS", 32))
    x_dma(S, "s44", "0"); S("s_add_u32 s46, s44, 5"); x_dma(S, "s46", "40960"); S("s_waitcnt vmcnt(0)"); S("s_barrier")
    A("s_mov_b32 s65, 0"); A("s_mov_b32 s66, s44"); A("s_mov_b32 s62, 0x%x" % OOB); A("s_mov_b32 s67, 0x%x" % OOB); A("s_mov_b32 s68, 0x%x" % OOB)
    QF = [160 + 4 * i for i in range(4)]; OO = [144 + 4 * i for i in range(4)]; MX, ZX, TM, M2, AL = 176, 177, 178, 179, 180; RESN = 184; RES = 20
    KF = [72 + 4 * i for i in range(8)]; VF = [104 + 4 * i for i in range(4)]; SA, SB, PB, SM = 120, 124, 128, 48; FLG = 15
    def flag_load(E): E("v_lshlrev_b32 v10, 3, v0"); E("s_mov_b64 exec, 3"); E("buffer_load_dword v%d, v10, s[8:11], s60 offen sc1" % FLG); E("s_mov_b64 exec, -1")
    def flag_get(E): E("v_readlane_b32 s65, v%d, 0" % FLG); E("v_readlane_b32 s27, v%d, 1" % FLG); E("s_nop 3"); E("s_min_u32 s65, s65, s27")
    def xl(reg, op, both=True):
        for sw in ("v_permlane16_swap_b32", "v_permlane32_swap_b32")[:2 if both else 1]:
            S("v_mov_b32 v%d, v%d" % (TM, reg)); S("%s v%d, v%d" % (sw, reg, TM)); S("%s v%d, v%d, v%d" % (op, reg, reg, TM))
    A.label(L("q_front"))
    A("s_add_u32 s56, s66, s43"); A("s_mov_b32 s30, 0")
    A.label(L("q_kf"))
    A("s_cmp_gt_u32 s65, s56"); A("s_cbranch_scc1 %s" % L("q_kg"))
    flag_load(A); A("s_waitcnt vmcnt(0)"); flag_get(A); A("s_sleep 1")
    A("s_add_u32 s30, s30, 1"); A("s_cmp_lt_u32 s30, %d" % SPIN_MAX); A("s_cbranch_scc1 %s" % L("q_kf")); A("s_branch %s" % L("fail"))
    A.label(L("q_kg"))
    S = Seq(A); S("s_nop 1")
    S("s_lshl_b32 s27, s66, 18"); S("s_add_u32 s27, s27, s50"); S("s_add_u32 s28, s27, 4096")
    for i in range(8): S("buffer_load_dwordx4 %s, v0, s[8:11], %s offen offset:%d sc1" % (r4(KF[i]), "s28" if i >= 4 else "s27", 1024 * (i % 4)))
    S("s_lshl_b32 s28, s59, 12"); S("s_add_u32 s27, s27, s28"); S("s_add_u32 s27, s27, %d" % KV_MAT)
    for i in range(4): S("buffer_load_dwordx4 %s, v0, s[8:11], s27 offen offset:%d sc1" % (r4(VF[i]), 1024 * i))
    S("s_mul_i32 s27, s66, 40960")
    S("buffer_load_dwordx2 %s, v%d, s[16:19], s27 offen sc1" % (r2(RESN), XOA)); S("buffer_load_dwordx2 %s, v%d, s[16:19], s27 offen offset:256 sc1" % (r2(RESN + 2), XOB))
    flag_load(S)
    QA = 24
    S("v_add_u32 v11, s45, v0"); S("s_sub_u32 s45, 40960, s45")
    proj(S, 11, QA, [40 + 4 * i for i in range(6)])
    for r in range(QA, QA + 16, 2): S("v_pk_mul_f32 %s, %s, s[40:41]" % (r2(r), r2(r)))
    S("s_lshl_b32 s27, s21, 10"); S("v_add_u32 v10, s27, v%d" % VH)
    for mt in range(2):
        for i in range(4): cvt(40 + 4 * mt + i, QA + 8 * mt + i, QA + 4 + 8 * mt + i)
        S("ds_write_b128 v10, %s offset:%d" % (r4(40 + 4 * mt), mt * 4096))
    S("s_lshl_b32 s27, s58, 12"); S("v_add_u32 v10, s27, v%d" % VH)
    S("s_waitcnt vmcnt(15) lgkmcnt(0)"); S("s_barrier")
    for u in range(4): rd(S, QF[u], 10, 1024 * u)
    def arr_store(tag):
        S("s_cmp_lg_u32 s21, 0"); S("s_cbranch_scc1 %s" % L(tag))
        S("s_mov_b64 exec, 1"); S("v_mov_b32 v10, s22"); S("v_mov_b32 v11, 1")
        lst(["buffer_store_byte v11, v10, s[8:11], s62 offen"])
        S("s_mov_b64 exec, -1")
        A.label(L(tag))
    S("s_waitcnt vmcnt(0)")
    arr_store("q_fa")
    S("v_mov_b32 v11, 0x%08x" % f2u(-1e30))
    for i in range(8):
        S("v_cmp_gt_i32 vcc, %d, v%d" % (16 * (i // 4) + i % 4, THR)); S("v_cndmask_b32 v%d, 0, v11, vcc" % (SA + i))
    for u in range(4): mf32(S, SA, KF[u], QF[u], SA); mf32(S, SB, KF[4 + u], QF[u], SB)
    flag_get(S)
    S("v_max3_f32 v%d, v%d, v%d, v%d" % (MX, SA, SA + 1, SA + 2))
    for i in (3, 5): S("v_max3_f32 v%d, v%d, v%d, v%d" % (MX, MX, SA + i, SA + i + 1))
    S("v_max_f32 v%d, v%d, v%d" % (MX, MX, SA + 7)); xl(MX, "v_max_f32")
    for r in range(SA, SA + 8): S("v_sub_f32 v%d, v%d, v%d" % (r, r, MX))
    for r in range(SA, SA + 8): S("v_exp_f32 v%d, v%d" % (r, r))
    for q in range(4): cvt(PB + q, SA + 2 * q, SA + 2 * q + 1)
    S("v_add_f32 v%d, v%d, v%d" % (ZX, SA, SA + 1))
    for r in range(SA + 2, SA + 8): S("v_add_f32 v%d, v%d, v%d" % (ZX, ZX, r))
    for i in range(4): mf32(S, OO[i], VF[i], PB, "0")
    xl(ZX, "v_add_f32")
    S("s_cmp_lg_u32 s66, s44"); S("s_cbranch_scc1 %s" % L("q_back2"))
    A.label(L("q_top"))
    hq(0)
    S = Seq(A)
    S("s_add_u32 s56, s44, s43"); S("s_lshl_b32 s57, s44, 7"); S("s_mul_i32 s55, s44, 40960")
    S("s_lshl_b32 s26, s56, 18"); S("s_add_u32 s26, s26, s53"); S("s_lshl_b32 s28, s59, 11"); S("s_add_u32 s29, s26, s28"); S("s_add_u32 s29, s29, 4096")
    S("s_lshl_b32 s27, s58, 12"); S("s_add_u32 s27, s27, s28"); S("v_add_u32 v10, s27, v%d" % VH)
    poll(S, "s52", 3, "v_cmp_ge_u32 vcc, s57, v191", "cf", sleep=P.get("QS", 1))
    S = Seq(A)
    KMF = [24 + 4 * i for i in range(4)]; VM = [40, 44]
    hq(5)
    def dflag(stage):
        A("s_lshl_b32 s27, s20, 12"); A("s_lshl_b32 s28, s22, 7"); A("s_add_u32 s27, s27, s28"); A("s_add_u32 s27, s27, %d" % (WS_DFL - 3 * 4096))
        A("s_lshl_b32 s28, s101, 2"); A("s_add_u32 s28, s28, %s" % stage); A("v_mov_b32 v11, s28")
        A("s_mov_b64 exec, 1"); A("buffer_store_dword v11, v0, s[8:11], s27 offen sc1"); A("s_mov_b64 exec, -1")
    for u in range(4): S("buffer_load_dwordx4 %s, v0, s[8:11], s26 offen offset:%d sc1" % (r4(KMF[u]), 1024 * u))
    for i in range(2): S("buffer_load_dwordx4 %s, v0, s[8:11], s29 offen offset:%d sc1" % (r4(VM[i]), 1024 * i))
    def late_stores(E):
        E("s_add_u32 s28, s68, %d" % (16 * 8192))
        for T in range(2): E("buffer_store_dwordx4 %s, v%d, s[8:11], %s offen sc1" % (r4(104 + 4 * T), XDA, "s28" if T else "s68"))
        E("s_mov_b32 exec_hi, 0"); E("buffer_store_dwordx2 %s, v%d, s[8:11], s67 offen sc1" % (r2(RES), XOA))
        E("s_mov_b32 exec_lo, 0x000f000f"); E("buffer_store_dwordx2 %s, v%d, s[8:11], s67 offen offset:256 sc1" % (r2(RES + 2), XOA)); E("s_mov_b64 exec, -1")
    for u in range(4): mf32(S, SM, KMF[u], QF[u], "0" if u == 0 else SM)
    hq(6)
    S("v_max3_f32 v%d, v%d, v%d, v%d" % (M2, MX, SM, SM + 1)); S("v_max3_f32 v%d, v%d, v%d, v%d" % (M2, M2, SM + 2, SM + 3)); xl(M2, "v_max_f32", False)
    S("v_sub_f32 v%d, v%d, v%d" % (AL, MX, M2))
    for r in range(SM, SM + 4): S("v_sub_f32 v%d, v%d, v%d" % (r, r, M2))
    S("v_exp_f32 v%d, v%d" % (AL, AL))
    for r in range(SM, SM + 4): S("v_exp_f32 v%d, v%d" % (r, r))
    S("v_add_f32 v%d, v%d, v%d" % (M2, SM, SM + 1)); S("v_add_f32 v%d, v%d, v%d" % (MX, SM + 2, SM + 3)); S("v_add_f32 v%d, v%d, v%d" % (M2, M2, MX)); xl(M2, "v_add_f32", False)
    S("v_fmac_f32 v%d, v%d, v%d" % (M2, AL, ZX)); S("v_rcp_f32 v%d, v%d" % (M2, M2))
    S("v_mul_f32 v%d, v%d, v%d" % (AL, AL, M2))
    for r in range(SM, SM + 4): S("v_mul_f32 v%d, v%d, v%d" % (r, r, M2))
    cvt(SM, SM, SM + 1); cvt(SM + 1, SM + 2, SM + 3)
    for r in range(OO[0], OO[0] + 16, 2): S("v_pk_mul_f32 %s, %s, %s op_sel_hi:[1,0]" % (r2(r), r2(r), r2(AL)))
    for i in range(4): mf16(S, OO[i], VM[i // 2] + 2 * (i % 2), SM, OO[i])
    for j in range(2):
        for i in range(4): cvt(56 + 4 * j + i, OO[2 * j] + i, OO[2 * j + 1] + i)
        S("ds_write_b128 v10, %s offset:%d" % (r4(56 + 4 * j), LQ_EO - LQ_EQ + j * 1024))
    S.wait_lds_all(); S("s_barrier")
    OF = [24 + 4 * i for i in range(8)]
    hq(7)
    for qt in range(2):
        for u in range(4): rd(S, OF[4 * qt + u], VH, LQ_EO - LQ_EQ + 4096 * qt + 1024 * u)
    late_stores(S)
    S("v_mov_b64 %s, %s" % (r2(RES), r2(RESN))); S("v_mov_b64 %s, %s" % (r2(RES + 2), r2(RESN + 2)))
    A("s_add_u32 s46, s44, 10"); A("s_cmp_ge_u32 s46, 64"); A("s_cbranch_scc1 %s" % L("q_tb"))
    A("s_sub_u32 s29, 40960, s45"); x_dma(Seq(A), "s46", "s29")
    A.label(L("q_nx"))
    S("s_mov_b32 s62, s51")
    XA = lambda qt, T: 64 + 40 * qt + 4 * T
    PK = 56
    def epi(qt):
        it = []
        for i in range(4):
            o = PK + 4 * (i % 2)
            it += [lambda i=i, o=o, q=q: cvt(o + q, XA(qt, 2 * q) + i, XA(qt, 2 * q + 1) + i) for q in range(4)]
            it += [lambda i=i: cvt(XA(qt, 8) + i, XA(qt, 8) + i, XA(qt, 9) + i)]
            if i % 2:
                def sto(i=i):
                    S("s_add_u32 s27, s48, %d" % ((16 * qt + i - 1) * 40960)); S("s_add_u32 s28, s27, 40960")
                    lst(["buffer_store_dwordx4 %s, v%d, s[8:11], %s offen" % (r4(PK + 4 * k_), PSX, ("s27", "s28")[k_]) for k_ in range(2)] +
                        ["buffer_store_dword v%d, v%d, s[8:11], %s offen offset:256" % (XA(qt, 8) + i - 1 + k_, PSY, ("s27", "s28")[k_]) for k_ in range(2)], S)
                it.append(sto)
        return it
    pend = []
    for qt in range(2):
        n_ = 0
        for T0_ in range(0, 10, 5):
            for u in range(4):
                for T in range(T0_, T0_ + 5):
                    mf32(S, XA(qt, T), OF[4 * qt + u], breg(40 + T * 4 + u), "0" if u == 0 else XA(qt, T)); n_ += 1
                    if n_ > 4 and pend: pend.pop(0)()
        pend = epi(qt)
    while pend: pend.pop(0)()
    hq(8)
    S("s_add_u32 s66, s44, 5"); S("s_cmp_lt_u32 s66, 64"); S("s_cbranch_scc1 %s" % L("q_front"))
    S = Seq(A)
    def arrive(tag):
        S("s_waitcnt vmcnt(0)"); S("s_barrier"); arr_store(tag)
    arrive("q_na")
    A.label(L("q_back2"))
    A("s_sub_u32 s27, s44, 48"); A("s_lshr_b32 s29, s27, 3"); A("s_add_u32 s29, s29, 1"); A("s_and_b32 s27, s27, 0xfffffff7"); A("s_cmp_ge_u32 s27, 5"); A("s_cbranch_scc1 %s" % L("q_nf1")); A("s_cmp_lg_u32 s21, 3"); A("s_cbranch_scc1 %s" % L("q_nf1"))
    dflag("s29")
    A.label(L("q_nf1"))
    hq(9)
    poll(S, "s62", 0xff, "v_cmp_ne_u32 vcc, 0x01010101, v191", "ar", sleep=0)
    S = Seq(A)
    B0, D0 = 24, 64
    hq(10)
    for j in range(8):
        if j: S("s_add_u32 s27, s48, %d" % (j * 5120))
        S("buffer_load_dwordx4 %s, v%d, s[8:11], %s offen sc1" % (r4(B0 + 4 * j), RLA, "s27" if j else "s48"))
        if j % 4 == 0: S("buffer_load_dwordx4 %s, v%d, s[8:11], %s offen offset:256 sc1" % (r4(B0 + 32 + j), RLB, "s27" if j else "s48"))
    XV = 72
    for q in range(4): S("v_lshlrev_b32 v%d, 16, v%d" % (XV + 2 * q, RES + q)); S("v_and_b32 v%d, 0xffff0000, v%d" % (XV + 2 * q + 1, RES + q))
    S("s_add_u32 s67, s55, s54")
    for j in range(8):
        mf32(S, D0, SELR, B0 + 4 * j, "0" if j == 0 else D0)
        if j % 4 == 0: mf32(S, D0 + 4, SELR, B0 + 32 + j, "0" if j == 0 else D0 + 4)
    hq(11)
    for sh in (8, 4):
        for q in range(4): S("v_add_f32_dpp v%d, v%d, v%d row_ror:%d row_mask:0xf bank_mask:0xf" % (D0 + 4 + q, D0 + 4 + q, D0 + 4 + q, sh))
    for q in range(4): S("v_pk_add_f32 %s, %s, %s" % (r2(XV + 2 * q), r2(XV + 2 * q), r2(D0 + 2 * q)))
    for q in range(4): cvt(RES + q, XV + 2 * q, XV + 2 * q + 1)
    for q in range(4): S("v_lshlrev_b32 v%d, 16, v%d" % (XV + 2 * q, RES + q)); S("v_and_b32 v%d, 0xffff0000, v%d" % (XV + 2 * q + 1, RES + q))
    ME, DV = 80, 84
    def wsum(dst, src):
        S("v_pk_add_f32 %s, %s, %s" % (r2(92), r2(src), r2(src + 2))); S("v_pk_add_f32 %s, %s, %s" % (r2(94), r2(src + 4), r2(src + 6)))
        S("v_add_f32 v92, v92, v93"); S("v_add_f32 v94, v94, v95"); S("v_fma_f32 v%d, v94, 0.5, v92" % dst) if False else None
        S("v_mul_f32 v94, 0x3e800000, v94"); S("v_add_f32 v%d, v92, v94" % dst)
        for sh in (8, 4, 2, 1): S("v_add_f32_dpp v%d, v%d, v%d row_ror:%d row_mask:0xf bank_mask:0xf" % (dst, dst, dst, sh))
        xl(dst, "v_add_f32", False)
    wsum(ME, XV); S("v_mul_f32 v%d, 0x%08x, v%d" % (ME, f2u(1 / 160), ME))
    for q in range(4): S("v_pk_add_f32 %s, %s, %s op_sel_hi:[1,0] neg_lo:[0,1] neg_hi:[0,1]" % (r2(DV + 2 * q), r2(XV + 2 * q), r2(ME)))
    for q in range(4): S("v_pk_mul_f32 %s, %s, %s" % (r2(DV + 2 * q), r2(DV + 2 * q), r2(DV + 2 * q)))
    wsum(ME + 1, DV)
    S("s_lshl_b32 s27, s21, 3"); S("s_add_u32 s27, s27, %d" % LQ_ST); S("v_mov_b32 v10, s27"); S("v_mov_b32 v11, %d" % LQ_ST)
    S("ds_write_b64 v10, %s" % r2(ME)); S.wait_lds_all(); S("s_barrier")
    rd(S, DV, 11, 0); rd(S, DV + 4, 11, 16)
    S("v_pk_add_f32 %s, %s, %s" % (r2(ME), r2(DV), r2(DV + 2))); S("v_pk_add_f32 %s, %s, %s" % (r2(92), r2(DV + 4), r2(DV + 6))); S("v_pk_add_f32 %s, %s, %s" % (r2(ME), r2(ME), r2(92)))
    S("v_mul_f32 v%d, 0x3e800000, v%d" % (ME, ME))
    for e in range(4): S("v_sub_f32 v%d, v%d, v%d" % (DV + 2 * e, DV + 2 * e, ME))
    for e in range(4): S("v_mul_f32 v%d, 0x43200000, v%d" % (DV + 2 * e + 1, DV + 2 * e))
    for e in range(4): S("v_fmac_f32 v%d, v%d, v%d" % (ME + 1, DV + 2 * e, DV + 2 * e + 1))
    S("v_mov_b32 v%d, 0x3727c5ac" % (ME + 2)); S("v_fmac_f32 v%d, 0x3acccccd, v%d" % (ME + 2, ME + 1)); S("v_rsq_f32 v%d, v%d" % (ME + 2, ME + 2))
    for q in range(4): S("v_pk_add_f32 %s, %s, %s op_sel_hi:[1,0] neg_lo:[0,1] neg_hi:[0,1]" % (r2(XV + 2 * q), r2(XV + 2 * q), r2(ME)))
    for q in range(4): S("v_pk_mul_f32 %s, %s, %s op_sel_hi:[1,0]" % (r2(XV + 2 * q), r2(XV + 2 * q), r2(ME + 2)))
    for q in range(4): cvt(XV + q, XV + 2 * q, XV + 2 * q + 1, "v_cvt_pk_f16_f32")
    lst(["s_mov_b32 exec_hi, 0", "buffer_store_dwordx2 %s, v%d, s[8:11], s63 offen" % (r2(XV), XHA), "s_mov_b32 exec_lo, 0x000f000f", "buffer_store_dwordx2 %s, v%d, s[8:11], s64 offen" % (r2(XV + 2), XHA), "s_mov_b64 exec, -1"], S)
    hq(12)
    S("s_add_u32 s62, s51, 20480"); arrive("q_nb")
    hq(13)
    A("s_cmp_ge_u32 s22, 20"); A("s_cbranch_scc1 %s" % L("q_tab"))
    poll(S, "s62", 0xff, "v_cmp_ne_u32 vcc, 0x01010101, v191", "ar", sleep=0)
    hq(14)
    A("s_cmp_ge_u32 s21, 2"); A("s_cbranch_scc1 %s" % L("q_nd"))
    S = Seq(A)
    S("s_mul_i32 s27, s21, 20480"); S("s_add_u32 s27, s27, s63")
    for f in range(20):
        S("buffer_load_dwordx4 %s, v0, s[8:11], s27 offen offset:%d sc1" % (r4(24 + 4 * f), (f % 4) * 1024))
        if f % 4 == 3: S("s_add_u32 s27, s27, 4096")
    TB = [112 + 4 * i for i in range(8)]
    sq = [(ks, T) for ks in range(20) for T in range(2)]
    def trd(i):
        if i < 40: rd(S, TB[i % 8], FTA, (sq[i][1] * 20 + sq[i][0]) * 1024)
    for i in range(7): trd(i)
    S("s_lshl_b32 s27, s44, 7"); S("s_mul_i32 s68, s101, %d" % XD_LAYER); S("s_add_u32 s68, s68, s27"); S("s_add_u32 s68, s68, %d" % WS_XD)
    for i, (ks, T) in enumerate(sq):
        S("v_mfma_f32_16x16x32_f16 %s, %s, %s, %s" % (r4(104 + 4 * T), r4(24 + 4 * ks), r4(TB[i % 8]), "0" if ks == 0 else r4(104 + 4 * T)))
        trd(i + 7)
    S("s_nop 7")
    A.label(L("q_nd"))
    hq(15)
    A("s_sub_u32 s27, s44, 54"); A("s_cmp_ge_u32 s27, 5"); A("s_cbranch_scc1 %s" % L("q_nt"))
    A("s_sub_u32 s27, 40960, s45"); idft_table(Seq(A), "s27", "v0", "s21")
    if P.get("FP", 1):
        A("s_sub_u32 s27, s81, 1"); A("s_cmp_ge_u32 s27, 159"); A("s_cbranch_scc1 %s" % L("q_nt"))
        A("v_bfe_u32 v190, v0, 4, 3"); A("v_lshlrev_b32 v190, 12, v190"); A("v_bfe_u32 v191, v0, 7, 1"); A("v_mul_u32_u24 v191, 1280, v191"); A("v_add_u32 v190, v190, v191")
        A("s_lshr_b32 s31, s81, 4"); A("s_lshl_b32 s31, s31, 7"); A("s_add_u32 s31, s31, %d" % WS_DFL); A("s_lshl_b32 s32, s101, 2"); A("s_add_u32 s32, s32, 1")
        A("s_mov_b64 exec, 0x1f1f"); A("buffer_load_dword v191, v190, s[8:11], s31 offen sc1"); A("s_waitcnt vmcnt(0)"); A("v_cmp_gt_u32 vcc, s32, v191"); A("s_mov_b64 exec, -1")
        A("s_cbranch_vccnz %s" % L("q_nt"))
        A("v_lshlrev_b32 v24, 3, v0"); A("s_lshl_b32 s27, s81, 14"); A("s_lshl_b32 s28, s21, 12"); A("s_add_u32 s28, s28, s27"); A("s_add_u32 s28, s28, %d" % WS_WT)
        A("s_mov_b32 exec_hi, 0"); A("buffer_load_dword v25, v24, s[8:11], s28 offen sc1")
        A("s_and_b32 s28, s21, 1"); A("s_lshl_b32 s28, s28, 13"); A("s_add_u32 s27, s27, s28"); A("s_lshr_b32 s28, s21, 1"); A("s_mul_i32 s28, s28, %d" % (320 * 8192)); A("s_add_u32 s27, s27, s28")
        A("s_mul_i32 s28, s101, %d" % XD_LAYER); A("s_add_u32 s27, s27, s28"); A("s_add_u32 s27, s27, %d" % WS_XD)
        A("s_mov_b32 exec_hi, 0xffff"); A("buffer_load_dword v25, v24, s[8:11], s27 offen sc1"); A("s_mov_b64 exec, -1")
    A.label(L("q_nt"))
    A("s_add_u32 s48, s48, s49"); A("s_sub_u32 s49, 0, s49"); A("s_add_u32 s51, s51, 128")
    A("s_add_u32 s44, s44, 5"); A("s_cmp_lt_u32 s44, 64"); A("s_cbranch_scc1 %s" % L("q_top"))
    A("s_cmp_ge_u32 s21, 2"); A("s_cbranch_scc1 %s" % L("q_e1"))
    late_stores(A); A("s_waitcnt vmcnt(2)"); A("s_barrier"); A("s_cmp_lg_u32 s21, 0"); A("s_cbranch_scc1 %s" % L("bphase"))
    dflag("3"); A("s_branch %s" % L("bphase"))
    def tpoll(tag):
        A("s_cmp_lg_u32 s101, 0"); A("s_cbranch_scc1 %s" % L(tag + "2"))
        A("v_lshlrev_b32 v190, 3, v0"); A("s_mov_b32 exec_hi, 0x0fffffff"); A("s_mov_b32 s28, %d" % WS_TFL); A("s_mov_b32 s30, 0")
        A.label(L(tag + "l"))
        A("buffer_load_dword v191, v190, s[8:11], s28 offen sc1")
        A("s_add_u32 s30, s30, 1"); A("s_cmp_ge_u32 s30, %d" % (4 * SPIN_MAX)); A("s_cbranch_scc1 %s" % L("fail"))
        A("s_waitcnt vmcnt(0)"); A("v_cmp_ne_u32 vcc, 0x01010101, v191"); A("s_cbranch_vccz %s" % L(tag + "d")); A("s_sleep 8"); A("s_branch %s" % L(tag + "l"))
        A.label(L(tag + "d"))
        A("s_mov_b64 exec, -1")
        A.label(L(tag + "2"))
    A.label(L("q_tb"))
    A("s_cmp_ge_u32 s44, 59"); A("s_cbranch_scc1 %s" % L("q_nx"))
    tpoll("q_tp")
    A("s_sub_u32 s27, 40960, s45"); idft_table(Seq(A), "s27", "v0", "s21"); A("s_branch %s" % L("q_nx"))
    A.label(L("q_tab"))
    A("s_cmp_ge_u32 s44, 59"); A("s_cbranch_scc1 %s" % L("q_nd"))
    if P.get("PX1", 1): poll(A, "s62", 0xff, "v_cmp_ne_u32 vcc, 0x01010101, v191", "ar", sleep=1)
    A("s_cmp_ge_u32 s94, 2400"); A("s_cbranch_scc1 %s" % L("q_nd"))
    for r_ in range(24): A("v_mov_b32 v%d, v%d" % (32 + r_, r_))
    lane_setup(A)
    A("s_cmp_ge_u32 s94, 800"); A("s_cbranch_scc1 %s" % L("q_wt"))
    A("s_mov_b32 s36, s94"); t2_frag(A); A("s_branch %s" % L("q_te"))
    A.label(L("q_wt"))
    A("s_sub_u32 s37, s94, 800"); A("s_lshr_b32 s36, s37, 8"); A("s_and_b32 s37, s37, 255"); wt_task(A, L("q_ws"), "s[90:91]")
    A.label(L("q_te"))
    A("s_add_u32 s94, s94, 240"); A("s_mov_b32 s40, 0x%08x" % f2u(C1)); A("s_mov_b32 s41, s40")
    A("s_cmp_lt_u32 s94, 2400"); A("s_cbranch_scc1 %s" % L("q_tr"))
    A("s_waitcnt vmcnt(0)"); A("v_mov_b32 v1, s21"); A("v_mov_b32 v2, 1"); A("s_mov_b64 exec, 1"); A("buffer_store_byte v2, v1, s[8:11], s95 offen sc1"); A("s_mov_b64 exec, -1")
    A.label(L("q_tr"))
    A("s_nop 1")
    for r_ in range(1, 24): A("v_mov_b32 v%d, v%d" % (r_, 32 + r_))
    A("s_branch %s" % L("q_nd"))
    A.label(L("q_e1"))
    A("s_barrier"); late_stores(A)

    A.label(L("bphase"))
    ht(3)
    def gbar(ph, between=None, ng=6):
        base = WS_BAR2 + ph * 4096
        lw = A.newlabel(L("gb")); ld = A.newlabel(L("gb")); la = A.newlabel(L("gb"))
        def spin(addr_setup, lanes, want):
            lp = A.newlabel(L("gs"))
            A("s_mov_b64 exec, 0x%x" % lanes); addr_setup(); A("s_mov_b32 s30, 0")
            A.label(lp)
            A("buffer_load_dword v191, v190, s[8:11], s28 offen sc1")
            A("s_add_u32 s30, s30, 1"); A("s_cmp_ge_u32 s30, %d" % (SPIN_MAX * 4)); A("s_cbranch_scc1 %s" % L("fail"))
            A("s_waitcnt vmcnt(0)"); A("v_cmp_ne_u32 vcc, 0x%x, v191" % want); A("s_cbranch_vccnz %s" % lp)
        if ng < 6: A("s_cmp_ge_u32 s82, %d" % ng); A("s_cbranch_scc1 %s" % la)
        A("s_waitcnt vmcnt(0) lgkmcnt(0)"); A("s_barrier")
        A("s_cmp_lg_u32 s83, 0"); A("s_cbranch_scc1 %s" % la)
        A("s_mov_b32 s23, s85"); A("s_add_u32 s28, s86, %d" % base); A("s_lshl_b32 s27, s82, 7")
        A("s_mov_b64 exec, 1"); A("s_add_u32 s31, s27, s84"); A("v_mov_b32 v190, s31"); A("v_mov_b32 v191, 1")
        lst(["buffer_store_byte v191, v190, s[8:11], s28 offen"])
        A("s_cmp_lg_u32 s84, 31"); A("s_cbranch_scc1 %s" % lw)
        A("s_mov_b64 exec, -1"); A("v_mbcnt_lo_u32_b32 v189, -1, 0")
        spin(lambda: A("v_lshl_add_u32 v190, v189, 2, s27"), 0xff, 0x01010101)
        A("s_mov_b64 exec, 1"); A("v_mov_b32 v190, s27"); A("v_mov_b32 v191, 1"); A("buffer_store_dword v191, v190, s[8:11], s28 offen offset:1024 sc1")
        A.label(lw)
        A("s_mov_b64 exec, -1")
        A.label(la)
        if between: between()
        A("s_cmp_lg_u32 s83, 0"); A("s_cbranch_scc1 %s" % ld)
        A("s_add_u32 s28, s86, %d" % base); A("v_mbcnt_lo_u32_b32 v189, -1, 0")
        spin(lambda: A("v_lshlrev_b32 v190, 7, v189\nv_add_u32 v190, 1024, v190"), (1 << ng) - 1, 1)
        A("s_mov_b64 exec, -1")
        A.label(ld)
        A("s_barrier")
    A("s_mov_b32 s16, s98"); A("s_and_b32 s17, s99, 0xffff")
    A("s_cmp_eq_u32 s101, 1"); A("s_cbranch_scc1 %s" % L("osrd"))
    A("s_add_u32 s16, s8, %d" % WS_X2); A("s_addc_u32 s17, s9, 0")
    A.label(L("osrd"))
    def restore():
        A("s_add_u32 s20, s82, 2"); A("s_mov_b32 s21, s83"); A("s_mov_b32 s22, s84"); A("s_mov_b32 s23, s85")
    def tid():
        A("v_mbcnt_lo_u32_b32 v0, -1, 0"); A("v_mbcnt_hi_u32_b32 v0, -1, v0"); A("s_lshl_b32 s27, s83, 6"); A("v_add_u32 v0, s27, v0"); A("s_mov_b32 s2, s81")
    fpre, fmain = fft2(A, L("fft"), 81920, hb)
    def dpoll(stage):
        ld = A.newlabel(L("dp")); lp = A.newlabel(L("dp"))
        A("s_cmp_lg_u32 s83, 0"); A("s_cbranch_scc1 %s" % ld)
        A("v_and_b32 v190, 7, v0"); A("v_lshlrev_b32 v190, 12, v190"); A("v_bfe_u32 v191, v0, 3, 1"); A("v_mul_u32_u24 v191, 1280, v191"); A("v_add_u32 v190, v190, v191")
        A("s_mov_b64 exec, 0x1f1f")
        A("s_lshr_b32 s31, s34, 5"); A("s_lshl_b32 s31, s31, 7"); A("s_add_u32 s31, s31, %d" % WS_DFL); A("s_lshl_b32 s32, s101, 2"); A("s_add_u32 s32, s32, %d" % (stage + 1)); A("s_mov_b32 s30, 0")
        A.label(lp)
        A("buffer_load_dword v191, v190, s[8:11], s31 offen sc1")
        A("s_add_u32 s30, s30, 1"); A("s_cmp_ge_u32 s30, %d" % (SPIN_MAX * 4)); A("s_cbranch_scc1 %s" % L("fail"))
        if stage == 1: A("s_sleep 4")
        A("s_waitcnt vmcnt(0)"); A("v_cmp_gt_u32 vcc, s32, v191"); A("s_cbranch_vccnz %s" % lp)
        A("s_mov_b64 exec, -1")
        A.label(ld)
        A("s_barrier")
        if stage == 2: ht2(8)
    A("s_cmp_ge_u32 s82, 1"); A("s_cbranch_scc1 %s" % L("tabok2"))
    tpoll("b_tp")
    for hf in range(2): idft_table(Seq(A), "%d" % (40960 * hf), "v0", "s83")
    A.label(L("tabok2"))
    def early():
        A("s_min_u32 s28, s89, 63"); A("s_lshl_b32 s29, s28, 12"); A("s_add_u32 s29, s29, %d" % WS_STAT); A("v_lshlrev_b32 v190, 3, v102")
        A("s_mov_b32 exec_hi, 0"); A("buffer_load_dword v191, v190, s[8:11], s29 offen sc1"); A("s_mov_b64 exec, 1")
        A("s_mul_i32 s28, s28, 40960"); A("s_lshl_b32 s29, s88, 7"); A("s_add_u32 s29, s29, s28"); A("buffer_load_dword v191, v190, s[16:19], s29 offen sc1")
        A("s_lshl_b32 s29, s88, 11"); A("s_add_u32 s29, s29, s28"); A("s_add_u32 s29, s29, %d" % (WS_XNF + XNF_LAYER)); A("buffer_load_dword v191, v190, s[8:11], s29 offen sc1")
        A("s_mul_i32 s28, s101, %d" % XNF_LAYER); A("s_min_u32 s29, s2, 159"); A("s_lshl_b32 s29, s29, 14"); A("s_add_u32 s28, s28, s29"); A("s_lshl_b32 s29, s83, 9"); A("s_add_u32 s28, s28, s29"); A("s_add_u32 s28, s28, %d" % WS_ZF)
        A("s_cmp_lt_u32 s2, 160"); A("s_cselect_b32 s28, s28, 0x%x" % OOB); A("buffer_load_dword v191, v190, s[8:11], s28 offen sc1")
        A("s_mov_b64 exec, -1")
    tid(); fpre()
    fmain(dpoll, early, P.get('DRY', 0)); ht2(9)
    hb(11); gbar(1, None, 8 if P.get('CF', 1) else 6); ht2(10); hb(12)
    A("s_cmp_ge_u32 s89, 64"); A("s_cbranch_scc1 %s" % L("noid"))
    A("v_mbcnt_lo_u32_b32 v0, -1, 0"); A("v_mbcnt_hi_u32_b32 v0, -1, v0"); A("s_mov_b32 s23, s85")
    idft(A, lambda x: L("idend") if (x == "end" and (P.get("HT") or P.get("HD"))) else L(x), lst, L("fail"), SPIN_MAX, hb)
    A.label(L("noid"))
    if P.get("HT") or P.get("HD"): A.label(L("idend"))
    restore(); ht(5)
    A("s_cmp_eq_u32 s101, 1"); A("s_cbranch_scc1 %s" % L("end"))
    A("s_mov_b32 s101, 1")
    A("v_mbcnt_lo_u32_b32 v0, -1, 0"); A("v_mbcnt_hi_u32_b32 v0, -1, v0"); A("v_lshlrev_b32 v0, 4, v0")
    A("s_waitcnt lgkmcnt(0)"); A("s_barrier")
    A("s_branch %s" % L("bulk"))
    flush_ool()
    A.label(L("fail"))
    A("s_mov_b64 exec, 1"); A("v_mov_b32 v12, 1"); A("v_mov_b32 v13, 48"); A("buffer_atomic_add v12, v13, s[12:15], 0 offen")
    A.label(L("end"))
    A("s_endpgm")
    return k
```

```python
import re

_R = re.compile(r'\b([vas])(\d+)\b|\b([vas])\[(\d+):(\d+)\]|\b(vcc|exec|m0|vcc_lo|vcc_hi|exec_lo|exec_hi|scc)\b')
TRANS = ("v_exp_f32", "v_log_f32", "v_rcp_f32", "v_rsq_f32", "v_sqrt_f32", "v_sin_f32", "v_cos_f32")


def regs_of(op):
    out = []
    for m in _R.finditer(op):
        if m.group(1): k, lo, hi = m.group(1), int(m.group(2)), int(m.group(2))
        elif m.group(3): k, lo, hi = m.group(3), int(m.group(4)), int(m.group(5))
        else:
            out.append(m.group(6).split("_")[0]); continue
        for i in range(lo, hi + 1): out.append(k + str(i))
    return out


class Seq:
    def __init__(self, A):
        self.A = A
        self.pos = 0
        self.cyc = 0
        self.vw = {}
        self.tw = {}
        self.mw = {}
        self.mc = {}
        self.sd = {}
        self.sw = {}
        self.m0 = -99
        self.lp = {}
        self.vp = {}
        self.nl = self.dl = self.nv = self.dv = 0
        self.nops = 0
        self.warm = None
        self.mst = 1
        self.lastm = False
        self.cnt = 0
        self.hoist = False
        self.tailv = 0
        self.hook = None

    def _raw(self, t, cost=4):
        self.A(t); self.pos += 1; self.cyc += cost
        self.tailv = self.tailv + 1 if (t.startswith("v_") and not t.startswith(("v_mfma", "v_smfmac"))) else 0
        if t.startswith("s_waitcnt"): self.lastm = False

    def wait(self, lds=None, vm=None, hoist=False):
        parts = []
        if vm is not None and vm > self.dv:
            n = min(self.nv - vm, 62)
            parts.append("vmcnt(%d)" % n); self.dv = self.nv - n
        if lds is not None and lds > self.dl:
            n = self.nl - lds
            n = min(n, 14)
            parts.append("lgkmcnt(%d)" % n); self.dl = self.nl - n
        if parts:
            t = "s_waitcnt " + " ".join(parts)
            k = self.tailv if (self.hoist and hoist) else 0
            if 0 < k <= 4:
                self.A.lines.insert(len(self.A.lines) - k, "    " + t)
                p0 = self.pos - k
                for d in (self.vw, self.tw, self.sw):
                    for x in d:
                        if d[x] >= p0: d[x] += 1
                self.pos += 1
            else: self._raw(t)

    def wait_lds_all(self): self.wait(lds=self.nl)
    def wait_vm_all(self): self.wait(vm=self.nv)

    def nop(self, n):
        while n > 0:
            k = min(n, 16); self.A("s_nop %d" % (k - 1)); self.pos += k; self.cyc += 4 * k; n -= k; self.tailv = 0

    def label(self, l): self.A.label(l); self.tailv = 0

    def settle(self):
        self._raw("s_waitcnt vmcnt(0) lgkmcnt(0)"); self.dl = self.nl; self.dv = self.nv; self.nop(8)

    def __call__(self, text):
        tok = None
        for t in text.split("\n"):
            t = t.strip()
            if t: tok = self.ins(t)
        return tok

    def ins(self, t):
        if t.startswith("x_vcc"):
            self.ins("s_mov_b32 vcc_lo, " + t.split()[1]); return self.ins("s_mov_b32 vcc_hi, " + t.split()[1])
        if self.hook: self.hook(self.cnt, t)
        self.cnt += 1
        opc, _, rest = t.partition(" ")
        ops = [o.strip() for o in rest.split(",")]
        R = [regs_of(o) for o in ops]
        mfma = opc.startswith("v_mfma") or opc.startswith("v_smfmac")
        valu = opc.startswith("v_") and not mfma
        ds = opc.startswith("ds_")
        vm = opc.startswith("buffer_") or opc.startswith("global_")
        islds = vm and re.search(r'\blds\b', t) is not None
        rd, wr = [], []
        if mfma:
            wr = R[0]; ab = R[1] + R[2]; c = R[3] if opc.startswith("v_mfma") else R[0]
            if opc.startswith("v_smfmac"): ab = ab + R[3]
            rd = ab + c
        elif valu:
            if "swap" in opc: wr = R[0] + R[1]; rd = R[0] + R[1]
            else:
                wr = R[0]; rd = [x for r in R[1:] for x in r]
                if opc.startswith(("v_fmac", "v_writelane")) or "dpp" in opc: rd = rd + R[0]
        elif ds:
            if opc.startswith("ds_read"): wr = R[0]; rd = R[1]
            else: rd = [x for r in R for x in r]
        elif vm:
            if "load" in opc and not islds: wr = R[0]; rd = [x for r in R[1:] for x in r]
            else: rd = [x for r in R for x in r]
        else:
            if opc.startswith(("s_cmp", "s_cbranch", "s_branch", "s_barrier", "s_nop", "s_waitcnt", "s_bitcmp", "s_setprio", "s_sleep")): rd = [x for r in R for x in r]
            else: wr = R[0] if R else []; rd = [x for r in R[1:] for x in r]
        lt = max([self.lp.get(x, 0) for x in rd + wr] + [0]); vt = max([self.vp.get(x, 0) for x in rd + wr] + [0])
        if ds and opc.startswith("ds_read"): lt = max([self.lp.get(x, 0) for x in rd] + [0])
        self.wait(lds=lt or None, vm=vt or None, hoist=mfma)
        need = 0
        def req(p, n):
            nonlocal need
            need = max(need, n - (self.pos - p - 1))
        if mfma:
            for x in rd:
                if x in self.vw: req(self.vw[x], 2)
            for x in ab:
                if x in self.mw: req(self.mw[x][0], 8)
            for x in c:
                if x in self.mw:
                    p, o, d = self.mw[x]
                    if not (o == opc and d == tuple(c)): req(p, 6)
            for x in wr:
                if x in self.mw and x not in c: req(self.mw[x][0], 6)
            if "exec" in self.sw: req(self.sw["exec"], 4)
        if valu or ds or vm:
            for x in rd + wr:
                if x in self.mw: req(self.mw[x][0], 8)
        if valu:
            for x in wr:
                if x in self.mc: req(self.mc[x], 3)
                if x in self.sd: req(self.sd[x], 2)
            if "permlane" in opc or "dpp" in opc:
                for x in (rd if "permlane" in opc else R[1]):
                    if x in self.vw: req(self.vw[x], 2)
            if "readfirstlane" in opc or "readlane" in opc:
                for x in rd:
                    if x in self.vw: req(self.vw[x], 1)
            if opc.replace("_e32", "").replace("_e64", "") not in TRANS:
                for x in rd:
                    if x in self.tw: req(self.tw[x], 1)
            for x in rd:
                if x in self.sw: req(self.sw[x], 4 if "lane" in opc and "perm" not in opc else 2)
        if ds or vm:
            for x in wr:
                if x in self.sd: req(self.sd[x], 1)
            for x in rd:
                if x in self.tw: req(self.tw[x], 1)
        if vm:
            for x in rd:
                if x in self.sw: req(self.sw[x], 5)
            if islds: req(self.m0, 1)
        if need > 0:
            self.nops += need
            if self.warm is not None and need >= 2:
                for _ in range(need): self._raw("v_mov_b32 v%d, v%d" % (self.warm, self.warm))
            else: self.nop(need)
            self.lastm = False
        cost = 4
        if opc.startswith("v_smfmac"): cost = 12
        elif mfma: cost = 8
        elif opc in TRANS or "permlane" in opc: cost = 8
        if mfma and self.lastm: self.pos += self.mst - 1
        self.lastm = mfma
        p = self.pos
        if opc == "s_nop":
            self.A(t); k = int(rest) + 1; self.pos += k; self.cyc += 4 * k; self.tailv = 0; return None
        self._raw(t, cost)
        tok = None
        if mfma:
            for x in wr: self.mw[x] = (p, opc, tuple(wr)); self.vw.pop(x, None); self.tw.pop(x, None)
            for x in c: self.mc[x] = p
        elif valu:
            for x in wr:
                if x[0] in "va" and x != "vcc":
                    self.vw[x] = p; self.mw.pop(x, None)
                    if opc in TRANS: self.tw[x] = p
                    else: self.tw.pop(x, None)
                else: self.sw[x] = p
        elif ds:
            self.nl += 1; tok = self.nl
            for x in wr: self.lp[x] = tok; self.vw.pop(x, None); self.mw.pop(x, None)
        elif vm:
            self.nv += 1; tok = self.nv
            for x in wr: self.vp[x] = tok; self.vw.pop(x, None); self.mw.pop(x, None)
            if "store" in opc and ("x4" in opc or "x3" in opc):
                for x in R[0]: self.sd[x] = p
        else:
            if opc == "s_waitcnt":
                m = re.search(r'vmcnt\((\d+)\)', t)
                if m: self.dv = max(self.dv, self.nv - int(m.group(1)))
                m = re.search(r'lgkmcnt\((\d+)\)', t)
                if m: self.dl = max(self.dl, self.nl - int(m.group(1)))
            for x in wr:
                if x == "m0": self.m0 = p
                self.sw.pop(x, None)
            assert not opc.startswith(("s_load", "s_memtime", "s_memrealtime", "s_buffer")) or True
        return tok


def r4(r): return "v[%d:%d]" % (r, r + 3)
def r2(r): return "v[%d:%d]" % (r, r + 1)


def estimate(lines, show=False):
    t = -4; vf = 0; mf = 0; lf = 0; lb = 0; last = None
    for ln in lines:
        ln = ln.strip()
        if not ln or ln.endswith(":") or ln.startswith(";"): continue
        opc = ln.split()[0]
        t += 4
        if opc.startswith(("v_mfma", "v_smfmac")):
            t = max(t, vf, mf + (4 if last and last != opc else 0)); mf = t + 16; vf = t + (12 if opc.startswith("v_smf") else 8); lf = t + 8; last = opc
        elif opc.startswith("v_"):
            t = max(t, vf)
            if opc.startswith("v_pk"): t = max(t, mf)
            vf = t + (8 if (opc in TRANS or "permlane" in opc) else 4)
        elif opc.startswith("ds_"):
            occ = {"ds_read_b128": 16, "ds_write_b32": 16, "ds_write_b64": 24, "ds_write_b128": 52, "ds_write2_b64": 62}.get(opc, 8)
            t = max(t, lf, lb - 32); lb = max(lb, t) + occ
        elif opc.startswith("buffer_"): t = max(t, mf) + 12
        elif opc.startswith("s_cbranch"): t += 2
        elif opc == "s_nop": t += 4 * int(ln.split()[1])
        if show: print(t, ln)
    return t + 4
```

```python
import struct, copy
from asmlib import *
from layout import *
from seq import *


def f2u(x):
    return struct.unpack('<I', struct.pack('<f', x))[0]


C1 = (128 ** -0.5) * 1.4426950408889634
SPIN_MAX = 60000
OOB = 0x10000000

L_K = 0
L_MR = 8192
L_EV = L_MR
L_ML = L_MR + 5120
L_EQ = L_ML + 5120
L_EK = L_EQ + 2304
L_EO = L_ML
L_JUNK = L_EK + 2304
L_FL = L_JUNK + 256
L_W = 24576
NLW = 17
LW_WAVE = NLW * 2048
assert L_FL + 64 <= L_W and L_W + 4 * LW_WAVE <= 163840

L16, IDX, EW, ER, OWA, VW, MRA, PSB, RL, PA8, T0, T1 = range(12)
KRA = L16
AV, AQ, AK = 12, 20, 28
M = [36 + 4 * t for t in range(5)]
LB = [56, 64]
X0, X1 = 72, 76
VT = [80, 84]
WR0 = 88

MATS = {'q': 0, 'k': 1, 'v': 2}
ACC = {'q': AQ, 'k': AK, 'v': AV}
import sys
NV = ([int(a_[3:]) for a_ in sys.argv if a_.startswith("NV=")] + [2])[0]
VL = ([int(a_[3:]) for a_ in sys.argv if a_.startswith("VL=")] + [0])[0]
VT_ = list(range(5 - NV, 5)) if (VL and NV >= 2) else list(range(NV))
SEQ = [(m, tl, 0, t) for t in range(5) for m in ('qkv' if t in VT_ else 'qk') for tl in range(2)] + [(m, tl, 1, t) for m in 'qkv' for t in range(5) for tl in range(2)] + \
      [('v', tl, 0, t) for t in range(5) if t not in VT_ for tl in range(2)]
NLOC = 20 + 2 * NV
SC2 = ([int(a_[4:]) for a_ in sys.argv if a_.startswith("SC2=")] + [1])[0] and NV == 2
LDSI = [0, 1] + ([i for i in range(5, 41) if i % 5 in (0, 2)] if SC2 else [i for i in range(60) if i % 3 == 2 and 5 <= i <= 47])
assert len(LDSI) == NLW
_regs = [WR0 + 8 * i for i in range(21)] + [256 + 8 * i for i in range(32)]
WREG = {}
for i in range(60):
    if i not in LDSI: WREG[i] = _regs.pop()
WO = {(T, tp): _regs.pop() for T in range(5) for tp in range(2)}
assert not _regs

FL_ = {0: [], 1: [], 2: [0, 1, 2], 3: [3, 4]}
FR_ = {0: [0, 1], 1: [2], 2: [3], 3: [4]}


def chain_load(A):
    A("s_mul_i32 s29, s22, %d" % WQKP_H); A("s_mul_i32 s28, s21, %d" % WQKP_W); A("s_add_u32 s29, s29, s28")
    A("s_mul_i32 s28, s20, 10240"); A("s_add_u32 s30, s29, s28"); A("s_sub_u32 s31, s29, s28"); A("s_add_u32 s31, s31, 10240")
    A("s_mul_i32 s26, s21, %d" % LW_WAVE); A("s_add_u32 s26, s26, %d" % L_W)
    for i, (m, tl, rem, t) in enumerate(SEQ):
        off = WS_WQKP + MATS[m] * 40960 + tl * 20480 + t * 2048
        A("s_add_u32 s27, s%d, %d" % (31 if rem else 30, off))
        if i in LDSI:
            A("s_add_u32 m0, s26, %d" % (LDSI.index(i) * 2048)); A("s_nop 0")
            for hf in range(2): A("buffer_load_dwordx4 v%d, s[8:11], s27 offen offset:%d lds" % (L16, hf * 1024))
        else:
            for hf in range(2): A("buffer_load_dwordx4 %s, v%d, s[8:11], s27 offen offset:%d" % (ureg(WREG[i] + 4 * hf, 4), L16, hf * 1024))
    A("s_lshl_b32 s28, s20, 2"); A("s_add_u32 s28, s28, s21"); A("s_mul_i32 s28, s28, 20480"); A("s_mul_i32 s29, s22, 163840"); A("s_add_u32 s29, s29, s28")
    for T in range(5):
        A("s_add_u32 s27, s29, %d" % (WS_WOC + T * 4096))
        for u in range(4): A("buffer_load_dwordx4 %s, v%d, s[8:11], s27 offen offset:%d" % (ureg(WO[T, u // 2] + 4 * (u % 2), 4), L16, u * 1024))


def chain_body(A, P, L, ht):
    g, r, i_, p, a, b = range(36, 42)
    A("v_lshrrev_b32 v%d, 8, v0" % g); A("v_bfe_u32 v%d, v0, 4, 4" % r); A("v_bfe_u32 v%d, v0, 4, 3" % i_); A("v_bfe_u32 v%d, v0, 7, 1" % p)
    A("s_mov_b32 s36, 0x00ff00ff"); A("s_mov_b32 s37, 0x00ff00ff"); A("s_not_b64 s[18:19], s[36:37]")
    A("v_mov_b32 v%d, 0x4444" % IDX); A("v_mov_b32 v%d, 0xeeee" % a); A("v_cndmask_b32_e64 v%d, v%d, v%d, s[18:19]" % (IDX, IDX, a))
    A("v_and_b32 v%d, 1, v%d" % (a, g)); A("v_lshlrev_b32 v%d, 2, v%d" % (a, a)); A("v_lshrrev_b32 v%d, 1, v%d" % (b, g)); A("v_add_u32 v%d, v%d, v%d" % (a, a, b))
    A("v_mul_u32_u24 v%d, 288, v%d" % (a, a)); A("v_lshl_add_u32 v%d, v%d, 2, v%d" % (a, r, a)); A("s_lshl_b32 s27, s21, 6"); A("v_add_u32 v%d, s27, v%d" % (EW, a))
    A("v_mul_u32_u24 v%d, 288, v%d" % (a, i_)); A("v_lshl_add_u32 v%d, v%d, 4, v%d" % (ER, g, a))
    A("s_lshr_b32 s27, s21, 1"); A("s_lshl_b32 s27, s27, 10"); A("s_and_b32 s28, s21, 1"); A("s_lshl_b32 s28, s28, 3"); A("s_add_u32 s27, s27, s28"); A("s_add_u32 s27, s27, %d" % L_EO)
    A("v_and_b32 v%d, 0x37f, v0" % a); A("v_add_u32 v%d, s27, v%d" % (OWA, a))
    A("s_mul_i32 s27, s21, %d" % LW_WAVE); A("s_add_u32 s27, s27, %d" % L_W); A("v_add_u32 v%d, s27, v0" % VW)
    A("v_and_b32 v%d, 0x200, v0" % MRA)
    for src, dst in ((6, 8), (4, 7), (5, 6), (8, 5), (7, 4)):
        A("v_bfe_u32 v%d, v0, %d, 1" % (a, src)); A("v_lshl_or_b32 v%d, v%d, %d, v%d" % (MRA, a, dst, MRA))
    A("s_lshl_b32 s27, s21, 13"); A("s_lshl_b32 s28, s22, 5"); A("s_add_u32 s27, s27, s28"); A("s_add_u32 s27, s27, %d" % PART_T4)
    A("v_lshrrev_b32 v%d, 7, v0" % a); A("v_lshlrev_b32 v%d, 10, v%d" % (a, a)); A("v_lshl_add_u32 v%d, v%d, 2, v%d" % (a, i_, a)); A("v_add_u32 v%d, s27, v%d" % (PSB, a))
    A("v_lshrrev_b32 v%d, 7, v0" % a); A("v_mul_u32_u24 v%d, %d, v%d" % (a, PART_H, a)); A("v_lshl_add_u32 v%d, v%d, 4, v%d" % (RL, i_, a))
    A("v_lshlrev_b32 v%d, 3, v0" % PA8)
    A("s_mul_i32 s34, s20, %d" % PART_X); A("s_add_u32 s34, s34, %d" % WS_PART)
    A("s_lshl_b32 s35, s21, 10"); A("s_mul_i32 s27, s22, %d" % PART_H); A("s_add_u32 s35, s35, s27")
    A("s_and_b32 s27, s22, 1"); A("s_bfe_u32 s28, s22, 0x10001"); A("s_bfe_u32 s29, s22, 0x10002")
    A("s_lshl_b32 s30, s27, 2"); A("s_lshl_b32 s31, s28, 1"); A("s_or_b32 s30, s30, s31"); A("s_or_b32 s30, s30, s29"); A("s_and_b32 s31, s22, 0x18"); A("s_or_b32 s30, s30, s31")
    A("s_lshl_b32 s33, s30, 7"); A("s_lshl_b32 s32, s22, 7")
    if P.get("RS", 0): A("s_mov_b32 s2, s32"); A("s_mov_b32 s42, s33")
    else: A("s_cmp_eq_u32 s21, 0"); A("s_cbranch_scc1 %s" % L("c_r0"))
    A("s_lshl_b32 s32, s22, 10"); A("s_add_u32 s32, s32, %d" % PART_T4)
    A("s_lshl_b32 s33, s27, 4"); A("s_lshl_b32 s28, s28, 8"); A("s_or_b32 s33, s33, s28"); A("s_lshl_b32 s29, s29, 7"); A("s_or_b32 s33, s33, s29")
    A("s_bfe_u32 s28, s22, 0x10003"); A("s_lshl_b32 s28, s28, 5"); A("s_or_b32 s33, s33, s28"); A("s_bfe_u32 s28, s22, 0x10004"); A("s_lshl_b32 s28, s28, 9"); A("s_or_b32 s33, s33, s28")
    A("s_add_u32 s33, s33, 4096")
    A.label(L("c_r0"))
    A("s_mul_i32 s41, s20, %d" % (4 * ML_S)); A("s_add_u32 s41, s41, %d" % (WS_ML + ML_O))
    A("s_lshl_b32 s46, s20, 17"); A("s_add_u32 s46, s46, %d" % WS_MR); A("s_add_u32 s46, s46, s25"); A("s_xor_b32 s47, s46, 0x20000")
    A("s_mov_b32 s38, 0x00ff00ff"); A("s_mov_b32 s39, 0"); A("s_mov_b32 s62, 0x%08x" % (0x00ff00ff if P.get("RS", 0) else 0x00030003)); A("s_mov_b32 s63, 0x00030003")
    A("s_mov_b32 s40, 0x%08x" % f2u(C1)); A("s_movk_i32 s45, 0x3f80")
    A("s_mov_b32 s68, 0x%08x" % f2u(2.0 ** -24)); A("s_mov_b32 s69, 0x%08x" % (f2u(2.0 ** 24) - f2u(2.0 ** -24)))
    A("s_lshl_b32 s51, s22, 7"); A("s_add_u32 s52, s51, %d" % WS_CHFL); A("s_lshl_b32 s51, s22, 8"); A("s_add_u32 s51, s51, %d" % WS_KVFL)
    A("s_mov_b32 s24, 0x3f803f80"); A("s_mov_b32 s25, 0x3f803f80"); A("s_mov_b32 s16, 0x3f003f00"); A("s_mov_b32 s17, 0x3f003f00")
    A("s_lshl_b32 s53, s22, 13"); A("s_add_u32 s53, s53, %d" % WS_KM)
    A("s_lshl_b32 s27, s20, 12"); A("s_add_u32 s53, s53, s27"); A("s_lshl_b32 s27, s20, 2"); A("s_add_u32 s52, s52, s27")
    A("s_cmp_eq_u32 s20, 0"); A("s_cselect_b64 s[66:67], -1, 0")
    A("s_mov_b32 s44, 0"); A("s_mov_b32 s54, 0"); A("s_mov_b32 s71, 0"); A("s_mov_b32 s4, 0x%x" % OOB); A("s_mov_b32 s60, 0x%x" % OOB); A("s_mov_b32 s64, 0x%x" % OOB); A("s_mov_b32 s65, 0x%x" % OOB)
    A("v_mov_b32 v%d, %d" % (a, L_FL)); A("v_mov_b64 v[%d:%d], 0" % (T0, T1)); A("ds_write_b64 v%d, v[%d:%d]" % (a, T0, T1))
    A("s_waitcnt vmcnt(0) lgkmcnt(0)"); A("s_barrier")
    ht(1)
    A.label(L("c_disp"))
    A("s_cmp_lg_u32 s23, 0"); A("s_cbranch_scc1 %s" % L("c_slow"))
    for md in (0, 1):
        if md: A.label(L("c_slow"))
        for w in range(1, 4):
            A("s_cmp_eq_u32 s21, %d" % w); A("s_cbranch_scc1 %s" % L("c%d_%d_layer" % (md, w)))
        for w in range(4): chain_wave(A, P, L, ht, w, md)


def chain_wave(A, P, L0, ht, w, md):
    L = lambda x: L0("c%d_%d_%s" % (md, w, x))
    sc = " sc1" if md else ""
    ool = []
    ST = P.get("STAMP") and not md
    TR = ST and "TS" in P
    SOLO = P.get("SOLO")

    def stamp(S, i):
        if ST and not TR: S("%s s[%d:%d]" % ("s_memrealtime" if P.get("RAW") else "s_memtime", 72 + 2 * i, 73 + 2 * i))
    def hook(n, t):
        k_, r_ = divmod(n - P["TS"], P.get("TD", 16))
        if r_ == 0 and 0 <= k_ <= 8: A("s_memtime s[%d:%d]" % (72 + 2 * k_, 73 + 2 * k_)); S.tailv = 0
        if P.get("LIST") == w + 1: print(n, estimate(A.lines[top0:]), t)
    def br(t): return "s_nop 0" if SOLO else t

    def smf(S, acc, a_, b_): S("v_smfmac_f32_16x16x64_bf16 %s, %s, %s, v%d" % (r4(acc), r4(a_), ureg(b_, 8), IDX))
    def mf32(S, acc, a_, b_, c): S("v_mfma_f32_16x16x32_bf16 %s, %s, %s, %s" % (r4(acc), ureg(a_, 4), ureg(b_, 4), c if isinstance(c, str) else r4(c)))
    def mf16(S, acc, a_, b_, c): S("v_mfma_f32_16x16x16_bf16 %s, %s, %s, %s" % (r4(acc), r2(a_), r2(b_), c if isinstance(c, str) else r4(c)))
    holds = {}
    def rd(S, dst, areg, off):
        holds[dst] = (areg, off)
        return S("ds_read_b128 %s, v%d offset:%d" % (r4(dst), areg, off))
    def zero(S, q): S("v_mov_b64 %s, 0" % r2(q)); S("v_mov_b64 %s, 0" % r2(q + 2))
    def zitems(S, q): return [lambda r=r: S("v_mov_b64 %s, 0" % r2(r)) for r in (q, q + 2)]
    def cvt(d, a_, b_): return "v_cvt_pk_bf16_f32 v%d, v%d, v%d" % (d, a_, b_)
    def ror(d, s_): return "v_mov_b32_dpp v%d, v%d row_ror:8 row_mask:0xf bank_mask:0xf" % (d, s_)
    def newseq():
        S = Seq(A); S.warm = VW; S.mst = P.get("MST", 3); S.hoist = True; return S
    def idle(S, n):
        if P.get("IDN", 1): S.nop(n); return
        while n > 0:
            S("v_mov_b32 v%d, v%d" % (VW, VW)); n -= 1
            if n >= 2: S("s_nop 1"); n -= 2

    def pub_st(E):
        E("buffer_store_dwordx4 %s, v%d, s[8:11], s4 offen offset:%d sc1" % (r4(X1), L16, 1024 * w)); E("s_mov_b32 s4, 0x%x" % OOB)
    def pub_addr(E): E("s_lshl_b32 s4, s44, 18"); E("s_add_u32 s4, s4, s53")

    def dma(S, fr, sa, lds, fl=" sc1"):
        tok = None
        for i, f in enumerate(fr):
            blk = f // 4
            if i == 0 or f % 4 == 0:
                S("s_mov_b32 m0, %d" % (lds + blk * 4096))
                if blk: S("s_add_u32 s59, %s, %d" % (sa, blk * 4096))
            tok = S("buffer_load_dwordx4 v%d, s[8:11], %s offen offset:%d%s lds" % (L16, "s59" if blk else sa, 1024 * (f % 4), fl))
        return tok

    def lw_read(S, n):
        b = LB[n % 2]
        return [lambda: rd(S, b, VW, n * 2048), lambda: rd(S, b + 4, VW, n * 2048 + 1024)]

    def drain(fl):
        while fl: fl.pop(0)()

    def kv_addr(S, dst, ds, extra=0):
        S("s_and_b32 %s, s44, 63" % dst)
        if ds: S("s_add_u32 %s, %s, %d" % (dst, dst, ds)); S("s_min_u32 %s, %s, 63" % (dst, dst))
        S("s_lshl_b32 %s, %s, 18" % (dst, dst)); S("s_add_u32 %s, %s, s50" % (dst, dst))
        if extra: S("s_add_u32 %s, %s, %d" % (dst, dst, extra))

    def kv_prep(S, d):
        kv_addr(S, "s26", d, 2048 * w)
        if P.get("KV0"): S("s_add_u32 s26, s50, %d" % (2048 * w))
        S("s_add_u32 s3, s26, %d" % KV_MAT)
    def k_fetch(S):
        S("s_mov_b32 m0, %d" % (L_K + 2048 * w))
        for j in range(2): S("buffer_load_dwordx4 v%d, s[8:11], s26 offen offset:%d sc1 lds" % (L16, 1024 * j))
    def vt_fetch(S):
        for j in range(2): S("buffer_load_dwordx4 %s, v%d, s[8:11], s3 offen offset:%d sc1" % (r4(VT[j]), L16, 1024 * j))

    def post(S, acc, off, scale=False):
        it = []
        for tl in range(2):
            b = acc + 4 * tl
            it += ["v_permlane32_swap_b32 v%d, v%d" % (b, b + 1), "v_permlane32_swap_b32 v%d, v%d" % (b + 2, b + 3)]
        for tl in range(2):
            b = acc + 4 * tl
            it += ["v_add_f32 v%d, v%d, v%d" % (b, b, b + 1), "v_add_f32 v%d, v%d, v%d" % (b + 2, b + 2, b + 3)]
        if scale: it += ["v_mul_f32 v%d, s40, v%d" % (r, r) for r in (acc, acc + 4, acc + 2, acc + 6)]
        it += [cvt(acc, acc, acc + 4), cvt(acc + 1, acc + 2, acc + 6)]
        wr = ["ds_write_b32 v%d, v%d offset:%d" % (EW, acc, off), "ds_write_b32 v%d, v%d offset:%d" % (EW, acc + 1, off + 576)]
        return [lambda t=t: S(t) for t in it], [lambda t=t: S(t) for t in wr]

    def spin_count(S_, lim=SPIN_MAX):
        S_("s_add_u32 s30, s30, 1"); S_("s_cmp_ge_u32 s30, %d" % lim); S_("s_cbranch_scc1 %s" % L0("fail"))

    def kv_wait(S, lab, need):
        S("s_add_u32 s27, s44, %d" % need); S("s_or_b32 s28, s44, 63"); S("s_add_u32 s28, s28, 1"); S("s_min_u32 s27, s27, s28")
        S("s_cmp_lt_u32 s54, s27"); S("s_cbranch_scc1 %s" % L(lab))
        S.label(L(lab + "_r"))
        def blk():
            A.label(L(lab))
            A("s_mov_b32 s30, 0")
            A.label(L(lab + "_l"))
            A("s_waitcnt lgkmcnt(0)"); A("s_mov_b64 exec, 3")
            A("buffer_load_dword v%d, v%d, s[8:11], s51 offen sc1" % (T0, PA8)); A("s_waitcnt vmcnt(0)"); A("s_mov_b64 exec, -1")
            A("v_readlane_b32 s54, v%d, 0" % T0); A("v_readlane_b32 s28, v%d, 1" % T0); A("s_nop 3"); A("s_min_u32 s54, s54, s28")
            A("s_cmp_ge_u32 s54, s27"); A("s_cbranch_scc1 %s" % L(lab + "_r"))
            A("s_sleep %d" % P.get("CS", 2)); spin_count(A, 4 * SPIN_MAX); A("s_branch %s" % L(lab + "_l"))
        ool.append(blk)

    def known(S, t):
        S("ds_read_b64 %s, v%d offset:%d" % (r2(t), L16, L_FL))
        S("v_min_u32 v%d, v%d, v%d" % (t, t, t + 1)); S("v_readfirstlane_b32 s28, v%d" % t); S("s_nop 0"); S("s_max_u32 s54, s54, s28")

    def step_addr(S):
        S("s_and_b32 s55, s44, 3"); S("s_mul_i32 s55, s55, %d" % PART_SLOT); S("s_add_u32 s55, s55, s34"); S("s_add_u32 s58, s55, s35"); S("s_and_b32 s57, s44, 63")
        if RS and w == 0: S("s_add_u32 s59, s55, s32") if False else None
        if RS and w == 0: S("s_add_u32 s43, s55, s2"); S("s_add_u32 s15x, s55, s32".replace("s15x", "s31"))
        elif w < 2: S("s_add_u32 s43, s55, s32")
        if w == 0: S("s_add_u32 s61, s43, %d" % (8 * PART_H)); S("s_add_u32 s100, s43, %d" % (16 * PART_H)); S("s_add_u32 s101, s43, %d" % (24 * PART_H))
        if w == 1: S("s_sub_u32 s27, s57, 1"); S("s_max_i32 s27, s27, 0"); S("s_lshl_b64 s[100:101], 1, s27"); S("s_lshl_b32 s27, s27, 7"); S("s_sub_u32 s61, s52, s27")
        S("s_add_u32 s42, s44, 2"); S("s_or_b32 s28, s44, 63"); S("s_add_u32 s28, s28, 1"); S("s_min_u32 s42, s42, s28")
        if w >= 2: S("s_sub_u32 s61, %s, %d" % ("s3" if w == 2 else "s26", 2048 * w))
        if w >= 2 and P.get("TC", 1): S("s_cmp_ge_u32 s54, s42"); S("s_cselect_b32 s61, s61, 0x%x" % OOB)

    def ready(S):
        for n in range(2): drain(lw_read(S, n))
        for q in (AV, AV + 4, AQ, AQ + 4, AK, AK + 4): zero(S, q)

    MCW = P.get("MCW", 0)
    RS = P.get("RS", 0)
    CL3 = P.get("CLP", 3) == 3
    CLP = 0 if CL3 else P.get("CLP", 3)
    cw = w - 2 if CLP else w
    Q = M[4] if (CLP and w >= 2) else X0
    def clear_prep(S):
        S("v_mov_b64 %s, -1" % r2(Q)); S("v_mov_b64 %s, -1" % r2(Q + 2))
        S("s_add_u32 s28, s44, 3"); S("s_and_b32 s29, s28, 3"); S("s_mul_i32 s31, s22, 160")
        if cw in (0, 1):
            S("s_mul_i32 s28, s29, %d" % PART_SLOT); S("s_add_u32 s28, s28, s34"); S("s_add_u32 s64, s28, s35")
            if CLP: S("s_sub_u32 s64, s64, 2048")
        if cw == 0: S("s_mul_i32 s65, s29, %d" % ML_S); S("s_add_u32 s65, s65, s41"); S("s_add_u32 s65, s65, s31")
        if cw == 1: S("s_lshl_b32 s65, s22, 10"); S("s_add_u32 s65, s65, s28"); S("s_add_u32 s65, s65, %d" % PART_T4)
        if w == 0: S("s_lshl_b32 s60, s29, 15"); S("s_add_u32 s60, s60, s47"); S("s_add_u32 s60, s60, s31")
    def clears(S):
        for j in range(cw, cw + 2): S("buffer_store_dwordx4 %s, v%d, s[8:11], s64 offen offset:%d%s" % (r4(Q), L16, j * 1024, sc))
        if cw == 0: S("s_mov_b64 exec, 0x3ff")
        S("buffer_store_dwordx4 %s, v%d, s[8:11], s65 offen%s" % (r4(Q), L16, sc))
        if cw == 0: S("s_mov_b64 exec, -1")
        S("s_mov_b32 s65, 0x%x" % OOB); S("s_mov_b32 s64, 0x%x" % OOB)
    def m_clear(S):
        S("s_mov_b64 exec, 0x3ff")
        S("buffer_store_dwordx4 %s, v%d, s[8:11], s60 offen sc1" % (r4(Q), L16))
        S("s_mov_b64 exec, -1"); S("s_mov_b32 s60, 0x%x" % OOB)

    def window(S):
        p0 = pw0; red = w < (1 if RS else 2); tag = "w"
        FLn, RG, U1, LD, PG, KD, CD = P.get("FL", 56), P.get("RG", 28), P.get("U1", 8), P.get("LD", 60), P.get("PG2", 14), P.get("KD", 84), P.get("CD", 0)
        NS, NA, CP = P.get("NS", 2), P.get("NA", 3), P.get("CP", 0)
        nxt = ["s_add_u32 s27, s44, 1", "s_and_b32 s27, s27, 3", "s_mul_i32 s48, s27, %d" % ML_S, "s_add_u32 s48, s48, s41", "s_lshl_b32 s27, s27, 15", "s_add_u32 s49, s27, s47"]
        if not red:
            for t_ in nxt: S(t_)
        if red:
            if RS:
                NL = 5
                assert NS <= 2
                SETS = [[LB[0], AV, AV + 4, AQ, AQ + 4], [LB[0] + 4, M[1], M[2], M[3], M[4]]][:NS]
                SEL, SELQ, D, X = X0, LB[1], AK, AK + 4
                MK = ("s[64:65]", "vcc")
                su = ["v_bfe_u32 v%d, v%d, 6, 1" % (X, L16), "v_lshlrev_b32 v%d, 4, v%d" % (X, X), "v_lshlrev_b32_e64 v%d, v%d, s45" % (X, X), "v_and_b32 v%d, 0xb0, v%d" % (X + 1, L16)]
                for q0 in (0, 2):
                    su += ["v_cmp_eq_u32 vcc, 0x%x, v%d" % (0x80 + 16 * q0, X + 1), "s_mov_b64 s[64:65], vcc", "v_cmp_eq_u32 vcc, 0x%x, v%d" % (0x90 + 16 * q0, X + 1)] + nxt[q0:q0 + 2]
                    su += ["v_cndmask_b32_e64 v%d, 0, v%d, %s" % (SELQ + q0 + q, X, MK[q]) for q in range(2)]
                su += ["v_and_b32 v%d, 16, v%d" % (X, L16), "v_bfe_u32 v%d, v%d, 5, 3" % (X + 1, L16), "v_lshlrev_b32_e64 v%d, v%d, s45" % (X, X)]
                for q0 in (0, 2):
                    su += ["v_cmp_eq_u32_e64 %s, %d, v%d" % (MK[q & 1], q, X + 1) for q in (q0, q0 + 1)] + [nxt[4 + q0 // 2], "s_nop 0"]
                    su += ["v_cndmask_b32_e64 v%d, 0, v%d, %s" % (SEL + q, X, MK[q & 1]) for q in (q0, q0 + 1)]
                su += ["v_mov_b32 v%d, s42" % X, "v_mov_b32 v%d, s33" % (X + 1), "v_cmp_lt_u32 vcc, 0x1ff, v%d" % L16, "v_bfe_u32 v%d, v%d, 4, 3" % (T1, L16), "v_bfe_u32 v%d, v%d, 8, 1" % (X + 2, L16),
                       "v_cndmask_b32 v%d, v%d, v%d, vcc" % (X, X, X + 1), "v_lshl_add_u32 v%d, v%d, 3, v%d" % (T1, T1, X), "v_lshl_add_u32 v%d, v%d, 6, v%d" % (T1, X + 2, T1)]
                su += ["s_add_u32 s56, s27, s46", "s_mov_b32 s58, s48"]
            else:
                NL = 4 if w == 0 else 1
                SETS = [[AV, AV + 4, AQ, AQ + 4], [M[1], M[2], M[3], M[4]], [LB[0], LB[0] + 4, LB[1], LB[1] + 4]][:NS] if w == 0 else [[AV + 4 * i] for i in range(NS)]
                SEL, D, X = X0, AK, AK + 4
                su = []
                if w == 0:
                    su += ["v_and_b32 v%d, 16, v%d" % (X, L16), "v_bfe_u32 v%d, v%d, 5, 2" % (X + 1, L16)]
                else:
                    su += ["v_bfe_u32 v%d, v%d, 4, 1" % (X + 2, L16), "v_bfe_u32 v%d, v%d, 7, 1" % (X + 1, L16), "v_lshl_add_u32 v%d, v%d, 1, v%d" % (X + 1, X + 1, X + 2),
                           "v_bfe_u32 v%d, v%d, 6, 1" % (X, L16), "v_lshlrev_b32 v%d, 4, v%d" % (X, X)]
                su += ["v_lshlrev_b32_e64 v%d, v%d, s45" % (X, X)]
                MK = ("s[64:65]", "vcc")
                su += ["v_cmp_eq_u32_e64 %s, %d, v%d" % (MK[q & 1], q, X + 1) for q in range(2)] + nxt[:2]
                su += ["v_cndmask_b32_e64 v%d, 0, v%d, %s" % (SEL + q, X, MK[q & 1]) for q in range(2)]
                su += ["v_cmp_eq_u32_e64 %s, %d, v%d" % (MK[q & 1], q, X + 1) for q in range(2, 4)] + nxt[2:4]
                su += ["v_cndmask_b32_e64 v%d, 0, v%d, %s" % (SEL + q, X, MK[q & 1]) for q in range(2, 4)] + nxt[4:]
                if w == 0:
                    su += ["v_bfe_u32 v%d, v%d, 4, 3" % (T1, L16), "v_lshlrev_b32 v%d, 3, v%d" % (T1, T1), "v_lshrrev_b32 v%d, 8, v%d" % (X, L16), "v_lshl_add_u32 v%d, v%d, 6, v%d" % (T1, X, T1)]
                else:
                    su += ["v_bfe_u32 v%d, v%d, 8, 1" % (X, L16), "v_lshlrev_b32 v%d, 6, v%d" % (T1, X), "v_lshl_add_u32 v%d, v%d, 3, v%d" % (T1, X + 2, T1),
                           "v_lshrrev_b32 v%d, 9, v%d" % (X + 1, L16), "v_lshl_add_u32 v%d, v%d, 2, v%d" % (T1, X + 1, T1)]
                su += ["s_add_u32 s56, s27, s46", "s_add_u32 s56, s56, s33", "s_add_u32 s58, s48, s33"]
            def gap(n):
                while n > 0 and su: S(su.pop(0)); n -= 1
                idle(S, n)
            def issue(E, B):
                if RS:
                    for j in range(5): E("buffer_load_dwordx4 %s, v%d, s[8:11], %s offen sc1" % (r4(B[j]), RL if j else L16, ("s31", "s43", "s61", "s100", "s101")[j]))
                    return
                for j in range(NL): E("buffer_load_dwordx4 %s, v%d, s[8:11], %s offen sc1" % (r4(B[j]), RL if w == 0 else L16, ("s43", "s61", "s100", "s101")[j]))
            def acc(E, B, j):
                if not RS: return mf32(E, D, SEL, B[j], "0" if j == 0 else D)
                mf32(E, D, SEL if j else SELQ, B[j], D if j else "0")
                if j == 0:
                    for sh in (4, 2):
                        for q in range(4): E("v_add_f32_dpp v%d, v%d, v%d row_ror:%d row_mask:0xc bank_mask:0xf" % (D + q, D + q, D + q, sh))
            gap(FLn + (P.get("F1", 4) if w else 0) - (S.pos - p0))
            for k_, B in enumerate(SETS):
                if k_: gap(RG + (P.get("R1", 14) if w else 0))
                issue(S, B)
            gap(max(U1, len(su)))
            def hint(E, B):
                if RS: E("v_max3_u32 v%d, v%d, v%d, v%d" % (X, B[0], B[1], B[2])); E("v_max3_u32 v%d, v%d, v%d, v%d" % (X, X, B[3], B[4])); E("v_cmp_eq_u32 vcc, -1, v%d" % X)
                elif w == 0: E("v_max3_u32 v%d, v%d, v%d, v%d" % (X, B[0], B[1], B[2])); E("v_max_u32 v%d, v%d, v%d" % (X, X, B[3])); E("v_cmp_eq_u32 vcc, -1, v%d" % X)
                else: E("v_cmp_eq_u32 vcc, -1, v%d" % B[0])
            def fold(E):
                if w == 0:
                    for q in range(4): E("v_add_f32_dpp v%d, v%d, v%d row_ror:8 row_mask:0xf bank_mask:0xf" % (D + q, D + q, D + q))
                    E("v_cmp_u_f32 vcc, v%d, v%d" % (D, D))
                    E(cvt(D, D, D + 1)); E(cvt(D + 1, D + 2, D + 3))
                else:
                    for sh in (8, 4, 2):
                        for q in range(2): E("v_add_f32_dpp v%d, v%d, v%d row_ror:%d row_mask:0xf bank_mask:0xf" % (D + q, D + q, D + q, sh))
                    E("v_cmp_u_f32 vcc, v%d, v%d" % (D, D))
                    E(cvt(D, D, D + 1))
            op = "buffer_store_dwordx2 %s" % r2(D) if w == 0 else "buffer_store_dword v%d" % D
            SI = P.get("SI", 1 if RS else 0)
            def publish(E):
                E("s_mov_b64 exec, %s" % ("s[38:39]" if (w == 0 and not RS) else "s[62:63]"))
                if SI == 2: E("%s, v%d, s[8:11], s56 offen sc1" % (op, T1))
                E("%s, v%d, s[8:11], s58 offen%s" % (op, T1, sc))
                if SI == 1: E("%s, v%d, s[8:11], s56 offen sc1" % (op, T1))
            if not P.get("WP", 1): S.warm = None
            for j in range(NL): acc(S, SETS[0], j)
            if P.get("HN", 1):
                hint(S, SETS[0]); S(br("s_cbranch_vccnz %s" % L(tag + ("q1" if NS > 1 else "rb_i0"))))
                fold(S); S(br("s_cbranch_vccnz %s" % L(tag + "rb_e0")))
            else:
                fold(S); S(br("s_cbranch_vccnz %s" % L(tag + "q1")))
            publish(S)
            def quick():
                for k_ in range(1, NS):
                    A.label(L(tag + "q%d" % k_))
                    E = newseq()
                    if ST: E("s_add_u32 s99, s99, 1")
                    if k_ == NS - 1: issue(E, SETS[0])
                    for j in range(NL):
                        E("s_waitcnt vmcnt(%d)" % (NL * (NS - k_) - 1 - j + (NL if k_ == NS - 1 else 0))); acc(E, SETS[k_], j)
                    hint(E, SETS[k_]); E("s_cbranch_vccnz %s" % L(tag + ("q%d" % (k_ + 1) if k_ < NS - 1 else "qx")))
                    fold(E); E("s_cbranch_vccnz %s" % L(tag + "qe%d" % k_))
                    publish(E); stamp(E, 7); E("s_barrier"); E("s_nop 0" if (SI or P.get("SCD")) else "%s, v%d, s[8:11], s56 offen sc1" % (op, T1)); E("s_branch %s" % L(tag + "rb_g"))
                A.label(L(tag + "qx"))
                for k_ in range(1, NS - 1): issue(A, SETS[k_])
                A("s_branch %s" % L(tag + "rb_i%d" % (NS - 1)))
                for k_ in range(1, NS):
                    A.label(L(tag + "qe%d" % k_))
                    A("s_waitcnt vmcnt(0)")
                    for k2 in range(k_ + 1, k_ + NS): issue(A, SETS[k2 % NS])
                    A("s_branch %s" % L(tag + "rb_e%d" % k_))
            if NS > 1: ool.append(quick)
            def blk():
                A.label(L(tag + "rb_l"))
                for k_, B in enumerate(SETS):
                    E = Seq(A)
                    E("s_waitcnt vmcnt(%d)" % (NL * NS - NL))
                    for j in range(NL): acc(E, B, j)
                    hint(E, B); E("s_cbranch_vccz %s" % L(tag + "rb_x%d" % k_))
                    A.label(L(tag + "rb_i%d" % k_))
                    issue(A, B)
                    if ST: A("s_add_u32 s99, s99, 1")
                A("s_add_u32 s71, s71, 1"); A("s_cmp_lt_u32 s71, %d" % (4 * SPIN_MAX)); A("s_cbranch_scc1 %s" % L(tag + "rb_l")); A("s_branch %s" % L0("fail"))
                for k_, B in enumerate(SETS):
                    A.label(L(tag + "rb_x%d" % k_))
                    E = Seq(A); E("s_nop %d" % (3 if w == 0 else 5)); fold(E); A("s_cbranch_vccz %s" % L(tag + "rb_n"))
                    A.label(L(tag + "rb_e%d" % k_))
                    allr = [b + i for b in B for i in range(4)]
                    A("v_max3_u32 v%d, v%d, v%d, v%d" % (X, allr[0], allr[1], allr[2]))
                    for i in range(3, len(allr) - 1, 2): A("v_max3_u32 v%d, v%d, v%d, v%d" % (X, X, allr[i], allr[i + 1]))
                    A("v_max_u32 v%d, v%d, v%d" % (X, X, allr[-1])); A("v_cmp_eq_u32 vcc, -1, v%d" % X)
                    A("s_cbranch_vccnz %s" % L(tag + "rb_i%d" % k_))
                    A("v_min_u32 v%d, -2, v%d" % (D, D)); A("v_min_u32 v%d, -2, v%d" % (D + 1, D + 1))
                    if k_ < NS - 1: A("s_branch %s" % L(tag + "rb_n"))
                A.label(L(tag + "rb_n"))
                publish(A)
                A("s_branch %s" % L(tag + "rb_d"))
            ool.append(blk)
            S.label(L(tag + "rb_d"))
        else:
            ready(S)
            if CLP and w >= 2: clear_prep(S)
            if w == 1: S.wait_vm_all()
            if not (P.get("KN", 0) and SC2): known(S, T0)
        stamp(S, 7)
        S("s_barrier")
        p0 = S.pos
        if CLP == 1 and w >= 2: clears(S)
        if red:
            SCD = P.get("SCD", 0)
            if not SCD and not SI and not (P.get("NOS1") == w + 1): S("%s, v%d, s[8:11], s56 offen sc1" % (op, T1))
            S.label(L(tag + "rb_g"))
            if SCD: S("v_mov_b64 %s, %s" % (r2(M[0] + 2), r2(D)))
            S("s_mov_b64 exec, -1")
            if P.get("ACK") and ST:
                S("s_memtime s[28:29]"); S("s_waitcnt vmcnt(0)"); S("s_memtime s[30:31]"); S("s_waitcnt lgkmcnt(0)"); S("s_sub_u32 s28, s30, s28"); S("s_add_u32 s99, s99, s28")
            S("s_waitcnt vmcnt(%d)" % (1 if SCD else 2))
        stamp_acc(S)
        if red: ready(S)
        if red and not (P.get("KN", 0) and SC2): known(S, M[0])
        kv_prep(S, 2); pub_addr(S)
        if w == 0 or (w == 1 and not CLP): clear_prep(S)
        S("s_add_u32 s44, s44, 1"); step_addr(S)
        fr = FL_[w]
        f1 = None
        if fr:
            S.nop(LD - (S.pos - p0))
            f1 = dma(S, fr, "s48", L_ML)
            for _ in range(NA - 1):
                S.nop(PG); dma(S, fr, "s48", L_ML)
        if red and SCD:
            S.nop(SCD - 12 - (S.pos - p0))
            S("s_mov_b64 exec, %s" % ("s[38:39]" if w == 0 else "s[62:63]"))
            S("%s, v%d, s[8:11], s56 offen sc1" % ("buffer_store_dwordx2 %s" % r2(M[0] + 2) if w == 0 else "buffer_store_dword v%d" % (M[0] + 2), T1)); S("s_mov_b64 exec, -1")
        if CLP == 2 and w >= 2: clears(S)
        if CL3 and w < 2:
            S.nop(P.get("CD", 96) - (S.pos - p0)); clears(S)
            if w == 0 and MCW: m_clear(S)
        S("s_mov_b32 s70, 0")
        S.wait(lds=S.nl)
        if f1: A.lines[topw] = "    s_waitcnt vmcnt(%d)" % (S.nv - f1)
        S("s_branch %s" % L("top"))

    def stamp_acc(S):
        if not ST: return
        S("s_waitcnt lgkmcnt(0)")
        if P.get("RAW") and w == P["RAW"] - 1:
            for i in range(9): S("v_writelane_b32 v%d, s%d, %d" % (T0, 72 + 2 * i, i))
            S("v_writelane_b32 v%d, s98, 9" % T0); S("v_writelane_b32 v%d, s99, 10" % T0)
            S("s_lshl_b32 s27, s20, 5"); S("s_add_u32 s27, s27, s22"); S("s_lshl_b32 s27, s27, 7"); S("s_add_u32 s27, s27, s44"); S("s_lshl_b32 s27, s27, 8"); S("s_add_u32 s27, s27, %d" % (WS_DBG + (5 << 20)))
            S("s_mov_b64 exec, 0x7ff"); S("buffer_store_dword v%d, v%d, s[8:11], s27 offen" % (T0, L16)); S("s_mov_b64 exec, -1")
        if TR:
            for i in range(8): S("s_sub_u32 s27, s%d, s%d" % (74 + 2 * i, 72 + 2 * i)); S("s_add_u32 s%d, s%d, s27" % (90 + i, 90 + i))
        else:
            for i in range(7): S("s_sub_u32 s27, s%d, s%d" % (74 + 2 * i, 72 + 2 * i)); S("s_add_u32 s%d, s%d, s27" % (90 + i, 90 + i))
            S("s_sub_u32 s27, s72, s88"); S("s_add_u32 s97, s97, s27"); S("s_mov_b32 s88, s86")
            S("s_cmp_eq_u32 s57, 0"); S("s_cselect_b32 s93, 900, s93"); S("s_cselect_b32 s95, 900, s95")

    A.label(L("layer"))
    S = Seq(A)
    S("s_lshr_b32 s27, s44, 6"); S("s_mul_i32 s50, s27, %d" % KV_LAYER); S("s_lshl_b32 s27, s22, 13"); S("s_add_u32 s50, s50, s27"); S("s_add_u32 s50, s50, %d" % WS_KXF)
    S("s_barrier")
    S("s_mov_b32 s26, 0x%x" % (OOB + 65536)); S("s_mov_b32 s3, s26")
    S("s_mul_i32 s27, s20, 5120"); S("s_add_u32 s48, s27, %d" % WS_M0); S("s_sub_u32 s49, %d, s27" % (WS_M0 + 5120))
    dma(S, FL_[w], "s48", L_ML)
    pass
    step_addr(S); ready(S); S("s_mov_b32 s70, 0"); S.wait(lds=S.nl, vm=S.nv)
    if ST:
        for i in range(10): S("s_mov_b32 s%d, 0" % (90 + i))
        S("%s s[72:73]" % ("s_memrealtime" if P.get("RAW") else "s_memtime")); S("s_waitcnt lgkmcnt(0)")
        for i in range(1, 9): S("s_mov_b32 s%d, s72" % (72 + 2 * i))

    A.label(L("top"))
    S = newseq(); top0 = len(A.lines)
    if TR: S.hook = hook
    topw = len(A.lines); A("s_nop 0")
    stamp(S, 0)
    S("s_barrier")
    stamp(S, 1)
    ME = P.get("ME", 2)
    for t in range(ME): rd(S, M[t], MRA, L_ML + 1024 * t)
    R0 = P.get("R0", 0)
    if not R0: rtok = dma(S, FR_[w], "s49", L_MR)
    S.label(L("lr_r"))
    DEF = [t for t in range(5) if t not in VT_]
    LOC = dict(zip(DEF, [M[0], M[1], M[3]])) if NV >= 2 else {t: M[t] for t in range(5)}
    lwset = []
    fl = []
    fv = []

    def step(i):
        m, tl, rem, t = SEQ[i]
        mq = LOC[t] if i >= NLOC + 30 else M[t]
        assert holds.get(mq) == (MRA, (L_MR if rem else L_ML) + 1024 * t), (i, holds.get(mq))
        if i in LDSI:
            n = LDSI.index(i); smf(S, ACC[m] + 4 * tl, mq, LB[n % 2])
            assert n < 2 or (holds[LB[n % 2]] == (VW, n * 2048) and holds[LB[n % 2] + 4] == (VW, n * 2048 + 1024)), i
            if n + 2 < NLW:
                k_ = 0
                while k_ < len(fl) and fl[k_] in lwset: k_ += 1
                it_ = lw_read(S, n + 2); lwset.extend(it_)
                fl[k_:k_] = it_
        else: smf(S, ACC[m] + 4 * tl, mq, WREG[i])

    def fill(nl, nv):
        for _ in range(nl):
            if fl: fl.pop(0)()
        for _ in range(nv):
            if fv: fv.pop(0)()

    def steps(lo, hi, nl=1, nv=1):
        for i in range(lo, hi):
            step(i); fill(2 if (SC2 and P.get("L2", 0) and not fv and len(fl) >= 2 and fl[1] in lwset) else nl, nv)

    def I(t): return lambda: S(t)
    def R(dst, areg, off): return lambda: rd(S, dst, areg, off)
    def reread(lab, fr, sa, lds, quads, peek, cnt, redo):
        def blk():
            A.label(L(lab))
            A("s_mov_b32 s30, 0")
            A.label(L(lab + "_l"))
            E = Seq(A); E("s_waitcnt lgkmcnt(0)")
            if ST: E("s_add_u32 s98, s98, %d" % cnt)
            if fr:
                E("s_and_b32 s27, s30, 1"); E("s_cbranch_scc%d %s" % (0 if redo else 1, L(lab + "_n"))); E("s_waitcnt vmcnt(%d)" % len(fr)); dma(E, fr, sa, lds)
                A.label(L(lab + "_n"))
            for t in quads: rd(E, M[t], MRA, lds + 1024 * t)
            if peek: E("ds_read_b32 v%d, v%d offset:%d" % (T1, MRA, lds + 4096))
            E("v_max3_u32 v%d, v%d, v%d, v%d" % (T0, M[0], M[1], M[2])); E("v_max3_u32 v%d, v%d, v%d, v%d" % (T0, T0, M[3], T1 if peek else M[4]))
            E("v_cmp_eq_u32 vcc, -1, v%d" % T0); E("s_cbranch_vccz %s" % L(lab + "_d"))
            spin_count(E, 8 * SPIN_MAX); E("s_branch %s" % L(lab + "_l"))
            A.label(L(lab + "_d"))
            if redo:
                ready(E); E("s_waitcnt lgkmcnt(0)")
                if fr: E("s_waitcnt vmcnt(0)") if False else None
            E("s_branch %s" % L(lab + "_r"))
        ool.append(blk)
    HP = P.get("HP", 16 if SC2 else 11)
    fl += [R(M[t], MRA, L_ML + 1024 * t) for t in range(ME, 5)]
    if 0 < R0 < HP:
        steps(0, R0); rtok = dma(S, FR_[w], "s49", L_MR); steps(R0, HP); R0 = 0
    else: steps(0, HP)
    drain(fv)
    assert all(holds[M[t]] == (MRA, L_ML + 1024 * t) for t in range(5))
    late = [I("s_mov_b32 m0, %d" % (L_JUNK if w >= 2 else L_FL))] if (w >= 1 or MCW) else []
    fv += [I("v_max3_u32 v%d, v%d, v%d, v%d" % (T0, M[0], M[1], M[2])), I("v_max3_u32 v%d, v%d, v%d, v%d" % (T0, T0, M[3], M[4])), I("v_cmp_eq_u32 vcc, -1, v%d" % T0), I(br("s_cbranch_vccnz %s" % L("lr")))]
    reread("lr", FL_[w], "s48", L_ML, range(5), False, 0x10000, True)
    NLA = NLOC - P.get("RA", 6 if 4 in VT_ else 4)
    assert NLOC - NLA in (4, 6, 8)
    if R0:
        steps(HP, R0); rtok = dma(S, FR_[w], "s49", L_MR); steps(R0, NLA)
    else: steps(HP, NLA)
    drain(fl); drain(fv)
    def slow_ops():
        if not P.get("NOPUB"): pub_st(S)
        if w < 2 and not CLP and not CL3: clears(S)
        if w == 0 and not MCW: m_clear(S)
        if w == 0 and MCW:
            S("s_mov_b64 exec, 3"); S("buffer_load_dword v%d, s[8:11], s51 offen sc1 lds" % PA8); S("s_mov_b64 exec, -1")
        if w >= 2:
            if P.get("TH", 0) != 2: S("buffer_load_dword v%d, s[8:11], s61 offen sc1 lds" % PA8)
            if P.get("TH", 0) == 1: S("s_mov_b32 m0, %d" % (L_JUNK - 64)); S("buffer_load_dword v%d, s[8:11], s61 offen offset:64 sc1 lds" % PA8)
        if w == 1:
            if not MCW: S("s_mov_b64 exec, 3"); S("buffer_load_dword v%d, s[8:11], s51 offen sc1 lds" % PA8)
            S("s_mov_b64 exec, s[100:101]"); S("buffer_store_dword v%d, v%d, s[8:11], s61 offen sc1" % (PA8, PA8)); S("s_mov_b64 exec, -1")
    stamp(S, 2)
    S.wait(vm=rtok); S("s_barrier")
    stamp(S, 3)
    if NLOC - NLA == 6:
        for t in range(2): rd(S, M[t], MRA, L_MR + 1024 * t)
        step(NLA); rd(S, M[2], MRA, L_MR + 2048); rd(S, M[3], MRA, L_MR + 3072)
        step(NLA + 1); S("ds_read_b32 v%d, v%d offset:%d" % (T1, MRA, L_MR + 4096)); fill(1, 0)
        steps(NLA + 2, NLA + 3)
        fv += [I("v_max3_u32 v%d, v%d, v%d, v%d" % (T0, M[0], M[1], M[2])), I("v_max3_u32 v%d, v%d, v%d, v%d" % (T0, T0, M[3], T1)), I("v_cmp_eq_u32 vcc, -1, v%d" % T0)]
        steps(NLA + 3, NLOC)
    elif NLOC - NLA == 4:
        if P.get("SE"):
            for t in range(4): rd(S, M[t], MRA, L_MR + 1024 * t)
            S("ds_read_b32 v%d, v%d offset:%d" % (T1, MRA, L_MR + 4096))
            drain(late); slow_ops()
            fv += [lambda: None, I("v_max3_u32 v%d, v%d, v%d, v%d" % (T0, M[0], M[1], M[2])), I("v_max3_u32 v%d, v%d, v%d, v%d" % (T0, T0, M[3], T1)), I("v_cmp_eq_u32 vcc, -1, v%d" % T0)]
            steps(NLA, NLOC)
        elif P.get("RI", 1):
            for t in range(2): rd(S, M[t], MRA, L_MR + 1024 * t)
            step(NLA); rd(S, M[2], MRA, L_MR + 2048); rd(S, M[3], MRA, L_MR + 3072)
            step(NLA + 1); S("ds_read_b32 v%d, v%d offset:%d" % (T1, MRA, L_MR + 4096)); fill(1, 0)
            steps(NLA + 2, NLOC - 1)
        else:
            for t in range(4): rd(S, M[t], MRA, L_MR + 1024 * t)
            S("ds_read_b32 v%d, v%d offset:%d" % (T1, MRA, L_MR + 4096))
            steps(NLA, NLOC - 1)
        if not P.get("SE"):
            S("v_max3_u32 v%d, v%d, v%d, v%d" % (T0, M[0], M[1], M[2]))
            step(NLOC - 1)
            S("v_max3_u32 v%d, v%d, v%d, v%d" % (T0, T0, M[3], T1)); S("v_cmp_eq_u32 vcc, -1, v%d" % T0)
    else:
        S("ds_read2st64_b32 %s, v%d offset0:%d offset1:%d" % (r2(T0), MRA, (L_MR + 3072) // 256, (L_MR + 4096) // 256))
        for t in range(2): rd(S, M[t], MRA, L_MR + 1024 * t)
        fl += [R(M[2], MRA, L_MR + 2048)]
        fl.insert(0, fl.pop())
        step(NLA); rd(S, M[2], MRA, L_MR + 2048); fl.remove(fl[-1])
        steps(NLA + 1, NLA + 4)
        fl.insert(0, R(M[3], MRA, L_MR + 3072)); drain(fv)
        step(NLA + 4); fill(1, 0)
        fv += [I("v_max3_u32 v%d, v%d, v%d, v%d" % (T0, T0, T1, M[0])), I("v_max3_u32 v%d, v%d, v%d, v%d" % (T0, T0, M[1], M[2])), I("v_cmp_eq_u32 vcc, -1, v%d" % T0)]
        steps(NLA + 5, NLOC)
    drain(fv)
    S("s_nop 0" if P.get("NOS1") else br("s_cbranch_vccnz %s" % L("rr")))
    S.label(L("rr_r"))
    reread("rr", FR_[w], "s49", L_MR, range(4), True, 1, False)
    drain(late); drain(fl)
    rd(S, M[4], MRA, L_MR + 4096)
    ftok = S.nv
    SP = P.get("SP", 0)
    steps(NLOC, NLOC + SP)
    if not P.get("SE"): slow_ops()
    steps(NLOC + SP, NLOC + 11)
    B0 = NLOC - 20
    pv, pw = post(S, AQ, L_EQ, True); fv += pv
    def first_hook(): S("s_cmp_eq_u32 s57, 0"); S("s_cbranch_scc1 %s" % L("first")); S.label(L("first_r"))
    if SC2:
        first_hook()
        for i in range(35, 44):
            step(i)
            if i == 37: fl.extend([R(LB[1] + 4 * u, KRA, L_K + 2048 + 1024 * u) for u in range(2)])
            if i == 40: fl.extend([R(LB[0] + 4 * u, KRA, L_K + 1024 * u) for u in range(2)])
            fill(1, 1 if i < 39 else 2)
        drain(fv); assert not fl
        fl += pw
        step(44); fill(1, 0)
    else:
        steps(B0 + 31, B0 + 35); steps(B0 + 35, B0 + 40, 1, 2); drain(fv)
        fl += pw
        step(B0 + 40); first_hook(); fill(1, 0)
    def blk():
        A.label(L("first"))
        if P.get("PT", 1):
            A("s_mul_i32 s27, s21, %d" % PART_SLOT); A("s_add_u32 s27, s27, s34"); A("s_mul_i32 s28, s22, %d" % PART_H); A("s_add_u32 s28, s28, s27")
            A("s_mov_b32 exec_hi, 0"); A("buffer_load_dword v%d, v%d, s[8:11], s28 offen sc1" % (T0, PA8))
            A("s_lshl_b32 s28, s22, 10"); A("s_add_u32 s28, s28, s27"); A("s_add_u32 s28, s28, %d" % PART_T4); A("s_mov_b64 exec, 0xff"); A("buffer_load_dword v%d, v%d, s[8:11], s28 offen sc1" % (T0, PA8))
            A("s_mul_i32 s27, s21, %d" % ML_S); A("s_add_u32 s27, s27, s41"); A("s_mul_i32 s28, s22, 160"); A("s_add_u32 s28, s28, s27"); A("s_mov_b64 exec, 3"); A("buffer_load_dword v%d, v%d, s[8:11], s28 offen sc1" % (T0, PA8))
            A("s_mov_b64 exec, -1")
        E = Seq(A)
        if w == 3: kv_wait(E, "p1", 1)
        E("s_barrier"); kv_prep(E, 0); k_fetch(E); vt_fetch(E); kv_prep(E, 1); E("s_waitcnt vmcnt(0) lgkmcnt(0)"); ht(2); E("s_barrier")
        E("s_branch %s" % L("first_r"))
        A.label(L("first2"))
        E = Seq(A)
        known(E, T0); kv_wait(E, "p2", 2)
        E("s_branch %s" % L("first2_r"))
    ool.append(blk)
    pv, pw = post(S, AK, L_EK); fv += pv
    def ex(r): return I("v_exp_f32 v%d, v%d" % (r, r))
    if SC2:
        QO = [AQ, AQ + 4, X0, M[2]]; KA = [LB[0], LB[0] + 4, LB[1], LB[1] + 4]; SXa, SXb = AK, AK + 4; ONE = KA[2]; HALF = T0; PX = SXa
        ZQ, O4Q = X0, M[2]
        loc = lambda k_: rd(S, LOC[DEF[k_]], MRA, L_ML + 1024 * DEF[k_])
        qr = lambda u: rd(S, QO[u], ER, L_EQ + 64 * u)
        step(45); fill(1, 1); qwt = S.nl
        step(46); loc(0); fill(0, 1)
        step(47); loc(1); fill(0, 1)
        step(48); S.wait(lds=qwt); S("s_barrier"); fill(0, 1)
        step(49); qr(0); fill(0, 2)
        step(50); qr(1); fill(0, 2)
        step(51); qr(2); fill(0, 2)
        step(52); pw.pop(0)(); qr(3)
        step(53); pw.pop(0)(); kwt = S.nl
        assert not fv
        stamp(S, 4)
        step(54); loc(2); S("v_mov_b64 %s, s[16:17]" % r2(HALF))
        step(55)
        KM = [M[0], M[4], KA[0], KA[1]]; SM = M[1]
        for u in range(4):
            mf32(S, SXa, KA[u], QO[u], "0" if u == 0 else SXa); kbt = rd(S, KA[u], KRA, L_K + 4096 + 1024 * u)
            if u == 1: S.wait(lds=kwt); S("s_barrier")
        step(56); rd(S, KM[0], ER, L_EK); step(57); rd(S, KM[1], ER, L_EK + 64); S.wait(lds=kbt - 2)
        mf32(S, SXb, KA[0], QO[0], "0"); ex(SXa)(); rd(S, KM[2], ER, L_EK + 128)
        mf32(S, SXb, KA[1], QO[1], SXb); S.wait(lds=kbt); ex(SXa + 1)(); rd(S, KM[3], ER, L_EK + 192)
        mf32(S, SXb, KA[2], QO[2], SXb); ex(SXa + 2)()
        mf32(S, SXb, KA[3], QO[3], SXb); ex(SXa + 3)()
        stamp(S, 5)
        mf32(S, SM, KM[0], QO[0], "0"); S(cvt(PX, SXa, SXa + 1)); S(cvt(PX + 1, SXa + 2, SXa + 3))
        mf32(S, SM, KM[1], QO[1], SM); S("v_mov_b64 %s, s[24:25]" % r2(ONE)); S("v_mov_b64 %s, s[24:25]" % r2(ONE + 2))
        mf32(S, SM, KM[2], QO[2], SM); ex(SXb)()
        mf32(S, SM, KM[3], QO[3], SM); ex(SXb + 1)()
        step(58)
        if P.get("KN", 0): S("ds_read_b32 v%d, v%d offset:%d" % (OWA, L16, L_FL))
        ex(SXb + 2)()
        step(59); ex(SXb + 3)(); S(cvt(PX + 2, SXb, SXb + 1)); S(cvt(PX + 3, SXb + 2, SXb + 3)); ex(SM)()
        OA = [AQ, AQ + 4]; Z = ZQ; PM = SM
        mf32(S, Z, ONE, PX, "0"); ex(SM + 1)()
        mf32(S, OA[0], VT[0], PX, "0"); ex(SM + 2)()
        mf32(S, OA[1], VT[1], PX, "0"); ex(SM + 3)()
        S(cvt(PM, SM, SM + 1)); S(cvt(PM + 1, SM + 2, SM + 3)); S(cvt(AV, AV, AV + 1)); S(cvt(AV + 1, AV + 2, AV + 3))
    elif NV >= 2:
        QO = [AQ, AQ + 4, X0, M[2]]; KA = [LB[0], LB[0] + 4, LB[1], LB[1] + 4]; SXa, SXb = AK, AK + 4; ONE = M[4] if NV == 2 else M[3]; HALF = T0; PX = SXa
        ZQ, O4Q = X0, M[2]
        for i in range(41, 50):
            step(B0 + i)
            if i == 41: fl[0:0] = [fl.pop()]
            if i == 42: qwt = S.nl
            for t_, q_ in LOC.items():
                if i % 2 == 1 and q_ == M[(i - 41) // 2]: fl.append(R(q_, MRA, L_ML + 1024 * t_))
            if B0 + i == max(45, B0 + 41): fl.extend([R(KA[u], KRA, L_K + 1024 * u) for u in (2, 3)])
            if B0 + i == 47: fl.extend([R(KA[u], KRA, L_K + 1024 * u) for u in (0, 1)])
            if i == 45:
                S.wait(lds=qwt); S("s_barrier"); fl.extend([R(QO[u], ER, L_EQ + 64 * u) for u in range(4)]); fill(1, 2)
            elif i in (48, 49): pw.pop(0)(); kwt = S.nl; fill(1, 0)
            else: fill(1, 1 if i < 45 else 2)
        assert not fv and not pw
        stamp(S, 4)
        fv += [I("v_mov_b64 %s, s[24:25]" % r2(ONE)), I("v_mov_b64 %s, s[24:25]" % r2(ONE + 2)), I("v_mov_b64 %s, s[16:17]" % r2(HALF))]
        steps(B0 + 50, 58, 2, 0); drain(fl)
        KM = [M[0], M[1], KA[0], KA[1]] if NV == 2 else [M[4], M[0], KA[0], KA[1]]; SM = LOC[DEF[-1]]
        for u in range(4):
            mf32(S, SXa, KA[u], QO[u], "0" if u == 0 else SXa); kbt = rd(S, KA[u], KRA, L_K + 4096 + 1024 * u)
            if u == 1: S.wait(lds=kwt); S("s_barrier")
            else: fill(0, 1)
    else:
        QO = [AQ, AQ + 4, AK, AK + 4]; KA = [LB[0], LB[0] + 4, LB[1], LB[1] + 4]; SXa, SXb, SM = M[0], M[1], M[3]; ONE = X0; HALF = T0
        for i in range(41, 52):
            step(B0 + i)
            if i % 2 == 1 and NV <= (i - 41) // 2 < 5: fl.append(R(M[(i - 41) // 2], MRA, L_ML + 1024 * ((i - 41) // 2)))
            if B0 + i == 45: fl.extend([R(KA[u], KRA, L_K + 1024 * u) for u in (2, 3)])
            if B0 + i == 47: fl.extend([R(KA[u], KRA, L_K + 1024 * u) for u in (0, 1)])
            if i in (48, 49): pw.pop(0)(); kwt = S.nl; fill(1, 0)
            elif i >= 50: fill(2 if i == 50 else 1, 0)
            else: fill(1, 1 if i < 45 else 2)
        assert not fv and not pw
        step(B0 + 52); S.wait(lds=kwt); S("s_barrier")
        stamp(S, 4)
        fl[0:0] = [R(QO[u], ER, L_EQ + 64 * u) for u in range(4)]
        fill(1, 0)
        fv += [I("v_mov_b64 %s, s[24:25]" % r2(ONE)), I("v_mov_b64 %s, s[24:25]" % r2(ONE + 2)), I("v_mov_b64 %s, s[16:17]" % r2(HALF))]
        E1 = P.get("E1", 58)
        steps(B0 + 53, B0 + 55, 2, 0); steps(B0 + 55, E1, 1, 1)
        drain(fl); drain(fv)
        S.wait(lds=S.nl)
        KM = [M[2], KA[0], KA[1], KA[2]] if E1 < 58 else [M[2], M[3], KA[0], KA[1]]
        SM = M[4] if E1 >= 58 else M[3]
        for u in range(4): mf32(S, SXa, KA[u], QO[u], "0" if u == 0 else SXa); kbt = rd(S, KA[u], KRA, L_K + 4096 + 1024 * u)
        PX = SXa
        ZQ, O4Q = AK, AK + 4
    if not SC2:
        step(58); rd(S, KM[0], ER, L_EK); step(59); rd(S, KM[1], ER, L_EK + 64); S.wait(lds=kbt - 2)
        mf32(S, SXb, KA[0], QO[0], "0"); ex(SXa)()
        mf32(S, SXb, KA[1], QO[1], SXb); S.wait(lds=kbt); ex(SXa + 1)(); rd(S, KM[2], ER, L_EK + 128)
        mf32(S, SXb, KA[2], QO[2], SXb); ex(SXa + 2)(); rd(S, KM[3], ER, L_EK + 192)
        mf32(S, SXb, KA[3], QO[3], SXb); ex(SXa + 3)()
        stamp(S, 5)
        mf32(S, SM, KM[0], QO[0], "0"); S(cvt(PX, SXa, SXa + 1)); S(cvt(PX + 1, SXa + 2, SXa + 3))
        mf32(S, SM, KM[1], QO[1], SM); S(cvt(AV, AV, AV + 1)); S(cvt(AV + 1, AV + 2, AV + 3))
        mf32(S, SM, KM[2], QO[2], SM); ex(SXb)()
        mf32(S, SM, KM[3], QO[3], SM); ex(SXb + 1)(); ex(SXb + 2)(); ex(SXb + 3)()
        S(cvt(PX + 2, SXb, SXb + 1)); S(cvt(PX + 3, SXb + 2, SXb + 3)); S(cvt(AV + 2, AV + 4, AV + 5)); S(cvt(AV + 3, AV + 6, AV + 7))
    if not SC2:
        OA = [AQ, AQ + 4]; Z = ZQ; PM = SM
        mf32(S, Z, ONE, PX, "0"); ex(SM)()
        mf32(S, OA[0], VT[0], PX, "0"); ex(SM + 1)()
        mf32(S, OA[1], VT[1], PX, "0"); ex(SM + 2)(); ex(SM + 3)()
        S(cvt(PM, SM, SM + 1)); S(cvt(PM + 1, SM + 2, SM + 3))
    OUT = [KA[0], KA[1], KA[2], KA[3], O4Q]
    def pubsel(): return [I("v_cndmask_b32_e64 v%d, v%d, v%d, s[66:67]" % (X1 + i, AV + i, KM[w] + i)) for i in range(4)]
    fv += pubsel()
    if SC2:
        mf16(S, Z, HALF, PM, Z); S(cvt(AV + 2, AV + 4, AV + 5)); S(cvt(AV + 3, AV + 6, AV + 7))
        S.label(L("fin"))
        mf16(S, OA[0], AV, PM, OA[0]); S("s_cmp_eq_u32 s57, 63"); fill(0, 2)
        mf16(S, OA[1], AV + 2, PM, OA[1]); fill(0, 2); S("s_cbranch_scc1 %s" % L("last"))
        for q in OUT[::-1]: fv += zitems(S, q)
    else:
        fill(0, 2)
        S.label(L("fin"))
        mf16(S, Z, HALF, PM, Z); fill(0, 2)
        for q in OUT[::-1]: fv += zitems(S, q)
        mf16(S, OA[0], AV, PM, OA[0]); S("s_cmp_eq_u32 s57, 63"); fill(0, 2)
        mf16(S, OA[1], AV + 2, PM, OA[1]); S("s_cbranch_scc1 %s" % L("last")); fill(0, 1)
    RZ = Z + 2
    S("v_rcp_f32 v%d, v%d" % (RZ, Z)); S("v_subrev_u32 v%d, s68, v%d" % (Z + 1, Z)); S("v_cmp_lt_u32 vcc, s69, v%d" % (Z + 1)); fill(0, 2 if SC2 else 1)
    for i in range(4): S("v_cndmask_b32_e64 v%d, v%d, v%d, s[18:19]" % (AQ + i, AQ + i, AQ + 4 + i))
    for q in (0, 2): S("v_pk_mul_f32 %s, %s, %s op_sel_hi:[1,0]" % (r2(AQ + q), r2(AQ + q), r2(RZ)))
    S(cvt(AQ, AQ, AQ + 1)); S(cvt(AQ + 1, AQ + 2, AQ + 3))
    S("ds_write_b64 v%d, %s offset:%d" % (L16, r2(AQ), L_EO + 1024 * (w >> 1) + 8 * (w & 1)))
    S("s_nop 0" if P.get("NOS1") else br("s_cbranch_vccnz %s" % L("zbad")))
    S.label(L("zok"))
    ctok = S.nv - (2 if w == 1 else 0)
    if P.get("KN", 0) and SC2: S("v_readfirstlane_b32 s28, v%d" % OWA); S("s_max_u32 s54, s54, s28")
    S("s_cmp_lt_u32 s54, s42"); S("s_cbranch_scc1 %s" % L("first2")); S.label(L("first2_r"))
    BO = P.get("BO", 0)
    if BO == 0: vt_fetch(S)
    else: S("s_mov_b32 m0, %d" % (L_K + 2048 * w)); drain(fv)
    S.wait(lds=S.nl); S("s_barrier")
    O0, O1 = SXb, KM[1]
    rd(S, O0, L16, L_EO); rd(S, O1, L16, L_EO + 1024)
    if BO == 0: k_fetch(S)
    else:
        for j in range(2): S("buffer_load_dwordx4 v%d, s[8:11], s26 offen offset:%d sc1 lds" % (L16, 1024 * j))
        vt_fetch(S)
    drain(fv)
    def opost(T):
        b = OUT[T]
        return [I("v_permlane32_swap_b32 v%d, v%d" % (b, b + 1)), I("v_permlane32_swap_b32 v%d, v%d" % (b + 2, b + 3)),
                I("v_add_f32 v%d, v%d, v%d" % (b, b, b + 1)), I("v_add_f32 v%d, v%d, v%d" % (b + 2, b + 2, b + 3))]
    SD = KM[0]
    def wo(T, tp): smf(S, OUT[T], (O0, O1)[tp], WO[T, tp])
    S.hoist = False
    wo(0, 0); wo(1, 0); wo(0, 1); wo(1, 1); wo(2, 0); wo(3, 0)
    fv += opost(0) + opost(1) + [I(cvt(SD, OUT[0], OUT[1])), I(cvt(SD + 2, OUT[0] + 2, OUT[1] + 2))]
    fill(0, 1); wo(2, 1); fill(0, 1); wo(3, 1); fill(0, 2); wo(4, 0); fill(0, 1); wo(4, 1)
    fv += opost(2) + opost(3) + [I(cvt(SD + 1, OUT[2], OUT[3])), I(cvt(SD + 3, OUT[2] + 2, OUT[3] + 2))]
    drain(fv)
    if P.get("SO", 1): S("buffer_store_dwordx4 %s, v%d, s[8:11], s58 offen%s" % (r4(SD), L16, sc))
    drain(opost(4)); S(cvt(OUT[4], OUT[4], OUT[4] + 2))
    if not P.get("SO", 1): S("buffer_store_dwordx4 %s, v%d, s[8:11], s58 offen%s" % (r4(SD), L16, sc))
    S("buffer_store_dword v%d, v%d, s[8:11], s55 offen%s" % (OUT[4], PSB, sc))
    stamp(S, 6)
    if w == 0 and md == 0: print("chain on-path estimate %d, nops %d" % (estimate(A.lines[top0:], P.get("EST")), S.nops))
    def fork(S):
        S2 = copy.copy(S)
        for k_ in ("vw", "tw", "mw", "mc", "sd", "sw", "lp", "vp"): setattr(S2, k_, dict(getattr(S, k_)))
        return S2
    pw0 = S.pos
    window(S)

    A.label(L("restart"))
    E = Seq(A)
    E("s_waitcnt vmcnt(0) lgkmcnt(0)"); E.nop(8); E("s_barrier")
    dma(E, FL_[w], "s48", L_ML); ready(E); E("s_waitcnt vmcnt(0) lgkmcnt(0)"); E("s_branch %s" % L("top"))
    A.label(L("zbad"))
    E = Seq(A)
    E("s_cmp_eq_u32 s70, 2"); E("s_cbranch_scc1 %s" % L("zok"))
    E("v_cmp_u_f32 vcc, v%d, v%d" % (Z, Z)); E("s_cbranch_vccz %s" % L("exact"))
    E("s_cmp_eq_u32 s70, 1"); E("s_cbranch_scc1 %s" % L("exact"))
    A.label(L("vfy0"))
    E("s_mov_b32 s70, 1"); E("s_mov_b32 s30, 0"); E("s_waitcnt vmcnt(0) lgkmcnt(0)"); E.nop(8)
    A.label(L("vfy"))
    E("v_mov_b32 v%d, 0" % T0)
    for sa in ("s48", "s49"):
        E("s_add_u32 s59, %s, 4096" % sa)
        for t in range(5): E("buffer_load_dwordx4 %s, v%d, s[8:11], %s offen offset:%d sc1" % (r4(M[t]), L16, "s59" if t == 4 else sa, 1024 * (t % 4)))
        for r in range(M[0], M[0] + 20, 2): E("v_max3_u32 v%d, v%d, v%d, v%d" % (T0, T0, r, r + 1))
    E("v_cmp_eq_u32 vcc, -1, v%d" % T0); E("s_cbranch_vccz %s" % L("restart"))
    spin_count(E); E("s_branch %s" % L("vfy"))
    A.label(L("exact"))
    E = Seq(A); E.nop(8)
    E("s_mov_b32 s70, 2")
    KT = [KA[0], KA[1]]; S3 = [SXa, SXb, SM]
    E("s_waitcnt lgkmcnt(0)")
    for u in range(4): rd(E, QO[u], ER, L_EQ + 64 * u)
    n = 0
    for tl in range(3):
        for u in range(4):
            kq = KT[n % 2]; n += 1
            if tl < 2: rd(E, kq, KRA, L_K + 4096 * tl + 1024 * u)
            else: rd(E, kq, ER, L_EK + 64 * u)
            mf32(E, S3[tl], kq, QO[u], "0" if u == 0 else S3[tl])
            E.nop(4)
    S12 = [q + i for q in S3 for i in range(4)]
    MX, TM = KA[3], KA[3] + 1
    E("v_max3_f32 v%d, v%d, v%d, v%d" % (MX, S12[0], S12[1], S12[2]))
    for i in range(3, 11, 2): E("v_max3_f32 v%d, v%d, v%d, v%d" % (MX, MX, S12[i], S12[i + 1]))
    E("v_max_f32 v%d, v%d, v%d" % (MX, MX, S12[11]))
    for op in ("v_permlane16_swap_b32", "v_permlane32_swap_b32"):
        E("v_mov_b32 v%d, v%d" % (TM, MX)); E("%s v%d, v%d" % (op, MX, TM)); E("v_max_f32 v%d, v%d, v%d" % (MX, MX, TM))
    for r in S12: E("v_sub_f32 v%d, v%d, v%d" % (r, r, MX)); E("v_exp_f32 v%d, v%d" % (r, r))
    for i in range(4): E(cvt(PX + i, S12[2 * i], S12[2 * i + 1]))
    E(cvt(PM, SM, SM + 1)); E(cvt(PM + 1, SM + 2, SM + 3))
    mf32(E, OA[0], VT[0], PX, "0"); mf32(E, OA[1], VT[1], PX, "0"); mf32(E, Z, ONE, PX, "0")
    rd(E, KM[w], ER, L_EK + 64 * w); E.wait_lds_all()
    if SC2: E.nop(8); mf16(E, Z, HALF, PM, Z)
    E.nop(8); E("s_branch %s" % L("fin"))
    A.label(L("last"))
    A("s_cmp_lg_u32 s70, 0"); A("s_cbranch_scc1 %s" % L("last2"))
    A("v_cmp_u_f32 vcc, v%d, v%d" % (SXb, SXb)); A("s_nop 0" if P.get("NOS1") else br("s_cbranch_vccnz %s" % L("vfy0")))
    A.label(L("last2"))
    E = Seq(A); pub_addr(E); pub_st(E); E("s_waitcnt vmcnt(0) lgkmcnt(0)")
    A("s_barrier")
    if w == 1:
        A("v_mov_b32 v%d, 8192" % T1); A("s_mov_b64 exec, 1"); A("buffer_store_dword v%d, v%d, s[8:11], s52 offen sc1" % (T1, L16)); A("s_mov_b64 exec, -1"); A("s_add_u32 s52, s52, 4096")
    if True:
        E = Seq(A); E.nop(8); clear_prep(E)
        if cw in (0, 1): clears(E)
        if w == 0: m_clear(E)
        A("s_waitcnt vmcnt(0)")
    A("s_add_u32 s44, s44, 1")
    ht(3)
    if ST:
        A("s_lshl_b32 s27, s20, 5"); A("s_add_u32 s27, s27, s22"); A("s_lshl_b32 s27, s27, 2"); A("s_add_u32 s27, s27, s21"); A("s_lshl_b32 s27, s27, 6"); A("s_add_u32 s27, s27, %d" % WS_DBG)
        A("s_lshl_b32 s28, s44, 8"); A("s_add_u32 s27, s27, s28"); A("s_mov_b64 exec, 1")
        for i in range(10): A("v_mov_b32 v%d, s%d" % (T1, 90 + i)); A("buffer_store_dword v%d, v%d, s[8:11], s27 offen offset:%d" % (T1, L16, 4 * i)); A("s_nop 1")
        A("s_mov_b64 exec, -1")
    if P.get("CF", 1): A("s_branch %s" % L0("c_fft"))
    A("s_cmp_eq_u32 s44, 128"); A("s_cbranch_scc1 %s" % L0("end"))
    A("s_branch %s" % L("layer"))
    while ool: ool.pop(0)()
```

```python
from asmlib import *
from layout import *
from layout import _arg
from seq import *

SETS = [16, 48]
PO = [80, 84]
AD, WA, TA = 12, 13, 14
SRD = {0: 72, 1: 76, 2: 80, 'o': 84}


def perm(S, st, x, o):
    for r in range(4):
        lo = st + 4 * (2 * r) + x // 2; hi = st + 4 * (2 * r + 1) + x // 2
        S("v_perm_b32 v%d, v%d, v%d, s%d" % (o + r, hi, lo, 45 if x & 1 else 44))


NT = _arg("NT", 0)
FLG = ["", " sc1", " nt", " sc0 sc1", " sc1 nt"][_arg("WF", 0)]


def stouch(S, base, ks_s):
    S("s_lshl_b32 s27, %s, 18" % ks_s); S("s_add_u32 s27, s27, s46"); S("s_add_u32 s50, s%d, s27" % base); S("s_addc_u32 s51, s%d, 0" % (base + 1))
    for i in range(NT):
        if i and i % 14 == 0: S("s_waitcnt lgkmcnt(0)")
        S("s_load_dword s52, s[50:51], 0x%x" % ((31 - i // 2) * 8192 + (i % 2) * 128))
    S("s_waitcnt lgkmcnt(0)")


HL = _arg("HL", 2); HN = _arg("HN2", 6)


def vtouch(S, srd, ks_s, cls):
    S("s_lshl_b32 s27, %s, 18" % ks_s); S("s_and_b32 s28, s46, 0x1c00"); S("s_add_u32 s27, s27, s28"); S("s_add_u32 s27, s27, 256")
    S("s_and_b32 s28, s22, 3"); S("s_cmp_eq_u32 s28, %d" % cls); S("s_cselect_b32 s27, s27, 0x10000000")
    S("buffer_load_dword v2, v3, %s, s27 offen sc1" % srd)


def code_pf(A, lo, hi, dst=2, tmp=14):
    lab = A.newlabel("cq")
    A("s_getpc_b64 s[28:29]")
    A.label(lab)
    A("s_add_u32 s28, s28, %s - %s" % (lo, lab)); A("s_addc_u32 s29, s29, 0")
    A("s_lshl_b32 s27, s22, 2"); A("s_add_u32 s27, s27, s21"); A("s_lshl_b32 s27, s27, 9"); A("v_lshlrev_b32 v%d, 3, v0" % tmp); A("v_add_u32 v%d, s27, v%d" % (tmp, tmp))
    A("v_cmp_gt_u32 vcc, %s - %s, v%d" % (hi, lo, tmp)); A("s_and_b64 exec, vcc, 15"); A("s_cbranch_execz %s" % (lab + "d"))
    A("global_load_dword v%d, v%d, s[28:29]" % (dst, tmp))
    A.label(lab + "d")
    A("s_mov_b64 exec, -1")


def run(S, rounds, late=None):
    S("v_lshrrev_b32 v3, 5, v0"); S("v_lshlrev_b32 v3, 13, v3"); S("v_and_b32 v2, 16, v0"); S("v_lshl_add_u32 v3, v2, 3, v3")
    S("s_mov_b32 s44, 0x05040100"); S("s_mov_b32 s45, 0x07060302")
    for r in range(min(2, len(rounds))): rounds[r]["issue"](SETS[r % 2])
    for r, R in enumerate(rounds):
        if NT and r + 2 < len(rounds) and rounds[r + 2].get("touch"): rounds[r + 2]["touch"]()
        if R.get("pre"): S.wait_lds_all(); S("s_barrier")
        if _arg("NOW", 0): S.wait(vm=S.nv - 8)
        else: R["write"](SETS[r % 2])
        k_ = r + 2 + HL
        if HL and len(rounds) - HN <= k_ < len(rounds) and rounds[k_].get("help"): rounds[k_]["help"]((0, 2, 3)[k_ % 3]); S.vp.pop("v2", None)
        if r + 2 < len(rounds): rounds[r + 2]["issue"](SETS[r % 2])
        if late and r == len(rounds) - 3: late()
        if R.get("reads") and not _arg("NOW", 0):
            S.wait_lds_all(); S("s_barrier")
            for dst, areg, off in R["reads"]: S("ds_read_b128 %s, v%d offset:%d" % (ureg(dst, 4), areg, off))
    S.wait_lds_all()


def qkv_setup(S):
    S("v_lshrrev_b32 v%d, 8, v0" % AD); S("v_lshlrev_b32 v%d, 16, v%d" % (AD, AD)); S("v_and_b32 v%d, 0xf0, v0" % TA); S("v_add_u32 v%d, v%d, v%d" % (AD, AD, TA))
    S("s_lshl_b32 s46, s22, 8")


def qkv_issue(S, st, srd, ks_s):
    S("s_lshl_b32 s27, %s, 18" % ks_s); S("s_add_u32 s27, s27, s46")
    for j in range(8):
        if j: S("s_add_u32 s27, s27, 8192")
        S("buffer_load_dwordx4 %s, v%d, %s, s27 offen%s" % (r4(st + 4 * j), AD, srd, FLG))


def plain_rounds(S, srd, dst, bufs, RA):
    out = []
    for r in range(5):
        def issue(st, r=r):
            S("s_add_u32 s26, s21, %d" % (4 * r)); qkv_issue(S, st, srd, "s26")
        def write(st, r=r):
            S("s_lshl_b32 s27, s21, 11"); S("s_add_u32 s27, s27, %d" % bufs[r % 2]); S("v_add_u32 v%d, s27, v0" % WA)
            for x in range(8):
                perm(S, st, x, PO[x % 2]); S("ds_write_b128 v%d, %s offset:%d" % (WA, r4(PO[x % 2]), (x // 2) * 8192 + (x % 2) * 1024))
        def touch(r=r):
            S("s_add_u32 s26, s21, %d" % (4 * r)); stouch(S, int(srd[2:4]), "s26")
        def hlp(cl, r=r):
            S("s_add_u32 s26, s21, %d" % (4 * r)); vtouch(S, srd, "s26", cl)
        out.append(dict(issue=issue, write=write, touch=touch, help=hlp, reads=[(dst(tl, 4 * r + tk), RA[r % 2], tk * 2048 + tl * 1024) for tk in range(4) for tl in range(2)]))
    return out


def wo_rounds(S, chain, base, reads):
    A2, B2 = 8, 9
    ST = [10, 11, 15]
    if chain:
        S("v_lshrrev_b32 v%d, 9, v0" % A2); S("v_lshlrev_b32 v%d, 4, v%d" % (A2, A2)); S("v_bfe_u32 v%d, v0, 8, 1" % TA); S("v_add_u32 v%d, v%d, v%d" % (A2, A2, TA)); S("v_mul_u32_u24 v%d, 2560, v%d" % (A2, A2))
        S("s_and_b32 s47, s21, 1"); S("s_lshl_b32 s47, s47, 6"); S("s_lshr_b32 s27, s21, 1"); S("s_lshl_b32 s27, s27, 2"); S("s_add_u32 s47, s47, s27")
        S("s_lshl_b32 s27, s22, 7"); S("s_add_u32 s47, s47, s27"); S("s_mul_i32 s47, s47, 1280"); S("s_mul_i32 s27, s20, 640"); S("s_add_u32 s47, s47, s27")
        rows = [16 * (jj >> 2) + 8 * (jj & 1) + ((jj >> 1) & 1) for jj in range(8)]
    else:
        S("v_lshrrev_b32 v%d, 8, v0" % A2); S("v_mul_u32_u24 v%d, %d, v%d" % (A2, 32 * 1280, A2))
        S("s_lshl_b32 s47, s22, 6"); S("s_add_u32 s47, s47, s21"); S("s_mul_i32 s47, s47, 2560")
        rows = [8 * (jj >> 1) + (jj & 1) for jj in range(8)]
    S("v_and_b32 v%d, 0xf0, v0" % TA); S("v_add_u32 v%d, v%d, v%d" % (A2, A2, TA))
    if not chain: S("v_bfe_u32 v%d, v0, 6, 2" % TA); S("v_lshl_add_u32 v%d, v%d, 8, v%d" % (B2, TA, A2))
    out = []
    n = 3 if chain else 5
    for it in range(n):
        half = chain and it == 2
        def issue(st, it=it, half=half):
            if half: S("s_mov_b32 exec_lo, 0x00ff00ff"); S("s_mov_b32 exec_hi, 0x00ff00ff")
            for jj in range(8):
                S("s_add_u32 s27, s47, %d" % (rows[jj] * 1280 + (it * 256 if chain else it * 320 if it < 4 else 256)))
                S("buffer_load_dwordx4 %s, v%d, s[84:87], s27 offen%s" % (r4(st + 4 * jj), B2 if (not chain and it == 4) else A2, FLG))
            if half: S("s_mov_b64 exec, -1")
        def write(st, it=it, half=half):
            S("v_and_b32 v%d, 0x300, v0" % WA); S("s_lshl_b32 s27, s21, 10")
            if not chain:
                if it < 4:
                    S("s_add_u32 s27, s27, %d" % (base + it * 40960)); S("v_add_u32 v%d, s27, v0" % WA)
                    off = [x * 4096 for x in range(8)]
                else:
                    S("s_add_u32 s27, s27, %d" % (base + 32768)); S("v_add_u32 v%d, s27, v%d" % (WA, WA))
                    S("v_bfe_u32 v%d, v0, 6, 2" % TA); S("v_mul_u32_u24 v%d, 40960, v%d" % (TA, TA)); S("v_add_u32 v%d, v%d, v%d" % (WA, WA, TA))
                    S("v_bfe_u32 v%d, v0, 4, 2" % TA); S("v_lshl_add_u32 v%d, v%d, 6, v%d" % (WA, TA, WA))
                    off = [(x & 1) * 4096 + (x >> 1) * 16 for x in range(8)]
            elif not half:
                S("s_add_u32 s27, s27, %d" % (base + it * 40960)); S("v_add_u32 v%d, s27, v%d" % (WA, WA))
                S("v_bfe_u32 v%d, v0, 7, 1" % TA); S("v_mul_u32_u24 v%d, 20480, v%d" % (TA, TA)); S("v_add_u32 v%d, v%d, v%d" % (WA, WA, TA))
                S("v_bfe_u32 v%d, v0, 5, 2" % TA); S("v_lshl_add_u32 v%d, v%d, 6, v%d" % (WA, TA, WA)); S("v_and_b32 v%d, 16, v0" % TA); S("v_add_u32 v%d, v%d, v%d" % (WA, WA, TA))
                off = [(x >> 2) * 8192 + ((x >> 1) & 1) * 32 + (x & 1) * 4096 for x in range(8)]
            else:
                S("s_add_u32 s27, s27, %d" % (base + 16384)); S("v_add_u32 v%d, s27, v%d" % (WA, WA))
                S("v_bfe_u32 v%d, v0, 5, 2" % TA); S("v_mul_u32_u24 v%d, 20480, v%d" % (TA, TA)); S("v_add_u32 v%d, v%d, v%d" % (WA, WA, TA))
                S("v_bfe_u32 v%d, v0, 4, 1" % TA); S("v_lshl_add_u32 v%d, v%d, 6, v%d" % (WA, TA, WA))
                off = [(x >> 2) * 32 + ((x >> 1) & 1) * 128 + (x & 1) * 16 for x in range(8)]
                S("s_mov_b32 exec_lo, 0x00ff00ff"); S("s_mov_b32 exec_hi, 0x00ff00ff")
            for x in range(8):
                perm(S, st, x, PO[x % 2]); S("ds_write_b128 v%d, %s offset:%d" % (WA, r4(PO[x % 2]), off[x]))
            if half: S("s_mov_b64 exec, -1")
        out.append(dict(issue=issue, write=write, reads=reads if it == n - 1 else None))
    return out


def chain_load(A, K, L):
    S = Seq(A)
    qkv_setup(S)
    R0, R1, R2, RW = 4, 5, 6, 7
    B0, B1 = K.L_W + 81920, K.L_W
    S("s_lshl_b32 s27, s21, 13"); S("s_add_u32 s28, s27, %d" % B0); S("v_add_u32 v%d, s28, v0" % R0); S("s_add_u32 s28, s27, %d" % B1); S("v_add_u32 v%d, s28, v0" % R1)
    S("s_lshl_b32 s27, s21, 12"); S("v_add_u32 v%d, s27, v0" % R2)
    S("s_mul_i32 s27, s21, 20480"); S("s_add_u32 s27, s27, %d" % K.L_W); S("v_add_u32 v%d, s27, v0" % RW)
    S("s_mul_i32 s48, s20, 10"); S("s_and_b32 s27, s21, 1"); S("s_add_u32 s49, s27, 10"); S("s_sub_u32 s49, s49, s48"); S("s_add_u32 s48, s48, s27")
    rounds = wo_rounds(S, True, K.L_W, [(K.WO[T, u // 2] + 4 * (u % 2), RW, T * 4096 + u * 1024) for T in range(5) for u in range(4)])
    units = {}
    for i, (m, tl, rem, t) in enumerate(K.SEQ): units.setdefault((m, rem, t), {})[tl] = i
    pure = [u for u, d in units.items() if not any(i in K.LDSI for i in d.values())]
    mixed = [u for u in units if u not in pure]
    if len(pure) % 2: mixed.insert(0, pure.pop())
    assert len(mixed) % 2 == 0
    def issue_pair(st, ua, ub, tch=False):
        S("s_cmp_lt_u32 s21, 2")
        S("s_cselect_b32 s26, s%d, s%d" % (48 + ua[1], 48 + ub[1])); S("s_cselect_b32 s27, %d, %d" % (2 * ua[2], 2 * ub[2]));
        S("s_cselect_b64 s[88:89], s[%d:%d], s[%d:%d]" % (SRD[K.MATS[ua[0]]], SRD[K.MATS[ua[0]]] + 1, SRD[K.MATS[ub[0]]], SRD[K.MATS[ub[0]]] + 1))
        S("s_add_u32 s26, s26, s27")
        if tch is True: stouch(S, 88, "s26")
        elif tch is not False: vtouch(S, "s[88:91]", "s26", tch)
        else: qkv_issue(S, st, "s[88:91]", "s26")
    S("s_mov_b32 s90, %d" % SZ_W); S("s_mov_b32 s91, 0x00020000")
    for r in range(len(pure) // 2):
        ua, ub = pure[2 * r], pure[2 * r + 1]
        def write(st, r=r):
            S("s_lshl_b32 s27, s21, 11"); S("s_add_u32 s27, s27, %d" % (B0, B1)[r % 2]); S("v_add_u32 v%d, s27, v0" % WA)
            for x in range(8):
                perm(S, st, x, PO[x % 2]); S("ds_write_b128 v%d, %s offset:%d" % (WA, r4(PO[x % 2]), (x // 2) * 8192 + (x % 2) * 1024))
        rounds.append(dict(issue=lambda st, ua=ua, ub=ub: issue_pair(st, ua, ub), touch=lambda ua=ua, ub=ub: issue_pair(0, ua, ub, True), help=lambda cl, ua=ua, ub=ub: issue_pair(0, ua, ub, cl), write=write,
                           reads=[(K.WREG[units[(ua, ub)[tk // 2]][tl]] + 4 * (tk % 2), (R0, R1)[r % 2], tk * 2048 + tl * 1024) for tk in range(4) for tl in range(2)]))
    for r in range(len(mixed) // 2):
        ua, ub = mixed[2 * r], mixed[2 * r + 1]
        assert all(sum(i not in K.LDSI for i in units[u].values()) <= 1 for u in (ua, ub))
        def write(st, ua=ua, ub=ub):
            S("s_and_b32 s28, s21, 1"); S("s_lshl_b32 s28, s28, 10")
            for tl in range(2):
                pr = []
                for k_, u in enumerate((ua, ub)):
                    i = units[u][tl]
                    pr.append((K.L_W + K.LDSI.index(i) * 2048, K.LW_WAVE) if i in K.LDSI else (k_ * 2048, 4096))
                S("s_mov_b32 s29, %d" % pr[1][0]); S("s_mov_b32 s30, %d" % pr[1][1])
                S("s_cmp_lt_u32 s21, 2"); S("s_cselect_b32 s29, %d, s29" % pr[0][0]); S("s_cselect_b32 s30, %d, s30" % pr[0][1]); S("s_add_u32 s29, s29, s28")
                for dw in range(4):
                    x = 2 * dw + tl
                    S("v_add_u32 v%d, s29, v0" % (WA + dw % 2)); S("s_add_u32 s29, s29, s30")
                    perm(S, st, x, PO[dw % 2]); S("ds_write_b128 v%d, %s" % (WA + dw % 2, r4(PO[dw % 2])))
        rd = []
        for k_, u in enumerate((ua, ub)):
            for tl in range(2):
                i = units[u][tl]
                if i not in K.LDSI: rd += [(K.WREG[i] + 4 * hf, R2, k_ * 2048 + hf * 1024) for hf in range(2)]
        rounds.append(dict(issue=lambda st, ua=ua, ub=ub: issue_pair(st, ua, ub), touch=lambda ua=ua, ub=ub: issue_pair(0, ua, ub, True), help=lambda cl, ua=ua, ub=ub: issue_pair(0, ua, ub, cl), write=write, reads=rd, pre=True))
    run(S, rounds, (lambda: code_pf(A, L("lw_done"), L("c_slow"))) if _arg("CP2", 1) else None)


def bulk_load(A, L, breg):
    S = Seq(A)
    qkv_setup(S)
    R0, R1, RW = 4, 5, 7
    S("s_lshl_b32 s27, s21, 13"); S("v_add_u32 v%d, s27, v0" % R0); S("v_add_u32 v%d, 32768, v%d" % (R1, R0))
    S("s_cmp_eq_u32 s20, 2"); S("s_cbranch_scc1 %s" % L("bl_kv"))
    S("s_mul_i32 s27, s21, 40960"); S("v_add_u32 v%d, s27, v0" % RW)
    run(S, wo_rounds(S, False, 0, [(breg(40 + f), RW, f * 1024) for f in range(40)]))
    S("s_barrier")
    run(S, plain_rounds(S, "s[72:75]", lambda tl, ks: breg(tl * 20 + ks), [0, 32768], [R0, R1]))
    S("s_branch %s" % L("lw_done"))
    A.label(L("bl_kv"))
    S = Seq(A)
    run(S, plain_rounds(S, "s[76:79]", lambda tl, ks: breg(tl * 20 + ks), [0, 32768], [R0, R1]) +
        plain_rounds(S, "s[80:83]", lambda tl, ks: breg(40 + tl * 20 + ks), [32768, 0], [R1, R0]),
        (lambda: (code_pf(A, L("lw_done"), L("role_ok")), code_pf(A, L("bulk"), L("qao")))) if _arg("CP2", 1) else None)
```

```python
from asmlib import *
from layout import *
from seq import *
import k_chain
from k_chain import chain_body, f2u, C1, SPIN_MAX, OOB, L_FL
from k_load import chain_load, bulk_load
from k_tab import lane_setup, t1_frag, t2_frag, wt_task
from k_ln import ln_body
from k_b import fft1, fft2, idft, idft_table, idft_deferred

GMAP = 0x76524130


def breg(i):
    return 256 + 4 * i if i < 64 else 192 + 4 * (i - 64)


def main_kernel(P):
    name = "interleave_layers__memory_aug_recurrent_mem_tr__spectral_gfnet__prompt_kernel"
    k = Kernel(name, 256, 256, 163840, 256, 256, sgpr=102)
    A = k.asm
    L = lambda x: "M_%s" % x

    GM = [(GMAP, 0x0a), (0x76543120, 0x08), (0x76542130, 0x02), (0x76521403, 0x05), (0x41307652, 0xa0), (0x14037652, 0x50), (0x43527160, 0x0a), (0x54231706, 0x05), (0x25431706, 0x05), (0x76251403, 0x05), (0x27651403, 0x05), (0x54321706, 0x05), (0x17065432, 0x50), (0x54327160, 0x0a), (0x71605432, 0xa0)][P.get("GM", 11)]
    def ht2(i):
        if P.get("HT", 0) >= 2: ht(i, True)
    def hb(i, flush=False):
        if P.get("HT", 0) != 4: return
        lab = A.newlabel(L("hb"))
        A("s_xor_b32 s6, s84, 1"); A("s_or_b32 s6, s6, s83"); A("s_cmp_lg_u32 s6, 0"); A("s_cbranch_scc1 %s" % lab)
        A("s_memrealtime s[6:7]"); A("s_waitcnt lgkmcnt(0)"); A("s_lshl_b32 s6, s6, 4"); A("s_or_b32 s6, s6, %d" % (i & 15))
        A("v_writelane_b32 v188, s6, %d" % i)
        if flush:
            A("s_add_u32 s7, s82, 2"); A("s_lshl_b32 s7, s7, 8"); A("s_add_u32 s7, s7, %d" % (WS_DBG + (4 << 20) + 128)); A("v_mbcnt_lo_u32_b32 v189, -1, 0"); A("v_lshlrev_b32 v189, 2, v189")
            A("s_mov_b64 exec, 0x%x" % ((1 << (i + 1)) - 1)); A("buffer_store_dword v188, v189, s[8:11], s7 offen"); A("s_mov_b64 exec, -1")
        A.label(lab)
    def hq(i):
        if P.get("HT", 0) != 3: return
        lab = A.newlabel(L("hq"))
        A("s_or_b32 s6, s21, s22"); A("s_cmp_lg_u32 s6, 0"); A("s_cbranch_scc1 %s" % lab); A("s_cmp_lt_u32 s44, 59"); A("s_cbranch_scc1 %s" % lab)
        A("s_memrealtime s[6:7]"); A("s_waitcnt lgkmcnt(0)")
        A("s_lshl_b32 s7, s20, 8"); A("s_add_u32 s7, s7, s5"); A("s_add_u32 s5, s5, 4"); A("s_add_u32 s7, s7, %d" % (WS_DBG + (4 << 20)))
        A("s_lshl_b32 s6, s6, 4"); A("s_or_b32 s6, s6, %d" % i)
        A("v_writelane_b32 v188, s6, %d" % i); A("v_writelane_b32 v189, s7, %d" % i)
        if i == 15: A("s_mov_b64 exec, 0xffe1"); A("buffer_store_dword v188, v189, s[8:11], 0 offen"); A("s_mov_b64 exec, -1")
        A.label(lab)
    def ht(i, saved=False):
        if P.get("HD") and not saved:
            lab = A.newlabel(L("hd"))
            A("s_or_b32 s6, s21, s22"); A("s_and_b32 s7, s20, 3"); A("s_or_b32 s6, s6, s7"); A("s_cmp_lg_u32 s6, 0"); A("s_cbranch_scc1 %s" % lab)
            if i == 0: A("s_mov_b32 s6, s96")
            else: A("s_memrealtime s[6:7]"); A("s_waitcnt lgkmcnt(0)")
            A("s_lshl_b32 s7, s20, 2"); A("s_add_u32 s7, s7, s5"); A("s_add_u32 s5, s5, 2"); A("s_add_u32 s7, s7, %d" % 36)
            A("s_cmp_ge_u32 s7, 60"); A("s_cselect_b32 s7, 50, s7")
            A("s_mov_b64 exec, 1"); A("v_mov_b32 v10, s6"); A("v_mov_b32 v11, 0"); A("buffer_store_short v10, v11, s[12:15], s7 offen"); A("s_waitcnt vmcnt(0)"); A("s_mov_b64 exec, -1")
            A.label(lab); return
        if not P.get("HT"): return
        lab = A.newlabel(L("ht"))
        if saved:
            A("s_or_b32 s6, s83, s84"); A("s_cmp_lg_u32 s6, 0"); A("s_cbranch_scc1 %s" % lab)
            A("s_memrealtime s[6:7]"); A("s_waitcnt lgkmcnt(0)")
            A("s_add_u32 s7, s82, 2"); A("s_lshl_b32 s7, s7, 8"); A("s_add_u32 s7, s7, s5"); A("s_add_u32 s5, s5, 4"); A("s_add_u32 s7, s7, %d" % (WS_DBG + (4 << 20)))
            A("s_lshl_b32 s6, s6, 4"); A("s_or_b32 s6, s6, %d" % i)
            A("s_mov_b64 exec, 1"); A("v_mov_b32 v190, s6"); A("v_mov_b32 v191, 0"); A("buffer_store_dword v190, v191, s[8:11], s7 offen"); A("s_mov_b64 exec, -1")
            A.label(lab); return
        A("s_or_b32 s6, s21, s22"); A("s_cmp_lg_u32 s6, 0"); A("s_cbranch_scc1 %s" % lab)
        A("s_memrealtime s[6:7]"); A("s_waitcnt lgkmcnt(0)")
        A("s_lshl_b32 s7, s20, 8"); A("s_add_u32 s7, s7, s5"); A("s_add_u32 s5, s5, 4"); A("s_add_u32 s7, s7, %d" % (WS_DBG + (4 << 20)))
        A("s_lshl_b32 s6, s6, 4"); A("s_or_b32 s6, s6, %d" % i)
        A("s_mov_b64 exec, 1"); A("v_mov_b32 v10, s6"); A("v_mov_b32 v11, 0"); A("buffer_store_dword v10, v11, s[8:11], s7 offen"); A("s_waitcnt vmcnt(0)"); A("s_mov_b64 exec, -1")
        A.label(lab)

    ool = []
    def flush_ool():
        for lab, grp in ool:
            A.label(lab)
            for t_ in grp: A(t_)
            A("s_branch %s_r" % lab)
        del ool[:]

    def lst(op, E=None):
        E = E or A
        l1 = A.newlabel(L("ls"))
        E("s_cmp_lg_u32 s23, 0"); E("s_cbranch_scc1 %s" % l1)
        for o in op: E(o)
        A.label(l1 + "_r")
        ool.append((l1, ["s_nop 7"] + [o + " sc1" if o.startswith("buffer_store") else o for o in op]))

    A("s_cmp_ge_u32 s2, 256"); A("s_cbranch_scc1 %s" % L("end"))
    if P.get("EXIT"): A("s_branch %s" % L("end"))
    if P.get("HD"): A("s_memrealtime s[96:97]")
    load_srd(A, 16, KA_X, SZ_X); load_srd(A, 8, KA_WS, SZ_WS); load_srd(A, 12, KA_DBG, 256)
    for b_, ka in ((72, KA_WQ), (76, KA_WK), (80, KA_WV), (84, KA_WO), (68, KA_MEM0)): load_srd(A, b_, ka, 0)
    A("s_getreg_b32 s24, hwreg(HW_REG_XCC_ID)"); A("s_and_b32 s24, s24, 7")
    if P.get("CPF", 1):
        A("s_getpc_b64 s[26:27]")
        A.label(L("cpf"))
        A("s_lshr_b32 s28, s2, 3"); A("s_lshl_b32 s28, s28, 8"); A("v_add_u32 v13, s28, v0"); A("v_lshlrev_b32 v13, 6, v13")
        A("v_cmp_gt_u32 vcc, %s - %s, v13" % (L("end"), L("cpf"))); A("s_and_saveexec_b64 s[28:29], vcc"); A("s_cbranch_execz %s" % L("cpfd"))
        A("global_load_dword v14, v13, s[26:27]")
        A.label(L("cpfd"))
        A("s_mov_b64 exec, s[28:29]")
    A("v_lshrrev_b32 v12, 6, v0"); A("v_and_b32 v0, 63, v0"); A("v_readfirstlane_b32 s21, v12")
    A("v_lshlrev_b32 v0, 4, v0")
    A("s_waitcnt lgkmcnt(0)")
    fin_srd(A, 8, SZ_WS); fin_srd(A, 12, 256); fin_srd(A, 16, SZ_X)
    for b_, sz in ((72, SZ_W), (76, SZ_W), (80, SZ_W), (84, SZ_W), (68, SZ_MEM0)): fin_srd(A, b_, sz)
    A("s_mov_b32 s5, 0"); A("s_mov_b32 s101, 0")
    A("s_cmp_eq_u32 s21, 0"); A("s_cbranch_scc1 %s" % L("tick"))
    A("s_cmp_eq_u32 s21, 3"); A("s_cbranch_scc1 %s" % L("zero"))
    for q in range(4): A("v_mov_b32 v%d, -1" % (28 + q))
    A("s_lshl_b32 s26, s2, 1"); A("s_add_u32 s26, s26, s21"); A("s_lshl_b32 s26, s26, 12"); A("s_add_u32 s26, s26, %d" % (WS_FILL - 4096))
    for q in range(4): A("buffer_store_dwordx4 v[28:31], v0, s[8:11], s26 offen offset:%d sc1" % (1024 * q))
    A("s_branch %s" % L("notick"))
    A.label(L("zero"))
    for q in range(4): A("v_mov_b32 v%d, 0" % (28 + q))
    A("s_lshl_b32 s26, s2, 10"); A("s_add_u32 s26, s26, %d" % WS_ZERO)
    A("buffer_store_dwordx4 v[28:31], v0, s[8:11], s26 offen sc1")
    A("s_cmp_ge_u32 s2, 10"); A("s_cbranch_scc1 %s" % L("notick"))
    A("v_bfe_u32 v6, v0, 4, 3"); A("v_mul_u32_u24 v6, 1280, v6"); A("v_lshrrev_b32 v7, 8, v0"); A("v_lshl_add_u32 v6, v7, 5, v6"); A("v_bfe_u32 v7, v0, 7, 1"); A("v_lshl_add_u32 v6, v7, 2, v6")
    A("s_lshl_b32 s26, s2, 7")
    for n in range(4): A("buffer_load_dword v%d, v6, s[68:71], s26 offen offset:%d" % (32 + n, 8 * n))
    A("v_and_b32 v7, 0x200, v0")
    for src, dst in ((6, 8), (4, 7), (5, 6), (8, 5), (7, 4)):
        A("v_bfe_u32 v12, v0, %d, 1" % src); A("v_lshl_or_b32 v7, v12, %d, v7" % dst)
    A("s_lshl_b32 s26, s2, 10"); A("s_add_u32 s26, s26, %d" % WS_M0); A("s_waitcnt vmcnt(0)")
    for n in range(4): A("v_min_u32 v%d, -2, v%d" % (32 + n, 32 + n))
    A("buffer_store_dwordx4 v[32:35], v7, s[8:11], s26 offen sc1")
    A("s_branch %s" % L("notick"))
    A.label(L("tick"))
    A("s_lshr_b32 s25, %d, s24" % GM[1]); A("s_and_b32 s25, s25, 1"); A("s_cmp_lg_u32 s25, 1"); A("s_cbranch_scc1 %s" % L("nocal"))
    A("s_bfe_u32 s25, s2, 0x20003"); A("s_lshl_b32 s26, s25, 13"); A("s_lshr_b32 s27, s2, 5"); A("s_lshl_b32 s27, s27, 15"); A("s_add_u32 s26, s26, s27")
    A("s_lshl_b32 s27, s24, 8"); A("s_add_u32 s26, s26, s27"); A("s_add_u32 s26, s26, %d" % WS_MR)
    for q in range(4): A("v_mov_b32 v%d, -1" % (28 + q))
    A("s_mov_b64 exec, 0xff"); A("s_mov_b32 s27, -1"); A("s_waitcnt vmcnt(0)")
    for rep in range(4):
        A("s_memtime s[28:29]"); A("buffer_store_dwordx4 v[28:31], v0, s[8:11], s26 offen sc1"); A("s_waitcnt vmcnt(0)"); A("s_memtime s[30:31]")
        A("s_waitcnt lgkmcnt(0)"); A("s_sub_u32 s28, s30, s28"); A("s_min_u32 s27, s27, s28")
    A("s_mov_b64 exec, 1"); A("s_min_u32 s27, s27, 0xffff"); A("s_sub_u32 s27, 0x10000, s27"); A("s_lshl_b32 s27, s27, 2"); A("s_or_b32 s27, s27, s25"); A("v_mov_b32 v28, s27"); A("v_mov_b32 v29, 60")
    A("buffer_atomic_umax v28, v29, s[12:15], 0 offen")
    A.label(L("nocal"))
    A("s_mov_b64 exec, 1")
    A("v_mov_b32 v28, 1"); A("s_lshl_b32 s25, s24, 2"); A("v_mov_b32 v29, s25")
    A("buffer_atomic_add v28, v29, s[12:15], 0 offen sc0")
    A("s_mov_b64 exec, -1")
    A.label(L("notick"))
    A("s_lshl_b32 s20, s24, 2"); A("s_lshr_b32 s20, 0x%x, s20" % GM[0]); A("s_and_b32 s20, s20, 7")
    NPF = P.get("NPF", 0)
    A("s_waitcnt vmcnt(%d)" % NPF)
    A("s_cmp_lg_u32 s21, 0"); A("s_cbranch_scc1 %s" % L("notick2"))
    A("s_mov_b64 exec, 1"); A("v_mov_b32 v29, %d" % L_FL); A("ds_write_b32 v29, v28"); A("s_waitcnt lgkmcnt(0)"); A("s_mov_b64 exec, -1")
    A.label(L("notick2"))
    A("s_barrier")
    A("s_cmp_lg_u32 s21, 0"); A("s_cbranch_scc1 %s" % L("noarr"))
    A("s_mov_b64 exec, 1"); A("v_mov_b32 v30, 1"); A("v_mov_b32 v29, 32"); A("buffer_atomic_add v30, v29, s[12:15], 0 offen"); A("s_mov_b64 exec, -1")
    A.label(L("noarr"))
    A("v_mov_b32 v29, %d" % L_FL); A("ds_read_b32 v28, v29"); A("s_waitcnt lgkmcnt(0)"); A("v_readfirstlane_b32 s25, v28")
    A("s_and_b32 s22, s25, 31")
    A("s_mov_b32 s23, 0"); A("s_mov_b32 s32, 0")
    ht(0)
    A("s_cmp_ge_u32 s20, 3"); A("s_cbranch_scc1 %s" % L("lw_done"))
    A.label(L("loadw"))
    A("s_barrier")
    A("s_cmp_lt_u32 s20, 2"); A("s_cbranch_scc1 %s" % L("lw_chain"))
    A("s_cmp_lt_u32 s20, 4"); A("s_cbranch_scc1 %s" % L("lw_bulk"))
    A("s_lshl_b32 s34, s22, 2"); A("s_add_u32 s34, s34, s20"); A("s_sub_u32 s34, s34, 4"); A("s_mov_b32 s92, s33"); A("s_mov_b32 s33, s21")
    lane_setup(A); ln_body(A, "s34", 16, 0, WS_XNF, False, "", lambda st: [A(t_ + " sc1") for t_ in st])
    A("s_mov_b32 s33, s92"); A("s_waitcnt vmcnt(0)"); A("s_barrier")
    A("s_cmp_lg_u32 s21, 0"); A("s_cbranch_scc1 %s" % L("lw_bulk"))
    A("s_lshr_b32 s27, s34, 1"); A("s_lshl_b32 s27, s27, 7"); A("s_and_b32 s28, s34, 1"); A("s_mul_i32 s28, s28, 20"); A("s_add_u32 s27, s27, s28"); A("s_add_u32 s27, s27, %d" % WS_XFL)
    A("v_lshrrev_b32 v12, 2, v0"); A("v_mov_b32 v13, 1"); A("s_mov_b64 exec, 31"); A("buffer_store_dword v13, v12, s[8:11], s27 offen sc1"); A("s_mov_b64 exec, -1")
    A.label(L("lw_bulk"))
    bulk_load(A, L, breg)
    A("s_branch %s" % L("lw_done"))
    A.label(L("lw_chain"))
    if P.get("HALF"): A("s_cmp_ge_u32 s22, %d" % P["HALF"]); A("s_cbranch_scc1 %s" % L("lw_done"))
    chain_load(A, k_chain, L)
    A.label(L("lw_done"))
    A("s_cmp_lg_u32 s32, 0"); A("s_cbranch_scc1 %s" % L("role_ok"))
    A("s_mov_b32 s32, 1"); A("s_mov_b32 s30, 0")
    A("v_bfe_u32 v12, v0, 4, 4"); A("v_lshlrev_b32 v12, 2, v12")
    A.label(L("modepoll"))
    A("buffer_load_dword v13, v12, s[12:15], 0 offen sc1"); A("s_waitcnt vmcnt(0)")
    A("v_readlane_b32 s31, v13, 8")
    A("s_cmp_eq_u32 s31, 256"); A("s_cbranch_scc1 %s" % L("modegot"))
    A("s_sleep 2")
    A("s_add_u32 s30, s30, 1"); A("s_cmp_lt_u32 s30, %d" % SPIN_MAX); A("s_cbranch_scc1 %s" % L("modepoll"))
    A("s_branch %s" % L("fail"))
    A.label(L("modegot"))
    A("s_cmp_eq_u32 s30, 0"); A("s_cbranch_scc1 %s" % L("moderd"))
    A("buffer_load_dword v13, v12, s[12:15], 0 offen sc1"); A("s_waitcnt vmcnt(0)")
    A.label(L("moderd"))
    A("v_readlane_b32 s33, v13, 15"); A("s_nop 0"); A("s_and_b32 s33, s33, 3"); A("s_lshl_b32 s33, s33, 13")
    A("s_xor_b32 s33, s33, %d" % (0x4000 ^ (P.get("PG", 0) << 13)))
    A("v_cmp_ne_u32 vcc, 32, v13"); A("s_and_b32 s31, vcc_lo, 0xff")
    if P.get("FORCE_SLOW"): A("s_mov_b32 s31, 1")
    A("s_cmp_lg_u32 s31, 0"); A("s_cbranch_scc1 %s" % L("slowm"))
    A("s_cmp_ge_u32 s20, 3"); A("s_cbranch_scc1 %s" % L("loadw")); A("s_branch %s" % L("role_ok"))
    A.label(L("slowm"))
    A("s_mov_b32 s23, 1"); A("s_mov_b32 s31, s25")
    for x in range(7):
        A("v_readlane_b32 s30, v13, %d" % x); A("s_cmp_gt_u32 s24, %d" % x); A("s_cselect_b32 s30, s30, 0"); A("s_add_u32 s31, s31, s30")
    if P.get("FORCE_SLOW"):
        A("s_and_b32 s20, s31, 7"); A("s_lshr_b32 s22, s31, 3")
    else:
        A("s_lshr_b32 s20, s31, 5"); A("s_and_b32 s22, s31, 31")
    A("s_and_b32 s20, s20, 7"); A("s_and_b32 s22, s22, 31")
    A("s_branch %s" % L("loadw"))
    A.label(L("role_ok"))
    A("s_mov_b32 s25, s33")
    A("s_cmp_ge_u32 s20, 2"); A("s_cbranch_scc1 %s" % L("bulk"))
    chain_body(A, P, L, ht)
    if P.get("CF", 1):
        A.label(L("c_fft"))
        A("s_lshr_b32 s72, s44, 6"); A("s_sub_u32 s72, s72, 1")
        def cpoll(stage):
            ld = A.newlabel(L("cp")); lp = A.newlabel(L("cp"))
            A("s_cmp_lg_u32 s21, 0"); A("s_cbranch_scc1 %s" % ld)
            A("v_and_b32 v84, 7, v12"); A("v_lshlrev_b32 v84, 12, v84"); A("v_bfe_u32 v85, v12, 3, 1"); A("v_mul_u32_u24 v85, 1280, v85"); A("v_add_u32 v84, v84, v85")
            A("s_mov_b64 exec, 0x1f1f"); A("s_lshr_b32 s31, s73, 5"); A("s_lshl_b32 s31, s31, 7"); A("s_add_u32 s31, s31, %d" % WS_DFL); A("s_lshl_b32 s29, s72, 2"); A("s_add_u32 s29, s29, %d" % (stage + 1)); A("s_mov_b32 s30, 0")
            A.label(lp)
            A("buffer_load_dword v85, v84, s[8:11], s31 offen sc1")
            A("s_add_u32 s30, s30, 1"); A("s_cmp_ge_u32 s30, %d" % (SPIN_MAX * 4)); A("s_cbranch_scc1 %s" % L("fail"))
            A("s_sleep %d" % (4 if stage == 1 else 1))
            A("s_waitcnt vmcnt(0)"); A("v_cmp_gt_u32 vcc, s29, v85"); A("s_cbranch_vccnz %s" % lp)
            A("s_mov_b64 exec, -1")
            A.label(ld)
            A("s_barrier")
        fft1(A, L, cpoll)
        A("s_waitcnt vmcnt(0)"); A("s_barrier")
        A("s_cmp_lg_u32 s21, 0"); A("s_cbranch_scc1 %s" % L("c_fd"))
        A("s_lshl_b32 s28, s72, 13"); A("s_add_u32 s28, s28, %d" % (WS_BAR2 + 4096 + 6 * 128)); A("s_lshl_b32 s27, s20, 7"); A("s_add_u32 s28, s28, s27")
        A("s_mov_b64 exec, 1"); A("v_mov_b32 v84, s22"); A("v_mov_b32 v85, 1")
        lst(["buffer_store_byte v85, v84, s[8:11], s28 offen"])
        A("s_cmp_lg_u32 s22, 31"); A("s_cbranch_scc1 %s" % L("c_fe"))
        A("s_mov_b64 exec, 0xff"); A("s_mov_b32 s30, 0")
        A.label(L("c_fl"))
        A("buffer_load_dword v85, v13, s[8:11], s28 offen sc1")
        A("s_add_u32 s30, s30, 1"); A("s_cmp_ge_u32 s30, %d" % (SPIN_MAX * 4)); A("s_cbranch_scc1 %s" % L("fail"))
        A("s_waitcnt vmcnt(0)"); A("v_cmp_ne_u32 vcc, 0x01010101, v85"); A("s_cbranch_vccnz %s" % L("c_fl"))
        A("s_mov_b64 exec, 1"); A("v_mov_b32 v85, 1"); A("buffer_store_dword v85, v13, s[8:11], s28 offen offset:1024 sc1")
        A.label(L("c_fe"))
        A("s_mov_b64 exec, -1")
        A.label(L("c_fd"))
        A("s_cmp_eq_u32 s44, 128"); A("s_cbranch_scc1 %s" % L("end"))
        A("s_branch %s" % L("c_disp"))

    def mf32(S, acc, a_, b_, c): S("v_mfma_f32_16x16x32_bf16 %s, %s, %s, %s" % (r4(acc), ureg(a_, 4), ureg(b_, 4), c if isinstance(c, str) else r4(c)))
    def mf16(S, acc, a_, b_, c): S("v_mfma_f32_16x16x16_bf16 %s, %s, %s, %s" % (r4(acc), r2(a_), r2(b_), c if isinstance(c, str) else r4(c)))
    def rd(S, dst, areg, off): return S("ds_read_b128 %s, v%d offset:%d" % (r4(dst), areg, off))

    def x_dma(S, seg_s, slot_s, loc=False):
        S("s_min_u32 s27, %s, 63" % seg_s); S("s_mul_i32 s27, s27, 40960"); S("s_add_u32 s27, s27, s47")
        if loc: S("s_cmp_lt_u32 %s, 4" % seg_s); S("s_cselect_b32 s28, s53, 0"); S("s_add_u32 s27, s27, s28")
        S("s_add_u32 s28, %s, s42" % slot_s)
        for f in range(10):
            if f % 4 == 0:
                if f: S("s_add_u32 s27, s27, 4096"); S("s_add_u32 s28, s28, 4096")
                S("s_mov_b32 m0, s28")
            S("buffer_load_dwordx4 v0, s[8:11], s27 offen offset:%d sc1 lds" % ((f % 4) * 1024))

    def proj(S, areg, acc, XB, tr=False, mid=None):
        NB = len(XB)
        seq = [(mt, ks) for mt in range(2) for ks in range(20)]
        for i in range(NB - 1): rd(S, XB[i], areg, i * 1024)
        for i, (mt, ks) in enumerate(seq):
            if mid and i == 22: mid(S)
            if i + NB - 1 < 40: rd(S, XB[(i + NB - 1) % NB], areg, (i + NB - 1) * 1024)
            for tl in range(2):
                a = acc + 8 * mt + 4 * tl
                if tr: mf32(S, a, XB[i % NB], breg(tl * 20 + ks), "0" if ks == 0 else a)
                else: mf32(S, a, breg(tl * 20 + ks), XB[i % NB], "0" if ks == 0 else a)

    def xpoll(S, mask, tag, sleep=4):
        ld = A.newlabel(L(tag)); lp = A.newlabel(L(tag)); le = A.newlabel(L(tag))
        A("s_cmp_lg_u32 s21, 0"); A("s_cbranch_scc1 %s" % ld)
        A("v_lshlrev_b32 v190, 3, v0"); A("s_mov_b64 exec, %s" % mask); A("s_mov_b32 s30, 0"); A("s_lshl_b32 s27, s101, 13"); A("s_add_u32 s27, s27, %d" % WS_XFL)
        A.label(lp)
        A("buffer_load_dwordx4 v[176:179], v190, s[8:11], s27 offen sc1"); A("buffer_load_dwordx4 v[180:183], v190, s[8:11], s27 offen offset:16 sc1"); A("buffer_load_dwordx2 v[184:185], v190, s[8:11], s27 offen offset:32 sc1")
        A("s_add_u32 s30, s30, 1"); A("s_cmp_ge_u32 s30, %d" % SPIN_MAX); A("s_cbranch_scc1 %s" % L("fail"))
        A("s_waitcnt vmcnt(0)")
        for i in range(177, 185, 2): A("v_min3_u32 v176, v176, v%d, v%d" % (i, i + 1))
        A("v_min_u32 v176, v176, v185"); A("v_cmp_eq_u32 vcc, 0, v176"); A("s_cbranch_vccz %s" % (lp + "d")); A("s_sleep %d" % sleep); A("s_branch %s" % lp)
        A.label(lp + "d")
        A("s_mov_b64 exec, -1")
        A.label(ld)
        A("s_barrier")
        A.label(le)

    def poll(S, addr_s, lanes, cmp_ins, tag, sleep=1, sh="v_lshrrev_b32 v190, 2, v0"):
        ld = A.newlabel(L(tag)); lp = A.newlabel(L(tag))
        S("s_cmp_lg_u32 s21, 0"); S("s_cbranch_scc1 %s" % ld)
        A("s_mov_b64 exec, 0x%x" % lanes); A("s_mov_b32 s30, 0"); A(sh)
        A.label(lp)
        A("buffer_load_dword v191, v190, s[8:11], %s offen sc1" % addr_s)
        A("s_add_u32 s30, s30, 1"); A("s_cmp_ge_u32 s30, %d" % SPIN_MAX); A("s_cbranch_scc1 %s" % L("fail"))
        A("s_waitcnt vmcnt(0)"); A(cmp_ins); A("s_cbranch_vccz %s" % (lp + "d"))
        if sleep: A("s_sleep %d" % sleep)
        A("s_branch %s" % lp)
        A.label(lp + "d")
        A("s_mov_b64 exec, -1")
        A.label(ld)
        S("s_barrier")

    A.label(L("bulk"))
    A("s_waitcnt vmcnt(0)"); A("s_barrier")
    ht(1)
    A("s_mul_i32 s42, s21, 10240"); A("s_mul_i32 s47, s101, %d" % XNF_LAYER); A("s_add_u32 s47, s47, s42"); A("s_add_u32 s47, s47, %d" % WS_XNF)
    A("s_mul_i32 s50, s101, %d" % KV_LAYER); A("s_lshl_b32 s27, s22, 13"); A("s_add_u32 s50, s50, s27"); A("s_add_u32 s50, s50, %d" % WS_KXF)
    A("s_lshl_b32 s43, s101, 6")
    A("s_sub_u32 s82, s20, 2"); A("s_mov_b32 s83, s21"); A("s_mov_b32 s84, s22"); A("s_mov_b32 s85, s23")
    A("s_lshl_b32 s87, s82, 5"); A("s_add_u32 s87, s87, s22")
    A("s_mul_i32 s86, s101, %d" % (2 * 4096))
    A("s_mul_i32 s80, s101, %d" % (WS_X3 - WS_X1)); A("s_add_u32 s80, s80, %d" % WS_X1)
    A("s_load_dwordx2 s[98:99], s[0:1], %d" % KA_OUT)
    if P.get("CF", 1): A("s_cmp_ge_u32 s87, 128"); A("s_cselect_b32 s81, 191, s87"); A("s_cmp_eq_u32 s87, 159"); A("s_cselect_b32 s81, 160, s81"); A("s_waitcnt lgkmcnt(0)")
    else: A("s_cmp_eq_u32 s87, 160"); A("s_cselect_b32 s81, 191, s87"); A("s_cmp_eq_u32 s87, 191"); A("s_cselect_b32 s81, 160, s81"); A("s_waitcnt lgkmcnt(0)")
    A("s_mul_i32 s27, s22, 26"); A("s_lshr_b32 s27, s27, 8"); A("s_mul_i32 s28, s27, 10"); A("s_sub_u32 s88, s22, s28")
    A("s_mul_i32 s28, s20, 3"); A("s_sub_u32 s28, s28, %d" % (8 if P.get("RG0", 1) else 9))
    A("s_cmp_lt_u32 s20, 3"); A("s_cselect_b32 s28, %d, s28" % (0 if P.get("RG0", 1) else 15)); A("s_cselect_b32 s29, 1, 3"); A("s_add_u32 s28, s28, s27")
    A("s_lshl_b32 s89, s28, 2"); A("s_add_u32 s89, s89, s21"); A("s_cmp_lt_u32 s27, s29"); A("s_cselect_b32 s89, s89, 64")
    A("s_cmp_ge_u32 s20, 3"); A("s_cbranch_scc1 %s" % L("qao"))
    S = Seq(A)
    S("s_lshl_b32 s28, s21, 11"); S("s_add_u32 s52, s50, s28"); S("s_add_u32 s52, s52, %d" % KV_MAT); S("s_lshl_b32 s28, s21, 10"); S("s_add_u32 s50, s50, s28")
    S("s_lshl_b32 s51, s22, 8"); S("s_add_u32 s51, s51, %d" % WS_KVFL); S("v_lshlrev_b32 v3, 3, v0")
    S("s_cmp_eq_u32 s21, 0"); S("s_cselect_b32 s56, s51, 0x%x" % OOB)
    S("s_mov_b32 s44, 0"); S("s_mov_b32 s45, 0")
    S("s_mul_i32 s53, s101, %d" % (WS_XNL - WS_XNF - XNF_LAYER))
    A("s_cmp_lg_u32 s101, 0"); A("s_cbranch_scc1 %s" % L("kv_l1"))
    xpoll(S, "15", "kx", P.get("KS", 4)); A("s_branch %s" % L("kv_l2"))
    A.label(L("kv_l1"))
    A("s_mov_b32 s54, %d" % WS_LFL); poll(S, "s54", 0x3ff, "v_cmp_ne_u32 vcc, 0x01010101, v191", "kl", sleep=1)
    A.label(L("kv_l2"))
    x_dma(S, "s44", "s45", True)
    A("s_lshl_b32 s55, s89, 7"); A("s_lshl_b32 s27, s88, 2"); A("s_add_u32 s55, s55, s27"); A("s_add_u32 s55, s55, %d" % (WS_XFL + 8192))
    A("s_cmp_lt_u32 s89, 64"); A("s_cselect_b32 s27, s101, 0"); A("s_cmp_lg_u32 s27, 0"); A("s_cselect_b32 s55, s55, 0x%x" % OOB); A("s_cbranch_scc1 %s" % L("kv_d1"))
    A("s_waitcnt vmcnt(0)"); A("s_barrier"); A("s_branch %s" % L("kv_d2"))
    A.label(L("kv_d1"))
    A("s_waitcnt vmcnt(0)"); A("s_barrier"); idft_deferred(A)
    A.label(L("kv_d2"))
    A("v_mov_b32 v6, 1")
    XB = [56 + 4 * i for i in range(5)]
    S("v_mov_b32 v1, v0")
    for i in range(4): rd(S, XB[i], 1, i * 1024)
    A.label(L("kv_top"))
    S = Seq(A); S.nl = 4
    for i in range(4):
        for r_ in range(4): S.lp["v%d" % (XB[i] + r_)] = i + 1
    S("s_add_u32 s27, s44, s43"); S("v_mov_b32 v2, s27")
    S("s_sub_u32 s45, 40960, s45"); S("s_add_u32 s44, s44, 1"); S("v_add_u32 v4, s45, v0")
    dm = []; x_dma(dm.append, "s44", "s45", True)
    def kflag(tag):
        A("s_cmp_lg_u32 s21, 0"); A("s_cbranch_scc1 %s" % L(tag))
        A("s_mov_b64 exec, 3"); A("buffer_store_dword v2, v3, s[8:11], s51 offen sc1"); A("s_mov_b64 exec, -1")
        A.label(L(tag))
    sq = [(mt, ks) for mt in range(2) for ks in range(20)]
    ep = []
    for i, (mt, ks) in enumerate(sq):
        KG, KD, KM_ = P.get("KG", 2), P.get("KDI", 4), P.get("KM", 10)
        if i == KM_:
            S("s_waitcnt vmcnt(%d)" % S.nv); S("s_barrier"); kvn = 0 if dm else 2
            S("s_mov_b64 exec, 3"); S("buffer_store_dword v2, v3, s[8:11], s56 offen sc1"); S("s_mov_b64 exec, 1"); S("buffer_store_dword v6, v0, s[8:11], s55 offen sc1"); S("s_mov_b64 exec, -1"); S("s_mov_b32 s55, 0x%x" % OOB)
        if i % KD == 2 % KD:
            n_ = 0
            while dm and n_ < KG:
                if dm[0].startswith("buffer"): n_ += 1
                S(dm.pop(0))
        if i == 22:
            ep = ["v_cvt_pk_bf16_f32 v%d, v%d, v%d" % (40 + q, 8 + q, 12 + q) for q in range(4)]
            ep += ["v_cvt_pk_bf16_f32 v%d, v%d, v%d" % (48 + 4 * tl + q, 24 + 4 * tl + 2 * q, 25 + 4 * tl + 2 * q) for tl in range(2) for q in range(2)]
        if i == 36: S("s_waitcnt vmcnt(%d)" % kvn); S("s_barrier")
        if i + 4 < 40: rd(S, XB[(i + 4) % 5], 1, (i + 4) * 1024)
        else: rd(S, XB[(i + 4) % 5], 4, (i - 36) * 1024)
        for tl in range(2):
            a_ = 8 + 8 * mt + 4 * tl
            mf32(S, a_, breg(tl * 20 + ks), XB[i % 5], "0" if ks == 0 else a_)
            if ep: S(ep.pop(0))
            mf32(S, a_ + 16, XB[i % 5], breg(40 + tl * 20 + ks), "0" if ks == 0 else a_ + 16)
    assert not dm
    S("s_add_u32 s27, s50, 4096"); S("v_mov_b32 v1, v4")
    S("buffer_store_dwordx4 %s, v0, s[8:11], s50 offen sc1" % r4(40))
    for i in range(4): S("v_cvt_pk_bf16_f32 v%d, v%d, v%d" % (44 + i, 16 + i, 20 + i))
    for tl in range(2):
        for q in range(2): S("v_cvt_pk_bf16_f32 v%d, v%d, v%d" % (50 + 4 * tl + q, 32 + 4 * tl + 2 * q, 33 + 4 * tl + 2 * q))
    S("buffer_store_dwordx4 %s, v0, s[8:11], s27 offen sc1" % r4(44))
    for tl in range(2): S("buffer_store_dwordx4 %s, v0, s[8:11], s52 offen offset:%d sc1" % (r4(48 + 4 * tl), 1024 * tl))
    S("s_add_u32 s50, s50, 262144"); S("s_add_u32 s52, s52, 262144")
    A("s_barrier")
    S("s_cmp_lg_u32 s44, 3"); S("s_cbranch_scc1 %s" % L("kv_np"))
    xpoll(S, "-1", "kx")
    A.label(L("kv_np"))
    S("s_cmp_lt_u32 s44, 64"); S("s_cbranch_scc1 %s" % L("kv_top"))
    A("s_add_u32 s27, s44, s43"); A("v_mov_b32 v2, s27"); A("s_waitcnt vmcnt(0) lgkmcnt(0)"); A("s_barrier"); kflag("kv_f2")
    A("s_branch %s" % L("bphase"))

    LQ_EQ, LQ_EO, LQ_ST, LQ_FT = 81920, 90112, 98304, 122880
    A.label(L("qao"))
    A("s_cmp_lg_u32 s101, 0"); A("s_cbranch_scc1 %s" % L("q_ft"))
    lane_setup(A); A("s_min_u32 s36, s22, 19"); A("s_mul_i32 s36, s36, 40"); A("s_mul_i32 s27, s21, 10"); A("s_add_u32 s36, s36, s27"); A("s_add_u32 s35, s36, 10")
    A("s_add_u32 s27, s42, %d" % LQ_FT); A("v_add_u32 v2, s27, v0")
    A.label(L("q_ftl"))
    t1_frag(A); A("ds_write_b128 v2, v[24:27]"); A("v_add_u32 v2, 1024, v2")
    A("s_add_u32 s36, s36, 1"); A("s_cmp_lt_u32 s36, s35"); A("s_cbranch_scc1 %s" % L("q_ftl"))
    A("s_waitcnt lgkmcnt(0)")
    A.label(L("q_ft"))
    if P.get("MSL"):
        A("s_lshr_b32 s27, %d, s20" % P["MSL"]); A("s_and_b32 s27, s27, 1"); A("s_cbranch_scc0 %s" % L("msl"))
        for _ in range(34): A("s_sleep 127")
        A.label(L("msl"))
    S = Seq(A)
    G, R_, VH, PSX, RLA, RLB, XOA, XOB, THR, XHA, XDA, FTA = 1, 2, 3, 4, 5, 6, 7, 8, 9, 12, 13, 14
    SELR = 16; PSY = 1
    def cvt(d, a_, b_, op="v_cvt_pk_bf16_f32"): S("%s v%d, v%d, v%d" % (op, d, a_, b_))
    S("v_lshrrev_b32 v%d, 8, v0" % G); S("v_bfe_u32 v%d, v0, 4, 4" % R_)
    S("v_add_u32 v%d, %d, v0" % (VH, LQ_EQ)); S("v_add_u32 v%d, %d, v0" % (FTA, LQ_FT))
    S("s_mul_i32 s28, s21, 320")
    S("v_mul_u32_u24 v10, 163840, v%d" % G); S("s_mul_i32 s27, s22, 1280"); S("s_add_u32 s29, s27, s28"); S("v_add_u32 v10, s29, v10")
    S("v_lshl_add_u32 v%d, v%d, 4, v10" % (PSX, R_))
    S("v_mul_u32_u24 v10, 1280, v%d" % G); S("s_mul_i32 s27, s22, 40960"); S("s_add_u32 s27, s27, s28"); S("v_add_u32 v10, s27, v10"); S("v_lshl_add_u32 v%d, v%d, 4, v10" % (RLA, R_))
    S("v_lshrrev_b32 v11, 2, v%d" % R_); S("v_mul_u32_u24 v15, 5120, v11"); S("v_add_u32 v10, v10, v15"); S("v_and_b32 v15, 0x30, v0"); S("v_add_u32 v%d, v10, v15" % RLB)
    S("v_and_b32 v10, 1, v%d" % G); S("v_lshlrev_b32 v10, 3, v10"); S("v_add_u32 v%d, s29, v10" % XOB); S("v_lshl_add_u32 v%d, v%d, 4, v%d" % (XOA, R_, XOB)); S("v_add_u32 v%d, v%d, v15" % (XOB, XOB))
    S("v_lshl_add_u32 v10, v11, 10, v10"); S("v_lshl_add_u32 v10, v15, 4, v10"); S("s_mul_i32 s27, s21, 5120"); S("s_and_b32 s28, s22, 15"); S("s_lshl_b32 s28, s28, 4"); S("s_add_u32 s27, s27, s28")
    S("s_lshr_b32 s28, s22, 4"); S("s_mul_i32 s28, s28, 20480"); S("s_add_u32 s27, s27, s28"); S("v_add_u32 v%d, s27, v10" % XHA)
    S("v_lshlrev_b32 v10, 13, v%d" % R_); S("v_lshl_add_u32 v10, v%d, 4, v10" % G); S("s_lshl_b32 s27, s22, 18"); S("s_lshl_b32 s28, s21, 6"); S("s_add_u32 s27, s27, s28"); S("v_add_u32 v%d, s27, v10" % XDA)
    S("s_and_b32 s58, s21, 1"); S("s_lshr_b32 s59, s21, 1")
    S("v_lshlrev_b32 v10, 2, v%d" % G); S("v_sub_u32 v10, v%d, v10" % R_); S("s_lshl_b32 s27, s58, 4"); S("v_add_u32 v%d, s27, v10" % THR)
    S("v_and_b32 v10, 16, v0"); S("s_movk_i32 s27, 0x3f80"); S("v_lshlrev_b32_e64 v10, v10, s27"); S("v_bfe_u32 v11, v0, 5, 2")
    for q in range(4):
        S("v_cmp_eq_u32 vcc, %d, v11" % q); S("v_cndmask_b32 v%d, 0, v10, vcc" % (SELR + q))
    S("s_mov_b32 s40, 0x%08x" % f2u(C1)); S("s_mov_b32 s41, s40")
    S("s_sub_u32 s44, s20, 4"); S("s_min_u32 s44, s44, 4"); S("s_mov_b32 s45, 0")
    load_srd(A, 72, KA_WR, 0); load_srd(A, 76, KA_WI, 0)
    A("s_mul_i32 s94, s44, 12"); A("s_add_u32 s94, s94, s22"); A("s_sub_u32 s94, s94, 20"); A("s_lshl_b32 s95, s94, 7"); A("s_add_u32 s95, s95, %d" % WS_TFL)
    A("s_lshl_b32 s94, s94, 2"); A("s_add_u32 s94, s94, s21"); A("s_cmp_lg_u32 s101, 0"); A("s_cselect_b32 s94, 5000, s94")
    A("s_waitcnt lgkmcnt(0)"); fin_srd(A, 72, SZ_WF); fin_srd(A, 76, SZ_WF)
    S("s_mul_i32 s48, s44, %d" % (2 * PARTX_SLOT)); S("s_add_u32 s48, s48, %d" % WS_PARTX); S("s_mov_b32 s49, %d" % (0 if P.get("PX1", 1) else PARTX_SLOT))
    S("s_lshl_b32 s51, s44, 13"); S("s_lshl_b32 s27, s101, 12"); S("s_add_u32 s51, s51, s27"); S("s_add_u32 s51, s51, %d" % WS_ARR)
    S("s_lshl_b32 s52, s22, 7"); S("s_lshl_b32 s27, s101, 12"); S("s_add_u32 s52, s52, s27"); S("s_add_u32 s52, s52, %d" % WS_CHFL)
    S("s_lshl_b32 s53, s22, 13"); S("s_add_u32 s53, s53, %d" % WS_KM)
    S("s_mul_i32 s54, s101, %d" % (WS_X3 - WS_X1)); S("s_add_u32 s54, s54, %d" % WS_X1)
    S("s_lshl_b32 s60, s22, 8"); S("s_add_u32 s60, s60, %d" % WS_KVFL)
    S("s_mul_i32 s63, s44, 65536"); S("s_add_u32 s63, s63, %d" % WS_XNH); S("s_add_u32 s64, s63, 4096")
    pat = {0: "", 1: "fffx", 2: "fffffx", 3: "ffffffx", 4: "ffffx", 5: "ffffxfffffx"}[P.get("WS", 5)]
    own = [(sg + 1) % 5 for sg in range(64)]; nf = nx = 0
    for k_, sg in enumerate(range(47, -1, -1) if pat else []):
        if pat[k_ % len(pat)] == "x": own[sg] = 3 + nx % 2; nx += 1
        else: own[sg] = 2 - nf % 3; nf += 1
    for g_ in range(5):
        mk = sum(1 << sg for sg in range(64) if own[sg] == g_)
        S("s_cmp_eq_u32 s20, %d" % (3 + g_)); S("s_cselect_b32 s96, 0x%x, s96" % (mk & 0xffffffff)); S("s_cselect_b32 s97, 0x%x, s97" % (mk >> 32))
    if P.get("SHOW"): print("".join(map(str, own)))
    def advance(E):
        E("s_ff1_i32_b64 s44, s[96:97]"); E("s_bitset0_b64 s[96:97], s44"); E("s_ff1_i32_b64 s69, s[96:97]")
        E("s_sub_u32 s70, s96, 1"); E("s_subb_u32 s71, s97, 0"); E("s_and_b64 s[70:71], s[70:71], s[96:97]"); E("s_ff1_i32_b64 s46, s[70:71]")
    advance(S)
    S("v_mul_u32_u24 v10, 12, v%d" % R_); S("v_sub_u32 v%d, v%d, v10" % (PSY, PSX))
    xpoll(S, "-1", "qx", P.get("XS", 32))
    x_dma(S, "s44", "0"); x_dma(S, "s69", "40960"); S("s_waitcnt vmcnt(0)"); S("s_barrier")
    A("s_mov_b32 s65, 0"); A("s_mov_b32 s66, s44"); A("s_mov_b32 s62, 0x%x" % OOB); A("s_mov_b32 s67, 0x%x" % OOB); A("s_mov_b32 s68, 0x%x" % OOB)
    QF = [160 + 4 * i for i in range(4)]; OO = [144 + 4 * i for i in range(4)]; MX, ZX, TM, M2, AL = 176, 177, 178, 179, 180; RESN = 184; RES = 20
    KF = [72 + 4 * i for i in range(8)]; VF = [104 + 4 * i for i in range(4)]; SA, SB, PB, SM = 120, 124, 128, 48; FLG = 15
    def flag_load(E): E("v_lshlrev_b32 v10, 3, v0"); E("s_mov_b64 exec, 3"); E("buffer_load_dword v%d, v10, s[8:11], s60 offen sc1" % FLG); E("s_mov_b64 exec, -1")
    def flag_get(E): E("v_readlane_b32 s65, v%d, 0" % FLG); E("v_readlane_b32 s27, v%d, 1" % FLG); E("s_nop 3"); E("s_min_u32 s65, s65, s27")
    def xl(reg, op, both=True):
        for sw in ("v_permlane16_swap_b32", "v_permlane32_swap_b32")[:2 if both else 1]:
            S("v_mov_b32 v%d, v%d" % (TM, reg)); S("%s v%d, v%d" % (sw, reg, TM)); S("%s v%d, v%d, v%d" % (op, reg, reg, TM))
    A.label(L("q_front"))
    A("s_add_u32 s56, s66, s43"); A("s_mov_b32 s30, 0")
    A.label(L("q_kf"))
    A("s_cmp_gt_u32 s65, s56"); A("s_cbranch_scc1 %s" % L("q_kg"))
    flag_load(A); A("s_waitcnt vmcnt(0)"); flag_get(A); A("s_cmp_gt_u32 s65, s56"); A("s_cbranch_scc1 %s" % L("q_kg")); A("s_sleep %d" % P.get("QK", 16))
    A("s_add_u32 s30, s30, 1"); A("s_cmp_lt_u32 s30, %d" % SPIN_MAX); A("s_cbranch_scc1 %s" % L("q_kf")); A("s_branch %s" % L("fail"))
    A.label(L("q_kg"))
    S = Seq(A); S("s_nop 1")
    S("s_lshl_b32 s27, s66, 18"); S("s_add_u32 s27, s27, s50"); S("s_add_u32 s28, s27, 4096")
    for i in range(8): S("buffer_load_dwordx4 %s, v0, s[8:11], %s offen offset:%d sc1" % (r4(KF[i]), "s28" if i >= 4 else "s27", 1024 * (i % 4)))
    S("s_lshl_b32 s28, s59, 12"); S("s_add_u32 s27, s27, s28"); S("s_add_u32 s27, s27, %d" % KV_MAT)
    for i in range(4): S("buffer_load_dwordx4 %s, v0, s[8:11], s27 offen offset:%d sc1" % (r4(VF[i]), 1024 * i))
    S("s_mul_i32 s27, s66, 40960")
    S("buffer_load_dwordx2 %s, v%d, s[16:19], s27 offen sc1" % (r2(RESN), XOA)); S("buffer_load_dwordx2 %s, v%d, s[16:19], s27 offen offset:256 sc1" % (r2(RESN + 2), XOB))
    flag_load(S)
    QA = 24
    S("v_add_u32 v11, s45, v0"); S("s_sub_u32 s45, 40960, s45")
    proj(S, 11, QA, [40 + 4 * i for i in range(6)])
    for r in range(QA, QA + 16, 2): S("v_pk_mul_f32 %s, %s, s[40:41]" % (r2(r), r2(r)))
    S("s_lshl_b32 s27, s21, 10"); S("v_add_u32 v10, s27, v%d" % VH)
    for mt in range(2):
        for i in range(4): cvt(40 + 4 * mt + i, QA + 8 * mt + i, QA + 4 + 8 * mt + i)
        S("ds_write_b128 v10, %s offset:%d" % (r4(40 + 4 * mt), mt * 4096))
    S("s_lshl_b32 s27, s58, 12"); S("v_add_u32 v10, s27, v%d" % VH)
    S("s_waitcnt vmcnt(15) lgkmcnt(0)"); S("s_barrier")
    for u in range(4): rd(S, QF[u], 10, 1024 * u)
    def arr_store(tag):
        S("s_cmp_lg_u32 s21, 0"); S("s_cbranch_scc1 %s" % L(tag))
        S("s_mov_b64 exec, 1"); S("v_mov_b32 v10, s22"); S("v_mov_b32 v11, 1")
        lst(["buffer_store_byte v11, v10, s[8:11], s62 offen"])
        S("s_mov_b64 exec, -1")
        A.label(L(tag))
    S("s_waitcnt vmcnt(0)")
    arr_store("q_fa")
    S("v_mov_b32 v11, 0x%08x" % f2u(-1e30))
    for i in range(8):
        S("v_cmp_gt_i32 vcc, %d, v%d" % (16 * (i // 4) + i % 4, THR)); S("v_cndmask_b32 v%d, 0, v11, vcc" % (SA + i))
    for u in range(4): mf32(S, SA, KF[u], QF[u], SA); mf32(S, SB, KF[4 + u], QF[u], SB)
    flag_get(S)
    S("v_max3_f32 v%d, v%d, v%d, v%d" % (MX, SA, SA + 1, SA + 2))
    for i in (3, 5): S("v_max3_f32 v%d, v%d, v%d, v%d" % (MX, MX, SA + i, SA + i + 1))
    S("v_max_f32 v%d, v%d, v%d" % (MX, MX, SA + 7)); xl(MX, "v_max_f32")
    for r in range(SA, SA + 8): S("v_sub_f32 v%d, v%d, v%d" % (r, r, MX))
    for r in range(SA, SA + 8): S("v_exp_f32 v%d, v%d" % (r, r))
    for q in range(4): cvt(PB + q, SA + 2 * q, SA + 2 * q + 1)
    S("v_add_f32 v%d, v%d, v%d" % (ZX, SA, SA + 1))
    for r in range(SA + 2, SA + 8): S("v_add_f32 v%d, v%d, v%d" % (ZX, ZX, r))
    for i in range(4): mf32(S, OO[i], VF[i], PB, "0")
    xl(ZX, "v_add_f32")
    S("s_cmp_lg_u32 s66, s44"); S("s_cbranch_scc1 %s" % L("q_back2"))
    A.label(L("q_top"))
    hq(0)
    S = Seq(A)
    S("s_add_u32 s56, s44, s43"); S("s_lshl_b32 s57, s44, 7"); S("s_mul_i32 s55, s44, 40960")
    S("s_lshl_b32 s26, s56, 18"); S("s_add_u32 s26, s26, s53"); S("s_lshl_b32 s28, s59, 11"); S("s_add_u32 s29, s26, s28"); S("s_add_u32 s29, s29, 4096")
    S("s_lshl_b32 s27, s58, 12"); S("s_add_u32 s27, s27, s28"); S("v_add_u32 v10, s27, v%d" % VH)
    poll(S, "s52", 3, "v_cmp_ge_u32 vcc, s57, v191", "cf", sleep=P.get("QS", 1))
    S = Seq(A)
    KMF = [24 + 4 * i for i in range(4)]; VM = [40, 44]
    hq(5)
    def dflag(stage):
        A("s_lshl_b32 s27, s20, 12"); A("s_lshl_b32 s28, s22, 7"); A("s_add_u32 s27, s27, s28"); A("s_add_u32 s27, s27, %d" % (WS_DFL - 3 * 4096))
        A("s_lshl_b32 s28, s101, 2"); A("s_add_u32 s28, s28, %s" % stage); A("v_mov_b32 v11, s28")
        A("s_mov_b64 exec, 1"); A("buffer_store_dword v11, v0, s[8:11], s27 offen sc1"); A("s_mov_b64 exec, -1")
    for u in range(4): S("buffer_load_dwordx4 %s, v0, s[8:11], s26 offen offset:%d sc1" % (r4(KMF[u]), 1024 * u))
    for i in range(2): S("buffer_load_dwordx4 %s, v0, s[8:11], s29 offen offset:%d sc1" % (r4(VM[i]), 1024 * i))
    def late_stores(E):
        E("s_add_u32 s28, s68, %d" % (16 * 8192))
        for T in range(2): E("buffer_store_dwordx4 %s, v%d, s[8:11], %s offen sc1" % (r4(104 + 4 * T), XDA, "s28" if T else "s68"))
        E("s_mov_b32 exec_hi, 0"); E("buffer_store_dwordx2 %s, v%d, s[8:11], s67 offen sc1" % (r2(RES), XOA))
        E("s_mov_b32 exec_lo, 0x000f000f"); E("buffer_store_dwordx2 %s, v%d, s[8:11], s67 offen offset:256 sc1" % (r2(RES + 2), XOA)); E("s_mov_b64 exec, -1")
    for u in range(4): mf32(S, SM, KMF[u], QF[u], "0" if u == 0 else SM)
    hq(6)
    S("v_max3_f32 v%d, v%d, v%d, v%d" % (M2, MX, SM, SM + 1)); S("v_max3_f32 v%d, v%d, v%d, v%d" % (M2, M2, SM + 2, SM + 3)); xl(M2, "v_max_f32", False)
    S("v_sub_f32 v%d, v%d, v%d" % (AL, MX, M2))
    for r in range(SM, SM + 4): S("v_sub_f32 v%d, v%d, v%d" % (r, r, M2))
    S("v_exp_f32 v%d, v%d" % (AL, AL))
    for r in range(SM, SM + 4): S("v_exp_f32 v%d, v%d" % (r, r))
    S("v_add_f32 v%d, v%d, v%d" % (M2, SM, SM + 1)); S("v_add_f32 v%d, v%d, v%d" % (MX, SM + 2, SM + 3)); S("v_add_f32 v%d, v%d, v%d" % (M2, M2, MX)); xl(M2, "v_add_f32", False)
    S("v_fmac_f32 v%d, v%d, v%d" % (M2, AL, ZX)); S("v_rcp_f32 v%d, v%d" % (M2, M2))
    S("v_mul_f32 v%d, v%d, v%d" % (AL, AL, M2))
    for r in range(SM, SM + 4): S("v_mul_f32 v%d, v%d, v%d" % (r, r, M2))
    cvt(SM, SM, SM + 1); cvt(SM + 1, SM + 2, SM + 3)
    for r in range(OO[0], OO[0] + 16, 2): S("v_pk_mul_f32 %s, %s, %s op_sel_hi:[1,0]" % (r2(r), r2(r), r2(AL)))
    for i in range(4): mf16(S, OO[i], VM[i // 2] + 2 * (i % 2), SM, OO[i])
    for j in range(2):
        for i in range(4): cvt(56 + 4 * j + i, OO[2 * j] + i, OO[2 * j + 1] + i)
        S("ds_write_b128 v10, %s offset:%d" % (r4(56 + 4 * j), LQ_EO - LQ_EQ + j * 1024))
    S.wait_lds_all(); S("s_barrier")
    OF = [24 + 4 * i for i in range(8)]
    hq(7)
    for qt in range(2):
        for u in range(4): rd(S, OF[4 * qt + u], VH, LQ_EO - LQ_EQ + 4096 * qt + 1024 * u)
    late_stores(S)
    S("v_mov_b64 %s, %s" % (r2(RES), r2(RESN))); S("v_mov_b64 %s, %s" % (r2(RES + 2), r2(RESN + 2)))
    A("s_cmp_ge_u32 s46, 64"); A("s_cbranch_scc1 %s" % L("q_tb"))
    A("s_sub_u32 s29, 40960, s45"); x_dma(Seq(A), "s46", "s29")
    A.label(L("q_nx"))
    S("s_mov_b32 s62, s51")
    XA = lambda qt, T: 64 + 40 * qt + 4 * T
    PK = 56
    def epi(qt):
        it = []
        for i in range(4):
            o = PK + 4 * (i % 2)
            it += [lambda i=i, o=o, q=q: cvt(o + q, XA(qt, 2 * q) + i, XA(qt, 2 * q + 1) + i) for q in range(4)]
            it += [lambda i=i: cvt(XA(qt, 8) + i, XA(qt, 8) + i, XA(qt, 9) + i)]
            if i % 2:
                def sto(i=i):
                    S("s_add_u32 s27, s48, %d" % ((16 * qt + i - 1) * 40960)); S("s_add_u32 s28, s27, 40960")
                    lst(["buffer_store_dwordx4 %s, v%d, s[8:11], %s offen" % (r4(PK + 4 * k_), PSX, ("s27", "s28")[k_]) for k_ in range(2)] +
                        ["buffer_store_dword v%d, v%d, s[8:11], %s offen offset:256" % (XA(qt, 8) + i - 1 + k_, PSY, ("s27", "s28")[k_]) for k_ in range(2)], S)
                it.append(sto)
        return it
    pend = []
    for qt in range(2):
        n_ = 0
        for T0_ in range(0, 10, 5):
            for u in range(4):
                for T in range(T0_, T0_ + 5):
                    mf32(S, XA(qt, T), OF[4 * qt + u], breg(40 + T * 4 + u), "0" if u == 0 else XA(qt, T)); n_ += 1
                    if n_ > 4 and pend: pend.pop(0)()
        pend = epi(qt)
    while pend: pend.pop(0)()
    hq(8)
    S("s_mov_b32 s66, s69"); S("s_cmp_lt_u32 s66, 64"); S("s_cbranch_scc1 %s" % L("q_front"))
    S = Seq(A)
    def arrive(tag):
        S("s_waitcnt vmcnt(0)"); S("s_barrier"); arr_store(tag)
    arrive("q_na")
    A.label(L("q_back2"))
    A("s_sub_u32 s27, s44, 48"); A("s_lshr_b32 s29, s27, 3"); A("s_add_u32 s29, s29, 1"); A("s_and_b32 s27, s27, 0xfffffff7"); A("s_cmp_ge_u32 s27, 5"); A("s_cbranch_scc1 %s" % L("q_nf1")); A("s_cmp_lg_u32 s21, 3"); A("s_cbranch_scc1 %s" % L("q_nf1"))
    dflag("s29")
    A.label(L("q_nf1"))
    hq(9)
    poll(S, "s62", 0xff, "v_cmp_ne_u32 vcc, 0x01010101, v191", "ar", sleep=0)
    S = Seq(A)
    B0, D0 = 24, 64
    hq(10)
    for j in range(8):
        if j: S("s_add_u32 s27, s48, %d" % (j * 5120))
        S("buffer_load_dwordx4 %s, v%d, s[8:11], %s offen sc1" % (r4(B0 + 4 * j), RLA, "s27" if j else "s48"))
        if j % 4 == 0: S("buffer_load_dwordx4 %s, v%d, s[8:11], %s offen offset:256 sc1" % (r4(B0 + 32 + j), RLB, "s27" if j else "s48"))
    XV = 72
    for q in range(4): S("v_lshlrev_b32 v%d, 16, v%d" % (XV + 2 * q, RES + q)); S("v_and_b32 v%d, 0xffff0000, v%d" % (XV + 2 * q + 1, RES + q))
    S("s_add_u32 s67, s55, s54")
    for j in range(8):
        mf32(S, D0, SELR, B0 + 4 * j, "0" if j == 0 else D0)
        if j % 4 == 0: mf32(S, D0 + 4, SELR, B0 + 32 + j, "0" if j == 0 else D0 + 4)
    hq(11)
    for sh in (8, 4):
        for q in range(4): S("v_add_f32_dpp v%d, v%d, v%d row_ror:%d row_mask:0xf bank_mask:0xf" % (D0 + 4 + q, D0 + 4 + q, D0 + 4 + q, sh))
    for q in range(4): S("v_pk_add_f32 %s, %s, %s" % (r2(XV + 2 * q), r2(XV + 2 * q), r2(D0 + 2 * q)))
    for q in range(4): cvt(RES + q, XV + 2 * q, XV + 2 * q + 1)
    for q in range(4): S("v_lshlrev_b32 v%d, 16, v%d" % (XV + 2 * q, RES + q)); S("v_and_b32 v%d, 0xffff0000, v%d" % (XV + 2 * q + 1, RES + q))
    ME, DV = 80, 84
    def wsum(dst, src):
        S("v_pk_add_f32 %s, %s, %s" % (r2(92), r2(src), r2(src + 2))); S("v_pk_add_f32 %s, %s, %s" % (r2(94), r2(src + 4), r2(src + 6)))
        S("v_add_f32 v92, v92, v93"); S("v_add_f32 v94, v94, v95"); S("v_fma_f32 v%d, v94, 0.5, v92" % dst) if False else None
        S("v_mul_f32 v94, 0x3e800000, v94"); S("v_add_f32 v%d, v92, v94" % dst)
        for sh in (8, 4, 2, 1): S("v_add_f32_dpp v%d, v%d, v%d row_ror:%d row_mask:0xf bank_mask:0xf" % (dst, dst, dst, sh))
        xl(dst, "v_add_f32", False)
    wsum(ME, XV); S("v_mul_f32 v%d, 0x%08x, v%d" % (ME, f2u(1 / 160), ME))
    for q in range(4): S("v_pk_add_f32 %s, %s, %s op_sel_hi:[1,0] neg_lo:[0,1] neg_hi:[0,1]" % (r2(DV + 2 * q), r2(XV + 2 * q), r2(ME)))
    for q in range(4): S("v_pk_mul_f32 %s, %s, %s" % (r2(DV + 2 * q), r2(DV + 2 * q), r2(DV + 2 * q)))
    wsum(ME + 1, DV)
    S("s_lshl_b32 s27, s21, 3"); S("s_add_u32 s27, s27, %d" % LQ_ST); S("v_mov_b32 v10, s27"); S("v_mov_b32 v11, %d" % LQ_ST)
    S("ds_write_b64 v10, %s" % r2(ME)); S.wait_lds_all(); S("s_barrier")
    rd(S, DV, 11, 0); rd(S, DV + 4, 11, 16)
    S("v_pk_add_f32 %s, %s, %s" % (r2(ME), r2(DV), r2(DV + 2))); S("v_pk_add_f32 %s, %s, %s" % (r2(92), r2(DV + 4), r2(DV + 6))); S("v_pk_add_f32 %s, %s, %s" % (r2(ME), r2(ME), r2(92)))
    S("v_mul_f32 v%d, 0x3e800000, v%d" % (ME, ME))
    for e in range(4): S("v_sub_f32 v%d, v%d, v%d" % (DV + 2 * e, DV + 2 * e, ME))
    for e in range(4): S("v_mul_f32 v%d, 0x43200000, v%d" % (DV + 2 * e + 1, DV + 2 * e))
    for e in range(4): S("v_fmac_f32 v%d, v%d, v%d" % (ME + 1, DV + 2 * e, DV + 2 * e + 1))
    S("v_mov_b32 v%d, 0x3727c5ac" % (ME + 2)); S("v_fmac_f32 v%d, 0x3acccccd, v%d" % (ME + 2, ME + 1)); S("v_rsq_f32 v%d, v%d" % (ME + 2, ME + 2))
    for q in range(4): S("v_pk_add_f32 %s, %s, %s op_sel_hi:[1,0] neg_lo:[0,1] neg_hi:[0,1]" % (r2(XV + 2 * q), r2(XV + 2 * q), r2(ME)))
    for q in range(4): S("v_pk_mul_f32 %s, %s, %s op_sel_hi:[1,0]" % (r2(XV + 2 * q), r2(XV + 2 * q), r2(ME + 2)))
    for q in range(4): cvt(XV + q, XV + 2 * q, XV + 2 * q + 1, "v_cvt_pk_f16_f32")
    lst(["s_mov_b32 exec_hi, 0", "buffer_store_dwordx2 %s, v%d, s[8:11], s63 offen" % (r2(XV), XHA), "s_mov_b32 exec_lo, 0x000f000f", "buffer_store_dwordx2 %s, v%d, s[8:11], s64 offen" % (r2(XV + 2), XHA), "s_mov_b64 exec, -1"], S)
    hq(12)
    S("s_add_u32 s62, s51, 40960"); arrive("q_nb")
    hq(13)
    A("s_cmp_ge_u32 s22, 20"); A("s_cbranch_scc1 %s" % L("q_tab"))
    poll(S, "s62", 0xff, "v_cmp_ne_u32 vcc, 0x01010101, v191", "ar", sleep=0)
    hq(14)
    A("s_cmp_ge_u32 s21, 2"); A("s_cbranch_scc1 %s" % L("q_nd"))
    S = Seq(A)
    S("s_mul_i32 s27, s21, 20480"); S("s_add_u32 s27, s27, s63")
    for f in range(20):
        S("buffer_load_dwordx4 %s, v0, s[8:11], s27 offen offset:%d sc1" % (r4(24 + 4 * f), (f % 4) * 1024))
        if f % 4 == 3: S("s_add_u32 s27, s27, 4096")
    TB = [112 + 4 * i for i in range(8)]
    sq = [(ks, T) for ks in range(20) for T in range(2)]
    def trd(i):
        if i < 40: rd(S, TB[i % 8], FTA, (sq[i][1] * 20 + sq[i][0]) * 1024)
    for i in range(7): trd(i)
    S("s_lshl_b32 s27, s44, 7"); S("s_mul_i32 s68, s101, %d" % XD_LAYER); S("s_add_u32 s68, s68, s27"); S("s_add_u32 s68, s68, %d" % WS_XD)
    for i, (ks, T) in enumerate(sq):
        S("v_mfma_f32_16x16x32_f16 %s, %s, %s, %s" % (r4(104 + 4 * T), r4(24 + 4 * ks), r4(TB[i % 8]), "0" if ks == 0 else r4(104 + 4 * T)))
        trd(i + 7)
    S("s_nop 7")
    A.label(L("q_nd"))
    hq(15)
    A("s_sub_u32 s27, s44, 54"); A("s_cmp_ge_u32 s27, 5"); A("s_cbranch_scc1 %s" % L("q_nt"))
    A("s_sub_u32 s27, 40960, s45"); idft_table(Seq(A), "s27", "v0", "s21")
    if P.get("FP", 1):
        A("s_sub_u32 s27, s81, 1"); A("s_cmp_ge_u32 s27, 159"); A("s_cbranch_scc1 %s" % L("q_nt"))
        A("v_bfe_u32 v190, v0, 4, 3"); A("v_lshlrev_b32 v190, 12, v190"); A("v_bfe_u32 v191, v0, 7, 1"); A("v_mul_u32_u24 v191, 1280, v191"); A("v_add_u32 v190, v190, v191")
        A("s_lshr_b32 s31, s81, 4"); A("s_lshl_b32 s31, s31, 7"); A("s_add_u32 s31, s31, %d" % WS_DFL); A("s_lshl_b32 s32, s101, 2"); A("s_add_u32 s32, s32, 1")
        A("s_mov_b64 exec, 0x1f1f"); A("buffer_load_dword v191, v190, s[8:11], s31 offen sc1"); A("s_waitcnt vmcnt(0)"); A("v_cmp_gt_u32 vcc, s32, v191"); A("s_mov_b64 exec, -1")
        A("s_cbranch_vccnz %s" % L("q_nt"))
        A("v_lshlrev_b32 v24, 3, v0"); A("s_lshl_b32 s27, s81, 14"); A("s_lshl_b32 s28, s21, 12"); A("s_add_u32 s28, s28, s27"); A("s_add_u32 s28, s28, %d" % WS_WT)
        A("s_mov_b32 exec_hi, 0"); A("buffer_load_dword v25, v24, s[8:11], s28 offen sc1")
        A("s_and_b32 s28, s21, 1"); A("s_lshl_b32 s28, s28, 13"); A("s_add_u32 s27, s27, s28"); A("s_lshr_b32 s28, s21, 1"); A("s_mul_i32 s28, s28, %d" % (320 * 8192)); A("s_add_u32 s27, s27, s28")
        A("s_mul_i32 s28, s101, %d" % XD_LAYER); A("s_add_u32 s27, s27, s28"); A("s_add_u32 s27, s27, %d" % WS_XD)
        A("s_mov_b32 exec_hi, 0xffff"); A("buffer_load_dword v25, v24, s[8:11], s27 offen sc1"); A("s_mov_b64 exec, -1")
    A.label(L("q_nt"))
    A("s_add_u32 s48, s48, s49"); A("s_sub_u32 s49, 0, s49"); A("s_add_u32 s51, s51, 128")
    A("s_cmp_ge_u32 s69, 64"); A("s_cbranch_scc1 %s" % L("q_end")); advance(A); A("s_branch %s" % L("q_top"))
    A.label(L("q_end"))
    A("s_cmp_ge_u32 s21, 2"); A("s_cbranch_scc1 %s" % L("q_e1"))
    late_stores(A); A("s_waitcnt vmcnt(2)"); A("s_barrier"); A("s_cmp_lg_u32 s21, 0"); A("s_cbranch_scc1 %s" % L("bphase"))
    dflag("3"); A("s_branch %s" % L("bphase"))
    def tpoll(tag):
        A("s_cmp_lg_u32 s101, 0"); A("s_cbranch_scc1 %s" % L(tag + "2"))
        A("v_lshlrev_b32 v190, 3, v0"); A("s_mov_b32 exec_hi, 0x0fffffff"); A("s_mov_b32 s28, %d" % WS_TFL); A("s_mov_b32 s30, 0")
        A.label(L(tag + "l"))
        A("buffer_load_dword v191, v190, s[8:11], s28 offen sc1")
        A("s_add_u32 s30, s30, 1"); A("s_cmp_ge_u32 s30, %d" % (4 * SPIN_MAX)); A("s_cbranch_scc1 %s" % L("fail"))
        A("s_waitcnt vmcnt(0)"); A("v_cmp_ne_u32 vcc, 0x01010101, v191"); A("s_cbranch_vccz %s" % L(tag + "d")); A("s_sleep 8"); A("s_branch %s" % L(tag + "l"))
        A.label(L(tag + "d"))
        A("s_mov_b64 exec, -1")
        A.label(L(tag + "2"))
    A.label(L("q_tb"))
    A("s_cmp_ge_u32 s44, 59"); A("s_cbranch_scc1 %s" % L("q_nx"))
    tpoll("q_tp")
    A("s_sub_u32 s27, 40960, s45"); idft_table(Seq(A), "s27", "v0", "s21"); A("s_branch %s" % L("q_nx"))
    A.label(L("q_tab"))
    A("s_cmp_ge_u32 s44, 59"); A("s_cbranch_scc1 %s" % L("q_nd"))
    if P.get("PX1", 1): poll(A, "s62", 0xff, "v_cmp_ne_u32 vcc, 0x01010101, v191", "ar", sleep=1)
    A("s_cmp_ge_u32 s94, 2400"); A("s_cbranch_scc1 %s" % L("q_nd"))
    for r_ in range(24): A("v_mov_b32 v%d, v%d" % (32 + r_, r_))
    A("s_cmp_ge_u32 s20, 6"); A("s_cselect_b32 s93, 4, 1")
    A.label(L("q_tl"))
    lane_setup(A)
    A("s_cmp_ge_u32 s94, 800"); A("s_cbranch_scc1 %s" % L("q_wt"))
    A("s_mov_b32 s36, s94"); t2_frag(A); A("s_branch %s" % L("q_te"))
    A.label(L("q_wt"))
    A("s_sub_u32 s37, s94, 800"); A("s_lshr_b32 s36, s37, 8"); A("s_and_b32 s37, s37, 255"); wt_task(A, L("q_ws"), "s[90:91]")
    A.label(L("q_te"))
    A("s_add_u32 s94, s94, 240"); A("s_mov_b32 s40, 0x%08x" % f2u(C1)); A("s_mov_b32 s41, s40")
    A("s_cmp_ge_u32 s94, 2400"); A("s_cbranch_scc1 %s" % L("q_tf"))
    A("s_sub_u32 s93, s93, 1"); A("s_cmp_lg_u32 s93, 0"); A("s_cbranch_scc1 %s" % L("q_tl")); A("s_branch %s" % L("q_tr"))
    A.label(L("q_tf"))
    A("s_waitcnt vmcnt(0)"); A("v_mov_b32 v1, s21"); A("v_mov_b32 v2, 1"); A("s_mov_b64 exec, 1"); A("buffer_store_byte v2, v1, s[8:11], s95 offen sc1"); A("s_mov_b64 exec, -1")
    A.label(L("q_tr"))
    A("s_nop 1")
    for r_ in range(1, 24): A("v_mov_b32 v%d, v%d" % (r_, 32 + r_))
    A("s_branch %s" % L("q_nd"))
    A.label(L("q_e1"))
    A("s_barrier"); late_stores(A)

    A.label(L("bphase"))
    ht(3)
    def gbar(ph, between=None, ng=6):
        base = WS_BAR2 + ph * 4096
        lw = A.newlabel(L("gb")); ld = A.newlabel(L("gb")); la = A.newlabel(L("gb"))
        def spin(addr_setup, lanes, want):
            lp = A.newlabel(L("gs"))
            A("s_mov_b64 exec, 0x%x" % lanes); addr_setup(); A("s_mov_b32 s30, 0")
            A.label(lp)
            A("buffer_load_dword v191, v190, s[8:11], s28 offen sc1")
            A("s_add_u32 s30, s30, 1"); A("s_cmp_ge_u32 s30, %d" % (SPIN_MAX * 4)); A("s_cbranch_scc1 %s" % L("fail"))
            A("s_waitcnt vmcnt(0)"); A("v_cmp_ne_u32 vcc, 0x%x, v191" % want); A("s_cbranch_vccnz %s" % lp)
        if ng < 6: A("s_cmp_ge_u32 s82, %d" % ng); A("s_cbranch_scc1 %s" % la)
        A("s_waitcnt vmcnt(0) lgkmcnt(0)"); A("s_barrier")
        A("s_cmp_lg_u32 s83, 0"); A("s_cbranch_scc1 %s" % la)
        A("s_mov_b32 s23, s85"); A("s_add_u32 s28, s86, %d" % base); A("s_lshl_b32 s27, s82, 7")
        A("s_mov_b64 exec, 1"); A("s_add_u32 s31, s27, s84"); A("v_mov_b32 v190, s31"); A("v_mov_b32 v191, 1")
        lst(["buffer_store_byte v191, v190, s[8:11], s28 offen"])
        A("s_cmp_lg_u32 s84, 31"); A("s_cbranch_scc1 %s" % lw)
        A("s_mov_b64 exec, -1"); A("v_mbcnt_lo_u32_b32 v189, -1, 0")
        spin(lambda: A("v_lshl_add_u32 v190, v189, 2, s27"), 0xff, 0x01010101)
        A("s_mov_b64 exec, 1"); A("v_mov_b32 v190, s27"); A("v_mov_b32 v191, 1"); A("buffer_store_dword v191, v190, s[8:11], s28 offen offset:1024 sc1")
        A.label(lw)
        A("s_mov_b64 exec, -1")
        A.label(la)
        if between: between()
        A("s_cmp_lg_u32 s83, 0"); A("s_cbranch_scc1 %s" % ld)
        A("s_add_u32 s28, s86, %d" % base); A("v_mbcnt_lo_u32_b32 v189, -1, 0")
        spin(lambda: A("v_lshlrev_b32 v190, 7, v189\nv_add_u32 v190, 1024, v190"), (1 << ng) - 1, 1)
        A("s_mov_b64 exec, -1")
        A.label(ld)
        A("s_barrier")
    A("s_mov_b32 s16, s98"); A("s_and_b32 s17, s99, 0xffff")
    A("s_cmp_eq_u32 s101, 1"); A("s_cbranch_scc1 %s" % L("osrd"))
    A("s_add_u32 s16, s8, %d" % WS_X2); A("s_addc_u32 s17, s9, 0")
    A.label(L("osrd"))
    def restore():
        A("s_add_u32 s20, s82, 2"); A("s_mov_b32 s21, s83"); A("s_mov_b32 s22, s84"); A("s_mov_b32 s23, s85")
    def tid():
        A("v_mbcnt_lo_u32_b32 v0, -1, 0"); A("v_mbcnt_hi_u32_b32 v0, -1, v0"); A("s_lshl_b32 s27, s83, 6"); A("v_add_u32 v0, s27, v0"); A("s_mov_b32 s2, s81")
    fpre, fmain = fft2(A, L("fft"), 81920, hb)
    def dpoll(stage):
        ld = A.newlabel(L("dp")); lp = A.newlabel(L("dp"))
        A("s_cmp_lg_u32 s83, 0"); A("s_cbranch_scc1 %s" % ld)
        A("v_and_b32 v190, 7, v0"); A("v_lshlrev_b32 v190, 12, v190"); A("v_bfe_u32 v191, v0, 3, 1"); A("v_mul_u32_u24 v191, 1280, v191"); A("v_add_u32 v190, v190, v191")
        A("s_mov_b64 exec, 0x1f1f")
        A("s_lshr_b32 s31, s34, 5"); A("s_lshl_b32 s31, s31, 7"); A("s_add_u32 s31, s31, %d" % WS_DFL); A("s_lshl_b32 s32, s101, 2"); A("s_add_u32 s32, s32, %d" % (stage + 1)); A("s_mov_b32 s30, 0")
        A.label(lp)
        A("buffer_load_dword v191, v190, s[8:11], s31 offen sc1")
        A("s_add_u32 s30, s30, 1"); A("s_cmp_ge_u32 s30, %d" % (SPIN_MAX * 4)); A("s_cbranch_scc1 %s" % L("fail"))
        if stage == 1: A("s_sleep 4")
        A("s_waitcnt vmcnt(0)"); A("v_cmp_gt_u32 vcc, s32, v191"); A("s_cbranch_vccnz %s" % lp)
        A("s_mov_b64 exec, -1")
        A.label(ld)
        A("s_barrier")
        if stage == 2: ht2(8)
    A("s_cmp_ge_u32 s82, 1"); A("s_cbranch_scc1 %s" % L("tabok2"))
    tpoll("b_tp")
    for hf in range(2): idft_table(Seq(A), "%d" % (40960 * hf), "v0", "s83")
    A.label(L("tabok2"))
    def early():
        A("s_min_u32 s28, s89, 63"); A("s_lshl_b32 s29, s28, 12"); A("s_add_u32 s29, s29, %d" % WS_STAT); A("v_lshlrev_b32 v190, 3, v102")
        A("s_mov_b32 exec_hi, 0"); A("buffer_load_dword v191, v190, s[8:11], s29 offen sc1"); A("s_mov_b64 exec, 1")
        A("s_mul_i32 s28, s28, 40960"); A("s_lshl_b32 s29, s88, 7"); A("s_add_u32 s29, s29, s28"); A("buffer_load_dword v191, v190, s[16:19], s29 offen sc1")
        A("s_lshl_b32 s29, s88, 11"); A("s_add_u32 s29, s29, s28"); A("s_add_u32 s29, s29, %d" % (WS_XNF + XNF_LAYER)); A("buffer_load_dword v191, v190, s[8:11], s29 offen sc1")
        A("s_mul_i32 s28, s101, %d" % XNF_LAYER); A("s_min_u32 s29, s2, 159"); A("s_lshl_b32 s29, s29, 14"); A("s_add_u32 s28, s28, s29"); A("s_lshl_b32 s29, s83, 9"); A("s_add_u32 s28, s28, s29"); A("s_add_u32 s28, s28, %d" % WS_ZF)
        A("s_cmp_lt_u32 s2, 160"); A("s_cselect_b32 s28, s28, 0x%x" % OOB); A("buffer_load_dword v191, v190, s[8:11], s28 offen sc1")
        A("s_mov_b64 exec, -1")
    tid(); fpre()
    fmain(dpoll, early, P.get('DRY', 0)); ht2(9)
    hb(11); gbar(1, None, 8 if P.get('CF', 1) else 6); ht2(10); hb(12)
    A("s_cmp_ge_u32 s89, 64"); A("s_cbranch_scc1 %s" % L("noid"))
    A("v_mbcnt_lo_u32_b32 v0, -1, 0"); A("v_mbcnt_hi_u32_b32 v0, -1, v0"); A("s_mov_b32 s23, s85")
    idft(A, lambda x: L("idend") if (x == "end" and (P.get("HT") or P.get("HD"))) else L(x), lst, L("fail"), SPIN_MAX, hb)
    A.label(L("noid"))
    if P.get("HT") or P.get("HD"): A.label(L("idend"))
    restore(); ht(5)
    A("s_cmp_eq_u32 s101, 1"); A("s_cbranch_scc1 %s" % L("end"))
    A("s_mov_b32 s101, 1")
    A("v_mbcnt_lo_u32_b32 v0, -1, 0"); A("v_mbcnt_hi_u32_b32 v0, -1, v0"); A("v_lshlrev_b32 v0, 4, v0")
    A("s_waitcnt lgkmcnt(0)"); A("s_barrier")
    A("s_branch %s" % L("bulk"))
    flush_ool()
    A.label(L("fail"))
    A("s_mov_b64 exec, 1"); A("v_mov_b32 v12, 1"); A("v_mov_b32 v13, 48"); A("buffer_atomic_add v12, v13, s[12:15], 0 offen")
    A.label(L("end"))
    A("s_endpgm")
    return k
```
